```python
import torch

def _softmax(x, axis=-1):
    return torch.softmax(x, dim=axis)
def _gelu(x):
    return torch.nn.functional.gelu(x, approximate="tanh")
def _silu(x):
    return torch.nn.functional.silu(x)
def _sigmoid(x):
    return torch.sigmoid(x)
def _layernorm(x, axis=-1, eps=1e-5):
    m = x.mean(dim=axis, keepdim=True)
    v = x.var(dim=axis, keepdim=True, unbiased=False)
    return (x - m) / torch.sqrt(v + eps)
def _scatter_add(tgt, idx, src, axis=0):
    return tgt.clone().index_add_(axis, idx, src)
def _segment_sum(src, seg, n):
    out = torch.zeros((n,) + src.shape[1:], dtype=src.dtype)
    return out.index_add_(0, seg, src)
def _pad(x, pw):
    flat = tuple(v for pair in reversed(pw) for v in pair)
    return torch.nn.functional.pad(x, flat)

kernel_name = 'sequential_preLN__spectral_gfnet__glu_gated_geglu__prompt'

def setup_inputs():

    _w = (lambda a: (lambda t: t.to(torch.bfloat16) if t.is_floating_point() else t)(torch.as_tensor(a)))
    def _A_setup():
        B, S, D = 1, 2048, 512
        Df = D // 2 + 1
        return {
            "x": _w((lambda *s: torch.randn(*s, dtype=torch.bfloat16) * 0.05)(B, S, D)),
            "w_r": _w((lambda *s: torch.randn(*s, dtype=torch.bfloat16) * 0.4)(S, Df) * 0.02),
            "w_i": _w((lambda *s: torch.randn(*s, dtype=torch.bfloat16) * 0.4)(S, Df) * 0.02),
        }
    _A_in = _A_setup()

    def _B_setup():
        B, S, Dm, Df = 1, 2048, 512, 1376
        return {
            "x": _w((lambda *s: torch.randn(*s, dtype=torch.bfloat16) * 0.05)(B, S, Dm)),
            "w_gate": _w((lambda *s: torch.randn(*s, dtype=torch.bfloat16) * 0.4)(Dm, Df) * (Dm ** -0.5)),
            "w_up": _w((lambda *s: torch.randn(*s, dtype=torch.bfloat16) * 0.4)(Dm, Df) * (Dm ** -0.5)),
            "w_down": _w((lambda *s: torch.randn(*s, dtype=torch.bfloat16) * 0.4)(Df, Dm) * (Df ** -0.5)),
        }
    _B_in = _B_setup()

    return {
        "A_x": _A_in["x"],
        "A_w_r": _A_in["w_r"],
        "A_w_i": _A_in["w_i"],
        "B_x": _B_in["x"],
        "B_w_gate": _B_in["w_gate"],
        "B_w_up": _B_in["w_up"],
        "B_w_down": _B_in["w_down"],
    }

def reference(A_x, A_w_r, A_w_i, B_x, B_w_gate, B_w_up, B_w_down):
    def _A_ref(x, w_r, w_i):
        B, S, D = x.shape
        X = (lambda x, axes=(-2,-1): torch.fft.rfft2(x.float(), dim=axes))(x, axes=(-2, -1))
        W = w_r + 1j * w_i
        X = X * W
        y = (lambda x, s, axes=(-2,-1): torch.fft.irfft2(x, s=s, dim=axes).to(torch.bfloat16))(X, (S, D), axes=(-2, -1))
        return y

    def _B_ref(x, w_gate, w_up, w_down):
        g = torch.einsum("bsd,df->bsf", x, w_gate)
        u = torch.einsum("bsd,df->bsf", x, w_up)
        h = _gelu(g) * u
        return torch.einsum("bsf,fd->bsd", h, w_down)

    x = A_x
    h = x + _A_ref(_layernorm(x, axis=-1), A_w_r, A_w_i)
    h2 = h + _B_ref(_layernorm(h, axis=-1), B_w_gate, B_w_up, B_w_down)
    return h2
```

```python
import numpy as np
S, D, F = 2048, 512, 1376

def f2bf(x):
    u = np.ascontiguousarray(x, np.float32).view(np.uint32).astype(np.uint64)
    return (((u + 0x7FFF + ((u >> 16) & 1)) >> 16) & 0xFFFF).astype(np.uint16)
def bf2f(u): return (np.asarray(u).astype(np.uint32) << 16).view(np.float32)
def f2h(x): return np.asarray(x, np.float64).astype(np.float16).view(np.uint16)
def h2f(u): return np.asarray(u).view(np.float16).astype(np.float32)

ZT_STRIDE = 8192
WT_STRIDE = 8192
off = 0x10000
def alloc(n):
    global off
    o = off; off = (off + n + 4095) // 4096 * 4096; return o
ZT = alloc(256 * ZT_STRIDE)
WT = alloc(256 * WT_STRIDE)
SIG = alloc(S * 4)
MU = alloc(S * 4)
HT = alloc(512 * S * 2)
WP = alloc(188 * 16384)
WD = alloc(86 * 16384)
HF = alloc(86 * 65536)
HRES = alloc(S * D * 2)
STAMP = alloc(1 << 20)
WS_USED = off

def kd_of(c):
    s, j = c >> 4, c & 15
    if c == 0: return 256
    if j < 8: return s + 32 * j
    return (16 if s == 0 else 32 - s) + 32 * (j - 8)
KD = np.array([kd_of(c) for c in range(256)])
def s_of_m(m):
    w, bl, g, be, r = m >> 9, (m >> 5) & 15, (m >> 3) & 3, (m >> 2) & 1, m & 3
    return 32 * (16 * w + 4 * g + r) + 16 * be + bl
SOFM = np.array([s_of_m(m) for m in range(S)])
def rho(c, part): return 64 * (c >> 5) + 32 * part + (c & 31)

def basis():
    C = np.zeros((D, 512)); d = np.arange(D)
    for c in range(256):
        ph = 2 * np.pi * KD[c] * (d + 0.5) / 512
        if c == 0: C[:, rho(0, 1)] = -np.sin(ph) / np.sqrt(512)
        else:
            C[:, rho(c, 0)] = np.cos(ph) / 16; C[:, rho(c, 1)] = -np.sin(ph) / 16
    return C

L = np.arange(64); G_ = L >> 4; X_ = L & 15; E_ = np.arange(8)
def clean(a):
    a = np.where(np.abs(a) < 1e-12, 0.0, a); return a + 0.0
def t_FA():
    d1 = 16 * (E_[None, :] >> 2) + 4 * G_[:, None] + (E_[None, :] & 3)
    th = 2 * np.pi * X_[:, None] * d1 / 32
    re = np.cos(th); im = np.where(X_[:, None] == 0, np.cos(np.pi * d1), -np.sin(th))
    return f2bf(clean(np.stack([re, im])))
def t_GB(zpath):
    out = np.zeros((16, 2, 64, 8))
    for s in range(16):
        for l in range(64):
            g, j = l >> 4, l & 15; c = 16 * s + j
            for e in range(8):
                d2, comp = 4 * g + (e & 3), e >> 2
                ph = 2 * np.pi * KD[c] * (d2 + 0.5) / 512; co, si = np.cos(ph), np.sin(ph)
                if c == 0:
                    v = (-si / np.sqrt(2) if comp == 0 else 0.0)
                    re, im = (v, 0.0) if zpath else (0.0, v)
                elif s == 0:
                    use = (comp == 0) if j < 8 else (comp == 1)
                    re, im = (co, -si) if use else (0.0, 0.0)
                elif j < 8: re, im = (co, -si) if comp == 0 else (si, co)
                else: re, im = (co, -si) if comp == 0 else (-si, -co)
                out[s, 0, l, e] = re; out[s, 1, l, e] = im
    return f2h(clean(out / 4)) if zpath else f2bf(clean(out / 16))
def cs_frag(x, y, n, sgn, scale):
    th = 2 * np.pi * x[:, None] * y / n
    return clean(np.concatenate([np.cos(th), sgn * np.sin(th)], axis=1) * scale)
R4 = np.arange(4)
def t_B1(): return f2h(np.array([[cs_frag(16*w + X_, 16*((u+w) % 4) + 4*G_[:, None] + R4, 64, 1, 1/8) for u in range(4)] for w in range(4)]))
def t_A4(): return f2bf(np.array([[cs_frag(16*w + X_, 16*((u+w) % 4) + 4*G_[:, None] + R4, 64, -1, 1/8) for u in range(4)] for w in range(4)]))
def t_A2(): return f2h(np.array([[cs_frag(16*t + X_, 16*b + 4*G_[:, None] + R4, 32, 1, 1/8) for b in range(2)] for t in range(2)]))
def t_B3(): return f2bf(np.array([[cs_frag(16*b + X_, 16*t + 4*G_[:, None] + R4, 32, -1, 1/4) for t in range(2)] for b in range(2)]))

def model(ref):
    x = bf2f(ref['A_x']).reshape(S, D).astype(np.float64)
    wr = bf2f(ref['A_w_r']).astype(np.float64); wi = bf2f(ref['A_w_i']).astype(np.float64)
    wg = bf2f(ref['B_w_gate']).astype(np.float64); wu = bf2f(ref['B_w_up']).astype(np.float64); wd = bf2f(ref['B_w_down']).astype(np.float64)
    M = {}
    mu = x.mean(1); sig = np.sqrt(x.var(1) + 1e-5); z = (x - mu[:, None]) / sig[:, None]
    M['SIG'] = sig[SOFM]; M['MU'] = mu[SOFM]
    C = basis(); Zh = z @ C
    Zc = np.stack([Zh[:, rho(c, 0)] + 1j * Zh[:, rho(c, 1)] for c in range(256)], 1)
    Zc[:, 0] = Zh[:, rho(0, 1)]
    Zr = Zc.reshape(4, 4, 4, 32, 256)
    zt = np.concatenate([Zr.real.transpose(4, 0, 3, 1, 2), Zr.imag.transpose(4, 0, 3, 1, 2)], axis=-1)
    M['ZT'] = zt.reshape(256, -1)
    def wt(a): return a[:, 1:].reshape(2, 4, 4, 4, 16, 256).transpose(5, 0, 3, 1, 4, 2)
    M['WT'] = np.stack([wt(wr), wt(wi)], -1).reshape(256, -1)
    W = (wr + 1j * wi)[:, KD]
    Y = np.fft.ifft(np.fft.fft(Zc, axis=0) * W, axis=0)
    Hc = sig[:, None] * Zc + Y
    Hh = np.zeros((S, 512))
    for c in range(256):
        if c == 0: Hh[:, rho(0, 1)] = Hc[:, 0].real
        else: Hh[:, rho(c, 0)] = Hc[:, c].real; Hh[:, rho(c, 1)] = Hc[:, c].imag
    Hm = Hh[SOFM]
    M['HT'] = Hm.reshape(16, 128, 512).transpose(0, 2, 1)
    Wg = C.T @ wg; Wu = C.T @ wu
    kk = 32 * np.arange(16)[:, None, None] + 4 * np.arange(4)[None, :, None] + (16 * (E_ >> 2) + (E_ & 3))[None, None, :]
    wp = np.zeros((188, 16, 2, 4, 2, 4, 8))
    for t in range(16):
        for ga in range(4):
            for mu_ in range(2):
                for pi in range(2):
                    wp[t, :, mu_, :, pi, ga, :] = C[16 * t + 4 * ga + 2 * mu_ + pi][kk]
    for tau in range(172):
        for ga in range(4):
            for pi in range(2):
                f = 8 * tau + 2 * ga + pi
                wp[16 + tau, :, 0, :, pi, ga, :] = Wg[:, f][kk]; wp[16 + tau, :, 1, :, pi, ga, :] = Wu[:, f][kk]
    M['WP'] = wp
    i = np.arange(32); nloc = 2 * (i & 15) + (i >> 4)
    M['WD'] = wd.reshape(86, 2, 8, 16, 32)[:, :, :, :, nloc].transpose(0, 3, 1, 4, 2)
    h = Hm @ C.T + mu[SOFM][:, None]
    M['HRES'] = h
    rstd = 1 / np.sqrt((Hm ** 2).sum(1) / 512 + 1e-5)
    g = (Hm @ Wg) * rstd[:, None]; u = (Hm @ Wu) * rstd[:, None]
    H = 0.5 * g * (1 + np.tanh(np.sqrt(2 / np.pi) * (g + 0.044715 * g ** 3))) * u
    M['HF'] = H.reshape(64, 32, 86, 2, 8).transpose(2, 0, 3, 1, 4)
    out = np.zeros((S, D)); out[SOFM] = h + H @ wd
    M['out'] = out
    return M

if __name__ == '__main__':
    ref = np.load('ref0.npz'); M = model(ref)
    o = bf2f(ref['out']).reshape(S, D)
    e = M['out'] - o
    print('model vs torch ref: max', np.abs(e).max(), 'rms', np.sqrt((e ** 2).mean()), 'thr', 8 / 256 * np.abs(o).max())
    hh = np.zeros((S, D)); hh[SOFM] = M['HRES']
    print('h err', np.abs(hh - bf2f(ref['h']).reshape(S, D)).max())
    FA = bf2f(t_FA()).astype(np.float64); GB = h2f(t_GB(True)).astype(np.float64)
    z = np.random.randn(512); T = np.zeros((2, 16, 16))
    d1 = 16 * (E_[None, :] >> 2) + 4 * np.arange(4)[:, None] + (E_[None, :] & 3)
    for comp in range(2):
        for sl in range(16):
            for d2 in range(16):
                T[comp, sl, d2] = sum(FA[comp, 16 * g + sl, e] * z[16 * d1[g, e] + d2] for g in range(4) for e in range(8))
    Zh = z @ basis(); err = 0
    for sl in range(16):
        for j in range(16):
            for o_ in range(2):
                v = sum(GB[sl, o_, 16 * g + j, e] * T[e >> 2, sl, 4 * g + (e & 3)] / 4 for g in range(4) for e in range(8))
                c = 16 * sl + j
                want = Zh[rho(c, o_)] if c else (Zh[rho(0, 1)] if o_ == 0 else 0)
                err = max(err, abs(v - want))
    print('two-step table err', err, 'ws used', WS_USED)
```

```python
import re, copy

REG_RE = re.compile(r'\b([vas])(\d+)\b|\b([vas])\[(\d+):(\d+)\]|\b(vcc|exec|m0|scc)\b')
TRANS = ('v_exp_f32','v_log_f32','v_rcp_f32','v_rsq_f32','v_sqrt_f32','v_sin_f32','v_cos_f32')

def regs_of(op):
    out = []
    for m in REG_RE.finditer(op):
        if m.group(1): out.append((m.group(1), int(m.group(2))))
        elif m.group(3): out += [(m.group(3), i) for i in range(int(m.group(4)), int(m.group(5))+1)]
        else: out.append((m.group(6), 0))
    return out

def split_ops(s):
    ops, depth, cur = [], 0, ''
    for ch in s:
        if ch in '[(': depth += 1
        if ch in '])': depth -= 1
        if ch == ',' and depth == 0: ops.append(cur.strip()); cur = ''
        else: cur += ch
    if cur.strip(): ops.append(cur.strip())
    return ops

class Ins:
    def __init__(self, text):
        self.text = text
        t = text.split(';')[0].strip()
        p = t.split(None, 1)
        self.mn = mn = p[0]
        rest = p[1] if len(p) > 1 else ''
        ops = split_ops(rest)
        self.ops = ops
        self.w = []; self.r = []; self.kind = 'other'
        self.srcc = []; self.ab = []; self.passes = 0; self.data = []
        self.dpp = any(x in rest for x in ('row_', 'quad_perm', 'wave_')) and mn.startswith('v_')
        R = regs_of
        if mn.startswith('v_mfma'):
            self.kind = 'mfma'
            self.passes = 8 if '32x32' in mn else 4
            self.w = R(ops[0]); self.ab = R(ops[1]) + R(ops[2]); self.srcc = R(ops[3]); self.r = self.ab + self.srcc
        elif mn.startswith('v_permlane') and 'swap' in mn:
            self.kind = 'valu'; self.w = R(ops[0]) + R(ops[1]); self.r = list(self.w)
        elif mn.startswith('v_cmp'):
            self.kind = 'valu'; self.w = R(ops[0]); self.r = sum((R(o) for o in ops[1:]), [])
        elif mn.startswith('v_'):
            self.kind = 'valu'
            nd = 2 if re.match(r'v_(add|sub|subrev|addc|subb)_co', mn) or mn.startswith('v_mad_u64') else 1
            self.w = sum((R(o) for o in ops[:nd]), []); self.r = sum((R(o) for o in ops[nd:]), [])
            if mn.startswith(('v_fmac', 'v_dot2c', 'v_pk_fmac', 'v_writelane')) or self.dpp: self.r += R(ops[0])
        elif mn.startswith(('buffer_load', 'global_load')):
            self.kind = 'vmem'
            if ' lds' in ' ' + rest or 'load_lds' in mn:
                self.r = sum((R(o) for o in ops), []) + [('m0', 0)]; self.lds_dma = True
            else:
                self.w = R(ops[0]); self.r = sum((R(o) for o in ops[1:]), [])
        elif mn.startswith(('buffer_store', 'buffer_atomic')):
            self.kind = 'vmem'; self.r = sum((R(o) for o in ops), []); self.data = R(ops[0])
            if 'atomic' in mn and ' sc0' in rest: self.w = R(ops[0])
        elif mn.startswith(('global_store', 'global_atomic')):
            self.kind = 'vmem'; self.r = sum((R(o) for o in ops), []); self.data = R(ops[1])
        elif mn.startswith('buffer_') :
            self.kind = 'vmem'
        elif mn.startswith(('ds_read', 'ds_bpermute', 'ds_swizzle')):
            self.kind = 'ds'; self.w = R(ops[0]); self.r = sum((R(o) for o in ops[1:]), [])
        elif mn.startswith('ds_'):
            self.kind = 'ds'; self.r = sum((R(o) for o in ops), [])
        elif mn.startswith(('s_load', 's_memtime', 's_memrealtime', 's_buffer_load')):
            self.kind = 'smem'; self.w = R(ops[0]); self.r = sum((R(o) for o in ops[1:]), [])
        elif mn.startswith(('s_cmp', 's_cbranch', 's_branch', 's_waitcnt', 's_nop', 's_barrier', 's_endpgm', 's_sleep', 's_setprio', 's_bitcmp')):
            self.kind = 'salu'; self.r = sum((R(o) for o in ops), [])
        elif mn.startswith('s_'):
            self.kind = 'salu'; self.w = R(ops[0]); self.r = sum((R(o) for o in ops[1:]), [])
            if 'saveexec' in mn: self.w += [('exec', 0)]
        else:
            raise ValueError('unknown instruction ' + text)
        self.wide_store = self.kind == 'vmem' and bool(self.data) and len(self.data) >= 3
        self.trans = mn.startswith(TRANS)
        self.dot = mn.startswith('v_dot')

def need(p, c):
    n = 0
    pw = set(p.w); cr = set(c.r); cw = set(c.w)
    vec = lambda s: {x for x in s if x[0] in 'va' and x[0] != 'vcc'}
    if p.kind == 'valu':
        vw = vec(pw); sw = pw - vw
        if vw & cr:
            if c.kind == 'mfma': n = max(n, 2)
            if c.dpp: n = max(n, 2)
            if c.mn.startswith('v_permlane'): n = max(n, 2)
            if c.mn.startswith(('v_readlane', 'v_readfirstlane')): n = max(n, 1)
            if p.trans: n = max(n, 1)
            if 'op_sel' in p.text and not p.mn.startswith(('v_pk_', 'v_fma_mix_f32')): n = max(n, 1)
        if p.dot and (vw & (cr | cw)):
            same_c = c.mn == p.mn and not (vw & set(sum((regs_of(o) for o in c.ops[1:3]), [])))
            if not same_c: n = max(n, 3)
        if sw & cr:
            if c.kind == 'valu': n = max(n, 4 if c.mn.startswith(('v_readlane', 'v_writelane')) else 2)
            if c.kind == 'vmem': n = max(n, 5)
            if c.kind in ('salu', 'smem'): n = max(n, 1)
        if ('vcc', 0) in pw and c.mn.startswith('s_cbranch_vcc'): n = max(n, 1)
    if p.kind == 'mfma':
        big = 12 if p.passes == 8 else 8
        if c.kind == 'mfma':
            if pw & set(c.ab): n = max(n, big)
            if pw & set(c.srcc) and not (c.srcc == p.w and c.passes == p.passes): n = max(n, p.passes + 2)
            if pw & cw and not (c.w == p.w): n = max(n, p.passes + 2)
        elif pw & (cr | cw): n = max(n, big)
        if c.kind == 'valu' and set(p.srcc) & cw: n = max(n, p.passes - 1)
    if p.kind == 'salu' and ('m0', 0) in pw and ('m0', 0) in cr and c.kind == 'vmem': n = max(n, 1)
    if p.wide_store and set(p.data) & cw: n = max(n, 2)
    return n

class K:
    def __init__(self):
        self.out = []
        self.hist = []
        self.pos = 0
        self.vm = []
        self.lg = []
        self.maxv = 0; self.maxa = -1; self.maxs = 0; self.nvm = 0
    def raw(self, text): self.out.append(text)
    def comment(self, t): self.out.append('    ; ' + t)
    def _emit(self, text, states=1):
        self.out.append('    ' + text); self.pos += states
    def state(self): return copy.deepcopy((self.hist[-24:], self.pos, self.vm, self.lg))
    def restore(self, st): self.hist, self.pos, self.vm, self.lg = copy.deepcopy(st)
    def nop(self, n):
        while n > 0:
            k = min(n, 16); self._emit(f's_nop {k-1}', k); n -= k
    def wait(self, vm=None, lg=None):
        parts = []
        if vm is not None and len(self.vm) > vm:
            parts.append(f'vmcnt({min(vm,63)})'); self.vm = self.vm[len(self.vm)-vm:] if vm else []
        if lg is not None and len(self.lg) > lg:
            if any(k == 'smem' for k, _ in self.lg): lg = 0
            parts.append(f'lgkmcnt({min(lg,15)})'); self.lg = self.lg[len(self.lg)-lg:] if lg else []
        if parts: self._emit('s_waitcnt ' + ' '.join(parts))
    def fence(self):
        n = 0
        for p, at in self.hist[-16:]:
            lim = (12 if p.passes == 8 else 8) if p.kind == 'mfma' else (5 if p.kind == 'valu' else 2)
            n = max(n, lim - (self.pos - at))
        self.nop(n)
    def label(self, name): self.out.append(name + ':')
    def __call__(self, text):
        for line in text.strip().split('\n'):
            line = line.strip()
            if not line or line.startswith(';'): continue
            self.ins(line)
    def ins(self, text):
        c = Ins(text)
        touched = set(c.r) | set(c.w)
        for f, i in touched:
            if f == 'v': self.maxv = max(self.maxv, i)
            if f == 'a': self.maxa = max(self.maxa, i)
            if f == 's': self.maxs = max(self.maxs, i)
        if c.mn == 's_waitcnt':
            m = re.search(r'vmcnt\((\d+)\)', text)
            if m: n = int(m.group(1)); self.vm = self.vm[max(0, len(self.vm)-n):] if n else []
            m = re.search(r'lgkmcnt\((\d+)\)', text)
            if m: n = int(m.group(1)); self.lg = self.lg[max(0, len(self.lg)-n):] if n else []
            self._emit(text); return
        vmn = lgn = None
        for i, w in enumerate(self.vm):
            if w & touched: vmn = len(self.vm) - 1 - i
        for i, (_, w) in enumerate(self.lg):
            if w & touched: lgn = len(self.lg) - 1 - i
        self.wait(vmn, lgn)
        n = 0
        for p, at in self.hist[-24:]:
            n = max(n, need(p, c) - (self.pos - at))
        self.nop(n)
        st = 1
        if c.mn == 's_nop': st = int(c.ops[0]) + 1
        self._emit(text, st)
        self.hist.append((c, self.pos))
        if c.kind == 'vmem': self.vm.append(set(c.w)); self.nvm += 1
        if c.kind in ('ds', 'smem'): self.lg.append((c.kind, set(c.w)))
    def text(self): return '\n'.join(self.out) + '\n'
```

```python
import sys, math, struct
import numpy as np
from dsl import K
from design import *

NAME = "sequential_preLN__spectral_gfnet__glu_gated_geglu__prompt"
OPT = dict(stamps=False, st='', ld='')
def fbits(x): return '0x%08x' % struct.unpack('<I', struct.pack('<f', x))[0]
def V(b, n=1): return f'v{b}' if n == 1 else f'v[{b}:{b+n-1}]'
def A(b, n=1): return f'a{b}' if n == 1 else f'a[{b}:{b+n-1}]'
def Sg(b, n=1): return f's{b}' if n == 1 else f's[{b}:{b+n-1}]'

TBL = {}
tbl_data = []
def add_tbl(name, arr):
    TBL[name] = sum(len(a) for a in tbl_data) * 2
    tbl_data.append(np.ascontiguousarray(arr).reshape(-1))
add_tbl('FA', t_FA()); add_tbl('GBZ', t_GB(True)); add_tbl('GBW', t_GB(False))
add_tbl('P2W', np.stack([t_B1().reshape(4, -1), t_A4().reshape(4, -1)], 1))
add_tbl('P2S', np.concatenate([t_A2().reshape(-1), t_B3().reshape(-1)]))

WSR, RA, RB, RC = 's[24:27]', 's[28:31]', 's[32:35]', 's[36:39]'
WAVE = 's40'

def srd(k, base, ptr, nbytes):
    k(f"""s_mov_b32 s{base}, s{ptr}
    s_and_b32 s{base+1}, s{ptr+1}, 0xffff
    s_mov_b32 s{base+2}, {nbytes}
    s_mov_b32 s{base+3}, 0x20000""")

def stamp(k, i):
    if OPT['stamps']: k(f's_memrealtime s[{80+2*i}:{81+2*i}]')

def stamp_out(k, kid, n):
    if not OPT['stamps']: return
    k.wait(vm=0, lg=0)
    stamp(k, n); n += 1
    k.wait(lg=0)
    k(f's_lshl_b32 s44, s2, 7\n s_lshl_b32 s45, {WAVE}, 5\n s_add_u32 s44, s44, s45\n s_add_u32 s44, s44, {STAMP + kid*65536}')
    for i in range(8): k(f'v_mov_b32 v{8+i}, s{80+2*i}' if i < n else f'v_mov_b32 v{8+i}, 0')
    k(f"""v_mov_b32 v16, 0
    s_mov_b64 exec, 1
    buffer_store_dwordx4 v[8:11], v16, {WSR}, s44 offen
    buffer_store_dwordx4 v[12:15], v16, {WSR}, s44 offen offset:16""")

def prologue(k, name, nwg):
    k.raw(f'.globl {name}\n.p2align 8\n.type {name},@function\n{name}:')
    stamp(k, 0)
    k(f"""s_load_dwordx16 s[4:19], s[0:1], 0
    s_load_dwordx4 s[20:23], s[0:1], 64
    s_cmp_ge_u32 s2, {nwg}
    s_cbranch_scc1 L_end_{name}
    v_lshrrev_b32 v5, 6, v0
    v_and_b32 v1, 63, v0
    v_readfirstlane_b32 {WAVE}, v5
    v_bfe_u32 v2, v0, 4, 2
    v_and_b32 v3, 15, v0
    v_lshlrev_b32 v4, 4, v1
    s_getpc_b64 s[42:43]""")
    k.raw('    s_add_u32 s42, s42, tables@rel32@lo+4\n    s_addc_u32 s43, s43, tables@rel32@hi+12')
    k.pos += 2
    k.wait(lg=0)
    srd(k, 24, 22, WS_USED)

def tbl_addr(k, vp, soff):
    k(f"""s_add_u32 s46, s42, {soff}
    s_addc_u32 s47, s43, 0
    v_mov_b32 v{vp+1}, s47
    v_add_co_u32 v{vp}, vcc, s46, v4
    v_addc_co_u32 v{vp+1}, vcc, 0, v{vp+1}, vcc""")

TPAD = 1040

def wt_issue(k, vb):
    srd(k, 28, 6, 2048*257*2); srd(k, 32, 8, 2048*257*2)
    k(f"""s_and_b32 s44, s2, 3
    s_lshl_b32 s44, s44, 6
    s_lshl_b32 s45, {WAVE}, 4
    s_add_u32 s44, s44, s45
    s_bfe_u32 s45, s2, 0x30002         ; (w_,jh)
    s_lshl_b32 s45, s45, 3             ; 16w_+8jh
    s_lshr_b32 s48, s2, 5              ; (tau,g_)
    s_lshl_b32 s49, s48, 8
    s_add_u32 s49, s49, s45            ; row0
    s_mul_i32 s49, s49, 514
    s_lshl_b32 s50, s44, 1
    s_add_u32 s49, s49, s50
    s_add_u32 s49, s49, 2
    s_add_u32 s50, s49, {64*514}
    s_add_u32 s51, s49, {128*514}
    s_add_u32 s52, s49, {192*514}
    v_and_b32 v{vb}, 7, v1
    v_lshrrev_b32 v{vb+1}, 3, v1
    v_mul_u32_u24 v{vb+2}, 514, v{vb}
    v_lshl_add_u32 v{vb+2}, v{vb+1}, 1, v{vb+2}
    """)
    for u in range(2):
        for r in range(4):
            k(f'buffer_load_ushort v{vb+4+8*u+r}, v{vb+2}, {RA}, s{49+r} offen offset:{16*u}')
            k(f'buffer_load_ushort v{vb+8+8*u+r}, v{vb+2}, {RB}, s{49+r} offen offset:{16*u}')
    k(f"""s_mul_i32 s53, s44, {WT_STRIDE}
    s_lshr_b32 s54, s2, 7
    s_lshl_b32 s54, s54, 12
    s_add_u32 s53, s53, s54
    s_bfe_u32 s54, s2, 0x20003
    s_lshl_b32 s54, s54, 10
    s_add_u32 s53, s53, s54
    s_bfe_u32 s54, s2, 0x20005
    s_lshl_b32 s54, s54, 8
    s_add_u32 s53, s53, s54
    s_bfe_u32 s54, s2, 0x10002
    s_lshl_b32 s54, s54, 7
    s_add_u32 s53, s53, s54
    s_add_u32 s78, s53, {WT}
    s_add_u32 s79, s78, {8*WT_STRIDE}
    v_mul_u32_u24 v{vb+3}, {WT_STRIDE}, v{vb+1}
    v_lshl_add_u32 v{vb+3}, v{vb}, 4, v{vb+3}""")
def wt_finish(k, vb):
    for u in range(2):
        for r in range(4):
            k(f'v_lshl_or_b32 v{vb+4+8*u+r}, v{vb+8+8*u+r}, 16, v{vb+4+8*u+r}')
        k(f'buffer_store_dwordx4 {V(vb+4+8*u,4)}, v{vb+3}, {WSR}, s{78+u} offen{OPT["st"]}')

def p1_z(k):
    X, FA, GB, DA, TR, ST = 32, 48, 56, 88, 120, 136
    srd(k, 36, 4, S*D*2)
    k(f"""s_and_b32 s44, s2, 7
    s_lshl_b32 s44, s44, 1
    s_bfe_u32 s45, s2, 0x10003
    s_add_u32 s44, s44, s45
    s_and_b32 s45, s2, 16
    s_add_u32 s60, s44, s45            ; b
    s_lshr_b32 s61, s2, 5              ; t
    s_lshl_b32 s44, s61, 2
    s_add_u32 s44, s44, {WAVE}
    s_lshl_b32 s44, s44, 7             ; 32*(16t+4w)
    s_add_u32 s44, s44, s60
    s_lshl_b32 s56, s44, 10
    s_add_u32 s57, s56, 0x8000
    s_add_u32 s58, s56, 0x10000
    s_add_u32 s59, s56, 0x18000""")
    for i in range(4): k(f'buffer_load_dwordx4 {V(X+4*i,4)}, v4, {RC}, s{56+i} offen')
    tbl_addr(k, 6, TBL['FA'])
    for c in range(2): k(f'global_load_dwordx4 {V(FA+4*c,4)}, v[6:7], off offset:{1024*c}')
    k(f's_lshl_b32 s44, {WAVE}, 13\n s_add_u32 s44, s44, {TBL["GBZ"]+4096}')
    tbl_addr(k, 8, 's44')
    for q in range(8): k(f'global_load_dwordx4 {V(GB+4*q,4)}, v[8:9], off offset:{1024*q-4096}')
    wt_issue(k, 10)
    k(f"""s_lshl_b32 s44, {WAVE}, 12
    v_add_u32 v30, s44, v4
    v_lshrrev_b32 v31, 1, v4
    v_add_u32 v31, s44, v31
    v_mul_u32_u24 v6, {TPAD}, v3
    v_lshl_add_u32 v6, v2, 8, v6
    s_lshl_b32 s44, {WAVE}, 6
    s_add_u32 s44, s44, 16384
    v_add_u32 v6, s44, v6              ; T write
    s_mul_i32 s44, {WAVE}, {4*TPAD}
    s_add_u32 s44, s44, 16384
    v_add_u32 v7, s44, v4              ; T read
    v_cmp_eq_u32 vcc, 0, v3
    v_cndmask_b32 v8, 0, 1.0, vcc
    s_mov_b32 s62, 0x3f803f80
    v_mul_u32_u24 v9, {ZT_STRIDE}, v3
    v_lshl_add_u32 v9, v2, 4, v9       ; ZT store voffset
    s_mul_i32 s44, {WAVE}, {64*ZT_STRIDE}
    s_lshl_b32 s45, s61, 11
    s_add_u32 s44, s44, s45
    s_lshl_b32 s45, s60, 6
    s_add_u32 s44, s44, s45
    s_add_u32 s64, s44, {ZT}
    s_add_u32 s65, s64, {16*ZT_STRIDE}
    s_add_u32 s66, s64, {32*ZT_STRIDE}
    s_add_u32 s67, s64, {48*ZT_STRIDE}
    s_lshl_b32 s44, s61, 9
    s_and_b32 s45, s60, 15
    s_lshl_b32 s45, s45, 5
    s_add_u32 s44, s44, s45
    s_lshl_b32 s45, {WAVE}, 3
    s_add_u32 s44, s44, s45
    s_lshr_b32 s45, s60, 4
    s_lshl_b32 s45, s45, 2
    s_add_u32 s44, s44, s45
    s_lshl_b32 s44, s44, 2
    s_add_u32 s63, s44, {SIG}""")
    stamp(k, 1)
    for i in range(4):
        k(f'ds_write_b128 v30, {V(X+4*i,4)} offset:{1024*i}')
    stamp(k, 2)
    for i in range(4):
        k.wait(lg=3+i if not OPT['stamps'] else 0)
        for r in range(2): k(f'ds_read_b64_tr_b16 {V(TR+4*i+2*r,2)}, v31 offset:{1024*i+512*r}')
    for i in range(4):
        for j in range(4):
            k(f'v_dot2_f32_bf16 v{ST+i}, v{X+4*i+j}, s62, {"0" if j==0 else V(ST+i)}')
            k(f'v_dot2_f32_bf16 v{ST+4+i}, v{X+4*i+j}, v{X+4*i+j}, {"0" if j==0 else V(ST+4+i)}')
    for i in range(4):
        for c in range(2):
            k(f'v_mfma_f32_16x16x32_bf16 {V(DA+8*i+4*c,4)}, {V(TR+4*i,4)}, {V(FA+4*c,4)}, 0')
    for b in (ST, ST+4):
        k(f'v_permlane32_swap_b32 v{b}, v{b+2}\n v_permlane32_swap_b32 v{b+1}, v{b+3}')
    for b in (ST, ST+4):
        k(f'v_add_f32 v{b}, v{b}, v{b+2}\n v_add_f32 v{b+1}, v{b+1}, v{b+3}')
    for b in (ST, ST+4): k(f'v_permlane16_swap_b32 v{b}, v{b+1}')
    for b in (ST, ST+4): k(f'v_add_f32 v{b}, v{b}, v{b+1}')
    for sh in (8, 4, 2, 1):
        for b in (ST, ST+4): k(f'v_add_f32_dpp v{b}, v{b}, v{b} row_ror:{sh} row_mask:0xf bank_mask:0xf')
    k(f"""v_mul_f32 v{ST}, {fbits(1/512)}, v{ST}          ; mean
    v_mul_f32 v{ST+4}, {fbits(1/512)}, v{ST+4}
    v_fma_f32 v{ST+4}, -v{ST}, v{ST}, v{ST+4}
    v_max_f32 v{ST+4}, 0, v{ST+4}
    v_add_f32 v{ST+4}, {fbits(1e-5)}, v{ST+4}
    v_rsq_f32 v{ST+1}, v{ST+4}
    v_lshlrev_b32 v{ST+5}, 2, v2
    v_mul_f32 v{ST+4}, v{ST+4}, v{ST+1}                 ; sigma
    v_mul_f32 v{ST+1}, 0.25, v{ST+1}
    v_mul_f32 v{ST+2}, {fbits(-32.0)}, v{ST}
    v_mul_f32 v{ST+2}, v{ST+2}, v{ST+1}""".replace('0.25', fbits(0.25)))
    for i in range(4):
        k(f'v_readlane_b32 s{68+2*i}, v{ST+1}, {16*i}\n v_readlane_b32 s{69+2*i}, v{ST+2}, {16*i}')
    k(f"""s_mov_b32 exec_lo, 0x00010001
    s_mov_b32 exec_hi, 0x00010001
    buffer_store_dword v{ST+4}, v{ST+5}, {WSR}, s63 offen{OPT['st']}
    s_add_u32 s63, s63, {MU-SIG}
    buffer_store_dword v{ST}, v{ST+5}, {WSR}, s63 offen{OPT['st']}
    s_mov_b64 exec, -1""")
    for i in range(4):
        d = DA + 8*i
        k(f'v_mul_f32 v{TR}, s{69+2*i}, v8')
        for h in range(2):
            k(f'v_pk_fma_f32 {V(d+2*h,2)}, {V(d+2*h,2)}, {Sg(68+2*i,2)}, {V(TR,2)} op_sel_hi:[1,0,0]')
            k(f'v_pk_mul_f32 {V(d+4+2*h,2)}, {V(d+4+2*h,2)}, {Sg(68+2*i,2)} op_sel_hi:[1,0]')
        for h in range(4): k(f'v_cvt_pk_f16_f32 v{X+4*i+h}, v{d+2*h}, v{d+2*h+1}')
        k(f'ds_write_b128 v6, {V(X+4*i,4)} offset:{16*i}')
    k.wait(lg=0); k('s_barrier')
    stamp(k, 3)
    for q in range(4): k(f'ds_read_b128 {V(TR+4*q,4)}, v7 offset:{TPAD*q}')
    for q in range(4):
        for o in range(2): k(f'v_mfma_f32_16x16x32_f16 {V(DA+8*q+4*o,4)}, {V(TR+4*q,4)}, {V(GB+8*q+4*o,4)}, 0')
    for q in range(4):
        for h in range(4): k(f'v_cvt_pk_f16_f32 v{X+4*q+h}, v{DA+8*q+2*h}, v{DA+8*q+2*h+1}')
        k(f'buffer_store_dwordx4 {V(X+4*q,4)}, v9, {WSR}, s{64+q} offen{OPT["st"]}')
    wt_finish(k, 10)

def p1_w(k, first):
    X, OP, FA, GB, DA = 32, 64, 96, 104, 136
    k(f"""s_sub_u32 s60, s2, {first}
    s_and_b32 s61, s60, 1              ; mu
    s_lshr_b32 s60, s60, 1             ; phi
    s_cmp_eq_u32 s61, 0
    s_cselect_b32 s36, s12, s14
    s_cselect_b32 s37, s13, s15
    s_and_b32 s37, s37, 0xffff
    s_mov_b32 s38, {D*F*2}
    s_mov_b32 s39, 0x20000
    s_mul_i32 s44, {WAVE}, {4*2752}
    s_lshl_b32 s45, s60, 6
    s_add_u32 s44, s44, s45
    v_mul_u32_u24 v30, {64*2752}, v2
    v_lshl_add_u32 v30, v3, 2, v30
    v_add_u32 v31, {2*2752}, v30""")
    for e in range(8): k(f's_add_u32 s{62+e}, s44, {16*(16*(e>>2)+(e&3))*2752}')
    for dl in range(4):
        for e in range(8):
            k(f'buffer_load_dword v{X+8*dl+e}, v{30+(dl>>1)}, {RC}, s{62+e} offen offset:{2752*(dl&1)}')
    tbl_addr(k, 6, TBL['FA'])
    for c in range(2): k(f'global_load_dwordx4 {V(FA+4*c,4)}, v[6:7], off offset:{1024*c}')
    k(f's_lshl_b32 s44, {WAVE}, 13\n s_add_u32 s44, s44, {TBL["GBW"]+4096}')
    tbl_addr(k, 8, 's44')
    for q in range(8): k(f'global_load_dwordx4 {V(GB+4*q,4)}, v[8:9], off offset:{1024*q-4096}')
    wt_issue(k, 10)
    k(f"""v_mul_u32_u24 v6, {4*TPAD}, v2
    v_lshl_add_u32 v6, v3, 4, v6
    s_lshl_b32 s44, {WAVE}, 8
    v_add_u32 v6, s44, v6              ; T write
    s_mul_i32 s44, {WAVE}, {4*TPAD}
    v_add_u32 v7, s44, v4              ; T read
    v_lshrrev_b32 v8, 2, v3
    v_lshlrev_b32 v8, 14, v8
    v_lshl_add_u32 v8, v2, 7, v8
    v_and_b32 v9, 3, v3
    v_lshl_add_u32 v8, v9, 4, v8       ; WP store voffset
    s_lshl_b32 s44, s60, 16
    s_lshl_b32 s45, s61, 9
    s_add_u32 s44, s44, s45
    s_lshl_b32 s45, {WAVE}, 12
    s_add_u32 s44, s44, s45
    s_add_u32 s62, s44, {WP+16*16384}
    s_mov_b32 s63, 0x05040100
    s_mov_b32 s64, 0x07060302""")
    stamp(k, 1)
    for dl in range(4):
        for pi in range(2):
            for h in range(4):
                k(f'v_perm_b32 v{OP+8*dl+4*pi+h}, v{X+8*dl+2*h+1}, v{X+8*dl+2*h}, s{63+pi}')
        if dl == 0: stamp(k, 2)
        for pi in range(2):
            for c in range(2):
                k(f'v_mfma_f32_16x16x32_bf16 {V(DA+32*pi+16*c+4*dl,4)}, {V(FA+4*c,4)}, {V(OP+8*dl+4*pi,4)}, 0')
    for pi in range(2):
        for r in range(4):
            u = X + 16*pi + 4*r
            for c in range(2):
                for h in range(2):
                    d = DA + 32*pi + 16*c + 8*h + r
                    k(f'v_cvt_pk_bf16_f32 v{u+2*c+h}, v{d}, v{d+4}')
            k(f'ds_write_b128 v6, {V(u,4)} offset:{16*TPAD*pi+TPAD*r}')
    k.wait(lg=0); k('s_barrier')
    stamp(k, 3)
    for pi in range(2):
        for q in range(4): k(f'ds_read_b128 {V(OP+16*pi+4*q,4)}, v7 offset:{16*TPAD*pi+TPAD*q}')
    for pi in range(2):
        for q in range(4):
            for o in range(2):
                k(f'v_mfma_f32_16x16x32_bf16 {V(DA+32*pi+8*q+4*o,4)}, {V(GB+8*q+4*o,4)}, {V(OP+16*pi+4*q,4)}, 0')
    for pi in range(2):
        for p in range(2):
            for o in range(2):
                u = X + 16*pi + 8*p + 4*o
                for hq in range(2):
                    for h in range(2):
                        d = DA + 32*pi + 8*(2*p+hq) + 4*o + 2*h
                        k(f'v_cvt_pk_bf16_f32 v{u+2*hq+h}, v{d}, v{d+1}')
                k(f'buffer_store_dwordx4 {V(u,4)}, v8, {WSR}, s62 offen offset:{(2*p+o)*1024+64*pi}{OPT["st"]}')
    wt_finish(k, 10)

def p1_c(k, first):
    wt_issue(k, 10)
    k(f"""s_sub_u32 s60, s2, {first}
    s_cmp_ge_u32 s60, 32
    s_cbranch_scc1 L_c_skip
    s_lshl_b32 s60, s60, 2
    s_add_u32 s60, s60, {WAVE}
    s_lshr_b32 s61, s60, 3             ; t
    s_and_b32 s62, s60, 7              ; p
    v_and_b32 v30, 3, v1               ; gamma
    v_lshlrev_b32 v30, 2, v30
    v_lshrrev_b32 v31, 5, v1           ; mu
    v_lshl_add_u32 v30, v31, 1, v30
    v_bfe_u32 v31, v1, 2, 1            ; pi
    v_add_u32 v30, v30, v31
    s_lshl_b32 s44, s61, 5
    s_add_u32 s44, s44, 1
    v_lshl_add_u32 v30, v30, 1, s44    ; 2d+1
    v_bfe_u32 v31, v1, 3, 1            ; g&1
    v_lshlrev_b32 v31, 7, v31          ; 32*4*(g&1)
    v_bfe_u32 v32, v1, 4, 1            ; g>=2
    v_cmp_eq_u32 vcc, 1, v32
    s_lshl_b32 s44, s62, 1
    s_sub_u32 s45, 32, s44
    s_cmp_eq_u32 s44, 0
    s_cselect_b32 s45, 16, s45
    v_mov_b32 v33, s44
    v_mov_b32 v34, s45
    v_cndmask_b32 v33, v33, v34, vcc
    v_add_u32 v33, v33, v31
    s_add_u32 s44, s44, 1
    s_sub_u32 s45, 32, s44
    v_mov_b32 v34, s44
    v_mov_b32 v35, s45
    v_cndmask_b32 v34, v34, v35, vcc
    v_add_u32 v34, v34, v31
    v_cmp_eq_u32 vcc, 0, v33           ; c==0 for e==0
    v_mov_b32 v35, 0x100
    v_mov_b32 v36, {fbits(1/16)}
    v_mov_b32 v37, {fbits(1/math.sqrt(512))}
    v_cndmask_b32 v35, v33, v35, vcc
    v_cndmask_b32 v37, v36, v37, vcc
    s_lshl_b32 s44, s61, 14
    s_lshl_b32 s45, s62, 11
    s_add_u32 s44, s44, s45
    s_add_u32 s62, s44, {WP}""")
    for e in range(8):
        src = 'v35' if e == 0 else None
        if e: k(f'v_add_u32 v{40+e}, {32*(e&3)}, v{33+(e>>2)}')
        k(f'v_mul_u32_u24 v{40+e}, {src or V(40+e)}, v30')
        k(f'v_and_b32 v{40+e}, 0x3ff, v{40+e}')
        k(f'v_cvt_f32_u32 v{40+e}, v{40+e}')
        k(f'v_mul_f32 v{40+e}, {fbits(1/1024)}, v{40+e}')
    for e in range(8):
        k(f'v_cos_f32 v{48+e}, v{40+e}\n v_sin_f32 v{56+e}, v{40+e}')
    for e in range(8):
        sc = 'v37' if e == 0 else 'v36'
        k(f'v_mul_f32 v{48+e}, {sc}, v{48+e}\n v_mul_f32 v{56+e}, {sc}, -v{56+e}')
    for part in range(2):
        for h in range(4): k(f'v_cvt_pk_bf16_f32 v{64+4*part+h}, v{48+8*part+2*h}, v{48+8*part+2*h+1}')
        k(f'buffer_store_dwordx4 {V(64+4*part,4)}, v4, {WSR}, s62 offen offset:{1024*part}{OPT["st"]}')
    k.label('L_c_skip')
    k.wait(vm=0)
    wt_finish(k, 10)

def wd_issue(k, vb):
    srd(k, 36, 16, F*D*2)
    k(f"""s_lshl_b32 s44, s2, 13
    s_lshl_b32 s45, {WAVE}, 8
    s_add_u32 s76, s44, s45
    s_add_u32 s77, s76, 4096
    v_lshlrev_b32 v{vb}, 2, v1""")
    for e in range(8): k(f'buffer_load_dword v{vb+2+e}, v{vb}, {RC}, s{76+(e>>2)} offen offset:{1024*(e&3)}')
def wd_finish(k, vb):
    k(f"""s_mov_b32 s36, s24
    s_mov_b32 s37, s25
    s_mov_b32 s38, {WD+86*16384}
    s_mov_b32 s39, 0x20000
    s_lshr_b32 s44, s2, 1
    s_lshl_b32 s44, s44, 14
    s_and_b32 s45, s2, 1
    s_lshl_b32 s45, s45, 9
    s_add_u32 s44, s44, s45
    s_lshl_b32 s45, {WAVE}, 12
    s_add_u32 s44, s44, s45
    s_add_u32 s76, s44, {WD}
    s_mov_b32 s44, 0x05040100
    s_mov_b32 s45, 0x07060302
    v_lshlrev_b32 v{vb}, 10, v2
    v_lshl_add_u32 v{vb}, v3, 4, v{vb}""")
    for pi in range(2):
        for h in range(4): k(f'v_perm_b32 v{vb+10+4*pi+h}, v{vb+2+2*h+1}, v{vb+2+2*h}, s{44+pi}')
        k(f'buffer_store_dwordx4 {V(vb+10+4*pi,4)}, v{vb}, {RC}, s76 offen offset:{256*pi}{OPT["st"]}')

def cmul(k, dr, di, c, s, tr, ti, conj):
    for h in (0, 2):
        k(f'v_pk_mul_f32 {V(tr+h,2)}, {V(dr+h,2)}, {V(c+h,2)}')
        k(f'v_pk_mul_f32 {V(ti+h,2)}, {V(di+h,2)}, {V(c+h,2)}')
    ng = ' neg_lo:[1,0,0] neg_hi:[1,0,0]'
    for h in (0, 2):
        k(f'v_pk_fma_f32 {V(tr+h,2)}, {V(di+h,2)}, {V(s+h,2)}, {V(tr+h,2)}' + ('' if conj else ng))
        k(f'v_pk_fma_f32 {V(ti+h,2)}, {V(dr+h,2)}, {V(s+h,2)}, {V(ti+h,2)}' + (ng if conj else ''))

def p2_tables(k):
    B1, A4, A2, B3, TW1, TW2 = 64, 88, 112, 136, 160, 176
    k(f's_lshl_b32 s44, {WAVE}, 13\n s_add_u32 s44, s44, {TBL["P2W"]+4096}')
    tbl_addr(k, 6, 's44'); tbl_addr(k, 8, TBL['P2S']+4096)
    for u in range(4): k(f'global_load_dwordx4 {V(B1+6*u+2,4)}, v[6:7], off offset:{1024*u-4096}')
    for u in range(4): k(f'global_load_dwordx4 {V(A2+6*u+2,4)}, v[8:9], off offset:{1024*u-4096}')
    for u in range(4): k(f'global_load_dwordx4 {V(B3+6*u+2,4)}, v[8:9], off offset:{1024*u}')
    for u in range(4): k(f'global_load_dwordx4 {V(A4+6*u+2,4)}, v[6:7], off offset:{1024*u}')
def p2_twiddles(k):
    TW1, TW2 = 160, 176
    k(f"""s_lshl_b32 s44, {WAVE}, 4
    v_add_u32 v6, s44, v3
    v_cvt_f32_u32 v6, v6
    v_mul_f32 v6, {fbits(1/2048)}, v6       ; ka/2048
    v_lshlrev_b32 v7, 2, v2
    v_add_u32 v8, s44, v7
    v_cvt_f32_u32 v7, v7                    ; 4g
    v_cvt_f32_u32 v8, v8                    ; 16w+4g
    v_cvt_f32_u32 v9, v3
    v_mul_f32 v9, {fbits(1/2048)}, v9       ; x/2048""")
    for be in range(2):
        for r in range(4):
            t = TW1 + 8*be + r
            k(f'v_add_f32 v{t}, {fbits(16*be+r)}, v7\n v_mul_f32 v{t}, v{t}, v6')
            k(f'v_sin_f32 v{t+4}, v{t}\n v_cos_f32 v{t}, v{t}')
    for be in range(2):
        if be: k(f'v_add_f32 v9, {fbits(16/2048)}, v9')
        for r in range(4):
            t = TW2 + 8*be + r
            k(f'v_add_f32 v{t}, {fbits(r)}, v8\n v_mul_f32 v{t}, v{t}, v9')
            k(f'v_sin_f32 v{t+4}, v{t}\n v_cos_f32 v{t}, v{t}')
def p2_negs(k, base):
    for u in range(4):
        for h in range(2): k(f'v_xor_b32 v{base+6*u+h}, s60, v{base+6*u+4+h}')

def p2(k, addon=True):
    Z, B1, A4, A2, B3, TW1, TW2, WW, SG, DD, TT, PK = 32, 64, 88, 112, 136, 160, 176, 192, 208, 216, 232, 240
    ld = OPT['ld']
    k(f"""s_mul_i32 s44, s2, {ZT_STRIDE}
    s_add_u32 s44, s44, {ZT}
    v_lshlrev_b32 v30, 6, v3
    v_lshl_add_u32 v30, v2, 4, v30""")
    for u in range(4):
        k(f's_add_u32 s45, {WAVE}, {u}\n s_and_b32 s45, s45, 3\n s_lshl_b32 s45, s45, 11\n s_add_u32 s{56+u}, s44, s45')
    for u in range(4):
        for be in range(2): k(f'buffer_load_dwordx4 {V(Z+8*u+4*be,4)}, v30, {WSR}, s{56+u} offen offset:{1024*be}{ld}')
    p2_tables(k)
    k(f"""s_lshr_b32 s44, s2, 4              ; slot
    s_sub_u32 s45, 32, s44
    s_cmp_eq_u32 s44, 0
    s_cselect_b32 s45, 16, s45
    s_bitcmp1_b32 s2, 3
    s_cselect_b32 s44, s45, s44
    s_and_b32 s45, s2, 7
    s_lshl_b32 s45, s45, 5
    s_add_u32 s44, s44, s45
    s_sub_u32 s44, s44, 1
    s_and_b32 s44, s44, 255            ; kd-1 (c=0 -> 255)
    s_mul_i32 s44, s44, {WT_STRIDE}
    s_lshl_b32 s45, {WAVE}, 10
    s_add_u32 s44, s44, s45
    s_add_u32 s61, s44, {WT}
    s_add_u32 s62, s61, 4096
    s_lshl_b32 s45, {WAVE}, 11
    s_add_u32 s63, s45, {SIG}
    v_lshlrev_b32 v31, 1, v30          ; x*128+g*32
    buffer_load_dwordx4 {V(PK,4)}, v4, {WSR}, s61 offen{ld}
    buffer_load_dwordx4 {V(PK+4,4)}, v4, {WSR}, s62 offen{ld}
    buffer_load_dwordx4 {V(SG,4)}, v31, {WSR}, s63 offen{ld}
    buffer_load_dwordx4 {V(SG+4,4)}, v31, {WSR}, s63 offen offset:16{ld}""")
    if addon: wd_issue(k, 10)
    p2_twiddles(k)
    k(f"""v_lshrrev_b32 v6, 2, v3
    v_lshlrev_b32 v6, 17, v6
    v_and_b32 v7, 3, v3
    v_lshl_add_u32 v6, v7, 6, v6
    v_lshl_add_u32 v6, v2, 4, v6
    s_lshr_b32 s44, s2, 5
    s_lshl_b32 s44, s44, 6
    s_and_b32 s45, s2, 31
    s_add_u32 s44, s44, s45
    s_lshl_b32 s44, s44, 8
    s_lshl_b32 s45, {WAVE}, 19
    s_add_u32 s44, s44, s45
    s_add_u32 s64, s44, {HT}
    s_add_u32 s65, s64, 8192
    s_lshl_b32 s44, {WAVE}, 11
    v_add_u32 v7, s44, v4
    s_mov_b32 s60, 0x80008000""")
    for u in range(1, 4):
        k(f's_add_u32 s44, {WAVE}, {u}\n s_and_b32 s44, s44, 3\n s_lshl_b32 s44, s44, 11\n v_add_u32 v{27+u}, s44, v4')
    stamp(k, 1)
    p2_negs(k, B1)
    stamp(k, 2)
    for u in range(4):
        for be in range(2):
            for o in range(2):
                d = V(DD+8*be+4*o, 4)
                k(f'v_mfma_f32_16x16x32_f16 {d}, {V(Z+8*u+4*be,4)}, {V(B1+6*u+2-2*o,4)}, {"0" if u==0 else d}')
    p2_negs(k, A2); p2_negs(k, B3)
    for t in range(2):
        for r in range(4):
            k(f'v_lshlrev_b32 v{WW+8*t+r}, 16, v{PK+4*t+r}\n v_and_b32 v{WW+8*t+4+r}, 0xffff0000, v{PK+4*t+r}')
    for be in range(2):
        cmul(k, DD+8*be, DD+8*be+4, TW1+8*be, TW1+8*be+4, TT, TT+4, True)
        for h in range(4): k(f'v_cvt_pk_f16_f32 v{PK+4*be+h}, v{TT+2*h}, v{TT+2*h+1}')
    for be in range(2):
        for t in range(2):
            for o in range(2):
                d = V(DD+8*t+4*o, 4)
                k(f'v_mfma_f32_16x16x32_f16 {d}, {V(A2+6*(2*t+be)+2-2*o,4)}, {V(PK+4*be,4)}, {"0" if be==0 else d}')
    p2_negs(k, A4)
    for t in range(2):
        cmul(k, DD+8*t, DD+8*t+4, WW+8*t, WW+8*t+4, TT, TT+4, False)
        for h in range(4): k(f'v_cvt_pk_bf16_f32 v{PK+4*t+h}, v{TT+2*h}, v{TT+2*h+1}')
    for t in range(2):
        for be in range(2):
            for o in range(2):
                d = V(DD+8*be+4*o, 4)
                k(f'v_mfma_f32_16x16x32_bf16 {d}, {V(PK+4*t,4)}, {V(B3+6*(2*be+t)+2-2*o,4)}, {"0" if t==0 else d}')
    for be in range(2):
        cmul(k, DD+8*be, DD+8*be+4, TW2+8*be, TW2+8*be+4, TT, TT+4, False)
        for h in range(4): k(f'v_cvt_pk_bf16_f32 v{PK+4*be+h}, v{TT+2*h}, v{TT+2*h+1}')
        k(f'ds_write_b128 v7, {V(PK+4*be,4)} offset:{1024*be}')
    def step4(u, src):
        for be in range(2):
            for o in range(2):
                d = V(DD+8*be+4*o, 4)
                k(f'v_mfma_f32_16x16x32_bf16 {d}, {V(A4+6*u+2-2*o,4)}, {V(src+4*be,4)}, {"0" if u==0 else d}')
    step4(0, PK)
    k.wait(lg=0); k('s_barrier')
    stamp(k, 3)
    for u in range(1, 4):
        for be in range(2): k(f'ds_read_b128 {V(Z+8*u+4*be,4)}, v{27+u} offset:{1024*be}')
    for u in range(1, 4): step4(u, Z+8*u)
    if addon: wd_finish(k, 10)
    for o in range(2):
        for be in range(2):
            for r in range(4):
                d = DD+8*be+4*o+r; hi = r & 1
                k(f'v_fma_mix_f32 v{d}, v{SG+4*be+r}, v{Z+4*be+2*o+(r>>1)}, v{d} op_sel:[0,{hi},0] op_sel_hi:[0,1,0]')
            for h in range(2): k(f'v_cvt_pk_bf16_f32 v{PK+4*o+2*be+h}, v{DD+8*be+4*o+2*h}, v{DD+8*be+4*o+2*h+1}')
    k('s_cmp_lg_u32 s2, 0\n s_cbranch_scc1 L_p2_st')
    for h in range(4): k(f'v_mov_b32 v{PK+4+h}, v{PK+h}\n v_mov_b32 v{PK+h}, 0')
    k.label('L_p2_st')
    for o in range(2): k(f'buffer_store_dwordx4 {V(PK+4*o,4)}, v6, {WSR}, s{64+o} offen{OPT["st"]}')

STATL = 131072
def p3(k):
    ACC, ACT, AD, SQ, MUV, ST, TM = 128, 64, 16, 24, 8, 32, 48
    ld = OPT['ld']
    acc = lambda n, mu, par=0: ACC + 32*(n + (par if n == 2 else 0)) + 4*mu
    k(f"""s_mov_b32 s28, s24
    s_mov_b32 s29, s25
    s_mov_b32 s30, {WP+188*16384}
    s_mov_b32 s31, 0x20000
    s_mov_b32 s32, s24
    s_mov_b32 s33, s25
    s_mov_b32 s34, {HF+86*65536}
    s_mov_b32 s35, 0x20000
    s_and_b32 s44, s2, 1
    s_lshl_b32 s44, s44, 3
    s_bfe_u32 s45, s2, 0x30003
    s_add_u32 s60, s44, s45            ; rb
    s_bfe_u32 s44, s2, 0x20001
    s_lshl_b32 s44, s44, 2
    s_lshr_b32 s45, s2, 6
    s_add_u32 s61, s44, s45            ; cg
    s_mul_i32 s44, s61, 11
    s_mul_i32 s45, {WAVE}, 3
    s_add_u32 s62, s44, s45            ; tau0
    s_add_u32 s44, s62, 16
    s_lshl_b32 s44, s44, 14
    s_add_u32 s64, s44, {WP}
    s_add_u32 s65, s64, 16384
    s_add_u32 s66, s64, 32768
    s_lshl_b32 s44, s61, 14
    s_add_u32 s44, s44, {WP}
    s_cmp_eq_u32 {WAVE}, 3
    s_cselect_b32 s66, s44, s66
    s_lshl_b32 s44, s60, 17
    s_lshl_b32 s68, {WAVE}, 11         ; m0
    s_add_u32 s44, s44, s68
    s_add_u32 s67, s44, {HT}
    v_lshlrev_b32 v5, 1, v2
    v_xor_b32 v5, v5, v3
    v_lshlrev_b32 v5, 4, v5
    v_lshl_add_u32 v5, v2, 8, v5
    v_xor_b32 v6, 128, v5              ; odd
    v_bfe_u32 v7, v1, 1, 1             ; mu
    v_lshlrev_b32 v7, 9, v7
    v_lshl_add_u32 v7, v2, 7, v7
    v_and_b32 v26, 1, v1
    v_lshl_add_u32 v7, v26, 6, v7
    v_bfe_u32 v26, v1, 2, 2
    v_lshl_add_u32 v7, v26, 4, v7""")
    def issue(ka):
        k(f's_mov_b32 m0, s68')
        k(f'buffer_load_dwordx4 v5, {WSR}, s67 offen lds{ld}')
        k(f'buffer_load_dwordx4 v6, {WSR}, s67 offen offset:1024 lds{ld}')
        for n in range(3):
            k(f'buffer_load_dwordx4 {A(12*ka+4*n,4)}, v7, {RA}, s{64+n} offen offset:{1024*(ka&3)}{ld}')
        k('s_add_u32 s67, s67, 8192\n s_add_u32 s68, s68, 8192')
        if ka & 3 == 3:
            for n in range(3): k(f's_add_u32 s{64+n}, s{64+n}, 4096')
    k(f's_lshl_b32 s44, s60, 9\n s_add_u32 s69, s44, {MU}\n v_lshlrev_b32 v27, 2, v3')
    PRE = 11
    for ka in range(PRE):
        issue(ka)
        if ka == 0:
            for mu in range(8): k(f'buffer_load_dword v{MUV+mu}, v27, {WSR}, s69 offen offset:{64*(mu^6)}{ld}')
    k(f"""v_lshrrev_b32 v26, 2, v1
    v_and_b32 v27, 7, v26
    s_lshl_b32 s44, {WAVE}, 1
    v_xor_b32 v27, s44, v27
    v_lshlrev_b32 v27, 5, v27
    v_lshl_add_u32 v27, v26, 8, v27
    v_and_b32 v26, 3, v1
    v_lshl_add_u32 v{AD}, v26, 3, v27""")
    for mu in range(1, 8): k(f'v_xor_b32 v{AD+mu}, {32*mu}, v{AD}')
    stamp(k, 1)
    issued = PRE
    def ready(ka):
        k(f's_waitcnt vmcnt({5*(issued-ka)-2+(8 if ka==0 else 0)})'); k('s_barrier')
    def reads(ka, mu):
        if ka == 8: k(f'v_add_u32 v{AD+mu}, 0x10000, v{AD+mu}')
        for h in range(2):
            k(f'ds_read_b64_tr_b16 {V(ACT+32*(ka&1)+4*mu+2*h,2)}, v{AD+mu} offset:{8192*(ka&7)+4096*h}')
    ready(0)
    stamp(k, 2)
    for mu in range(8): reads(0, mu)
    for ka in range(16):
        if ka + 1 < 16: ready(ka + 1)
        for mu in range(8):
            if ka + 1 < 16: reads(ka + 1, mu)
            b = V(ACT+32*(ka&1)+4*mu, 4)
            for n in range(3):
                d = V(acc(n, mu, ka & 1), 4)
                first = ka == 0 or (n == 2 and ka == 1)
                k(f'v_mfma_f32_16x16x32_bf16 {d}, {A(12*ka+4*n,4)}, {b}, {"0" if first else d}')
            if mu < 2:
                for j in range(4):
                    r = ACT+32*(ka&1)+4*mu+j
                    k(f'v_dot2_f32_bf16 v{SQ+mu}, v{r}, v{r}, {"0" if ka==0 and j==0 else V(SQ+mu)}')
            if ka == 15 and mu == 2:
                k(f"""v_permlane32_swap_b32 v{SQ}, v{SQ+1}
                v_add_f32 v{SQ}, v{SQ}, v{SQ+1}
                v_mov_b32 v{SQ+1}, v{SQ}
                v_permlane16_swap_b32 v{SQ}, v{SQ+1}
                v_add_f32 v{SQ}, v{SQ}, v{SQ+1}
                v_mov_b32 v{SQ+1}, {fbits(1e-5)}
                v_fmac_f32 v{SQ+1}, {fbits(1/512)}, v{SQ}
                v_rsq_f32 v{SQ}, v{SQ+1}
                v_lshrrev_b32 v26, 1, v2
                v_lshl_add_u32 v26, v26, 4, v3
                v_mul_f32 v{SQ+1}, v{SQ+1}, v{SQ}
                s_lshl_b32 s44, {WAVE}, 8
                s_add_u32 s44, s44, {STATL}
                v_lshl_add_u32 v26, v26, 3, s44
                ds_write_b64 v26, {V(SQ,2)}""")
        if issued < 16: issue(issued); issued += 1
    stamp(k, 3)
    k.wait(lg=0); k('s_barrier')
    k(f's_lshl_b32 s44, {WAVE}, 8\n v_lshlrev_b32 v26, 3, v3\n v_add_u32 v26, {STATL}, v26\n v_add_u32 v26, s44, v26')
    for mu in range(8):
        k(f'v_xor_b32 v27, {128*mu}, v26\n ds_read_b64 {V(ST+2*mu,2)}, v27')
    k(f"""s_lshl_b32 s44, {WAVE}, 1
    v_xor_b32 v26, s44, v2
    v_lshrrev_b32 v27, 1, v26
    v_lshlrev_b32 v27, 10, v27
    v_and_b32 v26, 1, v26
    v_lshl_add_u32 v27, v26, 8, v27
    v_lshl_add_u32 v28, v3, 4, v27
    v_xor_b32 v29, 0x800, v28
    s_mov_b32 s70, {fbits(-2*math.sqrt(2/math.pi)*math.log2(math.e)*0.044715)}
    v_mov_b32 v30, {fbits(-2*math.sqrt(2/math.pi)*math.log2(math.e))}
    s_lshl_b32 s63, s60, 12
    s_add_u32 s63, s63, {HF}""")
    def geglu(n):
        k(f's_add_u32 s44, s62, {n}\n s_lshr_b32 s45, s44, 1\n s_lshl_b32 s45, s45, 16\n s_and_b32 s44, s44, 1\n s_lshl_b32 s44, s44, 9\n s_add_u32 s44, s44, s45\n s_add_u32 s64, s44, s63')
        for m0 in (0, 4):
            HD = ACT + 8*n + m0
            ms = range(m0, m0+4)
            g = lambda mu: V(acc(n, mu), 2)
            u = lambda mu: V(acc(n, mu)+2, 2)
            t = lambda mu: V(TM+2*(mu-m0), 2)
            if n == 2:
                for mu in ms:
                    k(f'v_pk_add_f32 {g(mu)}, {g(mu)}, {V(acc(n,mu,1),2)}\n v_pk_add_f32 {u(mu)}, {u(mu)}, {V(acc(n,mu,1)+2,2)}')
            for mu in ms: k(f'v_pk_mul_f32 {g(mu)}, {g(mu)}, {V(ST+2*mu,2)} op_sel_hi:[1,0]')
            for mu in ms: k(f'v_pk_mul_f32 {t(mu)}, {g(mu)}, {g(mu)}')
            for mu in ms: k(f'v_pk_fma_f32 {t(mu)}, {t(mu)}, s[70:71], v[30:31] op_sel_hi:[1,0,0]')
            for mu in ms: k(f'v_pk_mul_f32 {t(mu)}, {t(mu)}, {g(mu)}')
            for mu in ms:
                for h in range(2): k(f'v_exp_f32 v{TM+2*(mu-m0)+h}, v{TM+2*(mu-m0)+h}')
            for mu in ms: k(f'v_pk_mul_f32 {g(mu)}, {g(mu)}, {u(mu)}')
            for mu in ms: k(f'v_pk_fma_f32 {t(mu)}, {t(mu)}, {V(ST+2*mu,2)}, {V(ST+2*mu,2)} op_sel:[0,1,1] op_sel_hi:[1,1,1]')
            for mu in ms:
                for h in range(2): k(f'v_rcp_f32 v{TM+2*(mu-m0)+h}, v{TM+2*(mu-m0)+h}')
            for mu in ms: k(f'v_pk_mul_f32 {g(mu)}, {g(mu)}, {t(mu)}')
            for mu in ms: k(f'v_cvt_pk_bf16_f32 v{HD+mu-m0}, v{acc(n,mu)}, v{acc(n,mu)+1}')
            k(f"""v_permlane32_swap_b32 v{HD}, v{HD+2}
            v_permlane32_swap_b32 v{HD+1}, v{HD+3}
            v_permlane16_swap_b32 v{HD}, v{HD+1}
            v_permlane16_swap_b32 v{HD+2}, v{HD+3}
            buffer_store_dwordx4 {V(HD,4)}, v{28+(m0>>2)}, {RB}, s64 offen{OPT['st']}""")
    geglu(0); geglu(1)
    k(f's_cmp_eq_u32 {WAVE}, 3\n s_cbranch_scc1 L_p3_h')
    st = k.state()
    geglu(2)
    k('s_branch L_p3_done')
    k.restore(st)
    k.label('L_p3_h')
    k(f"""s_lshl_b32 s44, s60, 17
    s_lshl_b32 s45, s61, 5
    s_add_u32 s64, s44, {HRES}
    s_sub_u32 s65, s64, s45
    s_add_u32 s65, s65, {1016}
    s_add_u32 s64, s64, s45
    v_lshlrev_b32 v26, 10, v3
    v_lshl_add_u32 v27, v2, 3, v26
    v_lshlrev_b32 v28, 3, v2
    v_sub_u32 v28, v26, v28
    v_add_u32 v28, 24, v28
    s_sub_u32 s65, s65, 24""")
    for mu in range(8):
        e, o = acc(2, mu), acc(2, mu, 1); t = TM + 8*(mu & 1); p = ACT + 4*mu
        for r in range(4): k(f'v_add_f32 v{e+r}, v{e+r}, v{MUV+mu}')
        for h in (0, 2):
            k(f'v_pk_add_f32 {V(t+h,2)}, {V(e+h,2)}, {V(o+h,2)}')
            k(f'v_pk_add_f32 {V(t+4+h,2)}, {V(e+h,2)}, {V(o+h,2)} neg_lo:[0,1] neg_hi:[0,1]')
        k(f"""v_cvt_pk_bf16_f32 v{p}, v{t}, v{t+1}
        v_cvt_pk_bf16_f32 v{p+1}, v{t+2}, v{t+3}
        v_cvt_pk_bf16_f32 v{p+2}, v{t+7}, v{t+6}
        v_cvt_pk_bf16_f32 v{p+3}, v{t+5}, v{t+4}
        s_add_u32 s44, s64, {16384*(mu^6)}
        s_add_u32 s45, s65, {16384*(mu^6)}
        buffer_store_dwordx2 {V(p,2)}, v27, {WSR}, s44 offen{OPT['st']}
        buffer_store_dwordx2 {V(p+2,2)}, v28, {WSR}, s45 offen{OPT['st']}""")
    k.label('L_p3_done')

def p4(k):
    HB, ACC, HR, RD = 32, 192, 208, 32
    ld = OPT['ld']
    srd(k, 36, 18, S*D*2)
    k(f"""s_mov_b32 s28, s24
    s_mov_b32 s29, s25
    s_mov_b32 s30, {WD+86*16384}
    s_mov_b32 s31, 0x20000
    s_mov_b32 s32, s24
    s_mov_b32 s33, s25
    s_mov_b32 s34, {HF+86*65536}
    s_mov_b32 s35, 0x20000
    s_and_b32 s44, s2, 3
    s_lshl_b32 s44, s44, 3
    s_bfe_u32 s45, s2, 0x30003
    s_add_u32 s60, s44, s45            ; mb
    s_and_b32 s44, s2, 4
    s_lshr_b32 s45, s2, 6
    s_add_u32 s61, s44, s45            ; nb
    s_lshl_b32 s44, {WAVE}, 16
    s_lshl_b32 s45, s60, 11
    s_add_u32 s44, s44, s45
    s_add_u32 s64, s44, {HF}
    s_lshl_b32 s44, {WAVE}, 14
    s_lshl_b32 s45, s61, 11
    s_add_u32 s44, s44, s45
    s_add_u32 s65, s44, {WD}
    s_and_b32 s62, {WAVE}, 1
    s_lshr_b32 s63, {WAVE}, 1
    s_lshl_b32 s44, s62, 10
    v_add_u32 v5, s44, v4
    v_xor_b32 v6, 0x400, v5
    v_lshrrev_b32 v7, 5, v1
    v_lshlrev_b32 v7, 9, v7
    v_and_b32 v8, 1, v1
    v_lshl_add_u32 v7, v8, 8, v7
    v_bfe_u32 v8, v1, 2, 1
    v_lshl_add_u32 v7, v8, 7, v7
    v_bfe_u32 v8, v1, 3, 2
    v_lshl_add_u32 v7, v8, 5, v7
    v_bfe_u32 v8, v1, 1, 1
    v_lshl_add_u32 v7, v8, 4, v7
    s_lshl_b32 s44, s63, 10
    v_add_u32 v7, s44, v7
    v_xor_b32 v8, 0x400, v7""")
    def issue(u):
        for i in range(2): k(f'buffer_load_dwordx4 {A(8*u+4*i,4)}, v{7+i}, {RA}, s65 offen{ld}')
        for i in range(2): k(f'buffer_load_dwordx4 {V(HB+8*u+4*i,4)}, v{5+i}, {RB}, s64 offen{ld}')
        k('s_add_u32 s64, s64, 0x40000\n s_add_u32 s65, s65, 0x10000')
    PRE = 15
    for u in range(PRE): issue(u)
    k(f"""s_lshl_b32 s44, s60, 1
    s_add_u32 s44, s44, s62            ; m'>>5
    s_lshl_b32 s45, s61, 1
    s_add_u32 s45, s45, s63
    s_lshl_b32 s45, s45, 6
    s_lshl_b32 s66, s44, 15
    s_add_u32 s66, s66, s45
    s_add_u32 s66, s66, {HRES}
    v_and_b32 v9, 31, v1
    v_lshlrev_b32 v9, 10, v9
    v_lshrrev_b32 v10, 5, v1
    v_lshl_add_u32 v9, v10, 5, v9
    s_lshr_b32 s46, s44, 4
    s_lshl_b32 s46, s46, 19
    s_and_b32 s44, s44, 15
    s_lshl_b32 s44, s44, 10
    s_add_u32 s67, s46, s44
    s_add_u32 s67, s67, s45
    v_bfe_u32 v11, v1, 3, 2
    v_lshlrev_b32 v11, 17, v11
    v_lshl_add_u32 v10, v10, 5, v11
    v_and_b32 v11, 3, v1
    v_lshl_add_u32 v10, v11, 15, v10
    v_bfe_u32 v11, v1, 2, 1
    v_lshl_add_u32 v10, v11, 14, v10
    s_mul_i32 s44, {WAVE}, 12288
    v_add_u32 v12, s44, v4""")
    for sl in range(1, 4):
        k(f's_xor_b32 s44, {WAVE}, {sl}\n s_mul_i32 s44, s44, 12288\n s_add_u32 s44, s44, {4096*(sl-1)}\n v_add_u32 v{12+sl}, s44, v4')
    stamp(k, 1)
    issued = PRE
    for u in range(22):
        for i_n in range(2):
            for i_m in range(2):
                d = A(ACC+16*(2*i_n+i_m), 16)
                k(f'v_mfma_f32_32x32x16_bf16 {d}, {A(8*u+4*i_n,4)}, {V(HB+8*u+4*i_m,4)}, {"0" if u==0 else d}')
        if u == 0: stamp(k, 2)
        if issued < 22: issue(issued); issued += 1
        if issued == 22 and u == 22 - PRE:
            for h in range(2): k(f'buffer_load_dwordx4 {V(HR+4*h,4)}, v9, {WSR}, s66 offen offset:{16*h}{ld}')
    stamp(k, 3)
    for sl in range(1, 4):
        for q in range(4): k(f'ds_write_b128 v{12+sl}, {A(ACC+16*sl+4*q,4)} offset:{1024*q}')
    for r in range(16): k(f'v_accvgpr_read_b32 v{16+r}, a{ACC+r}')
    for r in range(8):
        k(f'v_lshlrev_b32 v{216+2*r}, 16, v{HR+r}\n v_and_b32 v{217+2*r}, 0xffff0000, v{HR+r}')
    k.wait(lg=0); k('s_barrier')
    for j in range(12): k(f'ds_read_b128 {V(RD+4*j,4)}, v12 offset:{1024*j}')
    for r in range(8): k(f'v_pk_add_f32 {V(16+2*r,2)}, {V(16+2*r,2)}, {V(216+2*r,2)}')
    for sl in range(3):
        for r in range(8): k(f'v_pk_add_f32 {V(16+2*r,2)}, {V(16+2*r,2)}, {V(RD+16*sl+2*r,2)}')
    for r in range(8): k(f'v_cvt_pk_bf16_f32 v{HR+r}, v{16+2*r}, v{17+2*r}')
    for h in range(2): k(f'buffer_store_dwordx4 {V(HR+4*h,4)}, v10, {RC}, s67 offen offset:{16*h}')

def kd(name, k):
    nv = k.maxv + 1; acc = (nv + 3) // 4 * 4
    tot = acc + k.maxa + 1 if k.maxa >= 0 else nv
    return f""".amdhsa_kernel {name}
  .amdhsa_next_free_vgpr {tot}
  .amdhsa_next_free_sgpr {max(k.maxs+1, 48)}
  .amdhsa_accum_offset {acc}
  .amdhsa_group_segment_fixed_size 0
  .amdhsa_kernarg_size 80
  .amdhsa_user_sgpr_count 2
  .amdhsa_user_sgpr_kernarg_segment_ptr 1
  .amdhsa_system_sgpr_workgroup_id_x 1
.end_amdhsa_kernel
"""
def tables_text():
    a = np.concatenate(tbl_data).astype(np.uint16).view(np.uint64)
    o = ['.p2align 8', '.type tables,@object', 'tables:']
    for i in range(0, len(a), 8): o.append('.quad ' + ','.join(hex(int(x)) for x in a[i:i+8]))
    return '\n'.join(o) + '\n'

def header():
    ref = open('cdna_kernels/%s.s.ref' % NAME).read().split('\n')
    return '\n'.join(l for l in ref[:11]) + '\n'

def multi():
    ks = []
    k = K(); prologue(k, 'p1_kernel', 256)
    k('s_cmp_ge_u32 s2, 214\n s_cbranch_scc1 L_p1_c\n s_cmp_ge_u32 s2, 128\n s_cbranch_scc1 L_p1_w')
    st = k.state()
    p1_z(k); stamp_out(k, 0, 4); k('s_endpgm')
    k.restore(st); k.label('L_p1_w'); p1_w(k, 128); stamp_out(k, 0, 4); k('s_endpgm')
    k.restore(st); k.label('L_p1_c'); p1_c(k, 214); stamp_out(k, 0, 1)
    k.label('L_end_p1_kernel'); k('s_endpgm'); ks.append(('p1_kernel', k, 34816))
    k = K(); prologue(k, 'p2_kernel', 256); p2(k); stamp_out(k, 1, 4); k.label('L_end_p2_kernel'); k('s_endpgm'); ks.append(('p2_kernel', k, 8192))
    k = K(); prologue(k, 'p3_kernel', 256); p3(k); stamp_out(k, 2, 4); k.label('L_end_p3_kernel'); k('s_endpgm'); ks.append(('p3_kernel', k, 131072+1024))
    k = K(); prologue(k, 'p4_kernel', 256); p4(k); stamp_out(k, 3, 4); k.label('L_end_p4_kernel'); k('s_endpgm'); ks.append(('p4_kernel', k, 49152))
    o = header()
    for n, k, lds in ks: o += f'; @launch kernel={n} grid=(256,1,1) block=(256,1,1) lds={lds}\n'
    o += '.amdgcn_target "amdgcn-amd-amdhsa--gfx950"\n.text\n'
    for n, k, lds in ks: o += k.text()
    o += '.section .rodata,"a"\n'
    for n, k, lds in ks: o += '.p2align 6\n' + kd(n, k)
    o += tables_text()
    return o

if __name__ == '__main__':
    out = sys.argv[1]
    for a in sys.argv[2:]:
        key, _, val = a.partition('=')
        OPT[key] = (' ' + val.replace('+', ' ')) if key in ('st', 'ld') else True
    open(out, 'w').write(multi())
```

```python
import numpy as np
S, D, F = 2048, 512, 1376

def f2bf(x):
    u = np.ascontiguousarray(x, np.float32).view(np.uint32).astype(np.uint64)
    return (((u + 0x7FFF + ((u >> 16) & 1)) >> 16) & 0xFFFF).astype(np.uint16)
def bf2f(u): return (np.asarray(u).astype(np.uint32) << 16).view(np.float32)
def f2h(x): return np.asarray(x, np.float64).astype(np.float16).view(np.uint16)
def h2f(u): return np.asarray(u).view(np.float16).astype(np.float32)

ZT_STRIDE = 8192
WT_STRIDE = 8192
off = 0x10000
CNT, FLG, RBF = 0, 4096, 32768
def alloc(n):
    global off
    o = off; off = (off + n + 4095) // 4096 * 4096; return o
ZT = alloc(256 * ZT_STRIDE)
WT = alloc(256 * WT_STRIDE)
SIG = alloc(S * 4)
MU = alloc(S * 4)
HT = alloc(512 * S * 2)
WP = alloc(188 * 16384)
WD = alloc(86 * 16384)
HF = alloc(86 * 65536)
HRES = alloc(S * D * 2)
STAMP = alloc(1 << 20)
WS_USED = off

def kd_of(c):
    s, j = c >> 4, c & 15
    if c == 0: return 256
    if j < 8: return s + 32 * j
    return (16 if s == 0 else 32 - s) + 32 * (j - 8)
KD = np.array([kd_of(c) for c in range(256)])
def s_of_m(m):
    w, g, bl, be, r = m >> 9, (m >> 7) & 3, (m >> 3) & 15, (m >> 2) & 1, m & 3
    return 32 * (16 * w + 4 * g + r) + 16 * be + bl
SOFM = np.array([s_of_m(m) for m in range(S)])
def rho(c, part): return 64 * (c >> 5) + 32 * part + (c & 31)

def basis():
    C = np.zeros((D, 512)); d = np.arange(D)
    for c in range(256):
        ph = 2 * np.pi * KD[c] * (d + 0.5) / 512
        if c == 0: C[:, rho(0, 1)] = -np.sin(ph) / np.sqrt(512)
        else:
            C[:, rho(c, 0)] = np.cos(ph) / 16; C[:, rho(c, 1)] = -np.sin(ph) / 16
    return C

L = np.arange(64); G_ = L >> 4; X_ = L & 15; E_ = np.arange(8)
def clean(a):
    a = np.where(np.abs(a) < 1e-12, 0.0, a); return a + 0.0
def t_FA():
    d1 = 16 * (E_[None, :] >> 2) + 4 * G_[:, None] + (E_[None, :] & 3)
    th = 2 * np.pi * X_[:, None] * d1 / 32
    re = np.cos(th); im = np.where(X_[:, None] == 0, np.cos(np.pi * d1), -np.sin(th))
    return f2bf(clean(np.stack([re, im])))
def t_GB(zpath):
    out = np.zeros((16, 2, 64, 8))
    for s in range(16):
        for l in range(64):
            g, j = l >> 4, l & 15; c = 16 * s + j
            for e in range(8):
                d2, comp = 4 * g + (e & 3), e >> 2
                ph = 2 * np.pi * KD[c] * (d2 + 0.5) / 512; co, si = np.cos(ph), np.sin(ph)
                if c == 0:
                    v = (-si / np.sqrt(2) if comp == 0 else 0.0)
                    re, im = (v, 0.0) if zpath else (0.0, v)
                elif s == 0:
                    use = (comp == 0) if j < 8 else (comp == 1)
                    re, im = (co, -si) if use else (0.0, 0.0)
                elif j < 8: re, im = (co, -si) if comp == 0 else (si, co)
                else: re, im = (co, -si) if comp == 0 else (-si, -co)
                out[s, 0, l, e] = re; out[s, 1, l, e] = im
    return f2h(clean(out / 4)) if zpath else f2bf(clean(out / 16))
def cs_frag(x, y, n, sgn, scale):
    th = 2 * np.pi * x[:, None] * y / n
    return clean(np.concatenate([np.cos(th), sgn * np.sin(th)], axis=1) * scale)
R4 = np.arange(4)
def t_B1(): return f2h(np.array([[cs_frag(16*w + X_, 16*((u+w) % 4) + 4*G_[:, None] + R4, 64, 1, 1/8) for u in range(4)] for w in range(4)]))
def t_A4(): return f2bf(np.array([[cs_frag(16*w + X_, 16*((u+w) % 4) + 4*G_[:, None] + R4, 64, -1, 1/8) for u in range(4)] for w in range(4)]))
def t_A2(): return f2h(np.array([[cs_frag(16*t + X_, 16*b + 4*G_[:, None] + R4, 32, 1, 1/8) for b in range(2)] for t in range(2)]))
def t_B3(): return f2bf(np.array([[cs_frag(16*b + X_, 16*t + 4*G_[:, None] + R4, 32, -1, 1/4) for t in range(2)] for b in range(2)]))

def model(ref):
    x = bf2f(ref['A_x']).reshape(S, D).astype(np.float64)
    wr = bf2f(ref['A_w_r']).astype(np.float64); wi = bf2f(ref['A_w_i']).astype(np.float64)
    wg = bf2f(ref['B_w_gate']).astype(np.float64); wu = bf2f(ref['B_w_up']).astype(np.float64); wd = bf2f(ref['B_w_down']).astype(np.float64)
    M = {}
    mu = x.mean(1); sig = np.sqrt(x.var(1) + 1e-5); z = (x - mu[:, None]) / sig[:, None]
    M['SIG'] = sig[SOFM]; M['MU'] = mu[SOFM]
    C = basis(); Zh = z @ C
    Zc = np.stack([Zh[:, rho(c, 0)] + 1j * Zh[:, rho(c, 1)] for c in range(256)], 1)
    Zc[:, 0] = Zh[:, rho(0, 1)]
    Zr = Zc.reshape(4, 4, 4, 32, 256)
    zt = np.concatenate([Zr.real.transpose(4, 0, 3, 1, 2), Zr.imag.transpose(4, 0, 3, 1, 2)], axis=-1)
    M['ZT'] = zt.reshape(256, -1)
    def wt(a): return a[:, 1:].reshape(2, 4, 4, 4, 16, 256).transpose(5, 0, 3, 1, 4, 2)
    M['WT'] = np.stack([wt(wr), wt(wi)], -1).reshape(256, -1)
    W = (wr + 1j * wi)[:, KD]
    Y = np.fft.ifft(np.fft.fft(Zc, axis=0) * W, axis=0)
    Hc = sig[:, None] * Zc + Y
    Hh = np.zeros((S, 512))
    for c in range(256):
        if c == 0: Hh[:, rho(0, 1)] = Hc[:, 0].real
        else: Hh[:, rho(c, 0)] = Hc[:, c].real; Hh[:, rho(c, 1)] = Hc[:, c].imag
    Hm = Hh[SOFM]
    M['HT'] = Hm.reshape(64, 32, 512).transpose(0, 2, 1)
    Wg = C.T @ wg; Wu = C.T @ wu
    kk = 32 * np.arange(16)[:, None, None] + 4 * np.arange(4)[None, :, None] + (16 * (E_ >> 2) + (E_ & 3))[None, None, :]
    wp = np.zeros((188, 16, 2, 4, 2, 4, 8))
    for t in range(16):
        for ga in range(4):
            for mu_ in range(2):
                for pi in range(2):
                    wp[t, :, mu_, :, pi, ga, :] = C[16 * t + 4 * ga + 2 * mu_ + pi][kk]
    for tau in range(172):
        for ga in range(4):
            for pi in range(2):
                f = 8 * tau + 2 * ga + pi
                wp[16 + tau, :, 0, :, pi, ga, :] = Wg[:, f][kk]; wp[16 + tau, :, 1, :, pi, ga, :] = Wu[:, f][kk]
    M['WP'] = wp
    i = np.arange(32); nloc = 2 * (i & 15) + (i >> 4)
    M['WD'] = wd.reshape(86, 2, 8, 16, 32)[:, :, :, :, nloc].transpose(0, 3, 1, 4, 2)
    h = Hm @ C.T + mu[SOFM][:, None]
    hb = h.reshape(S, 32, 16)
    M['HRES'] = np.stack([np.stack([hb[:, cg], hb[:, 31 - cg]]) for cg in range(16)])
    M['h'] = h
    rstd = 1 / np.sqrt((Hm ** 2).sum(1) / 512 + 1e-5)
    g = (Hm @ Wg) * rstd[:, None]; u = (Hm @ Wu) * rstd[:, None]
    H = 0.5 * g * (1 + np.tanh(np.sqrt(2 / np.pi) * (g + 0.044715 * g ** 3))) * u
    M['HF'] = H.reshape(64, 32, 86, 2, 8).transpose(2, 0, 3, 1, 4)
    out = np.zeros((S, D)); out[SOFM] = h + H @ wd
    M['out'] = out
    return M

if __name__ == '__main__':
    ref = np.load('ref0.npz'); M = model(ref)
    o = bf2f(ref['out']).reshape(S, D)
    e = M['out'] - o
    print('model vs torch ref: max', np.abs(e).max(), 'rms', np.sqrt((e ** 2).mean()), 'thr', 8 / 256 * np.abs(o).max())
    hh = np.zeros((S, D)); hh[SOFM] = M['h']
    print('h err', np.abs(hh - bf2f(ref['h']).reshape(S, D)).max())
    FA = bf2f(t_FA()).astype(np.float64); GB = h2f(t_GB(True)).astype(np.float64)
    z = np.random.randn(512); T = np.zeros((2, 16, 16))
    d1 = 16 * (E_[None, :] >> 2) + 4 * np.arange(4)[:, None] + (E_[None, :] & 3)
    for comp in range(2):
        for sl in range(16):
            for d2 in range(16):
                T[comp, sl, d2] = sum(FA[comp, 16 * g + sl, e] * z[16 * d1[g, e] + d2] for g in range(4) for e in range(8))
    Zh = z @ basis(); err = 0
    for sl in range(16):
        for j in range(16):
            for o_ in range(2):
                v = sum(GB[sl, o_, 16 * g + j, e] * T[e >> 2, sl, 4 * g + (e & 3)] / 4 for g in range(4) for e in range(8))
                c = 16 * sl + j
                want = Zh[rho(c, o_)] if c else (Zh[rho(0, 1)] if o_ == 0 else 0)
                err = max(err, abs(v - want))
    print('two-step table err', err, 'ws used', WS_USED)
```

```python
import sys, math, struct
import numpy as np
from dsl import K
from design import *

NAME = "sequential_preLN__spectral_gfnet__glu_gated_geglu__prompt"
OPT = dict(stamps=False, st='', ld='')
def fbits(x): return '0x%08x' % struct.unpack('<I', struct.pack('<f', x))[0]
def V(b, n=1): return f'v{b}' if n == 1 else f'v[{b}:{b+n-1}]'
def A(b, n=1): return f'a{b}' if n == 1 else f'a[{b}:{b+n-1}]'
def Sg(b, n=1): return f's{b}' if n == 1 else f's[{b}:{b+n-1}]'

TBL = {}
tbl_data = []
def add_tbl(name, arr):
    TBL[name] = sum(len(a) for a in tbl_data) * 2
    tbl_data.append(np.ascontiguousarray(arr).reshape(-1))
add_tbl('FA', t_FA()); add_tbl('GBZ', t_GB(True)); add_tbl('GBW', t_GB(False))
add_tbl('P2W', np.stack([t_B1().reshape(4, -1), t_A4().reshape(4, -1)], 1))
add_tbl('P2S', np.concatenate([t_A2().reshape(-1), t_B3().reshape(-1)]))

WSR, RA, RB, RC = 's[24:27]', 's[28:31]', 's[32:35]', 's[36:39]'
WAVE = 's40'

def srd(k, base, ptr, nbytes):
    k(f"""s_mov_b32 s{base}, s{ptr}
    s_and_b32 s{base+1}, s{ptr+1}, 0xffff
    s_mov_b32 s{base+2}, {nbytes}
    s_mov_b32 s{base+3}, 0x20000""")

def stamp(k, i):
    if OPT['stamps']: k(f's_{"memtime" if OPT.get("cyc") else "memrealtime"} s[{80+2*i}:{81+2*i}]')

def stamp_out(k, kid, n):
    if not OPT['stamps']: return
    k.wait(vm=0, lg=0)
    stamp(k, n); n += 1
    k.wait(lg=0)
    k(f's_lshl_b32 s44, s2, 7\n s_lshl_b32 s45, {WAVE}, 5\n s_add_u32 s44, s44, s45\n s_add_u32 s44, s44, {STAMP + kid*65536}')
    for i in range(8): k(f'v_mov_b32 v{8+i}, s{80+2*i}' if i < n else f'v_mov_b32 v{8+i}, 0')
    k(f"""v_mov_b32 v16, 0
    s_mov_b64 exec, 1
    buffer_store_dwordx4 v[8:11], v16, {WSR}, s44 offen
    buffer_store_dwordx4 v[12:15], v16, {WSR}, s44 offen offset:16""")

def prologue(k, name, nwg):
    k.raw(f'.globl {name}\n.p2align 8\n.type {name},@function\n{name}:')
    stamp(k, 0)
    k(f"""s_load_dwordx16 s[4:19], s[0:1], 0
    s_load_dwordx4 s[20:23], s[0:1], 64
    s_cmp_ge_u32 s2, {nwg}
    s_cbranch_scc1 L_end_{name}
    v_lshrrev_b32 v5, 6, v0
    v_and_b32 v1, 63, v0
    v_readfirstlane_b32 {WAVE}, v5
    v_bfe_u32 v2, v0, 4, 2
    v_and_b32 v3, 15, v0
    v_lshlrev_b32 v4, 4, v1
    s_getpc_b64 s[42:43]""")
    k.raw('    s_add_u32 s42, s42, tables@rel32@lo+4\n    s_addc_u32 s43, s43, tables@rel32@hi+12')
    k.pos += 2
    k.wait(lg=0)
    srd(k, 24, 22, WS_USED)

def tbl_addr(k, vp, soff):
    k(f"""s_add_u32 s46, s42, {soff}
    s_addc_u32 s47, s43, 0
    v_mov_b32 v{vp+1}, s47
    v_add_co_u32 v{vp}, vcc, s46, v4
    v_addc_co_u32 v{vp+1}, vcc, 0, v{vp+1}, vcc""")

TPAD = 1040

def wt_issue(k, vb):
    srd(k, 28, 6, 2048*257*2); srd(k, 32, 8, 2048*257*2)
    k(f"""s_and_b32 s44, s2, 3
    s_lshl_b32 s44, s44, 6
    s_lshl_b32 s45, {WAVE}, 4
    s_add_u32 s44, s44, s45
    s_bfe_u32 s45, s2, 0x30002         ; (w_,jh)
    s_lshl_b32 s45, s45, 3             ; 16w_+8jh
    s_lshr_b32 s48, s2, 5              ; (tau,g_)
    s_lshl_b32 s49, s48, 8
    s_add_u32 s49, s49, s45            ; row0
    s_mul_i32 s49, s49, 514
    s_lshl_b32 s50, s44, 1
    s_add_u32 s49, s49, s50
    s_add_u32 s49, s49, 2
    s_add_u32 s50, s49, {64*514}
    s_add_u32 s51, s49, {128*514}
    s_add_u32 s52, s49, {192*514}
    v_and_b32 v{vb}, 7, v1
    v_lshrrev_b32 v{vb+1}, 3, v1
    v_mul_u32_u24 v{vb+2}, 514, v{vb}
    v_lshl_add_u32 v{vb+2}, v{vb+1}, 1, v{vb+2}
    """)
    for u in range(2):
        for r in range(4):
            k(f'buffer_load_ushort v{vb+4+8*u+r}, v{vb+2}, {RA}, s{49+r} offen offset:{16*u}')
            k(f'buffer_load_ushort v{vb+8+8*u+r}, v{vb+2}, {RB}, s{49+r} offen offset:{16*u}')
    k(f"""s_mul_i32 s53, s44, {WT_STRIDE}
    s_lshr_b32 s54, s2, 7
    s_lshl_b32 s54, s54, 12
    s_add_u32 s53, s53, s54
    s_bfe_u32 s54, s2, 0x20003
    s_lshl_b32 s54, s54, 10
    s_add_u32 s53, s53, s54
    s_bfe_u32 s54, s2, 0x20005
    s_lshl_b32 s54, s54, 8
    s_add_u32 s53, s53, s54
    s_bfe_u32 s54, s2, 0x10002
    s_lshl_b32 s54, s54, 7
    s_add_u32 s53, s53, s54
    s_add_u32 s78, s53, {WT}
    s_add_u32 s79, s78, {8*WT_STRIDE}
    v_mul_u32_u24 v{vb+3}, {WT_STRIDE}, v{vb+1}
    v_lshl_add_u32 v{vb+3}, v{vb}, 4, v{vb+3}""")
def wt_finish(k, vb):
    for u in range(2):
        for r in range(4):
            k(f'v_lshl_or_b32 v{vb+4+8*u+r}, v{vb+8+8*u+r}, 16, v{vb+4+8*u+r}')
        k(f'buffer_store_dwordx4 {V(vb+4+8*u,4)}, v{vb+3}, {WSR}, s{78+u} offen{OPT["st"]}')

def p1_z(k):
    X, FA, GB, DA, TR, ST = 32, 48, 56, 88, 120, 136
    srd(k, 36, 4, S*D*2)
    k(f"""s_and_b32 s44, s2, 7
    s_lshl_b32 s44, s44, 1
    s_bfe_u32 s45, s2, 0x10003
    s_add_u32 s44, s44, s45
    s_and_b32 s45, s2, 16
    s_add_u32 s60, s44, s45            ; b
    s_lshr_b32 s61, s2, 5              ; t
    s_lshl_b32 s44, s61, 2
    s_add_u32 s44, s44, {WAVE}
    s_lshl_b32 s44, s44, 7             ; 32*(16t+4w)
    s_add_u32 s44, s44, s60
    s_lshl_b32 s56, s44, 10
    s_add_u32 s57, s56, 0x8000
    s_add_u32 s58, s56, 0x10000
    s_add_u32 s59, s56, 0x18000""")
    for i in range(4): k(f'buffer_load_dwordx4 {V(X+4*i,4)}, v4, {RC}, s{56+i} offen')
    tbl_addr(k, 6, TBL['FA'])
    for c in range(2): k(f'global_load_dwordx4 {V(FA+4*c,4)}, v[6:7], off offset:{1024*c}')
    k(f's_lshl_b32 s44, {WAVE}, 13\n s_add_u32 s44, s44, {TBL["GBZ"]+4096}')
    tbl_addr(k, 8, 's44')
    for q in range(8): k(f'global_load_dwordx4 {V(GB+4*q,4)}, v[8:9], off offset:{1024*q-4096}')
    wt_issue(k, 10)
    k(f"""s_lshl_b32 s44, {WAVE}, 12
    v_add_u32 v30, s44, v4
    v_lshrrev_b32 v31, 1, v4
    v_add_u32 v31, s44, v31
    v_mul_u32_u24 v6, {TPAD}, v3
    v_lshl_add_u32 v6, v2, 8, v6
    s_lshl_b32 s44, {WAVE}, 6
    s_add_u32 s44, s44, 16384
    v_add_u32 v6, s44, v6              ; T write
    s_mul_i32 s44, {WAVE}, {4*TPAD}
    s_add_u32 s44, s44, 16384
    v_add_u32 v7, s44, v4              ; T read
    v_cmp_eq_u32 vcc, 0, v3
    v_cndmask_b32 v8, 0, 1.0, vcc
    s_mov_b32 s62, 0x3f803f80
    v_mul_u32_u24 v9, {ZT_STRIDE}, v3
    v_lshl_add_u32 v9, v2, 4, v9       ; ZT store voffset
    s_mul_i32 s44, {WAVE}, {64*ZT_STRIDE}
    s_lshl_b32 s45, s61, 11
    s_add_u32 s44, s44, s45
    s_lshl_b32 s45, s60, 6
    s_add_u32 s44, s44, s45
    s_add_u32 s64, s44, {ZT}
    s_add_u32 s65, s64, {16*ZT_STRIDE}
    s_add_u32 s66, s64, {32*ZT_STRIDE}
    s_add_u32 s67, s64, {48*ZT_STRIDE}
    s_lshl_b32 s44, s61, 9
    s_and_b32 s45, s60, 15
    s_lshl_b32 s45, s45, 5
    s_add_u32 s44, s44, s45
    s_lshl_b32 s45, {WAVE}, 3
    s_add_u32 s44, s44, s45
    s_lshr_b32 s45, s60, 4
    s_lshl_b32 s45, s45, 2
    s_add_u32 s44, s44, s45
    s_lshl_b32 s44, s44, 2
    s_add_u32 s63, s44, {SIG}""")
    stamp(k, 1)
    for i in range(4):
        k(f'ds_write_b128 v30, {V(X+4*i,4)} offset:{1024*i}')
    stamp(k, 2)
    for i in range(4):
        k.wait(lg=3+i if not OPT['stamps'] else 0)
        for r in range(2): k(f'ds_read_b64_tr_b16 {V(TR+4*i+2*r,2)}, v31 offset:{1024*i+512*r}')
    for i in range(4):
        for j in range(4):
            k(f'v_dot2_f32_bf16 v{ST+i}, v{X+4*i+j}, s62, {"0" if j==0 else V(ST+i)}')
            k(f'v_dot2_f32_bf16 v{ST+4+i}, v{X+4*i+j}, v{X+4*i+j}, {"0" if j==0 else V(ST+4+i)}')
    for i in range(4):
        for c in range(2):
            k(f'v_mfma_f32_16x16x32_bf16 {V(DA+8*i+4*c,4)}, {V(TR+4*i,4)}, {V(FA+4*c,4)}, 0')
    for b in (ST, ST+4):
        k(f'v_permlane32_swap_b32 v{b}, v{b+2}\n v_permlane32_swap_b32 v{b+1}, v{b+3}')
    for b in (ST, ST+4):
        k(f'v_add_f32 v{b}, v{b}, v{b+2}\n v_add_f32 v{b+1}, v{b+1}, v{b+3}')
    for b in (ST, ST+4): k(f'v_permlane16_swap_b32 v{b}, v{b+1}')
    for b in (ST, ST+4): k(f'v_add_f32 v{b}, v{b}, v{b+1}')
    for sh in (8, 4, 2, 1):
        for b in (ST, ST+4): k(f'v_add_f32_dpp v{b}, v{b}, v{b} row_ror:{sh} row_mask:0xf bank_mask:0xf')
    k(f"""v_mul_f32 v{ST}, {fbits(1/512)}, v{ST}          ; mean
    v_mul_f32 v{ST+4}, {fbits(1/512)}, v{ST+4}
    v_fma_f32 v{ST+4}, -v{ST}, v{ST}, v{ST+4}
    v_max_f32 v{ST+4}, 0, v{ST+4}
    v_add_f32 v{ST+4}, {fbits(1e-5)}, v{ST+4}
    v_rsq_f32 v{ST+1}, v{ST+4}
    v_lshlrev_b32 v{ST+5}, 2, v2
    v_mul_f32 v{ST+4}, v{ST+4}, v{ST+1}                 ; sigma
    v_mul_f32 v{ST+1}, 0.25, v{ST+1}
    v_mul_f32 v{ST+2}, {fbits(-32.0)}, v{ST}
    v_mul_f32 v{ST+2}, v{ST+2}, v{ST+1}""".replace('0.25', fbits(0.25)))
    for i in range(4):
        k(f'v_readlane_b32 s{68+2*i}, v{ST+1}, {16*i}\n v_readlane_b32 s{69+2*i}, v{ST+2}, {16*i}')
    k(f"""s_mov_b32 exec_lo, 0x00010001
    s_mov_b32 exec_hi, 0x00010001
    buffer_store_dword v{ST+4}, v{ST+5}, {WSR}, s63 offen{OPT['st']}
    s_add_u32 s63, s63, {MU-SIG}
    buffer_store_dword v{ST}, v{ST+5}, {WSR}, s63 offen{OPT['st']}
    s_mov_b64 exec, -1""")
    for i in range(4):
        d = DA + 8*i
        k(f'v_mul_f32 v{TR}, s{69+2*i}, v8')
        for h in range(2):
            k(f'v_pk_fma_f32 {V(d+2*h,2)}, {V(d+2*h,2)}, {Sg(68+2*i,2)}, {V(TR,2)} op_sel_hi:[1,0,0]')
            k(f'v_pk_mul_f32 {V(d+4+2*h,2)}, {V(d+4+2*h,2)}, {Sg(68+2*i,2)} op_sel_hi:[1,0]')
        for h in range(4): k(f'v_cvt_pk_f16_f32 v{X+4*i+h}, v{d+2*h}, v{d+2*h+1}')
        k(f'ds_write_b128 v6, {V(X+4*i,4)} offset:{16*i}')
    k.wait(lg=0); k('s_barrier')
    stamp(k, 3)
    for q in range(4): k(f'ds_read_b128 {V(TR+4*q,4)}, v7 offset:{TPAD*q}')
    for q in range(4):
        for o in range(2): k(f'v_mfma_f32_16x16x32_f16 {V(DA+8*q+4*o,4)}, {V(TR+4*q,4)}, {V(GB+8*q+4*o,4)}, 0')
    for q in range(4):
        for h in range(4): k(f'v_cvt_pk_f16_f32 v{X+4*q+h}, v{DA+8*q+2*h}, v{DA+8*q+2*h+1}')
        k(f'buffer_store_dwordx4 {V(X+4*q,4)}, v9, {WSR}, s{64+q} offen{OPT["st"]}')
    wt_finish(k, 10)

def p1_w(k, first):
    X, OP, FA, GB, DA = 32, 64, 96, 104, 136
    k(f"""s_sub_u32 s60, s2, {first}
    s_and_b32 s61, s60, 1              ; mu
    s_lshr_b32 s60, s60, 1             ; phi
    s_cmp_eq_u32 s61, 0
    s_cselect_b32 s36, s12, s14
    s_cselect_b32 s37, s13, s15
    s_and_b32 s37, s37, 0xffff
    s_mov_b32 s38, {D*F*2}
    s_mov_b32 s39, 0x20000
    s_mul_i32 s44, {WAVE}, {4*2752}
    s_lshl_b32 s45, s60, 6
    s_add_u32 s44, s44, s45
    v_mul_u32_u24 v30, {64*2752}, v2
    v_lshl_add_u32 v30, v3, 2, v30
    v_add_u32 v31, {2*2752}, v30""")
    for e in range(8): k(f's_add_u32 s{62+e}, s44, {16*(16*(e>>2)+(e&3))*2752}')
    for dl in range(4):
        for e in range(8):
            k(f'buffer_load_dword v{X+8*dl+e}, v{30+(dl>>1)}, {RC}, s{62+e} offen offset:{2752*(dl&1)}')
    tbl_addr(k, 6, TBL['FA'])
    for c in range(2): k(f'global_load_dwordx4 {V(FA+4*c,4)}, v[6:7], off offset:{1024*c}')
    k(f's_lshl_b32 s44, {WAVE}, 13\n s_add_u32 s44, s44, {TBL["GBW"]+4096}')
    tbl_addr(k, 8, 's44')
    for q in range(8): k(f'global_load_dwordx4 {V(GB+4*q,4)}, v[8:9], off offset:{1024*q-4096}')
    wt_issue(k, 10)
    k(f"""v_mul_u32_u24 v6, {4*TPAD}, v2
    v_lshl_add_u32 v6, v3, 4, v6
    s_lshl_b32 s44, {WAVE}, 8
    v_add_u32 v6, s44, v6              ; T write
    s_mul_i32 s44, {WAVE}, {4*TPAD}
    v_add_u32 v7, s44, v4              ; T read
    v_lshrrev_b32 v8, 2, v3
    v_lshlrev_b32 v8, 14, v8
    v_lshl_add_u32 v8, v2, 7, v8
    v_and_b32 v9, 3, v3
    v_lshl_add_u32 v8, v9, 4, v8       ; WP store voffset
    s_lshl_b32 s44, s60, 16
    s_lshl_b32 s45, s61, 9
    s_add_u32 s44, s44, s45
    s_lshl_b32 s45, {WAVE}, 12
    s_add_u32 s44, s44, s45
    s_add_u32 s62, s44, {WP+16*16384}
    s_mov_b32 s63, 0x05040100
    s_mov_b32 s64, 0x07060302""")
    stamp(k, 1)
    for dl in range(4):
        for pi in range(2):
            for h in range(4):
                k(f'v_perm_b32 v{OP+8*dl+4*pi+h}, v{X+8*dl+2*h+1}, v{X+8*dl+2*h}, s{63+pi}')
        if dl == 0: stamp(k, 2)
        for pi in range(2):
            for c in range(2):
                k(f'v_mfma_f32_16x16x32_bf16 {V(DA+32*pi+16*c+4*dl,4)}, {V(FA+4*c,4)}, {V(OP+8*dl+4*pi,4)}, 0')
    for pi in range(2):
        for r in range(4):
            u = X + 16*pi + 4*r
            for c in range(2):
                for h in range(2):
                    d = DA + 32*pi + 16*c + 8*h + r
                    k(f'v_cvt_pk_bf16_f32 v{u+2*c+h}, v{d}, v{d+4}')
            k(f'ds_write_b128 v6, {V(u,4)} offset:{16*TPAD*pi+TPAD*r}')
    k.wait(lg=0); k('s_barrier')
    stamp(k, 3)
    for pi in range(2):
        for q in range(4): k(f'ds_read_b128 {V(OP+16*pi+4*q,4)}, v7 offset:{16*TPAD*pi+TPAD*q}')
    for pi in range(2):
        for q in range(4):
            for o in range(2):
                k(f'v_mfma_f32_16x16x32_bf16 {V(DA+32*pi+8*q+4*o,4)}, {V(GB+8*q+4*o,4)}, {V(OP+16*pi+4*q,4)}, 0')
    for pi in range(2):
        for p in range(2):
            for o in range(2):
                u = X + 16*pi + 8*p + 4*o
                for hq in range(2):
                    for h in range(2):
                        d = DA + 32*pi + 8*(2*p+hq) + 4*o + 2*h
                        k(f'v_cvt_pk_bf16_f32 v{u+2*hq+h}, v{d}, v{d+1}')
                k(f'buffer_store_dwordx4 {V(u,4)}, v8, {WSR}, s62 offen offset:{(2*p+o)*1024+64*pi}{OPT["st"]}')
    wt_finish(k, 10)

def p1_c(k, first):
    wt_issue(k, 10)
    k(f"""s_sub_u32 s60, s2, {first}
    s_cmp_ge_u32 s60, 32
    s_cbranch_scc1 L_c_skip
    s_lshl_b32 s60, s60, 2
    s_add_u32 s60, s60, {WAVE}
    s_lshr_b32 s61, s60, 3             ; t
    s_and_b32 s62, s60, 7              ; p
    v_and_b32 v30, 3, v1               ; gamma
    v_lshlrev_b32 v30, 2, v30
    v_lshrrev_b32 v31, 5, v1           ; mu
    v_lshl_add_u32 v30, v31, 1, v30
    v_bfe_u32 v31, v1, 2, 1            ; pi
    v_add_u32 v30, v30, v31
    s_lshl_b32 s44, s61, 5
    s_add_u32 s44, s44, 1
    v_lshl_add_u32 v30, v30, 1, s44    ; 2d+1
    v_bfe_u32 v31, v1, 3, 1            ; g&1
    v_lshlrev_b32 v31, 7, v31          ; 32*4*(g&1)
    v_bfe_u32 v32, v1, 4, 1            ; g>=2
    v_cmp_eq_u32 vcc, 1, v32
    s_lshl_b32 s44, s62, 1
    s_sub_u32 s45, 32, s44
    s_cmp_eq_u32 s44, 0
    s_cselect_b32 s45, 16, s45
    v_mov_b32 v33, s44
    v_mov_b32 v34, s45
    v_cndmask_b32 v33, v33, v34, vcc
    v_add_u32 v33, v33, v31
    s_add_u32 s44, s44, 1
    s_sub_u32 s45, 32, s44
    v_mov_b32 v34, s44
    v_mov_b32 v35, s45
    v_cndmask_b32 v34, v34, v35, vcc
    v_add_u32 v34, v34, v31
    v_cmp_eq_u32 vcc, 0, v33           ; c==0 for e==0
    v_mov_b32 v35, 0x100
    v_mov_b32 v36, {fbits(1/16)}
    v_mov_b32 v37, {fbits(1/math.sqrt(512))}
    v_cndmask_b32 v35, v33, v35, vcc
    v_cndmask_b32 v37, v36, v37, vcc
    s_lshl_b32 s44, s61, 14
    s_lshl_b32 s45, s62, 11
    s_add_u32 s44, s44, s45
    s_add_u32 s62, s44, {WP}""")
    for e in range(8):
        src = 'v35' if e == 0 else None
        if e: k(f'v_add_u32 v{40+e}, {32*(e&3)}, v{33+(e>>2)}')
        k(f'v_mul_u32_u24 v{40+e}, {src or V(40+e)}, v30')
        k(f'v_and_b32 v{40+e}, 0x3ff, v{40+e}')
        k(f'v_cvt_f32_u32 v{40+e}, v{40+e}')
        k(f'v_mul_f32 v{40+e}, {fbits(1/1024)}, v{40+e}')
    for e in range(8):
        k(f'v_cos_f32 v{48+e}, v{40+e}\n v_sin_f32 v{56+e}, v{40+e}')
    for e in range(8):
        sc = 'v37' if e == 0 else 'v36'
        k(f'v_mul_f32 v{48+e}, {sc}, v{48+e}\n v_mul_f32 v{56+e}, {sc}, -v{56+e}')
    for part in range(2):
        for h in range(4): k(f'v_cvt_pk_bf16_f32 v{64+4*part+h}, v{48+8*part+2*h}, v{48+8*part+2*h+1}')
        k(f'buffer_store_dwordx4 {V(64+4*part,4)}, v4, {WSR}, s62 offen offset:{1024*part}{OPT["st"]}')
    k.label('L_c_skip')
    k.wait(vm=0)
    wt_finish(k, 10)

def wd_issue(k, vb):
    srd(k, 36, 16, F*D*2)
    k(f"""s_lshl_b32 s44, s2, 13
    s_lshl_b32 s45, {WAVE}, 8
    s_add_u32 s76, s44, s45
    s_add_u32 s77, s76, 4096
    v_lshlrev_b32 v{vb}, 2, v1""")
    for e in range(8): k(f'buffer_load_dword v{vb+2+e}, v{vb}, {RC}, s{76+(e>>2)} offen offset:{1024*(e&3)}')
def wd_finish(k, vb):
    k(f"""s_mov_b32 s36, s24
    s_mov_b32 s37, s25
    s_mov_b32 s38, {WD+86*16384}
    s_mov_b32 s39, 0x20000
    s_lshr_b32 s44, s2, 1
    s_lshl_b32 s44, s44, 14
    s_and_b32 s45, s2, 1
    s_lshl_b32 s45, s45, 9
    s_add_u32 s44, s44, s45
    s_lshl_b32 s45, {WAVE}, 12
    s_add_u32 s44, s44, s45
    s_add_u32 s76, s44, {WD}
    s_mov_b32 s44, 0x05040100
    s_mov_b32 s45, 0x07060302
    v_lshlrev_b32 v{vb}, 10, v2
    v_lshl_add_u32 v{vb}, v3, 4, v{vb}""")
    for pi in range(2):
        for h in range(4): k(f'v_perm_b32 v{vb+10+4*pi+h}, v{vb+2+2*h+1}, v{vb+2+2*h}, s{44+pi}')
        k(f'buffer_store_dwordx4 {V(vb+10+4*pi,4)}, v{vb}, {RC}, s76 offen offset:{256*pi}{OPT["st"]}')

def cmul(k, dr, di, c, s, tr, ti, conj):
    for h in (0, 2):
        k(f'v_pk_mul_f32 {V(tr+h,2)}, {V(dr+h,2)}, {V(c+h,2)}')
        k(f'v_pk_mul_f32 {V(ti+h,2)}, {V(di+h,2)}, {V(c+h,2)}')
    ng = ' neg_lo:[1,0,0] neg_hi:[1,0,0]'
    for h in (0, 2):
        k(f'v_pk_fma_f32 {V(tr+h,2)}, {V(di+h,2)}, {V(s+h,2)}, {V(tr+h,2)}' + ('' if conj else ng))
        k(f'v_pk_fma_f32 {V(ti+h,2)}, {V(dr+h,2)}, {V(s+h,2)}, {V(ti+h,2)}' + (ng if conj else ''))

def p2_tables(k):
    B1, A4, A2, B3, TW1, TW2 = 64, 88, 112, 136, 160, 176
    k(f's_lshl_b32 s44, {WAVE}, 13\n s_add_u32 s44, s44, {TBL["P2W"]+4096}')
    tbl_addr(k, 6, 's44'); tbl_addr(k, 8, TBL['P2S']+4096)
    for u in range(4): k(f'global_load_dwordx4 {V(B1+6*u+2,4)}, v[6:7], off offset:{1024*u-4096}')
    for u in range(4): k(f'global_load_dwordx4 {V(A2+6*u+2,4)}, v[8:9], off offset:{1024*u-4096}')
    for u in range(4): k(f'global_load_dwordx4 {V(B3+6*u+2,4)}, v[8:9], off offset:{1024*u}')
    for u in range(4): k(f'global_load_dwordx4 {V(A4+6*u+2,4)}, v[6:7], off offset:{1024*u}')
def p2_twiddles(k):
    TW1, TW2 = 160, 176
    k(f"""s_lshl_b32 s44, {WAVE}, 4
    v_add_u32 v6, s44, v3
    v_cvt_f32_u32 v6, v6
    v_mul_f32 v6, {fbits(1/2048)}, v6       ; ka/2048
    v_lshlrev_b32 v7, 2, v2
    v_add_u32 v8, s44, v7
    v_cvt_f32_u32 v7, v7                    ; 4g
    v_cvt_f32_u32 v8, v8                    ; 16w+4g
    v_cvt_f32_u32 v9, v3
    v_mul_f32 v9, {fbits(1/2048)}, v9       ; x/2048""")
    for be in range(2):
        for r in range(4):
            t = TW1 + 8*be + r
            k(f'v_add_f32 v{t}, {fbits(16*be+r)}, v7\n v_mul_f32 v{t}, v{t}, v6')
            k(f'v_sin_f32 v{t+4}, v{t}\n v_cos_f32 v{t}, v{t}')
    for be in range(2):
        if be: k(f'v_add_f32 v9, {fbits(16/2048)}, v9')
        for r in range(4):
            t = TW2 + 8*be + r
            k(f'v_add_f32 v{t}, {fbits(r)}, v8\n v_mul_f32 v{t}, v{t}, v9')
            k(f'v_sin_f32 v{t+4}, v{t}\n v_cos_f32 v{t}, v{t}')
def p2_negs(k, base):
    for u in range(4):
        for h in range(2): k(f'v_xor_b32 v{base+6*u+h}, s60, v{base+6*u+4+h}')

def p2(k, addon=True):
    Z, B1, A4, A2, B3, TW1, TW2, WW, SG, DD, TT, PK = 32, 64, 88, 112, 136, 160, 176, 192, 208, 216, 232, 240
    ld = OPT['ld']
    k(f"""s_mul_i32 s44, s2, {ZT_STRIDE}
    s_add_u32 s44, s44, {ZT}
    v_lshlrev_b32 v30, 6, v3
    v_lshl_add_u32 v30, v2, 4, v30""")
    for u in range(4):
        k(f's_add_u32 s45, {WAVE}, {u}\n s_and_b32 s45, s45, 3\n s_lshl_b32 s45, s45, 11\n s_add_u32 s{56+u}, s44, s45')
    for u in range(4):
        for be in range(2): k(f'buffer_load_dwordx4 {V(Z+8*u+4*be,4)}, v30, {WSR}, s{56+u} offen offset:{1024*be}{ld}')
    p2_tables(k)
    k(f"""s_lshr_b32 s44, s2, 4              ; slot
    s_sub_u32 s45, 32, s44
    s_cmp_eq_u32 s44, 0
    s_cselect_b32 s45, 16, s45
    s_bitcmp1_b32 s2, 3
    s_cselect_b32 s44, s45, s44
    s_and_b32 s45, s2, 7
    s_lshl_b32 s45, s45, 5
    s_add_u32 s44, s44, s45
    s_sub_u32 s44, s44, 1
    s_and_b32 s44, s44, 255            ; kd-1 (c=0 -> 255)
    s_mul_i32 s44, s44, {WT_STRIDE}
    s_lshl_b32 s45, {WAVE}, 10
    s_add_u32 s44, s44, s45
    s_add_u32 s61, s44, {WT}
    s_add_u32 s62, s61, 4096
    s_lshl_b32 s45, {WAVE}, 11
    s_add_u32 s63, s45, {SIG}
    v_lshlrev_b32 v31, 1, v30          ; x*128+g*32
    buffer_load_dwordx4 {V(PK,4)}, v4, {WSR}, s61 offen{ld}
    buffer_load_dwordx4 {V(PK+4,4)}, v4, {WSR}, s62 offen{ld}
    buffer_load_dwordx4 {V(SG,4)}, v31, {WSR}, s63 offen{ld}
    buffer_load_dwordx4 {V(SG+4,4)}, v31, {WSR}, s63 offen offset:16{ld}""")
    if addon: wd_issue(k, 10)
    p2_twiddles(k)
    k(f"""v_lshrrev_b32 v6, 2, v3
    v_lshlrev_b32 v6, 17, v6
    v_and_b32 v7, 3, v3
    v_lshl_add_u32 v6, v7, 6, v6
    v_lshl_add_u32 v6, v2, 4, v6
    s_lshr_b32 s44, s2, 5
    s_lshl_b32 s44, s44, 6
    s_and_b32 s45, s2, 31
    s_add_u32 s44, s44, s45
    s_lshl_b32 s44, s44, 8
    s_lshl_b32 s45, {WAVE}, 19
    s_add_u32 s44, s44, s45
    s_add_u32 s64, s44, {HT}
    s_add_u32 s65, s64, 8192
    s_lshl_b32 s44, {WAVE}, 11
    v_add_u32 v7, s44, v4
    s_mov_b32 s60, 0x80008000""")
    for u in range(1, 4):
        k(f's_add_u32 s44, {WAVE}, {u}\n s_and_b32 s44, s44, 3\n s_lshl_b32 s44, s44, 11\n v_add_u32 v{27+u}, s44, v4')
    stamp(k, 1)
    p2_negs(k, B1)
    stamp(k, 2)
    for u in range(4):
        for be in range(2):
            for o in range(2):
                d = V(DD+8*be+4*o, 4)
                k(f'v_mfma_f32_16x16x32_f16 {d}, {V(Z+8*u+4*be,4)}, {V(B1+6*u+2-2*o,4)}, {"0" if u==0 else d}')
    p2_negs(k, A2); p2_negs(k, B3)
    for t in range(2):
        for r in range(4):
            k(f'v_lshlrev_b32 v{WW+8*t+r}, 16, v{PK+4*t+r}\n v_and_b32 v{WW+8*t+4+r}, 0xffff0000, v{PK+4*t+r}')
    for be in range(2):
        cmul(k, DD+8*be, DD+8*be+4, TW1+8*be, TW1+8*be+4, TT, TT+4, True)
        for h in range(4): k(f'v_cvt_pk_f16_f32 v{PK+4*be+h}, v{TT+2*h}, v{TT+2*h+1}')
    for be in range(2):
        for t in range(2):
            for o in range(2):
                d = V(DD+8*t+4*o, 4)
                k(f'v_mfma_f32_16x16x32_f16 {d}, {V(A2+6*(2*t+be)+2-2*o,4)}, {V(PK+4*be,4)}, {"0" if be==0 else d}')
    p2_negs(k, A4)
    for t in range(2):
        cmul(k, DD+8*t, DD+8*t+4, WW+8*t, WW+8*t+4, TT, TT+4, False)
        for h in range(4): k(f'v_cvt_pk_bf16_f32 v{PK+4*t+h}, v{TT+2*h}, v{TT+2*h+1}')
    for t in range(2):
        for be in range(2):
            for o in range(2):
                d = V(DD+8*be+4*o, 4)
                k(f'v_mfma_f32_16x16x32_bf16 {d}, {V(PK+4*t,4)}, {V(B3+6*(2*be+t)+2-2*o,4)}, {"0" if t==0 else d}')
    for be in range(2):
        cmul(k, DD+8*be, DD+8*be+4, TW2+8*be, TW2+8*be+4, TT, TT+4, False)
        for h in range(4): k(f'v_cvt_pk_bf16_f32 v{PK+4*be+h}, v{TT+2*h}, v{TT+2*h+1}')
        k(f'ds_write_b128 v7, {V(PK+4*be,4)} offset:{1024*be}')
    def step4(u, src):
        for be in range(2):
            for o in range(2):
                d = V(DD+8*be+4*o, 4)
                k(f'v_mfma_f32_16x16x32_bf16 {d}, {V(A4+6*u+2-2*o,4)}, {V(src+4*be,4)}, {"0" if u==0 else d}')
    step4(0, PK)
    k.wait(lg=0); k('s_barrier')
    stamp(k, 3)
    for u in range(1, 4):
        for be in range(2): k(f'ds_read_b128 {V(Z+8*u+4*be,4)}, v{27+u} offset:{1024*be}')
    for u in range(1, 4): step4(u, Z+8*u)
    if addon: wd_finish(k, 10)
    for o in range(2):
        for be in range(2):
            for r in range(4):
                d = DD+8*be+4*o+r; hi = r & 1
                k(f'v_fma_mix_f32 v{d}, v{SG+4*be+r}, v{Z+4*be+2*o+(r>>1)}, v{d} op_sel:[0,{hi},0] op_sel_hi:[0,1,0]')
            for h in range(2): k(f'v_cvt_pk_bf16_f32 v{PK+4*o+2*be+h}, v{DD+8*be+4*o+2*h}, v{DD+8*be+4*o+2*h+1}')
    k('s_cmp_lg_u32 s2, 0\n s_cbranch_scc1 L_p2_st')
    for h in range(4): k(f'v_mov_b32 v{PK+4+h}, v{PK+h}\n v_mov_b32 v{PK+h}, 0')
    k.label('L_p2_st')
    for o in range(2): k(f'buffer_store_dwordx4 {V(PK+4*o,4)}, v6, {WSR}, s{64+o} offen{OPT["st"]}')

STATL = 131072
def p3(k):
    ACC, ACT, AD, SQ, MUV, ST, TM = 128, 64, 16, 24, 8, 32, 48
    ld = OPT['ld']
    acc = lambda n, mu, par=0: ACC + 32*(n + (par if n == 2 else 0)) + 4*mu
    k(f"""s_mov_b32 s28, s24
    s_mov_b32 s29, s25
    s_mov_b32 s30, {WP+188*16384}
    s_mov_b32 s31, 0x20000
    s_mov_b32 s32, s24
    s_mov_b32 s33, s25
    s_mov_b32 s34, {HF+86*65536}
    s_mov_b32 s35, 0x20000
    s_and_b32 s44, s2, 1
    s_lshl_b32 s44, s44, 3
    s_bfe_u32 s45, s2, 0x30003
    s_add_u32 s60, s44, s45            ; rb
    s_bfe_u32 s44, s2, 0x20001
    s_lshl_b32 s44, s44, 2
    s_lshr_b32 s45, s2, 6
    s_add_u32 s61, s44, s45            ; cg
    s_mul_i32 s44, s61, 11
    s_mul_i32 s45, {WAVE}, 3
    s_add_u32 s62, s44, s45            ; tau0
    s_add_u32 s44, s62, 16
    s_lshl_b32 s44, s44, 14
    s_add_u32 s64, s44, {WP}
    s_add_u32 s65, s64, 16384
    s_add_u32 s66, s64, 32768
    s_lshl_b32 s44, s61, 14
    s_add_u32 s44, s44, {WP}
    s_cmp_eq_u32 {WAVE}, 3
    s_cselect_b32 s66, s44, s66
    s_lshl_b32 s44, s60, 17
    s_lshl_b32 s68, {WAVE}, 11         ; m0
    s_add_u32 s44, s44, s68
    s_add_u32 s67, s44, {HT}
    v_lshlrev_b32 v5, 1, v2
    v_xor_b32 v5, v5, v3
    v_lshlrev_b32 v5, 4, v5
    v_lshl_add_u32 v5, v2, 8, v5
    v_xor_b32 v6, 128, v5              ; odd
    v_bfe_u32 v7, v1, 1, 1             ; mu
    v_lshlrev_b32 v7, 9, v7
    v_lshl_add_u32 v7, v2, 7, v7
    v_and_b32 v26, 1, v1
    v_lshl_add_u32 v7, v26, 6, v7
    v_bfe_u32 v26, v1, 2, 2
    v_lshl_add_u32 v7, v26, 4, v7""")
    def issue(ka):
        k(f's_mov_b32 m0, s68')
        k(f'buffer_load_dwordx4 v5, {WSR}, s67 offen lds{ld}')
        k(f'buffer_load_dwordx4 v6, {WSR}, s67 offen offset:1024 lds{ld}')
        for n in range(3):
            k(f'buffer_load_dwordx4 {A(12*ka+4*n,4)}, v7, {RA}, s{64+n} offen offset:{1024*(ka&3)}{ld}')
        k('s_add_u32 s67, s67, 8192\n s_add_u32 s68, s68, 8192')
        if ka & 3 == 3:
            for n in range(3): k(f's_add_u32 s{64+n}, s{64+n}, 4096')
    k(f's_lshl_b32 s44, s60, 9\n s_add_u32 s69, s44, {MU}\n v_lshlrev_b32 v27, 2, v3')
    PRE = 16 if OPT.get('iso') else 11
    for ka in range(PRE):
        issue(ka)
        if ka == 0:
            for mu in range(8): k(f'buffer_load_dword v{MUV+mu}, v27, {WSR}, s69 offen offset:{64*(mu^6)}{ld}')
    k(f"""v_lshrrev_b32 v26, 2, v1
    v_and_b32 v27, 7, v26
    s_lshl_b32 s44, {WAVE}, 1
    v_xor_b32 v27, s44, v27
    v_lshlrev_b32 v27, 5, v27
    v_lshl_add_u32 v27, v26, 8, v27
    v_and_b32 v26, 3, v1
    v_lshl_add_u32 v{AD}, v26, 3, v27""")
    for mu in range(1, 8): k(f'v_xor_b32 v{AD+mu}, {32*mu}, v{AD}')
    stamp(k, 1)
    issued = PRE
    def ready(ka):
        if OPT.get('iso'):
            if ka == 0: k('s_waitcnt vmcnt(0)')
            if ka == 0 or not OPT.get('nobar'): k('s_barrier')
            return
        k(f's_waitcnt vmcnt({5*(issued-ka)-2+(8 if ka==0 else 0)})'); k('s_barrier')
    def reads(ka, mu):
        if ka == 8: k(f'v_add_u32 v{AD+mu}, 0x10000, v{AD+mu}')
        if OPT.get('nord'): return
        if OPT.get('b128'):
            k(f'ds_read_b128 {V(ACT+32*(ka&1)+4*mu,4)}, v4 offset:{8192*(ka&7)+1024*mu}'); return
        for h in range(2):
            k(f'ds_read_b64_tr_b16 {V(ACT+32*(ka&1)+4*mu+2*h,2)}, v{AD+mu} offset:{8192*(ka&7)+4096*h}')
    ready(0)
    stamp(k, 2)
    for mu in range(8): reads(0, mu)
    for ka in range(16):
        if ka + 1 < 16: ready(ka + 1)
        for mu in range(8):
            if ka + 1 < 16: reads(ka + 1, mu)
            b = V(ACT+32*(ka&1)+4*mu, 4)
            for n in range(3):
                d = V(acc(n, mu, ka & 1), 4)
                first = ka == 0 or (n == 2 and ka == 1)
                k(f'v_mfma_f32_16x16x32_bf16 {d}, {A(12*ka+4*n,4)}, {b}, {"0" if first else d}')
            if mu < 2 and not OPT.get('nodot'):
                for j in range(4):
                    r = ACT+32*(ka&1)+4*mu+j
                    k(f'v_dot2_f32_bf16 v{SQ+mu}, v{r}, v{r}, {"0" if ka==0 and j==0 else V(SQ+mu)}')
            if ka == 15 and mu == 2:
                k(f"""v_permlane32_swap_b32 v{SQ}, v{SQ+1}
                v_add_f32 v{SQ}, v{SQ}, v{SQ+1}
                v_mov_b32 v{SQ+1}, v{SQ}
                v_permlane16_swap_b32 v{SQ}, v{SQ+1}
                v_add_f32 v{SQ}, v{SQ}, v{SQ+1}
                v_mov_b32 v{SQ+1}, {fbits(1e-5)}
                v_fmac_f32 v{SQ+1}, {fbits(1/512)}, v{SQ}
                v_rsq_f32 v{SQ}, v{SQ+1}
                v_lshrrev_b32 v26, 1, v2
                v_lshl_add_u32 v26, v26, 4, v3
                v_mul_f32 v{SQ+1}, v{SQ+1}, v{SQ}
                s_lshl_b32 s44, {WAVE}, 8
                s_add_u32 s44, s44, {STATL}
                v_lshl_add_u32 v26, v26, 3, s44
                ds_write_b64 v26, {V(SQ,2)}""")
        if issued < 16: issue(issued); issued += 1
    stamp(k, 3)
    k.wait(lg=0); k('s_barrier')
    k(f's_lshl_b32 s44, {WAVE}, 8\n v_lshlrev_b32 v26, 3, v3\n v_add_u32 v26, {STATL}, v26\n v_add_u32 v26, s44, v26')
    for mu in range(8):
        k(f'v_xor_b32 v27, {128*mu}, v26\n ds_read_b64 {V(ST+2*mu,2)}, v27')
    k(f"""s_lshl_b32 s44, {WAVE}, 1
    v_xor_b32 v26, s44, v2
    v_lshrrev_b32 v27, 1, v26
    v_lshlrev_b32 v27, 10, v27
    v_and_b32 v26, 1, v26
    v_lshl_add_u32 v27, v26, 8, v27
    v_lshl_add_u32 v28, v3, 4, v27
    v_xor_b32 v29, 0x800, v28
    s_mov_b32 s70, {fbits(-2*math.sqrt(2/math.pi)*math.log2(math.e)*0.044715)}
    v_mov_b32 v30, {fbits(-2*math.sqrt(2/math.pi)*math.log2(math.e))}
    s_lshl_b32 s63, s60, 12
    s_add_u32 s63, s63, {HF}""")
    def geglu(n):
        k(f's_add_u32 s44, s62, {n}\n s_lshr_b32 s45, s44, 1\n s_lshl_b32 s45, s45, 16\n s_and_b32 s44, s44, 1\n s_lshl_b32 s44, s44, 9\n s_add_u32 s44, s44, s45\n s_add_u32 s64, s44, s63')
        for m0 in (0, 4):
            HD = ACT + 8*n + m0
            ms = range(m0, m0+4)
            g = lambda mu: V(acc(n, mu), 2)
            u = lambda mu: V(acc(n, mu)+2, 2)
            t = lambda mu: V(TM+2*(mu-m0), 2)
            if n == 2:
                for mu in ms:
                    k(f'v_pk_add_f32 {g(mu)}, {g(mu)}, {V(acc(n,mu,1),2)}\n v_pk_add_f32 {u(mu)}, {u(mu)}, {V(acc(n,mu,1)+2,2)}')
            for mu in ms: k(f'v_pk_mul_f32 {g(mu)}, {g(mu)}, {V(ST+2*mu,2)} op_sel_hi:[1,0]')
            for mu in ms: k(f'v_pk_mul_f32 {t(mu)}, {g(mu)}, {g(mu)}')
            for mu in ms: k(f'v_pk_fma_f32 {t(mu)}, {t(mu)}, s[70:71], v[30:31] op_sel_hi:[1,0,0]')
            for mu in ms: k(f'v_pk_mul_f32 {t(mu)}, {t(mu)}, {g(mu)}')
            for mu in ms:
                for h in range(2): k(f'v_exp_f32 v{TM+2*(mu-m0)+h}, v{TM+2*(mu-m0)+h}')
            for mu in ms: k(f'v_pk_mul_f32 {g(mu)}, {g(mu)}, {u(mu)}')
            for mu in ms: k(f'v_pk_fma_f32 {t(mu)}, {t(mu)}, {V(ST+2*mu,2)}, {V(ST+2*mu,2)} op_sel:[0,1,1] op_sel_hi:[1,1,1]')
            for mu in ms:
                for h in range(2): k(f'v_rcp_f32 v{TM+2*(mu-m0)+h}, v{TM+2*(mu-m0)+h}')
            for mu in ms: k(f'v_pk_mul_f32 {g(mu)}, {g(mu)}, {t(mu)}')
            for mu in ms: k(f'v_cvt_pk_bf16_f32 v{HD+mu-m0}, v{acc(n,mu)}, v{acc(n,mu)+1}')
            k(f"""v_permlane32_swap_b32 v{HD}, v{HD+2}
            v_permlane32_swap_b32 v{HD+1}, v{HD+3}
            v_permlane16_swap_b32 v{HD}, v{HD+1}
            v_permlane16_swap_b32 v{HD+2}, v{HD+3}
            buffer_store_dwordx4 {V(HD,4)}, v{28+(m0>>2)}, {RB}, s64 offen{OPT['st']}""")
    geglu(0); geglu(1)
    k(f's_cmp_eq_u32 {WAVE}, 3\n s_cbranch_scc1 L_p3_h')
    st = k.state()
    geglu(2)
    k('s_branch L_p3_done')
    k.restore(st)
    k.label('L_p3_h')
    k(f"""s_lshl_b32 s44, s60, 17
    s_lshl_b32 s45, s61, 5
    s_add_u32 s64, s44, {HRES}
    s_sub_u32 s65, s64, s45
    s_add_u32 s65, s65, {1016}
    s_add_u32 s64, s64, s45
    v_lshlrev_b32 v26, 10, v3
    v_lshl_add_u32 v27, v2, 3, v26
    v_lshlrev_b32 v28, 3, v2
    v_sub_u32 v28, v26, v28
    v_add_u32 v28, 24, v28
    s_sub_u32 s65, s65, 24""")
    for mu in range(8):
        e, o = acc(2, mu), acc(2, mu, 1); t = TM + 8*(mu & 1); p = ACT + 4*mu
        for r in range(4): k(f'v_add_f32 v{e+r}, v{e+r}, v{MUV+mu}')
        for h in (0, 2):
            k(f'v_pk_add_f32 {V(t+h,2)}, {V(e+h,2)}, {V(o+h,2)}')
            k(f'v_pk_add_f32 {V(t+4+h,2)}, {V(e+h,2)}, {V(o+h,2)} neg_lo:[0,1] neg_hi:[0,1]')
        k(f"""v_cvt_pk_bf16_f32 v{p}, v{t}, v{t+1}
        v_cvt_pk_bf16_f32 v{p+1}, v{t+2}, v{t+3}
        v_cvt_pk_bf16_f32 v{p+2}, v{t+7}, v{t+6}
        v_cvt_pk_bf16_f32 v{p+3}, v{t+5}, v{t+4}
        s_add_u32 s44, s64, {16384*(mu^6)}
        s_add_u32 s45, s65, {16384*(mu^6)}
        buffer_store_dwordx2 {V(p,2)}, v27, {WSR}, s44 offen{OPT['st']}
        buffer_store_dwordx2 {V(p+2,2)}, v28, {WSR}, s45 offen{OPT['st']}""")
    k.label('L_p3_done')

def p4(k):
    HB, ACC, HR, RD = 32, 192, 208, 32
    ld = OPT['ld']
    srd(k, 36, 18, S*D*2)
    k(f"""s_mov_b32 s28, s24
    s_mov_b32 s29, s25
    s_mov_b32 s30, {WD+86*16384}
    s_mov_b32 s31, 0x20000
    s_mov_b32 s32, s24
    s_mov_b32 s33, s25
    s_mov_b32 s34, {HF+86*65536}
    s_mov_b32 s35, 0x20000
    s_and_b32 s44, s2, 3
    s_lshl_b32 s44, s44, 3
    s_bfe_u32 s45, s2, 0x30003
    s_add_u32 s60, s44, s45            ; mb
    s_and_b32 s44, s2, 4
    s_lshr_b32 s45, s2, 6
    s_add_u32 s61, s44, s45            ; nb
    s_lshl_b32 s44, {WAVE}, 16
    s_lshl_b32 s45, s60, 11
    s_add_u32 s44, s44, s45
    s_add_u32 s64, s44, {HF}
    s_lshl_b32 s44, {WAVE}, 14
    s_lshl_b32 s45, s61, 11
    s_add_u32 s44, s44, s45
    s_add_u32 s65, s44, {WD}
    s_and_b32 s62, {WAVE}, 1
    s_lshr_b32 s63, {WAVE}, 1
    s_lshl_b32 s44, s62, 10
    v_add_u32 v5, s44, v4
    v_xor_b32 v6, 0x400, v5
    v_lshrrev_b32 v7, 5, v1
    v_lshlrev_b32 v7, 9, v7
    v_and_b32 v8, 1, v1
    v_lshl_add_u32 v7, v8, 8, v7
    v_bfe_u32 v8, v1, 2, 1
    v_lshl_add_u32 v7, v8, 7, v7
    v_bfe_u32 v8, v1, 3, 2
    v_lshl_add_u32 v7, v8, 5, v7
    v_bfe_u32 v8, v1, 1, 1
    v_lshl_add_u32 v7, v8, 4, v7
    s_lshl_b32 s44, s63, 10
    v_add_u32 v7, s44, v7
    v_xor_b32 v8, 0x400, v7""")
    def issue(u):
        for i in range(2): k(f'buffer_load_dwordx4 {A(8*u+4*i,4)}, v{7+i}, {RA}, s65 offen{ld}')
        for i in range(2): k(f'buffer_load_dwordx4 {V(HB+8*u+4*i,4)}, v{5+i}, {RB}, s64 offen{ld}')
        k('s_add_u32 s64, s64, 0x40000\n s_add_u32 s65, s65, 0x10000')
    PRE = 15
    for u in range(PRE): issue(u)
    k(f"""s_lshl_b32 s44, s60, 1
    s_add_u32 s44, s44, s62            ; m'>>5
    s_lshl_b32 s45, s61, 1
    s_add_u32 s45, s45, s63
    s_lshl_b32 s45, s45, 6
    s_lshl_b32 s66, s44, 15
    s_add_u32 s66, s66, s45
    s_add_u32 s66, s66, {HRES}
    v_and_b32 v9, 31, v1
    v_lshlrev_b32 v9, 10, v9
    v_lshrrev_b32 v10, 5, v1
    v_lshl_add_u32 v9, v10, 5, v9
    s_lshr_b32 s46, s44, 4
    s_lshl_b32 s46, s46, 19
    s_and_b32 s44, s44, 15
    s_lshl_b32 s44, s44, 10
    s_add_u32 s67, s46, s44
    s_add_u32 s67, s67, s45
    v_bfe_u32 v11, v1, 3, 2
    v_lshlrev_b32 v11, 17, v11
    v_lshl_add_u32 v10, v10, 5, v11
    v_and_b32 v11, 3, v1
    v_lshl_add_u32 v10, v11, 15, v10
    v_bfe_u32 v11, v1, 2, 1
    v_lshl_add_u32 v10, v11, 14, v10
    s_mul_i32 s44, {WAVE}, 12288
    v_add_u32 v12, s44, v4""")
    for sl in range(1, 4):
        k(f's_xor_b32 s44, {WAVE}, {sl}\n s_mul_i32 s44, s44, 12288\n s_add_u32 s44, s44, {4096*(sl-1)}\n v_add_u32 v{12+sl}, s44, v4')
    stamp(k, 1)
    issued = PRE
    for u in range(22):
        for i_n in range(2):
            for i_m in range(2):
                d = A(ACC+16*(2*i_n+i_m), 16)
                k(f'v_mfma_f32_32x32x16_bf16 {d}, {A(8*u+4*i_n,4)}, {V(HB+8*u+4*i_m,4)}, {"0" if u==0 else d}')
        if u == 0: stamp(k, 2)
        if issued < 22: issue(issued); issued += 1
        if issued == 22 and u == 22 - PRE:
            for h in range(2): k(f'buffer_load_dwordx4 {V(HR+4*h,4)}, v9, {WSR}, s66 offen offset:{16*h}{ld}')
    stamp(k, 3)
    for sl in range(1, 4):
        for q in range(4): k(f'ds_write_b128 v{12+sl}, {A(ACC+16*sl+4*q,4)} offset:{1024*q}')
    for r in range(16): k(f'v_accvgpr_read_b32 v{16+r}, a{ACC+r}')
    for r in range(8):
        k(f'v_lshlrev_b32 v{216+2*r}, 16, v{HR+r}\n v_and_b32 v{217+2*r}, 0xffff0000, v{HR+r}')
    k.wait(lg=0); k('s_barrier')
    for j in range(12): k(f'ds_read_b128 {V(RD+4*j,4)}, v12 offset:{1024*j}')
    for r in range(8): k(f'v_pk_add_f32 {V(16+2*r,2)}, {V(16+2*r,2)}, {V(216+2*r,2)}')
    for sl in range(3):
        for r in range(8): k(f'v_pk_add_f32 {V(16+2*r,2)}, {V(16+2*r,2)}, {V(RD+16*sl+2*r,2)}')
    for r in range(8): k(f'v_cvt_pk_bf16_f32 v{HR+r}, v{16+2*r}, v{17+2*r}')
    for h in range(2): k(f'buffer_store_dwordx4 {V(HR+4*h,4)}, v10, {RC}, s67 offen offset:{16*h}')

def kd(name, k):
    nv = k.maxv + 1; acc = (nv + 3) // 4 * 4
    tot = acc + k.maxa + 1 if k.maxa >= 0 else nv
    return f""".amdhsa_kernel {name}
  .amdhsa_next_free_vgpr {tot}
  .amdhsa_next_free_sgpr {max(k.maxs+1, 48)}
  .amdhsa_accum_offset {acc}
  .amdhsa_group_segment_fixed_size 0
  .amdhsa_kernarg_size 80
  .amdhsa_user_sgpr_count 2
  .amdhsa_user_sgpr_kernarg_segment_ptr 1
  .amdhsa_system_sgpr_workgroup_id_x 1
.end_amdhsa_kernel
"""
def tables_text():
    a = np.concatenate(tbl_data).astype(np.uint16).view(np.uint64)
    o = ['.p2align 8', '.type tables,@object', 'tables:']
    for i in range(0, len(a), 8): o.append('.quad ' + ','.join(hex(int(x)) for x in a[i:i+8]))
    return '\n'.join(o) + '\n'

def header():
    ref = open('cdna_kernels/%s.s.ref' % NAME).read().split('\n')
    return '\n'.join(l for l in ref[:11]) + '\n'

def multi():
    ks = []
    k = K(); prologue(k, 'p1_kernel', 256)
    k('s_cmp_ge_u32 s2, 214\n s_cbranch_scc1 L_p1_c\n s_cmp_ge_u32 s2, 128\n s_cbranch_scc1 L_p1_w')
    st = k.state()
    p1_z(k); stamp_out(k, 0, 4); k('s_endpgm')
    k.restore(st); k.label('L_p1_w'); p1_w(k, 128); stamp_out(k, 0, 4); k('s_endpgm')
    k.restore(st); k.label('L_p1_c'); p1_c(k, 214); stamp_out(k, 0, 1)
    k.label('L_end_p1_kernel'); k('s_endpgm'); ks.append(('p1_kernel', k, 34816))
    k = K(); prologue(k, 'p2_kernel', 256); p2(k); stamp_out(k, 1, 4); k.label('L_end_p2_kernel'); k('s_endpgm'); ks.append(('p2_kernel', k, 8192))
    k = K(); prologue(k, 'p3_kernel', 256); p3(k); stamp_out(k, 2, 4); k.label('L_end_p3_kernel'); k('s_endpgm'); ks.append(('p3_kernel', k, 131072+1024))
    k = K(); prologue(k, 'p4_kernel', 256); p4(k); stamp_out(k, 3, 4); k.label('L_end_p4_kernel'); k('s_endpgm'); ks.append(('p4_kernel', k, 49152))
    o = header()
    for n, k, lds in ks: o += f'; @launch kernel={n} grid=(256,1,1) block=(256,1,1) lds={lds}\n'
    o += '.amdgcn_target "amdgcn-amd-amdhsa--gfx950"\n.text\n'
    for n, k, lds in ks: o += k.text()
    o += '.section .rodata,"a"\n'
    for n, k, lds in ks: o += '.p2align 6\n' + kd(n, k)
    o += tables_text()
    return o

if __name__ == '__main__':
    out = sys.argv[1]
    for a in sys.argv[2:]:
        key, _, val = a.partition('=')
        OPT[key] = (' ' + val.replace('+', ' ')) if key in ('st', 'ld') else True
    txt = multi()
    if OPT.get('dup'): txt = ''.join(l + l if l.startswith('; @launch') else l for l in txt.splitlines(True))
    open(out, 'w').write(txt)
```

```python
import sys, math, struct
import numpy as np
from dsl import K
from design import *
from gen import V, A, Sg, fbits, TBL, tables_text, header, kd, NAME, srd, cmul, TPAD

OPT = dict(stamps=False)
ST, LD = ' sc1', ' sc1'
WSR, RA, RB, RC = 's[24:27]', 's[28:31]', 's[32:35]', 's[36:39]'
WAVE = 's40'
KN = NAME + '_kernel'
SPIN = 400000
TW1, TW2 = 200, 216
NZ, NW0, NC0 = 128, 128, 214

def stamp(k, i):
    if OPT['stamps']: k(f's_memrealtime s[{76+2*i}:{77+2*i}]')
def stamp_out(k, n):
    if not OPT['stamps']: return
    k.wait(vm=0, lg=0); stamp(k, n); n += 1; k.wait(lg=0)
    k(f's_lshl_b32 s44, s2, 8\n s_lshl_b32 s45, {WAVE}, 6\n s_add_u32 s44, s44, s45\n s_add_u32 s44, s44, {STAMP}')
    for i in range(16): k(f'v_mov_b32 v{8+i}, s{76+2*i}' if i < n else f'v_mov_b32 v{8+i}, 0')
    k('v_mov_b32 v24, 0\n s_mov_b64 exec, 1')
    for q in range(4): k(f'buffer_store_dwordx4 {V(8+4*q,4)}, v24, {WSR}, s44 offen offset:{16*q}')

def wsrd(k, base, end):
    k(f's_mov_b32 s{base}, s24\n s_mov_b32 s{base+1}, s25\n s_mov_b32 s{base+2}, {end}\n s_mov_b32 s{base+3}, 0x20000')

def tbl_addr(k, vp, soff):
    k(f"""s_add_u32 s46, s42, {soff}
    s_addc_u32 s47, s43, 0
    v_mov_b32 v{vp+1}, s47
    v_add_co_u32 v{vp}, vcc, s46, v4
    v_addc_co_u32 v{vp+1}, vcc, 0, v{vp+1}, vcc""")

def prologue(k):
    k.raw(f'.globl {KN}\n.p2align 8\n.type {KN},@function\n{KN}:')
    stamp(k, 0)
    k(f"""s_load_dwordx16 s[4:19], s[0:1], 0
    s_load_dwordx4 s[20:23], s[0:1], 64
    s_getpc_b64 s[42:43]""")
    k.raw('L_pc:')
    k(f"""s_cmp_ge_u32 s2, 256
    s_cbranch_scc1 L_end
    v_lshrrev_b32 v5, 6, v0
    v_and_b32 v1, 63, v0
    v_readfirstlane_b32 {WAVE}, v5
    s_lshr_b32 s44, s2, 3
    v_lshl_add_u32 v5, v5, 5, s44
    v_lshlrev_b32 v6, 6, v1
    v_lshl_add_u32 v5, v5, 12, v6""")
    k.raw('    v_min_u32 v5, L_image_end-L_pc-4, v5'); k.pos += 1
    k(f"""v_mov_b32 v7, s43
    v_add_co_u32 v6, vcc, s42, v5
    v_addc_co_u32 v7, vcc, 0, v7, vcc
    global_load_dword v255, v[6:7], off
    v_bfe_u32 v2, v0, 4, 2
    v_and_b32 v3, 15, v0
    v_lshlrev_b32 v4, 4, v1""")
    k.raw('    s_add_u32 s42, s42, tables-L_pc\n    s_addc_u32 s43, s43, 0'); k.pos += 2

def after_kernarg(k):
    k.wait(lg=0)
    srd(k, 24, 22, WS_USED)

def p3_ids(k, rb, cg):
    k(f"""s_and_b32 s44, s2, 1
    s_lshl_b32 s44, s44, 3
    s_bfe_u32 s45, s2, 0x30003
    s_add_u32 s{rb}, s44, s45
    s_bfe_u32 s44, s2, 0x20001
    s_lshl_b32 s44, s44, 2
    s_lshr_b32 s45, s2, 6
    s_add_u32 s{cg}, s44, s45""")

def twiddles(k):
    p3_ids(k, 46, 47)
    k(f"""s_lshl_b32 s46, s46, 11
    s_lshl_b32 s47, s47, 7
    s_add_u32 s41, s46, s47
    s_add_u32 s41, s41, {RBF}
    v_mov_b32 v232, 0
    s_mov_b64 exec, 1
    buffer_store_dword v232, v232, {WSR}, s41 offen{ST}
    s_mov_b64 exec, -1
    s_lshl_b32 s44, {WAVE}, 4
    v_add_u32 v232, s44, v3
    v_cvt_f32_u32 v232, v232
    v_mul_f32 v232, {fbits(1/2048)}, v232
    v_lshlrev_b32 v233, 2, v2
    v_add_u32 v234, s44, v233
    v_cvt_f32_u32 v233, v233
    v_cvt_f32_u32 v234, v234
    v_cvt_f32_u32 v235, v3
    v_mul_f32 v235, {fbits(1/2048)}, v235""")
    for be in range(2):
        for r in range(4):
            t = TW1 + 8*be + r
            k(f'v_add_f32 v{t}, {fbits(16*be+r)}, v233\n v_mul_f32 v{t}, v{t}, v232')
            k(f'v_sin_f32 v{t+4}, v{t}\n v_cos_f32 v{t}, v{t}')
    for be in range(2):
        if be: k(f'v_add_f32 v235, {fbits(16/2048)}, v235')
        for r in range(4):
            t = TW2 + 8*be + r
            k(f'v_add_f32 v{t}, {fbits(r)}, v234\n v_mul_f32 v{t}, v{t}, v235')
            k(f'v_sin_f32 v{t+4}, v{t}\n v_cos_f32 v{t}, v{t}')

def wt_pre(k, vb):
    k(f"""s_and_b32 s44, s2, 3
    s_lshl_b32 s44, s44, 6
    s_lshl_b32 s45, {WAVE}, 4
    s_add_u32 s44, s44, s45
    s_bfe_u32 s45, s2, 0x30002
    s_lshl_b32 s45, s45, 3
    s_lshr_b32 s48, s2, 5
    s_lshl_b32 s49, s48, 8
    s_add_u32 s49, s49, s45
    s_mul_i32 s49, s49, 514
    s_lshl_b32 s50, s44, 1
    s_add_u32 s49, s49, s50
    s_add_u32 s49, s49, 2
    s_add_u32 s50, s49, {64*514}
    s_add_u32 s51, s49, {128*514}
    s_add_u32 s52, s49, {192*514}
    s_mul_i32 s53, s44, {WT_STRIDE}
    v_and_b32 v{vb}, 7, v1
    v_lshrrev_b32 v{vb+1}, 3, v1
    v_mul_u32_u24 v{vb+2}, 514, v{vb}
    v_lshl_add_u32 v{vb+2}, v{vb+1}, 1, v{vb+2}""")
def wt_issue(k, vb):
    srd(k, 28, 6, 2048*257*2); srd(k, 32, 8, 2048*257*2)
    for u in range(2):
        for r in range(4):
            k(f'buffer_load_ushort v{vb+4+8*u+r}, v{vb+2}, {RA}, s{49+r} offen offset:{16*u}')
            k(f'buffer_load_ushort v{vb+8+8*u+r}, v{vb+2}, {RB}, s{49+r} offen offset:{16*u}')
    k(f"""s_lshr_b32 s54, s2, 7
    s_lshl_b32 s54, s54, 12
    s_add_u32 s53, s53, s54
    s_bfe_u32 s54, s2, 0x20003
    s_lshl_b32 s54, s54, 10
    s_add_u32 s53, s53, s54
    s_bfe_u32 s54, s2, 0x20005
    s_lshl_b32 s54, s54, 8
    s_add_u32 s53, s53, s54
    s_bfe_u32 s54, s2, 0x10002
    s_lshl_b32 s54, s54, 7
    s_add_u32 s53, s53, s54
    s_add_u32 s53, s53, {WT}
    s_add_u32 s54, s53, {8*WT_STRIDE}
    v_mul_u32_u24 v{vb+3}, {WT_STRIDE}, v{vb+1}
    v_lshl_add_u32 v{vb+3}, v{vb}, 4, v{vb+3}""")
def wt_finish(k, vb):
    for u in range(2):
        for r in range(4):
            k(f'v_lshl_or_b32 v{vb+4+8*u+r}, v{vb+8+8*u+r}, 16, v{vb+4+8*u+r}')
        k(f'buffer_store_dwordx4 {V(vb+4+8*u,4)}, v{vb+3}, {WSR}, s{53+u} offen{ST}')

def p1_z(k):
    X, FA, GB, DA, TR, SS = 32, 48, 56, 88, 120, 136
    tbl_addr(k, 6, TBL['FA'])
    for c in range(2): k(f'global_load_dwordx4 {V(FA+4*c,4)}, v[6:7], off offset:{1024*c}')
    k(f's_lshl_b32 s44, {WAVE}, 13\n s_add_u32 s44, s44, {TBL["GBZ"]+4096}')
    tbl_addr(k, 8, 's44')
    k(f"""s_and_b32 s44, s2, 7
    s_lshl_b32 s44, s44, 1
    s_bfe_u32 s45, s2, 0x10003
    s_add_u32 s44, s44, s45
    s_and_b32 s45, s2, 16
    s_add_u32 s60, s44, s45            ; b
    s_lshr_b32 s61, s2, 5              ; t
    s_lshl_b32 s44, s61, 2
    s_add_u32 s44, s44, {WAVE}
    s_lshl_b32 s55, s44, 7
    s_add_u32 s44, s55, s60
    s_lshl_b32 s56, s44, 10
    s_add_u32 s57, s56, 0x8000
    s_add_u32 s58, s56, 0x10000
    s_add_u32 s59, s56, 0x18000""")
    wt_pre(k, 10)
    k.wait(lg=0)
    srd(k, 36, 4, S*D*2)
    for i in range(4): k(f'buffer_load_dwordx4 {V(X+4*i,4)}, v4, {RC}, s{56+i} offen')
    for q in range(8): k(f'global_load_dwordx4 {V(GB+4*q,4)}, v[8:9], off offset:{1024*q-4096}')
    srd(k, 24, 22, WS_USED)
    wt_issue(k, 10)
    k(f"""s_lshl_b32 s44, {WAVE}, 12
    v_add_u32 v30, s44, v4
    v_lshrrev_b32 v31, 1, v4
    v_add_u32 v31, s44, v31
    v_mul_u32_u24 v6, {TPAD}, v3
    v_lshl_add_u32 v6, v2, 8, v6
    s_lshl_b32 s44, {WAVE}, 6
    s_add_u32 s44, s44, 16384
    v_add_u32 v6, s44, v6
    s_mul_i32 s44, {WAVE}, {4*TPAD}
    s_add_u32 s44, s44, 16384
    v_add_u32 v7, s44, v4
    v_cmp_eq_u32 vcc, 0, v3
    v_cndmask_b32 v8, 0, 1.0, vcc
    s_mov_b32 s62, 0x3f803f80
    v_mul_u32_u24 v9, {ZT_STRIDE}, v3
    v_lshl_add_u32 v9, v2, 4, v9
    s_mul_i32 s44, {WAVE}, {64*ZT_STRIDE}
    s_lshl_b32 s45, s61, 11
    s_add_u32 s44, s44, s45
    s_lshl_b32 s45, s60, 6
    s_add_u32 s44, s44, s45
    s_add_u32 s64, s44, {ZT}
    s_add_u32 s65, s64, {16*ZT_STRIDE}
    s_add_u32 s66, s64, {32*ZT_STRIDE}
    s_add_u32 s67, s64, {48*ZT_STRIDE}
    s_and_b32 s45, s60, 15
    s_lshl_b32 s45, s45, 3
    s_add_u32 s44, s55, s45
    s_lshr_b32 s45, s60, 4
    s_lshl_b32 s45, s45, 2
    s_add_u32 s44, s44, s45
    s_lshl_b32 s44, s44, 2
    s_add_u32 s63, s44, {SIG}""")
    if not OPT.get('twlate'): twiddles(k)
    stamp(k, 1)
    for i in range(4):
        k(f'ds_write_b128 v30, {V(X+4*i,4)} offset:{1024*i}')
        for r in range(2): k(f'ds_read_b64_tr_b16 {V(TR+4*i+2*r,2)}, v31 offset:{1024*i+512*r}')
        for j in range(4):
            k(f'v_dot2_f32_bf16 v{SS+i}, v{X+4*i+j}, s62, {"0" if j==0 else V(SS+i)}')
            k(f'v_dot2_f32_bf16 v{SS+4+i}, v{X+4*i+j}, v{X+4*i+j}, {"0" if j==0 else V(SS+4+i)}')
    mf = [f'v_mfma_f32_16x16x32_bf16 {V(DA+8*i+4*c,4)}, {V(TR+4*i,4)}, {V(FA+4*c,4)}, 0' for i in range(4) for c in range(2)]
    k(mf.pop(0)); k(mf.pop(0))
    for b in (SS, SS+4):
        k(f'v_permlane32_swap_b32 v{b}, v{b+2}\n v_permlane32_swap_b32 v{b+1}, v{b+3}')
    for b in (SS, SS+4):
        k(f'v_add_f32 v{b}, v{b}, v{b+2}\n v_add_f32 v{b+1}, v{b+1}, v{b+3}')
    k(mf.pop(0))
    for b in (SS, SS+4): k(f'v_permlane16_swap_b32 v{b}, v{b+1}')
    for b in (SS, SS+4): k(f'v_add_f32 v{b}, v{b}, v{b+1}')
    for sh in (8, 4, 2, 1):
        k(mf.pop(0))
        for b in (SS, SS+4): k(f'v_add_f32_dpp v{b}, v{b}, v{b} row_ror:{sh} row_mask:0xf bank_mask:0xf')
    k(mf.pop(0))
    k(f"""v_mul_f32 v{SS}, {fbits(1/512)}, v{SS}
    v_mul_f32 v{SS+4}, {fbits(1/512)}, v{SS+4}
    v_fma_f32 v{SS+4}, -v{SS}, v{SS}, v{SS+4}
    v_max_f32 v{SS+4}, 0, v{SS+4}
    v_add_f32 v{SS+4}, {fbits(1e-5)}, v{SS+4}
    v_rsq_f32 v{SS+1}, v{SS+4}
    v_mul_f32 v{SS+2}, {fbits(-8.0)}, v{SS}
    v_mul_f32 v{SS+2}, v{SS+2}, v{SS+1}
    v_mul_f32 v{SS+3}, {fbits(0.25)}, v{SS+1}""")
    for i in range(4):
        k(f'v_readlane_b32 s{68+2*i}, v{SS+3}, {16*i}\n v_readlane_b32 s{69+2*i}, v{SS+2}, {16*i}')
    for i in range(4):
        d = DA + 8*i
        k(f'v_mul_f32 v{TR}, s{69+2*i}, v8')
        for h in range(2):
            k(f'v_pk_mul_f32 {V(d+4+2*h,2)}, {V(d+4+2*h,2)}, {Sg(68+2*i,2)} op_sel_hi:[1,0]')
        for h in range(2):
            k(f'v_pk_fma_f32 {V(d+2*h,2)}, {V(d+2*h,2)}, {Sg(68+2*i,2)}, {V(TR,2)} op_sel_hi:[1,0,0]')
        for h in (2, 3, 0, 1): k(f'v_cvt_pk_f16_f32 v{X+4*i+h}, v{d+2*h}, v{d+2*h+1}')
        k(f'ds_write_b128 v6, {V(X+4*i,4)} offset:{16*i}')
    k(f"""v_lshlrev_b32 v{SS+5}, 2, v2
    v_mul_f32 v{SS+4}, v{SS+4}, v{SS+1}
    s_mov_b32 exec_lo, 0x00010001
    s_mov_b32 exec_hi, 0x00010001
    buffer_store_dword v{SS+4}, v{SS+5}, {WSR}, s63 offen{ST}
    s_add_u32 s63, s63, {MU-SIG}
    buffer_store_dword v{SS}, v{SS+5}, {WSR}, s63 offen{ST}
    s_mov_b64 exec, -1""")
    k.wait(lg=0); k('s_barrier')
    stamp(k, 2)
    for q in range(4): k(f'ds_read_b128 {V(TR+4*q,4)}, v7 offset:{TPAD*q}')
    for q in range(4):
        for o in range(2): k(f'v_mfma_f32_16x16x32_f16 {V(DA+8*q+4*o,4)}, {V(TR+4*q,4)}, {V(GB+8*q+4*o,4)}, 0')
    for q in range(4):
        for h in range(4): k(f'v_cvt_pk_f16_f32 v{X+4*q+h}, v{DA+8*q+2*h}, v{DA+8*q+2*h+1}')
        k(f'buffer_store_dwordx4 {V(X+4*q,4)}, v9, {WSR}, s{64+q} offen{ST}')
    wt_finish(k, 10)
    if OPT.get('twlate'): twiddles(k)

def p1_w(k):
    X, OP, FA, GB, DA = 32, 64, 96, 104, 136
    tbl_addr(k, 6, TBL['FA'])
    for c in range(2): k(f'global_load_dwordx4 {V(FA+4*c,4)}, v[6:7], off offset:{1024*c}')
    k(f's_lshl_b32 s44, {WAVE}, 13\n s_add_u32 s44, s44, {TBL["GBW"]+4096}')
    tbl_addr(k, 8, 's44')
    k(f"""s_sub_u32 s60, s2, {NW0}
    s_and_b32 s61, s60, 1              ; mu
    s_lshr_b32 s60, s60, 1
    s_and_b32 s44, s60, 3
    s_lshl_b32 s44, s44, 1
    s_bfe_u32 s45, s60, 0x10002
    s_add_u32 s44, s44, s45
    s_andn2_b32 s45, s60, 7
    s_add_u32 s44, s44, s45
    s_cmp_lt_u32 s60, 40
    s_cselect_b32 s60, s44, s60        ; phi
    s_mul_i32 s44, {WAVE}, {4*2752}
    s_lshl_b32 s45, s60, 6
    s_add_u32 s44, s44, s45
    v_mul_u32_u24 v30, {64*2752}, v2
    v_lshl_add_u32 v30, v3, 2, v30
    v_add_u32 v31, {2*2752}, v30""")
    for e in range(8): k(f's_add_u32 s{62+e}, s44, {16*(16*(e>>2)+(e&3))*2752}')
    wt_pre(k, 10)
    after_kernarg(k)
    wt_issue(k, 10)
    k(f"""s_cmp_eq_u32 s61, 0
    s_cselect_b32 s36, s12, s14
    s_cselect_b32 s37, s13, s15
    s_and_b32 s37, s37, 0xffff
    s_mov_b32 s38, {D*F*2}
    s_mov_b32 s39, 0x20000""")
    for dl in range(4):
        for e in range(8):
            k(f'buffer_load_dword v{X+8*dl+e}, v{30+(dl>>1)}, {RC}, s{62+e} offen offset:{2752*(dl&1)}')
    for q in range(8): k(f'global_load_dwordx4 {V(GB+4*q,4)}, v[8:9], off offset:{1024*q-4096}')
    k(f"""v_mul_u32_u24 v6, {4*TPAD}, v2
    v_lshl_add_u32 v6, v3, 4, v6
    s_lshl_b32 s44, {WAVE}, 8
    v_add_u32 v6, s44, v6
    s_mul_i32 s44, {WAVE}, {4*TPAD}
    v_add_u32 v7, s44, v4
    v_lshrrev_b32 v8, 2, v3
    v_lshlrev_b32 v8, 14, v8
    v_lshl_add_u32 v8, v2, 7, v8
    v_and_b32 v9, 3, v3
    v_lshl_add_u32 v8, v9, 4, v8
    s_lshl_b32 s44, s60, 16
    s_lshl_b32 s45, s61, 9
    s_add_u32 s44, s44, s45
    s_lshl_b32 s45, {WAVE}, 12
    s_add_u32 s44, s44, s45
    s_add_u32 s62, s44, {WP+16*16384}
    s_mov_b32 s63, 0x05040100
    s_mov_b32 s64, 0x07060302""")
    twiddles(k)
    wt_finish(k, 10)
    stamp(k, 1)
    for dl in range(4):
        for pi in range(2):
            for h in range(4):
                k(f'v_perm_b32 v{OP+8*dl+4*pi+h}, v{X+8*dl+2*h+1}, v{X+8*dl+2*h}, s{63+pi}')
        for pi in range(2):
            for c in range(2):
                k(f'v_mfma_f32_16x16x32_bf16 {V(DA+32*pi+16*c+4*dl,4)}, {V(FA+4*c,4)}, {V(OP+8*dl+4*pi,4)}, 0')
    for pi in range(2):
        for r in range(4):
            u = X + 16*pi + 4*r
            for c in range(2):
                for h in range(2):
                    d = DA + 32*pi + 16*c + 8*h + r
                    k(f'v_cvt_pk_bf16_f32 v{u+2*c+h}, v{d}, v{d+4}')
            k(f'ds_write_b128 v6, {V(u,4)} offset:{16*TPAD*pi+TPAD*r}')
    k.wait(lg=0); k('s_barrier')
    stamp(k, 2)
    for pi in range(2):
        for q in range(4): k(f'ds_read_b128 {V(OP+16*pi+4*q,4)}, v7 offset:{16*TPAD*pi+TPAD*q}')
    for pi in range(2):
        for q in range(4):
            for o in range(2):
                k(f'v_mfma_f32_16x16x32_bf16 {V(DA+32*pi+8*q+4*o,4)}, {V(GB+8*q+4*o,4)}, {V(OP+16*pi+4*q,4)}, 0')
    for pi in range(2):
        for p in range(2):
            for o in range(2):
                u = X + 16*pi + 8*p + 4*o
                for hq in range(2):
                    for h in range(2):
                        d = DA + 32*pi + 8*(2*p+hq) + 4*o + 2*h
                        k(f'v_cvt_pk_bf16_f32 v{u+2*hq+h}, v{d}, v{d+1}')
                k(f'buffer_store_dwordx4 {V(u,4)}, v8, {WSR}, s62 offen offset:{(2*p+o)*1024+64*pi}{ST}')

def p1_c(k):
    NU = 5
    wt_pre(k, 10)
    after_kernarg(k)
    k(f"""s_lshl_b32 s44, s2, 2
    s_add_u32 s44, s44, {WAVE}
    s_cmp_lg_u32 s44, {255*4}
    s_cbranch_scc1 L_noinit
    v_lshlrev_b32 v30, 8, v1
    v_lshlrev_b32 v31, 8, v3
    v_mov_b32 v32, 0
    s_mov_b32 s44, {FLG}
    buffer_store_dword v32, v30, {WSR}, s44 offen{ST}
    buffer_store_dword v32, v31, {WSR}, 0 offen{ST}
    v_mov_b32 v33, 1
    s_waitcnt vmcnt(0)
    s_mov_b64 exec, 1
    global_store_dword v32, v33, s[20:21]{ST}
    s_mov_b64 exec, -1""")
    k.label('L_noinit')
    wt_issue(k, 10)
    srd(k, 36, 16, F*D*2)
    k(f"""s_sub_u32 s60, s2, {NC0}
    s_lshl_b32 s44, s60, 13
    s_lshl_b32 s45, {WAVE}, 8
    s_add_u32 s56, s44, s45
    v_lshlrev_b32 v70, 2, v1""")
    for j in range(NU):
        k('s_add_u32 s57, s56, 4096')
        for e in range(8): k(f'buffer_load_dword v{72+8*j+e}, v70, {RC}, s{56+(e>>2)} offen offset:{1024*(e&3)}')
        k(f's_add_u32 s56, s56, {42*8192}')
    twiddles(k)
    k(f"""s_cmp_ge_u32 s60, 32
    s_cbranch_scc1 L_c_skip
    s_lshl_b32 s62, s60, 2
    s_add_u32 s62, s62, {WAVE}
    s_lshr_b32 s61, s62, 3
    s_and_b32 s62, s62, 7
    v_and_b32 v30, 3, v1
    v_lshlrev_b32 v30, 2, v30
    v_lshrrev_b32 v31, 5, v1
    v_lshl_add_u32 v30, v31, 1, v30
    v_bfe_u32 v31, v1, 2, 1
    v_add_u32 v30, v30, v31
    s_lshl_b32 s44, s61, 5
    s_add_u32 s44, s44, 1
    v_lshl_add_u32 v30, v30, 1, s44
    v_bfe_u32 v31, v1, 3, 1
    v_lshlrev_b32 v31, 7, v31
    v_bfe_u32 v32, v1, 4, 1
    v_cmp_eq_u32 vcc, 1, v32
    s_lshl_b32 s44, s62, 1
    s_sub_u32 s45, 32, s44
    s_cmp_eq_u32 s44, 0
    s_cselect_b32 s45, 16, s45
    v_mov_b32 v33, s44
    v_mov_b32 v34, s45
    v_cndmask_b32 v33, v33, v34, vcc
    v_add_u32 v33, v33, v31
    s_add_u32 s44, s44, 1
    s_sub_u32 s45, 32, s44
    v_mov_b32 v34, s44
    v_mov_b32 v35, s45
    v_cndmask_b32 v34, v34, v35, vcc
    v_add_u32 v34, v34, v31
    v_cmp_eq_u32 vcc, 0, v33
    v_mov_b32 v35, 0x100
    v_mov_b32 v36, {fbits(1/16)}
    v_mov_b32 v37, {fbits(1/math.sqrt(512))}
    v_cndmask_b32 v35, v33, v35, vcc
    v_cndmask_b32 v37, v36, v37, vcc
    s_lshl_b32 s44, s61, 14
    s_lshl_b32 s45, s62, 11
    s_add_u32 s44, s44, s45
    s_add_u32 s62, s44, {WP}""")
    for e in range(8):
        src = 'v35' if e == 0 else None
        if e: k(f'v_add_u32 v{40+e}, {32*(e&3)}, v{33+(e>>2)}')
        k(f'v_mul_u32_u24 v{40+e}, {src or V(40+e)}, v30')
        k(f'v_and_b32 v{40+e}, 0x3ff, v{40+e}')
        k(f'v_cvt_f32_u32 v{40+e}, v{40+e}')
        k(f'v_mul_f32 v{40+e}, {fbits(1/1024)}, v{40+e}')
    for e in range(8):
        k(f'v_cos_f32 v{48+e}, v{40+e}\n v_sin_f32 v{56+e}, v{40+e}')
    for e in range(8):
        sc = 'v37' if e == 0 else 'v36'
        k(f'v_mul_f32 v{48+e}, {sc}, v{48+e}\n v_mul_f32 v{56+e}, {sc}, -v{56+e}')
    for part in range(2):
        for h in range(4): k(f'v_cvt_pk_bf16_f32 v{40+4*part+h}, v{48+8*part+2*h}, v{48+8*part+2*h+1}')
        k(f'buffer_store_dwordx4 {V(40+4*part,4)}, v4, {WSR}, s62 offen offset:{1024*part}{ST}')
    k.label('L_c_skip')
    k.wait(vm=0)
    stamp(k, 1)
    wt_finish(k, 10)
    wsrd(k, 36, WD+86*16384)
    k(f"""s_lshr_b32 s44, s60, 1
    s_lshl_b32 s44, s44, 14
    s_and_b32 s45, s60, 1
    s_lshl_b32 s45, s45, 9
    s_add_u32 s44, s44, s45
    s_lshl_b32 s45, {WAVE}, 12
    s_add_u32 s44, s44, s45
    s_add_u32 s56, s44, {WD}
    s_mov_b32 s44, 0x05040100
    s_mov_b32 s45, 0x07060302
    v_lshlrev_b32 v70, 10, v2
    v_lshl_add_u32 v70, v3, 4, v70""")
    for j in range(NU):
        for pi in range(2):
            o = 32 + 8*(j & 1) + 4*pi
            for h in range(4): k(f'v_perm_b32 v{o+h}, v{72+8*j+2*h+1}, v{72+8*j+2*h}, s{44+pi}')
            k(f'buffer_store_dwordx4 {V(o,4)}, v70, {RC}, s56 offen offset:{256*pi}{ST}')
        k(f's_add_u32 s56, s56, {21*16384}')
    stamp(k, 2)

def grid_barrier(k, ph, keep, shadow=None):
    k(f's_waitcnt vmcnt({keep})'); k('s_barrier')
    k(f's_cmp_lg_u32 {WAVE}, 0\n s_cbranch_scc1 L_bw{ph}')
    st = k.state()
    k(f"""s_and_b32 s44, s2, 7
    s_lshl_b32 s45, s44, 8
    v_mov_b32 v250, 0
    v_mov_b32 v251, 1
    s_mov_b32 s46, 0
    s_mov_b64 exec, 1""")
    if ph == 1:
        k.label('L_go')
        k(f"""s_waitcnt vmcnt(0)
        v_cmp_ne_u32 vcc, 0, v254
        s_add_u32 s46, s46, 1
        s_cbranch_vccnz L_gone
        global_load_dword v254, v250, s[20:21]{LD}
        s_cmp_lt_u32 s46, {SPIN}
        s_cbranch_scc1 L_go""")
        k.label('L_gone')
    k(f'buffer_atomic_add v251, v250, {WSR}, s45 offen sc0 sc1')
    if shadow:
        k('s_mov_b64 exec, -1'); shadow()
    k(f"""s_mov_b64 exec, 0xff
    v_lshlrev_b32 v252, 11, v1
    v_lshlrev_b32 v253, 8, v1
    v_mov_b32 v250, {ph}
    s_add_u32 s45, s45, {FLG}
    s_lshl_b32 s44, s44, 11
    s_add_u32 s44, s44, {FLG}
    s_waitcnt vmcnt(0)
    v_readfirstlane_b32 s47, v251
    s_mov_b32 s46, 0
    s_cmp_lg_u32 s47, {32*ph-1}
    s_cbranch_scc1 L_bp{ph}
    buffer_store_dword v250, v252, {WSR}, s45 offen{ST}""")
    k.label(f'L_bp{ph}')
    k(f"""buffer_load_dword v251, v253, {WSR}, s44 offen{LD}
    s_add_u32 s46, s46, 1
    s_waitcnt vmcnt(0)
    v_cmp_gt_u32 vcc, v250, v251
    s_cmp_gt_u32 s46, {SPIN}
    s_cbranch_scc1 L_bd{ph}
    s_cbranch_vccnz L_bp{ph}""")
    k.label(f'L_bd{ph}')
    k('s_mov_b64 exec, -1')
    if shadow: k(f's_branch L_bx{ph}')
    k.restore(st)
    k.label(f'L_bw{ph}')
    if shadow:
        shadow(); k.label(f'L_bx{ph}')

B1, A4, A2, B3 = 64, 88, 112, 136
WV = 248
def p2_pre_loads(k):
    k(f's_lshl_b32 s44, {WAVE}, 13\n s_add_u32 s44, s44, {TBL["P2W"]+4096}')
    tbl_addr(k, 6, 's44'); tbl_addr(k, 8, TBL['P2S']+4096)
    k.fence()
    k(f'v_mov_b32 v253, 0\n global_load_dword v254, v253, s[20:21]{LD}')
    for u in range(4): k(f'global_load_dwordx4 {V(B1+6*u+2,4)}, v[6:7], off offset:{1024*u-4096}')
    for u in range(4): k(f'global_load_dwordx4 {V(A2+6*u+2,4)}, v[8:9], off offset:{1024*u-4096}')
    for u in range(4): k(f'global_load_dwordx4 {V(B3+6*u+2,4)}, v[8:9], off offset:{1024*u}')
    for u in range(4): k(f'global_load_dwordx4 {V(A4+6*u+2,4)}, v[6:7], off offset:{1024*u}')
    k(f"""s_mul_i32 s44, s2, {ZT_STRIDE}
    s_add_u32 s44, s44, {ZT}
    v_lshlrev_b32 v30, 6, v3
    v_lshl_add_u32 v30, v2, 4, v30""")
    for u in range(4):
        k(f's_add_u32 s45, {WAVE}, {u}\n s_and_b32 s45, s45, 3\n s_lshl_b32 s45, s45, 11\n s_add_u32 s{56+u}, s44, s45')
        if u: k(f'v_add_u32 v{9+u}, s45, v4')
        else: k(f'v_add_u32 v7, s45, v4')
    k(f"""s_lshr_b32 s44, s2, 4
    s_sub_u32 s45, 32, s44
    s_cmp_eq_u32 s44, 0
    s_cselect_b32 s45, 16, s45
    s_bitcmp1_b32 s2, 3
    s_cselect_b32 s44, s45, s44
    s_and_b32 s45, s2, 7
    s_lshl_b32 s45, s45, 5
    s_add_u32 s44, s44, s45
    s_sub_u32 s44, s44, 1
    s_and_b32 s44, s44, 255
    s_mul_i32 s44, s44, {WT_STRIDE}
    s_lshl_b32 s45, {WAVE}, 10
    s_add_u32 s44, s44, s45
    s_add_u32 s61, s44, {WT}
    s_add_u32 s62, s61, 4096
    s_lshl_b32 s45, {WAVE}, 11
    s_add_u32 s63, s45, {SIG}
    v_lshlrev_b32 v31, 1, v4           ; sigma: (128g+8x)*4
    v_lshrrev_b32 v6, 2, v1
    v_lshlrev_b32 v6, 15, v6
    v_and_b32 v8, 3, v1
    v_lshl_add_u32 v6, v8, 4, v6
    s_lshr_b32 s44, s2, 5
    s_lshl_b32 s44, s44, 6
    s_and_b32 s45, s2, 31
    s_add_u32 s44, s44, s45
    s_lshl_b32 s44, s44, 6
    s_lshl_b32 s45, {WAVE}, 19
    s_add_u32 s44, s44, s45
    s_add_u32 s64, s44, {HT}
    s_mov_b32 s60, 0x80008000""")
    p3_ids(k, 48, 49)
    wsrd(k, 28, WP+188*16384)
    k(f"""s_mul_i32 s44, s49, 11
    s_mul_i32 s45, {WAVE}, 3
    s_add_u32 s50, s44, s45            ; tau0
    s_add_u32 s44, s50, 16
    s_add_u32 s45, s50, 18
    s_cmp_eq_u32 {WAVE}, 3
    s_cselect_b32 s45, s49, s45
    s_lshl_b32 s44, s44, 14
    s_add_u32 s44, s44, {WP}
    s_lshl_b32 s45, s45, 14
    s_add_u32 s45, s45, {WP}
    v_bfe_u32 v8, v1, 1, 1
    v_lshlrev_b32 v8, 9, v8
    v_lshl_add_u32 v8, v2, 7, v8
    v_and_b32 v9, 1, v1
    v_lshl_add_u32 v8, v9, 6, v8
    v_bfe_u32 v9, v1, 2, 2
    v_lshl_add_u32 v8, v9, 4, v8
    v_add_u32 v{WV}, s44, v8
    v_add_u32 v{WV+1}, 0x4000, v{WV}
    v_add_u32 v29, s45, v8
    s_lshr_b32 s44, s2, 6
    s_lshl_b32 s44, s44, 1
    s_lshr_b32 s45, s2, 3
    s_add_u32 s44, s44, s45
    s_and_b32 s44, s44, 7
    s_lshl_b32 s51, s44, {11 if not OPT.get('norot') else 31}             ; K rotation * 1024
    s_and_b32 s51, s51, 0x3fff
    s_mov_b32 s52, s51""")

def p2_negs(k, base):
    for u in range(4):
        for h in range(2): k(f'v_xor_b32 v{base+6*u+h}, s60, v{base+6*u+4+h}')

wq = None
def wpre(k, n):
    global wq
    for _ in range(n):
        if wq >= 16: return
        for t in range(3):
            k(f'buffer_load_dwordx4 {A(12*wq+4*t,4)}, v{(WV, WV+1, 29)[t]}, {RA}, s52 offen{LD}')
        k('s_add_u32 s52, s52, 1024\n s_and_b32 s52, s52, 0x3fff')
        wq += 1

def p2(k):
    global wq
    wq = 0
    Z, WW, SG, DD, TT, PK = 32, 160, 176, 184, 232, 240
    sched = OPT.get('wsched', [4, 2, 2, 2, 2, 4])
    for u in range(4):
        for be in range(2): k(f'buffer_load_dwordx4 {V(Z+8*u+4*be,4)}, v30, {WSR}, s{56+u} offen offset:{1024*be}{LD}')
    k(f"""buffer_load_dwordx4 {V(PK,4)}, v4, {WSR}, s61 offen{LD}
    buffer_load_dwordx4 {V(PK+4,4)}, v4, {WSR}, s62 offen{LD}
    buffer_load_dwordx4 {V(SG,4)}, v31, {WSR}, s63 offen{LD}
    buffer_load_dwordx4 {V(SG+4,4)}, v31, {WSR}, s63 offen offset:16{LD}""")
    wpre(k, sched[0])
    for u in range(4):
        for be in range(2):
            for o in range(2):
                d = V(DD+8*be+4*o, 4)
                k(f'v_mfma_f32_16x16x32_f16 {d}, {V(Z+8*u+4*be,4)}, {V(B1+6*u+2-2*o,4)}, {"0" if u==0 else d}')
        if u == 0: stamp(k, 5)
    wpre(k, sched[1])
    for t in range(2):
        for r in range(4):
            k(f'v_lshlrev_b32 v{WW+8*t+r}, 16, v{PK+4*t+r}\n v_and_b32 v{WW+8*t+4+r}, 0xffff0000, v{PK+4*t+r}')
    E = Z + 8
    for be in range(2):
        cmul(k, DD+8*be, DD+8*be+4, TW1+8*be, TW1+8*be+4, TT, TT+4, True)
        for h in range(4): k(f'v_cvt_pk_f16_f32 v{PK+4*be+h}, v{TT+2*h}, v{TT+2*h+1}')
        for t in range(2):
            for o in range(2):
                d = V(E+8*t+4*o, 4)
                k(f'v_mfma_f32_16x16x32_f16 {d}, {V(A2+6*(2*t+be)+2-2*o,4)}, {V(PK+4*be,4)}, {"0" if be==0 else d}')
    wpre(k, sched[2])
    for t in range(2):
        cmul(k, E+8*t, E+8*t+4, WW+8*t, WW+8*t+4, TT, TT+4, False)
        for h in range(4): k(f'v_cvt_pk_bf16_f32 v{PK+4*t+h}, v{TT+2*h}, v{TT+2*h+1}')
        for be in range(2):
            for o in range(2):
                d = V(DD+8*be+4*o, 4)
                k(f'v_mfma_f32_16x16x32_bf16 {d}, {V(PK+4*t,4)}, {V(B3+6*(2*be+t)+2-2*o,4)}, {"0" if t==0 else d}')
    wpre(k, sched[3])
    for be in range(2):
        cmul(k, DD+8*be, DD+8*be+4, TW2+8*be, TW2+8*be+4, TT, TT+4, False)
        for h in range(4): k(f'v_cvt_pk_bf16_f32 v{PK+4*be+h}, v{TT+2*h}, v{TT+2*h+1}')
        k(f'ds_write_b128 v7, {V(PK+4*be,4)} offset:{1024*be}')
    def step4(u, src):
        for be in range(2):
            for o in range(2):
                d = V(DD+8*be+4*o, 4)
                k(f'v_mfma_f32_16x16x32_bf16 {d}, {V(A4+6*u+2-2*o,4)}, {V(src+4*be,4)}, {d}')
    for o in range(2):
        for be in range(2):
            for r in range(4):
                d = DD+8*be+4*o+r; hi = r & 1
                k(f'v_fma_mix_f32 v{d}, v{SG+4*be+r}, v{Z+4*be+2*o+(r>>1)}, 0 op_sel:[0,{hi},0] op_sel_hi:[0,1,0]')
    k.wait(lg=0); k('s_barrier')
    for u in range(1, 4):
        for be in range(2): k(f'ds_read_b128 {V(Z+8*u+4*be,4)}, v{9+u} offset:{1024*be}')
    step4(0, PK)
    for u in range(1, 4): step4(u, Z+8*u)
    wpre(k, sched[4])
    for o in range(2):
        for be in range(2):
            for h in range(2): k(f'v_cvt_pk_bf16_f32 v{PK+4*o+2*be+h}, v{DD+8*be+4*o+2*h}, v{DD+8*be+4*o+2*h+1}')
    k('s_cmp_lg_u32 s2, 0\n s_cbranch_scc1 L_p2_st')
    for h in range(4): k(f'v_mov_b32 v{PK+4+h}, v{PK+h}\n v_mov_b32 v{PK+h}, 0')
    k.label('L_p2_st')
    for o in range(2): k(f'buffer_store_dwordx4 {V(PK+4*o,4)}, v6, {WSR}, s64 offen offset:{2048*o}{ST}')
    n0 = len(k.vm)
    wpre(k, 16)
    return len(k.vm) - n0

STATL = 131072
ACC, ACT, TM, STV, MUV, HD2 = 96, 64, 48, 32, 8, 24
def wd_reg(u, i):
    if u < 8: return A(192+8*u+4*i, 4)
    if u < 20: return V(160+8*(u-8)+4*i, 4)
    return A(176+8*(u-20)+4*i, 4)

def p3_pre(k):
    wsrd(k, 32, HF+86*65536)
    wsrd(k, 36, WD+86*16384)
    k(f"""s_lshl_b32 s44, s48, 2
    s_add_u32 s44, s44, {WAVE}
    s_lshl_b32 s44, s44, 15
    s_add_u32 s44, s44, {HT}
    v_and_b32 v6, 1, v2
    v_lshlrev_b32 v6, 5, v6
    v_xor_b32 v5, v6, v4
    v_add_u32 v5, s44, v5
    s_lshl_b32 s53, s51, 1
    s_lshl_b32 s54, {WAVE}, 15
    v_lshrrev_b32 v7, 2, v1
    v_lshl_add_u32 v6, v7, 6, v6
    v_and_b32 v7, 3, v1
    v_lshl_add_u32 v6, v7, 3, v6
    v_add_u32 v6, s54, v6
    v_xor_b32 v7, 32, v6               ; m-tile 1
    v_lshrrev_b32 v16, 2, v3
    v_cmp_eq_u32 vcc, v16, v2
    s_lshl_b32 s44, {WAVE}, 9
    s_add_u32 s44, s44, {STATL}
    v_lshl_add_u32 v17, v3, 4, s44
    v_add_u32 v16, {STATL+2048}, v4
    v_cndmask_b32 v16, v16, v17, vcc
    s_mov_b32 s56, 0x22222222
    s_mov_b32 s57, s56
    s_mov_b32 s58, 0x44444444
    s_mov_b32 s59, s58
    s_mov_b32 s60, 0x88888888
    s_mov_b32 s61, s60
    v_lshrrev_b32 v18, 1, v2
    v_add_u32 v19, s50, v18
    v_lshrrev_b32 v20, 1, v19
    v_lshlrev_b32 v20, 16, v20
    v_and_b32 v19, 1, v19
    v_lshl_add_u32 v20, v19, 9, v20
    v_and_b32 v19, 31, v1
    v_lshlrev_b32 v19, 4, v19
    v_add_u32 v20, v20, v19
    s_and_b32 s44, {WAVE}, 1
    v_xor_b32 v18, s44, v18
    v_lshl_add_u32 v21, v18, 10, v19
    s_lshl_b32 s62, s48, 12
    s_add_u32 s62, s62, {HF}
    s_add_u32 s44, s50, 2
    s_lshr_b32 s45, s44, 1
    s_lshl_b32 s45, s45, 16
    s_and_b32 s44, s44, 1
    s_lshl_b32 s44, s44, 9
    s_add_u32 s44, s44, s45
    s_add_u32 s63, s44, s62
    v_lshlrev_b32 v18, 5, v3
    v_lshl_add_u32 v18, v2, 3, v18
    v_xor_b32 v19, 24, v18             ; sign 1
    s_lshl_b32 s44, s49, 17
    s_lshl_b32 s45, s48, 12
    s_add_u32 s44, s44, s45
    s_add_u32 s66, s44, {HRES}
    s_lshl_b32 s44, s48, 9
    s_add_u32 s67, s44, {MU}
    v_lshlrev_b32 v28, 2, v3""")
    k(f"""s_and_b32 s44, s2, 7
    s_lshl_b32 s44, s44, 2
    s_bfe_u32 s45, s2, 0x20003
    s_add_u32 s68, s44, s45
    s_lshr_b32 s69, s2, 5
    s_lshl_b32 s45, s45, 1
    s_add_u32 s45, s45, s69
    s_and_b32 s45, s45, 7
    s_mul_i32 s45, s45, {11 if not OPT.get('norot') else 0}
    s_lshr_b32 s70, s45, 2
    s_lshl_b32 s71, s70, 16
    s_lshl_b32 s72, s70, 18            ; H offset
    v_lshrrev_b32 v22, 5, v1
    v_lshlrev_b32 v22, 9, v22
    v_and_b32 v23, 1, v1
    v_lshl_add_u32 v22, v23, 8, v22
    v_bfe_u32 v23, v1, 2, 1
    v_lshl_add_u32 v22, v23, 7, v22
    v_bfe_u32 v23, v1, 3, 2
    v_lshl_add_u32 v22, v23, 5, v22
    v_bfe_u32 v23, v1, 1, 1
    v_lshl_add_u32 v22, v23, 4, v22
    s_lshl_b32 s44, {WAVE}, 14
    s_lshl_b32 s45, s69, 11
    s_add_u32 s44, s44, s45
    s_lshr_b32 s45, {WAVE}, 1
    s_lshl_b32 s45, s45, 10
    s_add_u32 s44, s44, s45
    s_add_u32 s44, s44, {WD}
    v_add_u32 v22, s44, v22
    v_xor_b32 v23, 0x400, v22""")

def wd_load(u):
    o = [f'buffer_load_dwordx4 {wd_reg(u,i)}, v{22+i}, {RC}, s71 offen{LD}' for i in range(2)]
    return o + ['s_add_u32 s71, s71, 0x10000', f's_cmp_lt_u32 s71, {22*65536}\n s_cselect_b32 s71, s71, 0']

def cost(t):
    m = t.split()[0]
    if m.startswith(('v_exp', 'v_rcp', 'v_rsq', 'v_permlane')): return 8
    if m.startswith('buffer'): return 8
    return 4 * (t.count('\n') + 1)

def p3_body(k, hw):
    acc = lambda p, n, m, par=0: ACC + 32*(p & 1) + 8*(n + (par if n == 2 else 0)) + 4*m
    GR = TM
    dma_pos = []
    def dma(ka):
        return ['s_mov_b32 m0, s54\n' + f'buffer_load_dwordx4 v5, {WSR}, s53 offen{LD} lds',
                f'buffer_load_dwordx4 v5, {WSR}, s53 offen offset:1024{LD} lds',
                's_add_u32 s53, s53, 2048\n s_and_b32 s53, s53, 0x7fff\n s_add_u32 s54, s54, 2048']
    def reads(g):
        p, ka = divmod(g, 16); o = []
        if ka == 0 and p: o.append(f'v_xor_b32 v6, {((p ^ (p-1)) << 15):#x}, v6\n v_xor_b32 v7, {((p ^ (p-1)) << 15):#x}, v7')
        for m in range(2):
            for h in range(2):
                o.append(f'ds_read_b64_tr_b16 {V(ACT+8*(g&3)+4*m+2*h,2)}, v{6+m} offset:{2048*ka+1024*h}')
        return o
    def chains(p, items, hd):
        o = []
        I = list(enumerate(items))
        if p == 3 and not OPT.get('nopk'):
            g = lambda n, m: V(acc(p, n, m), 2)
            u = lambda n, m: V(acc(p, n, m)+2, 2)
            t = lambda i: V(TM+2*i, 2)
            for i, (n, m) in I:
                if n == 2: o += [f'v_pk_add_f32 {g(n,m)}, {g(n,m)}, {V(acc(p,n,m,1),2)}', f'v_pk_add_f32 {u(n,m)}, {u(n,m)}, {V(acc(p,n,m,1)+2,2)}']
            o += [f'v_pk_mul_f32 {t(i)}, {g(n,m)}, {g(n,m)}' for i, (n, m) in I]
            o += [f'v_pk_fma_f32 {t(i)}, {t(i)}, {V(STV+4*m,2)}, {V(STV+4*m,2)} op_sel:[0,1,0] op_sel_hi:[1,1,0]' for i, (n, m) in I]
            o += [f'v_pk_mul_f32 {t(i)}, {t(i)}, {g(n,m)}' for i, (n, m) in I]
            o += [f'v_exp_f32 v{TM+2*i+h}, v{TM+2*i+h}' for i, _ in I for h in range(2)]
            o += [f'v_pk_mul_f32 {g(n,m)}, {g(n,m)}, {u(n,m)}' for i, (n, m) in I]
            o += [f'v_pk_fma_f32 {t(i)}, {t(i)}, {V(STV+4*m+2,2)}, {V(STV+4*m+2,2)} op_sel_hi:[1,0,0]' for i, (n, m) in I]
            o += [f'v_rcp_f32 v{TM+2*i+h}, v{TM+2*i+h}' for i, _ in I for h in range(2)]
            o += [f'v_pk_mul_f32 {g(n,m)}, {g(n,m)}, {t(i)}' for i, (n, m) in I]
        else:
            J = [(acc(p, n, m)+h, TM+2*i+h, STV+4*m, n, m) for i, (n, m) in I for h in range(2)]
            for i, (n, m) in I:
                if n == 2: o += [f'v_add_f32 v{acc(p,n,m)+r}, v{acc(p,n,m)+r}, v{acc(p,n,m,1)+r}' for r in range(4)]
            o += [f'v_mul_f32 v{t}, v{g}, v{g}' for g, t, c, n, m in J]
            o += [f'v_fma_f32 v{t}, v{t}, v{c+1}, v{c}' for g, t, c, n, m in J]
            o += [f'v_mul_f32 v{t}, v{t}, v{g}' for g, t, c, n, m in J]
            for g, t, c, n, m in J: o += [f'v_exp_f32 v{t}, v{t}', f'v_mul_f32 v{g}, v{g}, v{g+2}']
            o += [f'v_fma_f32 v{t}, v{t}, v{c+2}, v{c+2}' for g, t, c, n, m in J]
            o += [f'v_rcp_f32 v{t}, v{t}' for g, t, c, n, m in J]
            o += [f'v_mul_f32 v{g}, v{g}, v{t}' for g, t, c, n, m in J]
        o += [f'v_cvt_pk_bf16_f32 v{hd+i}, v{acc(p,n,m)}, v{acc(p,n,m)+1}' for i, (n, m) in I]
        return o
    def tr4(h):
        return [f'v_permlane32_swap_b32 v{h}, v{h+2}', f'v_permlane32_swap_b32 v{h+1}, v{h+3}',
                f'v_permlane16_swap_b32 v{h}, v{h+1}', f'v_permlane16_swap_b32 v{h+2}, v{h+3}']
    def epilogue(p):
        HA = TM + 8
        o = chains(p, [(0, 0), (0, 1), (1, 0), (1, 1)], HA) + tr4(HA)
        o += [f's_xor_b32 s44, {WAVE}, {p}\n s_lshl_b32 s44, s44, 10\n s_add_u32 s44, s44, s62',
              f'buffer_store_dwordx4 {V(HA,4)}, v20, {RB}, s44 offen{ST}']
        if not hw:
            o += chains(p, [(2, 0), (2, 1)], HD2 + 2*(p & 1))
            if p & 1:
                o += tr4(HD2) + [f's_xor_b32 s44, {WAVE}, {p}\n s_and_b32 s44, s44, 2\n s_lshl_b32 s44, s44, 10\n s_add_u32 s44, s44, s63',
                                 f'buffer_store_dwordx4 {V(HD2,4)}, v21, {RB}, s44 offen{ST}']
        else:
            o.append(f's_add_u32 s45, s66, 0x10000')
            for m in range(2):
                e, od = acc(p, 2, m), acc(p, 2, m, 1); t = TM; q = TM + 12 if m else HD2
                o += [f'v_add_f32 v{e+r}, v{e+r}, v{MUV+2*p+m}' for r in range(4)]
                for r in range(4):
                    o += [f'v_add_f32 v{t+r}, v{e+r}, v{od+r}', f'v_sub_f32 v{t+4+r}, v{e+r}, v{od+r}']
                off = 1024*(p ^ 3) + 512*m
                o += [f'v_cvt_pk_bf16_f32 v{q}, v{t}, v{t+1}', f'v_cvt_pk_bf16_f32 v{q+1}, v{t+2}, v{t+3}',
                      f'v_cvt_pk_bf16_f32 v{q+2}, v{t+7}, v{t+6}', f'v_cvt_pk_bf16_f32 v{q+3}, v{t+5}, v{t+4}',
                      f'buffer_store_dwordx2 {V(q,2)}, v18, {WSR}, s66 offen offset:{off}{ST}',
                      f'buffer_store_dwordx2 {V(q+2,2)}, v19, {WSR}, s45 offen offset:{off}{ST}']
        return o
    def stats():
        o = []
        K0 = -2*math.sqrt(2/math.pi)*math.log2(math.e)
        for m in range(2):
            b = GR + 4*m
            o += [f'v_cndmask_b32 v{b}, v{b}, v{b+1}, s[56:57]', f'v_cndmask_b32 v{b}, v{b}, v{b+2}, s[58:59]', f'v_cndmask_b32 v{b}, v{b}, v{b+3}, s[60:61]',
                  f'v_mov_b32 v{b+2}, {fbits(1e-5)}', f'v_fmac_f32 v{b+2}, {fbits(1/512)}, v{b}', f'v_rsq_f32 v{b+3}, v{b+2}',
                  f'v_mul_f32 v{b}, {fbits(K0)}, v{b+3}', f'v_mul_f32 v{b+3}, v{b+3}, v{b+3}', f'v_mul_f32 v{b+1}, {fbits(0.044715)}, v{b}', f'v_mul_f32 v{b+1}, v{b+1}, v{b+3}',
                  f'ds_write_b128 v16, {V(b,4)} offset:{256*m}']
        return o
    def getstats(p):
        o = [f'v_xor_b32 v17, {512*(p^(p-1))}, v17'] if p else []
        return o + [f'ds_read_b128 {V(STV+4*m,4)}, v17 offset:{256*m}' for m in range(2)]
    PRE, AHEAD = 8, 3
    for ka in range(PRE):
        for t in dma(ka): k(t)
        dma_pos.append(k.nvm)
    if hw:
        for j in range(8): k(f'buffer_load_dword v{MUV+j}, v28, {WSR}, s67 offen offset:{64*(j^6)}{LD}')
    def landed(ka): k(f's_waitcnt vmcnt({min(63, k.nvm - dma_pos[ka])})')
    for g in range(AHEAD):
        landed(g)
        if g == 0: stamp(k, 8)
        for t in reads(g): k(t)
    nw = OPT.get('wdin', 20)
    wdq = [t for u in range(nw) for t in wd_load(u)]
    bg = []
    for p in range(4):
        if p == 1: bg = stats() + getstats(0) + epilogue(0) + getstats(1)
        elif p: bg = epilogue(p-1) + getstats(p)
        if p == 1: extra = wdq[:len(wdq)//2]
        elif p == 2: extra = wdq[len(wdq)//2:]
        else: extra = []
        tot = sum(map(cost, bg)); done = 0
        for ka in range(16):
            g = 16*p + ka
            fill = []
            if p == 0 and ka + PRE < 16: fill += [('dma', ka + PRE)]
            if g + AHEAD < 64:
                if g + AHEAD < 16: fill.append(('land', g + AHEAD))
                if g + AHEAD == 16: fill.append(('bar', 0))
                fill += reads(g + AHEAD)
            if p == 1 and ka == 8:
                fill += [('bar', 1)]
            if ka >= 1:
                while bg and done < tot * ka / 14:
                    done += cost(bg[0]); fill.append(bg.pop(0))
            ne = (len(extra) + (15 - ka)) // (16 - ka)
            fill += extra[:ne]; extra = extra[ne:]
            mf = []
            for m in range(2):
                b = V(ACT+8*(g&3)+4*m, 4)
                for n in range(3):
                    d = V(acc(p, n, m, ka & 1), 4)
                    first = ka == 0 or (n == 2 and ka == 1)
                    mf.append(f'v_mfma_f32_16x16x32_bf16 {d}, {A(12*ka+4*n,4)}, {b}, {"0" if first else d}')
                if p == 0: mf.append(f'v_mfma_f32_16x16x32_bf16 {V(GR+4*m,4)}, {b}, {b}, {"0" if ka==0 else V(GR+4*m,4)}')
            fc = lambda f: 8 if isinstance(f, tuple) else cost(f)
            ftot = sum(map(fc, fill)); fd = 0
            for i, t in enumerate(mf):
                k(t)
                while fill and fd + fc(fill[0])/2 <= ftot * (i+1) / len(mf) + 1e-6:
                    f = fill.pop(0); fd += fc(f)
                    if isinstance(f, tuple):
                        if f[0] == 'dma':
                            for x in dma(f[1]): k(x)
                            dma_pos.append(k.nvm)
                        elif f[0] == 'land': landed(f[1])
                        elif f[0] == 'bar':
                            if f[1] == 1: k.wait(lg=8)
                            k('s_barrier')
                    else: k(f)
            assert not fill
        assert not bg and not extra
        if p == 0: stamp(k, 9)
    stamp(k, 10)
    if nw == 20:
        for t in wd_load(20) + wd_load(21): k(t)
    for t in epilogue(3): k(t)
    if nw < 20:
        for u in range(nw, 22):
            for t in wd_load(u): k(t)

def rb_sync(k):
    k('s_waitcnt vmcnt(0)'); k('s_barrier')
    k(f's_cmp_lg_u32 {WAVE}, 0\n s_cbranch_scc1 L_rw')
    st = k.state()
    k(f"""v_mov_b32 v8, 0
    v_mov_b32 v9, 1
    v_lshlrev_b32 v10, 7, v1
    s_lshr_b32 s44, s68, 1
    s_lshl_b32 s44, s44, 11
    s_add_u32 s44, s44, {RBF}
    s_mov_b32 s46, 0
    s_mov_b64 exec, 1
    buffer_store_dword v9, v8, {WSR}, s41 offen{ST}
    s_mov_b64 exec, 0xffff""")
    k.label('L_rp')
    k(f"""buffer_load_dword v11, v10, {WSR}, s44 offen{LD}
    s_add_u32 s46, s46, 1
    s_waitcnt vmcnt(0)
    v_cmp_ne_u32 vcc, 1, v11
    s_cmp_gt_u32 s46, {SPIN}
    s_cbranch_scc1 L_rd
    s_cbranch_vccnz L_rp""")
    k.label('L_rd')
    k('s_mov_b64 exec, -1')
    k.restore(st)
    k.label('L_rw')

def p4_pre(k):
    srd(k, 28, 18, S*D*2)
    k(f"""s_and_b32 s62, {WAVE}, 1
    s_lshr_b32 s63, {WAVE}, 1
    s_lshl_b32 s44, {WAVE}, 16
    s_lshl_b32 s45, s68, 11
    s_add_u32 s44, s44, s45
    s_lshl_b32 s45, s62, 10
    s_add_u32 s44, s44, s45
    s_add_u32 s44, s44, {HF}
    v_add_u32 v5, s44, v4
    v_xor_b32 v6, 0x400, v5
    s_lshl_b32 s44, s68, 1
    s_add_u32 s44, s44, s62            ; M5
    s_lshl_b32 s45, s69, 1
    s_add_u32 s45, s45, s63
    v_lshrrev_b32 v12, 5, v1
    s_lshl_b32 s46, s45, 1
    v_add_u32 v13, s46, v12
    v_sub_u32 v14, 31, v13
    v_min_u32 v14, v13, v14
    v_lshlrev_b32 v14, 17, v14
    v_lshrrev_b32 v13, 4, v13
    v_lshl_add_u32 v14, v13, 16, v14
    v_and_b32 v13, 31, v1
    v_lshl_add_u32 v7, v13, 5, v14     ; residual
    s_lshl_b32 s66, s44, 10
    s_add_u32 s66, s66, {HRES}
    s_lshr_b32 s46, s44, 2
    s_lshl_b32 s46, s46, 17
    s_and_b32 s44, s44, 3
    s_lshl_b32 s44, s44, 12
    s_add_u32 s67, s46, s44
    s_lshl_b32 s45, s45, 6
    s_add_u32 s67, s67, s45
    v_bfe_u32 v13, v1, 3, 2
    v_lshlrev_b32 v13, 10, v13
    v_lshl_add_u32 v12, v12, 5, v13
    v_and_b32 v13, 3, v1
    v_lshl_add_u32 v12, v13, 15, v12
    v_bfe_u32 v13, v1, 2, 1
    v_lshl_add_u32 v12, v13, 14, v12   ; output
    s_mul_i32 s44, {WAVE}, 12288
    v_add_u32 v16, s44, v4""")
    for sl in range(1, 4):
        k(f's_xor_b32 s44, {WAVE}, {sl}\n s_mul_i32 s44, s44, 12288\n s_add_u32 s44, s44, {4096*(sl-1)}\n v_add_u32 v{12+sl}, s44, v4')

def p4(k):
    HR, HU, RD = 32, 40, 160
    def issue(u):
        for i in range(2): k(f'buffer_load_dwordx4 {A(8*u+4*i,4)}, v{5+i}, {RB}, s72 offen{LD}')
        k(f's_add_u32 s72, s72, 0x40000\n s_cmp_lt_u32 s72, {22*0x40000}\n s_cselect_b32 s72, s72, 0')
    PRE = OPT.get('p4pre', 8)
    for u in range(PRE): issue(u)
    issued = PRE
    for u in range(22):
        for sl in range(4):
            d = V(ACC+16*sl, 16)
            k(f'v_mfma_f32_32x32x16_bf16 {d}, {wd_reg(u, sl>>1)}, {A(8*u+4*(sl&1),4)}, {"0" if u==0 else d}')
            if sl == 0 and issued < 22: issue(issued); issued += 1
            if sl == 0 and u == 22 - PRE:
                for h in range(2): k(f'buffer_load_dwordx4 {V(HR+4*h,4)}, v7, {WSR}, s66 offen offset:{16*h}{LD}')
            if u == 21 and sl == 1:
                for r in range(8): k(f'v_lshlrev_b32 v{HU+2*r}, 16, v{HR+r}\n v_and_b32 v{HU+2*r+1}, 0xffff0000, v{HR+r}')
    stamp(k, 12) if False else None
    for sl in range(1, 4):
        for q in range(4): k(f'ds_write_b128 v{12+sl}, {V(ACC+16*sl+4*q,4)} offset:{1024*q}')
    for r in range(8): k(f'v_pk_add_f32 {V(ACC+2*r,2)}, {V(ACC+2*r,2)}, {V(HU+2*r,2)}')
    k.wait(lg=0); k('s_barrier')
    for j in (0, 1, 4, 5, 8, 9, 2, 3, 6, 7, 10, 11): k(f'ds_read_b128 {V(RD+4*j,4)}, v16 offset:{1024*j}')
    for h in range(2):
        for sl in range(3):
            for r in range(4*h, 4*h+4): k(f'v_pk_add_f32 {V(ACC+2*r,2)}, {V(ACC+2*r,2)}, {V(RD+16*sl+2*r,2)}')
        for r in range(4*h, 4*h+4): k(f'v_cvt_pk_bf16_f32 v{HR+r}, v{ACC+2*r}, v{ACC+2*r+1}')
        k(f'buffer_store_dwordx4 {V(HR+4*h,4)}, v12, {RA}, s67 offen offset:{16*h}')

def fused():
    k = K()
    prologue(k)
    k(f's_cmp_ge_u32 s2, {NZ}\n s_cbranch_scc1 L_notz')
    st0 = k.state()
    p1_z(k)
    k.label('L_join1')
    k.vm = [set()] * 40; k.lg = []
    p2_pre_loads(k)
    stamp(k, 3)
    grid_barrier(k, 1, 17, lambda: [p2_negs(k, b) for b in (B1, A2, B3, A4)])
    k('s_barrier')
    stamp(k, 4)
    keep = p2(k)
    p3_pre(k)
    stamp(k, 6)
    grid_barrier(k, 2, keep)
    k('s_barrier')
    stamp(k, 7)
    k(f's_cmp_eq_u32 {WAVE}, 3\n s_cbranch_scc1 L_p3h')
    st3 = k.state()
    p3_body(k, False)
    k.label('L_join3')
    k.fence()
    p4_pre(k)
    rb_sync(k)
    k('s_barrier')
    stamp(k, 11)
    p4(k)
    stamp_out(k, 12)
    k.label('L_end'); k('s_endpgm')
    k.restore(st3); k.label('L_p3h'); p3_body(k, True); k('s_branch L_join3')
    k.restore(st0); k.label('L_notz')
    k(f's_cmp_ge_u32 s2, {NC0}\n s_cbranch_scc1 L_p1c')
    st1 = k.state()
    p1_w(k); k('s_branch L_join1')
    k.restore(st1); k.label('L_p1c'); p1_c(k); k('s_branch L_join1')
    o = header()
    o += f'; @launch grid=(256,1,1) block=(256,1,1) lds={STATL+4096}\n'
    o += '.amdgcn_target "amdgcn-amd-amdhsa--gfx950"\n.text\n' + k.text()
    o += tables_text() + 'L_image_end:\n'
    o += '.section .rodata,"a"\n.p2align 6\n' + kd(KN, k)
    return o

if __name__ == '__main__':
    out = sys.argv[1]
    for a in sys.argv[2:]:
        key, _, val = a.partition('=')
        OPT[key] = eval(val) if val else True
    open(out, 'w').write(fused())
```

```python
import numpy as np
S, D, F = 2048, 512, 1376

def f2bf(x):
    u = np.ascontiguousarray(x, np.float32).view(np.uint32).astype(np.uint64)
    return (((u + 0x7FFF + ((u >> 16) & 1)) >> 16) & 0xFFFF).astype(np.uint16)
def bf2f(u): return (np.asarray(u).astype(np.uint32) << 16).view(np.float32)
def f2h(x): return np.asarray(x, np.float64).astype(np.float16).view(np.uint16)
def h2f(u): return np.asarray(u).view(np.float16).astype(np.float32)

import os
ZT_STRIDE = int(os.environ.get("ZS", 8448))
WT_STRIDE = int(os.environ.get("WS", 8448))
off = 0x10000
CNT, FLG, RBF = 0, 4096, 0x10000
off = 0x20000
def alloc(n):
    global off
    o = off; off = (off + n + 4095) // 4096 * 4096; return o
ZT = alloc(256 * 10240)
WT = alloc(256 * 10240)
SM = alloc(S * 8)
HT = alloc(512 * S * 2)
WP = alloc(192 * 16384)
WD = alloc(88 * 16384)
HF = alloc(86 * 65536)
HRES = alloc(S * D * 2)
STAMP = alloc(1 << 20)
WS_USED = off

def kd_of(c):
    s, j = c >> 4, c & 15
    if c == 0: return 256
    if j < 8: return s + 32 * j
    return (16 if s == 0 else 32 - s) + 32 * (j - 8)
KD = np.array([kd_of(c) for c in range(256)])
def s_of_m(m):
    w, g, bl, be, r = m >> 9, (m >> 7) & 3, (m >> 3) & 15, (m >> 2) & 1, m & 3
    return 32 * (16 * w + 4 * g + r) + 16 * be + bl
SOFM = np.array([s_of_m(m) for m in range(S)])
def rho(c, part): return 64 * (c >> 5) + 32 * part + (c & 31)

def basis():
    C = np.zeros((D, 512)); d = np.arange(D)
    for c in range(256):
        ph = 2 * np.pi * KD[c] * (d + 0.5) / 512
        if c == 0: C[:, rho(0, 1)] = -np.sin(ph) / np.sqrt(512)
        else:
            C[:, rho(c, 0)] = np.cos(ph) / 16; C[:, rho(c, 1)] = -np.sin(ph) / 16
    return C

L = np.arange(64); G_ = L >> 4; X_ = L & 15; E_ = np.arange(8)
def clean(a):
    a = np.where(np.abs(a) < 1e-12, 0.0, a); return a + 0.0
def t_FA():
    d1 = 16 * (E_[None, :] >> 2) + 4 * G_[:, None] + (E_[None, :] & 3)
    th = 2 * np.pi * X_[:, None] * d1 / 32
    re = np.cos(th); im = np.where(X_[:, None] == 0, np.cos(np.pi * d1), -np.sin(th))
    return f2bf(clean(np.stack([re, im])))
def t_GB(zpath):
    out = np.zeros((16, 2, 64, 8))
    for s in range(16):
        for l in range(64):
            g, j = l >> 4, l & 15; c = 16 * s + j
            for e in range(8):
                d2, comp = 4 * g + (e & 3), e >> 2
                ph = 2 * np.pi * KD[c] * (d2 + 0.5) / 512; co, si = np.cos(ph), np.sin(ph)
                if c == 0:
                    v = (-si / np.sqrt(2) if comp == 0 else 0.0)
                    re, im = (v, 0.0) if zpath else (0.0, v)
                elif s == 0:
                    use = (comp == 0) if j < 8 else (comp == 1)
                    re, im = (co, -si) if use else (0.0, 0.0)
                elif j < 8: re, im = (co, -si) if comp == 0 else (si, co)
                else: re, im = (co, -si) if comp == 0 else (-si, -co)
                out[s, 0, l, e] = re; out[s, 1, l, e] = im
    return f2h(clean(out / 4)) if zpath else f2bf(clean(out / 16))
def cs_frag(x, y, n, sgn, scale):
    th = 2 * np.pi * x[:, None] * y / n
    return clean(np.concatenate([np.cos(th), sgn * np.sin(th)], axis=1) * scale)
R4 = np.arange(4)
def t_B1(): return f2h(np.array([[cs_frag(16*w + X_, 16*((u+w) % 4) + 4*G_[:, None] + R4, 64, 1, 1/8) for u in range(4)] for w in range(4)]))
def t_A4(): return f2bf(np.array([[cs_frag(16*w + X_, 16*((u+w) % 4) + 4*G_[:, None] + R4, 64, -1, 1/8) for u in range(4)] for w in range(4)]))
def t_A2(): return f2h(np.array([[cs_frag(16*t + X_, 16*b + 4*G_[:, None] + R4, 32, 1, 1/8) for b in range(2)] for t in range(2)]))
def t_B3(): return f2bf(np.array([[cs_frag(16*b + X_, 16*t + 4*G_[:, None] + R4, 32, -1, 1/4) for t in range(2)] for b in range(2)]))

def model(ref):
    x = bf2f(ref['A_x']).reshape(S, D).astype(np.float64)
    wr = bf2f(ref['A_w_r']).astype(np.float64); wi = bf2f(ref['A_w_i']).astype(np.float64)
    wg = bf2f(ref['B_w_gate']).astype(np.float64); wu = bf2f(ref['B_w_up']).astype(np.float64); wd = bf2f(ref['B_w_down']).astype(np.float64)
    M = {}
    mu = x.mean(1); sig = np.sqrt(x.var(1) + 1e-5); z = (x - mu[:, None]) / sig[:, None]
    M['SM'] = np.stack([a[SOFM].reshape(16, 4, 4, 2, 4).transpose(0, 3, 1, 2, 4).reshape(128, 16) for a in (sig, mu)], 1)
    C = basis(); Zh = z @ C
    Zc = np.stack([Zh[:, rho(c, 0)] + 1j * Zh[:, rho(c, 1)] for c in range(256)], 1)
    Zc[:, 0] = Zh[:, rho(0, 1)]
    Zr = Zc.reshape(4, 4, 4, 2, 16, 256)
    zt = np.concatenate([Zr.real.transpose(5, 0, 3, 1, 4, 2), Zr.imag.transpose(5, 0, 3, 1, 4, 2)], axis=-1)
    M['ZT'] = zt.reshape(256, -1)
    def wt(a): return a[:, 1:].reshape(2, 4, 4, 4, 16, 256).transpose(5, 0, 3, 1, 4, 2)
    M['WT'] = np.stack([wt(wr), wt(wi)], -1).reshape(256, -1)
    W = (wr + 1j * wi)[:, KD]
    Y = np.fft.ifft(np.fft.fft(Zc, axis=0) * W, axis=0)
    Hc = sig[:, None] * Zc + Y
    Hh = np.zeros((S, 512))
    for c in range(256):
        if c == 0: Hh[:, rho(0, 1)] = Hc[:, 0].real
        else: Hh[:, rho(c, 0)] = Hc[:, c].real; Hh[:, rho(c, 1)] = Hc[:, c].imag
    Hm = Hh[SOFM]
    M['HT'] = Hm.reshape(64, 32, 512).transpose(0, 2, 1)
    Wg = C.T @ wg; Wu = C.T @ wu
    kk = 32 * np.arange(16)[:, None, None] + 4 * np.arange(4)[None, :, None] + (16 * (E_ >> 2) + (E_ & 3))[None, None, :]
    wp = np.full((192, 16, 4, 16, 8), np.nan)
    for t in range(16):
        for i in range(16): wp[12 * t + 11, :, :, i, :] = C[16 * t + i][kk]
    for tau in range(172):
        q = tau + tau // 11; n = q % 3
        for mu_, Wm in enumerate((Wg, Wu)):
            T, r8 = (q - n + mu_, n) if n < 2 else (q, mu_)
            for ph in range(8): wp[T, :, :, 8 * r8 + ph, :] = Wm[:, 8 * tau + ph][kk]
    M['WP'] = wp
    i = np.arange(32); q = i >> 3; nloc = 16 * ((i >> 2) & 1) + 4 * (i & 3) + q
    wdp = np.concatenate([wd, np.zeros((32, D))])
    M['WD'] = wdp.reshape(22, 4, 2, 8, 8, 2, 32)[..., nloc].transpose(4, 1, 0, 5, 2, 6, 3)
    h = Hm @ C.T + mu[SOFM][:, None]
    hb = h.reshape(S, 32, 16)
    M['HRES'] = np.stack([np.stack([hb[:, cg], hb[:, 31 - cg]]) for cg in range(16)]).reshape(16, 2, S, 2, 8).transpose(0, 1, 3, 2, 4)
    M['h'] = h
    rstd = 1 / np.sqrt((Hm ** 2).sum(1) / 512 + 1e-5)
    g = (Hm @ Wg) * rstd[:, None]; u = (Hm @ Wu) * rstd[:, None]
    H = 0.5 * g * (1 + np.tanh(np.sqrt(2 / np.pi) * (g + 0.044715 * g ** 3))) * u
    M['HF'] = H.reshape(64, 32, 86, 2, 8).transpose(2, 0, 3, 1, 4)
    out = np.zeros((S, D)); out[SOFM] = h + H @ wd
    M['out'] = out
    return M

if __name__ == '__main__':
    ref = np.load('ref0.npz'); M = model(ref)
    o = bf2f(ref['out']).reshape(S, D)
    e = M['out'] - o
    print('model vs torch ref: max', np.abs(e).max(), 'rms', np.sqrt((e ** 2).mean()), 'thr', 8 / 256 * np.abs(o).max())
    hh = np.zeros((S, D)); hh[SOFM] = M['h']
    print('h err', np.abs(hh - bf2f(ref['h']).reshape(S, D)).max())
    FA = bf2f(t_FA()).astype(np.float64); GB = h2f(t_GB(True)).astype(np.float64)
    z = np.random.randn(512); T = np.zeros((2, 16, 16))
    d1 = 16 * (E_[None, :] >> 2) + 4 * np.arange(4)[:, None] + (E_[None, :] & 3)
    for comp in range(2):
        for sl in range(16):
            for d2 in range(16):
                T[comp, sl, d2] = sum(FA[comp, 16 * g + sl, e] * z[16 * d1[g, e] + d2] for g in range(4) for e in range(8))
    Zh = z @ basis(); err = 0
    for sl in range(16):
        for j in range(16):
            for o_ in range(2):
                v = sum(GB[sl, o_, 16 * g + j, e] * T[e >> 2, sl, 4 * g + (e & 3)] / 4 for g in range(4) for e in range(8))
                c = 16 * sl + j
                want = Zh[rho(c, o_)] if c else (Zh[rho(0, 1)] if o_ == 0 else 0)
                err = max(err, abs(v - want))
    print('two-step table err', err, 'ws used', WS_USED)
```

```python
import re, copy

REG_RE = re.compile(r'\b([vas])(\d+)\b|\b([vas])\[(\d+):(\d+)\]|\b(vcc|exec|m0|scc)\b')
TRANS = ('v_exp_f32','v_log_f32','v_rcp_f32','v_rsq_f32','v_sqrt_f32','v_sin_f32','v_cos_f32')

def regs_of(op):
    out = []
    for m in REG_RE.finditer(op):
        if m.group(1): out.append((m.group(1), int(m.group(2))))
        elif m.group(3): out += [(m.group(3), i) for i in range(int(m.group(4)), int(m.group(5))+1)]
        else: out.append((m.group(6), 0))
    return out

def split_ops(s):
    ops, depth, cur = [], 0, ''
    for ch in s:
        if ch in '[(': depth += 1
        if ch in '])': depth -= 1
        if ch == ',' and depth == 0: ops.append(cur.strip()); cur = ''
        else: cur += ch
    if cur.strip(): ops.append(cur.strip())
    return ops

class Ins:
    def __init__(self, text):
        self.text = text
        t = text.split(';')[0].strip()
        p = t.split(None, 1)
        self.mn = mn = p[0]
        rest = p[1] if len(p) > 1 else ''
        ops = split_ops(rest)
        self.ops = ops
        self.w = []; self.r = []; self.kind = 'other'
        self.srcc = []; self.ab = []; self.passes = 0; self.data = []
        self.dpp = any(x in rest for x in ('row_', 'quad_perm', 'wave_')) and mn.startswith('v_')
        R = regs_of
        if mn.startswith('v_mfma'):
            self.kind = 'mfma'
            self.passes = 8 if '32x32' in mn else 4
            self.w = R(ops[0]); self.ab = R(ops[1]) + R(ops[2]); self.srcc = R(ops[3]); self.r = self.ab + self.srcc
        elif mn.startswith('v_permlane') and 'swap' in mn:
            self.kind = 'valu'; self.w = R(ops[0]) + R(ops[1]); self.r = list(self.w)
        elif mn.startswith('v_cmp'):
            self.kind = 'valu'; self.w = R(ops[0]); self.r = sum((R(o) for o in ops[1:]), [])
        elif mn.startswith('v_'):
            self.kind = 'valu'
            nd = 2 if re.match(r'v_(add|sub|subrev|addc|subb)_co', mn) or mn.startswith('v_mad_u64') else 1
            self.w = sum((R(o) for o in ops[:nd]), []); self.r = sum((R(o) for o in ops[nd:]), [])
            if mn.startswith(('v_fmac', 'v_dot2c', 'v_pk_fmac', 'v_writelane')) or self.dpp: self.r += R(ops[0])
        elif mn.startswith(('buffer_load', 'global_load')):
            self.kind = 'vmem'
            if ' lds' in ' ' + rest or 'load_lds' in mn:
                self.r = sum((R(o) for o in ops), []) + [('m0', 0)]; self.lds_dma = True
            else:
                self.w = R(ops[0]); self.r = sum((R(o) for o in ops[1:]), [])
        elif mn.startswith(('buffer_store', 'buffer_atomic')):
            self.kind = 'vmem'; self.r = sum((R(o) for o in ops), []); self.data = R(ops[0])
            if 'atomic' in mn and ' sc0' in rest: self.w = R(ops[0])
        elif mn.startswith(('global_store', 'global_atomic')):
            self.kind = 'vmem'; self.r = sum((R(o) for o in ops), []); self.data = R(ops[1])
        elif mn.startswith('buffer_') :
            self.kind = 'vmem'
        elif mn.startswith(('ds_read', 'ds_bpermute', 'ds_swizzle')):
            self.kind = 'ds'; self.w = R(ops[0]); self.r = sum((R(o) for o in ops[1:]), [])
        elif mn.startswith('ds_'):
            self.kind = 'ds'; self.r = sum((R(o) for o in ops), [])
        elif mn.startswith(('s_load', 's_memtime', 's_memrealtime', 's_buffer_load')):
            self.kind = 'smem'; self.w = R(ops[0]); self.r = sum((R(o) for o in ops[1:]), [])
        elif mn.startswith(('s_cmp', 's_cbranch', 's_branch', 's_waitcnt', 's_nop', 's_barrier', 's_endpgm', 's_sleep', 's_setprio', 's_bitcmp')):
            self.kind = 'salu'; self.r = sum((R(o) for o in ops), [])
        elif mn.startswith('s_'):
            self.kind = 'salu'; self.w = R(ops[0]); self.r = sum((R(o) for o in ops[1:]), [])
            if 'saveexec' in mn: self.w += [('exec', 0)]
        else:
            raise ValueError('unknown instruction ' + text)
        self.wide_store = self.kind == 'vmem' and bool(self.data) and len(self.data) >= 3
        self.trans = mn.startswith(TRANS)
        self.dot = mn.startswith('v_dot')

def need(p, c):
    n = 0
    pw = set(p.w); cr = set(c.r); cw = set(c.w)
    vec = lambda s: {x for x in s if x[0] in 'va' and x[0] != 'vcc'}
    if p.kind == 'valu':
        vw = vec(pw); sw = pw - vw
        if vw & cr:
            if c.kind == 'mfma': n = max(n, 2)
            if c.dpp: n = max(n, 2)
            if c.mn.startswith('v_permlane'): n = max(n, 2)
            if c.mn.startswith(('v_readlane', 'v_readfirstlane')): n = max(n, 1)
            if p.trans: n = max(n, 1)
            if 'op_sel' in p.text and not p.mn.startswith(('v_pk_', 'v_fma_mix_f32')): n = max(n, 1)
        if p.dot and (vw & (cr | cw)):
            same_c = c.mn == p.mn and not (vw & set(sum((regs_of(o) for o in c.ops[1:3]), [])))
            if not same_c: n = max(n, 3)
        if sw & cr:
            if c.kind == 'valu': n = max(n, 4 if c.mn.startswith(('v_readlane', 'v_writelane')) else 2)
            if c.kind == 'vmem': n = max(n, 5)
            if c.kind in ('salu', 'smem'): n = max(n, 1)
        if ('vcc', 0) in pw and c.mn.startswith('s_cbranch_vcc'): n = max(n, 1)
    if p.kind == 'mfma':
        big = 12 if p.passes == 8 else 8
        if c.kind == 'mfma':
            if pw & set(c.ab): n = max(n, big)
            if pw & set(c.srcc) and not (c.srcc == p.w and c.passes == p.passes): n = max(n, p.passes + 2)
            if pw & cw and not (c.w == p.w): n = max(n, p.passes + 2)
        elif pw & (cr | cw): n = max(n, big)
        if c.kind == 'valu' and set(p.srcc) & cw: n = max(n, p.passes - 1)
    if p.kind == 'salu' and ('m0', 0) in pw and ('m0', 0) in cr and c.kind == 'vmem': n = max(n, 1)
    if p.wide_store and set(p.data) & cw: n = max(n, 2)
    return n

class K:
    def __init__(self):
        self.out = []
        self.hist = []
        self.pos = 0
        self.vm = []
        self.lg = []
        self.maxv = 0; self.maxa = -1; self.maxs = 0; self.nvm = 0; self.nlg = 0; self.sprinkle = []; self.every = 64; self.since = 0
    def raw(self, text): self.out.append(text)
    def comment(self, t): self.out.append('    ; ' + t)
    def _emit(self, text, states=1):
        self.out.append('    ' + text); self.pos += states
    def state(self): return copy.deepcopy((self.hist[-24:], self.pos, self.vm, self.lg, self.nvm, self.nlg))
    def restore(self, st): self.hist, self.pos, self.vm, self.lg, self.nvm, self.nlg = copy.deepcopy(st)
    def nop(self, n):
        while n > 0:
            k = min(n, 16); self._emit(f's_nop {k-1}', k); n -= k
    def wait(self, vm=None, lg=None):
        parts = []
        if vm is not None and len(self.vm) > vm:
            parts.append(f'vmcnt({min(vm,63)})'); self.vm = self.vm[len(self.vm)-vm:] if vm else []
        if lg is not None and len(self.lg) > lg:
            if any(k == 'smem' for k, _ in self.lg): lg = 0
            parts.append(f'lgkmcnt({min(lg,15)})'); self.lg = self.lg[len(self.lg)-lg:] if lg else []
        if parts: self._emit('s_waitcnt ' + ' '.join(parts))
    def fence(self):
        n = 0
        for p, at in self.hist[-16:]:
            lim = (12 if p.passes == 8 else 8) if p.kind == 'mfma' else (5 if p.kind == 'valu' else 2)
            n = max(n, lim - (self.pos - at))
        self.nop(n)
    def label(self, name): self.out.append(name + ':')
    def __call__(self, text):
        for line in text.strip().split('\n'):
            line = line.strip()
            if not line or line.startswith(';'): continue
            self.ins(line)
    def ins(self, text):
        c = Ins(text)
        touched = set(c.r) | set(c.w)
        for f, i in touched:
            if f == 'v': self.maxv = max(self.maxv, i)
            if f == 'a': self.maxa = max(self.maxa, i)
            if f == 's': self.maxs = max(self.maxs, i)
        if c.mn == 's_waitcnt':
            m = re.search(r'vmcnt\((\d+)\)', text)
            if m: n = int(m.group(1)); self.vm = self.vm[max(0, len(self.vm)-n):] if n else []
            m = re.search(r'lgkmcnt\((\d+)\)', text)
            if m: n = int(m.group(1)); self.lg = self.lg[max(0, len(self.lg)-n):] if n else []
            self._emit(text); return
        vmn = lgn = None
        for i, w in enumerate(self.vm):
            if w & touched: vmn = len(self.vm) - 1 - i
        for i, (_, w) in enumerate(self.lg):
            if w & touched: lgn = len(self.lg) - 1 - i
        self.wait(vmn, lgn)
        n = 0
        for p, at in self.hist[-24:]:
            n = max(n, need(p, c) - (self.pos - at))
        self.nop(n)
        st = 1
        if c.mn == 's_nop': st = int(c.ops[0]) + 1
        self._emit(text, st)
        self.hist.append((c, self.pos))
        if c.kind == 'vmem': self.vm.append(set(c.w)); self.nvm += 1
        if c.kind in ('ds', 'smem'): self.lg.append((c.kind, set(c.w))); self.nlg += 1
        if self.sprinkle and not c.mn.startswith(('s_cmp', 's_cbranch')):
            self.since += {'mfma': 4 * c.passes}.get(c.kind, 8 if c.trans or 'permlane' in c.mn else 4.5) + 4 * n
            if self.since >= self.every * (1 if c.kind == 'mfma' else getattr(self, 'lazy', 1)):
                self.since = 0; sp, self.sprinkle = self.sprinkle, []
                self.ins(sp[0]); self.sprinkle = sp[1:]
    def text(self): return '\n'.join(self.out) + '\n'
```

```python
import sys, math, struct
import numpy as np
from dsl import K
from design import *
from gen import V, A, Sg, fbits, TBL, tables_text, header, kd, NAME, srd, cmul, TPAD

OPT = dict(stamps=False, gblate=True, tpost=True)
ST, LD = ' sc1', ' sc1'
WSR, RA, RB, RC = 's[24:27]', 's[28:31]', 's[32:35]', 's[36:39]'
WAVE = 's40'
KN = NAME + '_kernel'
SPIN = 400000
TW1, TW2 = 112, 128
B1, A4, A2, B3 = 144, 168, 192, 216
FA, GB = 200, 208
NZ, NC0, NI0 = 128, 216, 248
uid = [0]

def stamp(k, i, pm=False):
    if OPT.get('pst') and 1 <= i <= 5 and not pm: return
    if OPT.get('zdet') and 1 <= i <= 11 and pm != 'z': return
    if pm == 'z' and not OPT.get('zdet'): return
    if OPT.get('bdet') and 1 <= i <= 11 and pm != 'b': return
    if pm == 'b' and not OPT.get('bdet'): return
    if OPT['stamps']: k(f's_{"memtime" if OPT.get("pst") else "memrealtime"} s[{76+2*i}:{77+2*i}]')
def stamp_out(k, n):
    if not OPT['stamps']: return
    k.wait(vm=0, lg=0); stamp(k, n); n += 1; k.wait(lg=0)
    k(f's_lshl_b32 s44, s2, 8\n s_lshl_b32 s45, {WAVE}, 6\n s_add_u32 s44, s44, s45\n s_add_u32 s44, s44, {STAMP}')
    for i in range(16): k(f'v_mov_b32 v{8+i}, s{76+2*i}' if i < n else f'v_mov_b32 v{8+i}, 0')
    k('v_mov_b32 v24, 0\n s_mov_b64 exec, 1')
    for q in range(4): k(f'buffer_store_dwordx4 {V(8+4*q,4)}, v24, {WSR}, s44 offen offset:{16*q}')

def wsrd(k, base, end):
    k(f's_mov_b32 s{base}, s24\n s_mov_b32 s{base+1}, s25\n s_mov_b32 s{base+2}, {end}\n s_mov_b32 s{base+3}, 0x20000')

def tbl_addr(k, vp, soff):
    k(f"""s_add_u32 s46, s42, {soff}
    s_addc_u32 s47, s43, 0
    v_mov_b32 v{vp+1}, s47
    v_add_co_u32 v{vp}, vcc, s46, v4
    v_addc_co_u32 v{vp+1}, vcc, 0, v{vp+1}, vcc""")

def gb_loads(k):
    for q in range(8): k(f'global_load_dwordx4 {A(GB+4*q,4)}, v[8:9], off offset:{1024*q-4096}')

def prologue(k):
    k.raw(f'.globl {KN}\n.p2align 8\n.type {KN},@function\n{KN}:')
    stamp(k, 0)
    k(f"""s_load_dwordx16 s[4:19], s[0:1], 0
    s_load_dwordx4 s[20:23], s[0:1], 64
    s_getpc_b64 s[42:43]""")
    k.raw('L_pc:')
    k(f"""s_cmp_ge_u32 s2, 256
    s_cbranch_scc1 L_end
    v_lshrrev_b32 v5, 6, v0
    v_and_b32 v1, 63, v0
    v_readfirstlane_b32 {WAVE}, v5
    s_lshr_b32 s44, s2, 3
    v_lshl_add_u32 v5, v5, 5, s44
    v_lshlrev_b32 v6, 6, v1
    v_lshl_add_u32 v5, v5, 12, v6""")
    k.raw('    v_min_u32 v5, L_image_end-L_pc-4, v5'); k.pos += 1
    k(f"""v_mov_b32 v7, s43
    v_add_co_u32 v6, vcc, s42, v5
    v_addc_co_u32 v7, vcc, 0, v7, vcc
    global_load_dword v255, v[6:7], off
    v_bfe_u32 v2, v0, 4, 2
    v_and_b32 v3, 15, v0
    v_lshlrev_b32 v4, 4, v1""")
    k.raw('    s_add_u32 s42, s42, tables-L_pc\n    s_addc_u32 s43, s43, 0'); k.pos += 2
    k(f's_cmp_ge_u32 s2, {NC0}\n s_cbranch_scc1 L_p1c')
    global st_c
    st_c = k.state()
    tbl_addr(k, 6, TBL['FA'])
    for c in range(2): k(f'global_load_dwordx4 {A(FA+4*c,4)}, v[6:7], off offset:{1024*c}')
    k(f"""s_cmp_lt_u32 s2, {NZ}
    s_cselect_b32 s45, {TBL["GBZ"]+4096}, {TBL["GBW"]+4096}
    s_lshl_b32 s44, {WAVE}, 13
    s_add_u32 s44, s44, s45""".replace(str(TBL["GBW"]+4096), 's47').replace('s_cmp_lt', f's_mov_b32 s47, {TBL["GBW"]+4096}\n s_cmp_lt'))
    tbl_addr(k, 8, 's44')
    if not OPT.get('gblate'): gb_loads(k)

def go_load(k, b):
    k(f'v_mov_b32 v{b}, 0\n global_load_dword v{b+4}, v{b}, s[20:21]{LD}')
def arrive_issue(k, b, cnt, go):
    k(f'v_mov_b32 v{b}, 0\n v_mov_b32 v{b+1}, 1\n s_mov_b64 exec, 1')
    if go:
        uid[0] += 1; u = uid[0]
        k('s_mov_b32 s46, 0')
        k.label(f'L_go{u}')
        k(f"""s_waitcnt vmcnt(0)
        v_cmp_ne_u32 vcc, 0, v{b+4}
        s_add_u32 s46, s46, 1
        s_cbranch_vccnz L_gone{u}
        global_load_dword v{b+4}, v{b}, s[20:21]{LD}
        s_cmp_lt_u32 s46, {SPIN}
        s_cbranch_scc1 L_go{u}""")
        k.label(f'L_gone{u}')
    k(f'buffer_atomic_add v{b+1}, v{b}, {WSR}, {cnt} offen sc0 sc1')
def arrive_check(k, b, flg, last, val):
    uid[0] += 1; u = uid[0]
    k(f"""s_mov_b64 exec, 0xff
    v_lshlrev_b32 v{b+2}, 11, v1
    v_mov_b32 v{b}, {val}
    v_readfirstlane_b32 s47, v{b+1}
    s_cmp_lg_u32 s47, {last}
    s_cbranch_scc1 L_nl{u}""")
    st = k.state()
    k(f'buffer_store_dword v{b}, v{b+2}, {WSR}, {flg} offen{ST}')
    k.restore(st)
    k.label(f'L_nl{u}')
def poll(k, b, val):
    uid[0] += 1; u = uid[0]
    k(f"""s_mov_b64 exec, 0xff
    v_lshlrev_b32 v{b+3}, 8, v1
    s_and_b32 s44, s2, 7
    s_lshl_b32 s44, s44, 11
    s_add_u32 s44, s44, {FLG}
    s_mov_b32 s46, 0""")
    k.label(f'L_bp{u}')
    k(f"""buffer_load_dword v{b+1}, v{b+3}, {WSR}, s44 offen{LD}
    s_add_u32 s46, s46, 1
    s_waitcnt vmcnt(0)
    v_cmp_gt_u32 vcc, {val}, v{b+1}
    s_cmp_gt_u32 s46, {SPIN}
    s_cbranch_scc1 L_bd{u}
    s_cbranch_vccnz L_bp{u}""")
    k.label(f'L_bd{u}')
    k('s_mov_b64 exec, -1')
def only_wave(k, w, fn):
    uid[0] += 1; u = uid[0]
    k(f's_cmp_lg_u32 {WAVE}, {w}\n s_cbranch_scc1 L_ow{u}')
    st = k.state(); fn(); k('s_mov_b64 exec, -1'); k.restore(st); k.label(f'L_ow{u}')

def p2_tables(k, vp=26):
    k(f's_lshl_b32 s44, {WAVE}, 13\n s_add_u32 s44, s44, {TBL["P2W"]+4096}')
    tbl_addr(k, vp, 's44'); tbl_addr(k, vp+2, TBL['P2S']+4096)
    o = [f'global_load_dwordx4 {V(B1+6*u+2,4)}, {V(vp,2)}, off offset:{1024*u-4096}' for u in range(4)]
    o += [f'global_load_dwordx4 {V(A2+6*u+2,4)}, {V(vp+2,2)}, off offset:{1024*u-4096}' for u in range(4)]
    o += [f'global_load_dwordx4 {V(B3+6*u+2,4)}, {V(vp+2,2)}, off offset:{1024*u}' for u in range(4)]
    o += [f'global_load_dwordx4 {V(A4+6*u+2,4)}, {V(vp,2)}, off offset:{1024*u}' for u in range(4)]
    return o
def flush(k):
    sp, k.sprinkle = k.sprinkle, []
    for t in sp: k(t)

def p1_z(k):
    X, DA, TR, SS, WL, WO = 32, 48, 80, 96, 104, 120
    k(f"""s_and_b32 s44, s2, 7
    s_lshr_b32 s45, s2, 4
    s_lshl_b32 s45, s45, 3
    s_add_u32 s44, s44, s45
    s_lshl_b32 s44, s44, 1
    s_bfe_u32 s45, s2, 0x10003
    s_add_u32 s60, s44, s45            ; (t,g,beta,bq)
    s_lshr_b32 s61, s60, 3
    s_lshl_b32 s61, s61, 7
    s_and_b32 s44, s60, 7
    s_lshl_b32 s44, s44, 2
    s_add_u32 s44, s44, s61
    s_add_u32 s44, s44, {WAVE}
    s_lshl_b32 s56, s44, 10
    s_add_u32 s57, s56, 0x8000
    s_add_u32 s58, s56, 0x10000
    s_add_u32 s59, s56, 0x18000
    s_mov_b32 s38, {S*D*2}
    s_mov_b32 s39, 0x20000
    s_bfe_u32 s48, s2, 0x20003
    s_and_b32 s44, s2, 7
    s_lshl_b32 s44, s44, 2
    s_add_u32 s48, s48, s44
    s_and_b32 s44, s2, 0x60
    s_add_u32 s48, s48, s44
    s_add_u32 s48, s48, 128""")
    wt_rows(k, 's48', 49)
    k(f's_mul_i32 s44, {WAVE}, {64*514}\n s_add_u32 s49, s49, s44')
    k.wait(lg=0)
    stamp(k, 1, 'z')
    k('s_mov_b32 s36, s4\n s_and_b32 s37, s5, 0xffff')
    for i in range(4): k(f'buffer_load_dwordx4 {V(X+4*i,4)}, v4, {RC}, s{56+i} offen')
    k(WSRDS)
    k(f'buffer_load_dwordx4 {V(WL,4)}, v11, {RA}, s49 offen\n buffer_load_dwordx4 {V(WL+4,4)}, v11, {RB}, s49 offen')
    gb_loads(k)
    wt_dest(k, 's48', 50)
    k(f"""s_lshl_b32 s44, {WAVE}, 2
    s_add_u32 s44, s44, 0xa000
    v_add_u32 v12, s44, v12
    s_lshl_b32 s44, {WAVE}, 5
    v_xor_b32 v13, s44, v4
    s_lshl_b32 s44, {WAVE}, 11
    s_add_u32 s44, s44, 0xa000
    v_add_u32 v13, s44, v13
    v_xor_b32 v14, 16, v13
    s_mul_i32 s44, {WAVE}, {16*WT_STRIDE}
    s_add_u32 s50, s50, s44
    s_add_u32 s51, s50, {8*WT_STRIDE}""")
    srd(k, 24, 22, WS_USED)
    k(f"""s_lshl_b32 s44, {WAVE}, 12
    v_add_u32 v30, s44, v4
    v_lshrrev_b32 v31, 1, v4
    v_add_u32 v31, s44, v31
    v_mul_u32_u24 v6, {TPAD}, v3
    v_lshl_add_u32 v6, v2, 8, v6
    s_lshl_b32 s44, {WAVE}, 6
    s_add_u32 s44, s44, 16384
    v_add_u32 v6, s44, v6
    s_mul_i32 s44, {WAVE}, {4*TPAD}
    s_add_u32 s44, s44, 16384
    v_add_u32 v7, s44, v4
    v_cmp_eq_u32 vcc, 0, v3
    v_cndmask_b32 v8, 0, 1.0, vcc
    s_mov_b32 s62, 0x3f803f80
    v_mul_u32_u24 v9, {ZT_STRIDE}, v3
    v_lshl_add_u32 v9, v2, 4, v9
    s_lshr_b32 s44, s60, 5
    s_lshl_b32 s44, s44, 11
    s_bfe_u32 s45, s60, 0x10002
    s_lshl_b32 s46, s45, 10
    s_add_u32 s44, s44, s46
    s_bfe_u32 s46, s60, 0x20003
    s_lshl_b32 s46, s46, 8
    s_add_u32 s44, s44, s46
    s_and_b32 s46, s60, 3
    s_lshl_b32 s47, s46, 6
    s_add_u32 s44, s44, s47
    s_lshl_b32 s63, s60, 7
    s_add_u32 s63, s63, {SM}
    s_mul_i32 s47, {WAVE}, {64*ZT_STRIDE}
    s_add_u32 s44, s44, s47
    s_add_u32 s64, s44, {ZT}
    s_add_u32 s65, s64, {16*ZT_STRIDE}
    s_add_u32 s66, s64, {32*ZT_STRIDE}
    s_add_u32 s67, s64, {48*ZT_STRIDE}
    s_lshl_b32 s44, {WAVE}, 4
    s_add_u32 s44, s44, 0x9000
    v_lshl_add_u32 v10, v2, 2, s44""")
    tl = p2_tables(k)
    if True:
        stamp(k, 2, 'z')
        for i in range(4):
            k(f'ds_write_b128 v30, {V(X+4*i,4)} offset:{1024*i}')
            if i == 0: stamp(k, 1)
            for r in range(2): k(f'ds_read_b64_tr_b16 {V(TR+4*i+2*r,2)}, v31 offset:{1024*i+512*r}')
            for j in range(4):
                k(f'v_dot2_f32_bf16 v{SS+i}, v{X+4*i+j}, s62, {"0" if j==0 else V(SS+i)}')
                k(f'v_dot2_f32_bf16 v{SS+4+i}, v{X+4*i+j}, v{X+4*i+j}, {"0" if j==0 else V(SS+4+i)}')
        stamp(k, 3, 'z')
        k.sprinkle = tl; k.every = OPT.get('tev', 28); k.since = 100
        stamp(k, 4, 'z')
        mf = [f'v_mfma_f32_16x16x32_bf16 {V(DA+8*i+4*c,4)}, {V(TR+4*i,4)}, {A(FA+4*c,4)}, 0' for i in range(4) for c in range(2)]
        k(mf.pop(0)); k(mf.pop(0))
        for b in (SS, SS+4):
            k(f'v_permlane32_swap_b32 v{b}, v{b+2}\n v_permlane32_swap_b32 v{b+1}, v{b+3}')
        for b in (SS, SS+4):
            k(f'v_add_f32 v{b}, v{b}, v{b+2}\n v_add_f32 v{b+1}, v{b+1}, v{b+3}')
        k(mf.pop(0))
        for b in (SS, SS+4): k(f'v_permlane16_swap_b32 v{b}, v{b+1}')
        for b in (SS, SS+4): k(f'v_add_f32 v{b}, v{b}, v{b+1}')
        for sh in (8, 4, 2, 1):
            k(mf.pop(0))
            for b in (SS, SS+4): k(f'v_add_f32_dpp v{b}, v{b}, v{b} row_ror:{sh} row_mask:0xf bank_mask:0xf')
        k(mf.pop(0))
        k(f"""v_mul_f32 v{SS}, {fbits(1/512)}, v{SS}
        v_mul_f32 v{SS+4}, {fbits(1/512)}, v{SS+4}
        v_fma_f32 v{SS+4}, -v{SS}, v{SS}, v{SS+4}
        v_max_f32 v{SS+4}, 0, v{SS+4}
        v_add_f32 v{SS+4}, {fbits(1e-5)}, v{SS+4}
        v_rsq_f32 v{SS+1}, v{SS+4}
        v_mul_f32 v{SS+2}, {fbits(-8.0)}, v{SS}
        v_mul_f32 v{SS+2}, v{SS+2}, v{SS+1}
        v_mul_f32 v{SS+3}, {fbits(0.25)}, v{SS+1}""")
        for i in range(4):
            k(f'v_readlane_b32 s{68+2*i}, v{SS+3}, {16*i}\n v_readlane_b32 s{69+2*i}, v{SS+2}, {16*i}')
        for i in range(4):
            d = DA + 8*i
            k(f'v_mul_f32 v{TR}, s{69+2*i}, v8')
            for h in range(2):
                k(f'v_pk_mul_f32 {V(d+4+2*h,2)}, {V(d+4+2*h,2)}, {Sg(68+2*i,2)} op_sel_hi:[1,0]')
            for h in range(2):
                k(f'v_pk_fma_f32 {V(d+2*h,2)}, {V(d+2*h,2)}, {Sg(68+2*i,2)}, {V(TR,2)} op_sel_hi:[1,0,0]')
            for h in (2, 3, 0, 1): k(f'v_cvt_pk_f16_f32 v{X+4*i+h}, v{d+2*h}, v{d+2*h+1}')
            k(f'ds_write_b128 v6, {V(X+4*i,4)} offset:{16*i}')
        k(f"""v_mul_f32 v{SS+4}, v{SS+4}, v{SS+1}
        ds_write2_b32 v10, v{SS+4}, v{SS} offset0:0 offset1:16""")
        print('tables left', len(k.sprinkle)); flush(k)
        for i in range(8):
            k(f'v_perm_b32 v{WO+i}, v{WL+4+(i>>1)}, v{WL+(i>>1)}, s{53+(i&1)}')
            k(f'ds_write_b32 v12, v{WO+i} offset:{128*i}')
        k.wait(lg=0); k('s_barrier')
        if OPT.get('zst'): stamp(k, 1)
        stamp(k, 5, 'z')
        for q in range(4): k(f'ds_read_b128 {V(TR+4*q,4)}, v7 offset:{TPAD*q}')
        k(f'ds_read_b128 {V(SS,4)}, v4 offset:0x9000')
        for n in range(2): k(f'ds_read_b128 {V(WL+4*n,4)}, v{13+n} offset:{1024*n}')
        for q in range(4):
            for o in range(2): k(f'v_mfma_f32_16x16x32_f16 {V(DA+8*q+4*o,4)}, {V(TR+4*q,4)}, {A(GB+8*q+4*o,4)}, 0')
        k.wait(lg=0)
        for n in range(2): k(f'buffer_store_dwordx4 {V(WL+4*n,4)}, v11, {WSR}, s{50+n} offen{ST}')
        only_wave(k, 3, lambda: k(f's_mov_b64 exec, 0xff\n buffer_store_dwordx4 {V(SS,4)}, v4, {WSR}, s63 offen{ST}'))
        for q in range(4):
            for h in range(4): k(f'v_cvt_pk_f16_f32 v{X+4*q+h}, v{DA+8*q+2*h}, v{DA+8*q+2*h+1}')
            k(f'buffer_store_dwordx4 {V(X+4*q,4)}, v9, {WSR}, s{64+q} offen{ST}')
        stamp(k, 6, 'z')
        stamp(k, 2)

def p1_w(k):
    OP, DA = 32, 64
    TBASE = 32768
    k(f"""s_and_b32 s61, s2, 1               ; mu
    s_bfe_u32 s60, s2, 0x60001
    s_and_b32 s44, s60, 3
    s_lshl_b32 s44, s44, 1
    s_bfe_u32 s45, s60, 0x10002
    s_add_u32 s44, s44, s45
    s_andn2_b32 s45, s60, 7
    s_add_u32 s44, s44, s45
    s_cmp_lt_u32 s60, 40
    s_cselect_b32 s60, s44, s60        ; phi
    s_mul_i32 s44, {WAVE}, {4*2752}
    s_lshl_b32 s45, s60, 6
    s_add_u32 s62, s44, s45
    v_lshrrev_b32 v10, 2, v1
    v_mul_u32_u24 v30, {16*2752}, v10
    v_and_b32 v11, 3, v1
    v_and_b32 v12, 1, v2
    v_lshlrev_b32 v12, 1, v12
    v_xor_b32 v13, v11, v12
    v_lshl_add_u32 v30, v13, 4, v30
    s_lshl_b32 s63, {WAVE}, 13
    s_mov_b32 s38, {D*F*2}
    s_mov_b32 s39, 0x20000
    """)
    k.wait(lg=0)
    k(f"""s_cmp_eq_u32 s61, 0
    s_cselect_b32 s36, s12, s14
    s_cselect_b32 s37, s13, s15
    s_and_b32 s37, s37, 0xffff""")
    pos = []
    for n in range(8):
        k(f's_add_u32 m0, s63, {1024*n}\n s_add_u32 s44, s62, {((n>>1) + 256*(n&1))*2752}')
        k(f'buffer_load_dwordx4 v30, {RC}, s44 offen lds'); pos.append(k.nvm)
    if OPT.get('gblate'): gb_loads(k)
    srd(k, 24, 22, WS_USED)
    k(f"""v_lshlrev_b32 v31, 6, v10
    v_lshl_add_u32 v31, v12, 4, v31
    v_lshl_add_u32 v31, v11, 3, v31
    v_add_u32 v30, s63, v31
    v_xor_b32 v31, 32, v30
    v_mul_u32_u24 v6, {4*TPAD}, v2
    v_lshl_add_u32 v6, v3, 4, v6
    s_lshl_b32 s44, {WAVE}, 8
    s_add_u32 s44, s44, {TBASE}
    v_add_u32 v6, s44, v6              ; T write
    s_mul_i32 s44, {WAVE}, {4*TPAD}
    s_add_u32 s44, s44, {TBASE}
    v_add_u32 v7, s44, v4              ; T read
    s_lshl_b32 s44, s60, 2
    v_lshrrev_b32 v12, 3, v3
    v_and_b32 v13, 7, v3
    v_lshlrev_b32 v13, 4, v13
    v_lshl_add_u32 v13, v2, 8, v13
    s_lshl_b32 s45, {WAVE}, 12
    s_add_u32 s62, s45, {WP}
    v_mov_b32 v19, s61""")
    for pp in range(2):
        k(f"""v_add_u32 v14, s44, v12            ; octet
        v_mul_u32_u24 v15, 373, v14
        v_lshrrev_b32 v15, 12, v15
        v_add_u32 v14, v14, v15            ; q
        v_mul_u32_u24 v15, 171, v14
        v_lshrrev_b32 v15, 9, v15
        v_mul_u32_u24 v15, 3, v15          ; q - q%3
        v_sub_u32 v16, v14, v15            ; n
        v_cmp_eq_u32 vcc, 2, v16
        v_add_u32 v15, s61, v15
        s_add_u32 s44, s44, 2
        v_cndmask_b32 v15, v15, v14, vcc   ; tile
        v_cndmask_b32 v16, v16, v19, vcc
        v_lshl_add_u32 v{8+pp}, v15, 14, v13
        v_lshl_add_u32 v{8+pp}, v16, 7, v{8+pp}""")
    tl = p2_tables(k)
    for dl in range(4):
        k(f's_waitcnt vmcnt({k.nvm - pos[2*dl+1]})')
        if dl == 0: stamp(k, 1)
        for pi in range(2):
            for h in range(2): k(f'ds_read_b64_tr_b16 {V(OP+8*dl+4*pi+2*h,2)}, v{30+pi} offset:{2048*dl+1024*h}')
    k.sprinkle = tl; k.every = OPT.get('tev', 28); k.since = 100
    for dl in range(4):
        for pi in range(2):
            for c in range(2):
                k(f'v_mfma_f32_16x16x32_bf16 {V(DA+32*pi+16*c+4*dl,4)}, {A(FA+4*c,4)}, {V(OP+8*dl+4*pi,4)}, 0')
    for pi in range(2):
        for r in range(4):
            u = OP + 16*pi + 4*r
            for c in range(2):
                for h in range(2):
                    d = DA + 32*pi + 16*c + 8*h + r
                    k(f'v_cvt_pk_bf16_f32 v{u+2*c+h}, v{d}, v{d+4}')
            k(f'ds_write_b128 v6, {V(u,4)} offset:{16*TPAD*pi+TPAD*r}')
    flush(k)
    k.wait(lg=0); k('s_barrier')
    for pi in range(2):
        for q in range(4): k(f'ds_read_b128 {V(OP+16*pi+4*q,4)}, v7 offset:{16*TPAD*pi+TPAD*q}')
    for pi in range(2):
        for q in range(4):
            for o in range(2):
                k(f'v_mfma_f32_16x16x32_bf16 {V(DA+32*pi+8*q+4*o,4)}, {A(GB+8*q+4*o,4)}, {V(OP+16*pi+4*q,4)}, 0')
    for pi in range(2):
        for p in range(2):
            for o in range(2):
                u = OP + 16*pi + 8*p + 4*o
                for hq in range(2):
                    for h in range(2):
                        d = DA + 32*pi + 8*(2*p+hq) + 4*o + 2*h
                        k(f'v_cvt_pk_bf16_f32 v{u+2*hq+h}, v{d}, v{d+1}')
                k(f'buffer_store_dwordx4 {V(u,4)}, v{8+pi}, {WSR}, s62 offen offset:{(2*p+o)*1024}{ST}')
    stamp(k, 2)

def wt_rows(k, task, dst):
    k(f"""s_bfe_u32 s44, {task}, 0x30002
    s_lshl_b32 s44, s44, 3
    s_lshr_b32 s45, {task}, 5
    s_lshl_b32 s45, s45, 8
    s_add_u32 s44, s44, s45
    s_mul_i32 s{dst}, s44, 514
    s_and_b32 s45, {task}, 3
    s_lshl_b32 s45, s45, 7
    s_add_u32 s{dst}, s{dst}, s45
    s_add_u32 s{dst}, s{dst}, 2
    v_lshrrev_b32 v12, 3, v1
    v_and_b32 v13, 7, v1
    v_mul_u32_u24 v11, 514, v12
    v_lshl_add_u32 v11, v13, 4, v11
    s_mov_b32 s30, {2048*257*2}
    s_mov_b32 s31, 0x20000
    s_mov_b32 s34, {2048*257*2}
    s_mov_b32 s35, 0x20000""")
def wt_dest(k, task, dst):
    k(f"""s_and_b32 s44, {task}, 3
    s_mul_i32 s{dst}, s44, {64*WT_STRIDE}
    s_lshr_b32 s44, {task}, 7
    s_lshl_b32 s44, s44, 12
    s_add_u32 s{dst}, s{dst}, s44
    s_bfe_u32 s44, {task}, 0x20003
    s_lshl_b32 s44, s44, 10
    s_add_u32 s{dst}, s{dst}, s44
    s_bfe_u32 s44, {task}, 0x20005
    s_lshl_b32 s44, s44, 8
    s_add_u32 s{dst}, s{dst}, s44
    s_bfe_u32 s44, {task}, 0x10002
    s_lshl_b32 s44, s44, 7
    s_add_u32 s{dst}, s{dst}, s44
    s_add_u32 s{dst}, s{dst}, {WT}
    s_mov_b32 s53, 0x05040100
    s_mov_b32 s54, 0x07060302
    v_mul_u32_u24 v11, {WT_STRIDE}, v12
    v_lshl_add_u32 v11, v13, 4, v11
    v_xor_b32 v12, v12, v13
    v_lshlrev_b32 v12, 4, v12
    v_lshl_add_u32 v12, v13, 10, v12""")
WSRDS = 's_mov_b32 s28, s6\n s_and_b32 s29, s7, 0xffff\n s_mov_b32 s32, s8\n s_and_b32 s33, s9, 0xffff'
def p1_t(k):
    WL, WO = 32, 64
    k(f's_sub_u32 s48, s2, {NC0}\n s_lshl_b32 s48, s48, 2\n s_add_u32 s48, s48, {WAVE}')
    wt_rows(k, 's48', 49)
    for r in range(1, 4): k(f's_add_u32 s{49+r}, s49, {64*r*514}')
    k.wait(lg=0)
    k(WSRDS)
    for r in range(4):
        k(f'buffer_load_dwordx4 {V(WL+8*r,4)}, v11, {RA}, s{49+r} offen')
        k(f'buffer_load_dwordx4 {V(WL+8*r+4,4)}, v11, {RB}, s{49+r} offen')
    srd(k, 24, 22, WS_USED)
    wt_dest(k, 's48', 56)
    k(f's_lshl_b32 s44, {WAVE}, 13\n v_add_u32 v12, s44, v12\n v_add_u32 v14, s44, v4')
    for n in range(1, 8): k(f's_add_u32 s{56+n}, s56, {8*n*WT_STRIDE}\n v_xor_b32 v{14+n}, {16*n}, v14')
    tl = p2_tables(k)
    for i in range(8):
        o = WO + 4*i
        for r in range(4): k(f'v_perm_b32 v{o+r}, v{WL+8*r+4+(i>>1)}, v{WL+8*r+(i>>1)}, s{53+(i&1)}')
        k(f'ds_write_b128 v12, {V(o,4)} offset:{128*i}')
        for t in tl[2*i:2*i+2]: k(t)
    stamp(k, 1)
    for n in range(8): k(f'ds_read_b128 {V(WL+4*n,4)}, v{14+n} offset:{1024*n}')
    for n in range(8): k(f'buffer_store_dwordx4 {V(WL+4*n,4)}, v11, {WSR}, s{56+n} offen{ST}')
    stamp(k, 2)

def p1_i(k):
    k.wait(lg=0)
    srd(k, 24, 22, WS_USED)
    k(f"""s_lshl_b32 s44, s2, 2
    s_add_u32 s44, s44, {WAVE}
    s_cmp_lg_u32 s44, {255*4}
    s_cbranch_scc1 L_noinit
    v_lshlrev_b32 v30, 8, v1
    v_lshlrev_b32 v31, 8, v3
    v_mov_b32 v32, 0
    s_mov_b32 s44, {FLG}
    s_mov_b32 s45, {FLG+16384}
    buffer_store_dword v32, v30, {WSR}, s44 offen{ST}
    buffer_store_dword v32, v30, {WSR}, s45 offen{ST}
    buffer_store_dword v32, v31, {WSR}, 0 offen{ST}
    v_mov_b32 v33, 1
    s_waitcnt vmcnt(0)
    s_mov_b64 exec, 1
    global_store_dword v32, v33, s[20:21]{ST}
    s_mov_b64 exec, -1""")
    k.label('L_noinit')
    k(f"""s_sub_u32 s60, s2, {NI0}
    s_lshl_b32 s61, s60, 1
    s_lshr_b32 s44, {WAVE}, 1
    s_add_u32 s61, s61, s44            ; t
    s_and_b32 s62, {WAVE}, 1
    s_lshl_b32 s62, s62, 2             ; p
    s_add_u32 s63, s62, 4
    s_lshl_b32 s44, s61, 5
    s_add_u32 s44, s44, 1
    v_lshl_add_u32 v30, v3, 1, s44     ; 2d+1
    v_and_b32 v31, 1, v2
    v_lshlrev_b32 v31, 7, v31
    v_cmp_lt_u32 s[64:65], 1, v2
    v_mov_b32 v36, {fbits(1/16)}
    s_mul_i32 s61, s61, {12*16384}
    s_add_u32 s61, s61, {WP+11*16384}""")
    for t in p2_tables(k): k(t)
    stamp(k, 1)
    k.fence(); k.label('L_inv')
    k(f"""s_lshl_b32 s44, s62, 1
    s_sub_u32 s45, 32, s44
    s_cmp_eq_u32 s44, 0
    s_cselect_b32 s45, 16, s45
    v_mov_b32 v33, s44
    v_mov_b32 v34, s45
    v_cndmask_b32 v33, v33, v34, s[64:65]
    v_add_u32 v33, v33, v31
    s_add_u32 s44, s44, 1
    s_sub_u32 s45, 32, s44
    v_mov_b32 v34, s44
    v_mov_b32 v35, s45
    v_cndmask_b32 v34, v34, v35, s[64:65]
    v_add_u32 v34, v34, v31
    v_cmp_eq_u32 vcc, 0, v33
    v_mov_b32 v35, 0x100
    v_mov_b32 v37, {fbits(1/math.sqrt(512))}
    v_cndmask_b32 v35, v33, v35, vcc
    v_cndmask_b32 v37, v36, v37, vcc
    s_lshl_b32 s45, s62, 11
    s_add_u32 s66, s61, s45""")
    for e in range(8):
        src = 'v35' if e == 0 else None
        if e: k(f'v_add_u32 v{40+e}, {32*(e&3)}, v{33+(e>>2)}')
        k(f'v_mul_u32_u24 v{40+e}, {src or V(40+e)}, v30')
        k(f'v_and_b32 v{40+e}, 0x3ff, v{40+e}')
        k(f'v_cvt_f32_u32 v{40+e}, v{40+e}')
        k(f'v_mul_f32 v{40+e}, {fbits(1/1024)}, v{40+e}')
    for e in range(8):
        k(f'v_cos_f32 v{48+e}, v{40+e}\n v_sin_f32 v{56+e}, v{40+e}')
    for e in range(8):
        sc = 'v37' if e == 0 else 'v36'
        k(f'v_mul_f32 v{48+e}, {sc}, v{48+e}\n v_mul_f32 v{56+e}, {sc}, -v{56+e}')
    for part in range(2):
        for h in range(4): k(f'v_cvt_pk_bf16_f32 v{64+4*part+h}, v{48+8*part+2*h}, v{48+8*part+2*h+1}')
        k(f'buffer_store_dwordx4 {V(64+4*part,4)}, v4, {WSR}, s66 offen offset:{1024*part}{ST}')
    k('s_add_u32 s62, s62, 1\n s_cmp_lt_u32 s62, s63\n s_cbranch_scc1 L_inv')
    stamp(k, 2)

WDL = 64
def wd_issue(k):
    srd(k, 36, 16, F*D*2)
    k(f"""s_lshl_b32 s44, {WAVE}, 7
    s_add_u32 s44, s44, s2
    s_sub_u32 s73, s44, 128
    s_cmp_lt_u32 s2, {NZ}
    s_cselect_b32 s73, s73, 352
    s_min_u32 s73, s73, 352
    s_lshr_b32 s44, s73, 1
    s_lshl_b32 s44, s44, 13
    s_and_b32 s45, s73, 1
    s_lshl_b32 s45, s45, 9
    s_add_u32 s44, s44, s45
    s_add_u32 s45, s44, 4096
    v_lshlrev_b32 v20, 3, v1""")
    for e in range(8): k(f'buffer_load_dwordx2 {V(WDL+2*e,2)}, v20, {RC}, s{44+(e>>2)} offen offset:{1024*(e&3)}')
def wd_finish(k):
    k(f's_cmp_ge_u32 s73, 352\n s_cbranch_scc1 L_nowd')
    st = k.state()
    k(f"""s_lshr_b32 s44, s73, 4
    s_bfe_u32 s45, s73, 0x20002
    s_mul_i32 s45, s45, 22
    s_add_u32 s44, s44, s45
    s_and_b32 s45, s73, 1
    s_mul_i32 s45, s45, {4*88}
    s_add_u32 s44, s44, s45
    s_lshl_b32 s44, s44, 11
    s_bfe_u32 s45, s73, 0x10001
    s_lshl_b32 s45, s45, 9
    s_add_u32 s44, s44, s45
    s_add_u32 s44, s44, {WD}
    s_mov_b32 s46, 0x05040100
    s_mov_b32 s47, 0x07060302
    v_mul_u32_u24 v20, {88*2048}, v2
    v_bfe_u32 v21, v1, 3, 1
    v_lshl_add_u32 v20, v21, 10, v20
    v_and_b32 v21, 7, v1
    v_lshl_add_u32 v20, v21, 4, v20""")
    for pi in range(4):
        o = WDL + 16 + 4*pi
        for h in range(4): k(f'v_perm_b32 v{o+h}, v{WDL+4*h+2+(pi>>1)}, v{WDL+4*h+(pi>>1)}, s{46+(pi&1)}')
        k(f'buffer_store_dwordx4 {V(o,4)}, v20, {WSR}, s44 offen offset:{128*pi}{ST}')
    k.fence()
    k.restore(st); k.label('L_nowd')

STATL = 131072
def p4_ids(k):
    k(f"""s_and_b32 s44, s2, 7
    s_lshl_b32 s44, s44, 2
    s_bfe_u32 s46, s2, 0x20003
    s_add_u32 s44, s44, s46
    s_lshr_b32 s45, s2, 5""")

def setup(k):
    if OPT.get('x216'):
        k(f"""s_and_b32 s44, s2, 7
        s_lshl_b32 s44, s44, 1
        s_bfe_u32 s45, s2, 0x10003
        s_add_u32 s48, s44, s45
        s_lshr_b32 s49, s2, 4
        s_lshl_b32 s45, s45, 2
        s_mov_b32 s46, s49""")
    elif OPT.get('x48'):
        k(f"""s_and_b32 s44, s2, 3
        s_lshl_b32 s44, s44, 2
        s_bfe_u32 s45, s2, 0x20003
        s_add_u32 s48, s44, s45
        s_and_b32 s44, s2, 4
        s_lshl_b32 s44, s44, 1
        s_lshr_b32 s46, s2, 5
        s_add_u32 s49, s44, s46
        s_lshl_b32 s45, s45, 1""")
    else:
        k(f"""s_and_b32 s44, s2, 1
        s_lshl_b32 s44, s44, 3
        s_bfe_u32 s45, s2, 0x30003
        s_add_u32 s48, s44, s45
        s_bfe_u32 s44, s2, 0x20001
        s_lshl_b32 s44, s44, 2
        s_lshr_b32 s46, s2, 6
        s_add_u32 s49, s44, s46
        s_lshl_b32 s46, s46, 1""")
    k(f"""s_mov_b32 s53, 0
    s_lshl_b32 s46, s48, 11
    s_lshl_b32 s47, s49, 7
    s_add_u32 s41, s46, s47
    s_add_u32 s41, s41, {RBF}
    v_mov_b32 v250, 0""")
    only_wave(k, 0, lambda: k(f's_mov_b64 exec, 1\n buffer_store_dword v250, v250, {WSR}, s41 offen{ST}\n global_load_dword v254, v250, s[20:21]{LD}'))
    stamp(k, 7, 'z')
    k(f"""s_lshl_b32 s44, {WAVE}, 4
    v_add_u32 v240, s44, v3
    v_cvt_f32_u32 v240, v240
    v_mul_f32 v240, {fbits(1/2048)}, v240
    v_lshlrev_b32 v241, 2, v2
    v_add_u32 v242, s44, v241
    v_cvt_f32_u32 v241, v241
    v_cvt_f32_u32 v242, v242
    v_cvt_f32_u32 v243, v3
    v_mul_f32 v243, {fbits(1/2048)}, v243""")
    for be in range(2):
        for r in range(4):
            t = TW1 + 8*be + r
            k(f'v_add_f32 v{t}, {fbits(16*be+r)}, v241\n v_mul_f32 v{t}, v{t}, v240')
            k(f'v_sin_f32 v{t+4}, v{t}\n v_cos_f32 v{t}, v{t}')
    for be in range(2):
        if be: k(f'v_add_f32 v243, {fbits(16/2048)}, v243')
        for r in range(4):
            t = TW2 + 8*be + r
            k(f'v_add_f32 v{t}, {fbits(r)}, v242\n v_mul_f32 v{t}, v{t}, v243')
            k(f'v_sin_f32 v{t+4}, v{t}\n v_cos_f32 v{t}, v{t}')
    k(f's_mul_i32 s44, s2, {ZT_STRIDE}\n s_add_u32 s44, s44, {ZT}')
    for u in range(4):
        k(f's_add_u32 s45, {WAVE}, {u}\n s_and_b32 s45, s45, 3\n s_lshl_b32 s45, s45, 11\n s_add_u32 s{55+u}, s44, s45\n v_add_u32 v{16+u}, s45, v4')
    k(f"""s_lshr_b32 s44, s2, 4
    s_sub_u32 s45, 32, s44
    s_cmp_eq_u32 s44, 0
    s_cselect_b32 s45, 16, s45
    s_bitcmp1_b32 s2, 3
    s_cselect_b32 s44, s45, s44
    s_and_b32 s45, s2, 7
    s_lshl_b32 s45, s45, 5
    s_add_u32 s44, s44, s45
    s_sub_u32 s44, s44, 1
    s_and_b32 s44, s44, 255
    s_mul_i32 s44, s44, {WT_STRIDE}
    s_lshl_b32 s45, {WAVE}, 10
    s_add_u32 s44, s44, s45
    s_add_u32 s59, s44, {WT}
    s_add_u32 s60, s59, 4096
    s_lshl_b32 s45, {WAVE}, 12
    s_add_u32 s61, s45, {SM}
    v_lshrrev_b32 v21, 2, v3
    v_lshlrev_b32 v21, 7, v21
    v_lshl_add_u32 v21, v2, 10, v21
    v_and_b32 v22, 3, v1
    v_lshl_add_u32 v22, v22, 4, v21
    s_mov_b32 s63, 0x80008000""")
    k(f"""v_and_b32 v23, 7, v1
    v_lshlrev_b32 v23, 8, v23
    s_and_b32 s74, s2, 7
    s_lshl_b32 s74, s74, 8
    s_add_u32 s75, s74, {FLG}
    s_sub_u32 s44, s2, {NZ}
    s_cmp_lt_u32 s44, {NC0-NZ}
    s_cselect_b32 s46, 1, 0
    s_cmp_ge_u32 s2, {NI0}
    s_cselect_b32 s46, 1, s46
    s_lshl_b32 s44, s46, 11
    s_lshl_b32 s45, s46, 14
    s_lshl_b32 s46, s46, 3
    s_sub_u32 s70, 19, s46
    s_add_u32 s71, s74, s44
    s_add_u32 s72, s75, s45
    s_lshl_b32 s44, s74, 3
    s_add_u32 s44, s44, {FLG+16384}
    v_add_u32 v23, s44, v23
    v_mov_b32 v251, 1""")
    wd_issue(k)

def setup2(k):
    k(f"""v_lshrrev_b32 v20, 2, v1
    v_lshlrev_b32 v20, 15, v20
    v_and_b32 v24, 3, v1
    v_lshl_add_u32 v20, v24, 4, v20
    s_lshr_b32 s44, s2, 5
    s_lshl_b32 s44, s44, 6
    s_and_b32 s45, s2, 31
    s_add_u32 s44, s44, s45
    s_lshl_b32 s44, s44, 6
    s_lshl_b32 s45, {WAVE}, 19
    s_add_u32 s44, s44, s45
    s_add_u32 s62, s44, {HT}
    s_mul_i32 s44, s49, 11
    s_mul_i32 s45, {WAVE}, 3
    s_add_u32 s50, s44, s45
    s_add_u32 s44, s50, s49
    s_lshl_b32 s44, s44, 14
    s_add_u32 s44, s44, {WP}
    v_add_u32 v15, s44, v4
    v_add_u32 v28, 0x4000, v15
    v_add_u32 v29, 0x8000, v15
    s_lshl_b32 s44, s48, 2
    s_add_u32 s44, s44, {WAVE}
    s_lshl_b32 s44, s44, 15
    s_add_u32 s44, s44, {HT}
    v_and_b32 v6, 1, v2
    v_lshlrev_b32 v6, 5, v6
    v_xor_b32 v5, v6, v4
    v_add_u32 v5, s44, v5
    s_lshl_b32 s54, {WAVE}, 15
    v_lshrrev_b32 v7, 2, v1
    v_lshl_add_u32 v6, v7, 6, v6
    v_lshl_add_u32 v6, v24, 3, v6
    v_add_u32 v6, s54, v6
    v_xor_b32 v7, 32, v6
    v_add_u32 v8, s54, v4
    v_lshrrev_b32 v9, 2, v3
    v_cmp_eq_u32 vcc, v9, v2
    s_lshl_b32 s44, {WAVE}, 9
    s_add_u32 s44, s44, {STATL}
    v_lshl_add_u32 v10, v3, 4, s44
    v_add_u32 v9, {STATL+2048}, v4
    v_cndmask_b32 v9, v9, v10, vcc
    v_lshrrev_b32 v24, 1, v2
    v_lshl_add_u32 v11, v24, 8, v10
    s_mov_b32 s64, 0x22222222
    s_mov_b32 s65, s64
    s_mov_b32 s66, 0x44444444
    s_mov_b32 s67, s66
    s_mov_b32 s68, 0x88888888
    s_mov_b32 s69, s68
    v_add_u32 v25, s50, v24
    v_lshrrev_b32 v12, 1, v25
    v_lshlrev_b32 v12, 16, v12
    v_and_b32 v25, 1, v25
    v_lshl_add_u32 v12, v25, 9, v12
    v_and_b32 v25, 31, v1
    v_lshl_add_u32 v12, v25, 4, v12
    s_add_u32 s44, s50, 2
    s_lshr_b32 s45, s44, 1
    s_lshl_b32 s45, s45, 16
    s_and_b32 s44, s44, 1
    s_lshl_b32 s44, s44, 9
    s_add_u32 s44, s44, s45
    v_lshl_add_u32 v13, v24, 8, s44
    v_lshl_add_u32 v13, v3, 4, v13
    v_and_b32 v25, 1, v2
    v_lshl_add_u32 v13, v25, 3, v13""")
    wsrd(k, 32, HF+86*65536)

def p2_negs(k, base):
    for u in range(4):
        for h in range(2): k(f'v_xor_b32 v{base+6*u+h}, s63, v{base+6*u+4+h}')

def wd_reg(u, i): return A(192+8*u+4*i, 4) if u < 8 else V(144+8*(u-8)+4*i, 4)
def wd_loads(u):
    o = [f'buffer_load_dwordx4 {wd_reg(u+s,i)}, v{(15, 5)[i]}, {WSR}, s51 offen offset:{2048*s}{LD}' for s in range(2) for i in range(2)]
    return o + ['s_add_u32 s51, s51, 4096']
def wloads(R=RA):
    return [f'buffer_load_dwordx4 {A(12*ka+4*t,4)}, v{(15, 28, 29)[t]}, {R}, {("0", "s70", "s71", "s72")[ka>>2]} offen offset:{1024*(ka&3)}{LD}' for ka in range(16) for t in range(3)]

def p2(k):
    Z, WW, SG, DD, TT, PK = 32, 64, 80, 88, 104, 240
    for u in range(4):
        for be in range(2): k(f'buffer_load_dwordx4 {V(Z+8*u+4*be,4)}, v4, {WSR}, s{55+u} offen offset:{1024*be}{LD}')
    k(f"""buffer_load_dwordx4 {V(PK,4)}, v4, {WSR}, s59 offen{LD}
    buffer_load_dwordx4 {V(PK+4,4)}, v4, {WSR}, s60 offen{LD}
    buffer_load_dwordx4 {V(SG,4)}, v22, {WSR}, s61 offen{LD}
    buffer_load_dwordx4 {V(SG+4,4)}, v22, {WSR}, s61 offen offset:512{LD}""")
    setup2(k)
    k(f"""s_mov_b32 s28, s24
    s_mov_b32 s29, s25
    s_mov_b32 s31, 0x20000
    s_mov_b32 s36, s24
    s_mov_b32 s37, s25
    s_mov_b32 s39, 0x20000
    s_mov_b32 s70, 4096
    s_mov_b32 s71, 8192
    s_mov_b32 s72, 12288
    buffer_load_dword v26, v23, {WSR}, 0 offen{LD}""")
    for u in range(4):
        if u == OPT.get('c1', 1):
            k(f'v_cmp_ne_u32 vcc, 1, v26\n s_cmp_eq_u64 vcc, 0\n s_cselect_b32 s30, {WS_USED}, 0')
            k(f'buffer_load_dword v27, v23, {WSR}, 0 offen{LD}')
            k.sprinkle = wloads(); k.every = OPT.get('every', 64); k.since = 100
        for be in range(2):
            for o in range(2):
                d = V(DD+8*be+4*o, 4)
                k(f'v_mfma_f32_16x16x32_f16 {d}, {V(Z+8*u+4*be,4)}, {V(B1+6*u+2-2*o,4)}, {"0" if u==0 else d}')
        if u == 0: stamp(k, 5); stamp(k, 2, 'b')
    for t in range(2):
        for r in range(4):
            k(f'v_lshlrev_b32 v{WW+8*t+r}, 16, v{PK+4*t+r}\n v_and_b32 v{WW+8*t+4+r}, 0xffff0000, v{PK+4*t+r}')
    E = Z + 8
    for be in range(2):
        cmul(k, DD+8*be, DD+8*be+4, TW1+8*be, TW1+8*be+4, TT, TT+4, True)
        for h in range(4): k(f'v_cvt_pk_f16_f32 v{PK+4*be+h}, v{TT+2*h}, v{TT+2*h+1}')
        for t in range(2):
            for o in range(2):
                d = V(E+8*t+4*o, 4)
                k(f'v_mfma_f32_16x16x32_f16 {d}, {V(A2+6*(2*t+be)+2-2*o,4)}, {V(PK+4*be,4)}, {"0" if be==0 else d}')
    stamp(k, 3, 'b')
    global n1
    n1 = 48 - len(k.sprinkle); k.sprinkle = []
    k(f'v_cmp_ne_u32 vcc, 1, v27\n s_cmp_eq_u64 vcc, 0\n s_cselect_b32 s38, {WS_USED}, 0')
    k.sprinkle = wloads(RC)[n1:]
    for t in range(2):
        cmul(k, E+8*t, E+8*t+4, WW+8*t, WW+8*t+4, TT, TT+4, False)
        for h in range(4): k(f'v_cvt_pk_bf16_f32 v{PK+4*t+h}, v{TT+2*h}, v{TT+2*h+1}')
        for be in range(2):
            for o in range(2):
                d = V(DD+8*be+4*o, 4)
                k(f'v_mfma_f32_16x16x32_bf16 {d}, {V(PK+4*t,4)}, {V(B3+6*(2*be+t)+2-2*o,4)}, {"0" if t==0 else d}')
    for be in range(2):
        cmul(k, DD+8*be, DD+8*be+4, TW2+8*be, TW2+8*be+4, TT, TT+4, False)
        for h in range(4): k(f'v_cvt_pk_bf16_f32 v{PK+4*be+h}, v{TT+2*h}, v{TT+2*h+1}')
        k(f'ds_write_b128 v16, {V(PK+4*be,4)} offset:{1024*be}')
    def step4(u, src):
        for be in range(2):
            for o in range(2):
                d = V(DD+8*be+4*o, 4)
                k(f'v_mfma_f32_16x16x32_bf16 {d}, {V(A4+6*u+2-2*o,4)}, {V(src+4*be,4)}, {d}')
    for o in range(2):
        for be in range(2):
            for r in range(4):
                d = DD+8*be+4*o+r; hi = r & 1
                k(f'v_fma_mix_f32 v{d}, v{SG+4*be+r}, v{Z+4*be+2*o+(r>>1)}, 0 op_sel:[0,{hi},0] op_sel_hi:[0,1,0]')
    stamp(k, 4, 'b')
    k.wait(lg=0); k('s_barrier')
    for u in range(1, 4):
        for be in range(2): k(f'ds_read_b128 {V(Z+8*u+4*be,4)}, v{16+u} offset:{1024*be}')
    step4(0, PK)
    for u in range(1, 4): step4(u, Z+8*u)
    OUT = 64
    rest, k.sprinkle = k.sprinkle, []
    for o in range(2):
        for be in range(2):
            for h in range(2): k(f'v_cvt_pk_bf16_f32 v{OUT+4*o+2*be+h}, v{DD+8*be+4*o+2*h}, v{DD+8*be+4*o+2*h+1}')
    k('s_cmp_lg_u32 s2, 0\n s_cbranch_scc1 L_p2_st')
    for h in range(4): k(f'v_mov_b32 v{OUT+4+h}, v{OUT+h}\n v_mov_b32 v{OUT+h}, 0')
    k.label('L_p2_st')
    for o in range(2): k(f'buffer_store_dwordx4 {V(OUT+4*o,4)}, v20, {WSR}, s62 offen offset:{2048*o}{ST}')
    stamp(k, 5, 'b')
    return rest

def barrier2(k, rest):
    print('weight loads left after phase 2:', len(rest))
    k(f's_lshl_b32 s44, s48, 12\n s_add_u32 s44, s44, {HF}')
    for p in range(4): k(f's_xor_b32 s45, {WAVE}, {p}\n s_lshl_b32 s45, s45, 10\n s_add_u32 s{55+p}, s44, s45')
    k(f"""s_lshl_b32 s44, s49, 17
    s_lshl_b32 s45, s48, 12
    s_add_u32 s44, s44, s45
    s_add_u32 s59, s44, {HRES}
    s_add_u32 s60, s59, 0x10000
    s_lshl_b32 s44, s48, 10
    s_add_u32 s61, s44, {SM+64}
    s_mov_b32 s46, 0""")
    rest = [t.replace(RC, WSR) for t in rest]
    print('group 1:', n1)
    k(f's_cmp_lg_u32 s30, 0\n s_cbranch_scc1 L_bok')
    st = k.state()
    k(f's_cmp_lg_u32 s38, 0\n s_cbranch_scc1 L_bok2')
    k.label('L_bchk')
    k(f"""buffer_load_dword v26, v23, {WSR}, 0 offen{LD}
    s_add_u32 s46, s46, 1
    s_waitcnt vmcnt(0)
    v_cmp_ne_u32 vcc, 1, v26
    s_cmp_gt_u32 s46, {SPIN}
    s_cbranch_scc1 L_bgo
    s_cbranch_vccnz L_bchk""")
    k.label('L_bgo')
    for t in wloads(WSR)[n1:48-len(rest)]: k(t)
    k.label('L_bok2')
    for t in wloads(WSR)[:n1]: k(t)
    k.restore(st)
    k.label('L_bok')
    stamp(k, 6)
    nA = min(OPT.get('nA', 12), len(rest)); nB = min(OPT.get('nB', 48), len(rest) - nA)
    for t in rest[:nA]: k(t)
    stamp(k, 6, 'b')
    k(f'v_mov_b32 v250, 0\n v_mov_b32 v251, 1\n s_cmp_lg_u32 {WAVE}, 0\n s_cbranch_scc1 L_b2o')
    st = k.state()
    k(f's_mov_b64 exec, 1\n s_waitcnt vmcnt({nA})'); stamp(k, 7, 'b'); k('s_barrier'); stamp(k, 8, 'b')
    k(f'buffer_atomic_add v251, v250, {WSR}, s74 offen sc0 sc1\n s_mov_b64 exec, -1')
    for t in rest[nA:nA+nB]: k(t)
    stamp(k, 9, 'b'); arrive_check(k, 250, 's75', 51, 2); stamp(k, 10, 'b'); poll(k, 250, 2)
    k('s_branch L_b2x')
    k.restore(st); k.label('L_b2o')
    k(f's_waitcnt vmcnt({nA})'); stamp(k, 7, 'b'); k('s_barrier'); stamp(k, 8, 'b')
    for t in rest[nA:nA+nB]: k(t)
    stamp(k, 9, 'b'); stamp(k, 10, 'b')
    global late_w
    late_w = rest[nA+nB:]
    def hw():
        k('v_bfe_u32 v16, v1, 2, 1\n v_lshlrev_b32 v16, 9, v16\n v_bfe_u32 v17, v1, 3, 1\n v_lshl_add_u32 v16, v17, 4, v16\n v_and_b32 v17, 3, v1\n v_lshl_add_u32 v16, v17, 2, v16')
        for j in range(8): k(f'buffer_load_dword v{MUV+j}, v16, {WSR}, s61 offen offset:{128*((j^6)>>1)+32*(j&1)}{LD}')
    global hw_means
    hw_means = hw
    if not late_w: only_wave(k, 3, hw)
    k.label('L_b2x')
    k('s_barrier')

ACT, ACC, TM, STV, MUV = 32, 64, 128, 16, 24
def cost(t):
    m = t.split()[0]
    if m.startswith(('v_exp', 'v_rcp', 'v_rsq', 'v_permlane', 'buffer', 'ds_write')): return 8
    return 4 * (t.count('\n') + 1)

def p3_body(k, hw):
    acc = lambda p, n, m, par=0: ACC + 32*(p & 1) + 8*(n + (par if n == 2 and hw else 0)) + 4*m
    GR = TM
    dma_pos = []; conv_pos = {}
    def dma(ka):
        o = [f'buffer_load_dwordx4 v5, {WSR}, s53 offen offset:{2048*(ka&1)+1024*h}{LD} lds' for h in range(2)]
        if ka & 1: o.append('s_add_u32 s53, s53, 4096\n s_add_u32 s54, s54, 4096')
        else: o[0] = 's_mov_b32 m0, s54\n' + o[0]
        return o
    def slot(g, m): return ACT + 8*(g & 3) + 4*m
    def reads(g):
        p, ka = divmod(g, 16)
        if p and ka == 0 and not OPT.get('conv'):
            x = (p ^ (p-1)) << 15
            return [f'v_xor_b32 v6, {x:#x}, v6', f'v_xor_b32 v7, {x:#x}, v7'] + [f'ds_read_b64_tr_b16 {V(slot(g,m)+2*h,2)}, v{6+m} offset:{1024*h}' for m in range(2) for h in range(2)]
        if p == 0 or not OPT.get('conv'): return [f'ds_read_b64_tr_b16 {V(slot(g,m)+2*h,2)}, v{6+m} offset:{2048*ka+1024*h}' for m in range(2) for h in range(2)]
        o = []
        if ka == 0: o.append(f'v_xor_b32 v6, {p << 15:#x}, v8')
        return o + [f'ds_read_b128 {V(slot(g,m),4)}, v6 offset:{2048*ka+1024*m}' for m in range(2)]
    def chains(p, J):
        if p == 3:
            P = J[::2]
            o = [f'v_pk_mul_f32 {V(t,2)}, {V(g,2)}, {V(g,2)}' for g, u, t, c in P]
            o += [f'v_pk_fma_f32 {V(t,2)}, {V(t,2)}, {V(c,2)}, {V(c,2)} op_sel:[0,1,0] op_sel_hi:[1,1,0]' for g, u, t, c in P]
            o += [f'v_pk_mul_f32 {V(t,2)}, {V(t,2)}, {V(g,2)}' for g, u, t, c in P]
            o += [f'v_exp_f32 v{t}, v{t}' for g, u, t, c in J]
            o += [f'v_pk_mul_f32 {V(g,2)}, {V(g,2)}, {V(u,2)}' for g, u, t, c in P]
            o += [f'v_pk_fma_f32 {V(t,2)}, {V(t,2)}, {V(c+2,2)}, {V(c+2,2)} op_sel_hi:[1,0,0]' for g, u, t, c in P]
            o += [f'v_rcp_f32 v{t}, v{t}' for g, u, t, c in J]
            o += [f'v_pk_mul_f32 {V(g,2)}, {V(g,2)}, {V(t,2)}' for g, u, t, c in P]
            return o
        o = [f'v_mul_f32 v{t}, v{g}, v{g}' for g, u, t, c in J]
        o += [f'v_fma_f32 v{t}, v{t}, v{c+1}, v{c}' for g, u, t, c in J]
        o += [f'v_mul_f32 v{t}, v{t}, v{g}' for g, u, t, c in J]
        for g, u, t, c in J: o += [f'v_exp_f32 v{t}, v{t}', f'v_mul_f32 v{g}, v{g}, v{u}']
        o += [f'v_fma_f32 v{t}, v{t}, v{c+2}, v{c+2}' for g, u, t, c in J]
        o += [f'v_rcp_f32 v{t}, v{t}' for g, u, t, c in J]
        o += [f'v_mul_f32 v{g}, v{g}, v{t}' for g, u, t, c in J]
        return o
    def epilogue(p):
        HA, HX = TM + 8, TM + 12
        J = [(acc(p, 0, m)+r, acc(p, 1, m)+r, TM+4*m+r, STV+4*m) for m in range(2) for r in range(4)]
        o = []
        if not hw: o += [f'v_permlane32_swap_b32 v{acc(p,2,0)+r}, v{acc(p,2,1)+r}' for r in range(4)]
        o += chains(p, J)
        o += [f'v_cvt_pk_bf16_f32 v{HA+2*m+h}, v{acc(p,0,m)+2*h}, v{acc(p,0,m)+2*h+1}' for h in range(2) for m in range(2)]
        tail = [f'v_permlane16_swap_b32 v{HA}, v{HA+2}', f'v_permlane16_swap_b32 v{HA+1}, v{HA+3}',
                f'buffer_store_dwordx4 {V(HA,4)}, v12, {RB}, s{55+p} offen{ST}']
        if not hw:
            x = chains(p, [(acc(p, 2, 0)+r, acc(p, 2, 1)+r, TM+r, STV+8) for r in range(4)])
            o += x[:2] + tail + x[2:]
            o += [f'v_cvt_pk_bf16_f32 v{HX+h}, v{acc(p,2,0)+2*h}, v{acc(p,2,0)+2*h+1}' for h in range(2)]
            o += [f'buffer_store_dwordx2 {V(HX,2)}, v13, {RB}, s{55+p} offen{ST}']
        else:
            for m in range(2):
                e, od = acc(p, 2, m), acc(p, 2, m, 1); t = TM
                o += [f'v_add_f32 v{e+r}, v{e+r}, v{MUV+2*p+m}' for r in range(4)]
                if m == 0: o += tail
                for r in range(4): o += [f'v_add_f32 v{t+r}, v{e+r}, v{od+r}', f'v_sub_f32 v{t+4+r}, v{e+r}, v{od+r}']
                off = 1024*(p ^ 3) + 512*m
                o += [f'v_cvt_pk_bf16_f32 v{e}, v{t}, v{t+1}', f'v_cvt_pk_bf16_f32 v{e+1}, v{t+2}, v{t+3}',
                      f'v_cvt_pk_bf16_f32 v{e+2}, v{t+7}, v{t+6}', f'v_cvt_pk_bf16_f32 v{e+3}, v{t+5}, v{t+4}',
                      f'buffer_store_dwordx2 {V(e,2)}, v13, {WSR}, s59 offen offset:{off}{ST}',
                      f'buffer_store_dwordx2 {V(e+2,2)}, v14, {WSR}, s60 offen offset:{off}{ST}']
        return o
    def stats():
        o = []
        K0 = -2*math.sqrt(2/math.pi)*math.log2(math.e)
        for m in range(2):
            b = GR + 4*m
            o += [f'v_cndmask_b32 v{b}, v{b}, v{b+1}, s[64:65]', f'v_cndmask_b32 v{b}, v{b}, v{b+2}, s[66:67]', f'v_cndmask_b32 v{b}, v{b}, v{b+3}, s[68:69]',
                  f'v_mov_b32 v{b+2}, {fbits(1e-5)}', f'v_fmac_f32 v{b+2}, {fbits(1/512)}, v{b}', f'v_rsq_f32 v{b+3}, v{b+2}',
                  f'v_mul_f32 v{b}, {fbits(K0)}, v{b+3}', f'v_mul_f32 v{b+3}, v{b+3}, v{b+3}', f'v_mul_f32 v{b+1}, {fbits(0.044715)}, v{b}', f'v_mul_f32 v{b+1}, v{b+1}, v{b+3}',
                  f'ds_write_b128 v9, {V(b,4)} offset:{256*m}']
        return o
    def getstats(p):
        o = [f'v_xor_b32 v10, {512*(p^(p-1))}, v10'] if p else []
        o += [f'ds_read_b128 {V(STV+4*m,4)}, v10 offset:{256*m}' for m in range(2)]
        if not hw:
            if p: o.append(f'v_xor_b32 v11, {512*(p^(p-1))}, v11')
            o.append(f'ds_read_b128 {V(STV+8,4)}, v11')
        return o
    PRE, AHEAD = OPT.get('dpre', 8), 2
    for ka in range(PRE):
        for t in dma(ka): k(t)
        dma_pos.append(k.nvm)
    if hw: k('v_lshlrev_b32 v13, 5, v3\n v_lshl_add_u32 v13, v2, 3, v13\n v_xor_b32 v14, 24, v13')
    lw = list(late_w)
    def wdaddr():
      p4_ids(k)
      k(f"""s_mov_b32 s51, 0
    s_lshl_b32 s45, s45, 2
    s_add_u32 s45, s45, {WAVE}
    s_mul_i32 s45, s45, {22*2048}
    s_lshr_b32 s44, {WAVE}, 1
    s_lshl_b32 s44, s44, 10
    s_add_u32 s45, s45, s44
    s_add_u32 s45, s45, {WD}
    v_add_u32 v15, s45, v4""")
    if not lw: wdaddr()
    def landed(ka): k(f's_waitcnt vmcnt({min(63, k.nvm - dma_pos[ka])})')
    for g in range(AHEAD):
        landed(g)
        if g == 0: stamp(k, 8)
        for t in reads(g): k(t)
    nw = OPT.get('wdin', 22)
    wdq = ['v_xor_b32 v5, 0x400, v15'] + [t for u in range(0, nw, 2) for t in wd_loads(u)]
    for p in range(4):
        bg = []
        if p == 1: bg = stats() + getstats(0) + epilogue(0) + getstats(1)
        elif p: bg = epilogue(p-1) + getstats(p)
        if OPT.get('nobg'): bg = []
        tot = sum(map(cost, bg)); done = 0
        for ka in range(16):
            g = 16*p + ka
            fill = []; late = []
            if p == 0:
                if ka + PRE < 16: fill.append(('dma', ka + PRE))
                fill += lw[:3]; lw = lw[3:]
                if ka < 14: fill += [('land', ka + 2)] + reads(ka + 2)
                if ka == 14: fill += [('bar', 11)] + reads(16) + reads(17)
                if OPT.get('conv'): late = [('conv', m) for m in range(2)]
                else: k.wait(lg=4 if ka < 15 else 8)
            elif ka % 2 == 0:
                k.wait(lg=0)
                if p == 1 and ka == 6:
                    assert not any(b.startswith('ds_write') for b in bg)
                    k('s_barrier')
                if g + 2 < 64: fill += reads(g + 2) + reads(g + 3)
            base = sum(8 if isinstance(f, tuple) else cost(f) for f in fill)
            if p and (ka >= 1 or p > 1):
                budget = tot * (ka + 1) / 16 + (-base/2 if ka % 2 == 0 else 0)
                while bg and (done + cost(bg[0])/2 <= budget or ka == 15):
                    done += cost(bg[0]); fill.append(bg.pop(0))
            if p:
                left = 48 - (g - 16)
                ne = (len(wdq) + left - 1) // left if (len(wdq) * 2 >= left or ka % 2) else 0
                fill += wdq[:ne]; wdq = wdq[ne:]
            fill += late
            mf = []
            for m in range(2):
                b = V(slot(g, m), 4)
                for n in range(3):
                    d = V(acc(p, n, m, ka & 1), 4)
                    first = ka == 0 or (n == 2 and ka == 1 and hw)
                    mf.append(f'v_mfma_f32_16x16x32_bf16 {d}, {A(12*ka+4*n,4)}, {b}, {"0" if first else d}')
                if p == 0: mf.append(f'v_mfma_f32_16x16x32_bf16 {V(GR+4*m,4)}, {b}, {b}, {"0" if ka==0 else V(GR+4*m,4)}')
            fc = lambda f: ({'dma': 24, 'land': 4, 'bar': 8, 'conv': 8}[f[0]]) if isinstance(f, tuple) else cost(f)
            ftot = sum(map(fc, fill)); fd = 0
            for i, t in enumerate(mf):
                k(t)
                while fill and fd + fc(fill[0])/2 <= ftot * (i+1) / len(mf) + 1e-6:
                    f = fill.pop(0); fd += fc(f)
                    if isinstance(f, tuple):
                        if f[0] == 'dma':
                            for x in dma(f[1]): k(x)
                            dma_pos.append(k.nvm)
                        elif f[0] == 'land': landed(f[1])
                        elif f[0] == 'conv':
                            k(f'ds_write_b128 v8, {V(slot(g, f[1]),4)} offset:{2048*ka+1024*f[1]}'); conv_pos[ka] = k.nlg
                        elif f[0] == 'bar':

                            if OPT.get('conv'): k.wait(lg=k.nlg - conv_pos[f[1]])
                            k('s_barrier')
                    else: k(f)
            assert not fill
        assert not bg
        if p == 0 and late_w:
            wdaddr()
            if hw: hw_means()
        if p == 0: stamp(k, 9)
        if OPT.get('pst'): stamp(k, 1+p, True)
    stamp(k, 10)
    for t in epilogue(3): k(t)
    if OPT.get('pst'): stamp(k, 5, True)
    n0 = k.nvm
    for u in range(nw, 22, 2):
        for t in wd_loads(u): k(t)
    return k.nvm - n0

def rb_sync(k, keep):
    k(f's_waitcnt vmcnt({keep})'); k('s_barrier')
    def body():
        k(f"""v_mov_b32 v8, 0
        v_mov_b32 v9, 1
        v_lshlrev_b32 v10, 7, v1
        s_mov_b32 s46, 0
        s_mov_b64 exec, 1
        buffer_store_dword v9, v8, {WSR}, s41 offen{ST}
        s_mov_b64 exec, 0xffff""")
        k.label('L_rp')
        k(f"""buffer_load_dword v11, v10, {WSR}, s64 offen{LD}
        s_add_u32 s46, s46, 1
        s_waitcnt vmcnt(0)
        v_cmp_ne_u32 vcc, 1, v11
        s_cmp_gt_u32 s46, {SPIN}
        s_cbranch_scc1 L_rd
        s_cbranch_vccnz L_rp""")
        k.label('L_rd')
    only_wave(k, 0, body)
    k('s_barrier')

def p4_pre(k):
    srd(k, 28, 18, S*D*2)
    p4_ids(k)
    k(f"""s_mov_b32 s72, 0
    s_lshr_b32 s64, s44, 1
    s_lshl_b32 s64, s64, 11
    s_add_u32 s64, s64, {RBF}
    s_and_b32 s62, {WAVE}, 1
    s_lshr_b32 s63, {WAVE}, 1
    s_lshl_b32 s44, s44, 1
    s_add_u32 s44, s44, s62
    s_lshl_b32 s45, s45, 1
    s_add_u32 s45, s45, s63
    s_lshl_b32 s66, s44, 10
    s_lshl_b32 s46, {WAVE}, 16
    s_add_u32 s46, s46, s66
    s_add_u32 s46, s46, {HF}
    v_add_u32 v5, s46, v4
    v_xor_b32 v6, 0x400, v5
    v_lshrrev_b32 v17, 5, v1
    s_lshl_b32 s46, s45, 1
    v_add_u32 v18, s46, v17
    v_sub_u32 v19, 31, v18
    v_min_u32 v19, v18, v19
    v_lshlrev_b32 v19, 17, v19
    v_lshrrev_b32 v18, 4, v18
    v_lshl_add_u32 v19, v18, 16, v19
    v_and_b32 v18, 31, v1
    v_lshl_add_u32 v7, v18, 5, v19     ; residual
    s_add_u32 s66, s66, {HRES}
    s_lshr_b32 s46, s44, 2
    s_lshl_b32 s46, s46, 17
    s_and_b32 s44, s44, 3
    s_lshl_b32 s44, s44, 12
    s_add_u32 s67, s46, s44
    s_lshl_b32 s45, s45, 6
    s_add_u32 s67, s67, s45
    v_bfe_u32 v18, v1, 3, 2
    v_lshlrev_b32 v18, 10, v18
    v_lshl_add_u32 v17, v17, 5, v18
    v_and_b32 v18, 3, v1
    v_lshl_add_u32 v17, v18, 15, v17
    v_bfe_u32 v18, v1, 2, 1
    v_lshl_add_u32 v17, v18, 14, v17   ; output
    s_mul_i32 s44, {WAVE}, 12288
    v_add_u32 v20, s44, v4""")
    for sl in range(1, 4):
        k(f's_xor_b32 s44, {WAVE}, {sl}\n s_mul_i32 s44, s44, 12288\n s_add_u32 s44, s44, {4096*(sl-1)}\n v_add_u32 v{20+sl}, s44, v4')

def p4(k):
    HR, HU, RD = 32, 40, 144
    def issue(u):
        for i in range(2): k(f'buffer_load_dwordx4 {A(8*u+4*i,4)}, v{5+i}, {RB}, s72 offen{LD}')
        k('s_add_u32 s72, s72, 0x40000')
    PRE = OPT.get('p4pre', 8)
    for u in range(PRE): issue(u)
    issued = PRE
    for u in range(22):
        order = (0, 2, 1, 3) if u < 21 else (1, 2, 3, 0)
        for j, sl in enumerate(order):
            d = V(ACC+16*sl, 16)
            k(f'v_mfma_f32_32x32x16_bf16 {d}, {wd_reg(u, sl>>1)}, {A(8*u+4*(sl&1),4)}, {"0" if u==0 else d}')
            if OPT.get('p4st') and j == 0 and u in (0, 11): stamp(k, 1 + (u > 0), True)
            if j == 0 and issued < 22: issue(issued); issued += 1
            if j == 0 and u == 22 - PRE:
                for h in range(2): k(f'buffer_load_dwordx4 {V(HR+4*h,4)}, v7, {WSR}, s66 offen offset:{16*h}{LD}')
            if u == 21 and j < 2:
                for r in range(4*j, 4*j+4): k(f'v_lshlrev_b32 v{HU+8*(r&1)+(r>>1)}, 16, v{HR+r}\n v_and_b32 v{HU+8*(r&1)+4+(r>>1)}, 0xffff0000, v{HR+r}')
    if OPT.get('p4st'): stamp(k, 3, True)
    for sl in range(1, 4):
        for q in range(4): k(f'ds_write_b128 v{20+sl}, {V(ACC+16*sl+4*q,4)} offset:{1024*q}')
    for r in range(8): k(f'v_pk_add_f32 {V(ACC+2*r,2)}, {V(ACC+2*r,2)}, {V(HU+2*r,2)}')
    k.wait(lg=0); k('s_barrier')
    if OPT.get('p4st'): stamp(k, 4, True)
    for j in range(12): k(f'ds_read_b128 {V(RD+4*j,4)}, v20 offset:{1024*j}')
    for sl in range(3):
        for r in range(0, 16, 2): k(f'v_pk_add_f32 {V(ACC+r,2)}, {V(ACC+r,2)}, {V(RD+16*sl+r,2)}')
    for h in range(2):
        for r in range(4*h, 4*h+4): k(f'v_cvt_pk_bf16_f32 v{HR+r}, v{ACC+8*(r&1)+(r>>1)}, v{ACC+8*(r&1)+4+(r>>1)}')
        k(f'buffer_store_dwordx4 {V(HR+4*h,4)}, v17, {RA}, s67 offen offset:{16*h}{OPT.get("ost", "")}')
    if OPT.get('p4st'): stamp(k, 5, True)

def fused():
    k = K()
    prologue(k)
    k(f's_cmp_ge_u32 s2, {NZ}\n s_cbranch_scc1 L_notz')
    st0 = k.state()
    p1_z(k)
    k.label('L_join1')
    k.vm = [set()] * 40; k.lg = []
    setup(k)
    stamp(k, 3)
    negs = lambda: [p2_negs(k, b) for b in (B1, A2, B3, A4)]
    stamp(k, 8, 'z')
    k(f's_cmp_lg_u32 {WAVE}, 0\n s_cbranch_scc1 L_b1o')
    st = k.state()
    k('s_mov_b64 exec, 1\n s_mov_b32 s46, 0\n s_waitcnt vmcnt(8)')
    k.label('L_go')
    k(f"""v_cmp_ne_u32 vcc, 0, v254
    s_add_u32 s46, s46, 1
    s_cbranch_vccnz L_gone
    global_load_dword v254, v250, s[20:21]{LD}
    s_waitcnt vmcnt(0)
    s_cmp_lt_u32 s46, {SPIN}
    s_cbranch_scc1 L_go""")
    k.restore(st); k.vm = k.vm[-8:]
    k.label('L_gone')
    stamp(k, 9, 'z')
    k('s_barrier')
    k(f'buffer_atomic_add v251, v250, {WSR}, s71 offen sc0 sc1\n s_mov_b64 exec, -1')
    stamp(k, 10, 'z')
    negs(); arrive_check(k, 250, 's72', 's70', 1)
    poll(k, 250, 1)
    k('s_branch L_b1x')
    k.restore(st); k.label('L_b1o')
    k('s_waitcnt vmcnt(8)')
    stamp(k, 9, 'z')
    k('s_barrier')
    stamp(k, 10, 'z')
    negs(); wd_finish(k); k.label('L_b1x')
    k('s_barrier')
    stamp(k, 4)
    stamp(k, 11, 'z'); stamp(k, 1, 'b')
    barrier2(k, p2(k))
    stamp(k, 7); stamp(k, 11, 'b')
    k(f's_cmp_eq_u32 {WAVE}, 3\n s_cbranch_scc1 L_p3h')
    st3 = k.state()
    keep = p3_body(k, False)
    k.label('L_join3')
    k.fence()
    p4_pre(k)
    rb_sync(k, keep)
    stamp(k, 11)
    p4(k)
    stamp_out(k, 12)
    k.label('L_end'); k('s_endpgm')
    k.restore(st3); k.label('L_p3h'); p3_body(k, True); k('s_branch L_join3')
    k.restore(st0); k.label('L_notz')
    p1_w(k); k('s_branch L_join1')
    k.restore(st_c); k.label('L_p1c')
    k(f's_cmp_ge_u32 s2, {NI0}\n s_cbranch_scc1 L_p1i')
    st1 = k.state()
    p1_t(k); k('s_branch L_join1')
    k.restore(st1); k.label('L_p1i'); p1_i(k); k('s_branch L_join1')
    o = header()
    o += f'; @launch grid=(256,1,1) block=(256,1,1) lds={STATL+4096}\n'
    o += '.amdgcn_target "amdgcn-amd-amdhsa--gfx950"\n.text\n' + k.text()
    o += tables_text() + 'L_image_end:\n'
    o += '.section .rodata,"a"\n.p2align 6\n' + kd(KN, k)
    return o

if __name__ == '__main__':
    out = sys.argv[1]
    for a in sys.argv[2:]:
        key, _, val = a.partition('=')
        OPT[key] = eval(val) if val else True
    open(out, 'w').write(fused())
```

```python
import sys, math, struct
import numpy as np
from dsl import K
from design import *
from gen import V, A, Sg, fbits, TBL, tables_text, header, kd, NAME, srd, cmul, TPAD

OPT = dict(stamps=False, gblate=True, tpost=True)
ST, LD = ' sc1', ' sc1'
WSR, RA, RB, RC = 's[24:27]', 's[28:31]', 's[32:35]', 's[36:39]'
WAVE = 's40'
KN = NAME + '_kernel'
SPIN = 400000
TW1, TW2 = 112, 128
B1, A4, A2, B3 = 144, 168, 192, 216
FA, GB = 200, 208
NZ, NC0, NI0 = 128, 216, 248
uid = [0]

def stamp(k, i, pm=False):
    if OPT.get('pst') and 1 <= i <= 5 and not pm: return
    if OPT.get('zdet') and 1 <= i <= 11 and pm != 'z': return
    if pm == 'z' and not OPT.get('zdet'): return
    if OPT.get('bdet') and 1 <= i <= 11 and pm != 'b': return
    if pm == 'b' and not OPT.get('bdet'): return
    if OPT['stamps']: k(f's_{"memtime" if OPT.get("pst") else "memrealtime"} s[{76+2*i}:{77+2*i}]')
def stamp_out(k, n):
    if not OPT['stamps']: return
    k.wait(vm=0, lg=0); stamp(k, n); n += 1; k.wait(lg=0)
    k(f's_lshl_b32 s44, s2, 8\n s_lshl_b32 s45, {WAVE}, 6\n s_add_u32 s44, s44, s45\n s_add_u32 s44, s44, {STAMP}')
    for i in range(16): k(f'v_mov_b32 v{8+i}, s{76+2*i}' if i < n else f'v_mov_b32 v{8+i}, 0')
    k('v_mov_b32 v24, 0\n s_mov_b64 exec, 1')
    for q in range(4): k(f'buffer_store_dwordx4 {V(8+4*q,4)}, v24, {WSR}, s44 offen offset:{16*q}')

def wsrd(k, base, end):
    k(f's_mov_b32 s{base}, s24\n s_mov_b32 s{base+1}, s25\n s_mov_b32 s{base+2}, {end}\n s_mov_b32 s{base+3}, 0x20000')

def tbl_addr(k, vp, soff):
    k(f"""s_add_u32 s46, s42, {soff}
    s_addc_u32 s47, s43, 0
    v_mov_b32 v{vp+1}, s47
    v_add_co_u32 v{vp}, vcc, s46, v4
    v_addc_co_u32 v{vp+1}, vcc, 0, v{vp+1}, vcc""")

def gb_loads(k):
    for q in range(8): k(f'global_load_dwordx4 {A(GB+4*q,4)}, v[8:9], off offset:{1024*q-4096}')

def prologue(k):
    k.raw(f'.globl {KN}\n.p2align 8\n.type {KN},@function\n{KN}:')
    stamp(k, 0)
    k(f"""s_load_dwordx16 s[4:19], s[0:1], 0
    s_load_dwordx4 s[20:23], s[0:1], 64
    s_getpc_b64 s[42:43]""")
    k.raw('L_pc:')
    k(f"""s_cmp_ge_u32 s2, 256
    s_cbranch_scc1 L_end
    v_lshrrev_b32 v5, 6, v0
    v_and_b32 v1, 63, v0
    v_readfirstlane_b32 {WAVE}, v5
    s_lshr_b32 s44, s2, 3
    v_lshl_add_u32 v5, v5, 5, s44
    v_lshlrev_b32 v6, 6, v1
    v_lshl_add_u32 v5, v5, 12, v6""")
    k.raw('    v_min_u32 v5, L_image_end-L_pc-4, v5'); k.pos += 1
    k(f"""v_mov_b32 v7, s43
    v_add_co_u32 v6, vcc, s42, v5
    v_addc_co_u32 v7, vcc, 0, v7, vcc
    global_load_dword v255, v[6:7], off
    v_bfe_u32 v2, v0, 4, 2
    v_and_b32 v3, 15, v0
    v_lshlrev_b32 v4, 4, v1""")
    k.raw('    s_add_u32 s42, s42, tables-L_pc\n    s_addc_u32 s43, s43, 0'); k.pos += 2
    k(f's_cmp_ge_u32 s2, {NC0}\n s_cbranch_scc1 L_p1c')
    global st_c
    st_c = k.state()
    tbl_addr(k, 6, TBL['FA'])
    for c in range(2): k(f'global_load_dwordx4 {A(FA+4*c,4)}, v[6:7], off offset:{1024*c}')
    k(f"""s_cmp_lt_u32 s2, {NZ}
    s_cselect_b32 s45, {TBL["GBZ"]+4096}, {TBL["GBW"]+4096}
    s_lshl_b32 s44, {WAVE}, 13
    s_add_u32 s44, s44, s45""".replace(str(TBL["GBW"]+4096), 's47').replace('s_cmp_lt', f's_mov_b32 s47, {TBL["GBW"]+4096}\n s_cmp_lt'))
    tbl_addr(k, 8, 's44')
    if not OPT.get('gblate'): gb_loads(k)

def go_load(k, b):
    k(f'v_mov_b32 v{b}, 0\n global_load_dword v{b+4}, v{b}, s[20:21]{LD}')
def arrive_issue(k, b, cnt, go):
    k(f'v_mov_b32 v{b}, 0\n v_mov_b32 v{b+1}, 1\n s_mov_b64 exec, 1')
    if go:
        uid[0] += 1; u = uid[0]
        k('s_mov_b32 s46, 0')
        k.label(f'L_go{u}')
        k(f"""s_waitcnt vmcnt(0)
        v_cmp_ne_u32 vcc, 0, v{b+4}
        s_add_u32 s46, s46, 1
        s_cbranch_vccnz L_gone{u}
        global_load_dword v{b+4}, v{b}, s[20:21]{LD}
        s_cmp_lt_u32 s46, {SPIN}
        s_cbranch_scc1 L_go{u}""")
        k.label(f'L_gone{u}')
    k(f'buffer_atomic_add v{b+1}, v{b}, {WSR}, {cnt} offen sc0 sc1')
def arrive_check(k, b, flg, last, val):
    uid[0] += 1; u = uid[0]
    k(f"""s_mov_b64 exec, 0xff
    v_lshlrev_b32 v{b+2}, 11, v1
    v_mov_b32 v{b}, {val}
    v_readfirstlane_b32 s47, v{b+1}
    s_cmp_lg_u32 s47, {last}
    s_cbranch_scc1 L_nl{u}""")
    st = k.state()
    k(f'buffer_store_dword v{b}, v{b+2}, {WSR}, {flg} offen{ST}')
    k.restore(st)
    k.label(f'L_nl{u}')
def poll(k, b, val):
    uid[0] += 1; u = uid[0]
    k(f"""s_mov_b64 exec, 0xff
    v_lshlrev_b32 v{b+3}, 8, v1
    s_and_b32 s44, s2, 7
    s_lshl_b32 s44, s44, 11
    s_add_u32 s44, s44, {FLG}
    s_mov_b32 s46, 0""")
    k.label(f'L_bp{u}')
    k(f"""buffer_load_dword v{b+1}, v{b+3}, {WSR}, s44 offen{LD}
    s_add_u32 s46, s46, 1
    s_waitcnt vmcnt(0)
    v_cmp_gt_u32 vcc, {val}, v{b+1}
    s_cmp_gt_u32 s46, {SPIN}
    s_cbranch_scc1 L_bd{u}
    s_cbranch_vccnz L_bp{u}""")
    k.label(f'L_bd{u}')
    k('s_mov_b64 exec, -1')
def only_wave(k, w, fn):
    uid[0] += 1; u = uid[0]
    k(f's_cmp_lg_u32 {WAVE}, {w}\n s_cbranch_scc1 L_ow{u}')
    st = k.state(); fn(); k('s_mov_b64 exec, -1'); k.restore(st); k.label(f'L_ow{u}')

def p2_tables(k, vp=26):
    k(f's_lshl_b32 s44, {WAVE}, 13\n s_add_u32 s44, s44, {TBL["P2W"]+4096}')
    tbl_addr(k, vp, 's44'); tbl_addr(k, vp+2, TBL['P2S']+4096)
    o = [f'global_load_dwordx4 {V(B1+6*u+2,4)}, {V(vp,2)}, off offset:{1024*u-4096}' for u in range(4)]
    o += [f'global_load_dwordx4 {V(A2+6*u+2,4)}, {V(vp+2,2)}, off offset:{1024*u-4096}' for u in range(4)]
    o += [f'global_load_dwordx4 {V(B3+6*u+2,4)}, {V(vp+2,2)}, off offset:{1024*u}' for u in range(4)]
    o += [f'global_load_dwordx4 {V(A4+6*u+2,4)}, {V(vp,2)}, off offset:{1024*u}' for u in range(4)]
    return o
def flush(k):
    sp, k.sprinkle = k.sprinkle, []
    for t in sp: k(t)

def p1_z(k):
    X, DA, TR, SS, WL, WO = 32, 48, 80, 96, 104, 120
    k(f"""s_and_b32 s44, s2, 7
    s_lshr_b32 s45, s2, 4
    s_lshl_b32 s45, s45, 3
    s_add_u32 s44, s44, s45
    s_lshl_b32 s44, s44, 1
    s_bfe_u32 s45, s2, 0x10003
    s_add_u32 s60, s44, s45            ; (t,g,beta,bq)
    s_lshr_b32 s61, s60, 3
    s_lshl_b32 s61, s61, 7
    s_and_b32 s44, s60, 7
    s_lshl_b32 s44, s44, 2
    s_add_u32 s44, s44, s61
    s_add_u32 s44, s44, {WAVE}
    s_lshl_b32 s56, s44, 10
    s_add_u32 s57, s56, 0x8000
    s_add_u32 s58, s56, 0x10000
    s_add_u32 s59, s56, 0x18000
    s_mov_b32 s38, {S*D*2}
    s_mov_b32 s39, 0x20000
    s_bfe_u32 s48, s2, 0x20003
    s_and_b32 s44, s2, 7
    s_lshl_b32 s44, s44, 2
    s_add_u32 s48, s48, s44
    s_and_b32 s44, s2, 0x60
    s_add_u32 s48, s48, s44
    s_add_u32 s48, s48, 128""")
    wt_rows(k, 's48', 49)
    k(f's_mul_i32 s44, {WAVE}, {64*514}\n s_add_u32 s49, s49, s44')
    k.wait(lg=0)
    stamp(k, 1, 'z')
    k('s_mov_b32 s36, s4\n s_and_b32 s37, s5, 0xffff')
    for i in range(4): k(f'buffer_load_dwordx4 {V(X+4*i,4)}, v4, {RC}, s{56+i} offen')
    k(WSRDS)
    k(f'buffer_load_dwordx4 {V(WL,4)}, v11, {RA}, s49 offen\n buffer_load_dwordx4 {V(WL+4,4)}, v11, {RB}, s49 offen')
    gb_loads(k)
    wt_dest(k, 's48', 50)
    k(f"""s_lshl_b32 s44, {WAVE}, 2
    s_add_u32 s44, s44, 0xa000
    v_add_u32 v12, s44, v12
    s_lshl_b32 s44, {WAVE}, 5
    v_xor_b32 v13, s44, v4
    s_lshl_b32 s44, {WAVE}, 11
    s_add_u32 s44, s44, 0xa000
    v_add_u32 v13, s44, v13
    v_xor_b32 v14, 16, v13
    s_mul_i32 s44, {WAVE}, {16*WT_STRIDE}
    s_add_u32 s50, s50, s44
    s_add_u32 s51, s50, {8*WT_STRIDE}""")
    srd(k, 24, 22, WS_USED)
    k(f"""s_lshl_b32 s44, {WAVE}, 12
    v_add_u32 v30, s44, v4
    v_lshrrev_b32 v31, 1, v4
    v_add_u32 v31, s44, v31
    v_mul_u32_u24 v6, {TPAD}, v3
    v_lshl_add_u32 v6, v2, 8, v6
    s_lshl_b32 s44, {WAVE}, 6
    s_add_u32 s44, s44, 16384
    v_add_u32 v6, s44, v6
    s_mul_i32 s44, {WAVE}, {4*TPAD}
    s_add_u32 s44, s44, 16384
    v_add_u32 v7, s44, v4
    v_cmp_eq_u32 vcc, 0, v3
    v_cndmask_b32 v8, 0, 1.0, vcc
    s_mov_b32 s62, 0x3f803f80
    v_mul_u32_u24 v9, {ZT_STRIDE}, v3
    v_lshl_add_u32 v9, v2, 4, v9
    s_lshr_b32 s44, s60, 5
    s_lshl_b32 s44, s44, 11
    s_bfe_u32 s45, s60, 0x10002
    s_lshl_b32 s46, s45, 10
    s_add_u32 s44, s44, s46
    s_bfe_u32 s46, s60, 0x20003
    s_lshl_b32 s46, s46, 8
    s_add_u32 s44, s44, s46
    s_and_b32 s46, s60, 3
    s_lshl_b32 s47, s46, 6
    s_add_u32 s44, s44, s47
    s_lshl_b32 s63, s60, 7
    s_add_u32 s63, s63, {SM}
    s_mul_i32 s47, {WAVE}, {64*ZT_STRIDE}
    s_add_u32 s44, s44, s47
    s_add_u32 s64, s44, {ZT}
    s_add_u32 s65, s64, {16*ZT_STRIDE}
    s_add_u32 s66, s64, {32*ZT_STRIDE}
    s_add_u32 s67, s64, {48*ZT_STRIDE}
    s_lshl_b32 s44, {WAVE}, 4
    s_add_u32 s44, s44, 0x9000
    v_lshl_add_u32 v10, v2, 2, s44""")
    tl = p2_tables(k)
    if True:
        stamp(k, 2, 'z')
        for i in range(4):
            k(f'ds_write_b128 v30, {V(X+4*i,4)} offset:{1024*i}')
            if i == 0: stamp(k, 1)
            for r in range(2): k(f'ds_read_b64_tr_b16 {V(TR+4*i+2*r,2)}, v31 offset:{1024*i+512*r}')
            for j in range(4):
                k(f'v_dot2_f32_bf16 v{SS+i}, v{X+4*i+j}, s62, {"0" if j==0 else V(SS+i)}')
                k(f'v_dot2_f32_bf16 v{SS+4+i}, v{X+4*i+j}, v{X+4*i+j}, {"0" if j==0 else V(SS+4+i)}')
        stamp(k, 3, 'z')
        k.sprinkle = tl; k.every = OPT.get('tev', 28); k.since = 100
        stamp(k, 4, 'z')
        mf = [f'v_mfma_f32_16x16x32_bf16 {V(DA+8*i+4*c,4)}, {V(TR+4*i,4)}, {A(FA+4*c,4)}, 0' for i in range(4) for c in range(2)]
        k(mf.pop(0)); k(mf.pop(0))
        for b in (SS, SS+4):
            k(f'v_permlane32_swap_b32 v{b}, v{b+2}\n v_permlane32_swap_b32 v{b+1}, v{b+3}')
        for b in (SS, SS+4):
            k(f'v_add_f32 v{b}, v{b}, v{b+2}\n v_add_f32 v{b+1}, v{b+1}, v{b+3}')
        k(mf.pop(0))
        for b in (SS, SS+4): k(f'v_permlane16_swap_b32 v{b}, v{b+1}')
        for b in (SS, SS+4): k(f'v_add_f32 v{b}, v{b}, v{b+1}')
        for sh in (8, 4, 2, 1):
            k(mf.pop(0))
            for b in (SS, SS+4): k(f'v_add_f32_dpp v{b}, v{b}, v{b} row_ror:{sh} row_mask:0xf bank_mask:0xf')
        k(mf.pop(0))
        k(f"""v_mul_f32 v{SS}, {fbits(1/512)}, v{SS}
        v_mul_f32 v{SS+4}, {fbits(1/512)}, v{SS+4}
        v_fma_f32 v{SS+4}, -v{SS}, v{SS}, v{SS+4}
        v_max_f32 v{SS+4}, 0, v{SS+4}
        v_add_f32 v{SS+4}, {fbits(1e-5)}, v{SS+4}
        v_rsq_f32 v{SS+1}, v{SS+4}
        v_mul_f32 v{SS+2}, {fbits(-8.0)}, v{SS}
        v_mul_f32 v{SS+2}, v{SS+2}, v{SS+1}
        v_mul_f32 v{SS+3}, {fbits(0.25)}, v{SS+1}""")
        for i in range(4):
            k(f'v_readlane_b32 s{68+2*i}, v{SS+3}, {16*i}\n v_readlane_b32 s{69+2*i}, v{SS+2}, {16*i}')
        for i in range(4):
            d = DA + 8*i
            k(f'v_mul_f32 v{TR}, s{69+2*i}, v8')
            for h in range(2):
                k(f'v_pk_mul_f32 {V(d+4+2*h,2)}, {V(d+4+2*h,2)}, {Sg(68+2*i,2)} op_sel_hi:[1,0]')
            for h in range(2):
                k(f'v_pk_fma_f32 {V(d+2*h,2)}, {V(d+2*h,2)}, {Sg(68+2*i,2)}, {V(TR,2)} op_sel_hi:[1,0,0]')
            for h in (2, 3, 0, 1): k(f'v_cvt_pk_f16_f32 v{X+4*i+h}, v{d+2*h}, v{d+2*h+1}')
            k(f'ds_write_b128 v6, {V(X+4*i,4)} offset:{16*i}')
        k(f"""v_mul_f32 v{SS+4}, v{SS+4}, v{SS+1}
        ds_write2_b32 v10, v{SS+4}, v{SS} offset0:0 offset1:16""")
        print('tables left', len(k.sprinkle)); flush(k)
        for i in range(8):
            k(f'v_perm_b32 v{WO+i}, v{WL+4+(i>>1)}, v{WL+(i>>1)}, s{53+(i&1)}')
            k(f'ds_write_b32 v12, v{WO+i} offset:{128*i}')
        k.wait(lg=0); k('s_barrier')
        if OPT.get('zst'): stamp(k, 1)
        stamp(k, 5, 'z')
        for q in range(4): k(f'ds_read_b128 {V(TR+4*q,4)}, v7 offset:{TPAD*q}')
        k(f'ds_read_b128 {V(SS,4)}, v4 offset:0x9000')
        for n in range(2): k(f'ds_read_b128 {V(WL+4*n,4)}, v{13+n} offset:{1024*n}')
        for q in range(4):
            for o in range(2): k(f'v_mfma_f32_16x16x32_f16 {V(DA+8*q+4*o,4)}, {V(TR+4*q,4)}, {A(GB+8*q+4*o,4)}, 0')
        k.wait(lg=0)
        for n in range(2): k(f'buffer_store_dwordx4 {V(WL+4*n,4)}, v11, {WSR}, s{50+n} offen{ST}')
        only_wave(k, 3, lambda: k(f's_mov_b64 exec, 0xff\n buffer_store_dwordx4 {V(SS,4)}, v4, {WSR}, s63 offen{ST}'))
        for q in range(4):
            for h in range(4): k(f'v_cvt_pk_f16_f32 v{X+4*q+h}, v{DA+8*q+2*h}, v{DA+8*q+2*h+1}')
            k(f'buffer_store_dwordx4 {V(X+4*q,4)}, v9, {WSR}, s{64+q} offen{ST}')
        stamp(k, 6, 'z')
        stamp(k, 2)

def p1_w(k):
    OP, DA = 32, 64
    TBASE = 32768
    k(f"""s_and_b32 s61, s2, 1               ; mu
    s_bfe_u32 s60, s2, 0x60001
    s_and_b32 s44, s60, 3
    s_lshl_b32 s44, s44, 1
    s_bfe_u32 s45, s60, 0x10002
    s_add_u32 s44, s44, s45
    s_andn2_b32 s45, s60, 7
    s_add_u32 s44, s44, s45
    s_cmp_lt_u32 s60, 40
    s_cselect_b32 s60, s44, s60        ; phi
    s_mul_i32 s44, {WAVE}, {4*2752}
    s_lshl_b32 s45, s60, 6
    s_add_u32 s62, s44, s45
    v_lshrrev_b32 v10, 2, v1
    v_mul_u32_u24 v30, {16*2752}, v10
    v_and_b32 v11, 3, v1
    v_and_b32 v12, 1, v2
    v_lshlrev_b32 v12, 1, v12
    v_xor_b32 v13, v11, v12
    v_lshl_add_u32 v30, v13, 4, v30
    s_lshl_b32 s63, {WAVE}, 13
    s_mov_b32 s38, {D*F*2}
    s_mov_b32 s39, 0x20000
    """)
    k.wait(lg=0)
    k(f"""s_cmp_eq_u32 s61, 0
    s_cselect_b32 s36, s12, s14
    s_cselect_b32 s37, s13, s15
    s_and_b32 s37, s37, 0xffff""")
    pos = []
    for n in range(8):
        k(f's_add_u32 m0, s63, {1024*n}\n s_add_u32 s44, s62, {((n>>1) + 256*(n&1))*2752}')
        k(f'buffer_load_dwordx4 v30, {RC}, s44 offen lds'); pos.append(k.nvm)
    if OPT.get('gblate'): gb_loads(k)
    srd(k, 24, 22, WS_USED)
    k(f"""v_lshlrev_b32 v31, 6, v10
    v_lshl_add_u32 v31, v12, 4, v31
    v_lshl_add_u32 v31, v11, 3, v31
    v_add_u32 v30, s63, v31
    v_xor_b32 v31, 32, v30
    v_mul_u32_u24 v6, {4*TPAD}, v2
    v_lshl_add_u32 v6, v3, 4, v6
    s_lshl_b32 s44, {WAVE}, 8
    s_add_u32 s44, s44, {TBASE}
    v_add_u32 v6, s44, v6              ; T write
    s_mul_i32 s44, {WAVE}, {4*TPAD}
    s_add_u32 s44, s44, {TBASE}
    v_add_u32 v7, s44, v4              ; T read
    s_lshl_b32 s44, s60, 2
    v_lshrrev_b32 v12, 3, v3
    v_and_b32 v13, 7, v3
    v_lshlrev_b32 v13, 4, v13
    v_lshl_add_u32 v13, v2, 8, v13
    s_lshl_b32 s45, {WAVE}, 12
    s_add_u32 s62, s45, {WP}
    v_mov_b32 v19, s61""")
    for pp in range(2):
        k(f"""v_add_u32 v14, s44, v12            ; octet
        v_mul_u32_u24 v15, 373, v14
        v_lshrrev_b32 v15, 12, v15
        v_add_u32 v14, v14, v15            ; q
        v_mul_u32_u24 v15, 171, v14
        v_lshrrev_b32 v15, 9, v15
        v_mul_u32_u24 v15, 3, v15          ; q - q%3
        v_sub_u32 v16, v14, v15            ; n
        v_cmp_eq_u32 vcc, 2, v16
        v_add_u32 v15, s61, v15
        s_add_u32 s44, s44, 2
        v_cndmask_b32 v15, v15, v14, vcc   ; tile
        v_cndmask_b32 v16, v16, v19, vcc
        v_lshl_add_u32 v{8+pp}, v15, 14, v13
        v_lshl_add_u32 v{8+pp}, v16, 7, v{8+pp}""")
    tl = p2_tables(k)
    for dl in range(4):
        k(f's_waitcnt vmcnt({k.nvm - pos[2*dl+1]})')
        if dl == 0: stamp(k, 1)
        for pi in range(2):
            for h in range(2): k(f'ds_read_b64_tr_b16 {V(OP+8*dl+4*pi+2*h,2)}, v{30+pi} offset:{2048*dl+1024*h}')
    k.sprinkle = tl; k.every = OPT.get('tev', 28); k.since = 100
    for dl in range(4):
        for pi in range(2):
            for c in range(2):
                k(f'v_mfma_f32_16x16x32_bf16 {V(DA+32*pi+16*c+4*dl,4)}, {A(FA+4*c,4)}, {V(OP+8*dl+4*pi,4)}, 0')
    for pi in range(2):
        for r in range(4):
            u = OP + 16*pi + 4*r
            for c in range(2):
                for h in range(2):
                    d = DA + 32*pi + 16*c + 8*h + r
                    k(f'v_cvt_pk_bf16_f32 v{u+2*c+h}, v{d}, v{d+4}')
            k(f'ds_write_b128 v6, {V(u,4)} offset:{16*TPAD*pi+TPAD*r}')
    flush(k)
    k.wait(lg=0); k('s_barrier')
    for pi in range(2):
        for q in range(4): k(f'ds_read_b128 {V(OP+16*pi+4*q,4)}, v7 offset:{16*TPAD*pi+TPAD*q}')
    for pi in range(2):
        for q in range(4):
            for o in range(2):
                k(f'v_mfma_f32_16x16x32_bf16 {V(DA+32*pi+8*q+4*o,4)}, {A(GB+8*q+4*o,4)}, {V(OP+16*pi+4*q,4)}, 0')
    for pi in range(2):
        for p in range(2):
            for o in range(2):
                u = OP + 16*pi + 8*p + 4*o
                for hq in range(2):
                    for h in range(2):
                        d = DA + 32*pi + 8*(2*p+hq) + 4*o + 2*h
                        k(f'v_cvt_pk_bf16_f32 v{u+2*hq+h}, v{d}, v{d+1}')
                k(f'buffer_store_dwordx4 {V(u,4)}, v{8+pi}, {WSR}, s62 offen offset:{(2*p+o)*1024}{ST}')
    stamp(k, 2)

def wt_rows(k, task, dst):
    k(f"""s_bfe_u32 s44, {task}, 0x30002
    s_lshl_b32 s44, s44, 3
    s_lshr_b32 s45, {task}, 5
    s_lshl_b32 s45, s45, 8
    s_add_u32 s44, s44, s45
    s_mul_i32 s{dst}, s44, 514
    s_and_b32 s45, {task}, 3
    s_lshl_b32 s45, s45, 7
    s_add_u32 s{dst}, s{dst}, s45
    s_add_u32 s{dst}, s{dst}, 2
    v_lshrrev_b32 v12, 3, v1
    v_and_b32 v13, 7, v1
    v_mul_u32_u24 v11, 514, v12
    v_lshl_add_u32 v11, v13, 4, v11
    s_mov_b32 s30, {2048*257*2}
    s_mov_b32 s31, 0x20000
    s_mov_b32 s34, {2048*257*2}
    s_mov_b32 s35, 0x20000""")
def wt_dest(k, task, dst):
    k(f"""s_and_b32 s44, {task}, 3
    s_mul_i32 s{dst}, s44, {64*WT_STRIDE}
    s_lshr_b32 s44, {task}, 7
    s_lshl_b32 s44, s44, 12
    s_add_u32 s{dst}, s{dst}, s44
    s_bfe_u32 s44, {task}, 0x20003
    s_lshl_b32 s44, s44, 10
    s_add_u32 s{dst}, s{dst}, s44
    s_bfe_u32 s44, {task}, 0x20005
    s_lshl_b32 s44, s44, 8
    s_add_u32 s{dst}, s{dst}, s44
    s_bfe_u32 s44, {task}, 0x10002
    s_lshl_b32 s44, s44, 7
    s_add_u32 s{dst}, s{dst}, s44
    s_add_u32 s{dst}, s{dst}, {WT}
    s_mov_b32 s53, 0x05040100
    s_mov_b32 s54, 0x07060302
    v_mul_u32_u24 v11, {WT_STRIDE}, v12
    v_lshl_add_u32 v11, v13, 4, v11
    v_xor_b32 v12, v12, v13
    v_lshlrev_b32 v12, 4, v12
    v_lshl_add_u32 v12, v13, 10, v12""")
WSRDS = 's_mov_b32 s28, s6\n s_and_b32 s29, s7, 0xffff\n s_mov_b32 s32, s8\n s_and_b32 s33, s9, 0xffff'
def p1_t(k):
    WL, WO = 32, 64
    k(f's_sub_u32 s48, s2, {NC0}\n s_lshl_b32 s48, s48, 2\n s_add_u32 s48, s48, {WAVE}')
    wt_rows(k, 's48', 49)
    for r in range(1, 4): k(f's_add_u32 s{49+r}, s49, {64*r*514}')
    k.wait(lg=0)
    k(WSRDS)
    for r in range(4):
        k(f'buffer_load_dwordx4 {V(WL+8*r,4)}, v11, {RA}, s{49+r} offen')
        k(f'buffer_load_dwordx4 {V(WL+8*r+4,4)}, v11, {RB}, s{49+r} offen')
    srd(k, 24, 22, WS_USED)
    wt_dest(k, 's48', 56)
    k(f's_lshl_b32 s44, {WAVE}, 13\n v_add_u32 v12, s44, v12\n v_add_u32 v14, s44, v4')
    for n in range(1, 8): k(f's_add_u32 s{56+n}, s56, {8*n*WT_STRIDE}\n v_xor_b32 v{14+n}, {16*n}, v14')
    tl = p2_tables(k)
    for i in range(8):
        o = WO + 4*i
        for r in range(4): k(f'v_perm_b32 v{o+r}, v{WL+8*r+4+(i>>1)}, v{WL+8*r+(i>>1)}, s{53+(i&1)}')
        k(f'ds_write_b128 v12, {V(o,4)} offset:{128*i}')
        for t in tl[2*i:2*i+2]: k(t)
    stamp(k, 1)
    for n in range(8): k(f'ds_read_b128 {V(WL+4*n,4)}, v{14+n} offset:{1024*n}')
    for n in range(8): k(f'buffer_store_dwordx4 {V(WL+4*n,4)}, v11, {WSR}, s{56+n} offen{ST}')
    stamp(k, 2)

def p1_i(k):
    k.wait(lg=0)
    srd(k, 24, 22, WS_USED)
    k(f"""s_lshl_b32 s44, s2, 2
    s_add_u32 s44, s44, {WAVE}
    s_cmp_lg_u32 s44, {255*4}
    s_cbranch_scc1 L_noinit
    v_lshlrev_b32 v30, 8, v1
    v_lshlrev_b32 v31, 8, v3
    v_mov_b32 v32, 0
    s_mov_b32 s44, {FLG}
    s_mov_b32 s45, {FLG+16384}
    buffer_store_dword v32, v30, {WSR}, s44 offen{ST}
    buffer_store_dword v32, v30, {WSR}, s45 offen{ST}
    buffer_store_dword v32, v31, {WSR}, 0 offen{ST}
    v_mov_b32 v33, 1
    s_waitcnt vmcnt(0)
    s_mov_b64 exec, 1
    global_store_dword v32, v33, s[20:21]{ST}
    s_mov_b64 exec, -1""")
    k.label('L_noinit')
    k(f"""s_sub_u32 s60, s2, {NI0}
    s_lshl_b32 s61, s60, 1
    s_lshr_b32 s44, {WAVE}, 1
    s_add_u32 s61, s61, s44            ; t
    s_and_b32 s62, {WAVE}, 1
    s_lshl_b32 s62, s62, 2             ; p
    s_add_u32 s63, s62, 4
    s_lshl_b32 s44, s61, 5
    s_add_u32 s44, s44, 1
    v_lshl_add_u32 v30, v3, 1, s44     ; 2d+1
    v_and_b32 v31, 1, v2
    v_lshlrev_b32 v31, 7, v31
    v_cmp_lt_u32 s[64:65], 1, v2
    v_mov_b32 v36, {fbits(1/16)}
    s_mul_i32 s61, s61, {12*16384}
    s_add_u32 s61, s61, {WP+11*16384}""")
    for t in p2_tables(k): k(t)
    stamp(k, 1)
    k.fence(); k.label('L_inv')
    k(f"""s_lshl_b32 s44, s62, 1
    s_sub_u32 s45, 32, s44
    s_cmp_eq_u32 s44, 0
    s_cselect_b32 s45, 16, s45
    v_mov_b32 v33, s44
    v_mov_b32 v34, s45
    v_cndmask_b32 v33, v33, v34, s[64:65]
    v_add_u32 v33, v33, v31
    s_add_u32 s44, s44, 1
    s_sub_u32 s45, 32, s44
    v_mov_b32 v34, s44
    v_mov_b32 v35, s45
    v_cndmask_b32 v34, v34, v35, s[64:65]
    v_add_u32 v34, v34, v31
    v_cmp_eq_u32 vcc, 0, v33
    v_mov_b32 v35, 0x100
    v_mov_b32 v37, {fbits(1/math.sqrt(512))}
    v_cndmask_b32 v35, v33, v35, vcc
    v_cndmask_b32 v37, v36, v37, vcc
    s_lshl_b32 s45, s62, 11
    s_add_u32 s66, s61, s45""")
    for e in range(8):
        src = 'v35' if e == 0 else None
        if e: k(f'v_add_u32 v{40+e}, {32*(e&3)}, v{33+(e>>2)}')
        k(f'v_mul_u32_u24 v{40+e}, {src or V(40+e)}, v30')
        k(f'v_and_b32 v{40+e}, 0x3ff, v{40+e}')
        k(f'v_cvt_f32_u32 v{40+e}, v{40+e}')
        k(f'v_mul_f32 v{40+e}, {fbits(1/1024)}, v{40+e}')
    for e in range(8):
        k(f'v_cos_f32 v{48+e}, v{40+e}\n v_sin_f32 v{56+e}, v{40+e}')
    for e in range(8):
        sc = 'v37' if e == 0 else 'v36'
        k(f'v_mul_f32 v{48+e}, {sc}, v{48+e}\n v_mul_f32 v{56+e}, {sc}, -v{56+e}')
    for part in range(2):
        for h in range(4): k(f'v_cvt_pk_bf16_f32 v{64+4*part+h}, v{48+8*part+2*h}, v{48+8*part+2*h+1}')
        k(f'buffer_store_dwordx4 {V(64+4*part,4)}, v4, {WSR}, s66 offen offset:{1024*part}{ST}')
    k('s_add_u32 s62, s62, 1\n s_cmp_lt_u32 s62, s63\n s_cbranch_scc1 L_inv')
    stamp(k, 2)

WDL = 64
def wd_issue(k):
    srd(k, 36, 16, F*D*2)
    k(f"""s_lshl_b32 s44, {WAVE}, 7
    s_add_u32 s44, s44, s2
    s_sub_u32 s73, s44, 128
    s_cmp_lt_u32 s2, {NZ}
    s_cselect_b32 s73, s73, 352
    s_min_u32 s73, s73, 352
    s_lshr_b32 s44, s73, 1
    s_lshl_b32 s44, s44, 13
    s_and_b32 s45, s73, 1
    s_lshl_b32 s45, s45, 9
    s_add_u32 s44, s44, s45
    s_add_u32 s45, s44, 4096
    v_lshlrev_b32 v20, 3, v1""")
    for e in range(8): k(f'buffer_load_dwordx2 {V(WDL+2*e,2)}, v20, {RC}, s{44+(e>>2)} offen offset:{1024*(e&3)}')
def wd_finish(k):
    k(f's_cmp_ge_u32 s73, 352\n s_cbranch_scc1 L_nowd')
    st = k.state()
    k(f"""s_lshr_b32 s44, s73, 4
    s_bfe_u32 s45, s73, 0x20002
    s_mul_i32 s45, s45, 22
    s_add_u32 s44, s44, s45
    s_and_b32 s45, s73, 1
    s_mul_i32 s45, s45, {4*88}
    s_add_u32 s44, s44, s45
    s_lshl_b32 s44, s44, 11
    s_bfe_u32 s45, s73, 0x10001
    s_lshl_b32 s45, s45, 9
    s_add_u32 s44, s44, s45
    s_add_u32 s44, s44, {WD}
    s_mov_b32 s46, 0x05040100
    s_mov_b32 s47, 0x07060302
    v_mul_u32_u24 v20, {88*2048}, v2
    v_bfe_u32 v21, v1, 3, 1
    v_lshl_add_u32 v20, v21, 10, v20
    v_and_b32 v21, 7, v1
    v_lshl_add_u32 v20, v21, 4, v20""")
    for pi in range(4):
        o = WDL + 16 + 4*pi
        for h in range(4): k(f'v_perm_b32 v{o+h}, v{WDL+4*h+2+(pi>>1)}, v{WDL+4*h+(pi>>1)}, s{46+(pi&1)}')
        k(f'buffer_store_dwordx4 {V(o,4)}, v20, {WSR}, s44 offen offset:{128*pi}{ST}')
    k.fence()
    k.restore(st); k.label('L_nowd')

STATL = 131072
def p4_ids(k):
    k(f"""s_and_b32 s44, s2, 7
    s_lshl_b32 s44, s44, 2
    s_bfe_u32 s46, s2, 0x20003
    s_add_u32 s44, s44, s46
    s_lshr_b32 s45, s2, 5""")

def setup(k):
    if OPT.get('x216'):
        k(f"""s_and_b32 s44, s2, 7
        s_lshl_b32 s44, s44, 1
        s_bfe_u32 s45, s2, 0x10003
        s_add_u32 s48, s44, s45
        s_lshr_b32 s49, s2, 4
        s_lshl_b32 s45, s45, 2
        s_mov_b32 s46, s49""")
    elif OPT.get('x48'):
        k(f"""s_and_b32 s44, s2, 3
        s_lshl_b32 s44, s44, 2
        s_bfe_u32 s45, s2, 0x20003
        s_add_u32 s48, s44, s45
        s_and_b32 s44, s2, 4
        s_lshl_b32 s44, s44, 1
        s_lshr_b32 s46, s2, 5
        s_add_u32 s49, s44, s46
        s_lshl_b32 s45, s45, 1""")
    else:
        k(f"""s_and_b32 s44, s2, 1
        s_lshl_b32 s44, s44, 3
        s_bfe_u32 s45, s2, 0x30003
        s_add_u32 s48, s44, s45
        s_bfe_u32 s44, s2, 0x20001
        s_lshl_b32 s44, s44, 2
        s_lshr_b32 s46, s2, 6
        s_add_u32 s49, s44, s46
        s_lshl_b32 s46, s46, 1""")
    k(f"""s_mov_b32 s53, 0
    s_lshl_b32 s46, s48, 11
    s_lshl_b32 s47, s49, 7
    s_add_u32 s41, s46, s47
    s_add_u32 s41, s41, {RBF}
    v_mov_b32 v250, 0""")
    only_wave(k, 0, lambda: k(f'v_lshlrev_b32 v252, 15, v1\n s_mov_b64 exec, 3\n buffer_store_dword v250, v252, {WSR}, s41 offen{ST}\n global_load_dword v254, v250, s[20:21]{LD}'))
    stamp(k, 7, 'z')
    k(f"""s_lshl_b32 s44, {WAVE}, 4
    v_add_u32 v240, s44, v3
    v_cvt_f32_u32 v240, v240
    v_mul_f32 v240, {fbits(1/2048)}, v240
    v_lshlrev_b32 v241, 2, v2
    v_add_u32 v242, s44, v241
    v_cvt_f32_u32 v241, v241
    v_cvt_f32_u32 v242, v242
    v_cvt_f32_u32 v243, v3
    v_mul_f32 v243, {fbits(1/2048)}, v243""")
    for be in range(2):
        for r in range(4):
            t = TW1 + 8*be + r
            k(f'v_add_f32 v{t}, {fbits(16*be+r)}, v241\n v_mul_f32 v{t}, v{t}, v240')
            k(f'v_sin_f32 v{t+4}, v{t}\n v_cos_f32 v{t}, v{t}')
    for be in range(2):
        if be: k(f'v_add_f32 v243, {fbits(16/2048)}, v243')
        for r in range(4):
            t = TW2 + 8*be + r
            k(f'v_add_f32 v{t}, {fbits(r)}, v242\n v_mul_f32 v{t}, v{t}, v243')
            k(f'v_sin_f32 v{t+4}, v{t}\n v_cos_f32 v{t}, v{t}')
    k(f's_mul_i32 s44, s2, {ZT_STRIDE}\n s_add_u32 s44, s44, {ZT}')
    for u in range(4):
        k(f's_add_u32 s45, {WAVE}, {u}\n s_and_b32 s45, s45, 3\n s_lshl_b32 s45, s45, 11\n s_add_u32 s{55+u}, s44, s45\n v_add_u32 v{16+u}, s45, v4')
    k(f"""s_lshr_b32 s44, s2, 4
    s_sub_u32 s45, 32, s44
    s_cmp_eq_u32 s44, 0
    s_cselect_b32 s45, 16, s45
    s_bitcmp1_b32 s2, 3
    s_cselect_b32 s44, s45, s44
    s_and_b32 s45, s2, 7
    s_lshl_b32 s45, s45, 5
    s_add_u32 s44, s44, s45
    s_sub_u32 s44, s44, 1
    s_and_b32 s44, s44, 255
    s_mul_i32 s44, s44, {WT_STRIDE}
    s_lshl_b32 s45, {WAVE}, 10
    s_add_u32 s44, s44, s45
    s_add_u32 s59, s44, {WT}
    s_add_u32 s60, s59, 4096
    s_lshl_b32 s45, {WAVE}, 12
    s_add_u32 s61, s45, {SM}
    v_lshrrev_b32 v21, 2, v3
    v_lshlrev_b32 v21, 7, v21
    v_lshl_add_u32 v21, v2, 10, v21
    v_and_b32 v22, 3, v1
    v_lshl_add_u32 v22, v22, 4, v21
    s_mov_b32 s63, 0x80008000""")
    k(f"""v_and_b32 v23, 7, v1
    v_lshlrev_b32 v23, 8, v23
    s_and_b32 s74, s2, 7
    s_lshl_b32 s74, s74, 8
    s_add_u32 s75, s74, {FLG}
    s_sub_u32 s44, s2, {NZ}
    s_cmp_lt_u32 s44, {NC0-NZ}
    s_cselect_b32 s46, 1, 0
    s_cmp_ge_u32 s2, {NI0}
    s_cselect_b32 s46, 1, s46
    s_lshl_b32 s44, s46, 11
    s_lshl_b32 s45, s46, 14
    s_lshl_b32 s46, s46, 3
    s_sub_u32 s70, 19, s46
    s_add_u32 s71, s74, s44
    s_add_u32 s72, s75, s45
    s_lshl_b32 s44, s74, 3
    s_add_u32 s44, s44, {FLG+16384}
    v_add_u32 v23, s44, v23            ; flags of arrival set B
    v_mov_b32 v251, 1""")
    wd_issue(k)

def setup2(k):
    k(f"""v_lshrrev_b32 v20, 2, v1
    v_lshlrev_b32 v20, 15, v20
    v_and_b32 v24, 3, v1
    v_lshl_add_u32 v20, v24, 4, v20
    s_lshr_b32 s44, s2, 5
    s_lshl_b32 s44, s44, 6
    s_and_b32 s45, s2, 31
    s_add_u32 s44, s44, s45
    s_lshl_b32 s44, s44, 6
    s_lshl_b32 s45, {WAVE}, 19
    s_add_u32 s44, s44, s45
    s_add_u32 s62, s44, {HT}
    s_mul_i32 s44, s49, 11
    s_mul_i32 s45, {WAVE}, 3
    s_add_u32 s50, s44, s45
    s_add_u32 s44, s50, s49
    s_lshl_b32 s44, s44, 14
    s_add_u32 s44, s44, {WP}
    v_add_u32 v15, s44, v4
    v_add_u32 v28, 0x4000, v15
    v_add_u32 v29, 0x8000, v15
    s_and_b32 s46, {WAVE}, 1
    s_lshr_b32 s47, {WAVE}, 1
    s_lshl_b32 s45, s46, 15
    s_lshl_b32 s54, s47, 10
    s_add_u32 s54, s54, s45
    s_lshl_b32 s44, s48, 17
    s_add_u32 s44, s44, s54
    s_add_u32 s44, s44, {HT}
    v_and_b32 v6, 1, v2
    v_lshlrev_b32 v6, 5, v6
    v_xor_b32 v5, v6, v4
    v_add_u32 v5, s44, v5
    v_lshrrev_b32 v7, 2, v1
    v_lshl_add_u32 v6, v7, 6, v6
    v_lshl_add_u32 v6, v24, 3, v6
    s_lshl_b32 s44, s47, 5
    s_add_u32 s44, s44, s45
    v_xor_b32 v6, s44, v6
    v_xor_b32 v7, 32, v6
    v_lshrrev_b32 v9, 2, v3
    v_cmp_eq_u32 vcc, v9, v2
    s_lshl_b32 s47, s47, 8
    s_lshl_b32 s44, s46, 9
    s_add_u32 s44, s44, s47
    s_add_u32 s44, s44, {STATL}
    v_lshl_add_u32 v10, v3, 4, s44
    v_xor_b32 v8, 0x100, v10
    v_add_u32 v9, {STATL+2048}, v4
    v_cndmask_b32 v9, v9, v10, vcc
    v_lshrrev_b32 v24, 1, v2
    v_lshlrev_b32 v11, 8, v24
    v_xor_b32 v11, v11, v10
    s_mov_b32 s64, 0x22222222
    s_mov_b32 s65, s64
    s_mov_b32 s66, 0x44444444
    s_mov_b32 s67, s66
    s_mov_b32 s68, 0x88888888
    s_mov_b32 s69, s68
    v_add_u32 v25, s50, v24
    v_lshrrev_b32 v12, 1, v25
    v_lshlrev_b32 v12, 16, v12
    v_and_b32 v25, 1, v25
    v_lshl_add_u32 v12, v25, 9, v12
    v_and_b32 v25, 31, v1
    v_lshl_add_u32 v12, v25, 4, v12
    v_xor_b32 v12, s47, v12
    s_add_u32 s44, s50, 2
    s_lshr_b32 s45, s44, 1
    s_lshl_b32 s45, s45, 16
    s_and_b32 s44, s44, 1
    s_lshl_b32 s44, s44, 9
    s_add_u32 s44, s44, s45
    v_lshl_add_u32 v13, v24, 8, s44
    v_lshl_add_u32 v13, v3, 4, v13
    v_and_b32 v25, 1, v2
    v_xor_b32 v25, 1, v25
    v_lshlrev_b32 v25, 10, v25
    v_xor_b32 v13, s47, v13
    s_lshl_b32 s44, s46, 1
    s_sub_u32 s44, 1, s44
    v_mul_i32_i24 v25, s44, v25
    v_sub_u32 v13, v13, v25""")
    wsrd(k, 32, HF+86*65536)

def p2_negs(k, base):
    for u in range(4):
        for h in range(2): k(f'v_xor_b32 v{base+6*u+h}, s63, v{base+6*u+4+h}')

def wd_reg(u, i): return A(192+8*u+4*i, 4) if u < 8 else V(144+8*(u-8)+4*i, 4)
def wd_loads(u):
    o = [f'buffer_load_dwordx4 {wd_reg(u+s,i)}, v15, {WSR}, s51 offen offset:{2048*s+1024*i}{LD}' for s in range(2) for i in range(2)]
    return o + ['s_add_u32 s51, s51, 4096']
def wloads(R=RA):
    return [f'buffer_load_dwordx4 {A(12*ka+4*t,4)}, v{(15, 28, 29)[t]}, {R}, {("0", "s70", "s71", "s72")[ka>>2]} offen offset:{1024*(ka&3)}{LD}' for ka in range(16) for t in range(3)]

def p2(k):
    Z, WW, SG, DD, TT, PK = 32, 64, 80, 88, 104, 240
    for u in range(4):
        for be in range(2): k(f'buffer_load_dwordx4 {V(Z+8*u+4*be,4)}, v4, {WSR}, s{55+u} offen offset:{1024*be}{LD}')
    k(f"""buffer_load_dwordx4 {V(PK,4)}, v4, {WSR}, s59 offen{LD}
    buffer_load_dwordx4 {V(PK+4,4)}, v4, {WSR}, s60 offen{LD}
    buffer_load_dwordx4 {V(SG,4)}, v22, {WSR}, s61 offen{LD}
    buffer_load_dwordx4 {V(SG+4,4)}, v22, {WSR}, s61 offen offset:512{LD}""")
    setup2(k)
    k(f"""s_mov_b32 s28, s24
    s_mov_b32 s29, s25
    s_mov_b32 s31, 0x20000
    s_mov_b32 s36, s24
    s_mov_b32 s37, s25
    s_mov_b32 s39, 0x20000
    s_mov_b32 s70, 4096
    s_mov_b32 s71, 8192
    s_mov_b32 s72, 12288
    buffer_load_dword v26, v23, {WSR}, 0 offen{LD}""")
    for u in range(4):
        if u == OPT.get('c1', 1):
            k(f'v_cmp_ne_u32 vcc, 1, v26\n s_cmp_eq_u64 vcc, 0\n s_cselect_b32 s30, {WS_USED}, 0')
            k(f'buffer_load_dword v27, v23, {WSR}, 0 offen{LD}')
            k.sprinkle = wloads(); k.every = OPT.get('every', 64); k.since = 100
        for be in range(2):
            for o in range(2):
                d = V(DD+8*be+4*o, 4)
                k(f'v_mfma_f32_16x16x32_f16 {d}, {V(Z+8*u+4*be,4)}, {V(B1+6*u+2-2*o,4)}, {"0" if u==0 else d}')
        if u == 0: stamp(k, 5); stamp(k, 2, 'b')
    for t in range(2):
        for r in range(4):
            k(f'v_lshlrev_b32 v{WW+8*t+r}, 16, v{PK+4*t+r}\n v_and_b32 v{WW+8*t+4+r}, 0xffff0000, v{PK+4*t+r}')
    E = Z + 8
    for be in range(2):
        cmul(k, DD+8*be, DD+8*be+4, TW1+8*be, TW1+8*be+4, TT, TT+4, True)
        for h in range(4): k(f'v_cvt_pk_f16_f32 v{PK+4*be+h}, v{TT+2*h}, v{TT+2*h+1}')
        for t in range(2):
            for o in range(2):
                d = V(E+8*t+4*o, 4)
                k(f'v_mfma_f32_16x16x32_f16 {d}, {V(A2+6*(2*t+be)+2-2*o,4)}, {V(PK+4*be,4)}, {"0" if be==0 else d}')
    stamp(k, 3, 'b')
    global n1
    n1 = 48 - len(k.sprinkle); k.sprinkle = []
    k(f'v_cmp_ne_u32 vcc, 1, v27\n s_cmp_eq_u64 vcc, 0\n s_cselect_b32 s38, {WS_USED}, 0')
    k.sprinkle = wloads(RC)[n1:]
    for t in range(2):
        cmul(k, E+8*t, E+8*t+4, WW+8*t, WW+8*t+4, TT, TT+4, False)
        for h in range(4): k(f'v_cvt_pk_bf16_f32 v{PK+4*t+h}, v{TT+2*h}, v{TT+2*h+1}')
        for be in range(2):
            for o in range(2):
                d = V(DD+8*be+4*o, 4)
                k(f'v_mfma_f32_16x16x32_bf16 {d}, {V(PK+4*t,4)}, {V(B3+6*(2*be+t)+2-2*o,4)}, {"0" if t==0 else d}')
    for be in range(2):
        cmul(k, DD+8*be, DD+8*be+4, TW2+8*be, TW2+8*be+4, TT, TT+4, False)
        for h in range(4): k(f'v_cvt_pk_bf16_f32 v{PK+4*be+h}, v{TT+2*h}, v{TT+2*h+1}')
        k(f'ds_write_b128 v16, {V(PK+4*be,4)} offset:{1024*be}')
    def step4(u, src):
        for be in range(2):
            for o in range(2):
                d = V(DD+8*be+4*o, 4)
                k(f'v_mfma_f32_16x16x32_bf16 {d}, {V(A4+6*u+2-2*o,4)}, {V(src+4*be,4)}, {d}')
    for o in range(2):
        for be in range(2):
            for r in range(4):
                d = DD+8*be+4*o+r; hi = r & 1
                k(f'v_fma_mix_f32 v{d}, v{SG+4*be+r}, v{Z+4*be+2*o+(r>>1)}, 0 op_sel:[0,{hi},0] op_sel_hi:[0,1,0]')
    stamp(k, 4, 'b')
    k.wait(lg=0); k('s_barrier')
    for u in range(1, 4):
        for be in range(2): k(f'ds_read_b128 {V(Z+8*u+4*be,4)}, v{16+u} offset:{1024*be}')
    step4(0, PK)
    for u in range(1, 4): step4(u, Z+8*u)
    OUT = 64
    rest, k.sprinkle = k.sprinkle, []
    for o in range(2):
        for be in range(2):
            for h in range(2): k(f'v_cvt_pk_bf16_f32 v{OUT+4*o+2*be+h}, v{DD+8*be+4*o+2*h}, v{DD+8*be+4*o+2*h+1}')
    k('s_cmp_lg_u32 s2, 0\n s_cbranch_scc1 L_p2_st')
    for h in range(4): k(f'v_mov_b32 v{OUT+4+h}, v{OUT+h}\n v_mov_b32 v{OUT+h}, 0')
    k.label('L_p2_st')
    for o in range(2): k(f'buffer_store_dwordx4 {V(OUT+4*o,4)}, v20, {WSR}, s62 offen offset:{2048*o}{ST}')
    stamp(k, 5, 'b')
    return rest

def barrier2(k, rest):
    print('weight loads left after phase 2:', len(rest))
    k(f's_lshl_b32 s44, s48, 12\n s_add_u32 s44, s44, {HF}')
    k(f's_and_b32 s46, {WAVE}, 1')
    for p in range(4): k(f's_xor_b32 s45, s46, {p}\n s_lshl_b32 s45, s45, 10\n s_add_u32 s{55+p}, s44, s45')
    k(f"""s_lshl_b32 s44, s49, 17
    s_lshl_b32 s45, s48, 11
    s_add_u32 s44, s44, s45
    s_add_u32 s59, s44, {HRES}
    s_add_u32 s60, s59, 0x10000
    s_lshl_b32 s44, s48, 10
    s_add_u32 s61, s44, {SM+64}
    s_mov_b32 s46, 0""")
    rest = [t.replace(RC, WSR) for t in rest]
    print('group 1:', n1)
    k(f's_cmp_lg_u32 s30, 0\n s_cbranch_scc1 L_bok')
    st = k.state()
    k(f's_cmp_lg_u32 s38, 0\n s_cbranch_scc1 L_bok2')
    k.label('L_bchk')
    k(f"""buffer_load_dword v26, v23, {WSR}, 0 offen{LD}
    s_add_u32 s46, s46, 1
    s_waitcnt vmcnt(0)
    v_cmp_ne_u32 vcc, 1, v26
    s_cmp_gt_u32 s46, {SPIN}
    s_cbranch_scc1 L_bgo
    s_cbranch_vccnz L_bchk""")
    k.label('L_bgo')
    for t in wloads(WSR)[n1:48-len(rest)]: k(t)
    k.label('L_bok2')
    for t in wloads(WSR)[:n1]: k(t)
    k.restore(st)
    k.label('L_bok')
    stamp(k, 6)
    nA = min(OPT.get('nA', 12), len(rest)); nB = min(OPT.get('nB', 48), len(rest) - nA)
    for t in rest[:nA]: k(t)
    stamp(k, 6, 'b')
    k(f'v_mov_b32 v250, 0\n v_mov_b32 v251, 1\n s_cmp_lg_u32 {WAVE}, 0\n s_cbranch_scc1 L_b2o')
    st = k.state()
    k(f's_mov_b64 exec, 1\n s_waitcnt vmcnt({nA})'); stamp(k, 7, 'b'); k('s_barrier'); stamp(k, 8, 'b')
    k(f'buffer_atomic_add v251, v250, {WSR}, s74 offen sc0 sc1\n s_mov_b64 exec, -1')
    for t in rest[nA:nA+nB]: k(t)
    stamp(k, 9, 'b'); arrive_check(k, 250, 's75', 51, 2); stamp(k, 10, 'b'); poll(k, 250, 2)
    k('s_branch L_b2x')
    k.restore(st); k.label('L_b2o')
    k(f's_waitcnt vmcnt({nA})'); stamp(k, 7, 'b'); k('s_barrier'); stamp(k, 8, 'b')
    for t in rest[nA:nA+nB]: k(t)
    stamp(k, 9, 'b'); stamp(k, 10, 'b')
    assert len(rest) == nA + nB
    def hw():
        k('v_bfe_u32 v16, v1, 2, 1\n v_lshlrev_b32 v16, 9, v16\n v_bfe_u32 v17, v1, 3, 1\n v_lshl_add_u32 v16, v17, 4, v16\n v_and_b32 v17, 3, v1\n v_lshl_add_u32 v16, v17, 2, v16')
        for j in range(8): k(f'buffer_load_dword v{MUV+j}, v16, {WSR}, s61 offen offset:{128*((j^3)>>1)+32*((j^3)&1)}{LD}')
    only_wave(k, 3, hw)
    k.label('L_b2x')
    k('s_barrier')

ACT, ACC, TM, STV, MUV = 32, 64, 128, 16, 24
def cost(t):
    m = t.split()[0]
    if m.startswith(('v_exp', 'v_rcp', 'v_rsq', 'v_permlane', 'buffer', 'ds_write')): return 8
    return 4 * (t.count('\n') + 1)

def p3_body(k, hw):
    acc = lambda p, n, m, par=0: ACC + 32*(p & 1) + 8*(n + (par if n == 2 and hw else 0)) + 4*m
    GR = 28 if not hw else TM + 12
    dma_pos = []
    def dma(j):
        o = f'buffer_load_dwordx4 v5, {WSR}, s53 offen offset:{2048*(j&1)}{LD} lds'
        if j & 1:
            st = 4096 + (32768 if j == 15 else 0)
            return o + f'\n s_add_u32 s53, s53, {st}\n s_add_u32 s54, s54, {st}'
        return 's_mov_b32 m0, s54\n' + o
    def slot(g, m): return ACT + 8*(g & 3) + 4*m
    def reads(g):
        p, ka = divmod(g, 16); o = []
        if p and ka == 0:
            x = (p ^ (p-1)) << 15
            o = [f'v_xor_b32 v6, {x:#x}, v6', f'v_xor_b32 v7, {x:#x}, v7']
        return o + [f'ds_read_b64_tr_b16 {V(slot(g,m)+2*h,2)}, v{6+m} offset:{2048*ka+1024*h}' for m in range(2) for h in range(2)]
    def chains(p, J):
        if p == 3:
            P = J[::2]
            o = [f'v_pk_mul_f32 {V(t,2)}, {V(g,2)}, {V(g,2)}' for g, u, t, c in P]
            o += [f'v_pk_fma_f32 {V(t,2)}, {V(t,2)}, {V(c,2)}, {V(c,2)} op_sel:[0,1,0] op_sel_hi:[1,1,0]' for g, u, t, c in P]
            o += [f'v_pk_mul_f32 {V(t,2)}, {V(t,2)}, {V(g,2)}' for g, u, t, c in P]
            o += [f'v_exp_f32 v{t}, v{t}' for g, u, t, c in J]
            o += [f'v_pk_mul_f32 {V(g,2)}, {V(g,2)}, {V(u,2)}' for g, u, t, c in P]
            o += [f'v_pk_fma_f32 {V(t,2)}, {V(t,2)}, {V(c+2,2)}, {V(c+2,2)} op_sel_hi:[1,0,0]' for g, u, t, c in P]
            o += [f'v_rcp_f32 v{t}, v{t}' for g, u, t, c in J]
            o += [f'v_pk_mul_f32 {V(g,2)}, {V(g,2)}, {V(t,2)}' for g, u, t, c in P]
            return o
        o = [f'v_mul_f32 v{t}, v{g}, v{g}' for g, u, t, c in J]
        o += [f'v_fma_f32 v{t}, v{t}, v{c+1}, v{c}' for g, u, t, c in J]
        o += [f'v_mul_f32 v{t}, v{t}, v{g}' for g, u, t, c in J]
        for g, u, t, c in J: o += [f'v_exp_f32 v{t}, v{t}', f'v_mul_f32 v{g}, v{g}, v{u}']
        o += [f'v_fma_f32 v{t}, v{t}, v{c+2}, v{c+2}' for g, u, t, c in J]
        o += [f'v_rcp_f32 v{t}, v{t}' for g, u, t, c in J]
        o += [f'v_mul_f32 v{g}, v{g}, v{t}' for g, u, t, c in J]
        return o
    def epilogue(p):
        HA, HX = TM + 8, TM + 12
        J = [(acc(p, 0, m)+r, acc(p, 1, m)+r, TM+4*m+r, STV+4*m) for m in range(2) for r in range(4)]
        o = []
        if not hw: o += [f'v_permlane32_swap_b32 v{acc(p,2,0)+r}, v{acc(p,2,1)+r}' for r in range(4)]
        o += chains(p, J)
        o += [f'v_cvt_pk_bf16_f32 v{HA+2*m+h}, v{acc(p,0,m)+2*h}, v{acc(p,0,m)+2*h+1}' for h in range(2) for m in range(2)]
        tail = [f'v_permlane16_swap_b32 v{HA}, v{HA+2}', f'v_permlane16_swap_b32 v{HA+1}, v{HA+3}',
                f'buffer_store_dwordx4 {V(HA,4)}, v12, {RB}, s{55+p} offen{ST}']
        if not hw:
            x = chains(p, [(acc(p, 2, 0)+r, acc(p, 2, 1)+r, TM+r, STV+8) for r in range(4)])
            o += x[:2] + tail + x[2:]
            o += [f'v_cvt_pk_bf16_f32 v{HX+2*(p&1)+h}, v{acc(p,2,0)+2*h}, v{acc(p,2,0)+2*h+1}' for h in range(2)]
            if p & 1: o += [f'v_permlane16_swap_b32 v{HX}, v{HX+2}', f'v_permlane16_swap_b32 v{HX+1}, v{HX+3}',
                            f'buffer_store_dwordx4 {V(HX,4)}, v13, {RB}, s{55+p} offen{ST}']
        else:
            for m in range(2):
                e, od = acc(p, 2, m), acc(p, 2, m, 1); t = TM
                o += [f'v_add_f32 v{e+r}, v{e+r}, v{MUV+2*p+m}' for r in range(4)]
                if m == 0: o += tail
                for r in range(4): o += [f'v_add_f32 v{t+r}, v{e+r}, v{od+r}', f'v_sub_f32 v{t+4+r}, v{e+r}, v{od+r}']
                P0, P1 = acc(p, 2, 0), acc(p, 2, 0, 1)
                o += [f'v_cvt_pk_bf16_f32 v{P0+2*m}, v{t}, v{t+1}', f'v_cvt_pk_bf16_f32 v{P0+2*m+1}, v{t+2}, v{t+3}',
                      f'v_cvt_pk_bf16_f32 v{P1+2-2*m}, v{t+7}, v{t+6}', f'v_cvt_pk_bf16_f32 v{P1+3-2*m}, v{t+5}, v{t+4}']
            off = 512*(p ^ 1)
            o += [f'v_permlane16_swap_b32 v{P0}, v{P0+2}', f'v_permlane16_swap_b32 v{P0+1}, v{P0+3}',
                  f'buffer_store_dwordx4 {V(P0,4)}, v13, {WSR}, s59 offen offset:{off}{ST}',
                  f'v_permlane16_swap_b32 v{P1+2}, v{P1}', f'v_permlane16_swap_b32 v{P1+3}, v{P1+1}',
                  f'buffer_store_dwordx4 {V(P1,4)}, v14, {WSR}, s60 offen offset:{off}{ST}']
        return o
    def stats(p):
        K0 = -2*math.sqrt(2/math.pi)*math.log2(math.e); b = GR
        return [f'v_cndmask_b32 v{b}, v{b}, v{b+1}, s[64:65]', f'v_cndmask_b32 v{b}, v{b}, v{b+2}, s[66:67]', f'v_cndmask_b32 v{b}, v{b}, v{b+3}, s[68:69]',
                f'v_mov_b32 v{b+2}, {fbits(1e-5)}', f'v_fmac_f32 v{b+2}, {fbits(1/512)}, v{b}', f'v_rsq_f32 v{b+3}, v{b+2}',
                f'v_mul_f32 v{b}, {fbits(K0)}, v{b+3}', f'v_mul_f32 v{b+3}, v{b+3}, v{b+3}', f'v_mul_f32 v{b+1}, {fbits(0.044715)}, v{b}', f'v_mul_f32 v{b+1}, v{b+1}, v{b+3}',
                f'ds_write_b128 v9, {V(b,4)} offset:{512*p}']
    def getstats(p):
        R = [(10, STV), (8, STV+4)] + ([] if hw else [(11, STV+8)])
        o = [f'v_xor_b32 v{a}, 0x200, v{a}' for a, _ in R] if p else []
        return o + [f'ds_read_b128 {V(d,4)}, v{a} offset:{1024*(p>>1)}' for a, d in R]
    def issue_dma(j): k(dma(j)); dma_pos.append(k.nvm)
    for j in range(16): issue_dma(j)
    if hw: k('v_and_b32 v13, 0x1f0, v4\n v_xor_b32 v13, 0x100, v13\n v_lshrrev_b32 v14, 5, v1\n v_lshl_add_u32 v13, v14, 15, v13\n v_xor_b32 v14, 0x8000, v13')
    p4_ids(k)
    k(f"""s_mov_b32 s51, 0
    s_lshl_b32 s45, s45, 2
    s_add_u32 s45, s45, {WAVE}
    s_mul_i32 s45, s45, {22*2048}
    s_add_u32 s45, s45, {WD}
    v_add_u32 v15, s45, v4
    s_lshr_b32 s46, s44, 1
    s_lshl_b32 s45, s46, 11
    s_add_u32 s62, s45, {RBF}
    s_add_u32 s63, s62, 0x8000
    s_lshl_b32 s46, s46, 2
    s_and_b32 s44, s44, 1
    s_add_u32 s73, s46, s44
    s_lshl_b32 s46, s73, 10
    s_lshl_b32 s47, {WAVE}, 16
    s_add_u32 s46, s46, s47
    s_add_u32 s71, s46, {HF}
    s_mov_b32 s72, 0""")
    def landed(j): k(f's_waitcnt vmcnt({min(63, k.nvm - dma_pos[j])})'); k('s_barrier')
    landed(1)
    stamp(k, 8)
    for t in reads(0) + reads(1): k(t)
    wdq = [t for u in range(0, 22, 2) for t in wd_loads(u)]
    W0, W1 = OPT.get('wdspan', (18, 54))
    st_pos = None
    eq = [hload(0, u, RC) for u in range(22)]
    for p in range(4):
        pre = stats(p-1) if p & 1 else []
        bg = ((getstats(p-1) if p & 1 else []) + epilogue(p-1) + (getstats(p) if p & 1 else [])) if p else []
        k0 = 2 if p & 1 else 0
        k1 = OPT.get('e1end', 12) if p == 2 else 16
        tot = sum(map(cost, bg)); done = 0
        for ka in range(16):
            g = 16*p + ka
            fill = []
            if ka % 2 == 0:
                k.wait(lg=0)
                if p & 1 and ka == 2:
                    assert not pre
                    if p == 3: k(f's_waitcnt vmcnt({min(63, k.nvm - st_pos)})')
                    k('s_barrier')
                    if p == 3 and hw: k(f'v_mov_b32 v{MUV}, 0\n v_mov_b32 v{MUV+1}, 1\n s_mov_b64 exec, 1\n buffer_store_dword v{MUV+1}, v{MUV}, {WSR}, s41 offen{ST}\n s_mov_b64 exec, -1')
                if p == 0 and ka < 14: fill.append(('land', ka + 3))
                if p == 1 and ka == 12: fill.append(('land', 31))
                if g + 2 < 64: fill += reads(g + 2) + reads(g + 3)
            if p == 0 and ka % 2: fill += [('dma', 15 + ka), ('dma', 16 + ka)]
            base = sum(8 if isinstance(f, tuple) else cost(f) for f in fill)
            if ka == 1: fill += pre; pre = []
            if ka >= k0:
                budget = tot * (ka + 1 - k0) / (k1 - k0) + (-base/2 if ka % 2 == 0 else 0)
                while bg and (done + cost(bg[0])/2 <= budget or ka == k1 - 1):
                    done += cost(bg[0]); fill.append(bg.pop(0))
            wgt = lambda x: 0 if not W0 <= x < W1 else (4 if 32 + OPT.get('e1end', 12) <= x < 48 else 1)
            if wgt(g):
                left = sum(map(wgt, range(g, 64)))
                ne = (len(wdq) * wgt(g) + left - 1) // left
                fill += wdq[:ne]; wdq = wdq[ne:]
            if g == 48 + OPT.get('esamp', 10): fill += ['v_lshlrev_b32 v5, 7, v3', f'buffer_load_dword v9, v5, {WSR}, s62 offen{LD}', 'v_add_u32 v15, s71, v4']
            if g == 48 + OPT.get('echk', 13): fill += [f'v_cmp_ne_u32 vcc, 1, v9\n s_cmp_eq_u64 vcc, 0\n s_cselect_b32 s38, s34, 0']
            if g >= 48 + OPT.get('echk', 13):
                fill += eq[:2]; eq = eq[2:]
            mf = []
            if p % 2 == 0: mf.append(f'v_mfma_f32_16x16x32_bf16 {V(GR,4)}, {V(slot(g,0),4)}, {V(slot(g,0),4)}, {"0" if ka==0 else V(GR,4)}')
            for m in range(2):
                b = V(slot(g, m), 4)
                for n in range(3):
                    d = V(acc(p, n, m, ka & 1), 4)
                    first = ka == 0 or (n == 2 and ka == 1 and hw)
                    mf.append(f'v_mfma_f32_16x16x32_bf16 {d}, {A(12*ka+4*n,4)}, {b}, {"0" if first else d}')
            fc = lambda f: 12 if isinstance(f, tuple) else cost(f)
            ftot = sum(map(fc, fill)); fd = 0
            for i, t in enumerate(mf):
                k(t)
                while fill and fd + fc(fill[0])/2 <= ftot * (i+1) / len(mf) + 1e-6:
                    f = fill.pop(0); fd += fc(f)
                    if isinstance(f, tuple):
                        if f[0] == 'dma': issue_dma(f[1])
                        elif f[0] == 'land': landed(f[1])
                        elif f[0] == 'flag':
                            k(f's_waitcnt vmcnt({min(63, k.nvm - st_pos)})'); k('s_barrier')
                            if hw: k(f'v_mov_b32 v{MUV}, 0\n v_mov_b32 v{MUV+1}, 1\n buffer_store_dword v{MUV+1}, v{MUV}, {WSR}, s41 offen{ST}')
                    else: k(f)
            assert not fill
            if p == 2 and ka == k1 - 1: st_pos = k.nvm
        assert not bg
        if p == 0: stamp(k, 9)
        if OPT.get('pst'): stamp(k, 1+p, True)
    assert not wdq
    stamp(k, 10)
    ep = epilogue(3); ne = OPT.get('eepi', 6); gap = 5
    for i, t in enumerate(ep):
        k(t)
        if i % gap == gap - 1 and ne > 0: k(eq.pop(0)); ne -= 1
    assert ne == 0
    if OPT.get('pst'): stamp(k, 5, True)
    return 22 - len(eq)

def hload(hf, u, R):
    return f'buffer_load_dwordx4 {A(88*hf+4*u,4)}, v15, {R}, s72 offen offset:{2048*hf}{LD}\n ' + ('s_add_u32 s72, s72, 0x40000' if u < 21 else 's_mov_b32 s72, 0')

def redo(k, soff, hf, n):
    uid[0] += 1; u = uid[0]
    k(f's_cmp_lg_u32 s38, 0\n s_cbranch_scc1 L_sd{u}')
    st = k.state()
    k('s_mov_b32 s46, 0')
    k.label(f'L_sp{u}')
    k(f"""buffer_load_dword v6, v5, {WSR}, {soff} offen{LD}
    s_add_u32 s46, s46, 1
    s_waitcnt vmcnt(0)
    v_cmp_ne_u32 vcc, 1, v6
    s_cmp_gt_u32 s46, {SPIN}
    s_cbranch_scc1 L_sg{u}
    s_cbranch_vccnz L_sp{u}""")
    k.label(f'L_sg{u}')
    k('s_mov_b32 s72, 0')
    for j in range(n): k(hload(hf, j, RB))
    k.restore(st)
    k.vm = [set()] * 8 + [{('a', 88*hf+4*j+r) for r in range(4)} for j in range(n)]
    k.label(f'L_sd{u}')

def spin(k, reg, soff):
    uid[0] += 1; u = uid[0]
    k(f'v_cmp_ne_u32 vcc, 1, v{reg}\n s_mov_b32 s46, 0\n s_cbranch_vccz L_sd{u}')
    st = k.state()
    k.label(f'L_sp{u}')
    k(f"""buffer_load_dword v{reg}, v5, {WSR}, {soff} offen{LD}
    s_add_u32 s46, s46, 1
    s_waitcnt vmcnt(0)
    v_cmp_ne_u32 vcc, 1, v{reg}
    s_cmp_gt_u32 s46, {SPIN}
    s_cbranch_scc1 L_sd{u}
    s_cbranch_vccnz L_sp{u}""")
    k.restore(st)
    k.label(f'L_sd{u}')

QS, INS, PS = 1152, 4736, 9472
def p4(k, n0, nst):
    HR, RD, SUM = 32, 40, 128
    PRE = OPT.get('p4pre', 14)
    uid[0] += 1; u0 = uid[0]
    k(f's_cmp_lg_u32 s38, 0\n s_cbranch_scc1 L_e{u0}')
    k('s_mov_b32 s46, 0')
    k.label(f'L_es{u0}')
    k(f"""buffer_load_dword v6, v5, {WSR}, s62 offen{LD}
    s_add_u32 s46, s46, 1
    s_waitcnt vmcnt(0)
    v_cmp_ne_u32 vcc, 1, v6
    s_cmp_gt_u32 s46, {SPIN}
    s_cbranch_scc1 L_eg{u0}
    s_cbranch_vccnz L_es{u0}""")
    k.label(f'L_eg{u0}')
    k('s_mov_b32 s72, 0')
    for j in range(n0): k(hload(0, j, RB))
    k('s_waitcnt vmcnt(0)')
    k.label(f'L_e{u0}')
    k.vm = [{('a', 4*j+r) for r in range(4)} for j in range(n0)] + [set()] * nst
    base = k.nvm
    stamp(k, 11)
    setup = f"""s_mov_b32 s28, s18
    s_and_b32 s29, s19, 0xffff
    s_mov_b32 s30, {S*D*2}
    s_lshr_b32 s65, s2, 5
    v_lshrrev_b32 v16, 3, v1
    v_bfe_u32 v17, v1, 1, 2
    s_lshl_b32 s46, s65, 2
    v_add_u32 v17, s46, v17            ; 16-column block
    v_sub_u32 v18, 31, v17
    v_min_u32 v18, v17, v18
    v_lshlrev_b32 v18, 17, v18
    v_lshrrev_b32 v17, 4, v17
    v_lshl_add_u32 v18, v17, 16, v18
    v_lshl_add_u32 v18, v16, 4, v18
    v_and_b32 v17, 1, v1
    v_lshl_add_u32 v8, v17, 15, v18    ; residual
    s_lshl_b32 s66, s73, 9
    s_lshl_b32 s46, {WAVE}, 7
    s_add_u32 s66, s66, s46
    s_add_u32 s66, s66, {HRES}
    v_mov_b32 v20, 0
    v_mov_b32 v21, 1
    s_add_u32 s41, s41, 0x8000
    s_lshr_b32 s46, s73, 2
    s_lshl_b32 s46, s46, 17
    s_and_b32 s44, s73, 3
    s_lshl_b32 s44, s44, 2
    s_add_u32 s44, s44, {WAVE}
    s_lshl_b32 s44, s44, 10
    s_add_u32 s67, s46, s44
    s_lshl_b32 s45, s65, 7
    s_add_u32 s67, s67, s45
    s_add_u32 s68, s67, 0x2000
    v_and_b32 v9, 7, v1
    v_lshlrev_b32 v9, 4, v9
    v_and_b32 v18, 3, v16
    v_lshl_add_u32 v9, v18, 15, v9
    v_lshrrev_b32 v18, 2, v16
    v_lshl_add_u32 v9, v18, 14, v9     ; output
    v_lshrrev_b32 v18, 5, v1
    v_lshl_add_u32 v10, v18, 6, v4
    s_mul_i32 s44, {WAVE}, {PS}
    v_add_u32 v10, s44, v10            ; partial sums, write
    v_bfe_u32 v18, v1, 2, 1
    v_mul_u32_u24 v11, {INS}, v18
    v_bfe_u32 v18, v1, 1, 1
    v_mul_u32_u24 v18, 576, v18
    v_add_u32 v11, v11, v18
    v_lshl_add_u32 v11, v16, 4, v11
    v_lshl_add_u32 v11, v17, 3, v11
    s_lshl_b32 s44, {WAVE}, 7
    v_add_u32 v11, s44, v11            ; partial sums, read
    v_add_u32 v12, {4*PS}, v11""".split('\n')
    def resid(hf): k(f'buffer_load_dwordx4 {V(HR+4*hf,4)}, v8, {WSR}, s66 offen offset:{1024*hf}{LD}')
    def mm(hf, issued, hook):
        for u in range(22):
            for i in range(2):
                d = V(ACC+32*hf+16*i, 16)
                k(f'v_mfma_f32_32x32x16_bf16 {d}, {wd_reg(u, i)}, {A(88*hf+4*u,4)}, {"0" if u==0 else d}')
                if i == 0 and issued < 22: k(hload(hf, issued, RB)); issued += 1
                elif i == 0 and issued == 22: resid(hf); issued += 1
                hook(u, i)
    def red_write(hf):
        o = [f'ds_write_b128 v10, {V(ACC+32*hf+16*i+4*q,4)} offset:{4*PS*hf+INS*i+QS*q}' for i in range(2) for q in range(4)]
        for j in range(4):
            o += [f'v_lshlrev_b32 v{SUM+4*(j&1)+(j>>1)}, 16, v{HR+4*hf+j}', f'v_and_b32 v{SUM+4*(j&1)+2+(j>>1)}, 0xffff0000, v{HR+4*hf+j}']
        return o
    def red_read(hf):
        R = lambda w, q: (RD + 8*w + 2*q) if w < 3 else SUM + 8 + 2*q
        for w in range(4):
            for q in range(4): k(f'ds_read_b64 {V(R(w,q),2)}, v{11+hf} offset:{PS*w+QS*q}')
        for w in range(4):
            for q in range(4): k(f'v_pk_add_f32 {V(SUM+2*q,2)}, {V(SUM+2*q,2)}, {V(R(w,q),2)}')
        for j in range(4): k(f'v_cvt_pk_bf16_f32 v{HR+4*hf+j}, v{SUM+4*(j&1)+(j>>1)}, v{SUM+4*(j&1)+2+(j>>1)}')
        k(f'buffer_store_dwordx4 {V(HR+4*hf,4)}, v9, {RA}, s{67+hf} offen{OPT.get("ost", "")}')
    def hook0(u, i):
        for _ in range(4):
            if setup: k(setup.pop(0))
        if u == OPT.get('lflag', 9) and i == 1:
            assert not setup
            k(f's_waitcnt vmcnt({k.nvm - base})'); k('s_barrier')
            only_wave(k, 0, lambda: k(f'buffer_store_dword v21, v20, {WSR}, s41 offen{ST}'))
            if OPT.get('p4st'): stamp(k, 1, True)
    mm(0, n0, hook0)
    if OPT.get('p4st'): stamp(k, 2, True)
    for t in red_write(0): k(t)
    k.wait(lg=0); k('s_barrier')
    k(f'buffer_load_dword v6, v5, {WSR}, s63 offen{LD}')
    red_read(0)
    if OPT.get('p4st'): stamp(k, 3, True)
    spin(k, 6, 's63')
    for j in range(PRE): k(hload(1, j, RB))
    if OPT.get('p4st'): stamp(k, 4, True)
    mm(1, PRE, lambda u, i: None)
    if OPT.get('p4st'): stamp(k, 5, True)
    for t in red_write(1): k(t)
    k.wait(lg=0); k('s_barrier')
    red_read(1)

def fused():
    k = K()
    prologue(k)
    k(f's_cmp_ge_u32 s2, {NZ}\n s_cbranch_scc1 L_notz')
    st0 = k.state()
    p1_z(k)
    k.label('L_join1')
    k.vm = [set()] * 40; k.lg = []
    setup(k)
    stamp(k, 3)
    negs = lambda: [p2_negs(k, b) for b in (B1, A2, B3, A4)]
    stamp(k, 8, 'z')
    k(f's_cmp_lg_u32 {WAVE}, 0\n s_cbranch_scc1 L_b1o')
    st = k.state()
    k('s_mov_b64 exec, 1\n s_mov_b32 s46, 0\n s_waitcnt vmcnt(8)')
    k.label('L_go')
    k(f"""v_cmp_ne_u32 vcc, 0, v254
    s_add_u32 s46, s46, 1
    s_cbranch_vccnz L_gone
    global_load_dword v254, v250, s[20:21]{LD}
    s_waitcnt vmcnt(0)
    s_cmp_lt_u32 s46, {SPIN}
    s_cbranch_scc1 L_go""")
    k.restore(st); k.vm = k.vm[-8:]
    k.label('L_gone')
    stamp(k, 9, 'z')
    k('s_barrier')
    k(f'buffer_atomic_add v251, v250, {WSR}, s71 offen sc0 sc1\n s_mov_b64 exec, -1')
    stamp(k, 10, 'z')
    negs(); arrive_check(k, 250, 's72', 's70', 1)
    poll(k, 250, 1)
    k('s_branch L_b1x')
    k.restore(st); k.label('L_b1o')
    k('s_waitcnt vmcnt(8)')
    stamp(k, 9, 'z')
    k('s_barrier')
    stamp(k, 10, 'z')
    negs(); wd_finish(k); k.label('L_b1x')
    k('s_barrier')
    stamp(k, 4)
    stamp(k, 11, 'z'); stamp(k, 1, 'b')
    barrier2(k, p2(k))
    stamp(k, 7); stamp(k, 11, 'b')
    k(f's_cmp_eq_u32 {WAVE}, 3\n s_cbranch_scc1 L_p3h')
    st3 = k.state()
    n0 = p3_body(k, False)
    nst = 0
    while not k.vm[-1-nst]: nst += 1
    k.label('L_join3')
    k.fence()
    p4(k, n0, nst)
    stamp_out(k, 12)
    k.label('L_end'); k('s_endpgm')
    k.restore(st3); k.label('L_p3h'); assert p3_body(k, True) == n0
    assert not any(k.vm[-nst:]); k('s_branch L_join3')
    k.restore(st0); k.label('L_notz')
    p1_w(k); k('s_branch L_join1')
    k.restore(st_c); k.label('L_p1c')
    k(f's_cmp_ge_u32 s2, {NI0}\n s_cbranch_scc1 L_p1i')
    st1 = k.state()
    p1_t(k); k('s_branch L_join1')
    k.restore(st1); k.label('L_p1i'); p1_i(k); k('s_branch L_join1')
    o = header()
    o += f'; @launch grid=(256,1,1) block=(256,1,1) lds={STATL+4096}\n'
    o += '.amdgcn_target "amdgcn-amd-amdhsa--gfx950"\n.text\n' + k.text()
    o += tables_text() + 'L_image_end:\n'
    o += '.section .rodata,"a"\n.p2align 6\n' + kd(KN, k)
    return o

if __name__ == '__main__':
    out = sys.argv[1]
    for a in sys.argv[2:]:
        key, _, val = a.partition('=')
        OPT[key] = eval(val) if val else True
    open(out, 'w').write(fused())
```

```python
import sys, math, struct
import numpy as np
from dsl import K
from design import *
from gen import V, A, Sg, fbits, TBL, tables_text, header, kd, NAME, srd, cmul, TPAD

OPT = dict(stamps=False, gblate=True, tpost=True)
ST, LD = ' sc1', ' sc1'
WSR, RA, RB, RC = 's[24:27]', 's[28:31]', 's[32:35]', 's[36:39]'
WAVE = 's40'
KN = NAME + '_kernel'
SPIN = 400000
TW1, TW2 = 112, 128
B1, A4, A2, B3 = 144, 168, 192, 216
FA, GB = 200, 208
NZ, NC0, NI0 = 128, 216, 248
uid = [0]

def stamp(k, i, pm=False):
    if OPT.get('pst') and 1 <= i <= 5 and not pm: return
    if OPT.get('zdet') and 1 <= i <= 11 and pm != 'z': return
    if pm == 'z' and not OPT.get('zdet'): return
    if OPT.get('bdet') and 1 <= i <= 11 and pm != 'b': return
    if pm == 'b' and not OPT.get('bdet'): return
    if OPT['stamps']: k(f's_{"memtime" if OPT.get("pst") else "memrealtime"} s[{76+2*i}:{77+2*i}]')
def stamp_out(k, n):
    if not OPT['stamps']: return
    k.wait(vm=0, lg=0); stamp(k, n); n += 1; k.wait(lg=0)
    k(f's_lshl_b32 s44, s2, 8\n s_lshl_b32 s45, {WAVE}, 6\n s_add_u32 s44, s44, s45\n s_add_u32 s44, s44, {STAMP}')
    for i in range(16): k(f'v_mov_b32 v{8+i}, s{76+2*i}' if i < n else f'v_mov_b32 v{8+i}, 0')
    k('v_mov_b32 v24, 0\n s_mov_b64 exec, 1')
    for q in range(4): k(f'buffer_store_dwordx4 {V(8+4*q,4)}, v24, {WSR}, s44 offen offset:{16*q}')

def wsrd(k, base, end):
    k(f's_mov_b32 s{base}, s24\n s_mov_b32 s{base+1}, s25\n s_mov_b32 s{base+2}, {end}\n s_mov_b32 s{base+3}, 0x20000')

def tbl_addr(k, vp, soff):
    k(f"""s_add_u32 s46, s42, {soff}
    s_addc_u32 s47, s43, 0
    v_mov_b32 v{vp+1}, s47
    v_add_co_u32 v{vp}, vcc, s46, v4
    v_addc_co_u32 v{vp+1}, vcc, 0, v{vp+1}, vcc""")

def gb_loads(k):
    for q in range(8): k(f'global_load_dwordx4 {A(GB+4*q,4)}, v[8:9], off offset:{1024*q-4096}')

def prologue(k):
    k.raw(f'.globl {KN}\n.p2align 8\n.type {KN},@function\n{KN}:')
    stamp(k, 0)
    k(f"""s_load_dwordx16 s[4:19], s[0:1], 0
    s_load_dwordx4 s[20:23], s[0:1], 64
    s_getpc_b64 s[42:43]""")
    k.raw('L_pc:')
    k(f"""s_cmp_ge_u32 s2, 256
    s_cbranch_scc1 L_end
    v_lshrrev_b32 v5, 6, v0
    v_and_b32 v1, 63, v0
    v_readfirstlane_b32 {WAVE}, v5
    s_lshr_b32 s44, s2, 3
    v_lshl_add_u32 v5, v5, 5, s44
    v_lshlrev_b32 v6, 6, v1
    v_lshl_add_u32 v5, v5, 12, v6      ; 4 KiB slice per wave, one dword per 64 B""")
    k.raw('    v_min_u32 v5, L_image_end-L_pc-4, v5'); k.pos += 1
    k(f"""v_mov_b32 v7, s43
    v_add_co_u32 v6, vcc, s42, v5
    v_addc_co_u32 v7, vcc, 0, v7, vcc
    global_load_dword v255, v[6:7], off
    v_bfe_u32 v2, v0, 4, 2
    v_and_b32 v3, 15, v0
    v_lshlrev_b32 v4, 4, v1""")
    k.raw('    s_add_u32 s42, s42, tables-L_pc\n    s_addc_u32 s43, s43, 0'); k.pos += 2
    k(f's_cmp_ge_u32 s2, {NC0}\n s_cbranch_scc1 L_p1c')
    global st_c
    st_c = k.state()
    tbl_addr(k, 6, TBL['FA'])
    for c in range(2): k(f'global_load_dwordx4 {A(FA+4*c,4)}, v[6:7], off offset:{1024*c}')
    k(f"""s_cmp_lt_u32 s2, {NZ}
    s_cselect_b32 s45, {TBL["GBZ"]+4096}, {TBL["GBW"]+4096}
    s_lshl_b32 s44, {WAVE}, 13
    s_add_u32 s44, s44, s45""".replace(str(TBL["GBW"]+4096), 's47').replace('s_cmp_lt', f's_mov_b32 s47, {TBL["GBW"]+4096}\n s_cmp_lt'))
    tbl_addr(k, 8, 's44')
    if not OPT.get('gblate'): gb_loads(k)

def go_load(k, b):
    k(f'v_mov_b32 v{b}, 0\n global_load_dword v{b+4}, v{b}, s[20:21]{LD}')
def arrive_issue(k, b, cnt, go):
    k(f'v_mov_b32 v{b}, 0\n v_mov_b32 v{b+1}, 1\n s_mov_b64 exec, 1')
    if go:
        uid[0] += 1; u = uid[0]
        k('s_mov_b32 s46, 0')
        k.label(f'L_go{u}')
        k(f"""s_waitcnt vmcnt(0)
        v_cmp_ne_u32 vcc, 0, v{b+4}
        s_add_u32 s46, s46, 1
        s_cbranch_vccnz L_gone{u}
        global_load_dword v{b+4}, v{b}, s[20:21]{LD}
        s_cmp_lt_u32 s46, {SPIN}
        s_cbranch_scc1 L_go{u}""")
        k.label(f'L_gone{u}')
    k(f'buffer_atomic_add v{b+1}, v{b}, {WSR}, {cnt} offen sc0 sc1')
def arrive_check(k, b, flg, last, val):
    uid[0] += 1; u = uid[0]
    k(f"""s_mov_b64 exec, 0xff
    v_lshlrev_b32 v{b+2}, 11, v1
    v_mov_b32 v{b}, {val}
    v_readfirstlane_b32 s47, v{b+1}
    s_cmp_lg_u32 s47, {last}
    s_cbranch_scc1 L_nl{u}""")
    st = k.state()
    k(f'buffer_store_dword v{b}, v{b+2}, {WSR}, {flg} offen{ST}')
    k.restore(st)
    k.label(f'L_nl{u}')
def poll(k, b, val):
    uid[0] += 1; u = uid[0]
    k(f"""s_mov_b64 exec, 0xff
    v_lshlrev_b32 v{b+3}, 8, v1
    s_and_b32 s44, s2, 7
    s_lshl_b32 s44, s44, 11
    s_add_u32 s44, s44, {FLG}
    s_mov_b32 s46, 0""")
    k.label(f'L_bp{u}')
    k(f"""buffer_load_dword v{b+1}, v{b+3}, {WSR}, s44 offen{LD}
    s_add_u32 s46, s46, 1
    s_waitcnt vmcnt(0)
    v_cmp_gt_u32 vcc, {val}, v{b+1}
    s_cmp_gt_u32 s46, {SPIN}
    s_cbranch_scc1 L_bd{u}
    s_cbranch_vccnz L_bp{u}""")
    k.label(f'L_bd{u}')
    k('s_mov_b64 exec, -1')
def only_wave(k, w, fn):
    uid[0] += 1; u = uid[0]
    k(f's_cmp_lg_u32 {WAVE}, {w}\n s_cbranch_scc1 L_ow{u}')
    st = k.state(); fn(); k('s_mov_b64 exec, -1'); k.restore(st); k.label(f'L_ow{u}')

def p2_tables(k, vp=26):
    k(f's_lshl_b32 s44, {WAVE}, 13\n s_add_u32 s44, s44, {TBL["P2W"]+4096}')
    tbl_addr(k, vp, 's44'); tbl_addr(k, vp+2, TBL['P2S']+4096)
    o = [f'global_load_dwordx4 {V(B1+6*u+2,4)}, {V(vp,2)}, off offset:{1024*u-4096}' for u in range(4)]
    o += [f'global_load_dwordx4 {V(A2+6*u+2,4)}, {V(vp+2,2)}, off offset:{1024*u-4096}' for u in range(4)]
    o += [f'global_load_dwordx4 {V(B3+6*u+2,4)}, {V(vp+2,2)}, off offset:{1024*u}' for u in range(4)]
    o += [f'global_load_dwordx4 {V(A4+6*u+2,4)}, {V(vp,2)}, off offset:{1024*u}' for u in range(4)]
    return o
def flush(k):
    sp, k.sprinkle = k.sprinkle, []
    for t in sp: k(t)

def p1_z(k):
    X, DA, TR, SS, WL, WO = 32, 48, 80, 96, 104, 120
    k(f"""s_and_b32 s44, s2, 7
    s_lshr_b32 s45, s2, 4
    s_lshl_b32 s45, s45, 3
    s_add_u32 s44, s44, s45
    s_lshl_b32 s44, s44, 1
    s_bfe_u32 s45, s2, 0x10003
    s_add_u32 s60, s44, s45            ; (t,g,beta,bq)
    s_lshr_b32 s61, s60, 3
    s_lshl_b32 s61, s61, 7
    s_and_b32 s44, s60, 7
    s_lshl_b32 s44, s44, 2
    s_add_u32 s44, s44, s61
    s_add_u32 s44, s44, {WAVE}
    s_lshl_b32 s56, s44, 10
    s_add_u32 s57, s56, 0x8000
    s_add_u32 s58, s56, 0x10000
    s_add_u32 s59, s56, 0x18000
    s_mov_b32 s38, {S*D*2}
    s_mov_b32 s39, 0x20000
    s_bfe_u32 s48, s2, 0x20003
    s_and_b32 s44, s2, 7
    s_lshl_b32 s44, s44, 2
    s_add_u32 s48, s48, s44
    s_and_b32 s44, s2, 0x60
    s_add_u32 s48, s48, s44
    s_add_u32 s48, s48, 128""")
    wt_rows(k, 's48', 49)
    k(f's_mul_i32 s44, {WAVE}, {64*514}\n s_add_u32 s49, s49, s44')
    k.wait(lg=0)
    stamp(k, 1, 'z')
    k('s_mov_b32 s36, s4\n s_and_b32 s37, s5, 0xffff')
    for i in range(4): k(f'buffer_load_dwordx4 {V(X+4*i,4)}, v4, {RC}, s{56+i} offen')
    k(WSRDS)
    k(f'buffer_load_dwordx4 {V(WL,4)}, v11, {RA}, s49 offen\n buffer_load_dwordx4 {V(WL+4,4)}, v11, {RB}, s49 offen')
    gb_loads(k)
    wt_dest(k, 's48', 50)
    k(f"""s_lshl_b32 s44, {WAVE}, 2
    s_add_u32 s44, s44, 0xa000
    v_add_u32 v12, s44, v12
    s_lshl_b32 s44, {WAVE}, 5
    v_xor_b32 v13, s44, v4
    s_lshl_b32 s44, {WAVE}, 11
    s_add_u32 s44, s44, 0xa000
    v_add_u32 v13, s44, v13
    v_xor_b32 v14, 16, v13
    s_mul_i32 s44, {WAVE}, {16*WT_STRIDE}
    s_add_u32 s50, s50, s44
    s_add_u32 s51, s50, {8*WT_STRIDE}""")
    srd(k, 24, 22, WS_USED)
    k(f"""s_lshl_b32 s44, {WAVE}, 12
    v_add_u32 v30, s44, v4
    v_lshrrev_b32 v31, 1, v4
    v_add_u32 v31, s44, v31
    v_mul_u32_u24 v6, {TPAD}, v3
    v_lshl_add_u32 v6, v2, 8, v6
    s_lshl_b32 s44, {WAVE}, 6
    s_add_u32 s44, s44, 16384
    v_add_u32 v6, s44, v6
    s_mul_i32 s44, {WAVE}, {4*TPAD}
    s_add_u32 s44, s44, 16384
    v_add_u32 v7, s44, v4
    v_cmp_eq_u32 vcc, 0, v3
    v_cndmask_b32 v8, 0, 1.0, vcc
    s_mov_b32 s62, 0x3f803f80
    v_mul_u32_u24 v9, {ZT_STRIDE}, v3
    v_lshl_add_u32 v9, v2, 4, v9
    s_lshr_b32 s44, s60, 5
    s_lshl_b32 s44, s44, 11
    s_bfe_u32 s45, s60, 0x10002
    s_lshl_b32 s46, s45, 10
    s_add_u32 s44, s44, s46
    s_bfe_u32 s46, s60, 0x20003
    s_lshl_b32 s46, s46, 8
    s_add_u32 s44, s44, s46
    s_and_b32 s46, s60, 3
    s_lshl_b32 s47, s46, 6
    s_add_u32 s44, s44, s47
    s_lshl_b32 s63, s60, 7
    s_add_u32 s63, s63, {SM}
    s_mul_i32 s47, {WAVE}, {64*ZT_STRIDE}
    s_add_u32 s44, s44, s47
    s_add_u32 s64, s44, {ZT}
    s_add_u32 s65, s64, {16*ZT_STRIDE}
    s_add_u32 s66, s64, {32*ZT_STRIDE}
    s_add_u32 s67, s64, {48*ZT_STRIDE}
    s_lshl_b32 s44, {WAVE}, 4
    s_add_u32 s44, s44, 0x9000
    v_lshl_add_u32 v10, v2, 2, s44""")
    tl = p2_tables(k)
    if True:
        stamp(k, 2, 'z')
        for i in range(4):
            k(f'ds_write_b128 v30, {V(X+4*i,4)} offset:{1024*i}')
            if i == 0: stamp(k, 1)
            for r in range(2): k(f'ds_read_b64_tr_b16 {V(TR+4*i+2*r,2)}, v31 offset:{1024*i+512*r}')
            for j in range(4):
                k(f'v_dot2_f32_bf16 v{SS+i}, v{X+4*i+j}, s62, {"0" if j==0 else V(SS+i)}')
                k(f'v_dot2_f32_bf16 v{SS+4+i}, v{X+4*i+j}, v{X+4*i+j}, {"0" if j==0 else V(SS+4+i)}')
        stamp(k, 3, 'z')
        k.sprinkle = tl; k.every = OPT.get('tev', 28); k.since = 100
        stamp(k, 4, 'z')
        mf = [f'v_mfma_f32_16x16x32_bf16 {V(DA+8*i+4*c,4)}, {V(TR+4*i,4)}, {A(FA+4*c,4)}, 0' for i in range(4) for c in range(2)]
        k(mf.pop(0)); k(mf.pop(0))
        for b in (SS, SS+4):
            k(f'v_permlane32_swap_b32 v{b}, v{b+2}\n v_permlane32_swap_b32 v{b+1}, v{b+3}')
        for b in (SS, SS+4):
            k(f'v_add_f32 v{b}, v{b}, v{b+2}\n v_add_f32 v{b+1}, v{b+1}, v{b+3}')
        k(mf.pop(0))
        for b in (SS, SS+4): k(f'v_permlane16_swap_b32 v{b}, v{b+1}')
        for b in (SS, SS+4): k(f'v_add_f32 v{b}, v{b}, v{b+1}')
        for sh in (8, 4, 2, 1):
            k(mf.pop(0))
            for b in (SS, SS+4): k(f'v_add_f32_dpp v{b}, v{b}, v{b} row_ror:{sh} row_mask:0xf bank_mask:0xf')
        k(mf.pop(0))
        k(f"""v_mul_f32 v{SS}, {fbits(1/512)}, v{SS}
        v_mul_f32 v{SS+4}, {fbits(1/512)}, v{SS+4}
        v_fma_f32 v{SS+4}, -v{SS}, v{SS}, v{SS+4}
        v_max_f32 v{SS+4}, 0, v{SS+4}
        v_add_f32 v{SS+4}, {fbits(1e-5)}, v{SS+4}
        v_rsq_f32 v{SS+1}, v{SS+4}
        v_mul_f32 v{SS+2}, {fbits(-8.0)}, v{SS}
        v_mul_f32 v{SS+2}, v{SS+2}, v{SS+1}
        v_mul_f32 v{SS+3}, {fbits(0.25)}, v{SS+1}""")
        for i in range(4):
            k(f'v_readlane_b32 s{68+2*i}, v{SS+3}, {16*i}\n v_readlane_b32 s{69+2*i}, v{SS+2}, {16*i}')
        for i in range(4):
            d = DA + 8*i
            k(f'v_mul_f32 v{TR}, s{69+2*i}, v8')
            for h in range(2):
                k(f'v_pk_mul_f32 {V(d+4+2*h,2)}, {V(d+4+2*h,2)}, {Sg(68+2*i,2)} op_sel_hi:[1,0]')
            for h in range(2):
                k(f'v_pk_fma_f32 {V(d+2*h,2)}, {V(d+2*h,2)}, {Sg(68+2*i,2)}, {V(TR,2)} op_sel_hi:[1,0,0]')
            for h in (2, 3, 0, 1): k(f'v_cvt_pk_f16_f32 v{X+4*i+h}, v{d+2*h}, v{d+2*h+1}')
            k(f'ds_write_b128 v6, {V(X+4*i,4)} offset:{16*i}')
        k(f"""v_mul_f32 v{SS+4}, v{SS+4}, v{SS+1}
        ds_write2_b32 v10, v{SS+4}, v{SS} offset0:0 offset1:16""")
        print('tables left', len(k.sprinkle)); flush(k)
        for i in range(8):
            k(f'v_perm_b32 v{WO+i}, v{WL+4+(i>>1)}, v{WL+(i>>1)}, s{53+(i&1)}')
            k(f'ds_write_b32 v12, v{WO+i} offset:{128*i}')
        k.wait(lg=0); k('s_barrier')
        if OPT.get('zst'): stamp(k, 1)
        stamp(k, 5, 'z')
        for q in range(4): k(f'ds_read_b128 {V(TR+4*q,4)}, v7 offset:{TPAD*q}')
        k(f'ds_read_b128 {V(SS,4)}, v4 offset:0x9000')
        for n in range(2): k(f'ds_read_b128 {V(WL+4*n,4)}, v{13+n} offset:{1024*n}')
        for q in range(4):
            for o in range(2): k(f'v_mfma_f32_16x16x32_f16 {V(DA+8*q+4*o,4)}, {V(TR+4*q,4)}, {A(GB+8*q+4*o,4)}, 0')
        k.wait(lg=0)
        for n in range(2): k(f'buffer_store_dwordx4 {V(WL+4*n,4)}, v11, {WSR}, s{50+n} offen{ST}')
        only_wave(k, 3, lambda: k(f's_mov_b64 exec, 0xff\n buffer_store_dwordx4 {V(SS,4)}, v4, {WSR}, s63 offen{ST}'))
        for q in range(4):
            for h in range(4): k(f'v_cvt_pk_f16_f32 v{X+4*q+h}, v{DA+8*q+2*h}, v{DA+8*q+2*h+1}')
            k(f'buffer_store_dwordx4 {V(X+4*q,4)}, v9, {WSR}, s{64+q} offen{ST}')
        stamp(k, 6, 'z')
        stamp(k, 2)

def p1_w(k):
    OP, DA = 32, 64
    TBASE = 32768
    k(f"""s_and_b32 s61, s2, 1               ; mu
    s_bfe_u32 s60, s2, 0x60001
    s_and_b32 s44, s60, 3
    s_lshl_b32 s44, s44, 1
    s_bfe_u32 s45, s60, 0x10002
    s_add_u32 s44, s44, s45
    s_andn2_b32 s45, s60, 7
    s_add_u32 s44, s44, s45
    s_cmp_lt_u32 s60, 40
    s_cselect_b32 s60, s44, s60        ; phi
    s_mul_i32 s44, {WAVE}, {4*2752}
    s_lshl_b32 s45, s60, 6
    s_add_u32 s62, s44, s45
    v_lshrrev_b32 v10, 2, v1
    v_mul_u32_u24 v30, {16*2752}, v10
    v_and_b32 v11, 3, v1
    v_and_b32 v12, 1, v2
    v_lshlrev_b32 v12, 1, v12
    v_xor_b32 v13, v11, v12
    v_lshl_add_u32 v30, v13, 4, v30
    s_lshl_b32 s63, {WAVE}, 13
    s_mov_b32 s38, {D*F*2}
    s_mov_b32 s39, 0x20000
    """)
    k.wait(lg=0)
    k(f"""s_cmp_eq_u32 s61, 0
    s_cselect_b32 s36, s12, s14
    s_cselect_b32 s37, s13, s15
    s_and_b32 s37, s37, 0xffff""")
    pos = []
    for n in range(8):
        k(f's_add_u32 m0, s63, {1024*n}\n s_add_u32 s44, s62, {((n>>1) + 256*(n&1))*2752}')
        k(f'buffer_load_dwordx4 v30, {RC}, s44 offen lds'); pos.append(k.nvm)
    if OPT.get('gblate'): gb_loads(k)
    srd(k, 24, 22, WS_USED)
    k(f"""v_lshlrev_b32 v31, 6, v10
    v_lshl_add_u32 v31, v12, 4, v31
    v_lshl_add_u32 v31, v11, 3, v31
    v_add_u32 v30, s63, v31
    v_xor_b32 v31, 32, v30
    v_mul_u32_u24 v6, {4*TPAD}, v2
    v_lshl_add_u32 v6, v3, 4, v6
    s_lshl_b32 s44, {WAVE}, 8
    s_add_u32 s44, s44, {TBASE}
    v_add_u32 v6, s44, v6              ; T write
    s_mul_i32 s44, {WAVE}, {4*TPAD}
    s_add_u32 s44, s44, {TBASE}
    v_add_u32 v7, s44, v4              ; T read
    s_lshl_b32 s44, s60, 2
    v_lshrrev_b32 v12, 3, v3
    v_and_b32 v13, 7, v3
    v_lshlrev_b32 v13, 4, v13
    v_lshl_add_u32 v13, v2, 8, v13
    s_lshl_b32 s45, {WAVE}, 12
    s_add_u32 s62, s45, {WP}
    v_mov_b32 v19, s61""")
    for pp in range(2):
        k(f"""v_add_u32 v14, s44, v12            ; octet
        v_mul_u32_u24 v15, 373, v14
        v_lshrrev_b32 v15, 12, v15
        v_add_u32 v14, v14, v15            ; q
        v_mul_u32_u24 v15, 171, v14
        v_lshrrev_b32 v15, 9, v15
        v_mul_u32_u24 v15, 3, v15          ; q - q%3
        v_sub_u32 v16, v14, v15            ; n
        v_cmp_eq_u32 vcc, 2, v16
        v_add_u32 v15, s61, v15
        s_add_u32 s44, s44, 2
        v_cndmask_b32 v15, v15, v14, vcc   ; tile
        v_cndmask_b32 v16, v16, v19, vcc
        v_lshl_add_u32 v{8+pp}, v15, 14, v13
        v_lshl_add_u32 v{8+pp}, v16, 7, v{8+pp}""")
    tl = p2_tables(k)
    for dl in range(4):
        k(f's_waitcnt vmcnt({k.nvm - pos[2*dl+1]})')
        if dl == 0: stamp(k, 1)
        for pi in range(2):
            for h in range(2): k(f'ds_read_b64_tr_b16 {V(OP+8*dl+4*pi+2*h,2)}, v{30+pi} offset:{2048*dl+1024*h}')
    k.sprinkle = tl; k.every = OPT.get('tev', 28); k.since = 100
    for dl in range(4):
        for pi in range(2):
            for c in range(2):
                k(f'v_mfma_f32_16x16x32_bf16 {V(DA+32*pi+16*c+4*dl,4)}, {A(FA+4*c,4)}, {V(OP+8*dl+4*pi,4)}, 0')
    for pi in range(2):
        for r in range(4):
            u = OP + 16*pi + 4*r
            for c in range(2):
                for h in range(2):
                    d = DA + 32*pi + 16*c + 8*h + r
                    k(f'v_cvt_pk_bf16_f32 v{u+2*c+h}, v{d}, v{d+4}')
            k(f'ds_write_b128 v6, {V(u,4)} offset:{16*TPAD*pi+TPAD*r}')
    flush(k)
    k.wait(lg=0); k('s_barrier')
    for pi in range(2):
        for q in range(4): k(f'ds_read_b128 {V(OP+16*pi+4*q,4)}, v7 offset:{16*TPAD*pi+TPAD*q}')
    for pi in range(2):
        for q in range(4):
            for o in range(2):
                k(f'v_mfma_f32_16x16x32_bf16 {V(DA+32*pi+8*q+4*o,4)}, {A(GB+8*q+4*o,4)}, {V(OP+16*pi+4*q,4)}, 0')
    for pi in range(2):
        for p in range(2):
            for o in range(2):
                u = OP + 16*pi + 8*p + 4*o
                for hq in range(2):
                    for h in range(2):
                        d = DA + 32*pi + 8*(2*p+hq) + 4*o + 2*h
                        k(f'v_cvt_pk_bf16_f32 v{u+2*hq+h}, v{d}, v{d+1}')
                k(f'buffer_store_dwordx4 {V(u,4)}, v{8+pi}, {WSR}, s62 offen offset:{(2*p+o)*1024}{ST}')
    stamp(k, 2)

def wt_rows(k, task, dst):
    k(f"""s_bfe_u32 s44, {task}, 0x30002
    s_lshl_b32 s44, s44, 3
    s_lshr_b32 s45, {task}, 5
    s_lshl_b32 s45, s45, 8
    s_add_u32 s44, s44, s45
    s_mul_i32 s{dst}, s44, 514
    s_and_b32 s45, {task}, 3
    s_lshl_b32 s45, s45, 7
    s_add_u32 s{dst}, s{dst}, s45
    s_add_u32 s{dst}, s{dst}, 2
    v_lshrrev_b32 v12, 3, v1
    v_and_b32 v13, 7, v1
    v_mul_u32_u24 v11, 514, v12
    v_lshl_add_u32 v11, v13, 4, v11
    s_mov_b32 s30, {2048*257*2}
    s_mov_b32 s31, 0x20000
    s_mov_b32 s34, {2048*257*2}
    s_mov_b32 s35, 0x20000""")
def wt_dest(k, task, dst):
    k(f"""s_and_b32 s44, {task}, 3
    s_mul_i32 s{dst}, s44, {64*WT_STRIDE}
    s_lshr_b32 s44, {task}, 7
    s_lshl_b32 s44, s44, 12
    s_add_u32 s{dst}, s{dst}, s44
    s_bfe_u32 s44, {task}, 0x20003
    s_lshl_b32 s44, s44, 10
    s_add_u32 s{dst}, s{dst}, s44
    s_bfe_u32 s44, {task}, 0x20005
    s_lshl_b32 s44, s44, 8
    s_add_u32 s{dst}, s{dst}, s44
    s_bfe_u32 s44, {task}, 0x10002
    s_lshl_b32 s44, s44, 7
    s_add_u32 s{dst}, s{dst}, s44
    s_add_u32 s{dst}, s{dst}, {WT}
    s_mov_b32 s53, 0x05040100
    s_mov_b32 s54, 0x07060302
    v_mul_u32_u24 v11, {WT_STRIDE}, v12
    v_lshl_add_u32 v11, v13, 4, v11
    v_xor_b32 v12, v12, v13
    v_lshlrev_b32 v12, 4, v12
    v_lshl_add_u32 v12, v13, 10, v12""")
WSRDS = 's_mov_b32 s28, s6\n s_and_b32 s29, s7, 0xffff\n s_mov_b32 s32, s8\n s_and_b32 s33, s9, 0xffff'
def p1_t(k):
    WL, WO = 32, 64
    k(f's_sub_u32 s48, s2, {NC0}\n s_lshl_b32 s48, s48, 2\n s_add_u32 s48, s48, {WAVE}')
    wt_rows(k, 's48', 49)
    for r in range(1, 4): k(f's_add_u32 s{49+r}, s49, {64*r*514}')
    k.wait(lg=0)
    k(WSRDS)
    for r in range(4):
        k(f'buffer_load_dwordx4 {V(WL+8*r,4)}, v11, {RA}, s{49+r} offen')
        k(f'buffer_load_dwordx4 {V(WL+8*r+4,4)}, v11, {RB}, s{49+r} offen')
    srd(k, 24, 22, WS_USED)
    wt_dest(k, 's48', 56)
    k(f's_lshl_b32 s44, {WAVE}, 13\n v_add_u32 v12, s44, v12\n v_add_u32 v14, s44, v4')
    for n in range(1, 8): k(f's_add_u32 s{56+n}, s56, {8*n*WT_STRIDE}\n v_xor_b32 v{14+n}, {16*n}, v14')
    tl = p2_tables(k)
    for i in range(8):
        o = WO + 4*i
        for r in range(4): k(f'v_perm_b32 v{o+r}, v{WL+8*r+4+(i>>1)}, v{WL+8*r+(i>>1)}, s{53+(i&1)}')
        k(f'ds_write_b128 v12, {V(o,4)} offset:{128*i}')
        for t in tl[2*i:2*i+2]: k(t)
    stamp(k, 1)
    for n in range(8): k(f'ds_read_b128 {V(WL+4*n,4)}, v{14+n} offset:{1024*n}')
    for n in range(8): k(f'buffer_store_dwordx4 {V(WL+4*n,4)}, v11, {WSR}, s{56+n} offen{ST}')
    stamp(k, 2)

def p1_i(k):
    k.wait(lg=0)
    srd(k, 24, 22, WS_USED)
    k(f"""s_lshl_b32 s44, s2, 2
    s_add_u32 s44, s44, {WAVE}
    s_cmp_lg_u32 s44, {255*4}
    s_cbranch_scc1 L_noinit
    v_lshlrev_b32 v30, 8, v1
    v_lshlrev_b32 v31, 8, v3
    v_mov_b32 v32, 0
    s_mov_b32 s44, {FLG}
    s_mov_b32 s45, {FLG+16384}
    buffer_store_dword v32, v30, {WSR}, s44 offen{ST}
    buffer_store_dword v32, v30, {WSR}, s45 offen{ST}
    buffer_store_dword v32, v31, {WSR}, 0 offen{ST}
    v_mov_b32 v33, 1
    s_waitcnt vmcnt(0)
    s_mov_b64 exec, 1
    global_store_dword v32, v33, s[20:21]{ST}
    s_mov_b64 exec, -1""")
    k.label('L_noinit')
    k(f"""s_sub_u32 s60, s2, {NI0}
    s_lshl_b32 s61, s60, 1
    s_lshr_b32 s44, {WAVE}, 1
    s_add_u32 s61, s61, s44            ; t
    s_and_b32 s62, {WAVE}, 1
    s_lshl_b32 s62, s62, 2             ; p
    s_add_u32 s63, s62, 4
    s_lshl_b32 s44, s61, 5
    s_add_u32 s44, s44, 1
    v_lshl_add_u32 v30, v3, 1, s44     ; 2d+1
    v_and_b32 v31, 1, v2
    v_lshlrev_b32 v31, 7, v31
    v_cmp_lt_u32 s[64:65], 1, v2
    v_mov_b32 v36, {fbits(1/16)}
    s_mul_i32 s61, s61, {12*16384}
    s_add_u32 s61, s61, {WP+11*16384}""")
    for t in p2_tables(k): k(t)
    stamp(k, 1)
    k.fence(); k.label('L_inv')
    k(f"""s_lshl_b32 s44, s62, 1
    s_sub_u32 s45, 32, s44
    s_cmp_eq_u32 s44, 0
    s_cselect_b32 s45, 16, s45
    v_mov_b32 v33, s44
    v_mov_b32 v34, s45
    v_cndmask_b32 v33, v33, v34, s[64:65]
    v_add_u32 v33, v33, v31
    s_add_u32 s44, s44, 1
    s_sub_u32 s45, 32, s44
    v_mov_b32 v34, s44
    v_mov_b32 v35, s45
    v_cndmask_b32 v34, v34, v35, s[64:65]
    v_add_u32 v34, v34, v31
    v_cmp_eq_u32 vcc, 0, v33
    v_mov_b32 v35, 0x100
    v_mov_b32 v37, {fbits(1/math.sqrt(512))}
    v_cndmask_b32 v35, v33, v35, vcc
    v_cndmask_b32 v37, v36, v37, vcc
    s_lshl_b32 s45, s62, 11
    s_add_u32 s66, s61, s45""")
    for e in range(8):
        src = 'v35' if e == 0 else None
        if e: k(f'v_add_u32 v{40+e}, {32*(e&3)}, v{33+(e>>2)}')
        k(f'v_mul_u32_u24 v{40+e}, {src or V(40+e)}, v30')
        k(f'v_and_b32 v{40+e}, 0x3ff, v{40+e}')
        k(f'v_cvt_f32_u32 v{40+e}, v{40+e}')
        k(f'v_mul_f32 v{40+e}, {fbits(1/1024)}, v{40+e}')
    for e in range(8):
        k(f'v_cos_f32 v{48+e}, v{40+e}\n v_sin_f32 v{56+e}, v{40+e}')
    for e in range(8):
        sc = 'v37' if e == 0 else 'v36'
        k(f'v_mul_f32 v{48+e}, {sc}, v{48+e}\n v_mul_f32 v{56+e}, {sc}, -v{56+e}')
    for part in range(2):
        for h in range(4): k(f'v_cvt_pk_bf16_f32 v{64+4*part+h}, v{48+8*part+2*h}, v{48+8*part+2*h+1}')
        k(f'buffer_store_dwordx4 {V(64+4*part,4)}, v4, {WSR}, s66 offen offset:{1024*part}{ST}')
    k('s_add_u32 s62, s62, 1\n s_cmp_lt_u32 s62, s63\n s_cbranch_scc1 L_inv')
    stamp(k, 2)

WDL = 64
def wd_issue(k):
    srd(k, 36, 16, F*D*2)
    k(f"""s_lshl_b32 s44, {WAVE}, 7
    s_add_u32 s44, s44, s2
    s_sub_u32 s73, s44, 128
    s_cmp_lt_u32 s2, {NZ}
    s_cselect_b32 s73, s73, 352
    s_min_u32 s73, s73, 352
    s_lshr_b32 s44, s73, 1
    s_lshl_b32 s44, s44, 13
    s_and_b32 s45, s73, 1
    s_lshl_b32 s45, s45, 9
    s_add_u32 s44, s44, s45
    s_add_u32 s45, s44, 4096
    v_lshlrev_b32 v20, 3, v1""")
    for e in range(8): k(f'buffer_load_dwordx2 {V(WDL+2*e,2)}, v20, {RC}, s{44+(e>>2)} offen offset:{1024*(e&3)}')
def wd_finish(k):
    k(f's_cmp_ge_u32 s73, 352\n s_cbranch_scc1 L_nowd')
    st = k.state()
    k(f"""s_lshr_b32 s44, s73, 4
    s_bfe_u32 s45, s73, 0x20002
    s_mul_i32 s45, s45, 22
    s_add_u32 s44, s44, s45
    s_and_b32 s45, s73, 1
    s_mul_i32 s45, s45, {4*88}
    s_add_u32 s44, s44, s45
    s_lshl_b32 s44, s44, 11
    s_bfe_u32 s45, s73, 0x10001
    s_lshl_b32 s45, s45, 9
    s_add_u32 s44, s44, s45
    s_add_u32 s44, s44, {WD}
    s_mov_b32 s46, 0x05040100
    s_mov_b32 s47, 0x07060302
    v_mul_u32_u24 v20, {88*2048}, v2
    v_bfe_u32 v21, v1, 3, 1
    v_lshl_add_u32 v20, v21, 10, v20
    v_and_b32 v21, 7, v1
    v_lshl_add_u32 v20, v21, 4, v20""")
    for pi in range(4):
        o = WDL + 16 + 4*pi
        for h in range(4): k(f'v_perm_b32 v{o+h}, v{WDL+4*h+2+(pi>>1)}, v{WDL+4*h+(pi>>1)}, s{46+(pi&1)}')
        k(f'buffer_store_dwordx4 {V(o,4)}, v20, {WSR}, s44 offen offset:{128*pi}{ST}')
    k.fence()
    k.restore(st); k.label('L_nowd')

STATL = 131072
def p4_ids(k):
    k(f"""s_and_b32 s44, s2, 7
    s_lshl_b32 s44, s44, 2
    s_bfe_u32 s46, s2, 0x20003
    s_add_u32 s44, s44, s46
    s_lshr_b32 s45, s2, 5""")

def setup(k):
    if OPT.get('x216'):
        k(f"""s_and_b32 s44, s2, 7
        s_lshl_b32 s44, s44, 1
        s_bfe_u32 s45, s2, 0x10003
        s_add_u32 s48, s44, s45
        s_lshr_b32 s49, s2, 4
        s_lshl_b32 s45, s45, 2
        s_mov_b32 s46, s49""")
    elif OPT.get('x48'):
        k(f"""s_and_b32 s44, s2, 3
        s_lshl_b32 s44, s44, 2
        s_bfe_u32 s45, s2, 0x20003
        s_add_u32 s48, s44, s45
        s_and_b32 s44, s2, 4
        s_lshl_b32 s44, s44, 1
        s_lshr_b32 s46, s2, 5
        s_add_u32 s49, s44, s46
        s_lshl_b32 s45, s45, 1""")
    else:
        k(f"""s_and_b32 s44, s2, 1
        s_lshl_b32 s44, s44, 3
        s_bfe_u32 s45, s2, 0x30003
        s_add_u32 s48, s44, s45
        s_bfe_u32 s44, s2, 0x20001
        s_lshl_b32 s44, s44, 2
        s_lshr_b32 s46, s2, 6
        s_add_u32 s49, s44, s46
        s_lshl_b32 s46, s46, 1""")
    k(f"""s_mov_b32 s53, 0
    s_lshl_b32 s46, s48, 11
    s_lshl_b32 s47, s49, 7
    s_add_u32 s41, s46, s47
    s_add_u32 s41, s41, {RBF}
    v_mov_b32 v250, 0""")
    only_wave(k, 0, lambda: k(f'v_lshlrev_b32 v252, 15, v1\n s_mov_b64 exec, 3\n buffer_store_dword v250, v252, {WSR}, s41 offen{ST}\n global_load_dword v254, v250, s[20:21]{LD}'))
    stamp(k, 7, 'z')
    k(f"""s_lshl_b32 s44, {WAVE}, 4
    v_add_u32 v240, s44, v3
    v_cvt_f32_u32 v240, v240
    v_mul_f32 v240, {fbits(1/2048)}, v240
    v_lshlrev_b32 v241, 2, v2
    v_add_u32 v242, s44, v241
    v_cvt_f32_u32 v241, v241
    v_cvt_f32_u32 v242, v242
    v_cvt_f32_u32 v243, v3
    v_mul_f32 v243, {fbits(1/2048)}, v243""")
    for be in range(2):
        for r in range(4):
            t = TW1 + 8*be + r
            k(f'v_add_f32 v{t}, {fbits(16*be+r)}, v241\n v_mul_f32 v{t}, v{t}, v240')
            k(f'v_sin_f32 v{t+4}, v{t}\n v_cos_f32 v{t}, v{t}')
    for be in range(2):
        if be: k(f'v_add_f32 v243, {fbits(16/2048)}, v243')
        for r in range(4):
            t = TW2 + 8*be + r
            k(f'v_add_f32 v{t}, {fbits(r)}, v242\n v_mul_f32 v{t}, v{t}, v243')
            k(f'v_sin_f32 v{t+4}, v{t}\n v_cos_f32 v{t}, v{t}')
    k(f's_mul_i32 s44, s2, {ZT_STRIDE}\n s_add_u32 s44, s44, {ZT}')
    for u in range(4):
        k(f's_add_u32 s45, {WAVE}, {u}\n s_and_b32 s45, s45, 3\n s_lshl_b32 s45, s45, 11\n s_add_u32 s{55+u}, s44, s45\n v_add_u32 v{16+u}, s45, v4')
    k(f"""s_lshr_b32 s44, s2, 4
    s_sub_u32 s45, 32, s44
    s_cmp_eq_u32 s44, 0
    s_cselect_b32 s45, 16, s45
    s_bitcmp1_b32 s2, 3
    s_cselect_b32 s44, s45, s44
    s_and_b32 s45, s2, 7
    s_lshl_b32 s45, s45, 5
    s_add_u32 s44, s44, s45
    s_sub_u32 s44, s44, 1
    s_and_b32 s44, s44, 255
    s_mul_i32 s44, s44, {WT_STRIDE}
    s_lshl_b32 s45, {WAVE}, 10
    s_add_u32 s44, s44, s45
    s_add_u32 s59, s44, {WT}
    s_add_u32 s60, s59, 4096
    s_lshl_b32 s45, {WAVE}, 12
    s_add_u32 s61, s45, {SM}
    v_lshrrev_b32 v21, 2, v3
    v_lshlrev_b32 v21, 7, v21
    v_lshl_add_u32 v21, v2, 10, v21
    v_and_b32 v22, 3, v1
    v_lshl_add_u32 v22, v22, 4, v21
    s_mov_b32 s63, 0x80008000""")
    k(f"""v_and_b32 v23, 7, v1
    v_lshlrev_b32 v23, 8, v23
    s_and_b32 s74, s2, 7
    s_lshl_b32 s74, s74, 8
    s_add_u32 s75, s74, {FLG}
    s_sub_u32 s44, s2, {NZ}
    s_cmp_lt_u32 s44, {NC0-NZ}
    s_cselect_b32 s46, 1, 0
    s_cmp_ge_u32 s2, {NI0}
    s_cselect_b32 s46, 1, s46
    s_lshl_b32 s44, s46, 11
    s_lshl_b32 s45, s46, 14
    s_lshl_b32 s46, s46, 3
    s_sub_u32 s70, 19, s46
    s_add_u32 s71, s74, s44
    s_add_u32 s72, s75, s45
    s_lshl_b32 s44, s74, 3
    s_add_u32 s44, s44, {FLG+16384}
    v_add_u32 v23, s44, v23
    v_mov_b32 v251, 1""")
    wd_issue(k)

def setup2(k):
    k(f"""v_lshrrev_b32 v20, 2, v1
    v_lshlrev_b32 v20, 15, v20
    v_and_b32 v24, 3, v1
    v_lshl_add_u32 v20, v24, 4, v20
    s_lshr_b32 s44, s2, 5
    s_lshl_b32 s44, s44, 6
    s_and_b32 s45, s2, 31
    s_add_u32 s44, s44, s45
    s_lshl_b32 s44, s44, 6
    s_lshl_b32 s45, {WAVE}, 19
    s_add_u32 s44, s44, s45
    s_add_u32 s62, s44, {HT}
    s_mul_i32 s44, s49, 11
    s_mul_i32 s45, {WAVE}, 3
    s_add_u32 s50, s44, s45
    s_add_u32 s44, s50, s49
    s_lshl_b32 s44, s44, 14
    s_add_u32 s44, s44, {WP}
    v_add_u32 v248, s44, v4
    v_add_u32 v249, 0x4000, v248
    v_add_u32 v255, 0x8000, v248
    s_and_b32 s46, {WAVE}, 1
    s_lshr_b32 s47, {WAVE}, 1
    s_lshl_b32 s45, s46, 15
    s_lshl_b32 s54, s47, 10
    s_add_u32 s54, s54, s45
    s_lshl_b32 s44, s48, 17
    s_add_u32 s44, s44, s54
    s_add_u32 s44, s44, {HT}
    v_and_b32 v6, 1, v2
    v_lshlrev_b32 v6, 5, v6
    v_xor_b32 v5, v6, v4
    v_add_u32 v5, s44, v5
    v_lshrrev_b32 v7, 2, v1
    v_lshl_add_u32 v6, v7, 6, v6
    v_lshl_add_u32 v6, v24, 3, v6
    s_lshl_b32 s44, s47, 5
    s_add_u32 s44, s44, s45
    v_xor_b32 v6, s44, v6
    v_xor_b32 v7, 32, v6
    v_lshrrev_b32 v9, 2, v3
    v_cmp_eq_u32 vcc, v9, v2
    s_lshl_b32 s47, s47, 8
    s_lshl_b32 s44, s46, 9
    s_add_u32 s44, s44, s47
    s_add_u32 s44, s44, {STATL}
    v_lshl_add_u32 v10, v3, 4, s44
    v_xor_b32 v8, 0x100, v10
    v_add_u32 v9, {STATL+2048}, v4
    v_cndmask_b32 v9, v9, v10, vcc
    v_lshrrev_b32 v24, 1, v2
    v_lshlrev_b32 v11, 8, v24
    v_xor_b32 v11, v11, v10
    s_mov_b32 s64, 0x22222222
    s_mov_b32 s65, s64
    s_mov_b32 s66, 0x44444444
    s_mov_b32 s67, s66
    s_mov_b32 s68, 0x88888888
    s_mov_b32 s69, s68
    v_add_u32 v25, s50, v24
    v_lshrrev_b32 v12, 1, v25
    v_lshlrev_b32 v12, 16, v12
    v_and_b32 v25, 1, v25
    v_lshl_add_u32 v12, v25, 9, v12
    v_and_b32 v25, 31, v1
    v_lshl_add_u32 v12, v25, 4, v12
    v_xor_b32 v12, s47, v12
    s_add_u32 s44, s50, 2
    s_lshr_b32 s45, s44, 1
    s_lshl_b32 s45, s45, 16
    s_and_b32 s44, s44, 1
    s_lshl_b32 s44, s44, 9
    s_add_u32 s44, s44, s45
    v_lshl_add_u32 v13, v24, 8, s44
    v_lshl_add_u32 v13, v3, 4, v13
    v_and_b32 v25, 1, v2
    v_xor_b32 v25, 1, v25
    v_lshlrev_b32 v25, 10, v25
    v_xor_b32 v13, s47, v13
    s_lshl_b32 s44, s46, 1
    s_sub_u32 s44, 1, s44
    v_mul_i32_i24 v25, s44, v25
    v_sub_u32 v13, v13, v25""")
    wsrd(k, 32, HF+86*65536)

def p2_negs(k, base):
    for u in range(4):
        for h in range(2): k(f'v_xor_b32 v{base+6*u+h}, s63, v{base+6*u+4+h}')

def wd_reg(u, i): return A(192+8*u+4*i, 4) if u < 8 else V(144+8*(u-8)+4*i, 4)
def wd_loads(u):
    o = [f'buffer_load_dwordx4 {wd_reg(u+s,i)}, v15, {WSR}, s51 offen offset:{2048*s+1024*i}{LD}' for s in range(2) for i in range(2)]
    return o + ['s_add_u32 s51, s51, 4096']
def wloads(R=RA):
    return [f'buffer_load_dwordx4 {A(12*ka+4*t,4)}, v{(248, 249, 255)[t]}, {R}, {("0", "s70", "s71", "s72")[ka>>2]} offen offset:{1024*(ka&3)}{LD}' for ka in range(16) for t in range(3)]

def p2(k):
    Z, WW, SG, DD, TT, PK = 32, 64, 80, 88, 104, 240
    for u in range(4):
        for be in range(2): k(f'buffer_load_dwordx4 {V(Z+8*u+4*be,4)}, v4, {WSR}, s{55+u} offen offset:{1024*be}{LD}')
    k(f"""buffer_load_dwordx4 {V(PK,4)}, v4, {WSR}, s59 offen{LD}
    buffer_load_dwordx4 {V(PK+4,4)}, v4, {WSR}, s60 offen{LD}
    buffer_load_dwordx4 {V(SG,4)}, v22, {WSR}, s61 offen{LD}
    buffer_load_dwordx4 {V(SG+4,4)}, v22, {WSR}, s61 offen offset:512{LD}""")
    setup2(k)
    k(f"""s_mov_b32 s28, s24
    s_mov_b32 s29, s25
    s_mov_b32 s31, 0x20000
    s_mov_b32 s36, s24
    s_mov_b32 s37, s25
    s_mov_b32 s39, 0x20000
    s_mov_b32 s70, 4096
    s_mov_b32 s71, 8192
    s_mov_b32 s72, 12288
    buffer_load_dword v26, v23, {WSR}, 0 offen{LD}""")
    for u in range(4):
        if u == OPT.get('c1', 1):
            k(f'v_cmp_ne_u32 vcc, 1, v26\n s_cmp_eq_u64 vcc, 0\n s_cselect_b32 s30, {WS_USED}, 0')
            k(f'buffer_load_dword v27, v23, {WSR}, 0 offen{LD}')
            k.sprinkle = wloads(); k.every = OPT.get('every', 64); k.since = 100
        for be in range(2):
            for o in range(2):
                d = V(DD+8*be+4*o, 4)
                k(f'v_mfma_f32_16x16x32_f16 {d}, {V(Z+8*u+4*be,4)}, {V(B1+6*u+2-2*o,4)}, {"0" if u==0 else d}')
        if u == 0: stamp(k, 5); stamp(k, 2, 'b')
    for t in range(2):
        for r in range(4):
            k(f'v_lshlrev_b32 v{WW+8*t+r}, 16, v{PK+4*t+r}\n v_and_b32 v{WW+8*t+4+r}, 0xffff0000, v{PK+4*t+r}')
    E = Z + 8
    for be in range(2):
        cmul(k, DD+8*be, DD+8*be+4, TW1+8*be, TW1+8*be+4, TT, TT+4, True)
        for h in range(4): k(f'v_cvt_pk_f16_f32 v{PK+4*be+h}, v{TT+2*h}, v{TT+2*h+1}')
        for t in range(2):
            for o in range(2):
                d = V(E+8*t+4*o, 4)
                k(f'v_mfma_f32_16x16x32_f16 {d}, {V(A2+6*(2*t+be)+2-2*o,4)}, {V(PK+4*be,4)}, {"0" if be==0 else d}')
    stamp(k, 3, 'b')
    global n1
    n1 = 48 - len(k.sprinkle); k.sprinkle = []
    k(f'v_cmp_ne_u32 vcc, 1, v27\n s_cmp_eq_u64 vcc, 0\n s_cselect_b32 s38, {WS_USED}, 0')
    k.sprinkle = wloads(RC)[n1:]
    for t in range(2):
        cmul(k, E+8*t, E+8*t+4, WW+8*t, WW+8*t+4, TT, TT+4, False)
        for h in range(4): k(f'v_cvt_pk_bf16_f32 v{PK+4*t+h}, v{TT+2*h}, v{TT+2*h+1}')
        for be in range(2):
            for o in range(2):
                d = V(DD+8*be+4*o, 4)
                k(f'v_mfma_f32_16x16x32_bf16 {d}, {V(PK+4*t,4)}, {V(B3+6*(2*be+t)+2-2*o,4)}, {"0" if t==0 else d}')
    for be in range(2):
        cmul(k, DD+8*be, DD+8*be+4, TW2+8*be, TW2+8*be+4, TT, TT+4, False)
        for h in range(4): k(f'v_cvt_pk_bf16_f32 v{PK+4*be+h}, v{TT+2*h}, v{TT+2*h+1}')
        k(f'ds_write_b128 v16, {V(PK+4*be,4)} offset:{1024*be}')
    def step4(u, src):
        for be in range(2):
            for o in range(2):
                d = V(DD+8*be+4*o, 4)
                k(f'v_mfma_f32_16x16x32_bf16 {d}, {V(A4+6*u+2-2*o,4)}, {V(src+4*be,4)}, {d}')
    for o in range(2):
        for be in range(2):
            for r in range(4):
                d = DD+8*be+4*o+r; hi = r & 1
                k(f'v_fma_mix_f32 v{d}, v{SG+4*be+r}, v{Z+4*be+2*o+(r>>1)}, 0 op_sel:[0,{hi},0] op_sel_hi:[0,1,0]')
    stamp(k, 4, 'b')
    k.wait(lg=0); k('s_barrier')
    for u in range(1, 4):
        for be in range(2): k(f'ds_read_b128 {V(Z+8*u+4*be,4)}, v{16+u} offset:{1024*be}')
    step4(0, PK)
    for u in range(1, 4): step4(u, Z+8*u)
    OUT = 64
    rest, k.sprinkle = k.sprinkle, []
    for o in range(2):
        for be in range(2):
            for h in range(2): k(f'v_cvt_pk_bf16_f32 v{OUT+4*o+2*be+h}, v{DD+8*be+4*o+2*h}, v{DD+8*be+4*o+2*h+1}')
    k('s_cmp_lg_u32 s2, 0\n s_cbranch_scc1 L_p2_st')
    for h in range(4): k(f'v_mov_b32 v{OUT+4+h}, v{OUT+h}\n v_mov_b32 v{OUT+h}, 0')
    k.label('L_p2_st')
    for o in range(2): k(f'buffer_store_dwordx4 {V(OUT+4*o,4)}, v20, {WSR}, s62 offen offset:{2048*o}{ST}')
    stamp(k, 5, 'b')
    return rest

def barrier2(k, rest):
    print('weight loads left after phase 2:', len(rest))
    k(f's_lshl_b32 s44, s48, 12\n s_add_u32 s44, s44, {HF}')
    k(f's_and_b32 s46, {WAVE}, 1')
    for p in range(4): k(f's_xor_b32 s45, s46, {p}\n s_lshl_b32 s45, s45, 10\n s_add_u32 s{55+p}, s44, s45')
    k(f"""s_lshl_b32 s44, s49, 17
    s_lshl_b32 s45, s48, 11
    s_add_u32 s44, s44, s45
    s_add_u32 s59, s44, {HRES}
    s_add_u32 s60, s59, 0x10000
    s_lshl_b32 s44, s48, 10
    s_add_u32 s61, s44, {SM+64}
    s_mov_b32 s46, 0""")
    rest = [t.replace(RC, WSR) for t in rest]
    print('group 1:', n1)
    k(f's_cmp_lg_u32 s30, 0\n s_cbranch_scc1 L_bok')
    st = k.state()
    k(f's_cmp_lg_u32 s38, 0\n s_cbranch_scc1 L_bok2')
    k.label('L_bchk')
    k(f"""buffer_load_dword v26, v23, {WSR}, 0 offen{LD}
    s_add_u32 s46, s46, 1
    s_waitcnt vmcnt(0)
    v_cmp_ne_u32 vcc, 1, v26
    s_cmp_gt_u32 s46, {SPIN}
    s_cbranch_scc1 L_bgo
    s_cbranch_vccnz L_bchk""")
    k.label('L_bgo')
    for t in wloads(WSR)[n1:48-len(rest)]: k(t)
    k.label('L_bok2')
    for t in wloads(WSR)[:n1]: k(t)
    k.restore(st)
    k.label('L_bok')
    stamp(k, 6)
    nA = min(OPT.get('nA', 12), len(rest)); nB = min(OPT.get('nB', 48), len(rest) - nA)
    for t in rest[:nA]: k(t)
    stamp(k, 6, 'b')
    k(f'v_mov_b32 v250, 0\n v_mov_b32 v251, 1\n s_cmp_lg_u32 {WAVE}, 0\n s_cbranch_scc1 L_b2o')
    st = k.state()
    k(f's_mov_b64 exec, 1\n s_waitcnt vmcnt({nA})'); stamp(k, 7, 'b'); k('s_barrier'); stamp(k, 8, 'b')
    k(f'buffer_atomic_add v251, v250, {WSR}, s74 offen sc0 sc1\n s_mov_b64 exec, -1')
    for t in rest[nA:nA+nB]: k(t)
    stamp(k, 9, 'b'); arrive_check(k, 250, 's75', 51, 2); stamp(k, 10, 'b'); poll(k, 250, 2)
    k('s_branch L_b2x')
    k.restore(st); k.label('L_b2o')
    k(f's_waitcnt vmcnt({nA})'); stamp(k, 7, 'b'); k('s_barrier'); stamp(k, 8, 'b')
    for t in rest[nA:nA+nB]: k(t)
    stamp(k, 9, 'b'); stamp(k, 10, 'b')
    global late_w
    late_w = rest[nA+nB:]
    def hw():
        k('v_bfe_u32 v16, v1, 2, 1\n v_lshlrev_b32 v16, 9, v16\n v_bfe_u32 v17, v1, 3, 1\n v_lshl_add_u32 v16, v17, 4, v16\n v_and_b32 v17, 3, v1\n v_lshl_add_u32 v16, v17, 2, v16')
        for j in range(8): k(f'buffer_load_dword v{MUV+j}, v16, {WSR}, s61 offen offset:{128*((j^3)>>1)+32*((j^3)&1)}{LD}')
    global hw_means, st3
    hw_means = hw
    k(f's_cmp_eq_u32 {WAVE}, 3\n s_cbranch_scc1 L_p3h')
    st3 = k.state()
    if OPT.get('isl'):
        k(f's_mov_b64 exec, 0\n s_cmp_eq_u32 {WAVE}, 1\n s_cbranch_scc1 L_isl0_0\n s_branch L_isl0_{OPT.get("islmid", 32)}')
        k.label('L_islret0'); k('s_mov_b64 exec, -1')
    k.label('L_b2x')

ACT, ACC, TM, STV, MUV = 32, 64, 128, 16, 24
def cost(t):
    m = t.split()[0]
    if m.startswith('buffer'): return 18 + 4 * t.count('\n')
    if m.startswith(('v_exp', 'v_rcp', 'v_rsq', 'v_permlane', 'ds_write')): return 8
    return 4 * (t.count('\n') + 1)

def p3_body(k, hw):
    acc = lambda p, n, m, par=0: ACC + 32*(p & 1) + 8*(n + (par if n == 2 and hw else 0)) + 4*m
    GR = 28 if not hw else TM + 12
    dma_pos = []
    def dma(j):
        o = f'buffer_load_dwordx4 v5, {WSR}, s53 offen offset:{2048*(j&1)}{LD} lds'
        if j & 1:
            st = 4096 + (32768 if j == 15 else 0)
            return o + f'\n s_add_u32 s53, s53, {st}\n s_add_u32 s54, s54, {st}'
        return 's_mov_b32 m0, s54\n' + o
    def slot(g, m): return ACT + 8*(g & 3) + 4*m
    def reads(g):
        p, ka = divmod(g, 16); o = []
        if p and ka == 0:
            x = (p ^ (p-1)) << 15
            o = [f'v_xor_b32 v6, {x:#x}, v6', f'v_xor_b32 v7, {x:#x}, v7']
        return o + [f'ds_read_b64_tr_b16 {V(slot(g,m)+2*h,2)}, v{6+m} offset:{2048*ka+1024*h}' for m in range(2) for h in range(2)]
    def chains(p, J):
        if p == 3:
            P = J[::2]
            o = [f'v_pk_mul_f32 {V(t,2)}, {V(g,2)}, {V(g,2)}' for g, u, t, c in P]
            o += [f'v_pk_fma_f32 {V(t,2)}, {V(t,2)}, {V(c,2)}, {V(c,2)} op_sel:[0,1,0] op_sel_hi:[1,1,0]' for g, u, t, c in P]
            o += [f'v_pk_mul_f32 {V(t,2)}, {V(t,2)}, {V(g,2)}' for g, u, t, c in P]
            o += [f'v_exp_f32 v{t}, v{t}' for g, u, t, c in J]
            o += [f'v_pk_mul_f32 {V(g,2)}, {V(g,2)}, {V(u,2)}' for g, u, t, c in P]
            o += [f'v_pk_fma_f32 {V(t,2)}, {V(t,2)}, {V(c+2,2)}, {V(c+2,2)} op_sel_hi:[1,0,0]' for g, u, t, c in P]
            o += [f'v_rcp_f32 v{t}, v{t}' for g, u, t, c in J]
            o += [f'v_pk_mul_f32 {V(g,2)}, {V(g,2)}, {V(t,2)}' for g, u, t, c in P]
            return o
        o = [f'v_mul_f32 v{t}, v{g}, v{g}' for g, u, t, c in J]
        o += [f'v_fma_f32 v{t}, v{t}, v{c+1}, v{c}' for g, u, t, c in J]
        o += [f'v_mul_f32 v{t}, v{t}, v{g}' for g, u, t, c in J]
        for g, u, t, c in J: o += [f'v_exp_f32 v{t}, v{t}', f'v_mul_f32 v{g}, v{g}, v{u}']
        o += [f'v_fma_f32 v{t}, v{t}, v{c+2}, v{c+2}' for g, u, t, c in J]
        o += [f'v_rcp_f32 v{t}, v{t}' for g, u, t, c in J]
        o += [f'v_mul_f32 v{g}, v{g}, v{t}' for g, u, t, c in J]
        return o
    def epilogue(p):
        HA, HX = TM + 8, TM + 12
        J = [(acc(p, 0, m)+r, acc(p, 1, m)+r, TM+4*m+r, STV+4*m) for m in range(2) for r in range(4)]
        o = []
        if not hw: o += [f'v_permlane32_swap_b32 v{acc(p,2,0)+r}, v{acc(p,2,1)+r}' for r in range(4)]
        o += chains(p, J)
        o += [f'v_cvt_pk_bf16_f32 v{HA+2*m+h}, v{acc(p,0,m)+2*h}, v{acc(p,0,m)+2*h+1}' for h in range(2) for m in range(2)]
        tail = [f'v_permlane16_swap_b32 v{HA}, v{HA+2}', f'v_permlane16_swap_b32 v{HA+1}, v{HA+3}',
                f'buffer_store_dwordx4 {V(HA,4)}, v12, {RB}, s{55+p} offen{ST}']
        if not hw:
            x = chains(p, [(acc(p, 2, 0)+r, acc(p, 2, 1)+r, TM+r, STV+8) for r in range(4)])
            o += x[:2] + tail + x[2:]
            o += [f'v_cvt_pk_bf16_f32 v{HX+2*(p&1)+h}, v{acc(p,2,0)+2*h}, v{acc(p,2,0)+2*h+1}' for h in range(2)]
            if p & 1: o += [f'v_permlane16_swap_b32 v{HX}, v{HX+2}', f'v_permlane16_swap_b32 v{HX+1}, v{HX+3}',
                            f'buffer_store_dwordx4 {V(HX,4)}, v13, {RB}, s{55+p} offen{ST}']
        else:
            for m in range(2):
                e, od = acc(p, 2, m), acc(p, 2, m, 1); t = TM
                o += [f'v_add_f32 v{e+r}, v{e+r}, v{MUV+2*p+m}' for r in range(4)]
                if m == 0: o += tail
                for r in range(4): o += [f'v_add_f32 v{t+r}, v{e+r}, v{od+r}', f'v_sub_f32 v{t+4+r}, v{e+r}, v{od+r}']
                P0, P1 = acc(p, 2, 0), acc(p, 2, 0, 1)
                o += [f'v_cvt_pk_bf16_f32 v{P0+2*m}, v{t}, v{t+1}', f'v_cvt_pk_bf16_f32 v{P0+2*m+1}, v{t+2}, v{t+3}',
                      f'v_cvt_pk_bf16_f32 v{P1+2-2*m}, v{t+7}, v{t+6}', f'v_cvt_pk_bf16_f32 v{P1+3-2*m}, v{t+5}, v{t+4}']
            off = 512*(p ^ 1)
            o += [f'v_permlane16_swap_b32 v{P0}, v{P0+2}', f'v_permlane16_swap_b32 v{P0+1}, v{P0+3}',
                  f'buffer_store_dwordx4 {V(P0,4)}, v13, {WSR}, s59 offen offset:{off}{ST}',
                  f'v_permlane16_swap_b32 v{P1+2}, v{P1}', f'v_permlane16_swap_b32 v{P1+3}, v{P1+1}',
                  f'buffer_store_dwordx4 {V(P1,4)}, v14, {WSR}, s60 offen offset:{off}{ST}']
        return o
    def stats(p):
        K0 = -2*math.sqrt(2/math.pi)*math.log2(math.e); b = GR
        return [f'v_cndmask_b32 v{b}, v{b}, v{b+1}, s[64:65]', f'v_cndmask_b32 v{b}, v{b}, v{b+2}, s[66:67]', f'v_cndmask_b32 v{b}, v{b}, v{b+3}, s[68:69]',
                f'v_mov_b32 v{b+2}, {fbits(1e-5)}', f'v_fmac_f32 v{b+2}, {fbits(1/512)}, v{b}', f'v_rsq_f32 v{b+3}, v{b+2}',
                f'v_mul_f32 v{b}, {fbits(K0)}, v{b+3}', f'v_mul_f32 v{b+3}, v{b+3}, v{b+3}', f'v_mul_f32 v{b+1}, {fbits(0.044715)}, v{b}', f'v_mul_f32 v{b+1}, v{b+1}, v{b+3}',
                f'ds_write_b128 v9, {V(b,4)} offset:{512*p}']
    def getstats(p):
        R = [(10, STV), (8, STV+4)] + ([] if hw else [(11, STV+8)])
        o = [f'v_xor_b32 v{a}, 0x200, v{a}' for a, _ in R] if p else []
        return o + [f'ds_read_b128 {V(d,4)}, v{a} offset:{1024*(p>>1)}' for a, d in R]
    def issue_dma(j): k(dma(j)); dma_pos.append(k.nvm)
    if hw:
        hw_means()
        if OPT.get('isl'):
            k('s_mov_b64 exec, 0\n s_branch L_isl1_0'); k.label('L_islret1'); k('s_mov_b64 exec, -1')
    k('s_barrier')
    stamp(k, 7); stamp(k, 11, 'b')
    def island(g):
        G = OPT.get('isl')
        if not G or g % G: return
        mid = OPT.get('islmid', 32)
        k.label(f'L_isl{int(hw)}_{g}')
        k(f's_cbranch_execz L_isl{int(hw)}_{g+G}' if g + G < 64 and (hw or g + G != mid) else (f's_cbranch_execz L_islret{int(hw)}' if g + G >= 64 else f's_cbranch_execz L_islret0'))
    DP = OPT.get('dpre', 8)
    for j in range(DP): issue_dma(j)
    if hw: k('v_and_b32 v13, 0x1f0, v4\n v_xor_b32 v13, 0x100, v13\n v_lshrrev_b32 v14, 5, v1\n v_lshl_add_u32 v13, v14, 15, v13\n v_xor_b32 v14, 0x8000, v13')
    p4_ids(k)
    k(f"""s_mov_b32 s51, 0
    s_lshl_b32 s45, s45, 2
    s_add_u32 s45, s45, {WAVE}
    s_mul_i32 s45, s45, {22*2048}
    s_add_u32 s45, s45, {WD}
    v_add_u32 v15, s45, v4
    s_lshr_b32 s46, s44, 1
    s_lshl_b32 s45, s46, 11
    s_add_u32 s62, s45, {RBF}
    s_add_u32 s63, s62, 0x8000
    s_lshl_b32 s46, s46, 2
    s_and_b32 s44, s44, 1
    s_add_u32 s73, s46, s44
    s_lshl_b32 s46, s73, 10
    s_lshl_b32 s47, {WAVE}, 16
    s_add_u32 s46, s46, s47
    s_add_u32 s74, s46, {HF}
    s_mov_b32 s75, 0""")
    def landed(j): k(f's_waitcnt vmcnt({min(63, k.nvm - dma_pos[j])})'); k('s_barrier')
    landed(1)
    stamp(k, 8)
    rd_pos = {}
    def do_reads(g):
        for t in reads(g): k(t)
        rd_pos[g] = k.nlg
    do_reads(0); do_reads(1)
    NWD = OPT.get('wdin', 22)
    memq = [('dma', j) for j in range(DP, 16)]
    lw = list(late_w)
    memq += lw + [('dma', j) for j in range(16, 32)]
    nfast = len(memq)
    wl = [t for u in range(0, NWD, 2) for t in wd_loads(u)]
    wdq = [wl[i] + ('\n' + wl[i+1] if i % 5 == 3 else '') for i in range(len(wl)) if i % 5 != 4]
    W1 = OPT.get('wdend', 56)
    st_pos = None
    eq = [hload(0, u, RC) for u in range(22)]
    fc = lambda f: {'dma': 24, 'land': 10, 'rd': 4.6}[f[0]] if isinstance(f, tuple) else cost(f)
    for p in range(4):
        pre = stats(p-1) if p & 1 else []
        bg = ((getstats(p-1) if p & 1 else []) + epilogue(p-1) + (getstats(p) if p & 1 else [])) if p else []
        k0 = 2 if p & 1 else 0
        k1 = OPT.get('e1end', 14) if p == 2 else 16
        tot = sum(map(cost, bg)); done = 0
        for ka in range(16):
            g = 16*p + ka
            fill = []; mem = []
            island(g)
            if OPT.get('gst') and g in OPT['gst']: stamp(k, 1 + OPT['gst'].index(g), True)
            k.wait(lg=k.nlg - rd_pos[g])
            if p & 1 and ka == 2:
                assert not pre
                k.wait(lg=k.nlg - stat_pos)
                if p == 3: k(f's_waitcnt vmcnt({min(63, k.nvm - st_pos)})')
                k('s_barrier')
                if p == 3 and hw: k(f'v_mov_b32 v{MUV}, 0\n v_mov_b32 v{MUV+1}, 1\n s_mov_b64 exec, 1\n buffer_store_dword v{MUV+1}, v{MUV}, {WSR}, s41 offen{ST}\n s_mov_b64 exec, -1')
            LG = OPT.get('lgrp', 2)
            if p == 0 and ka < 14 and ka % LG == 0: fill.append(('land', min(15, ka + 1 + LG)))
            if p == 1 and ka == 13: fill.append(('land', 31))
            if g + 2 < 64: fill += [('rd', t, g + 2) for t in reads(g + 2)]
            if memq:
                n = OPT.get('mrate', 2); mem = memq[:n]; memq = memq[n:]
            elif wdq:
                wgt = lambda x: 0 if x >= W1 else (3 if (32 + OPT.get('e1end', 14) <= x < 48 or x < 16 or x % 32 == 16) else 1)
                left = sum(map(wgt, range(g, 64)))
                n = int(round(len(wdq) * wgt(g) / left + (0.49 if left == wgt(g) else 0))) if left else 0
                mem = wdq[:n]; wdq = wdq[n:]
            val = []
            if ka == 0 and pre: val += ['s_nop 0']
            if ka <= 1 and pre:
                n = 4 if ka == 0 else len(pre); val += pre[:n]; pre = pre[n:]
            if ka >= k0:
                budget = tot * (ka + 1 - k0) / (k1 - k0) - (10 if mem else 0)
                while bg and (done + cost(bg[0])/2 <= budget or ka == k1 - 1):
                    done += cost(bg[0]); val.append(bg.pop(0))
            if g == 48 + OPT.get('esamp', 10): val = ['v_lshlrev_b32 v5, 7, v3', f'buffer_load_dword v9, v5, {WSR}, s62 offen{LD}', 'v_add_u32 v15, s74, v4'] + val
            if g == 48 + OPT.get('echk', 13): val += [f'v_cmp_ne_u32 vcc, 1, v9\n s_cmp_eq_u64 vcc, 0\n s_cselect_b32 s38, s34, 0']
            if g > 48 + OPT.get('echk', 13):
                mem = eq[:2]; eq = eq[2:]
            fill += val
            for i, t in enumerate(mem): fill.insert(min(len(fill), 2 + i * (len(fill) + 1) // len(mem)), t)
            mf = []
            for m in range(2):
                b = V(slot(g, m), 4)
                for n in range(3):
                    d = V(acc(p, n, m, ka & 1), 4)
                    first = ka == 0 or (n == 2 and ka == 1 and hw)
                    mf.append(f'v_mfma_f32_16x16x32_bf16 {d}, {A(12*ka+4*n,4)}, {b}, {"0" if first else d}')
            if p % 2 == 0: mf.insert(0, f'v_mfma_f32_16x16x32_bf16 {V(GR,4)}, {V(slot(g,0),4)}, {V(slot(g,0),4)}, {"0" if ka==0 else V(GR,4)}')
            ftot = sum(map(fc, fill)); fd = 0
            for i, t in enumerate(mf):
                k(t)
                while fill and fd + fc(fill[0])/2 <= ftot * (i+1) / len(mf) + 1e-6:
                    f = fill.pop(0); fd += fc(f)
                    if isinstance(f, tuple):
                        if f[0] == 'dma': issue_dma(f[1])
                        elif f[0] == 'land': landed(f[1])
                        elif f[0] == 'rd': k(f[1]); rd_pos[f[2]] = k.nlg
                    else:
                        k(f)
                        if f.startswith('ds_write'): stat_pos = k.nlg
            assert not fill
            if p == 2 and ka == k1 - 1: st_pos = k.nvm
        assert not bg
        if p == 0: stamp(k, 9)
        if OPT.get('pst'): stamp(k, 1+p, True)
    assert not wdq
    stamp(k, 10)
    ep = epilogue(3); ne = OPT.get('eepi', 6); gap = 5
    for i, t in enumerate(ep):
        k(t)
        if i % gap == gap - 1 and ne > 0: k(eq.pop(0)); ne -= 1
    assert ne == 0
    if OPT.get('pst'): stamp(k, 5, True)
    return 22 - len(eq)

def hload(hf, u, R):
    return f'buffer_load_dwordx4 {A(88*hf+4*u,4)}, v15, {R}, s75 offen offset:{2048*hf}{LD}\n ' + ('s_add_u32 s75, s75, 0x40000' if u < 21 else 's_mov_b32 s75, 0')

def redo(k, soff, hf, n):
    uid[0] += 1; u = uid[0]
    k(f's_cmp_lg_u32 s38, 0\n s_cbranch_scc1 L_sd{u}')
    st = k.state()
    k('s_mov_b32 s46, 0')
    k.label(f'L_sp{u}')
    k(f"""buffer_load_dword v6, v5, {WSR}, {soff} offen{LD}
    s_add_u32 s46, s46, 1
    s_waitcnt vmcnt(0)
    v_cmp_ne_u32 vcc, 1, v6
    s_cmp_gt_u32 s46, {SPIN}
    s_cbranch_scc1 L_sg{u}
    s_cbranch_vccnz L_sp{u}""")
    k.label(f'L_sg{u}')
    k('s_mov_b32 s75, 0')
    for j in range(n): k(hload(hf, j, RB))
    k.restore(st)
    k.vm = [set()] * 8 + [{('a', 88*hf+4*j+r) for r in range(4)} for j in range(n)]
    k.label(f'L_sd{u}')

def spin(k, reg, soff):
    uid[0] += 1; u = uid[0]
    k(f'v_cmp_ne_u32 vcc, 1, v{reg}\n s_mov_b32 s46, 0\n s_cbranch_vccz L_sd{u}')
    st = k.state()
    k.label(f'L_sp{u}')
    k(f"""buffer_load_dword v{reg}, v5, {WSR}, {soff} offen{LD}
    s_add_u32 s46, s46, 1
    s_waitcnt vmcnt(0)
    v_cmp_ne_u32 vcc, 1, v{reg}
    s_cmp_gt_u32 s46, {SPIN}
    s_cbranch_scc1 L_sd{u}
    s_cbranch_vccnz L_sp{u}""")
    k.restore(st)
    k.label(f'L_sd{u}')

QS, INS, PS = 1152, 4736, 9472
def p4(k, n0, nst):
    HR, RD, SUM = 32, 40, 128
    PRE = OPT.get('p4pre', 14)
    uid[0] += 1; u0 = uid[0]
    k(f's_cmp_lg_u32 s38, 0\n s_cbranch_scc1 L_e{u0}')
    k('s_mov_b32 s46, 0')
    k.label(f'L_es{u0}')
    k(f"""buffer_load_dword v6, v5, {WSR}, s62 offen{LD}
    s_add_u32 s46, s46, 1
    s_waitcnt vmcnt(0)
    v_cmp_ne_u32 vcc, 1, v6
    s_cmp_gt_u32 s46, {SPIN}
    s_cbranch_scc1 L_eg{u0}
    s_cbranch_vccnz L_es{u0}""")
    k.label(f'L_eg{u0}')
    k('s_mov_b32 s75, 0')
    for j in range(n0): k(hload(0, j, RB))
    k('s_waitcnt vmcnt(0)')
    k.label(f'L_e{u0}')
    k.vm = [{('a', 4*j+r) for r in range(4)} for j in range(n0)] + [set()] * nst
    base = k.nvm
    stamp(k, 11)
    setup = f"""s_mov_b32 s28, s18
    s_and_b32 s29, s19, 0xffff
    s_mov_b32 s30, {S*D*2}
    s_lshr_b32 s65, s2, 5
    v_lshrrev_b32 v16, 3, v1
    v_bfe_u32 v17, v1, 1, 2
    s_lshl_b32 s46, s65, 2
    v_add_u32 v17, s46, v17            ; 16-column block
    v_sub_u32 v18, 31, v17
    v_min_u32 v18, v17, v18
    v_lshlrev_b32 v18, 17, v18
    v_lshrrev_b32 v17, 4, v17
    v_lshl_add_u32 v18, v17, 16, v18
    v_lshl_add_u32 v18, v16, 4, v18
    v_and_b32 v17, 1, v1
    v_lshl_add_u32 v8, v17, 15, v18    ; residual
    s_lshl_b32 s66, s73, 9
    s_lshl_b32 s46, {WAVE}, 7
    s_add_u32 s66, s66, s46
    s_add_u32 s66, s66, {HRES}
    v_mov_b32 v20, 0
    v_mov_b32 v21, 1
    s_add_u32 s41, s41, 0x8000
    s_lshr_b32 s46, s73, 2
    s_lshl_b32 s46, s46, 17
    s_and_b32 s44, s73, 3
    s_lshl_b32 s44, s44, 2
    s_add_u32 s44, s44, {WAVE}
    s_lshl_b32 s44, s44, 10
    s_add_u32 s67, s46, s44
    s_lshl_b32 s45, s65, 7
    s_add_u32 s67, s67, s45
    s_add_u32 s68, s67, 0x2000
    v_and_b32 v9, 7, v1
    v_lshlrev_b32 v9, 4, v9
    v_and_b32 v18, 3, v16
    v_lshl_add_u32 v9, v18, 15, v9
    v_lshrrev_b32 v18, 2, v16
    v_lshl_add_u32 v9, v18, 14, v9     ; output
    v_lshrrev_b32 v18, 5, v1
    v_lshl_add_u32 v10, v18, 6, v4
    s_mul_i32 s44, {WAVE}, {PS}
    v_add_u32 v10, s44, v10            ; partial sums, write
    v_bfe_u32 v18, v1, 2, 1
    v_mul_u32_u24 v11, {INS}, v18
    v_bfe_u32 v18, v1, 1, 1
    v_mul_u32_u24 v18, 576, v18
    v_add_u32 v11, v11, v18
    v_lshl_add_u32 v11, v16, 4, v11
    v_lshl_add_u32 v11, v17, 3, v11
    s_lshl_b32 s44, {WAVE}, 7
    v_add_u32 v11, s44, v11            ; partial sums, read
    v_add_u32 v12, {4*PS}, v11""".split('\n')
    def resid(hf): k(f'buffer_load_dwordx4 {V(HR+4*hf,4)}, v8, {WSR}, s66 offen offset:{1024*hf}{LD}')
    def mm(hf, issued, hook):
        for u in range(22):
            for i in range(2):
                d = V(ACC+32*hf+16*i, 16)
                k(f'v_mfma_f32_32x32x16_bf16 {d}, {wd_reg(u, i)}, {A(88*hf+4*u,4)}, {"0" if u==0 else d}')
                if i == 0 and issued < 22: k(hload(hf, issued, RB)); issued += 1
                elif i == 0 and issued == 22: resid(hf); issued += 1
                hook(u, i)
    def red_write(hf):
        o = [f'ds_write_b128 v10, {V(ACC+32*hf+16*i+4*q,4)} offset:{4*PS*hf+INS*i+QS*q}' for i in range(2) for q in range(4)]
        for j in range(4):
            o += [f'v_lshlrev_b32 v{SUM+4*(j&1)+(j>>1)}, 16, v{HR+4*hf+j}', f'v_and_b32 v{SUM+4*(j&1)+2+(j>>1)}, 0xffff0000, v{HR+4*hf+j}']
        return o
    def red_read(hf):
        R = lambda w, q: (RD + 8*w + 2*q) if w < 3 else SUM + 8 + 2*q
        for w in range(4):
            for q in range(4): k(f'ds_read_b64 {V(R(w,q),2)}, v{11+hf} offset:{PS*w+QS*q}')
        for w in range(4):
            for q in range(4): k(f'v_pk_add_f32 {V(SUM+2*q,2)}, {V(SUM+2*q,2)}, {V(R(w,q),2)}')
        for j in range(4): k(f'v_cvt_pk_bf16_f32 v{HR+4*hf+j}, v{SUM+4*(j&1)+(j>>1)}, v{SUM+4*(j&1)+2+(j>>1)}')
        k(f'buffer_store_dwordx4 {V(HR+4*hf,4)}, v9, {RA}, s{67+hf} offen{OPT.get("ost", "")}')
    def hook0(u, i):
        for _ in range(4):
            if setup: k(setup.pop(0))
        if u == OPT.get('lflag', 9) and i == 1:
            assert not setup
            k(f's_waitcnt vmcnt({k.nvm - base})'); k('s_barrier')
            only_wave(k, 0, lambda: k(f'buffer_store_dword v21, v20, {WSR}, s41 offen{ST}'))
            if OPT.get('p4st'): stamp(k, 1, True)
    mm(0, n0, hook0)
    if OPT.get('p4st'): stamp(k, 2, True)
    for t in red_write(0): k(t)
    k.wait(lg=0); k('s_barrier')
    k(f'buffer_load_dword v6, v5, {WSR}, s63 offen{LD}')
    red_read(0)
    if OPT.get('p4st'): stamp(k, 3, True)
    spin(k, 6, 's63')
    for j in range(PRE): k(hload(1, j, RB))
    if OPT.get('p4st'): stamp(k, 4, True)
    mm(1, PRE, lambda u, i: None)
    if OPT.get('p4st'): stamp(k, 5, True)
    for t in red_write(1): k(t)
    k.wait(lg=0); k('s_barrier')
    red_read(1)

def fused():
    k = K()
    prologue(k)
    k(f's_cmp_ge_u32 s2, {NZ}\n s_cbranch_scc1 L_notz')
    st0 = k.state()
    p1_z(k)
    k.label('L_join1')
    k.vm = [set()] * 40; k.lg = []
    setup(k)
    stamp(k, 3)
    negs = lambda: [p2_negs(k, b) for b in (B1, A2, B3, A4)]
    stamp(k, 8, 'z')
    k(f's_cmp_lg_u32 {WAVE}, 0\n s_cbranch_scc1 L_b1o')
    st = k.state()
    k('s_mov_b64 exec, 1\n s_mov_b32 s46, 0\n s_waitcnt vmcnt(8)')
    k.label('L_go')
    k(f"""v_cmp_ne_u32 vcc, 0, v254
    s_add_u32 s46, s46, 1
    s_cbranch_vccnz L_gone
    global_load_dword v254, v250, s[20:21]{LD}
    s_waitcnt vmcnt(0)
    s_cmp_lt_u32 s46, {SPIN}
    s_cbranch_scc1 L_go""")
    k.restore(st); k.vm = k.vm[-8:]
    k.label('L_gone')
    stamp(k, 9, 'z')
    k('s_barrier')
    k(f'buffer_atomic_add v251, v250, {WSR}, s71 offen sc0 sc1\n s_mov_b64 exec, -1')
    stamp(k, 10, 'z')
    negs(); arrive_check(k, 250, 's72', 's70', 1)
    poll(k, 250, 1)
    k('s_branch L_b1x')
    k.restore(st); k.label('L_b1o')
    k('s_waitcnt vmcnt(8)')
    stamp(k, 9, 'z')
    k('s_barrier')
    stamp(k, 10, 'z')
    negs(); wd_finish(k); k.label('L_b1x')
    k('s_barrier')
    stamp(k, 4)
    stamp(k, 11, 'z'); stamp(k, 1, 'b')
    barrier2(k, p2(k))
    n0 = p3_body(k, False)
    nst = 0
    while not k.vm[-1-nst]: nst += 1
    k.label('L_join3')
    k.fence()
    p4(k, n0, nst)
    stamp_out(k, 12)
    k.label('L_end'); k('s_endpgm')
    k.restore(st3); k.label('L_p3h'); assert p3_body(k, True) == n0
    assert not any(k.vm[-nst:]); k('s_branch L_join3')
    k.restore(st0); k.label('L_notz')
    p1_w(k); k('s_branch L_join1')
    k.restore(st_c); k.label('L_p1c')
    k(f's_cmp_ge_u32 s2, {NI0}\n s_cbranch_scc1 L_p1i')
    st1 = k.state()
    p1_t(k); k('s_branch L_join1')
    k.restore(st1); k.label('L_p1i'); p1_i(k); k('s_branch L_join1')
    o = header()
    o += f'; @launch grid=(256,1,1) block=(256,1,1) lds={STATL+4096}\n'
    o += '.amdgcn_target "amdgcn-amd-amdhsa--gfx950"\n.text\n' + k.text()
    o += tables_text() + 'L_image_end:\n'
    o += '.section .rodata,"a"\n.p2align 6\n' + kd(KN, k)
    return o

if __name__ == '__main__':
    out = sys.argv[1]
    for a in sys.argv[2:]:
        key, _, val = a.partition('=')
        OPT[key] = eval(val) if val else True
    open(out, 'w').write(fused())
```

```python
import sys, math, struct
import numpy as np
from dsl import K
from design import *
from gen import V, A, Sg, fbits, TBL, tables_text, header, kd, NAME, srd, cmul, TPAD

OPT = dict(stamps=False, gblate=True, tpost=True, every=48, mergeland=True, mrate=1.5, nopre=True, w0late=True, nA=10, c1=2, fpos=4, c2=1, prio=True, wgbfirst=True, wdshadow=True, wcont=True, nowpf=True, nord=True, hold=True)
ST, LD = ' sc1', ' sc1'
WSR, RA, RB, RC = 's[24:27]', 's[28:31]', 's[32:35]', 's[36:39]'
WAVE = 's40'
KN = NAME + '_kernel'
SPIN = 400000
TW1, TW2 = 112, 128
B1, A4, A2, B3 = 144, 168, 192, 216
FA, GB = 200, 208
NZ, NC0, NI0 = 128, 216, 248
uid = [0]

def stamp(k, i, pm=False):
    if OPT.get('pst') and 1 <= i <= 5 and not pm: return
    if OPT.get('zdet') and 1 <= i <= 11 and pm != 'z': return
    if pm == 'z' and not OPT.get('zdet'): return
    if OPT.get('bdet') and 1 <= i <= 11 and pm != 'b': return
    if pm == 'b' and not OPT.get('bdet'): return
    if OPT['stamps']: k(f's_{"memtime" if OPT.get("pst") else "memrealtime"} s[{76+2*i}:{77+2*i}]')
def stamp_out(k, n):
    if not OPT['stamps']: return
    k.wait(vm=0, lg=0); stamp(k, n); n += 1; k.wait(lg=0)
    k(f's_lshl_b32 s44, s2, 8\n s_lshl_b32 s45, {WAVE}, 6\n s_add_u32 s44, s44, s45\n s_add_u32 s44, s44, {STAMP}')
    for i in range(16): k(f'v_mov_b32 v{8+i}, s{76+2*i}' if i < n else f'v_mov_b32 v{8+i}, 0')
    k('v_mov_b32 v24, 0\n s_mov_b64 exec, 1')
    for q in range(4): k(f'buffer_store_dwordx4 {V(8+4*q,4)}, v24, {WSR}, s44 offen offset:{16*q}')

def wsrd(k, base, end):
    k(f's_mov_b32 s{base}, s24\n s_mov_b32 s{base+1}, s25\n s_mov_b32 s{base+2}, {end}\n s_mov_b32 s{base+3}, 0x20000')

def tbl_addr(k, vp, soff):
    k(f"""s_add_u32 s46, s42, {soff}
    s_addc_u32 s47, s43, 0
    v_mov_b32 v{vp+1}, s47
    v_add_co_u32 v{vp}, vcc, s46, v4
    v_addc_co_u32 v{vp+1}, vcc, 0, v{vp+1}, vcc""")

def gb_loads(k):
    for q in range(8): k(f'global_load_dwordx4 {A(GB+4*q,4)}, v[8:9], off offset:{1024*q-4096}')

def prologue(k):
    k.raw(f'.globl {KN}\n.p2align 8\n.type {KN},@function\n{KN}:')
    stamp(k, 0)
    k(f"""s_load_dwordx16 s[4:19], s[0:1], 0
    s_load_dwordx4 s[20:23], s[0:1], 64
    s_getpc_b64 s[42:43]""")
    k.raw('L_pc:')
    k(f"""s_cmp_ge_u32 s2, 256
    s_cbranch_scc1 L_end
    v_lshrrev_b32 v5, 6, v0
    v_and_b32 v1, 63, v0
    v_readfirstlane_b32 {WAVE}, v5
    s_lshr_b32 s44, s2, 3
    v_lshl_add_u32 v5, v5, 5, s44
    v_lshlrev_b32 v6, 6, v1
    v_lshl_add_u32 v5, v5, 12, v6      ; 4 KiB slice per wave, one dword per 64 B""")
    k.raw('    v_min_u32 v5, L_image_end-L_pc-4, v5'); k.pos += 1
    k(f"""v_mov_b32 v7, s43
    v_add_co_u32 v6, vcc, s42, v5
    v_addc_co_u32 v7, vcc, 0, v7, vcc
    global_load_dword v255, v[6:7], off
    v_bfe_u32 v2, v0, 4, 2
    v_and_b32 v3, 15, v0
    v_lshlrev_b32 v4, 4, v1""")
    k.raw('    s_add_u32 s42, s42, tables-L_pc\n    s_addc_u32 s43, s43, 0'); k.pos += 2
    k(f's_cmp_ge_u32 s2, {NC0}\n s_cbranch_scc1 L_p1c')
    global st_c
    st_c = k.state()
    tbl_addr(k, 6, TBL['FA'])
    for c in range(2): k(f'global_load_dwordx4 {A(FA+4*c,4)}, v[6:7], off offset:{1024*c}')
    k(f"""s_cmp_lt_u32 s2, {NZ}
    s_cselect_b32 s45, {TBL["GBZ"]+4096}, {TBL["GBW"]+4096}
    s_lshl_b32 s44, {WAVE}, 13
    s_add_u32 s44, s44, s45""".replace(str(TBL["GBW"]+4096), 's47').replace('s_cmp_lt', f's_mov_b32 s47, {TBL["GBW"]+4096}\n s_cmp_lt'))
    tbl_addr(k, 8, 's44')
    if not OPT.get('gblate'): gb_loads(k)

def go_load(k, b):
    k(f'v_mov_b32 v{b}, 0\n global_load_dword v{b+4}, v{b}, s[20:21]{LD}')
def arrive_issue(k, b, cnt, go):
    k(f'v_mov_b32 v{b}, 0\n v_mov_b32 v{b+1}, 1\n s_mov_b64 exec, 1')
    if go:
        uid[0] += 1; u = uid[0]
        k('s_mov_b32 s46, 0')
        k.label(f'L_go{u}')
        k(f"""s_waitcnt vmcnt(0)
        v_cmp_ne_u32 vcc, 0, v{b+4}
        s_add_u32 s46, s46, 1
        s_cbranch_vccnz L_gone{u}
        global_load_dword v{b+4}, v{b}, s[20:21]{LD}
        s_cmp_lt_u32 s46, {SPIN}
        s_cbranch_scc1 L_go{u}""")
        k.label(f'L_gone{u}')
    k(f'buffer_atomic_add v{b+1}, v{b}, {WSR}, {cnt} offen sc0 sc1')
def arrive_check(k, b, flg, last, val):
    uid[0] += 1; u = uid[0]
    k(f"""s_mov_b64 exec, 0xff
    v_lshlrev_b32 v{b+2}, 11, v1
    v_mov_b32 v{b}, {val}
    v_readfirstlane_b32 s47, v{b+1}
    s_cmp_lg_u32 s47, {last}
    s_cbranch_scc1 L_nl{u}""")
    st = k.state()
    k(f'buffer_store_dword v{b}, v{b+2}, {WSR}, {flg} offen{ST}')
    k.restore(st)
    k.label(f'L_nl{u}')
def poll(k, b, val):
    uid[0] += 1; u = uid[0]
    k(f"""s_mov_b64 exec, 0xff
    v_lshlrev_b32 v{b+3}, 8, v1
    s_and_b32 s44, s2, 7
    s_lshl_b32 s44, s44, 11
    s_add_u32 s44, s44, {FLG}
    s_mov_b32 s46, 0""")
    k.label(f'L_bp{u}')
    k(f"""buffer_load_dword v{b+1}, v{b+3}, {WSR}, s44 offen{LD}
    s_add_u32 s46, s46, 1
    s_waitcnt vmcnt(0)
    v_cmp_gt_u32 vcc, {val}, v{b+1}
    s_cmp_gt_u32 s46, {SPIN}
    s_cbranch_scc1 L_bd{u}
    s_cbranch_vccnz L_bp{u}""")
    k.label(f'L_bd{u}')
    k('s_mov_b64 exec, -1')
def only_wave(k, w, fn):
    uid[0] += 1; u = uid[0]
    k(f's_cmp_lg_u32 {WAVE}, {w}\n s_cbranch_scc1 L_ow{u}')
    st = k.state(); fn(); k('s_mov_b64 exec, -1'); k.restore(st); k.label(f'L_ow{u}')

def p2_tables(k, vp=26):
    k(f's_lshl_b32 s44, {WAVE}, 13\n s_add_u32 s44, s44, {TBL["P2W"]+4096}')
    tbl_addr(k, vp, 's44'); tbl_addr(k, vp+2, TBL['P2S']+4096)
    o = [f'global_load_dwordx4 {V(B1+6*u+2,4)}, {V(vp,2)}, off offset:{1024*u-4096}' for u in range(4)]
    o += [f'global_load_dwordx4 {V(A2+6*u+2,4)}, {V(vp+2,2)}, off offset:{1024*u-4096}' for u in range(4)]
    o += [f'global_load_dwordx4 {V(B3+6*u+2,4)}, {V(vp+2,2)}, off offset:{1024*u}' for u in range(4)]
    o += [f'global_load_dwordx4 {V(A4+6*u+2,4)}, {V(vp,2)}, off offset:{1024*u}' for u in range(4)]
    return o
def flush(k):
    sp, k.sprinkle = k.sprinkle, []
    for t in sp: k(t)

def p1_z(k):
    X, DA, TR, SS, WL, WO = 32, 48, 80, 96, 104, 120
    k(f"""s_and_b32 s44, s2, 7
    s_lshr_b32 s45, s2, 4
    s_lshl_b32 s45, s45, 3
    s_add_u32 s44, s44, s45
    s_lshl_b32 s44, s44, 1
    s_bfe_u32 s45, s2, 0x10003
    s_add_u32 s60, s44, s45            ; (t,g,beta,bq)
    s_lshr_b32 s61, s60, 3
    s_lshl_b32 s61, s61, 7
    s_and_b32 s44, s60, 7
    s_lshl_b32 s44, s44, 2
    s_add_u32 s44, s44, s61
    s_add_u32 s44, s44, {WAVE}
    s_lshl_b32 s56, s44, 10
    s_add_u32 s57, s56, 0x8000
    s_add_u32 s58, s56, 0x10000
    s_add_u32 s59, s56, 0x18000
    s_mov_b32 s38, {S*D*2}
    s_mov_b32 s39, 0x20000
    s_bfe_u32 s48, s2, 0x20003
    s_and_b32 s44, s2, 7
    s_lshl_b32 s44, s44, 2
    s_add_u32 s48, s48, s44
    s_and_b32 s44, s2, 0x60
    s_add_u32 s48, s48, s44
    s_add_u32 s48, s48, 128""")
    wt_rows(k, 's48', 49)
    k(f's_mul_i32 s44, {WAVE}, {64*514}\n s_add_u32 s49, s49, s44')
    k.wait(lg=0)
    stamp(k, 1, 'z')
    k('s_mov_b32 s36, s4\n s_and_b32 s37, s5, 0xffff')
    for i in range(4): k(f'buffer_load_dwordx4 {V(X+4*i,4)}, v4, {RC}, s{56+i} offen')
    k(WSRDS)
    if not OPT.get('nowpf'):
        k(f"""v_lshrrev_b32 v15, 1, v3
        v_mul_u32_u24 v15, 514, v15
        v_and_b32 v16, 1, v1
        v_mul_u32_u24 v16, 126, v16
        v_add_u32 v15, v15, v16
        s_mov_b64 exec, 0xffff
        buffer_load_ushort v{WO}, v15, {RA}, s49 offen
        buffer_load_ushort v{WO+1}, v15, {RB}, s49 offen
        s_mov_b64 exec, -1""")
    if OPT.get('gpf') == 2: gb_loads(k)
    if OPT.get('gpf'):
        k(f"""s_bitcmp1_b32 s2, 0
        s_cselect_b32 s36, s14, s12
        s_cselect_b32 s37, s15, s13
        s_and_b32 s37, s37, 0xffff
        s_mov_b32 s38, {D*F*2}
        s_lshr_b32 s44, s2, 3
        s_lshl_b32 s44, s44, 2
        s_add_u32 s44, s44, {WAVE}
        s_mul_i32 s44, s44, {8*2752}
        s_add_u32 s45, s44, {4*2752}
        s_bfe_u32 s46, s2, 0x20001
        v_lshrrev_b32 v15, 1, v3
        v_lshlrev_b32 v15, 9, v15
        v_and_b32 v16, 1, v3
        v_lshl_add_u32 v15, v16, 6, v15
        v_cmp_gt_u32 vcc, 10, v3
        v_cndmask_b32 v16, 6, 7, vcc
        v_lshlrev_b32 v16, v16, s46
        v_add_u32 v15, v15, v16
        v_mul_u32_u24 v16, 2752, v2
        v_add_u32 v15, v15, v16
        s_mov_b32 exec_lo, 0x07ff07ff
        s_mov_b32 exec_hi, 0x07ff07ff
        buffer_load_dword v{WO+2}, v15, {RC}, s44 offen
        buffer_load_dword v{WO+3}, v15, {RC}, s45 offen
        s_mov_b64 exec, -1""")
    if OPT.get('gpf') != 2: gb_loads(k)
    k('v_mov_b32 v15, v11')
    wl_ = [f'buffer_load_dwordx4 {V(WL,4)}, v15, {RA}, s49 offen', f'buffer_load_dwordx4 {V(WL+4,4)}, v15, {RB}, s49 offen']
    wt_dest(k, 's48', 50)
    k(f"""s_lshl_b32 s44, {WAVE}, 2
    s_add_u32 s44, s44, 0xa000
    v_add_u32 v12, s44, v12
    s_lshl_b32 s44, {WAVE}, 5
    v_xor_b32 v13, s44, v4
    s_lshl_b32 s44, {WAVE}, 11
    s_add_u32 s44, s44, 0xa000
    v_add_u32 v13, s44, v13
    v_xor_b32 v14, 16, v13
    s_mul_i32 s44, {WAVE}, {16*WT_STRIDE}
    s_add_u32 s50, s50, s44
    s_add_u32 s51, s50, {8*WT_STRIDE}""")
    srd(k, 24, 22, WS_USED)
    k(f"""s_lshl_b32 s44, {WAVE}, 12
    v_add_u32 v30, s44, v4
    v_lshrrev_b32 v31, 1, v4
    v_add_u32 v31, s44, v31
    v_mul_u32_u24 v6, {TPAD}, v3
    v_lshl_add_u32 v6, v2, 8, v6
    s_lshl_b32 s44, {WAVE}, 6
    s_add_u32 s44, s44, 16384
    v_add_u32 v6, s44, v6
    s_mul_i32 s44, {WAVE}, {4*TPAD}
    s_add_u32 s44, s44, 16384
    v_add_u32 v7, s44, v4
    v_cmp_eq_u32 vcc, 0, v3
    v_cndmask_b32 v8, 0, 1.0, vcc
    s_mov_b32 s62, 0x3f803f80
    v_mul_u32_u24 v9, {ZT_STRIDE}, v3
    v_lshl_add_u32 v9, v2, 4, v9
    s_lshr_b32 s44, s60, 5
    s_lshl_b32 s44, s44, 11
    s_bfe_u32 s45, s60, 0x10002
    s_lshl_b32 s46, s45, 10
    s_add_u32 s44, s44, s46
    s_bfe_u32 s46, s60, 0x20003
    s_lshl_b32 s46, s46, 8
    s_add_u32 s44, s44, s46
    s_and_b32 s46, s60, 3
    s_lshl_b32 s47, s46, 6
    s_add_u32 s44, s44, s47
    s_lshl_b32 s63, s60, 7
    s_add_u32 s63, s63, {SM}
    s_mul_i32 s47, {WAVE}, {64*ZT_STRIDE}
    s_add_u32 s44, s44, s47
    s_add_u32 s64, s44, {ZT}
    s_add_u32 s65, s64, {16*ZT_STRIDE}
    s_add_u32 s66, s64, {32*ZT_STRIDE}
    s_add_u32 s67, s64, {48*ZT_STRIDE}
    s_lshl_b32 s44, {WAVE}, 4
    s_add_u32 s44, s44, 0x9000
    v_lshl_add_u32 v10, v2, 2, s44""")
    tl = p2_tables(k)
    wp_ = OPT.get('wpos', 16); tl = tl[:wp_] + wl_ + tl[wp_:]
    if True:
        stamp(k, 2, 'z')
        for i in range(4):
            k(f'ds_write_b128 v30, {V(X+4*i,4)} offset:{1024*i}')
            if i == 0: stamp(k, 1)
            for r in range(2): k(f'ds_read_b64_tr_b16 {V(TR+4*i+2*r,2)}, v31 offset:{1024*i+512*r}')
            for j in range(4):
                k(f'v_dot2_f32_bf16 v{SS+i}, v{X+4*i+j}, s62, {"0" if j==0 else V(SS+i)}')
                k(f'v_dot2_f32_bf16 v{SS+4+i}, v{X+4*i+j}, v{X+4*i+j}, {"0" if j==0 else V(SS+4+i)}')
        stamp(k, 3, 'z')
        k.sprinkle = tl; k.every = OPT.get('tev', 28); k.since = 100
        stamp(k, 4, 'z')
        mf = [f'v_mfma_f32_16x16x32_bf16 {V(DA+8*i+4*c,4)}, {V(TR+4*i,4)}, {A(FA+4*c,4)}, 0' for i in range(4) for c in range(2)]
        k(mf.pop(0)); k(mf.pop(0))
        for b in (SS, SS+4):
            k(f'v_permlane32_swap_b32 v{b}, v{b+2}\n v_permlane32_swap_b32 v{b+1}, v{b+3}')
        for b in (SS, SS+4):
            k(f'v_add_f32 v{b}, v{b}, v{b+2}\n v_add_f32 v{b+1}, v{b+1}, v{b+3}')
        k(mf.pop(0))
        for b in (SS, SS+4): k(f'v_permlane16_swap_b32 v{b}, v{b+1}')
        for b in (SS, SS+4): k(f'v_add_f32 v{b}, v{b}, v{b+1}')
        for sh in (8, 4, 2, 1):
            k(mf.pop(0))
            for b in (SS, SS+4): k(f'v_add_f32_dpp v{b}, v{b}, v{b} row_ror:{sh} row_mask:0xf bank_mask:0xf')
        k(mf.pop(0))
        k(f"""v_mul_f32 v{SS}, {fbits(1/512)}, v{SS}
        v_mul_f32 v{SS+4}, {fbits(1/512)}, v{SS+4}
        v_fma_f32 v{SS+4}, -v{SS}, v{SS}, v{SS+4}
        v_max_f32 v{SS+4}, 0, v{SS+4}
        v_add_f32 v{SS+4}, {fbits(1e-5)}, v{SS+4}
        v_rsq_f32 v{SS+1}, v{SS+4}
        v_mul_f32 v{SS+2}, {fbits(-8.0)}, v{SS}
        v_mul_f32 v{SS+2}, v{SS+2}, v{SS+1}
        v_mul_f32 v{SS+3}, {fbits(0.25)}, v{SS+1}""")
        for i in range(4):
            k(f'v_readlane_b32 s{68+2*i}, v{SS+3}, {16*i}\n v_readlane_b32 s{69+2*i}, v{SS+2}, {16*i}')
        for i in range(4):
            d = DA + 8*i
            k(f'v_mul_f32 v{TR}, s{69+2*i}, v8')
            for h in range(2):
                k(f'v_pk_mul_f32 {V(d+4+2*h,2)}, {V(d+4+2*h,2)}, {Sg(68+2*i,2)} op_sel_hi:[1,0]')
            for h in range(2):
                k(f'v_pk_fma_f32 {V(d+2*h,2)}, {V(d+2*h,2)}, {Sg(68+2*i,2)}, {V(TR,2)} op_sel_hi:[1,0,0]')
            for h in (2, 3, 0, 1): k(f'v_cvt_pk_f16_f32 v{X+4*i+h}, v{d+2*h}, v{d+2*h+1}')
            k(f'ds_write_b128 v6, {V(X+4*i,4)} offset:{16*i}')
        k(f"""v_mul_f32 v{SS+4}, v{SS+4}, v{SS+1}
        ds_write2_b32 v10, v{SS+4}, v{SS} offset0:0 offset1:16""")
        print('tables left', len(k.sprinkle)); flush(k)
        def wt_a():
            for i in range(8):
                k(f'v_perm_b32 v{WO+i}, v{WL+4+(i>>1)}, v{WL+(i>>1)}, s{53+(i&1)}')
                k(f'ds_write_b32 v12, v{WO+i} offset:{128*i}')
        if OPT.get('wtearly'): wt_a()
        k.wait(lg=0); k('s_barrier')
        if OPT.get('zst'): stamp(k, 1)
        stamp(k, 5, 'z')
        for q in range(4): k(f'ds_read_b128 {V(TR+4*q,4)}, v7 offset:{TPAD*q}')
        k(f'ds_read_b128 {V(SS,4)}, v4 offset:0x9000')
        wt_b = lambda: [k(f'ds_read_b128 {V(WL+4*n,4)}, v{13+n} offset:{1024*n}') for n in range(2)]
        wt_c = lambda: [k(f'buffer_store_dwordx4 {V(WL+4*n,4)}, v11, {WSR}, s{50+n} offen{ST}') for n in range(2)]
        if OPT.get('wtearly'): wt_b()
        for q in range(4):
            for o in range(2): k(f'v_mfma_f32_16x16x32_f16 {V(DA+8*q+4*o,4)}, {V(TR+4*q,4)}, {A(GB+8*q+4*o,4)}, 0')
        k.wait(lg=0)
        if OPT.get('wtearly'): wt_c()
        only_wave(k, 3, lambda: k(f's_mov_b64 exec, 0xff\n buffer_store_dwordx4 {V(SS,4)}, v4, {WSR}, s63 offen{ST}'))
        for q in range(4):
            for h in range(4): k(f'v_cvt_pk_f16_f32 v{X+4*q+h}, v{DA+8*q+2*h}, v{DA+8*q+2*h+1}')
            k(f'buffer_store_dwordx4 {V(X+4*q,4)}, v9, {WSR}, s{64+q} offen{ST}')
        stamp(k, 6, 'z')
        if not OPT.get('wtearly'):
            wt_a(); k.wait(lg=0); k('s_barrier'); wt_b(); wt_c()
        stamp(k, 2)

def p1_w(k):
    OP, DA = 32, 64
    TBASE = 32768
    k(f"""s_and_b32 s61, s2, 1               ; mu
    s_bfe_u32 s60, s2, 0x60001
    s_and_b32 s44, s60, 3
    s_lshl_b32 s44, s44, 1
    s_bfe_u32 s45, s60, 0x10002
    s_add_u32 s44, s44, s45
    s_andn2_b32 s45, s60, 7
    s_add_u32 s44, s44, s45
    s_cmp_lt_u32 s60, 40
    s_cselect_b32 s60, s44, s60        ; phi""" + ("""
    s_bfe_u32 s44, s2, 0x20001
    s_mul_i32 s44, s44, 11
    s_bfe_u32 s45, s2, 0x40003
    s_add_u32 s60, s44, s45""" if OPT.get('wcont') else '') + f"""
    s_mul_i32 s44, {WAVE}, {4*2752}
    s_lshl_b32 s45, s60, 6
    s_add_u32 s62, s44, s45
    v_lshrrev_b32 v10, 2, v1
    v_mul_u32_u24 v30, {16*2752}, v10
    v_and_b32 v11, 3, v1
    v_and_b32 v12, 1, v2
    v_lshlrev_b32 v12, 1, v12
    v_xor_b32 v13, v11, v12
    v_lshl_add_u32 v30, v13, 4, v30    ; DMA source
    s_lshl_b32 s63, {WAVE}, 13
    s_mov_b32 s38, {D*F*2}
    s_mov_b32 s39, 0x20000
    """)
    if OPT.get('wgbfirst'): gb_loads(k)
    k.wait(lg=0)
    stamp(k, 1, 'z')
    k(f"""s_cmp_eq_u32 s61, 0
    s_cselect_b32 s36, s12, s14
    s_cselect_b32 s37, s13, s15
    s_and_b32 s37, s37, 0xffff""")
    pos = []
    for n in range(8):
        k(f's_add_u32 m0, s63, {1024*n}\n s_add_u32 s44, s62, {((n>>1) + 256*(n&1))*2752}')
        k(f'buffer_load_dwordx4 v30, {RC}, s44 offen lds'); pos.append(k.nvm)
    if not OPT.get('wgbfirst'): gb_loads(k)
    srd(k, 24, 22, WS_USED)
    k(f"""v_lshlrev_b32 v31, 6, v10
    v_lshl_add_u32 v31, v12, 4, v31
    v_lshl_add_u32 v31, v11, 3, v31
    v_add_u32 v30, s63, v31
    v_xor_b32 v31, 32, v30
    v_mul_u32_u24 v6, {4*TPAD}, v2
    v_lshl_add_u32 v6, v3, 4, v6
    s_lshl_b32 s44, {WAVE}, 8
    s_add_u32 s44, s44, {TBASE}
    v_add_u32 v6, s44, v6              ; T write
    s_mul_i32 s44, {WAVE}, {4*TPAD}
    s_add_u32 s44, s44, {TBASE}
    v_add_u32 v7, s44, v4              ; T read
    s_lshl_b32 s44, s60, 2
    v_lshrrev_b32 v12, 3, v3
    v_and_b32 v13, 7, v3
    v_lshlrev_b32 v13, 4, v13
    v_lshl_add_u32 v13, v2, 8, v13
    s_lshl_b32 s45, {WAVE}, 12
    s_add_u32 s62, s45, {WP}
    v_mov_b32 v19, s61""")
    for pp in range(2):
        k(f"""v_add_u32 v14, s44, v12            ; octet
        v_mul_u32_u24 v15, 373, v14
        v_lshrrev_b32 v15, 12, v15
        v_add_u32 v14, v14, v15            ; q
        v_mul_u32_u24 v15, 171, v14
        v_lshrrev_b32 v15, 9, v15
        v_mul_u32_u24 v15, 3, v15          ; q - q%3
        v_sub_u32 v16, v14, v15            ; n
        v_cmp_eq_u32 vcc, 2, v16
        v_add_u32 v15, s61, v15
        s_add_u32 s44, s44, 2
        v_cndmask_b32 v15, v15, v14, vcc   ; tile
        v_cndmask_b32 v16, v16, v19, vcc
        v_lshl_add_u32 v{8+pp}, v15, 14, v13
        v_lshl_add_u32 v{8+pp}, v16, 7, v{8+pp}""")
    tl = p2_tables(k)
    stamp(k, 2, 'z')
    for dl in range(4):
        k(f's_waitcnt vmcnt({k.nvm - pos[2*dl+1]})')
        if dl == 0: stamp(k, 1)
        for pi in range(2):
            for h in range(2): k(f'ds_read_b64_tr_b16 {V(OP+8*dl+4*pi+2*h,2)}, v{30+pi} offset:{2048*dl+1024*h}')
    stamp(k, 3, 'z')
    k.sprinkle = tl; k.every = OPT.get('tev', 28); k.since = 100
    for dl in range(4):
        for pi in range(2):
            for c in range(2):
                k(f'v_mfma_f32_16x16x32_bf16 {V(DA+32*pi+16*c+4*dl,4)}, {A(FA+4*c,4)}, {V(OP+8*dl+4*pi,4)}, 0')
    for pi in range(2):
        for r in range(4):
            u = OP + 16*pi + 4*r
            for c in range(2):
                for h in range(2):
                    d = DA + 32*pi + 16*c + 8*h + r
                    k(f'v_cvt_pk_bf16_f32 v{u+2*c+h}, v{d}, v{d+4}')
            k(f'ds_write_b128 v6, {V(u,4)} offset:{16*TPAD*pi+TPAD*r}')
    flush(k)
    stamp(k, 4, 'z')
    k.wait(lg=0); k('s_barrier')
    stamp(k, 5, 'z')
    for pi in range(2):
        for q in range(4): k(f'ds_read_b128 {V(OP+16*pi+4*q,4)}, v7 offset:{16*TPAD*pi+TPAD*q}')
    for pi in range(2):
        for q in range(4):
            for o in range(2):
                k(f'v_mfma_f32_16x16x32_bf16 {V(DA+32*pi+8*q+4*o,4)}, {A(GB+8*q+4*o,4)}, {V(OP+16*pi+4*q,4)}, 0')
    for pi in range(2):
        for p in range(2):
            for o in range(2):
                u = OP + 16*pi + 8*p + 4*o
                for hq in range(2):
                    for h in range(2):
                        d = DA + 32*pi + 8*(2*p+hq) + 4*o + 2*h
                        k(f'v_cvt_pk_bf16_f32 v{u+2*hq+h}, v{d}, v{d+1}')
                k(f'buffer_store_dwordx4 {V(u,4)}, v{8+pi}, {WSR}, s62 offen offset:{(2*p+o)*1024}{ST}')
    stamp(k, 2); stamp(k, 6, 'z')

def wt_rows(k, task, dst):
    k(f"""s_bfe_u32 s44, {task}, 0x30002
    s_lshl_b32 s44, s44, 3
    s_lshr_b32 s45, {task}, 5
    s_lshl_b32 s45, s45, 8
    s_add_u32 s44, s44, s45
    s_mul_i32 s{dst}, s44, 514
    s_and_b32 s45, {task}, 3
    s_lshl_b32 s45, s45, 7
    s_add_u32 s{dst}, s{dst}, s45
    s_add_u32 s{dst}, s{dst}, 2
    v_lshrrev_b32 v12, 3, v1
    v_and_b32 v13, 7, v1
    v_mul_u32_u24 v11, 514, v12
    v_lshl_add_u32 v11, v13, 4, v11
    s_mov_b32 s30, {2048*257*2}
    s_mov_b32 s31, 0x20000
    s_mov_b32 s34, {2048*257*2}
    s_mov_b32 s35, 0x20000""")
def wt_dest(k, task, dst):
    k(f"""s_and_b32 s44, {task}, 3
    s_mul_i32 s{dst}, s44, {64*WT_STRIDE}
    s_lshr_b32 s44, {task}, 7
    s_lshl_b32 s44, s44, 12
    s_add_u32 s{dst}, s{dst}, s44
    s_bfe_u32 s44, {task}, 0x20003
    s_lshl_b32 s44, s44, 10
    s_add_u32 s{dst}, s{dst}, s44
    s_bfe_u32 s44, {task}, 0x20005
    s_lshl_b32 s44, s44, 8
    s_add_u32 s{dst}, s{dst}, s44
    s_bfe_u32 s44, {task}, 0x10002
    s_lshl_b32 s44, s44, 7
    s_add_u32 s{dst}, s{dst}, s44
    s_add_u32 s{dst}, s{dst}, {WT}
    s_mov_b32 s53, 0x05040100
    s_mov_b32 s54, 0x07060302
    v_mul_u32_u24 v11, {WT_STRIDE}, v12
    v_lshl_add_u32 v11, v13, 4, v11
    v_xor_b32 v12, v12, v13
    v_lshlrev_b32 v12, 4, v12
    v_lshl_add_u32 v12, v13, 10, v12""")
WSRDS = 's_mov_b32 s28, s6\n s_and_b32 s29, s7, 0xffff\n s_mov_b32 s32, s8\n s_and_b32 s33, s9, 0xffff'
def p1_t(k):
    WL, WO = 32, 64
    k(f's_sub_u32 s48, s2, {NC0}\n s_lshl_b32 s48, s48, 2\n s_add_u32 s48, s48, {WAVE}')
    wt_rows(k, 's48', 49)
    for r in range(1, 4): k(f's_add_u32 s{49+r}, s49, {64*r*514}')
    k.wait(lg=0)
    k(WSRDS)
    for r in range(4):
        k(f'buffer_load_dwordx4 {V(WL+8*r,4)}, v11, {RA}, s{49+r} offen')
        k(f'buffer_load_dwordx4 {V(WL+8*r+4,4)}, v11, {RB}, s{49+r} offen')
    srd(k, 24, 22, WS_USED)
    wt_dest(k, 's48', 56)
    k(f's_lshl_b32 s44, {WAVE}, 13\n v_add_u32 v12, s44, v12\n v_add_u32 v14, s44, v4')
    for n in range(1, 8): k(f's_add_u32 s{56+n}, s56, {8*n*WT_STRIDE}\n v_xor_b32 v{14+n}, {16*n}, v14')
    tl = p2_tables(k)
    for i in range(8):
        o = WO + 4*i
        for r in range(4): k(f'v_perm_b32 v{o+r}, v{WL+8*r+4+(i>>1)}, v{WL+8*r+(i>>1)}, s{53+(i&1)}')
        k(f'ds_write_b128 v12, {V(o,4)} offset:{128*i}')
        for t in tl[2*i:2*i+2]: k(t)
    stamp(k, 1)
    for n in range(8): k(f'ds_read_b128 {V(WL+4*n,4)}, v{14+n} offset:{1024*n}')
    for n in range(8): k(f'buffer_store_dwordx4 {V(WL+4*n,4)}, v11, {WSR}, s{56+n} offen{ST}')
    stamp(k, 2)

def p1_i(k):
    k.wait(lg=0)
    srd(k, 24, 22, WS_USED)
    k(f"""s_lshl_b32 s44, s2, 2
    s_add_u32 s44, s44, {WAVE}
    s_cmp_lg_u32 s44, {255*4}
    s_cbranch_scc1 L_noinit
    v_lshlrev_b32 v30, 8, v1
    v_lshlrev_b32 v31, 8, v3
    v_mov_b32 v32, 0
    s_mov_b32 s44, {FLG}
    s_mov_b32 s45, {FLG+16384}
    buffer_store_dword v32, v30, {WSR}, s44 offen{ST}
    buffer_store_dword v32, v30, {WSR}, s45 offen{ST}
    buffer_store_dword v32, v31, {WSR}, 0 offen{ST}
    v_mov_b32 v33, 1
    s_waitcnt vmcnt(0)
    s_mov_b64 exec, 1
    global_store_dword v32, v33, s[20:21]{ST}
    s_mov_b64 exec, -1""")
    k.label('L_noinit')
    k(f"""s_sub_u32 s60, s2, {NI0}
    s_lshl_b32 s61, s60, 1
    s_lshr_b32 s44, {WAVE}, 1
    s_add_u32 s61, s61, s44            ; t
    s_and_b32 s62, {WAVE}, 1
    s_lshl_b32 s62, s62, 2             ; p
    s_add_u32 s63, s62, 4
    s_lshl_b32 s44, s61, 5
    s_add_u32 s44, s44, 1
    v_lshl_add_u32 v30, v3, 1, s44     ; 2d+1
    v_and_b32 v31, 1, v2
    v_lshlrev_b32 v31, 7, v31
    v_cmp_lt_u32 s[64:65], 1, v2
    v_mov_b32 v36, {fbits(1/16)}
    s_mul_i32 s61, s61, {12*16384}
    s_add_u32 s61, s61, {WP+11*16384}""")
    for t in p2_tables(k): k(t)
    stamp(k, 1)
    k.fence(); k.label('L_inv')
    k(f"""s_lshl_b32 s44, s62, 1
    s_sub_u32 s45, 32, s44
    s_cmp_eq_u32 s44, 0
    s_cselect_b32 s45, 16, s45
    v_mov_b32 v33, s44
    v_mov_b32 v34, s45
    v_cndmask_b32 v33, v33, v34, s[64:65]
    v_add_u32 v33, v33, v31
    s_add_u32 s44, s44, 1
    s_sub_u32 s45, 32, s44
    v_mov_b32 v34, s44
    v_mov_b32 v35, s45
    v_cndmask_b32 v34, v34, v35, s[64:65]
    v_add_u32 v34, v34, v31
    v_cmp_eq_u32 vcc, 0, v33
    v_mov_b32 v35, 0x100
    v_mov_b32 v37, {fbits(1/math.sqrt(512))}
    v_cndmask_b32 v35, v33, v35, vcc
    v_cndmask_b32 v37, v36, v37, vcc
    s_lshl_b32 s45, s62, 11
    s_add_u32 s66, s61, s45""")
    for e in range(8):
        src = 'v35' if e == 0 else None
        if e: k(f'v_add_u32 v{40+e}, {32*(e&3)}, v{33+(e>>2)}')
        k(f'v_mul_u32_u24 v{40+e}, {src or V(40+e)}, v30')
        k(f'v_and_b32 v{40+e}, 0x3ff, v{40+e}')
        k(f'v_cvt_f32_u32 v{40+e}, v{40+e}')
        k(f'v_mul_f32 v{40+e}, {fbits(1/1024)}, v{40+e}')
    for e in range(8):
        k(f'v_cos_f32 v{48+e}, v{40+e}\n v_sin_f32 v{56+e}, v{40+e}')
    for e in range(8):
        sc = 'v37' if e == 0 else 'v36'
        k(f'v_mul_f32 v{48+e}, {sc}, v{48+e}\n v_mul_f32 v{56+e}, {sc}, -v{56+e}')
    for part in range(2):
        for h in range(4): k(f'v_cvt_pk_bf16_f32 v{64+4*part+h}, v{48+8*part+2*h}, v{48+8*part+2*h+1}')
        k(f'buffer_store_dwordx4 {V(64+4*part,4)}, v4, {WSR}, s66 offen offset:{1024*part}{ST}')
    k('s_add_u32 s62, s62, 1\n s_cmp_lt_u32 s62, s63\n s_cbranch_scc1 L_inv')
    stamp(k, 2)

WDL = 40
def wd_issue(k):
    srd(k, 36, 16, F*D*2)
    k(f"""s_lshl_b32 s44, {WAVE}, 7
    s_add_u32 s44, s44, s2
    s_sub_u32 s73, s44, 128
    s_cmp_lt_u32 s2, {NZ}
    s_cselect_b32 s73, s73, 352
    s_min_u32 s73, s73, 352
    s_lshr_b32 s44, s73, 1
    s_lshl_b32 s44, s44, 13
    s_and_b32 s45, s73, 1
    s_lshl_b32 s45, s45, 9
    s_add_u32 s44, s44, s45
    s_add_u32 s45, s44, 4096
    v_lshlrev_b32 v20, 3, v1""")
    for e in range(8): k(f'buffer_load_dwordx2 {V(WDL+2*e,2)}, v20, {RC}, s{44+(e>>2)} offen offset:{1024*(e&3)}')
def wd_finish(k, inp2=False):
    if not inp2:
        k(f's_cmp_ge_u32 s73, 352\n s_cbranch_scc1 L_nowd')
        st = k.state()
    k(f"""s_lshr_b32 s44, s73, 4
    s_bfe_u32 s45, s73, 0x20002
    s_mul_i32 s45, s45, 22
    s_add_u32 s44, s44, s45
    s_and_b32 s45, s73, 1
    s_mul_i32 s45, s45, {4*88}
    s_add_u32 s44, s44, s45
    s_lshl_b32 s44, s44, 11
    s_bfe_u32 s45, s73, 0x10001
    s_lshl_b32 s45, s45, 9
    s_add_u32 s44, s44, s45
    s_add_u32 s44, s44, {WD}
    s_cmp_lt_u32 s73, 352
    s_cselect_b32 s44, s44, {WS_USED}
    s_mov_b32 s46, 0x05040100
    s_mov_b32 s47, 0x07060302
    v_mul_u32_u24 v30, {88*2048}, v2
    v_bfe_u32 v31, v1, 3, 1
    v_lshl_add_u32 v30, v31, 10, v30
    v_and_b32 v31, 7, v1
    v_lshl_add_u32 v30, v31, 4, v30""")
    for pi in range(4):
        o = WDL + 16 + 4*(pi & 1)
        for h in range(4): k(f'v_perm_b32 v{o+h}, v{WDL+4*h+2+(pi>>1)}, v{WDL+4*h+(pi>>1)}, s{46+(pi&1)}')
        k(f'buffer_store_dwordx4 {V(o,4)}, v30, {WSR}, s44 offen offset:{128*pi}{ST}')
    if not inp2:
        k.fence()
        k.restore(st); k.label('L_nowd')

STATL = 131072
def p4_ids(k):
    k(f"""s_and_b32 s44, s2, 7
    s_lshl_b32 s44, s44, 2
    s_bfe_u32 s46, s2, 0x20003
    s_add_u32 s44, s44, s46
    s_lshr_b32 s45, s2, 5""")

def setup(k):
    if OPT.get('x216'):
        k(f"""s_and_b32 s44, s2, 7
        s_lshl_b32 s44, s44, 1
        s_bfe_u32 s45, s2, 0x10003
        s_add_u32 s48, s44, s45
        s_lshr_b32 s49, s2, 4
        s_lshl_b32 s45, s45, 2
        s_mov_b32 s46, s49""")
    elif OPT.get('x48'):
        k(f"""s_and_b32 s44, s2, 3
        s_lshl_b32 s44, s44, 2
        s_bfe_u32 s45, s2, 0x20003
        s_add_u32 s48, s44, s45
        s_and_b32 s44, s2, 4
        s_lshl_b32 s44, s44, 1
        s_lshr_b32 s46, s2, 5
        s_add_u32 s49, s44, s46
        s_lshl_b32 s45, s45, 1""")
    else:
        k(f"""s_and_b32 s44, s2, 1
        s_lshl_b32 s44, s44, 3
        s_bfe_u32 s45, s2, 0x30003
        s_add_u32 s48, s44, s45
        s_bfe_u32 s44, s2, 0x20001
        s_lshl_b32 s44, s44, 2
        s_lshr_b32 s46, s2, 6
        s_add_u32 s49, s44, s46
        s_lshl_b32 s46, s46, 1""")
    k(f"""s_mov_b32 s53, 0
    s_lshl_b32 s46, s48, 11
    s_lshl_b32 s47, s49, 7
    s_add_u32 s41, s46, s47
    s_add_u32 s41, s41, {RBF}
    v_mov_b32 v250, 0""")
    only_wave(k, 0, lambda: k(f'v_lshlrev_b32 v252, 15, v1\n s_mov_b64 exec, 3\n buffer_store_dword v250, v252, {WSR}, s41 offen{ST}\n global_load_dword v254, v250, s[20:21]{LD}'))
    stamp(k, 7, 'z')
    k(f"""v_and_b32 v23, 7, v1
    v_lshlrev_b32 v23, 8, v23
    s_and_b32 s74, s2, 7
    s_lshl_b32 s74, s74, 8
    s_add_u32 s75, s74, {FLG}
    s_sub_u32 s44, s2, {NZ}
    s_cmp_lt_u32 s44, {NC0-NZ}
    s_cselect_b32 s46, 1, 0
    s_cmp_ge_u32 s2, {NI0}
    s_cselect_b32 s46, 1, s46
    s_lshl_b32 s44, s46, 11
    s_lshl_b32 s45, s46, 14
    s_lshl_b32 s46, s46, 3
    s_sub_u32 s70, 19, s46
    s_add_u32 s71, s74, s44
    s_add_u32 s72, s75, s45
    s_lshl_b32 s44, s74, 3
    s_add_u32 s44, s44, {FLG+16384}
    v_add_u32 v23, s44, v23
    v_mov_b32 v251, 1
    s_mov_b32 s63, 0x80008000""")
    wd_issue(k)
    if OPT.get('searly'): setup_late(k)

def setup_late(k):
    k(f"""s_lshl_b32 s44, {WAVE}, 4
    v_add_u32 v240, s44, v3
    v_cvt_f32_u32 v240, v240
    v_mul_f32 v240, {fbits(1/2048)}, v240
    v_lshlrev_b32 v241, 2, v2
    v_add_u32 v242, s44, v241
    v_cvt_f32_u32 v241, v241
    v_cvt_f32_u32 v242, v242
    v_cvt_f32_u32 v243, v3
    v_mul_f32 v243, {fbits(1/2048)}, v243""")
    for be in range(2):
        for r in range(4):
            t = TW1 + 8*be + r
            k(f'v_add_f32 v{t}, {fbits(16*be+r)}, v241\n v_mul_f32 v{t}, v{t}, v240')
            k(f'v_sin_f32 v{t+4}, v{t}\n v_cos_f32 v{t}, v{t}')
    for be in range(2):
        if be: k(f'v_add_f32 v243, {fbits(16/2048)}, v243')
        for r in range(4):
            t = TW2 + 8*be + r
            k(f'v_add_f32 v{t}, {fbits(r)}, v242\n v_mul_f32 v{t}, v{t}, v243')
            k(f'v_sin_f32 v{t+4}, v{t}\n v_cos_f32 v{t}, v{t}')
    k(f's_mul_i32 s44, s2, {ZT_STRIDE}\n s_add_u32 s44, s44, {ZT}')
    for u in range(4):
        k(f's_add_u32 s45, {WAVE}, {u}\n s_and_b32 s45, s45, 3\n s_lshl_b32 s45, s45, 11\n s_add_u32 s{55+u}, s44, s45\n v_add_u32 v{16+u}, s45, v4')
    k(f"""s_lshr_b32 s44, s2, 4
    s_sub_u32 s45, 32, s44
    s_cmp_eq_u32 s44, 0
    s_cselect_b32 s45, 16, s45
    s_bitcmp1_b32 s2, 3
    s_cselect_b32 s44, s45, s44
    s_and_b32 s45, s2, 7
    s_lshl_b32 s45, s45, 5
    s_add_u32 s44, s44, s45
    s_sub_u32 s44, s44, 1
    s_and_b32 s44, s44, 255
    s_mul_i32 s44, s44, {WT_STRIDE}
    s_lshl_b32 s45, {WAVE}, 10
    s_add_u32 s44, s44, s45
    s_add_u32 s59, s44, {WT}
    s_add_u32 s60, s59, 4096
    s_lshl_b32 s45, {WAVE}, 12
    s_add_u32 s61, s45, {SM}
    v_lshrrev_b32 v21, 2, v3
    v_lshlrev_b32 v21, 7, v21
    v_lshl_add_u32 v21, v2, 10, v21
    v_and_b32 v22, 3, v1
    v_lshl_add_u32 v22, v22, 4, v21
    s_mov_b32 s63, 0x80008000""")

def setup2(k):
    k(f"""v_lshrrev_b32 v20, 2, v1
    v_lshlrev_b32 v20, 15, v20
    v_and_b32 v24, 3, v1
    v_lshl_add_u32 v20, v24, 4, v20
    s_lshr_b32 s44, s2, 5
    s_lshl_b32 s44, s44, 6
    s_and_b32 s45, s2, 31
    s_add_u32 s44, s44, s45
    s_lshl_b32 s44, s44, 6
    s_lshl_b32 s45, {WAVE}, 19
    s_add_u32 s44, s44, s45
    s_add_u32 s62, s44, {HT}
    s_mul_i32 s44, s49, 11
    s_mul_i32 s45, {WAVE}, 3
    s_add_u32 s50, s44, s45
    s_add_u32 s44, s50, s49
    s_lshl_b32 s44, s44, 14
    s_add_u32 s44, s44, {WP}
    v_add_u32 v248, s44, v4
    v_add_u32 v249, 0x4000, v248
    v_add_u32 v255, 0x8000, v248
    s_and_b32 s46, {WAVE}, 1
    s_lshr_b32 s47, {WAVE}, 1
    s_lshl_b32 s45, s46, 15
    s_lshl_b32 s54, s47, 12
    s_add_u32 m0, s54, s45
    s_lshl_b32 s44, s48, 17
    s_add_u32 s44, s44, {HT}
    v_and_b32 v6, 1, v2
    v_lshlrev_b32 v6, 5, v6
    v_xor_b32 v5, v6, v4
    v_add_u32 v5, s44, v5
    v_lshrrev_b32 v7, 2, v1
    v_lshl_add_u32 v6, v7, 6, v6
    v_lshl_add_u32 v6, v24, 3, v6
    s_lshl_b32 s44, s47, 5
    s_add_u32 s44, s44, s45
    v_xor_b32 v6, s44, v6
    v_xor_b32 v7, 32, v6
    v_lshrrev_b32 v9, 2, v3
    v_cmp_eq_u32 vcc, v9, v2
    s_lshl_b32 s47, s47, 8
    s_lshl_b32 s44, s46, 9
    s_add_u32 s44, s44, s47
    s_add_u32 s44, s44, {STATL}
    v_lshl_add_u32 v10, v3, 4, s44
    v_xor_b32 v8, 0x100, v10
    v_add_u32 v9, {STATL+2048}, v4
    v_cndmask_b32 v9, v9, v10, vcc
    v_lshrrev_b32 v24, 1, v2
    v_lshlrev_b32 v11, 8, v24
    v_xor_b32 v11, v11, v10
    s_mov_b32 s64, 0x22222222
    s_mov_b32 s65, s64
    s_mov_b32 s66, 0x44444444
    s_mov_b32 s67, s66
    s_mov_b32 s68, 0x88888888
    s_mov_b32 s69, s68
    v_add_u32 v25, s50, v24
    v_lshrrev_b32 v12, 1, v25
    v_lshlrev_b32 v12, 16, v12
    v_and_b32 v25, 1, v25
    v_lshl_add_u32 v12, v25, 9, v12
    v_and_b32 v25, 31, v1
    v_lshl_add_u32 v12, v25, 4, v12
    v_xor_b32 v12, s47, v12
    s_add_u32 s44, s50, 2
    s_lshr_b32 s45, s44, 1
    s_lshl_b32 s45, s45, 16
    s_and_b32 s44, s44, 1
    s_lshl_b32 s44, s44, 9
    s_add_u32 s44, s44, s45
    v_lshl_add_u32 v13, v24, 8, s44
    v_lshl_add_u32 v13, v3, 4, v13
    v_and_b32 v25, 1, v2
    v_xor_b32 v25, 1, v25
    v_lshlrev_b32 v25, 10, v25
    v_xor_b32 v13, s47, v13
    s_lshl_b32 s44, s46, 1
    s_sub_u32 s44, 1, s44
    v_mul_i32_i24 v25, s44, v25
    v_sub_u32 v13, v13, v25""")
    wsrd(k, 32, HF+86*65536)
    if OPT.get('wtouch'):
        k(f"""s_and_b32 s44, s48, 7
        s_lshl_b32 s44, s44, 11
        v_sub_u32 v14, v248, v4
        v_lshl_add_u32 v14, v2, 14, v14
        v_lshl_add_u32 v14, v3, 7, v14
        v_add_u32 v14, s44, v14
        v_cmp_gt_u32 vcc, 3, v2
        v_cndmask_b32 v14, -1, v14, vcc""")

def p2_negs(k, base):
    for u in range(4):
        for h in range(2): k(f'v_xor_b32 v{base+6*u+h}, s63, v{base+6*u+4+h}')

def wd_reg(u, i): return A(192+8*u+4*i, 4) if u < 8 else V(144+8*(u-8)+4*i, 4)
def wd_loads(u):
    o = [f'buffer_load_dwordx4 {wd_reg(u+s,i)}, v15, {WSR}, s51 offen offset:{2048*s+1024*i}{LD}' for s in range(2) for i in range(2)]
    return o + ['s_add_u32 s51, s51, 4096']
def wloads(R=RA):
    return [f'buffer_load_dwordx4 {A(12*ka+4*t,4)}, v{(248, 249, 255)[t]}, {R}, {("0", "s70", "s71", "s72")[ka>>2]} offen offset:{1024*(ka&3)}{LD}' for ka in range(16) for t in range(3)]

def p2(k):
    Z, WW, SG, DD, TT, PK = 32, 64, 80, 88, 104, 240
    for u in range(1 if not OPT.get('zall') else 4):
        for be in range(2): k(f'buffer_load_dwordx4 {V(Z+8*u+4*be,4)}, v4, {WSR}, s{55+u} offen offset:{1024*be}{LD}')
    lds_ = f"""buffer_load_dwordx4 {V(WW+4,4)}, v4, {WSR}, s59 offen{LD}
    buffer_load_dwordx4 {V(WW+12,4)}, v4, {WSR}, s60 offen{LD}
    buffer_load_dwordx4 {V(SG,4)}, v22, {WSR}, s61 offen{LD}
    buffer_load_dwordx4 {V(SG+4,4)}, v22, {WSR}, s61 offen offset:512{LD}""".split('\n')
    lds_.insert(OPT.get('fpos', 2), f'buffer_load_dword v26, v23, {WSR}, 0 offen{LD}')
    if OPT.get('wnow'):
        for t in lds_: k(t)
    else:
        k.sprinkle = [t.strip() for t in lds_]; k.every = 60; k.since = 0
    setup2(k); flush(k)
    if not OPT.get('wdshadow'): wd_finish(k, True)
    k(f"""s_mov_b32 s28, s24
    s_mov_b32 s29, s25
    s_mov_b32 s31, 0x20000
    s_mov_b32 s36, s24
    s_mov_b32 s37, s25
    s_mov_b32 s39, 0x20000
    s_mov_b32 s70, 4096
    s_mov_b32 s71, 8192
    s_mov_b32 s72, 12288""")
    def check1():
        k(f'v_cmp_ne_u32 vcc, 1, v26\n s_cmp_eq_u64 vcc, 0\n s_cselect_b32 s30, {WS_USED}, 0')
        k(f'buffer_load_dword v27, v23, {WSR}, 0 offen{LD}')
        if OPT.get('wtouch'): k(f'buffer_load_dword v25, v14, {RA}, 0 offen{LD}')
        k.sprinkle = wloads(); k.every = OPT.get('every', 64); k.since = 100
    def unpack():
        for t in range(2):
            for r in range(4):
                k(f'v_lshlrev_b32 v{WW+8*t+r}, 16, v{WW+8*t+4+r}\n v_and_b32 v{WW+8*t+4+r}, 0xffff0000, v{WW+8*t+4+r}')
    if not OPT.get('zall'):
        for be in range(2): k(f'ds_write_b128 v16, {V(Z+4*be,4)} offset:{8192+1024*be}')
    for u in range(4):
        for be in range(2):
            for o in range(2):
                d = V(DD+8*be+4*o, 4)
                k(f'v_mfma_f32_16x16x32_f16 {d}, {V(Z+8*u+4*be,4)}, {V(B1+6*u+2-2*o,4)}, {"0" if u==0 else d}')
        if u == 0:
            stamp(k, 5); stamp(k, 2, 'b')
            if not OPT.get('zall'):
                k.wait(lg=0); k('s_barrier')
                for v in range(1, 4):
                    for be in range(2): k(f'ds_read_b128 {V(Z+8*v+4*be,4)}, v{16+v} offset:{8192+1024*be}')
                if OPT.get('c1') == 0: check1()
    if OPT.get('c1') == 1: check1()
    E = Z + 8
    for be in range(2):
        cmul(k, DD+8*be, DD+8*be+4, TW1+8*be, TW1+8*be+4, TT, TT+4, True)
        for h in range(4): k(f'v_cvt_pk_f16_f32 v{PK+4*be+h}, v{TT+2*h}, v{TT+2*h+1}')
        for t in range(2):
            for o in range(2):
                d = V(E+8*t+4*o, 4)
                k(f'v_mfma_f32_16x16x32_f16 {d}, {V(A2+6*(2*t+be)+2-2*o,4)}, {V(PK+4*be,4)}, {"0" if be==0 else d}')
    def check2():
        global n1
        n1 = 48 - len(k.sprinkle); k.sprinkle = []
        k(f'v_cmp_ne_u32 vcc, 1, v27\n s_cmp_eq_u64 vcc, 0\n s_cselect_b32 s38, {WS_USED}, 0')
        if OPT.get('wtouch') == 2: k(f's_sub_u32 s44, {WS_USED}, s30\n s_cselect_b32 s44, 0, 0\n s_cmp_eq_u32 s30, 0\n s_cselect_b32 s44, 0, {WS_USED}\n buffer_load_dword v25, v14, {RC}, s44 offen{LD}')
        k.sprinkle = wloads(RC)[n1:]
    if OPT.get('c1') == 2: check1()
    unpack()
    stamp(k, 3, 'b')
    if OPT.get('c2', 0) == 0: check2()
    for t in range(2):
        cmul(k, E+8*t, E+8*t+4, WW+8*t, WW+8*t+4, TT, TT+4, False)
        for h in range(4): k(f'v_cvt_pk_bf16_f32 v{PK+4*t+h}, v{TT+2*h}, v{TT+2*h+1}')
        for be in range(2):
            for o in range(2):
                d = V(DD+8*be+4*o, 4)
                k(f'v_mfma_f32_16x16x32_bf16 {d}, {V(PK+4*t,4)}, {V(B3+6*(2*be+t)+2-2*o,4)}, {"0" if t==0 else d}')
    if OPT.get('c2', 0) == 1: check2()
    for be in range(2):
        cmul(k, DD+8*be, DD+8*be+4, TW2+8*be, TW2+8*be+4, TT, TT+4, False)
        for h in range(4): k(f'v_cvt_pk_bf16_f32 v{PK+4*be+h}, v{TT+2*h}, v{TT+2*h+1}')
        k(f'ds_write_b128 v16, {V(PK+4*be,4)} offset:{1024*be}')
    def step4(u, src):
        for be in range(2):
            for o in range(2):
                d = V(DD+8*be+4*o, 4)
                k(f'v_mfma_f32_16x16x32_bf16 {d}, {V(A4+6*u+2-2*o,4)}, {V(src+4*be,4)}, {d}')
    for o in range(2):
        for be in range(2):
            for r in range(4):
                d = DD+8*be+4*o+r; hi = r & 1
                k(f'v_fma_mix_f32 v{d}, v{SG+4*be+r}, v{Z+4*be+2*o+(r>>1)}, 0 op_sel:[0,{hi},0] op_sel_hi:[0,1,0]')
    stamp(k, 4, 'b')
    k.wait(lg=0); k('s_barrier')
    for u in range(1, 4):
        for be in range(2): k(f'ds_read_b128 {V(Z+8*u+4*be,4)}, v{16+u} offset:{1024*be}')
    step4(0, PK)
    for u in range(1, 4): step4(u, Z+8*u)
    OUT = 64
    rest, k.sprinkle = k.sprinkle, []
    for o in range(2):
        for be in range(2):
            for h in range(2): k(f'v_cvt_pk_bf16_f32 v{OUT+4*o+2*be+h}, v{DD+8*be+4*o+2*h}, v{DD+8*be+4*o+2*h+1}')
    k('s_cmp_lg_u32 s2, 0\n s_cbranch_scc1 L_p2_st')
    for h in range(4): k(f'v_mov_b32 v{OUT+4+h}, v{OUT+h}\n v_mov_b32 v{OUT+h}, 0')
    k.label('L_p2_st')
    for o in range(2): k(f'buffer_store_dwordx4 {V(OUT+4*o,4)}, v20, {WSR}, s62 offen offset:{2048*o}{ST}')
    stamp(k, 5, 'b')
    return rest

def barrier2(k, rest):
    print('weight loads left after phase 2:', len(rest))
    k(f's_lshl_b32 s44, s48, 12\n s_add_u32 s44, s44, {HF}')
    k(f's_and_b32 s46, {WAVE}, 1')
    for p in range(4): k(f's_xor_b32 s45, s46, {p}\n s_lshl_b32 s45, s45, 10\n s_add_u32 s{55+p}, s44, s45')
    k(f"""s_lshl_b32 s44, s49, 17
    s_lshl_b32 s45, s48, 11
    s_add_u32 s44, s44, s45
    s_add_u32 s59, s44, {HRES}
    s_add_u32 s60, s59, 0x10000
    s_lshl_b32 s44, s48, 10
    s_add_u32 s61, s44, {SM+64}
    s_mov_b32 s46, 0""")
    print('group 1:', n1)
    stamp(k, 6)
    nA = min(OPT.get('nA', 12), len(rest)); nB = min(OPT.get('nB', 48), len(rest) - nA)
    n2 = 48 - len(rest) + nA
    for t in rest[:nA]: k(t)
    rest = [t.replace(RC, WSR) for t in rest]
    stamp(k, 6, 'b')
    k(f'v_mov_b32 v250, 0\n v_mov_b32 v251, 1\n s_cmp_lg_u32 {WAVE}, 0\n s_cbranch_scc1 L_b2o')
    st = k.state()
    k(f's_mov_b64 exec, 1\n s_waitcnt vmcnt({nA})'); stamp(k, 7, 'b'); k('s_barrier'); stamp(k, 8, 'b')
    k(f'buffer_atomic_add v251, v250, {WSR}, s74 offen sc0 sc1')
    k('s_barrier')
    stamp(k, 9, 'b'); arrive_check(k, 250, 's75', 51, 2); stamp(k, 10, 'b')
    if OPT.get('hold'): k('s_barrier')
    k('s_mov_b64 exec, -1\n s_branch L_b2m')
    k.restore(st); k.label('L_b2o')
    k(f's_waitcnt vmcnt({nA})'); stamp(k, 7, 'b'); k('s_barrier'); stamp(k, 8, 'b')
    k('s_barrier')
    if OPT.get('hold'): k('s_barrier')
    stamp(k, 9, 'b'); stamp(k, 10, 'b')
    k.label('L_b2m')
    k(f's_cmp_lg_u32 s30, 0\n s_cbranch_scc1 L_bok')
    st = k.state()
    k(f's_cmp_lg_u32 s38, 0\n s_cbranch_scc1 L_bok2')
    k.label('L_bchk')
    k(f"""buffer_load_dword v26, v23, {WSR}, 0 offen{LD}
    s_add_u32 s46, s46, 1
    s_waitcnt vmcnt(0)
    v_cmp_ne_u32 vcc, 1, v26
    s_cmp_gt_u32 s46, {SPIN}
    s_cbranch_scc1 L_bgo
    s_cbranch_vccnz L_bchk""")
    k.label('L_bgo')
    for t in wloads(WSR)[n1:n2]: k(t)
    k.label('L_bok2')
    for t in wloads(WSR)[:n1]: k(t)
    k.restore(st)
    k.label('L_bok')
    for t in rest[nA:nA+nB]: k(t)
    only_wave(k, 0, lambda: poll(k, 250, 2))
    global late_w
    late_w = rest[nA+nB:]
    def hw():
        k('v_bfe_u32 v16, v1, 2, 1\n v_lshlrev_b32 v16, 9, v16\n v_bfe_u32 v17, v1, 3, 1\n v_lshl_add_u32 v16, v17, 4, v16\n v_and_b32 v17, 3, v1\n v_lshl_add_u32 v16, v17, 2, v16')
        for j in range(8): k(f'buffer_load_dword v{MUV+j}, v16, {WSR}, s61 offen offset:{128*((j^3)>>1)+32*((j^3)&1)}{LD}')
    global hw_means, st3
    hw_means = hw
    k(f's_cmp_eq_u32 {WAVE}, 3\n s_cbranch_scc1 L_p3h')
    st3 = k.state()
    if OPT.get('isl'):
        k(f's_mov_b64 exec, 0\n s_cmp_eq_u32 {WAVE}, 1\n s_cbranch_scc1 L_isl0_0\n s_branch L_isl0_{OPT.get("islmid", 32)}')
        k.label('L_islret0'); k('s_mov_b64 exec, -1')
    k.label('L_b2x')

ACT, ACC, TM, STV, MUV = 32, 64, 128, 16, 24
def cost(t):
    m = t.split()[0]
    if m.startswith('buffer'): return 18 + 4 * t.count('\n')
    if m.startswith(('v_exp', 'v_rcp', 'v_rsq', 'v_permlane', 'ds_write')): return 8
    return 4 * (t.count('\n') + 1)

def p3_body(k, hw):
    acc = lambda p, n, m, par=0: ACC + 32*(p & 1) + 8*(n + (par if n == 2 and hw else 0)) + 4*m
    GR = 28 if not hw else TM + 12
    dma_pos = []
    def dma(j):
        return f'buffer_load_dwordx4 v5, {WSR}, m0 offen offset:{1024*(j&3)}{LD} lds'
    def m0step(j): return [f's_add_u32 m0, m0, {8192 + (32768 if j == 15 else 0)}'] if j & 3 == 3 and j < 31 else []
    def slot(g, m): return ACT + 8*(g & 3) + 4*m
    def reads(g):
        p, ka = divmod(g, 16); o = []
        if p and ka == 0:
            x = (p ^ (p-1)) << 15
            o = [f'v_xor_b32 v6, {x:#x}, v6', f'v_xor_b32 v7, {x:#x}, v7']
        return o + [f'ds_read_b64_tr_b16 {V(slot(g,m)+2*h,2)}, v{6+m} offset:{2048*ka+1024*h}' for m in range(2) for h in range(2)]
    def chains(p, J):
        if p == 3:
            P = J[::2]
            o = [f'v_pk_mul_f32 {V(t,2)}, {V(g,2)}, {V(g,2)}' for g, u, t, c in P]
            o += [f'v_pk_fma_f32 {V(t,2)}, {V(t,2)}, {V(c,2)}, {V(c,2)} op_sel:[0,1,0] op_sel_hi:[1,1,0]' for g, u, t, c in P]
            o += [f'v_pk_mul_f32 {V(t,2)}, {V(t,2)}, {V(g,2)}' for g, u, t, c in P]
            o += [f'v_exp_f32 v{t}, v{t}' for g, u, t, c in J]
            o += [f'v_pk_mul_f32 {V(g,2)}, {V(g,2)}, {V(u,2)}' for g, u, t, c in P]
            o += [f'v_pk_fma_f32 {V(t,2)}, {V(t,2)}, {V(c+2,2)}, {V(c+2,2)} op_sel_hi:[1,0,0]' for g, u, t, c in P]
            o += [f'v_rcp_f32 v{t}, v{t}' for g, u, t, c in J]
            o += [f'v_pk_mul_f32 {V(g,2)}, {V(g,2)}, {V(t,2)}' for g, u, t, c in P]
            return o
        o = [f'v_mul_f32 v{t}, v{g}, v{g}' for g, u, t, c in J]
        o += [f'v_fma_f32 v{t}, v{t}, v{c+1}, v{c}' for g, u, t, c in J]
        o += [f'v_mul_f32 v{t}, v{t}, v{g}' for g, u, t, c in J]
        for g, u, t, c in J: o += [f'v_exp_f32 v{t}, v{t}', f'v_mul_f32 v{g}, v{g}, v{u}']
        o += [f'v_fma_f32 v{t}, v{t}, v{c+2}, v{c+2}' for g, u, t, c in J]
        o += [f'v_rcp_f32 v{t}, v{t}' for g, u, t, c in J]
        o += [f'v_mul_f32 v{g}, v{g}, v{t}' for g, u, t, c in J]
        return o
    def epilogue(p):
        HA, HX = TM + 8, TM + 12
        J = [(acc(p, 0, m)+r, acc(p, 1, m)+r, TM+4*m+r, STV+4*m) for m in range(2) for r in range(4)]
        o = []
        if not hw: o += [f'v_permlane32_swap_b32 v{acc(p,2,0)+r}, v{acc(p,2,1)+r}' for r in range(4)]
        o += chains(p, J)
        o += [f'v_cvt_pk_bf16_f32 v{HA+2*m+h}, v{acc(p,0,m)+2*h}, v{acc(p,0,m)+2*h+1}' for h in range(2) for m in range(2)]
        tail = [f'v_permlane16_swap_b32 v{HA}, v{HA+2}', f'v_permlane16_swap_b32 v{HA+1}, v{HA+3}',
                f'buffer_store_dwordx4 {V(HA,4)}, v12, {RB}, s{55+p} offen{ST}']
        if not hw:
            x = chains(p, [(acc(p, 2, 0)+r, acc(p, 2, 1)+r, TM+r, STV+8) for r in range(4)])
            o += x[:2] + tail + x[2:]
            o += [f'v_cvt_pk_bf16_f32 v{HX+2*(p&1)+h}, v{acc(p,2,0)+2*h}, v{acc(p,2,0)+2*h+1}' for h in range(2)]
            if p & 1: o += [f'v_permlane16_swap_b32 v{HX}, v{HX+2}', f'v_permlane16_swap_b32 v{HX+1}, v{HX+3}',
                            f'buffer_store_dwordx4 {V(HX,4)}, v13, {RB}, s{55+p} offen{ST}']
        else:
            for m in range(2):
                e, od = acc(p, 2, m), acc(p, 2, m, 1); t = TM
                o += [f'v_add_f32 v{e+r}, v{e+r}, v{MUV+2*p+m}' for r in range(4)]
                if m == 0: o += tail
                for r in range(4): o += [f'v_add_f32 v{t+r}, v{e+r}, v{od+r}', f'v_sub_f32 v{t+4+r}, v{e+r}, v{od+r}']
                P0, P1 = acc(p, 2, 0), acc(p, 2, 0, 1)
                o += [f'v_cvt_pk_bf16_f32 v{P0+2*m}, v{t}, v{t+1}', f'v_cvt_pk_bf16_f32 v{P0+2*m+1}, v{t+2}, v{t+3}',
                      f'v_cvt_pk_bf16_f32 v{P1+2-2*m}, v{t+7}, v{t+6}', f'v_cvt_pk_bf16_f32 v{P1+3-2*m}, v{t+5}, v{t+4}']
            off = 512*(p ^ 1)
            o += [f'v_permlane16_swap_b32 v{P0}, v{P0+2}', f'v_permlane16_swap_b32 v{P0+1}, v{P0+3}',
                  f'buffer_store_dwordx4 {V(P0,4)}, v13, {WSR}, s59 offen offset:{off}{ST}',
                  f'v_permlane16_swap_b32 v{P1+2}, v{P1}', f'v_permlane16_swap_b32 v{P1+3}, v{P1+1}',
                  f'buffer_store_dwordx4 {V(P1,4)}, v14, {WSR}, s60 offen offset:{off}{ST}']
        return o
    def stats(p):
        K0 = -2*math.sqrt(2/math.pi)*math.log2(math.e); b = GR
        return [f'v_cndmask_b32 v{b}, v{b}, v{b+1}, s[64:65]', f'v_cndmask_b32 v{b}, v{b}, v{b+2}, s[66:67]', f'v_cndmask_b32 v{b}, v{b}, v{b+3}, s[68:69]',
                f'v_mov_b32 v{b+2}, {fbits(1e-5)}', f'v_fmac_f32 v{b+2}, {fbits(1/512)}, v{b}', f'v_rsq_f32 v{b+3}, v{b+2}',
                f'v_mul_f32 v{b}, {fbits(K0)}, v{b+3}', f'v_mul_f32 v{b+3}, v{b+3}, v{b+3}', f'v_mul_f32 v{b+1}, {fbits(0.044715)}, v{b}', f'v_mul_f32 v{b+1}, v{b+1}, v{b+3}',
                f'ds_write_b128 v9, {V(b,4)} offset:{512*p}']
    def getstats(p):
        R = [(10, STV), (8, STV+4)] + ([] if hw else [(11, STV+8)])
        o = [f'v_xor_b32 v{a}, 0x200, v{a}' for a, _ in R] if p else []
        return o + [f'ds_read_b128 {V(d,4)}, v{a} offset:{1024*(p>>1)}' for a, d in R]
    def issue_dma(j): k(dma(j)); dma_pos.append(k.nvm)
    if hw:
        hw_means()
        if OPT.get('isl'):
            k('s_mov_b64 exec, 0\n s_branch L_isl1_0'); k.label('L_islret1'); k('s_mov_b64 exec, -1')
    k('s_barrier')
    stamp(k, 7); stamp(k, 11, 'b')
    def island(g):
        G = OPT.get('isl')
        if not G or g % G: return
        mid = OPT.get('islmid', 32)
        k.label(f'L_isl{int(hw)}_{g}')
        k(f's_cbranch_execz L_isl{int(hw)}_{g+G}' if g + G < 64 and (hw or g + G != mid) else (f's_cbranch_execz L_islret{int(hw)}' if g + G >= 64 else f's_cbranch_execz L_islret0'))
    DP = 16
    for j in range(DP):
        issue_dma(j)
        for t in m0step(j): k(t)
    if hw: k('v_and_b32 v13, 0x1f0, v4\n v_xor_b32 v13, 0x100, v13\n v_lshrrev_b32 v14, 5, v1\n v_lshl_add_u32 v13, v14, 15, v13\n v_xor_b32 v14, 0x8000, v13')
    p4_ids(k)
    k(f"""s_mov_b32 s51, 0
    s_lshl_b32 s45, s45, 2
    s_add_u32 s45, s45, {WAVE}
    s_mul_i32 s45, s45, {22*2048}
    s_add_u32 s45, s45, {WD}
    v_add_u32 v15, s45, v4
    s_lshr_b32 s46, s44, 1
    s_lshl_b32 s45, s46, 11
    s_add_u32 s62, s45, {RBF}
    s_add_u32 s63, s62, 0x8000
    s_lshl_b32 s46, s46, 2
    s_and_b32 s44, s44, 1
    s_add_u32 s73, s46, s44
    s_lshl_b32 s46, s73, 10
    s_lshl_b32 s47, {WAVE}, 16
    s_add_u32 s46, s46, s47
    s_add_u32 s74, s46, {HF}
    s_mov_b32 s75, 0""")
    def landed(j): k(f's_waitcnt vmcnt({min(63, k.nvm - dma_pos[j])})'); k('s_barrier')
    landed(3)
    stamp(k, 8)
    rd_pos = {}
    def do_reads(g):
        for t in reads(g): k(t)
        rd_pos[g] = k.nlg
    do_reads(0); do_reads(1)
    NWD = OPT.get('wdin', 22)
    memq = [('dma', j) for j in range(DP, 16)]
    lw = list(late_w)
    memq += lw + [('dma', j) for j in range(16, 32)]
    after = []
    nfast = len(memq)
    wl = [t for u in range(0, NWD, 2) for t in wd_loads(u)]
    wdq = [wl[i] + ('\n' + wl[i+1] if i % 5 == 3 else '') for i in range(len(wl)) if i % 5 != 4]
    W1 = OPT.get('wdend', 57)
    st_pos = None
    wrate = min(1.0, len(wdq) / (W1 - nfast / OPT.get('mrate', 1)))
    eq = [hload(0, u, RC) for u in range(22)]
    fc = lambda f: {'dma': 18, 'land': 10, 'rd': 4.6}[f[0]] if isinstance(f, tuple) else cost(f)
    for p in range(4):
        pre = stats(p-1) if p & 1 else []
        bg = (epilogue(p-1) + (getstats(p) if p & 1 else [])) if p else []
        k0 = 0
        nind = (8 if hw else 12) if p & 1 else 0
        nbg = len(bg)
        k1 = OPT.get('e1end', 12) if p == 2 else 16
        tot = sum(map(cost, bg)); done = 0
        for ka in range(16):
            g = 16*p + ka
            fill = []; mem = []
            island(g)
            if OPT.get('gst') and g in OPT['gst']: stamp(k, 1 + OPT['gst'].index(g), True)
            k.wait(lg=k.nlg - rd_pos[g])
            if p & 1 and ka == 2:
                assert not pre
                k.wait(lg=k.nlg - stat_pos)
                if p == 3: k(f's_waitcnt vmcnt({min(63, k.nvm - st_pos)})')
                if p == 1 and OPT.get('mergeland'): k(f's_waitcnt vmcnt({min(63, k.nvm - dma_pos[31])})')
                k('s_barrier')
                if p == 3 and hw: k(f'v_mov_b32 v{MUV}, 0\n v_mov_b32 v{MUV+1}, 1\n s_mov_b64 exec, 1\n buffer_store_dword v{MUV+1}, v{MUV}, {WSR}, s41 offen{ST}\n s_mov_b64 exec, -1')
            if p == 0 and ka in (2, 6, 10): fill.append(('land', ka + 5))
            if p == 1 and ka == 13 and not OPT.get('mergeland'): fill.append(('land', 31))
            if g + 2 < 64: fill += [('rd', t, g + 2) for t in reads(g + 2)]
            if memq and g >= OPT.get('m0', 0):
                mr = OPT.get('mrate', 1); n = int((g + 1) * mr) - int(g * mr); mem = memq[:n]; memq = memq[n:]
            elif wdq and not memq and g % 32 != 18:
                left = W1 - g
                n = (len(wdq) + left - 1) // left if len(wdq) >= left else int((g + 1) * wrate) - int(g * wrate)
                mem = wdq[:n]; wdq = wdq[n:]
            val = []
            if ka == 0 and pre: val += ['s_nop 0']
            if ka <= 1 and pre:
                n = 4 if ka == 0 else len(pre); val += pre[:n]; pre = pre[n:]
            if ka >= k0:
                budget = tot * (ka + 1 - (1 if p & 1 else 0)) / (k1 - (1 if p & 1 else 0)) - (10 if mem else 0)
                if p & 1 and ka <= 1: budget = -1
                if p & 1 and ka == 2: val += getstats(p-1)
                while bg and (done + cost(bg[0])/2 <= budget or ka == k1 - 1) and not (p & 1 and ka == 2 and nbg - len(bg) >= nind):
                    done += cost(bg[0]); val.append(bg.pop(0))
            if g == 48 + OPT.get('esamp', 8): val = ['v_lshlrev_b32 v5, 7, v3', f'buffer_load_dword v9, v5, {WSR}, s62 offen{LD}', 'v_add_u32 v3, s74, v4'] + val
            if g == 48 + OPT.get('echk', 11): val += [f'v_cmp_ne_u32 vcc, 1, v9\n s_cmp_eq_u64 vcc, 0\n s_cselect_b32 s38, s34, 0']
            if g > 48 + OPT.get('echk', 11):
                er = OPT.get('erate', 1); mem = mem + eq[:er]; eq = eq[er:]
            fill += val
            for i, t in enumerate(mem): fill.insert(min(len(fill), 2 + i * (len(fill) + 1) // len(mem)), t)
            mf = []
            for m in range(2):
                b = V(slot(g, m), 4)
                for n in range(3):
                    d = V(acc(p, n, m, ka & 1), 4)
                    first = ka == 0 or (n == 2 and ka == 1 and hw)
                    mf.append(f'v_mfma_f32_16x16x32_bf16 {d}, {A(12*ka+4*n,4)}, {b}, {"0" if first else d}')
            if OPT.get('nord'): mf = [mf[i] for i in (0, 3, 4, 1, 2, 5)]
            if p % 2 == 0: mf.insert(0, f'v_mfma_f32_16x16x32_bf16 {V(GR,4)}, {V(slot(g,0),4)}, {V(slot(g,0),4)}, {"0" if ka==0 else V(GR,4)}')
            ftot = sum(map(fc, fill)); fd = 0
            for i, t in enumerate(mf):
                k(t)
                for t in after: k(t)
                after = []
                while fill and fd + fc(fill[0])/2 <= ftot * (i+1) / len(mf) + 1e-6:
                    f = fill.pop(0); fd += fc(f)
                    if isinstance(f, tuple):
                        if f[0] == 'dma':
                            for t in after: k(t)
                            issue_dma(f[1]); after = m0step(f[1])
                        elif f[0] == 'land': landed(f[1])
                        elif f[0] == 'rd': k(f[1]); rd_pos[f[2]] = k.nlg
                    else:
                        k(f)
                        if f.startswith('ds_write'): stat_pos = k.nlg
            assert not fill
            if p == 2 and ka == k1 - 1: st_pos = k.nvm
        assert not bg
        if p == 0: stamp(k, 9)
        if OPT.get('pst'): stamp(k, 1+p, True)
    assert not wdq
    stamp(k, 10)
    ep = epilogue(3); ne = OPT.get('eepi', 0); gap = 5
    for i, t in enumerate(ep):
        k(t)
        if i % gap == gap - 1 and ne > 0: k(eq.pop(0)); ne -= 1
    assert ne == 0
    if OPT.get('pst'): stamp(k, 5, True)
    return 22 - len(eq)

def hload(hf, u, R):
    return f'buffer_load_dwordx4 {A(88*hf+4*u,4)}, v3, {R}, s75 offen offset:{2048*hf}{LD}\n ' + ('s_add_u32 s75, s75, 0x40000' if u < 21 else 's_mov_b32 s75, 0')

def redo(k, soff, hf, n, again=None):
    uid[0] += 1; u = uid[0]
    k(f's_cmp_lg_u32 s38, 0\n s_cbranch_scc1 L_sd{u}')
    st = k.state()
    k('s_mov_b32 s46, 0')
    k.label(f'L_sp{u}')
    k(f"""buffer_load_dword v6, v5, {WSR}, {soff} offen{LD}
    s_add_u32 s46, s46, 1
    s_waitcnt vmcnt(0)
    v_cmp_ne_u32 vcc, 1, v6
    s_cmp_gt_u32 s46, {SPIN}
    s_cbranch_scc1 L_sg{u}
    s_cbranch_vccnz L_sp{u}""")
    k.label(f'L_sg{u}')
    k('s_mov_b32 s75, 0')
    for j in range(n): k(hload(hf, j, RB))
    if again: again()
    k.restore(st)
    k.vm = [set()] * 8 + [{('a', 88*hf+4*j+r) for r in range(4)} for j in range(n)]
    k.label(f'L_sd{u}')

def spin(k, reg, soff):
    uid[0] += 1; u = uid[0]
    k(f'v_cmp_ne_u32 vcc, 1, v{reg}\n s_mov_b32 s46, 0\n s_cbranch_vccz L_sd{u}')
    st = k.state()
    k.label(f'L_sp{u}')
    k(f"""buffer_load_dword v{reg}, v5, {WSR}, {soff} offen{LD}
    s_add_u32 s46, s46, 1
    s_waitcnt vmcnt(0)
    v_cmp_ne_u32 vcc, 1, v{reg}
    s_cmp_gt_u32 s46, {SPIN}
    s_cbranch_scc1 L_sd{u}
    s_cbranch_vccnz L_sp{u}""")
    k.restore(st)
    k.label(f'L_sd{u}')

QS, INS, PS = 1152, 4736, 9472
def p4(k, n0, nst):
    HR, RD, SUM = 32, 40, 128
    PRE = OPT.get('p4pre', 14)
    EP = OPT.get('epost', 6)
    k.vm = [{('a', 4*j+r) for r in range(4)} for j in range(n0)] + [set()] * nst
    for j in range(n0, n0 + EP): k(hload(0, j, RC))
    U0 = n0 if not OPT.get('nopre') else 0
    n0 += EP
    setup = f"""s_mov_b32 s28, s18
    s_and_b32 s29, s19, 0xffff
    s_mov_b32 s30, {S*D*2}
    s_lshr_b32 s65, s2, 5
    v_lshrrev_b32 v16, 3, v1
    v_bfe_u32 v17, v1, 1, 2
    s_lshl_b32 s46, s65, 2
    v_add_u32 v17, s46, v17            ; 16-column block
    v_sub_u32 v18, 31, v17
    v_min_u32 v18, v17, v18
    v_lshlrev_b32 v18, 17, v18
    v_lshrrev_b32 v17, 4, v17
    v_lshl_add_u32 v18, v17, 16, v18
    v_lshl_add_u32 v18, v16, 4, v18
    v_and_b32 v17, 1, v1
    v_lshl_add_u32 v8, v17, 15, v18    ; residual
    s_lshl_b32 s66, s73, 9
    s_lshl_b32 s46, {WAVE}, 7
    s_add_u32 s66, s66, s46
    s_add_u32 s66, s66, {HRES}
    v_mov_b32 v20, 0
    v_mov_b32 v21, 1
    s_add_u32 s41, s41, 0x8000
    s_lshr_b32 s46, s73, 2
    s_lshl_b32 s46, s46, 17
    s_and_b32 s44, s73, 3
    s_lshl_b32 s44, s44, 2
    s_add_u32 s44, s44, {WAVE}
    s_lshl_b32 s44, s44, 10
    s_add_u32 s67, s46, s44
    s_lshl_b32 s45, s65, 7
    s_add_u32 s67, s67, s45
    s_add_u32 s68, s67, 0x2000
    v_and_b32 v9, 7, v1
    v_lshlrev_b32 v9, 4, v9
    v_and_b32 v18, 3, v16
    v_lshl_add_u32 v9, v18, 15, v9
    v_lshrrev_b32 v18, 2, v16
    v_lshl_add_u32 v9, v18, 14, v9     ; output
    v_lshrrev_b32 v18, 5, v1
    v_lshl_add_u32 v10, v18, 6, v4
    s_mul_i32 s44, {WAVE}, {PS}
    v_add_u32 v10, s44, v10            ; partial sums, write
    v_bfe_u32 v18, v1, 2, 1
    v_mul_u32_u24 v11, {INS}, v18
    v_bfe_u32 v18, v1, 1, 1
    v_mul_u32_u24 v18, 576, v18
    v_add_u32 v11, v11, v18
    v_lshl_add_u32 v11, v16, 4, v11
    v_lshl_add_u32 v11, v17, 3, v11
    s_lshl_b32 s44, {WAVE}, 7
    v_add_u32 v11, s44, v11            ; partial sums, read
    v_add_u32 v12, {4*PS}, v11""".split('\n')
    def resid(hf): k(f'buffer_load_dwordx4 {V(HR+4*hf,4)}, v8, {WSR}, s66 offen offset:{1024*hf}{LD}')
    def mf(hf, u, i):
        d = V(ACC+32*hf+16*i, 16)
        return f'v_mfma_f32_32x32x16_bf16 {d}, {wd_reg(u, i)}, {A(88*hf+4*u,4)}, {"0" if u==0 else d}'
    def mm(hf, issued, hook):
        q = []
        for j in range(22):
            if hf == 0 and j >= OPT.get('wdin', 22) and j % 2 == 0:
                w = wd_loads(j); q += [lambda t=t: k(t) for t in w[:3] + [w[3] + '\n' + w[4]]]
            if j >= issued: q.append(lambda j=j: k(hload(hf, j, RB)))
        q.append(lambda: resid(hf))
        for u in range(U0 if hf == 0 else 0, 22):
            for i in range(2):
                k(mf(hf, u, i))
                if q and (i == 0 or len(q) > 22 - u - OPT.get('lead', 8)): q.pop(0)()
                hook(u, i)
    def red_write(hf):
        o = [f'ds_write_b128 v10, {V(ACC+32*hf+16*i+4*q,4)} offset:{4*PS*hf+INS*i+QS*q}' for i in range(2) for q in range(4)]
        for j in range(4):
            o += [f'v_lshlrev_b32 v{SUM+4*(j&1)+(j>>1)}, 16, v{HR+4*hf+j}', f'v_and_b32 v{SUM+4*(j&1)+2+(j>>1)}, 0xffff0000, v{HR+4*hf+j}']
        return o
    def red_read(hf, pk=True):
        R = lambda w, q: (RD + 8*w + 2*q) if w < 3 else SUM + 8 + 2*q
        o = [f'ds_read_b64 {V(R(w,q),2)}, v{11+hf} offset:{PS*w+QS*q}' for w in range(4) for q in range(4)]
        if pk: o += [f'v_pk_add_f32 {V(SUM+2*q,2)}, {V(SUM+2*q,2)}, {V(R(w,q),2)}' for w in range(4) for q in range(4)]
        else: o += [f'v_add_f32 v{SUM+2*q+h}, v{SUM+2*q+h}, v{R(w,q)+h}' for w in range(4) for q in range(4) for h in range(2)]
        o += [f'v_cvt_pk_bf16_f32 v{HR+4*hf+j}, v{SUM+4*(j&1)+(j>>1)}, v{SUM+4*(j&1)+2+(j>>1)}' for j in range(4)]
        return o + [f'buffer_store_dwordx4 {V(HR+4*hf,4)}, v9, {RA}, s{67+hf} offen{OPT.get("ost", "")}']
    pre = [mf(0, u, i) for u in range(U0) for i in range(2)]
    for t in pre:
        k(t)
        for x in setup[:5]: k(x)
        setup = setup[5:]
    for t in setup: k(t)
    k(f's_waitcnt vmcnt({EP})'); k('s_barrier')
    only_wave(k, 0, lambda: k(f's_mov_b64 exec, 1\n buffer_store_dword v21, v20, {WSR}, s41 offen{ST}'))
    stamp(k, 11)
    redo(k, 's62', 0, n0, lambda: [k(t) for t in pre])
    if OPT.get('p4st'): stamp(k, 1, True)
    LP, LC = OPT.get('lpoll', 11), OPT.get('lchk', 15)
    nl = [0]
    def hook0(u, i):
        if u == LP and i == 1: k(f'buffer_load_dword v6, v5, {WSR}, s63 offen{LD}')
        if u == LC and i == 0: k('v_cmp_ne_u32 vcc, 1, v6\n s_cmp_eq_u64 vcc, 0\n s_cselect_b32 s38, s34, 0')
        if (u, i) > (LC, 0) and (i == 1 or OPT.get('lrate2')): k(hload(1, nl[0], RC)); nl[0] += 1
    mm(0, n0, hook0)
    if OPT.get('p4st'): stamp(k, 2, True)
    for j, t in enumerate(red_write(0)):
        k(t)
        if j < OPT.get('lmid', 5): k(hload(1, nl[0], RC)); nl[0] += 1
    if OPT.get('p4st'): stamp(k, 3, True)
    redo(k, 's63', 1, nl[0])
    if OPT.get('p4st'): stamp(k, 4, True)
    rr = red_read(0, False)
    def hook1(u, i):
        if u == 1 and i == 1: k.wait(lg=0); k('s_barrier')
        if u >= 2:
            for _ in range(4 if i else 2):
                if rr: k(rr.pop(0))
    mm(1, nl[0], hook1)
    assert not rr
    if OPT.get('p4st'): stamp(k, 5, True)
    for t in red_write(1): k(t)
    k.wait(lg=0); k('s_barrier')
    for t in red_read(1): k(t)

def fused():
    k = K()
    prologue(k)
    if OPT.get('prio'): only_wave(k, 0, lambda: k('s_setprio 3'))
    k(f's_cmp_ge_u32 s2, {NZ}\n s_cbranch_scc1 L_notz')
    st0 = k.state()
    p1_z(k)
    k.label('L_join1')
    k.vm = [set()] * 40; k.lg = []
    setup(k)
    stamp(k, 3)
    negs = lambda: [p2_negs(k, b) for b in (B1, A2, B3, A4)]
    stamp(k, 8, 'z')
    k(f's_cmp_lg_u32 {WAVE}, 0\n s_cbranch_scc1 L_b1o')
    st = k.state()
    k('s_mov_b64 exec, 1\n s_mov_b32 s46, 0\n s_waitcnt vmcnt(8)')
    k.label('L_go')
    k(f"""v_cmp_ne_u32 vcc, 0, v254
    s_add_u32 s46, s46, 1
    s_cbranch_vccnz L_gone
    global_load_dword v254, v250, s[20:21]{LD}
    s_waitcnt vmcnt(0)
    s_cmp_lt_u32 s46, {SPIN}
    s_cbranch_scc1 L_go""")
    k.restore(st); k.vm = k.vm[-8:]
    k.label('L_gone')
    stamp(k, 9, 'z')
    k('s_barrier')
    k(f'buffer_atomic_add v251, v250, {WSR}, s71 offen sc0 sc1\n s_mov_b64 exec, -1')
    stamp(k, 10, 'z')
    negs(); arrive_check(k, 250, 's72', 's70', 1)
    k('s_mov_b64 exec, -1\n s_branch L_b1m')
    k.restore(st); k.label('L_b1o')
    k('s_waitcnt vmcnt(8)')
    stamp(k, 9, 'z')
    k('s_barrier')
    stamp(k, 10, 'z')
    negs()
    k.label('L_b1m')
    setup_late(k)
    wd_finish(k)
    only_wave(k, 0, lambda: poll(k, 250, 1))
    k.vm = []
    k('s_barrier')
    stamp(k, 4)
    stamp(k, 11, 'z'); stamp(k, 1, 'b')
    barrier2(k, p2(k))
    n0 = p3_body(k, False)
    nst = 0
    nst = 2
    k.label('L_join3')
    k.fence()
    p4(k, n0, nst)
    stamp_out(k, 12)
    k.label('L_end'); k('s_endpgm')
    k.restore(st3); k.label('L_p3h'); assert p3_body(k, True) == n0
    assert not any(k.vm[-nst:]); k('s_branch L_join3')
    k.restore(st0); k.label('L_notz')
    p1_w(k); k('s_branch L_join1')
    k.restore(st_c); k.label('L_p1c')
    k(f's_cmp_ge_u32 s2, {NI0}\n s_cbranch_scc1 L_p1i')
    st1 = k.state()
    p1_t(k); k('s_branch L_join1')
    k.restore(st1); k.label('L_p1i'); p1_i(k); k('s_branch L_join1')
    o = header()
    o += f'; @launch grid=(256,1,1) block=(256,1,1) lds={STATL+4096}\n'
    o += '.amdgcn_target "amdgcn-amd-amdhsa--gfx950"\n.text\n' + k.text()
    o += tables_text() + 'L_image_end:\n'
    o += '.section .rodata,"a"\n.p2align 6\n' + kd(KN, k)
    return o

if __name__ == '__main__':
    out = sys.argv[1]
    for a in sys.argv[2:]:
        key, _, val = a.partition('=')
        OPT[key] = eval(val) if val else True
    open(out, 'w').write(fused())
```

```python
import sys, math, struct
import numpy as np
from dsl import K
from design import *
from gen import V, A, Sg, fbits, TBL, tables_text, header, kd, NAME, srd, cmul, TPAD

OPT = dict(stamps=False, gblate=True, tpost=True, every=48, mergeland=True, mrate=1.5, nopre=True, w0late=True, nA=10, c1=1, fpos=0, c2=1, prio=True, wgbfirst=True, wdshadow=True, wcont=True, nord=True, hold=True, esamp=7, echk=15, epost=8, wdend=62, lpoll=9, lchk=16, retouch=True)
ST, LD = ' sc1', ' sc1'
WSR, RA, RB, RC = 's[24:27]', 's[28:31]', 's[32:35]', 's[36:39]'
WAVE = 's40'
KN = NAME + '_kernel'
SPIN = 400000
TW1, TW2 = 112, 128
B1, A4, A2, B3 = 144, 168, 192, 216
FA, GB = 200, 208
NZ, NC0, NI0 = 128, 216, 248
uid = [0]

def stamp(k, i, pm=False):
    if OPT.get('pst') and 1 <= i <= 5 and not pm: return
    if OPT.get('zdet') and 1 <= i <= 11 and pm != 'z': return
    if pm == 'z' and not OPT.get('zdet'): return
    if OPT.get('bdet') and 1 <= i <= 11 and pm != 'b': return
    if pm == 'b' and not OPT.get('bdet'): return
    if OPT['stamps']: k(f's_{"memtime" if OPT.get("pst") else "memrealtime"} s[{76+2*i}:{77+2*i}]')
def stamp_out(k, n):
    if not OPT['stamps']: return
    k.wait(vm=0, lg=0); stamp(k, n); n += 1; k.wait(lg=0)
    k(f's_lshl_b32 s44, s2, 8\n s_lshl_b32 s45, {WAVE}, 6\n s_add_u32 s44, s44, s45\n s_add_u32 s44, s44, {STAMP}')
    for i in range(16): k(f'v_mov_b32 v{8+i}, s{76+2*i}' if i < n else f'v_mov_b32 v{8+i}, 0')
    k('v_mov_b32 v24, 0\n s_mov_b64 exec, 1')
    for q in range(4): k(f'buffer_store_dwordx4 {V(8+4*q,4)}, v24, {WSR}, s44 offen offset:{16*q}')

def wsrd(k, base, end):
    k(f's_mov_b32 s{base}, s24\n s_mov_b32 s{base+1}, s25\n s_mov_b32 s{base+2}, {end}\n s_mov_b32 s{base+3}, 0x20000')

def tbl_addr(k, vp, soff):
    k(f"""s_add_u32 s46, s42, {soff}
    s_addc_u32 s47, s43, 0
    v_mov_b32 v{vp+1}, s47
    v_add_co_u32 v{vp}, vcc, s46, v4
    v_addc_co_u32 v{vp+1}, vcc, 0, v{vp+1}, vcc""")

def gb_loads(k):
    for q in range(8): k(f'global_load_dwordx4 {A(GB+4*q,4)}, v[8:9], off offset:{1024*q-4096}')

def prologue(k):
    k.raw(f'.globl {KN}\n.p2align 8\n.type {KN},@function\n{KN}:')
    stamp(k, 0)
    k(f"""s_load_dwordx16 s[4:19], s[0:1], 0
    s_load_dwordx4 s[20:23], s[0:1], 64
    s_getpc_b64 s[42:43]""")
    k.raw('L_pc:')
    k(f"""s_cmp_ge_u32 s2, 256
    s_cbranch_scc1 L_end
    v_lshrrev_b32 v5, 6, v0
    v_and_b32 v1, 63, v0
    v_readfirstlane_b32 {WAVE}, v5
    s_lshr_b32 s44, s2, 3
    v_lshl_add_u32 v5, v5, 5, s44
    v_lshlrev_b32 v6, 6, v1
    v_lshl_add_u32 v5, v5, 12, v6      ; 4 KiB slice per wave, one dword per 64 B""")
    k.raw('    v_min_u32 v5, L_image_end-L_pc-4, v5'); k.pos += 1
    k(f"""v_mov_b32 v7, s43
    v_add_co_u32 v6, vcc, s42, v5
    v_addc_co_u32 v7, vcc, 0, v7, vcc
    global_load_dword v255, v[6:7], off
    v_bfe_u32 v2, v0, 4, 2
    v_and_b32 v3, 15, v0
    v_lshlrev_b32 v4, 4, v1""")
    k.raw('    s_add_u32 s42, s42, tables-L_pc\n    s_addc_u32 s43, s43, 0'); k.pos += 2
    k(f's_cmp_ge_u32 s2, {NC0}\n s_cbranch_scc1 L_p1c')
    global st_c
    st_c = k.state()
    tbl_addr(k, 6, TBL['FA'])
    for c in range(2): k(f'global_load_dwordx4 {A(FA+4*c,4)}, v[6:7], off offset:{1024*c}')
    k(f"""s_cmp_lt_u32 s2, {NZ}
    s_cselect_b32 s45, {TBL["GBZ"]+4096}, {TBL["GBW"]+4096}
    s_lshl_b32 s44, {WAVE}, 13
    s_add_u32 s44, s44, s45""".replace(str(TBL["GBW"]+4096), 's47').replace('s_cmp_lt', f's_mov_b32 s47, {TBL["GBW"]+4096}\n s_cmp_lt'))
    tbl_addr(k, 8, 's44')
    if not OPT.get('gblate'): gb_loads(k)

def go_load(k, b):
    k(f'v_mov_b32 v{b}, 0\n global_load_dword v{b+4}, v{b}, s[20:21]{LD}')
def arrive_issue(k, b, cnt, go):
    k(f'v_mov_b32 v{b}, 0\n v_mov_b32 v{b+1}, 1\n s_mov_b64 exec, 1')
    if go:
        uid[0] += 1; u = uid[0]
        k('s_mov_b32 s46, 0')
        k.label(f'L_go{u}')
        k(f"""s_waitcnt vmcnt(0)
        v_cmp_ne_u32 vcc, 0, v{b+4}
        s_add_u32 s46, s46, 1
        s_cbranch_vccnz L_gone{u}
        global_load_dword v{b+4}, v{b}, s[20:21]{LD}
        s_cmp_lt_u32 s46, {SPIN}
        s_cbranch_scc1 L_go{u}""")
        k.label(f'L_gone{u}')
    k(f'buffer_atomic_add v{b+1}, v{b}, {WSR}, {cnt} offen sc0 sc1')
def arrive_check(k, b, flg, last, val):
    uid[0] += 1; u = uid[0]
    k(f"""s_mov_b64 exec, 0xff
    v_lshlrev_b32 v{b+2}, 11, v1
    v_mov_b32 v{b}, {val}
    v_readfirstlane_b32 s47, v{b+1}
    s_cmp_lg_u32 s47, {last}
    s_cbranch_scc1 L_nl{u}""")
    st = k.state()
    k(f'buffer_store_dword v{b}, v{b+2}, {WSR}, {flg} offen{ST}')
    k.restore(st)
    k.label(f'L_nl{u}')
def poll(k, b, val):
    uid[0] += 1; u = uid[0]
    k(f"""s_mov_b64 exec, 0xff
    v_lshlrev_b32 v{b+3}, 8, v1
    s_and_b32 s44, s2, 7
    s_lshl_b32 s44, s44, 11
    s_add_u32 s44, s44, {FLG}
    s_mov_b32 s46, 0""")
    k.label(f'L_bp{u}')
    k(f"""buffer_load_dword v{b+1}, v{b+3}, {WSR}, s44 offen{LD}
    s_add_u32 s46, s46, 1
    s_waitcnt vmcnt(0)
    v_cmp_gt_u32 vcc, {val}, v{b+1}
    s_cmp_gt_u32 s46, {SPIN}
    s_cbranch_scc1 L_bd{u}
    s_cbranch_vccnz L_bp{u}""")
    k.label(f'L_bd{u}')
    k('s_mov_b64 exec, -1')
def only_wave(k, w, fn):
    uid[0] += 1; u = uid[0]
    k(f's_cmp_lg_u32 {WAVE}, {w}\n s_cbranch_scc1 L_ow{u}')
    st = k.state(); fn(); k('s_mov_b64 exec, -1'); k.restore(st); k.label(f'L_ow{u}')

def p2_tables(k, vp=26):
    k(f's_lshl_b32 s44, {WAVE}, 13\n s_add_u32 s44, s44, {TBL["P2W"]+4096}')
    tbl_addr(k, vp, 's44'); tbl_addr(k, vp+2, TBL['P2S']+4096)
    o = [f'global_load_dwordx4 {V(B1+6*u+2,4)}, {V(vp,2)}, off offset:{1024*u-4096}' for u in range(4)]
    o += [f'global_load_dwordx4 {V(A2+6*u+2,4)}, {V(vp+2,2)}, off offset:{1024*u-4096}' for u in range(4)]
    o += [f'global_load_dwordx4 {V(B3+6*u+2,4)}, {V(vp+2,2)}, off offset:{1024*u}' for u in range(4)]
    o += [f'global_load_dwordx4 {V(A4+6*u+2,4)}, {V(vp,2)}, off offset:{1024*u}' for u in range(4)]
    return o
def flush(k):
    sp, k.sprinkle = k.sprinkle, []
    for t in sp: k(t)

def gtouch(k, dst):
    k(f"""s_bitcmp1_b32 s2, 0
    s_cselect_b32 s36, s14, s12
    s_cselect_b32 s37, s15, s13
    s_and_b32 s37, s37, 0xffff
    s_mov_b32 s38, {D*F*2}
    s_lshr_b32 s44, s2, 3
    s_lshl_b32 s44, s44, 2
    s_add_u32 s44, s44, {WAVE}
    s_mul_i32 s44, s44, {8*2752}
    s_bfe_u32 s46, s2, 0x20001
    s_mul_i32 s46, s46, 704
    s_add_u32 s44, s44, s46
    v_and_b32 v15, 7, v1
    v_lshlrev_b32 v15, 7, v15
    v_min_u32 v15, 700, v15
    v_lshrrev_b32 v16, 3, v1
    v_mul_u32_u24 v16, 2752, v16
    v_add_u32 v15, v15, v16
    s_mov_b32 exec_lo, 0x7f7f7f7f
    s_mov_b32 exec_hi, 0x7f7f7f7f
    buffer_load_dword v{dst}, v15, {RC}, s44 offen
    s_mov_b64 exec, -1""")

def p1_z(k):
    X, DA, TR, SS, WL, WO = 32, 48, 80, 96, 104, 120
    k(f"""s_and_b32 s44, s2, 7
    s_lshr_b32 s45, s2, 4
    s_lshl_b32 s45, s45, 3
    s_add_u32 s44, s44, s45
    s_lshl_b32 s44, s44, 1
    s_bfe_u32 s45, s2, 0x10003
    s_add_u32 s60, s44, s45            ; (t,g,beta,bq)
    s_lshr_b32 s61, s60, 3
    s_lshl_b32 s61, s61, 7
    s_and_b32 s44, s60, 7
    s_lshl_b32 s44, s44, 2
    s_add_u32 s44, s44, s61
    s_add_u32 s44, s44, {WAVE}
    s_lshl_b32 s56, s44, 10
    s_add_u32 s57, s56, 0x8000
    s_add_u32 s58, s56, 0x10000
    s_add_u32 s59, s56, 0x18000
    s_mov_b32 s38, {S*D*2}
    s_mov_b32 s39, 0x20000
    s_bfe_u32 s48, s2, 0x20003
    s_and_b32 s44, s2, 7
    s_lshl_b32 s44, s44, 2
    s_add_u32 s48, s48, s44
    s_and_b32 s44, s2, 0x60
    s_add_u32 s48, s48, s44
    s_add_u32 s48, s48, 128""")
    wt_rows(k, 's48', 49)
    k(f's_mul_i32 s44, {WAVE}, {64*514}\n s_add_u32 s49, s49, s44')
    k.wait(lg=0)
    stamp(k, 1, 'z')
    k('s_mov_b32 s36, s4\n s_and_b32 s37, s5, 0xffff')
    for i in range(4): k(f'buffer_load_dwordx4 {V(X+4*i,4)}, v4, {RC}, s{56+i} offen')
    k(WSRDS)
    if not OPT.get('nowpf'):
        k(f"""v_lshrrev_b32 v15, 1, v3
        v_mul_u32_u24 v15, 514, v15
        v_and_b32 v16, 1, v1
        v_mul_u32_u24 v16, 126, v16
        v_add_u32 v15, v15, v16
        s_mov_b64 exec, 0xffff
        buffer_load_ushort v{WO}, v15, {RA}, s49 offen
        buffer_load_ushort v{WO+1}, v15, {RB}, s49 offen
        s_mov_b64 exec, -1""")
    if OPT.get('gpf') == 2: gb_loads(k)
    if OPT.get('gpf'): gtouch(k, WO+2)
    if OPT.get('gpf') != 2: gb_loads(k)
    k('v_mov_b32 v15, v11')
    wl_ = [f'buffer_load_dwordx4 {V(WL,4)}, v15, {RA}, s49 offen', f'buffer_load_dwordx4 {V(WL+4,4)}, v15, {RB}, s49 offen']
    wt_dest(k, 's48', 50)
    k(f"""s_lshl_b32 s44, {WAVE}, 2
    s_add_u32 s44, s44, 0xa000
    v_add_u32 v12, s44, v12
    s_lshl_b32 s44, {WAVE}, 5
    v_xor_b32 v13, s44, v4
    s_lshl_b32 s44, {WAVE}, 11
    s_add_u32 s44, s44, 0xa000
    v_add_u32 v13, s44, v13
    v_xor_b32 v14, 16, v13
    s_mul_i32 s44, {WAVE}, {16*WT_STRIDE}
    s_add_u32 s50, s50, s44
    s_add_u32 s51, s50, {8*WT_STRIDE}""")
    srd(k, 24, 22, WS_USED)
    k(f"""s_lshl_b32 s44, {WAVE}, 12
    v_add_u32 v30, s44, v4
    v_lshrrev_b32 v31, 1, v4
    v_add_u32 v31, s44, v31
    v_mul_u32_u24 v6, {TPAD}, v3
    v_lshl_add_u32 v6, v2, 8, v6
    s_lshl_b32 s44, {WAVE}, 6
    s_add_u32 s44, s44, 16384
    v_add_u32 v6, s44, v6
    s_mul_i32 s44, {WAVE}, {4*TPAD}
    s_add_u32 s44, s44, 16384
    v_add_u32 v7, s44, v4
    v_cmp_eq_u32 vcc, 0, v3
    v_cndmask_b32 v8, 0, 1.0, vcc
    s_mov_b32 s62, 0x3f803f80
    v_mul_u32_u24 v9, {ZT_STRIDE}, v3
    v_lshl_add_u32 v9, v2, 4, v9
    s_lshr_b32 s44, s60, 5
    s_lshl_b32 s44, s44, 11
    s_bfe_u32 s45, s60, 0x10002
    s_lshl_b32 s46, s45, 10
    s_add_u32 s44, s44, s46
    s_bfe_u32 s46, s60, 0x20003
    s_lshl_b32 s46, s46, 8
    s_add_u32 s44, s44, s46
    s_and_b32 s46, s60, 3
    s_lshl_b32 s47, s46, 6
    s_add_u32 s44, s44, s47
    s_lshl_b32 s63, s60, 7
    s_add_u32 s63, s63, {SM}
    s_mul_i32 s47, {WAVE}, {64*ZT_STRIDE}
    s_add_u32 s44, s44, s47
    s_add_u32 s64, s44, {ZT}
    s_add_u32 s65, s64, {16*ZT_STRIDE}
    s_add_u32 s66, s64, {32*ZT_STRIDE}
    s_add_u32 s67, s64, {48*ZT_STRIDE}
    s_lshl_b32 s44, {WAVE}, 4
    s_add_u32 s44, s44, 0x9000
    v_lshl_add_u32 v10, v2, 2, s44""")
    tl = p2_tables(k)
    wp_ = OPT.get('wpos', 16); tl = tl[:wp_] + wl_ + tl[wp_:]
    if True:
        stamp(k, 2, 'z')
        for i in range(4):
            k(f'ds_write_b128 v30, {V(X+4*i,4)} offset:{1024*i}')
            if i == 0: stamp(k, 1)
            for r in range(2): k(f'ds_read_b64_tr_b16 {V(TR+4*i+2*r,2)}, v31 offset:{1024*i+512*r}')
            for j in range(4):
                k(f'v_dot2_f32_bf16 v{SS+i}, v{X+4*i+j}, s62, {"0" if j==0 else V(SS+i)}')
                k(f'v_dot2_f32_bf16 v{SS+4+i}, v{X+4*i+j}, v{X+4*i+j}, {"0" if j==0 else V(SS+4+i)}')
        stamp(k, 3, 'z')
        k.sprinkle = tl; k.every = OPT.get('tev', 28); k.since = 100
        stamp(k, 4, 'z')
        mf = [f'v_mfma_f32_16x16x32_bf16 {V(DA+8*i+4*c,4)}, {V(TR+4*i,4)}, {A(FA+4*c,4)}, 0' for i in range(4) for c in range(2)]
        k(mf.pop(0)); k(mf.pop(0))
        for b in (SS, SS+4):
            k(f'v_permlane32_swap_b32 v{b}, v{b+2}\n v_permlane32_swap_b32 v{b+1}, v{b+3}')
        for b in (SS, SS+4):
            k(f'v_add_f32 v{b}, v{b}, v{b+2}\n v_add_f32 v{b+1}, v{b+1}, v{b+3}')
        k(mf.pop(0))
        for b in (SS, SS+4): k(f'v_permlane16_swap_b32 v{b}, v{b+1}')
        for b in (SS, SS+4): k(f'v_add_f32 v{b}, v{b}, v{b+1}')
        for sh in (8, 4, 2, 1):
            k(mf.pop(0))
            for b in (SS, SS+4): k(f'v_add_f32_dpp v{b}, v{b}, v{b} row_ror:{sh} row_mask:0xf bank_mask:0xf')
        k(mf.pop(0))
        k(f"""v_mul_f32 v{SS}, {fbits(1/512)}, v{SS}
        v_mul_f32 v{SS+4}, {fbits(1/512)}, v{SS+4}
        v_fma_f32 v{SS+4}, -v{SS}, v{SS}, v{SS+4}
        v_max_f32 v{SS+4}, 0, v{SS+4}
        v_add_f32 v{SS+4}, {fbits(1e-5)}, v{SS+4}
        v_rsq_f32 v{SS+1}, v{SS+4}
        v_mul_f32 v{SS+2}, {fbits(-8.0)}, v{SS}
        v_mul_f32 v{SS+2}, v{SS+2}, v{SS+1}
        v_mul_f32 v{SS+3}, {fbits(0.25)}, v{SS+1}""")
        for i in range(4):
            k(f'v_readlane_b32 s{68+2*i}, v{SS+3}, {16*i}\n v_readlane_b32 s{69+2*i}, v{SS+2}, {16*i}')
        for i in range(4):
            d = DA + 8*i
            k(f'v_mul_f32 v{TR}, s{69+2*i}, v8')
            for h in range(2):
                k(f'v_pk_mul_f32 {V(d+4+2*h,2)}, {V(d+4+2*h,2)}, {Sg(68+2*i,2)} op_sel_hi:[1,0]')
            for h in range(2):
                k(f'v_pk_fma_f32 {V(d+2*h,2)}, {V(d+2*h,2)}, {Sg(68+2*i,2)}, {V(TR,2)} op_sel_hi:[1,0,0]')
            for h in (2, 3, 0, 1): k(f'v_cvt_pk_f16_f32 v{X+4*i+h}, v{d+2*h}, v{d+2*h+1}')
            k(f'ds_write_b128 v6, {V(X+4*i,4)} offset:{16*i}')
        k(f"""v_mul_f32 v{SS+4}, v{SS+4}, v{SS+1}
        ds_write2_b32 v10, v{SS+4}, v{SS} offset0:0 offset1:16""")
        print('tables left', len(k.sprinkle)); flush(k)
        def wt_a():
            for i in range(8):
                k(f'v_perm_b32 v{WO+i}, v{WL+4+(i>>1)}, v{WL+(i>>1)}, s{53+(i&1)}')
                k(f'ds_write_b32 v12, v{WO+i} offset:{128*i}')
        if OPT.get('wtearly'): wt_a()
        k.wait(lg=0); k('s_barrier')
        if OPT.get('zst'): stamp(k, 1)
        stamp(k, 5, 'z')
        for q in range(4): k(f'ds_read_b128 {V(TR+4*q,4)}, v7 offset:{TPAD*q}')
        k(f'ds_read_b128 {V(SS,4)}, v4 offset:0x9000')
        go_load(k, 250)
        wt_b = lambda: [k(f'ds_read_b128 {V(WL+4*n,4)}, v{13+n} offset:{1024*n}') for n in range(2)]
        wt_c = lambda: [k(f'buffer_store_dwordx4 {V(WL+4*n,4)}, v11, {WSR}, s{50+n} offen{ST}') for n in range(2)]
        if OPT.get('wtearly'): wt_b()
        for q in range(4):
            for o in range(2): k(f'v_mfma_f32_16x16x32_f16 {V(DA+8*q+4*o,4)}, {V(TR+4*q,4)}, {A(GB+8*q+4*o,4)}, 0')
        k.wait(lg=0)
        if OPT.get('wtearly'): wt_c()
        only_wave(k, 3, lambda: k(f's_mov_b64 exec, 0xff\n buffer_store_dwordx4 {V(SS,4)}, v4, {WSR}, s63 offen{ST}'))
        for q in range(4):
            for h in range(4): k(f'v_cvt_pk_f16_f32 v{X+4*q+h}, v{DA+8*q+2*h}, v{DA+8*q+2*h+1}')
            k(f'buffer_store_dwordx4 {V(X+4*q,4)}, v9, {WSR}, s{64+q} offen{ST}')
        stamp(k, 6, 'z')
        if not OPT.get('wtearly'):
            wt_a(); k.wait(lg=0); k('s_barrier'); wt_b(); wt_c()
        stamp(k, 2)

def p1_w(k):
    OP, DA = 32, 64
    TBASE = 32768
    k(f"""s_and_b32 s61, s2, 1               ; mu
    s_bfe_u32 s60, s2, 0x60001
    s_and_b32 s44, s60, 3
    s_lshl_b32 s44, s44, 1
    s_bfe_u32 s45, s60, 0x10002
    s_add_u32 s44, s44, s45
    s_andn2_b32 s45, s60, 7
    s_add_u32 s44, s44, s45
    s_cmp_lt_u32 s60, 40
    s_cselect_b32 s60, s44, s60        ; phi""" + ("""
    s_bfe_u32 s44, s2, 0x20001
    s_mul_i32 s44, s44, 11
    s_bfe_u32 s45, s2, 0x40003
    s_add_u32 s60, s44, s45""" if OPT.get('wcont') else '') + f"""
    s_mul_i32 s44, {WAVE}, {4*2752}
    s_lshl_b32 s45, s60, 6
    s_add_u32 s62, s44, s45
    v_lshrrev_b32 v10, 2, v1
    v_mul_u32_u24 v30, {16*2752}, v10
    v_and_b32 v11, 3, v1
    v_and_b32 v12, 1, v2
    v_lshlrev_b32 v12, 1, v12
    v_xor_b32 v13, v11, v12
    v_lshl_add_u32 v30, v13, 4, v30    ; DMA source
    s_lshl_b32 s63, {WAVE}, 13
    s_mov_b32 s38, {D*F*2}
    s_mov_b32 s39, 0x20000
    """)
    k(f"""s_bfe_u32 s64, s2, 0x40003
    s_lshl_b32 s64, s64, 2
    s_add_u32 s64, s64, {WAVE}
    s_mul_i32 s64, s64, {12*2752}
    s_bfe_u32 s46, s2, 0x20001
    s_mul_i32 s46, s46, 704
    s_add_u32 s64, s64, s46
    s_add_u32 s65, s64, {8*2752}
    v_and_b32 v14, 7, v1
    v_lshlrev_b32 v14, 7, v14
    v_min_u32 v14, 700, v14
    v_lshrrev_b32 v15, 3, v1
    v_mul_u32_u24 v15, 2752, v15
    v_add_u32 v14, v14, v15""")
    if OPT.get('wgbfirst'): gb_loads(k)
    k.wait(lg=0)
    stamp(k, 1, 'z')
    k(f"""s_cmp_eq_u32 s61, 0
    s_cselect_b32 s36, s12, s14
    s_cselect_b32 s37, s13, s15
    s_and_b32 s37, s37, 0xffff""")
    if not OPT.get('nowt2'):
        k(f"""s_mov_b32 exec_lo, 0x7f7f7f7f
        s_mov_b32 exec_hi, 0x7f7f7f7f
        buffer_load_dword v20, v14, {RC}, s64 offen
        s_mov_b32 exec_hi, 0
        buffer_load_dword v21, v14, {RC}, s65 offen
        s_mov_b64 exec, -1""")
    pos = []
    for n in range(8):
        k(f's_add_u32 m0, s63, {1024*n}\n s_add_u32 s44, s62, {((n>>1) + 256*(n&1))*2752}')
        k(f'buffer_load_dwordx4 v30, {RC}, s44 offen lds'); pos.append(k.nvm)
    if not OPT.get('wgbfirst'): gb_loads(k)
    srd(k, 24, 22, WS_USED)
    k(f"""v_lshlrev_b32 v31, 6, v10
    v_lshl_add_u32 v31, v12, 4, v31
    v_lshl_add_u32 v31, v11, 3, v31
    v_add_u32 v30, s63, v31
    v_xor_b32 v31, 32, v30
    v_mul_u32_u24 v6, {4*TPAD}, v2
    v_lshl_add_u32 v6, v3, 4, v6
    s_lshl_b32 s44, {WAVE}, 8
    s_add_u32 s44, s44, {TBASE}
    v_add_u32 v6, s44, v6              ; T write
    s_mul_i32 s44, {WAVE}, {4*TPAD}
    s_add_u32 s44, s44, {TBASE}
    v_add_u32 v7, s44, v4              ; T read
    s_lshl_b32 s44, s60, 2
    v_lshrrev_b32 v12, 3, v3
    v_and_b32 v13, 7, v3
    v_lshlrev_b32 v13, 4, v13
    v_lshl_add_u32 v13, v2, 8, v13
    s_lshl_b32 s45, {WAVE}, 12
    s_add_u32 s62, s45, {WP}
    v_mov_b32 v19, s61""")
    for pp in range(2):
        k(f"""v_add_u32 v14, s44, v12            ; octet
        v_mul_u32_u24 v15, 373, v14
        v_lshrrev_b32 v15, 12, v15
        v_add_u32 v14, v14, v15            ; q
        v_mul_u32_u24 v15, 171, v14
        v_lshrrev_b32 v15, 9, v15
        v_mul_u32_u24 v15, 3, v15          ; q - q%3
        v_sub_u32 v16, v14, v15            ; n
        v_cmp_eq_u32 vcc, 2, v16
        v_add_u32 v15, s61, v15
        s_add_u32 s44, s44, 2
        v_cndmask_b32 v15, v15, v14, vcc   ; tile
        v_cndmask_b32 v16, v16, v19, vcc
        v_lshl_add_u32 v{8+pp}, v15, 14, v13
        v_lshl_add_u32 v{8+pp}, v16, 7, v{8+pp}""")
    tl = p2_tables(k)
    stamp(k, 2, 'z')
    for dl in range(4):
        k(f's_waitcnt vmcnt({k.nvm - pos[2*dl+1]})')
        if dl == 0: stamp(k, 1)
        for pi in range(2):
            for h in range(2): k(f'ds_read_b64_tr_b16 {V(OP+8*dl+4*pi+2*h,2)}, v{30+pi} offset:{2048*dl+1024*h}')
    stamp(k, 3, 'z')
    k.sprinkle = tl; k.every = OPT.get('tev', 28); k.since = 100
    for dl in range(4):
        for pi in range(2):
            for c in range(2):
                k(f'v_mfma_f32_16x16x32_bf16 {V(DA+32*pi+16*c+4*dl,4)}, {A(FA+4*c,4)}, {V(OP+8*dl+4*pi,4)}, 0')
    for pi in range(2):
        for r in range(4):
            u = OP + 16*pi + 4*r
            for c in range(2):
                for h in range(2):
                    d = DA + 32*pi + 16*c + 8*h + r
                    k(f'v_cvt_pk_bf16_f32 v{u+2*c+h}, v{d}, v{d+4}')
            k(f'ds_write_b128 v6, {V(u,4)} offset:{16*TPAD*pi+TPAD*r}')
    flush(k)
    stamp(k, 4, 'z')
    k.wait(lg=0); k('s_barrier')
    stamp(k, 5, 'z')
    for pi in range(2):
        for q in range(4): k(f'ds_read_b128 {V(OP+16*pi+4*q,4)}, v7 offset:{16*TPAD*pi+TPAD*q}')
    go_load(k, 250)
    for pi in range(2):
        for q in range(4):
            for o in range(2):
                k(f'v_mfma_f32_16x16x32_bf16 {V(DA+32*pi+8*q+4*o,4)}, {A(GB+8*q+4*o,4)}, {V(OP+16*pi+4*q,4)}, 0')
    for pi in range(2):
        for p in range(2):
            for o in range(2):
                u = OP + 16*pi + 8*p + 4*o
                for hq in range(2):
                    for h in range(2):
                        d = DA + 32*pi + 8*(2*p+hq) + 4*o + 2*h
                        k(f'v_cvt_pk_bf16_f32 v{u+2*hq+h}, v{d}, v{d+1}')
                k(f'buffer_store_dwordx4 {V(u,4)}, v{8+pi}, {WSR}, s62 offen offset:{(2*p+o)*1024}{ST}')
    stamp(k, 2); stamp(k, 6, 'z')

def wt_rows(k, task, dst):
    k(f"""s_bfe_u32 s44, {task}, 0x30002
    s_lshl_b32 s44, s44, 3
    s_lshr_b32 s45, {task}, 5
    s_lshl_b32 s45, s45, 8
    s_add_u32 s44, s44, s45
    s_mul_i32 s{dst}, s44, 514
    s_and_b32 s45, {task}, 3
    s_lshl_b32 s45, s45, 7
    s_add_u32 s{dst}, s{dst}, s45
    s_add_u32 s{dst}, s{dst}, 2
    v_lshrrev_b32 v12, 3, v1
    v_and_b32 v13, 7, v1
    v_mul_u32_u24 v11, 514, v12
    v_lshl_add_u32 v11, v13, 4, v11
    s_mov_b32 s30, {2048*257*2}
    s_mov_b32 s31, 0x20000
    s_mov_b32 s34, {2048*257*2}
    s_mov_b32 s35, 0x20000""")
def wt_dest(k, task, dst):
    k(f"""s_and_b32 s44, {task}, 3
    s_mul_i32 s{dst}, s44, {64*WT_STRIDE}
    s_lshr_b32 s44, {task}, 7
    s_lshl_b32 s44, s44, 12
    s_add_u32 s{dst}, s{dst}, s44
    s_bfe_u32 s44, {task}, 0x20003
    s_lshl_b32 s44, s44, 10
    s_add_u32 s{dst}, s{dst}, s44
    s_bfe_u32 s44, {task}, 0x20005
    s_lshl_b32 s44, s44, 8
    s_add_u32 s{dst}, s{dst}, s44
    s_bfe_u32 s44, {task}, 0x10002
    s_lshl_b32 s44, s44, 7
    s_add_u32 s{dst}, s{dst}, s44
    s_add_u32 s{dst}, s{dst}, {WT}
    s_mov_b32 s53, 0x05040100
    s_mov_b32 s54, 0x07060302
    v_mul_u32_u24 v11, {WT_STRIDE}, v12
    v_lshl_add_u32 v11, v13, 4, v11
    v_xor_b32 v12, v12, v13
    v_lshlrev_b32 v12, 4, v12
    v_lshl_add_u32 v12, v13, 10, v12""")
WSRDS = 's_mov_b32 s28, s6\n s_and_b32 s29, s7, 0xffff\n s_mov_b32 s32, s8\n s_and_b32 s33, s9, 0xffff'
def p1_t(k):
    WL, WO = 32, 64
    k(f's_sub_u32 s48, s2, {NC0}\n s_lshl_b32 s48, s48, 2\n s_add_u32 s48, s48, {WAVE}')
    wt_rows(k, 's48', 49)
    for r in range(1, 4): k(f's_add_u32 s{49+r}, s49, {64*r*514}')
    k.wait(lg=0)
    k(WSRDS)
    for r in range(4):
        k(f'buffer_load_dwordx4 {V(WL+8*r,4)}, v11, {RA}, s{49+r} offen')
        k(f'buffer_load_dwordx4 {V(WL+8*r+4,4)}, v11, {RB}, s{49+r} offen')
    srd(k, 24, 22, WS_USED)
    wt_dest(k, 's48', 56)
    k(f's_lshl_b32 s44, {WAVE}, 13\n v_add_u32 v12, s44, v12\n v_add_u32 v14, s44, v4')
    for n in range(1, 8): k(f's_add_u32 s{56+n}, s56, {8*n*WT_STRIDE}\n v_xor_b32 v{14+n}, {16*n}, v14')
    tl = p2_tables(k)
    for i in range(8):
        o = WO + 4*i
        for r in range(4): k(f'v_perm_b32 v{o+r}, v{WL+8*r+4+(i>>1)}, v{WL+8*r+(i>>1)}, s{53+(i&1)}')
        k(f'ds_write_b128 v12, {V(o,4)} offset:{128*i}')
        for t in tl[2*i:2*i+2]: k(t)
    stamp(k, 1)
    for n in range(8): k(f'ds_read_b128 {V(WL+4*n,4)}, v{14+n} offset:{1024*n}')
    go_load(k, 250)
    for n in range(8): k(f'buffer_store_dwordx4 {V(WL+4*n,4)}, v11, {WSR}, s{56+n} offen{ST}')
    stamp(k, 2)

def p1_i(k):
    k.wait(lg=0)
    srd(k, 24, 22, WS_USED)
    k(f"""s_lshl_b32 s44, s2, 2
    s_add_u32 s44, s44, {WAVE}
    s_cmp_lg_u32 s44, {255*4}
    s_cbranch_scc1 L_noinit
    v_lshlrev_b32 v30, 8, v1
    v_lshlrev_b32 v31, 8, v3
    v_mov_b32 v32, 0
    s_mov_b32 s44, {FLG}
    s_mov_b32 s45, {FLG+16384}
    buffer_store_dword v32, v30, {WSR}, s44 offen{ST}
    buffer_store_dword v32, v30, {WSR}, s45 offen{ST}
    buffer_store_dword v32, v31, {WSR}, 0 offen{ST}
    v_mov_b32 v33, 1
    s_waitcnt vmcnt(0)
    s_mov_b64 exec, 1
    global_store_dword v32, v33, s[20:21]{ST}
    s_mov_b64 exec, -1""")
    k.label('L_noinit')
    k(f"""s_sub_u32 s60, s2, {NI0}
    s_lshl_b32 s61, s60, 1
    s_lshr_b32 s44, {WAVE}, 1
    s_add_u32 s61, s61, s44            ; t
    s_and_b32 s62, {WAVE}, 1
    s_lshl_b32 s62, s62, 2             ; p
    s_add_u32 s63, s62, 4
    s_lshl_b32 s44, s61, 5
    s_add_u32 s44, s44, 1
    v_lshl_add_u32 v30, v3, 1, s44     ; 2d+1
    v_and_b32 v31, 1, v2
    v_lshlrev_b32 v31, 7, v31
    v_cmp_lt_u32 s[64:65], 1, v2
    v_mov_b32 v36, {fbits(1/16)}
    s_mul_i32 s61, s61, {12*16384}
    s_add_u32 s61, s61, {WP+11*16384}""")
    for t in p2_tables(k): k(t)
    stamp(k, 1)
    k.fence(); k.label('L_inv')
    k(f"""s_lshl_b32 s44, s62, 1
    s_sub_u32 s45, 32, s44
    s_cmp_eq_u32 s44, 0
    s_cselect_b32 s45, 16, s45
    v_mov_b32 v33, s44
    v_mov_b32 v34, s45
    v_cndmask_b32 v33, v33, v34, s[64:65]
    v_add_u32 v33, v33, v31
    s_add_u32 s44, s44, 1
    s_sub_u32 s45, 32, s44
    v_mov_b32 v34, s44
    v_mov_b32 v35, s45
    v_cndmask_b32 v34, v34, v35, s[64:65]
    v_add_u32 v34, v34, v31
    v_cmp_eq_u32 vcc, 0, v33
    v_mov_b32 v35, 0x100
    v_mov_b32 v37, {fbits(1/math.sqrt(512))}
    v_cndmask_b32 v35, v33, v35, vcc
    v_cndmask_b32 v37, v36, v37, vcc
    s_lshl_b32 s45, s62, 11
    s_add_u32 s66, s61, s45""")
    for e in range(8):
        src = 'v35' if e == 0 else None
        if e: k(f'v_add_u32 v{40+e}, {32*(e&3)}, v{33+(e>>2)}')
        k(f'v_mul_u32_u24 v{40+e}, {src or V(40+e)}, v30')
        k(f'v_and_b32 v{40+e}, 0x3ff, v{40+e}')
        k(f'v_cvt_f32_u32 v{40+e}, v{40+e}')
        k(f'v_mul_f32 v{40+e}, {fbits(1/1024)}, v{40+e}')
    for e in range(8):
        k(f'v_cos_f32 v{48+e}, v{40+e}\n v_sin_f32 v{56+e}, v{40+e}')
    for e in range(8):
        sc = 'v37' if e == 0 else 'v36'
        k(f'v_mul_f32 v{48+e}, {sc}, v{48+e}\n v_mul_f32 v{56+e}, {sc}, -v{56+e}')
    for part in range(2):
        for h in range(4): k(f'v_cvt_pk_bf16_f32 v{64+4*part+h}, v{48+8*part+2*h}, v{48+8*part+2*h+1}')
        k(f'buffer_store_dwordx4 {V(64+4*part,4)}, v4, {WSR}, s66 offen offset:{1024*part}{ST}')
    k('s_add_u32 s62, s62, 1\n s_cmp_lt_u32 s62, s63\n s_cbranch_scc1 L_inv')
    go_load(k, 250)
    stamp(k, 2)

WDL = 40
def wd_issue(k):
    srd(k, 36, 16, F*D*2)
    k(f"""s_lshl_b32 s44, {WAVE}, 7
    s_add_u32 s44, s44, s2
    s_sub_u32 s73, s44, 128
    s_cmp_lt_u32 s2, {NZ}
    s_cselect_b32 s73, s73, 352
    s_min_u32 s73, s73, 352
    s_lshr_b32 s44, s73, 1
    s_lshl_b32 s44, s44, 13
    s_and_b32 s45, s73, 1
    s_lshl_b32 s45, s45, 9
    s_add_u32 s44, s44, s45
    s_add_u32 s45, s44, 4096
    v_lshlrev_b32 v20, 3, v1""")
    for e in range(8): k(f'buffer_load_dwordx2 {V(WDL+2*e,2)}, v20, {RC}, s{44+(e>>2)} offen offset:{1024*(e&3)}')
def wd_finish(k, inp2=False):
    if not inp2:
        k(f's_cmp_ge_u32 s73, 352\n s_cbranch_scc1 L_nowd')
        st = k.state()
    k(f"""s_lshr_b32 s44, s73, 4
    s_bfe_u32 s45, s73, 0x20002
    s_mul_i32 s45, s45, 22
    s_add_u32 s44, s44, s45
    s_and_b32 s45, s73, 1
    s_mul_i32 s45, s45, {4*88}
    s_add_u32 s44, s44, s45
    s_lshl_b32 s44, s44, 11
    s_bfe_u32 s45, s73, 0x10001
    s_lshl_b32 s45, s45, 9
    s_add_u32 s44, s44, s45
    s_add_u32 s44, s44, {WD}
    s_cmp_lt_u32 s73, 352
    s_cselect_b32 s44, s44, {WS_USED}
    s_mov_b32 s46, 0x05040100
    s_mov_b32 s47, 0x07060302
    v_mul_u32_u24 v30, {88*2048}, v2
    v_bfe_u32 v31, v1, 3, 1
    v_lshl_add_u32 v30, v31, 10, v30
    v_and_b32 v31, 7, v1
    v_lshl_add_u32 v30, v31, 4, v30""")
    for pi in range(4):
        o = WDL + 16 + 4*(pi & 1)
        for h in range(4): k(f'v_perm_b32 v{o+h}, v{WDL+4*h+2+(pi>>1)}, v{WDL+4*h+(pi>>1)}, s{46+(pi&1)}')
        k(f'buffer_store_dwordx4 {V(o,4)}, v30, {WSR}, s44 offen offset:{128*pi}{ST}')
    if not inp2:
        k.fence()
        k.restore(st); k.label('L_nowd')

STATL = 131072
def p4_ids(k):
    k(f"""s_and_b32 s44, s2, 7
    s_lshl_b32 s44, s44, 2
    s_bfe_u32 s46, s2, 0x20003
    s_add_u32 s44, s44, s46
    s_lshr_b32 s45, s2, 5""")

def setup(k):
    if OPT.get('x216'):
        k(f"""s_and_b32 s44, s2, 7
        s_lshl_b32 s44, s44, 1
        s_bfe_u32 s45, s2, 0x10003
        s_add_u32 s48, s44, s45
        s_lshr_b32 s49, s2, 4
        s_lshl_b32 s45, s45, 2
        s_mov_b32 s46, s49""")
    elif OPT.get('x48'):
        k(f"""s_and_b32 s44, s2, 3
        s_lshl_b32 s44, s44, 2
        s_bfe_u32 s45, s2, 0x20003
        s_add_u32 s48, s44, s45
        s_and_b32 s44, s2, 4
        s_lshl_b32 s44, s44, 1
        s_lshr_b32 s46, s2, 5
        s_add_u32 s49, s44, s46
        s_lshl_b32 s45, s45, 1""")
    else:
        k(f"""s_and_b32 s44, s2, 1
        s_lshl_b32 s44, s44, 3
        s_bfe_u32 s45, s2, 0x30003
        s_add_u32 s48, s44, s45
        s_bfe_u32 s44, s2, 0x20001
        s_lshl_b32 s44, s44, 2
        s_lshr_b32 s46, s2, 6
        s_add_u32 s49, s44, s46
        s_lshl_b32 s46, s46, 1""")
    k(f"""s_mov_b32 s53, 0
    s_lshl_b32 s46, s48, 11
    s_lshl_b32 s47, s49, 7
    s_add_u32 s41, s46, s47
    s_add_u32 s41, s41, {RBF}
    v_mov_b32 v250, 0""")
    stamp(k, 7, 'z')
    k(f"""v_and_b32 v23, 7, v1
    v_lshlrev_b32 v23, 8, v23
    s_and_b32 s74, s2, 7
    s_lshl_b32 s74, s74, 8
    s_add_u32 s75, s74, {FLG}
    s_sub_u32 s44, s2, {NZ}
    s_cmp_lt_u32 s44, {NC0-NZ}
    s_cselect_b32 s46, 1, 0
    s_cmp_ge_u32 s2, {NI0}
    s_cselect_b32 s46, 1, s46
    s_lshl_b32 s44, s46, 11
    s_lshl_b32 s45, s46, 14
    s_lshl_b32 s46, s46, 3
    s_sub_u32 s70, 19, s46
    s_add_u32 s71, s74, s44
    s_add_u32 s72, s75, s45
    s_lshl_b32 s44, s74, 3
    s_add_u32 s44, s44, {FLG+16384}
    v_add_u32 v23, s44, v23
    v_mov_b32 v251, 1
    s_mov_b32 s63, 0x80008000""")
    wd_issue(k)
    if OPT.get('searly'): setup_late(k)

def setup_late(k):
    k(f"""s_lshl_b32 s44, {WAVE}, 4
    v_add_u32 v240, s44, v3
    v_cvt_f32_u32 v240, v240
    v_mul_f32 v240, {fbits(1/2048)}, v240
    v_lshlrev_b32 v241, 2, v2
    v_add_u32 v242, s44, v241
    v_cvt_f32_u32 v241, v241
    v_cvt_f32_u32 v242, v242
    v_cvt_f32_u32 v243, v3
    v_mul_f32 v243, {fbits(1/2048)}, v243""")
    for be in range(2):
        for r in range(4):
            t = TW1 + 8*be + r
            k(f'v_add_f32 v{t}, {fbits(16*be+r)}, v241\n v_mul_f32 v{t}, v{t}, v240')
            k(f'v_sin_f32 v{t+4}, v{t}\n v_cos_f32 v{t}, v{t}')
    for be in range(2):
        if be: k(f'v_add_f32 v243, {fbits(16/2048)}, v243')
        for r in range(4):
            t = TW2 + 8*be + r
            k(f'v_add_f32 v{t}, {fbits(r)}, v242\n v_mul_f32 v{t}, v{t}, v243')
            k(f'v_sin_f32 v{t+4}, v{t}\n v_cos_f32 v{t}, v{t}')
    k(f's_mul_i32 s44, s2, {ZT_STRIDE}\n s_add_u32 s44, s44, {ZT}')
    for u in range(4):
        k(f's_add_u32 s45, {WAVE}, {u}\n s_and_b32 s45, s45, 3\n s_lshl_b32 s45, s45, 11\n s_add_u32 s{55+u}, s44, s45\n v_add_u32 v{16+u}, s45, v4')
    k(f"""s_lshr_b32 s44, s2, 4
    s_sub_u32 s45, 32, s44
    s_cmp_eq_u32 s44, 0
    s_cselect_b32 s45, 16, s45
    s_bitcmp1_b32 s2, 3
    s_cselect_b32 s44, s45, s44
    s_and_b32 s45, s2, 7
    s_lshl_b32 s45, s45, 5
    s_add_u32 s44, s44, s45
    s_sub_u32 s44, s44, 1
    s_and_b32 s44, s44, 255
    s_mul_i32 s44, s44, {WT_STRIDE}
    s_lshl_b32 s45, {WAVE}, 10
    s_add_u32 s44, s44, s45
    s_add_u32 s59, s44, {WT}
    s_add_u32 s60, s59, 4096
    s_lshl_b32 s45, {WAVE}, 12
    s_add_u32 s61, s45, {SM}
    v_lshrrev_b32 v21, 2, v3
    v_lshlrev_b32 v21, 7, v21
    v_lshl_add_u32 v21, v2, 10, v21
    v_and_b32 v22, 3, v1
    v_lshl_add_u32 v22, v22, 4, v21
    s_mov_b32 s63, 0x80008000""")

def setup2(k):
    k(f"""v_lshrrev_b32 v20, 2, v1
    v_lshlrev_b32 v20, 15, v20
    v_and_b32 v24, 3, v1
    v_lshl_add_u32 v20, v24, 4, v20
    s_lshr_b32 s44, s2, 5
    s_lshl_b32 s44, s44, 6
    s_and_b32 s45, s2, 31
    s_add_u32 s44, s44, s45
    s_lshl_b32 s44, s44, 6
    s_lshl_b32 s45, {WAVE}, 19
    s_add_u32 s44, s44, s45
    s_add_u32 s62, s44, {HT}
    s_mul_i32 s44, s49, 11
    s_mul_i32 s45, {WAVE}, 3
    s_add_u32 s50, s44, s45
    s_add_u32 s44, s50, s49
    s_lshl_b32 s44, s44, 14
    s_add_u32 s44, s44, {WP}
    v_add_u32 v248, s44, v4
    v_add_u32 v249, 0x4000, v248
    v_add_u32 v255, 0x8000, v248
    s_and_b32 s46, {WAVE}, 1
    s_lshr_b32 s47, {WAVE}, 1
    s_lshl_b32 s45, s46, 15
    s_lshl_b32 s54, s47, 12
    s_add_u32 m0, s54, s45
    s_lshl_b32 s44, s48, 17
    s_add_u32 s44, s44, {HT}
    v_and_b32 v6, 1, v2
    v_lshlrev_b32 v6, 5, v6
    v_xor_b32 v5, v6, v4
    v_add_u32 v5, s44, v5
    v_lshrrev_b32 v7, 2, v1
    v_lshl_add_u32 v6, v7, 6, v6
    v_lshl_add_u32 v6, v24, 3, v6
    s_lshl_b32 s44, s47, 5
    s_add_u32 s44, s44, s45
    v_xor_b32 v6, s44, v6
    v_xor_b32 v7, 32, v6
    v_lshrrev_b32 v9, 2, v3
    v_cmp_eq_u32 vcc, v9, v2
    s_lshl_b32 s47, s47, 8
    s_lshl_b32 s44, s46, 9
    s_add_u32 s44, s44, s47
    s_add_u32 s44, s44, {STATL}
    v_lshl_add_u32 v10, v3, 4, s44     ; statistics reads
    v_xor_b32 v8, 0x100, v10
    v_add_u32 v9, {STATL+2048}, v4
    v_cndmask_b32 v9, v9, v10, vcc     ; statistics write (other lanes go to a dummy area)
    v_lshrrev_b32 v24, 1, v2
    v_lshlrev_b32 v11, 8, v24
    v_xor_b32 v11, v11, v10            ; statistics for the mixed tile
    s_mov_b32 s64, 0x22222222
    s_mov_b32 s65, s64
    s_mov_b32 s66, 0x44444444
    s_mov_b32 s67, s66
    s_mov_b32 s68, 0x88888888
    s_mov_b32 s69, s68
    v_add_u32 v25, s50, v24
    v_lshrrev_b32 v12, 1, v25
    v_lshlrev_b32 v12, 16, v12
    v_and_b32 v25, 1, v25
    v_lshl_add_u32 v12, v25, 9, v12
    v_and_b32 v25, 31, v1
    v_lshl_add_u32 v12, v25, 4, v12
    v_xor_b32 v12, s47, v12
    s_add_u32 s44, s50, 2
    s_lshr_b32 s45, s44, 1
    s_lshl_b32 s45, s45, 16
    s_and_b32 s44, s44, 1
    s_lshl_b32 s44, s44, 9
    s_add_u32 s44, s44, s45
    v_lshl_add_u32 v13, v24, 8, s44
    v_lshl_add_u32 v13, v3, 4, v13
    v_and_b32 v25, 1, v2
    v_xor_b32 v25, 1, v25
    v_lshlrev_b32 v25, 10, v25
    v_xor_b32 v13, s47, v13
    s_lshl_b32 s44, s46, 1
    s_sub_u32 s44, 1, s44
    v_mul_i32_i24 v25, s44, v25
    v_sub_u32 v13, v13, v25""")
    wsrd(k, 32, HF+86*65536)
    if OPT.get('wtouch'):
        k(f"""s_and_b32 s44, s48, 7
        s_lshl_b32 s44, s44, 11
        v_sub_u32 v14, v248, v4
        v_lshl_add_u32 v14, v2, 14, v14
        v_lshl_add_u32 v14, v3, 7, v14
        v_add_u32 v14, s44, v14
        v_cmp_gt_u32 vcc, 3, v2
        v_cndmask_b32 v14, -1, v14, vcc""")

def p2_negs(k, base):
    for u in range(4):
        for h in range(2): k(f'v_xor_b32 v{base+6*u+h}, s63, v{base+6*u+4+h}')

def wd_reg(u, i): return A(192+8*u+4*i, 4) if u < 8 else V(144+8*(u-8)+4*i, 4)
def wd_loads(u):
    o = [f'buffer_load_dwordx4 {wd_reg(u+s,i)}, v15, {WSR}, s51 offen offset:{2048*s+1024*i}{LD}' for s in range(2) for i in range(2)]
    return o + ['s_add_u32 s51, s51, 4096']
def wloads(R=RA):
    return [f'buffer_load_dwordx4 {A(12*ka+4*t,4)}, v{(248, 249, 255)[t]}, {R}, {("0", "s70", "s71", "s72")[ka>>2]} offen offset:{1024*(ka&3)}{LD}' for ka in range(16) for t in range(3)]

def p2(k):
    Z, WW, SG, DD, TT, PK = 32, 64, 80, 88, 104, 240
    for u in range(1 if not OPT.get('zall') else 4):
        for be in range(2): k(f'buffer_load_dwordx4 {V(Z+8*u+4*be,4)}, v4, {WSR}, s{55+u} offen offset:{1024*be}{LD}')
    lds_ = f"""buffer_load_dwordx4 {V(WW+4,4)}, v4, {WSR}, s59 offen{LD}
    buffer_load_dwordx4 {V(WW+12,4)}, v4, {WSR}, s60 offen{LD}
    buffer_load_dwordx4 {V(SG,4)}, v22, {WSR}, s61 offen{LD}
    buffer_load_dwordx4 {V(SG+4,4)}, v22, {WSR}, s61 offen offset:512{LD}""".split('\n')
    lds_.insert(OPT.get('fpos', 2), f'buffer_load_dword v26, v23, {WSR}, 0 offen{LD}')
    if OPT.get('wnow'):
        for t in lds_: k(t)
    else:
        k.sprinkle = [t.strip() for t in lds_]; k.every = 60; k.since = 0
    setup2(k); flush(k)
    if not OPT.get('wdshadow'): wd_finish(k, True)
    k(f"""s_mov_b32 s28, s24
    s_mov_b32 s29, s25
    s_mov_b32 s31, 0x20000
    s_mov_b32 s36, s24
    s_mov_b32 s37, s25
    s_mov_b32 s39, 0x20000
    s_mov_b32 s70, 4096
    s_mov_b32 s71, 8192
    s_mov_b32 s72, 12288""")
    def check1():
        k(f'v_cmp_ne_u32 vcc, 1, v26\n s_cmp_eq_u64 vcc, 0\n s_cselect_b32 s30, {WS_USED}, 0')
        k(f'buffer_load_dword v27, v23, {WSR}, 0 offen{LD}')
        if OPT.get('wtouch'): k(f'buffer_load_dword v25, v14, {RA}, 0 offen{LD}')
        k.sprinkle = wloads(); k.every = OPT.get('every', 64); k.since = 100; k.lazy = OPT.get('lazy', 1)
    def unpack():
        for t in range(2):
            for r in range(4):
                k(f'v_lshlrev_b32 v{WW+8*t+r}, 16, v{WW+8*t+4+r}\n v_and_b32 v{WW+8*t+4+r}, 0xffff0000, v{WW+8*t+4+r}')
    if not OPT.get('zall'):
        for be in range(2): k(f'ds_write_b128 v16, {V(Z+4*be,4)} offset:{8192+1024*be}')
    for u in range(4):
        for be in range(2):
            for o in range(2):
                d = V(DD+8*be+4*o, 4)
                k(f'v_mfma_f32_16x16x32_f16 {d}, {V(Z+8*u+4*be,4)}, {V(B1+6*u+2-2*o,4)}, {"0" if u==0 else d}')
        if u == 0:
            stamp(k, 5); stamp(k, 2, 'b')
            if not OPT.get('zall'):
                k.wait(lg=0); k('s_barrier')
                for v in range(1, 4):
                    for be in range(2): k(f'ds_read_b128 {V(Z+8*v+4*be,4)}, v{16+v} offset:{8192+1024*be}')
                if OPT.get('c1') == 0: check1()
    if OPT.get('c1') == 1: check1()
    E = Z + 8
    for be in range(2):
        cmul(k, DD+8*be, DD+8*be+4, TW1+8*be, TW1+8*be+4, TT, TT+4, True)
        for h in range(4): k(f'v_cvt_pk_f16_f32 v{PK+4*be+h}, v{TT+2*h}, v{TT+2*h+1}')
        for t in range(2):
            for o in range(2):
                d = V(E+8*t+4*o, 4)
                k(f'v_mfma_f32_16x16x32_f16 {d}, {V(A2+6*(2*t+be)+2-2*o,4)}, {V(PK+4*be,4)}, {"0" if be==0 else d}')
    def check2():
        global n1
        n1 = 48 - len(k.sprinkle); k.sprinkle = []
        k(f'v_cmp_ne_u32 vcc, 1, v27\n s_cmp_eq_u64 vcc, 0\n s_cselect_b32 s38, {WS_USED}, 0')
        if OPT.get('wtouch') == 2: k(f's_sub_u32 s44, {WS_USED}, s30\n s_cselect_b32 s44, 0, 0\n s_cmp_eq_u32 s30, 0\n s_cselect_b32 s44, 0, {WS_USED}\n buffer_load_dword v25, v14, {RC}, s44 offen{LD}')
        k.sprinkle = wloads(RC)[n1:]
    if OPT.get('c1') == 2: check1()
    unpack()
    stamp(k, 3, 'b')
    if OPT.get('c2', 0) == 0: check2()
    for t in range(2):
        cmul(k, E+8*t, E+8*t+4, WW+8*t, WW+8*t+4, TT, TT+4, False)
        for h in range(4): k(f'v_cvt_pk_bf16_f32 v{PK+4*t+h}, v{TT+2*h}, v{TT+2*h+1}')
        for be in range(2):
            for o in range(2):
                d = V(DD+8*be+4*o, 4)
                k(f'v_mfma_f32_16x16x32_bf16 {d}, {V(PK+4*t,4)}, {V(B3+6*(2*be+t)+2-2*o,4)}, {"0" if t==0 else d}')
    if OPT.get('c2', 0) == 1: check2()
    for be in range(2):
        cmul(k, DD+8*be, DD+8*be+4, TW2+8*be, TW2+8*be+4, TT, TT+4, False)
        for h in range(4): k(f'v_cvt_pk_bf16_f32 v{PK+4*be+h}, v{TT+2*h}, v{TT+2*h+1}')
        k(f'ds_write_b128 v16, {V(PK+4*be,4)} offset:{1024*be}')
    def step4(u, src):
        for be in range(2):
            for o in range(2):
                d = V(DD+8*be+4*o, 4)
                k(f'v_mfma_f32_16x16x32_bf16 {d}, {V(A4+6*u+2-2*o,4)}, {V(src+4*be,4)}, {d}')
    for o in range(2):
        for be in range(2):
            for r in range(4):
                d = DD+8*be+4*o+r; hi = r & 1
                k(f'v_fma_mix_f32 v{d}, v{SG+4*be+r}, v{Z+4*be+2*o+(r>>1)}, 0 op_sel:[0,{hi},0] op_sel_hi:[0,1,0]')
    stamp(k, 4, 'b')
    k.wait(lg=0); k('s_barrier')
    for u in range(1, 4):
        for be in range(2): k(f'ds_read_b128 {V(Z+8*u+4*be,4)}, v{16+u} offset:{1024*be}')
    step4(0, PK)
    for u in range(1, 4): step4(u, Z+8*u)
    OUT = 64
    rest, k.sprinkle = k.sprinkle, []
    for o in range(2):
        for be in range(2):
            for h in range(2): k(f'v_cvt_pk_bf16_f32 v{OUT+4*o+2*be+h}, v{DD+8*be+4*o+2*h}, v{DD+8*be+4*o+2*h+1}')
    k('s_cmp_lg_u32 s2, 0\n s_cbranch_scc1 L_p2_st')
    for h in range(4): k(f'v_mov_b32 v{OUT+4+h}, v{OUT+h}\n v_mov_b32 v{OUT+h}, 0')
    k.label('L_p2_st')
    for o in range(2): k(f'buffer_store_dwordx4 {V(OUT+4*o,4)}, v20, {WSR}, s62 offen offset:{2048*o}{ST}')
    stamp(k, 5, 'b')
    return rest

def barrier2(k, rest):
    print('weight loads left after phase 2:', len(rest))
    k(f's_lshl_b32 s44, s48, 12\n s_add_u32 s44, s44, {HF}')
    k(f's_and_b32 s46, {WAVE}, 1')
    for p in range(4): k(f's_xor_b32 s45, s46, {p}\n s_lshl_b32 s45, s45, 10\n s_add_u32 s{55+p}, s44, s45')
    k(f"""s_lshl_b32 s44, s49, 17
    s_lshl_b32 s45, s48, 11
    s_add_u32 s44, s44, s45
    s_add_u32 s59, s44, {HRES}
    s_add_u32 s60, s59, 0x10000
    s_lshl_b32 s44, s48, 10
    s_add_u32 s61, s44, {SM+64}
    s_mov_b32 s46, 0""")
    print('group 1:', n1)
    stamp(k, 6)
    nA = min(OPT.get('nA', 12), len(rest)); nB = min(OPT.get('nB', 48), len(rest) - nA)
    n2 = 48 - len(rest) + nA
    for t in rest[:nA]: k(t)
    rest = [t.replace(RC, WSR) for t in rest]
    stamp(k, 6, 'b')
    k(f'v_mov_b32 v250, 0\n v_mov_b32 v251, 1\n s_cmp_lg_u32 {WAVE}, 0\n s_cbranch_scc1 L_b2o')
    st = k.state()
    k(f's_mov_b64 exec, 1\n s_waitcnt vmcnt({nA})'); stamp(k, 7, 'b'); k('s_barrier'); stamp(k, 8, 'b')
    k(f'buffer_atomic_add v251, v250, {WSR}, s74 offen sc0 sc1')
    k('s_barrier')
    stamp(k, 9, 'b'); arrive_check(k, 250, 's75', 51, 2); stamp(k, 10, 'b')
    if OPT.get('hold'): k('s_barrier')
    k('s_mov_b64 exec, -1\n s_branch L_b2m')
    k.restore(st); k.label('L_b2o')
    k(f's_waitcnt vmcnt({nA})'); stamp(k, 7, 'b'); k('s_barrier'); stamp(k, 8, 'b')
    k('s_barrier')
    if OPT.get('hold'): k('s_barrier')
    stamp(k, 9, 'b'); stamp(k, 10, 'b')
    k.label('L_b2m')
    k(f's_cmp_lg_u32 s30, 0\n s_cbranch_scc1 L_bok')
    st = k.state()
    k(f's_cmp_lg_u32 s38, 0\n s_cbranch_scc1 L_bok2')
    k.label('L_bchk')
    k(f"""buffer_load_dword v26, v23, {WSR}, 0 offen{LD}
    s_add_u32 s46, s46, 1
    s_waitcnt vmcnt(0)
    v_cmp_ne_u32 vcc, 1, v26
    s_cmp_gt_u32 s46, {SPIN}
    s_cbranch_scc1 L_bgo
    s_cbranch_vccnz L_bchk""")
    k.label('L_bgo')
    for t in wloads(WSR)[n1:n2]: k(t)
    k.label('L_bok2')
    for t in wloads(WSR)[:n1]: k(t)
    k.restore(st)
    k.label('L_bok')
    for t in rest[nA:nA+nB]: k(t)
    if OPT.get('retouch'):
        def rt():
            k('s_lshr_b32 s44, s2, 3\n s_lshl_b32 s44, s44, 10\n v_lshl_add_u32 v252, v3, 6, s44')
            k.raw('    v_min_u32 v252, L_notz-L_b2x-4, v252\n    s_sub_u32 s44, s42, tables-L_b2x\n    s_subb_u32 s45, s43, 0'); k.pos += 3
            k('v_mov_b32 v253, s45\n v_add_co_u32 v252, vcc, s44, v252\n v_addc_co_u32 v253, vcc, 0, v253, vcc\n s_mov_b64 exec, 0xffff\n global_load_dword v254, v[252:253], off')
        only_wave(k, 2, rt)
    only_wave(k, 0, lambda: poll(k, 250, 2))
    global late_w
    late_w = rest[nA+nB:]
    def hw():
        k('v_bfe_u32 v16, v1, 2, 1\n v_lshlrev_b32 v16, 9, v16\n v_bfe_u32 v17, v1, 3, 1\n v_lshl_add_u32 v16, v17, 4, v16\n v_and_b32 v17, 3, v1\n v_lshl_add_u32 v16, v17, 2, v16')
        for j in range(8): k(f'buffer_load_dword v{MUV+j}, v16, {WSR}, s61 offen offset:{128*((j^3)>>1)+32*((j^3)&1)}{LD}')
    global hw_means, st3
    hw_means = hw
    k(f's_cmp_eq_u32 {WAVE}, 3\n s_cbranch_scc1 L_p3h')
    st3 = k.state()
    if OPT.get('isl'):
        k(f's_mov_b64 exec, 0\n s_cmp_eq_u32 {WAVE}, 1\n s_cbranch_scc1 L_isl0_0\n s_branch L_isl0_{OPT.get("islmid", 32)}')
        k.label('L_islret0'); k('s_mov_b64 exec, -1')
    k.label('L_b2x')

ACT, ACC, TM, STV, MUV = 32, 64, 128, 16, 24
def cost(t):
    m = t.split()[0]
    if m.startswith('buffer'): return 18 + 4 * t.count('\n')
    if m.startswith(('v_exp', 'v_rcp', 'v_rsq', 'v_permlane', 'ds_write')): return 8
    return 4 * (t.count('\n') + 1)

def p3_body(k, hw):
    acc = lambda p, n, m, par=0: ACC + 32*(p & 1) + 8*(n + (par if n == 2 and hw else 0)) + 4*m
    GR = 28 if not hw else TM + 12
    dma_pos = []
    def dma(j):
        return f'buffer_load_dwordx4 v5, {WSR}, m0 offen offset:{1024*(j&3)}{LD} lds'
    def m0step(j): return [f's_add_u32 m0, m0, {8192 + (32768 if j == 15 else 0)}'] if j & 3 == 3 and j < 31 else []
    def slot(g, m): return ACT + 8*(g & 3) + 4*m
    def reads(g):
        p, ka = divmod(g, 16); o = []
        if p and ka == 0:
            x = (p ^ (p-1)) << 15
            o = [f'v_xor_b32 v6, {x:#x}, v6', f'v_xor_b32 v7, {x:#x}, v7']
        return o + [f'ds_read_b64_tr_b16 {V(slot(g,m)+2*h,2)}, v{6+m} offset:{2048*ka+1024*h}' for m in range(2) for h in range(2)]
    def chains(p, J):
        if p == 3:
            P = J[::2]
            o = [f'v_pk_mul_f32 {V(t,2)}, {V(g,2)}, {V(g,2)}' for g, u, t, c in P]
            o += [f'v_pk_fma_f32 {V(t,2)}, {V(t,2)}, {V(c,2)}, {V(c,2)} op_sel:[0,1,0] op_sel_hi:[1,1,0]' for g, u, t, c in P]
            o += [f'v_pk_mul_f32 {V(t,2)}, {V(t,2)}, {V(g,2)}' for g, u, t, c in P]
            o += [f'v_exp_f32 v{t}, v{t}' for g, u, t, c in J]
            o += [f'v_pk_mul_f32 {V(g,2)}, {V(g,2)}, {V(u,2)}' for g, u, t, c in P]
            o += [f'v_pk_fma_f32 {V(t,2)}, {V(t,2)}, {V(c+2,2)}, {V(c+2,2)} op_sel_hi:[1,0,0]' for g, u, t, c in P]
            o += [f'v_rcp_f32 v{t}, v{t}' for g, u, t, c in J]
            o += [f'v_pk_mul_f32 {V(g,2)}, {V(g,2)}, {V(t,2)}' for g, u, t, c in P]
            return o
        o = [f'v_mul_f32 v{t}, v{g}, v{g}' for g, u, t, c in J]
        o += [f'v_fma_f32 v{t}, v{t}, v{c+1}, v{c}' for g, u, t, c in J]
        o += [f'v_mul_f32 v{t}, v{t}, v{g}' for g, u, t, c in J]
        for g, u, t, c in J: o += [f'v_exp_f32 v{t}, v{t}', f'v_mul_f32 v{g}, v{g}, v{u}']
        o += [f'v_fma_f32 v{t}, v{t}, v{c+2}, v{c+2}' for g, u, t, c in J]
        o += [f'v_rcp_f32 v{t}, v{t}' for g, u, t, c in J]
        o += [f'v_mul_f32 v{g}, v{g}, v{t}' for g, u, t, c in J]
        return o
    def epilogue(p):
        HA, HX = TM + 8, TM + 12
        J = [(acc(p, 0, m)+r, acc(p, 1, m)+r, TM+4*m+r, STV+4*m) for m in range(2) for r in range(4)]
        o = []
        if not hw: o += [f'v_permlane32_swap_b32 v{acc(p,2,0)+r}, v{acc(p,2,1)+r}' for r in range(4)]
        o += chains(p, J)
        o += [f'v_cvt_pk_bf16_f32 v{HA+2*m+h}, v{acc(p,0,m)+2*h}, v{acc(p,0,m)+2*h+1}' for h in range(2) for m in range(2)]
        tail = [f'v_permlane16_swap_b32 v{HA}, v{HA+2}', f'v_permlane16_swap_b32 v{HA+1}, v{HA+3}',
                f'buffer_store_dwordx4 {V(HA,4)}, v12, {RB}, s{55+p} offen{ST}']
        if not hw:
            x = chains(p, [(acc(p, 2, 0)+r, acc(p, 2, 1)+r, TM+r, STV+8) for r in range(4)])
            o += x[:2] + tail + x[2:]
            o += [f'v_cvt_pk_bf16_f32 v{HX+2*(p&1)+h}, v{acc(p,2,0)+2*h}, v{acc(p,2,0)+2*h+1}' for h in range(2)]
            if p & 1: o += [f'v_permlane16_swap_b32 v{HX}, v{HX+2}', f'v_permlane16_swap_b32 v{HX+1}, v{HX+3}',
                            f'buffer_store_dwordx4 {V(HX,4)}, v13, {RB}, s{55+p} offen{ST}']
        else:
            for m in range(2):
                e, od = acc(p, 2, m), acc(p, 2, m, 1); t = TM
                o += [f'v_add_f32 v{e+r}, v{e+r}, v{MUV+2*p+m}' for r in range(4)]
                if m == 0: o += tail
                for r in range(4): o += [f'v_add_f32 v{t+r}, v{e+r}, v{od+r}', f'v_sub_f32 v{t+4+r}, v{e+r}, v{od+r}']
                P0, P1 = acc(p, 2, 0), acc(p, 2, 0, 1)
                o += [f'v_cvt_pk_bf16_f32 v{P0+2*m}, v{t}, v{t+1}', f'v_cvt_pk_bf16_f32 v{P0+2*m+1}, v{t+2}, v{t+3}',
                      f'v_cvt_pk_bf16_f32 v{P1+2-2*m}, v{t+7}, v{t+6}', f'v_cvt_pk_bf16_f32 v{P1+3-2*m}, v{t+5}, v{t+4}']
            off = 512*(p ^ 1)
            o += [f'v_permlane16_swap_b32 v{P0}, v{P0+2}', f'v_permlane16_swap_b32 v{P0+1}, v{P0+3}',
                  f'buffer_store_dwordx4 {V(P0,4)}, v13, {WSR}, s59 offen offset:{off}{ST}',
                  f'v_permlane16_swap_b32 v{P1+2}, v{P1}', f'v_permlane16_swap_b32 v{P1+3}, v{P1+1}',
                  f'buffer_store_dwordx4 {V(P1,4)}, v14, {WSR}, s60 offen offset:{off}{ST}']
        return o
    def stats(p):
        K0 = -2*math.sqrt(2/math.pi)*math.log2(math.e); b = GR
        return [f'v_cndmask_b32 v{b}, v{b}, v{b+1}, s[64:65]', f'v_cndmask_b32 v{b}, v{b}, v{b+2}, s[66:67]', f'v_cndmask_b32 v{b}, v{b}, v{b+3}, s[68:69]',
                f'v_mov_b32 v{b+2}, {fbits(1e-5)}', f'v_fmac_f32 v{b+2}, {fbits(1/512)}, v{b}', f'v_rsq_f32 v{b+3}, v{b+2}',
                f'v_mul_f32 v{b}, {fbits(K0)}, v{b+3}', f'v_mul_f32 v{b+3}, v{b+3}, v{b+3}', f'v_mul_f32 v{b+1}, {fbits(0.044715)}, v{b}', f'v_mul_f32 v{b+1}, v{b+1}, v{b+3}',
                f'ds_write_b128 v9, {V(b,4)} offset:{512*p}']
    def getstats(p):
        R = [(10, STV), (8, STV+4)] + ([] if hw else [(11, STV+8)])
        o = [f'v_xor_b32 v{a}, 0x200, v{a}' for a, _ in R] if p else []
        return o + [f'ds_read_b128 {V(d,4)}, v{a} offset:{1024*(p>>1)}' for a, d in R]
    def issue_dma(j): k(dma(j)); dma_pos.append(k.nvm)
    if hw:
        hw_means()
        if OPT.get('isl'):
            k('s_mov_b64 exec, 0\n s_branch L_isl1_0'); k.label('L_islret1'); k('s_mov_b64 exec, -1')
    k('s_barrier')
    stamp(k, 7); stamp(k, 11, 'b')
    def island(g):
        G = OPT.get('isl')
        if not G or g % G: return
        mid = OPT.get('islmid', 32)
        k.label(f'L_isl{int(hw)}_{g}')
        k(f's_cbranch_execz L_isl{int(hw)}_{g+G}' if g + G < 64 and (hw or g + G != mid) else (f's_cbranch_execz L_islret{int(hw)}' if g + G >= 64 else f's_cbranch_execz L_islret0'))
    DP = 16
    for j in range(DP):
        issue_dma(j)
        for t in m0step(j): k(t)
    if hw: k('v_and_b32 v13, 0x1f0, v4\n v_xor_b32 v13, 0x100, v13\n v_lshrrev_b32 v14, 5, v1\n v_lshl_add_u32 v13, v14, 15, v13\n v_xor_b32 v14, 0x8000, v13')
    p4_ids(k)
    k(f"""s_mov_b32 s51, 0
    s_lshl_b32 s45, s45, 2
    s_add_u32 s45, s45, {WAVE}
    s_mul_i32 s45, s45, {22*2048}
    s_add_u32 s45, s45, {WD}
    v_add_u32 v15, s45, v4
    s_lshr_b32 s46, s44, 1
    s_lshl_b32 s45, s46, 11
    s_add_u32 s62, s45, {RBF}
    s_add_u32 s63, s62, 0x8000
    s_lshl_b32 s46, s46, 2
    s_and_b32 s44, s44, 1
    s_add_u32 s73, s46, s44
    s_lshl_b32 s46, s73, 10
    s_lshl_b32 s47, {WAVE}, 16
    s_add_u32 s46, s46, s47
    s_add_u32 s74, s46, {HF}
    s_mov_b32 s75, 0""")
    def landed(j): k(f's_waitcnt vmcnt({min(63, k.nvm - dma_pos[j])})'); k('s_barrier')
    landed(3)
    stamp(k, 8)
    rd_pos = {}
    def do_reads(g):
        for t in reads(g): k(t)
        rd_pos[g] = k.nlg
    do_reads(0); do_reads(1)
    NWD = OPT.get('wdin', 22)
    memq = [('dma', j) for j in range(DP, 16)]
    lw = list(late_w)
    memq += lw + [('dma', j) for j in range(16, 32)]
    after = []
    nfast = len(memq)
    wl = [t for u in range(0, NWD, 2) for t in wd_loads(u)]
    wdq = [wl[i] + ('\n' + wl[i+1] if i % 5 == 3 else '') for i in range(len(wl)) if i % 5 != 4]
    W1 = OPT.get('wdend', 57)
    st_pos = None
    wrate = min(1.0, len(wdq) / (W1 - nfast / OPT.get('mrate', 1)))
    eq = [hload(0, u, RC) for u in range(22)]
    ismem = lambda t: isinstance(t, tuple) or t.startswith(('ds_', 'buffer'))
    vcost = lambda t: 8 if t.startswith(('v_exp', 'v_rcp', 'v_rsq', 'v_permlane')) else 4 * (t.count('\n') + 1)
    hcost = lambda t: 4 if (t[0] == 'rd' if isinstance(t, tuple) else t.startswith('ds_read')) else 8
    salu = []
    def emit_mem(f):
        nonlocal stat_pos
        if isinstance(f, tuple):
            if f[0] == 'dma':
                while salu: k(salu.pop(0))
                issue_dma(f[1]); salu.extend(m0step(f[1]))
            else: k(f[1]); rd_pos[f[2]] = k.nlg
        else:
            t = f.split('\n')
            if t[0].startswith('buffer_load_dwordx4'):
                while salu: k(salu.pop(0))
            k(t[0]); salu.extend(x.strip() for x in t[1:])
            if f.startswith('ds_write'): stat_pos = k.nlg
    stat_pos = None
    k.wait(lg=k.nlg - rd_pos[0])
    for p in range(4):
        pre = stats(p-1) if p & 1 else []
        bg = (epilogue(p-1) + (getstats(p) if p & 1 else [])) if p else []
        nind = (8 if hw else 12) if p & 1 else 0
        nbg = len(bg)
        k1 = OPT.get('e1end', 12) if p == 2 else 16
        tot = sum(vcost(t) for t in bg); done = 0
        val = []
        for ka in range(16):
            g = 16*p + ka
            if OPT.get('gst') and g in OPT['gst']: stamp(k, 1 + OPT['gst'].index(g), True)
            sync = None
            if p & 1 and ka == 2: sync = 'stat'
            if p == 0 and ka in (2, 6, 10): sync = ka + 5
            rds = []
            if g + 2 < 64:
                for t in reads(g + 2):
                    if t.startswith('ds_'): rds.append(('rd', t, g + 2))
            if g + 3 < 64 and (g + 3) % 16 == 0: late_x = [t for t in reads(g + 3) if not t.startswith('ds_')]
            else: late_x = []
            mem = []
            if memq:
                mr = OPT.get('mrate', 1); n = int((g + 1) * mr) - int(g * mr); mem = memq[:n]; memq = memq[n:]
            elif wdq:
                left = W1 - g
                n = (len(wdq) + left - 1) // left if len(wdq) >= left else int((g + 1) * wrate) - int(g * wrate)
                mem = wdq[:n]; wdq = wdq[n:]
            if ka <= 1 and pre:
                n = 6 if ka == 0 else len(pre); val += pre[:n]; pre = pre[n:]
            o1 = 1 if p & 1 else 0
            budget = tot * (ka + 1 - o1) / (k1 - o1)
            if p & 1 and ka <= 1: budget = -1
            if p & 1 and ka == 2: val += getstats(p-1)
            while bg and (done + vcost(bg[0])/2 <= budget or ka == k1 - 1) and not (p & 1 and ka == 2 and nbg - len(bg) >= nind):
                done += vcost(bg[0]); val.append(bg.pop(0))
            if g == 48 + OPT.get('esamp', 8) - 1: val += ['v_lshlrev_b32 v5, 7, v3', 'v_add_u32 v3, s74, v4']
            if g == 48 + OPT.get('esamp', 8): mem = [f'buffer_load_dword v9, v5, {WSR}, s62 offen{LD}'] + mem
            if g == 48 + OPT.get('echk', 11): val += [f'v_cmp_ne_u32 vcc, 1, v9\n s_cmp_eq_u64 vcc, 0\n s_cselect_b32 s38, s34, 0']
            if g > 48 + OPT.get('echk', 11):
                er = OPT.get('erate', 1); mem = mem + eq[:er]; eq = eq[er:]
            mf = []
            for m in range(2):
                b_ = V(slot(g, m), 4)
                for n in range(3):
                    d = V(acc(p, n, m, ka & 1), 4)
                    first = ka == 0 or (n == 2 and ka == 1 and hw)
                    mf.append(f'v_mfma_f32_16x16x32_bf16 {d}, {A(12*ka+4*n,4)}, {b_}, {"0" if first else d}')
            mf = [mf[i] for i in (0, 3, 4, 1, 2, 5)]
            if p % 2 == 0: mf.insert(0, f'v_mfma_f32_16x16x32_bf16 {V(GR,4)}, {V(slot(g,0),4)}, {V(slot(g,0),4)}, {"0" if ka==0 else V(GR,4)}')
            heads = list(rds)
            for i, t in enumerate(mem): heads.insert(min(len(heads), 2 + 2*i + (1 if len(mem) == 1 else 0)), t)
            N = len(mf)
            ftot = sum(map(hcost, heads)) + sum(hcost(t) if ismem(t) else vcost(t) for t in val) + 4*len(late_x); fd = 0
            flush_val = ka == 15 or (p == 2 and ka == k1 - 1) or (p & 1 and ka == 1) or g - 48 in (OPT.get('esamp', 8) - 1, OPT.get('echk', 11))
            for i, t in enumerate(mf):
                k(t)
                last = i == N - 1
                if i == 0 and sync is not None:
                    if sync == 'stat':
                        assert not pre and not any(x.startswith('ds_write') for x in val)
                        k.wait(lg=k.nlg - stat_pos)
                        k(f's_waitcnt vmcnt({min(63, k.nvm - (st_pos if p == 3 else dma_pos[31]))})')
                        k('s_barrier')
                        if p == 3 and hw: k(f'v_mov_b32 v{MUV}, 0\n v_mov_b32 v{MUV+1}, 1\n s_mov_b64 exec, 1\n buffer_store_dword v{MUV+1}, v{MUV}, {WSR}, s41 offen{ST}\n s_mov_b64 exec, -1')
                    else: landed(sync)
                if i == 1: island(g)
                nh = 0
                nxt = val[0] if val and ismem(val[0]) else (heads[0] if heads else None)
                if last and g + 1 < 64: k.wait(lg=k.nlg - rd_pos[g + 1])
                elif salu and (nxt is None or hcost(nxt) == 4) and not (i == 1 and OPT.get('isl')): k(salu.pop(0))
                while True:
                    if val and ismem(val[0]) and nh == 0: f = val.pop(0)
                    elif heads and (nh == 0 or len(heads) > N - 1 - i): f = heads.pop(0)
                    else: break
                    emit_mem(f); fd += hcost(f); nh += 1
                if last:
                    for x in late_x: k(x)
                while val and ((not ismem(val[0]) and fd + vcost(val[0])/2 <= ftot * (i+1) / N + 1e-6) or (last and flush_val)):
                    f = val.pop(0)
                    if ismem(f): emit_mem(f); fd += hcost(f)
                    else: k(f); fd += vcost(f)
            assert not heads
            if p == 2 and ka == k1 - 1: st_pos = k.nvm
        assert not bg and not val
        if p == 0: stamp(k, 9)
        if OPT.get('pst'): stamp(k, 1+p, True)
    while salu: k(salu.pop(0))
    assert not wdq
    stamp(k, 10)
    ep = epilogue(3); ne = OPT.get('eepi', 0); gap = 5
    for i, t in enumerate(ep):
        k(t)
        if i % gap == gap - 1 and ne > 0: k(eq.pop(0)); ne -= 1
    assert ne == 0
    if OPT.get('pst'): stamp(k, 5, True)
    return 22 - len(eq)

def hload(hf, u, R):
    return f'buffer_load_dwordx4 {A(88*hf+4*u,4)}, v3, {R}, s75 offen offset:{2048*hf}{LD}\n ' + ('s_add_u32 s75, s75, 0x40000' if u < 21 else 's_mov_b32 s75, 0')

def redo(k, soff, hf, n, again=None):
    uid[0] += 1; u = uid[0]
    k(f's_cmp_lg_u32 s38, 0\n s_cbranch_scc1 L_sd{u}')
    st = k.state()
    k('s_mov_b32 s46, 0')
    k.label(f'L_sp{u}')
    k(f"""buffer_load_dword v6, v5, {WSR}, {soff} offen{LD}
    s_add_u32 s46, s46, 1
    s_waitcnt vmcnt(0)
    v_cmp_ne_u32 vcc, 1, v6
    s_cmp_gt_u32 s46, {SPIN}
    s_cbranch_scc1 L_sg{u}
    s_cbranch_vccnz L_sp{u}""")
    k.label(f'L_sg{u}')
    k('s_mov_b32 s75, 0')
    for j in range(n): k(hload(hf, j, RB))
    if again: again()
    k.restore(st)
    k.vm = [set()] * 8 + [{('a', 88*hf+4*j+r) for r in range(4)} for j in range(n)]
    k.label(f'L_sd{u}')

def spin(k, reg, soff):
    uid[0] += 1; u = uid[0]
    k(f'v_cmp_ne_u32 vcc, 1, v{reg}\n s_mov_b32 s46, 0\n s_cbranch_vccz L_sd{u}')
    st = k.state()
    k.label(f'L_sp{u}')
    k(f"""buffer_load_dword v{reg}, v5, {WSR}, {soff} offen{LD}
    s_add_u32 s46, s46, 1
    s_waitcnt vmcnt(0)
    v_cmp_ne_u32 vcc, 1, v{reg}
    s_cmp_gt_u32 s46, {SPIN}
    s_cbranch_scc1 L_sd{u}
    s_cbranch_vccnz L_sp{u}""")
    k.restore(st)
    k.label(f'L_sd{u}')

QS, INS, PS = 1152, 4736, 9472
def p4(k, n0, nst):
    HR, RD, SUM = 32, 40, 128
    PRE = OPT.get('p4pre', 14)
    EP = OPT.get('epost', 6)
    k.vm = [{('a', 4*j+r) for r in range(4)} for j in range(n0)] + [set()] * nst
    for j in range(n0, n0 + EP): k(hload(0, j, RC))
    U0 = n0 if not OPT.get('nopre') else 0
    n0 += EP
    setup = f"""s_mov_b32 s28, s18
    s_and_b32 s29, s19, 0xffff
    s_mov_b32 s30, {S*D*2}
    s_lshr_b32 s65, s2, 5
    v_lshrrev_b32 v16, 3, v1
    v_bfe_u32 v17, v1, 1, 2
    s_lshl_b32 s46, s65, 2
    v_add_u32 v17, s46, v17            ; 16-column block
    v_sub_u32 v18, 31, v17
    v_min_u32 v18, v17, v18
    v_lshlrev_b32 v18, 17, v18
    v_lshrrev_b32 v17, 4, v17
    v_lshl_add_u32 v18, v17, 16, v18
    v_lshl_add_u32 v18, v16, 4, v18
    v_and_b32 v17, 1, v1
    v_lshl_add_u32 v8, v17, 15, v18    ; residual
    s_lshl_b32 s66, s73, 9
    s_lshl_b32 s46, {WAVE}, 7
    s_add_u32 s66, s66, s46
    s_add_u32 s66, s66, {HRES}
    v_mov_b32 v20, 0
    v_mov_b32 v21, 1
    s_add_u32 s41, s41, 0x8000
    s_lshr_b32 s46, s73, 2
    s_lshl_b32 s46, s46, 17
    s_and_b32 s44, s73, 3
    s_lshl_b32 s44, s44, 2
    s_add_u32 s44, s44, {WAVE}
    s_lshl_b32 s44, s44, 10
    s_add_u32 s67, s46, s44
    s_lshl_b32 s45, s65, 7
    s_add_u32 s67, s67, s45
    s_add_u32 s68, s67, 0x2000
    v_and_b32 v9, 7, v1
    v_lshlrev_b32 v9, 4, v9
    v_and_b32 v18, 3, v16
    v_lshl_add_u32 v9, v18, 15, v9
    v_lshrrev_b32 v18, 2, v16
    v_lshl_add_u32 v9, v18, 14, v9     ; output
    v_lshrrev_b32 v18, 5, v1
    v_lshl_add_u32 v10, v18, 6, v4
    s_mul_i32 s44, {WAVE}, {PS}
    v_add_u32 v10, s44, v10            ; partial sums, write
    v_bfe_u32 v18, v1, 2, 1
    v_mul_u32_u24 v11, {INS}, v18
    v_bfe_u32 v18, v1, 1, 1
    v_mul_u32_u24 v18, 576, v18
    v_add_u32 v11, v11, v18
    v_lshl_add_u32 v11, v16, 4, v11
    v_lshl_add_u32 v11, v17, 3, v11
    s_lshl_b32 s44, {WAVE}, 7
    v_add_u32 v11, s44, v11            ; partial sums, read
    v_add_u32 v12, {4*PS}, v11""".split('\n')
    def resid(hf): k(f'buffer_load_dwordx4 {V(HR+4*hf,4)}, v8, {WSR}, s66 offen offset:{1024*hf}{LD}')
    def mf(hf, u, i):
        d = V(ACC+32*hf+16*i, 16)
        return f'v_mfma_f32_32x32x16_bf16 {d}, {wd_reg(u, i)}, {A(88*hf+4*u,4)}, {"0" if u==0 else d}'
    def mm(hf, issued, hook):
        q = []
        for j in range(22):
            if hf == 0 and j >= OPT.get('wdin', 22) and j % 2 == 0:
                w = wd_loads(j); q += [lambda t=t: k(t) for t in w[:3] + [w[3] + '\n' + w[4]]]
            if j >= issued: q.append(lambda j=j: k(hload(hf, j, RB)))
        q.append(lambda: resid(hf))
        TL = OPT.get('tl', 0) if hf == 1 else 0
        for u in range(U0 if hf == 0 else 0, 22 - TL):
            for i in range(2):
                k(mf(hf, u, i))
                if q and (i == 0 or len(q) > 22 - u - OPT.get('lead', 8)): q.pop(0)()
                hook(u, i)
    def red_write(hf):
        o = [f'ds_write_b128 v10, {V(ACC+32*hf+16*i+4*q,4)} offset:{4*PS*hf+INS*i+QS*q}' for i in range(2) for q in range(4)]
        for j in range(4):
            o += [f'v_lshlrev_b32 v{SUM+4*(j&1)+(j>>1)}, 16, v{HR+4*hf+j}', f'v_and_b32 v{SUM+4*(j&1)+2+(j>>1)}, 0xffff0000, v{HR+4*hf+j}']
        return o
    def red_read(hf, pk=True):
        R = lambda w, q: (RD + 8*w + 2*q) if w < 3 else SUM + 8 + 2*q
        o = [f'ds_read_b64 {V(R(w,q),2)}, v{11+hf} offset:{PS*w+QS*q}' for w in range(4) for q in range(4)]
        if pk: o += [f'v_pk_add_f32 {V(SUM+2*q,2)}, {V(SUM+2*q,2)}, {V(R(w,q),2)}' for w in range(4) for q in range(4)]
        else: o += [f'v_add_f32 v{SUM+2*q+h}, v{SUM+2*q+h}, v{R(w,q)+h}' for w in range(4) for q in range(4) for h in range(2)]
        o += [f'v_cvt_pk_bf16_f32 v{HR+4*hf+j}, v{SUM+4*(j&1)+(j>>1)}, v{SUM+4*(j&1)+2+(j>>1)}' for j in range(4)]
        return o + [f'buffer_store_dwordx4 {V(HR+4*hf,4)}, v9, {RA}, s{67+hf} offen{OPT.get("ost", "")}']
    pre = [mf(0, u, i) for u in range(U0) for i in range(2)]
    for t in pre:
        k(t)
        for x in setup[:5]: k(x)
        setup = setup[5:]
    for t in setup: k(t)
    k(f's_waitcnt vmcnt({EP})'); k('s_barrier')
    only_wave(k, 0, lambda: k(f's_mov_b64 exec, 1\n buffer_store_dword v21, v20, {WSR}, s41 offen{ST}'))
    stamp(k, 11)
    redo(k, 's62', 0, n0, lambda: [k(t) for t in pre])
    if OPT.get('p4st'): stamp(k, 1, True)
    LP, LC = OPT.get('lpoll', 11), OPT.get('lchk', 15)
    nl = [0]
    def hook0(u, i):
        if u == LP and i == 1: k(f'buffer_load_dword v6, v5, {WSR}, s63 offen{LD}')
        if u == LC and i == 0: k('v_cmp_ne_u32 vcc, 1, v6\n s_cmp_eq_u64 vcc, 0\n s_cselect_b32 s38, s34, 0')
        if (u, i) > (LC, 0) and (i == 1 or OPT.get('lrate2')): k(hload(1, nl[0], RC)); nl[0] += 1
    mm(0, n0, hook0)
    if OPT.get('p4st'): stamp(k, 2, True)
    for j, t in enumerate(red_write(0)):
        k(t)
        if j < OPT.get('lmid', 5): k(hload(1, nl[0], RC)); nl[0] += 1
    if OPT.get('p4st'): stamp(k, 3, True)
    redo(k, 's63', 1, nl[0])
    if OPT.get('p4st'): stamp(k, 4, True)
    rr = red_read(0, False)
    def hook1(u, i):
        if u == 1 and i == 1: k.wait(lg=0); k('s_barrier')
        if u >= 2:
            for _ in range(4 if i else 2):
                if rr: k(rr.pop(0))
    mm(1, nl[0], hook1)
    assert not rr
    if OPT.get('p4st'): stamp(k, 5, True)
    TL = OPT.get('tl', 0); rw = red_write(1)
    for u in range(22 - TL, 22): k(mf(1, u, 0))
    for j, u in enumerate(range(22 - TL, 22)):
        k(mf(1, u, 1))
        if j == 0:
            for t in rw[8:]: k(t)
            rw = rw[:8]
        elif len(rw) > 4 and j >= 2: k(rw.pop(0))
    for t in rw: k(t)
    k.wait(lg=0); k('s_barrier')
    for t in red_read(1): k(t)

def fused():
    k = K()
    prologue(k)
    if OPT.get('prio'): only_wave(k, 0, lambda: k('s_setprio 3'))
    k(f's_cmp_ge_u32 s2, {NZ}\n s_cbranch_scc1 L_notz')
    st0 = k.state()
    p1_z(k)
    k.label('L_join1')
    k.vm = [set()] * 40; k.lg = []
    setup(k)
    stamp(k, 3)
    negs = lambda: [p2_negs(k, b) for b in (B1, A2, B3, A4)]
    stamp(k, 8, 'z')
    k(f's_cmp_lg_u32 {WAVE}, 0\n s_cbranch_scc1 L_b1o')
    st = k.state()
    k('s_mov_b64 exec, 1\n s_mov_b32 s46, 0\n s_waitcnt vmcnt(8)')
    k.label('L_go')
    k(f"""v_cmp_ne_u32 vcc, 0, v254
    s_add_u32 s46, s46, 1
    s_cbranch_vccnz L_gone
    global_load_dword v254, v250, s[20:21]{LD}
    s_waitcnt vmcnt(0)
    s_cmp_lt_u32 s46, {SPIN}
    s_cbranch_scc1 L_go""")
    k.restore(st); k.vm = k.vm[-8:]
    k.label('L_gone')
    stamp(k, 9, 'z')
    k('s_barrier')
    k(f'buffer_atomic_add v251, v250, {WSR}, s71 offen sc0 sc1\n s_mov_b64 exec, -1')
    stamp(k, 10, 'z')
    negs(); arrive_check(k, 250, 's72', 's70', 1)
    k('s_mov_b64 exec, -1\n s_branch L_b1m')
    k.restore(st); k.label('L_b1o')
    k('s_waitcnt vmcnt(8)')
    stamp(k, 9, 'z')
    k('s_barrier')
    stamp(k, 10, 'z')
    negs()
    k.label('L_b1m')
    setup_late(k)
    wd_finish(k)
    only_wave(k, 1, lambda: k(f'v_lshlrev_b32 v252, 15, v1\n s_mov_b64 exec, 3\n buffer_store_dword v250, v252, {WSR}, s41 offen{ST}'))
    only_wave(k, 0, lambda: poll(k, 250, 1))
    k.vm = []
    k('s_barrier')
    stamp(k, 4)
    stamp(k, 11, 'z'); stamp(k, 1, 'b')
    barrier2(k, p2(k))
    n0 = p3_body(k, False)
    nst = 0
    nst = 2
    k.label('L_join3')
    k.fence()
    p4(k, n0, nst)
    stamp_out(k, 12)
    k.label('L_end'); k('s_endpgm')
    k.restore(st3); k.label('L_p3h'); assert p3_body(k, True) == n0
    assert not any(k.vm[-nst:]); k('s_branch L_join3')
    k.restore(st0); k.label('L_notz')
    p1_w(k); k('s_branch L_join1')
    k.restore(st_c); k.label('L_p1c')
    k(f's_cmp_ge_u32 s2, {NI0}\n s_cbranch_scc1 L_p1i')
    st1 = k.state()
    p1_t(k); k('s_branch L_join1')
    k.restore(st1); k.label('L_p1i'); p1_i(k); k('s_branch L_join1')
    o = header()
    o += f'; @launch grid=(256,1,1) block=(256,1,1) lds={STATL+4096}\n'
    o += '.amdgcn_target "amdgcn-amd-amdhsa--gfx950"\n.text\n' + k.text()
    o += tables_text() + 'L_image_end:\n'
    o += '.section .rodata,"a"\n.p2align 6\n' + kd(KN, k)
    return o

if __name__ == '__main__':
    out = sys.argv[1]
    for a in sys.argv[2:]:
        key, _, val = a.partition('=')
        OPT[key] = eval(val) if val else True
    open(out, 'w').write(fused())
```

```python
import numpy as np
S, D, F = 2048, 512, 1376

def f2bf(x):
    u = np.ascontiguousarray(x, np.float32).view(np.uint32).astype(np.uint64)
    return (((u + 0x7FFF + ((u >> 16) & 1)) >> 16) & 0xFFFF).astype(np.uint16)
def bf2f(u): return (np.asarray(u).astype(np.uint32) << 16).view(np.float32)
def f2h(x): return np.asarray(x, np.float64).astype(np.float16).view(np.uint16)
def h2f(u): return np.asarray(u).view(np.float16).astype(np.float32)

import os
ZT_STRIDE = int(os.environ.get("ZS", 8448))
WT_STRIDE = int(os.environ.get("WS", 8448))
off = 0x10000
CNT, FLG, RBF = 0, 4096, 0x10000
off = 0x20000
def alloc(n):
    global off
    o = off; off = (off + n + 4095) // 4096 * 4096; return o
ZT = alloc(256 * 10240)
WT = alloc(256 * 10240)
SM = alloc(S * 8)
HT = alloc(512 * S * 2)
HFS = 65536 + int(os.environ.get('HFP', 0)); WPS = 16384 + int(os.environ.get('WPP', 0)); WDS = 22 * 2048 + int(os.environ.get('WDP', 0))
WP = alloc(192 * 20480)
WD = alloc(32 * 49152)
HF = alloc(88 * 73728)
HRES = alloc(S * D * 2)
STAMP = alloc(1 << 20)
WS_USED = off

def kd_of(c):
    s, j = c >> 4, c & 15
    if c == 0: return 256
    if j < 8: return s + 32 * j
    return (16 if s == 0 else 32 - s) + 32 * (j - 8)
KD = np.array([kd_of(c) for c in range(256)])
def s_of_m(m):
    w, g, bl, be, r = m >> 9, (m >> 7) & 3, (m >> 3) & 15, (m >> 2) & 1, m & 3
    return 32 * (16 * w + 4 * g + r) + 16 * be + bl
SOFM = np.array([s_of_m(m) for m in range(S)])
def rho(c, part): return 64 * (c >> 5) + 32 * part + (c & 31)

def basis():
    C = np.zeros((D, 512)); d = np.arange(D)
    for c in range(256):
        ph = 2 * np.pi * KD[c] * (d + 0.5) / 512
        if c == 0: C[:, rho(0, 1)] = -np.sin(ph) / np.sqrt(512)
        else:
            C[:, rho(c, 0)] = np.cos(ph) / 16; C[:, rho(c, 1)] = -np.sin(ph) / 16
    return C

L = np.arange(64); G_ = L >> 4; X_ = L & 15; E_ = np.arange(8)
def clean(a):
    a = np.where(np.abs(a) < 1e-12, 0.0, a); return a + 0.0
def t_FA():
    d1 = 16 * (E_[None, :] >> 2) + 4 * G_[:, None] + (E_[None, :] & 3)
    th = 2 * np.pi * X_[:, None] * d1 / 32
    re = np.cos(th); im = np.where(X_[:, None] == 0, np.cos(np.pi * d1), -np.sin(th))
    return f2bf(clean(np.stack([re, im])))
def t_GB(zpath):
    out = np.zeros((16, 2, 64, 8))
    for s in range(16):
        for l in range(64):
            g, j = l >> 4, l & 15; c = 16 * s + j
            for e in range(8):
                d2, comp = 4 * g + (e & 3), e >> 2
                ph = 2 * np.pi * KD[c] * (d2 + 0.5) / 512; co, si = np.cos(ph), np.sin(ph)
                if c == 0:
                    v = (-si / np.sqrt(2) if comp == 0 else 0.0)
                    re, im = (v, 0.0) if zpath else (0.0, v)
                elif s == 0:
                    use = (comp == 0) if j < 8 else (comp == 1)
                    re, im = (co, -si) if use else (0.0, 0.0)
                elif j < 8: re, im = (co, -si) if comp == 0 else (si, co)
                else: re, im = (co, -si) if comp == 0 else (-si, -co)
                out[s, 0, l, e] = re; out[s, 1, l, e] = im
    return f2h(clean(out / 4)) if zpath else f2bf(clean(out / 16))
def cs_frag(x, y, n, sgn, scale):
    th = 2 * np.pi * x[:, None] * y / n
    return clean(np.concatenate([np.cos(th), sgn * np.sin(th)], axis=1) * scale)
R4 = np.arange(4)
def t_B1(): return f2h(np.array([[cs_frag(16*w + X_, 16*((u+w) % 4) + 4*G_[:, None] + R4, 64, 1, 1/8) for u in range(4)] for w in range(4)]))
def t_A4(): return f2bf(np.array([[cs_frag(16*w + X_, 16*((u+w) % 4) + 4*G_[:, None] + R4, 64, -1, 1/8) for u in range(4)] for w in range(4)]))
def t_A2(): return f2h(np.array([[cs_frag(16*t + X_, 16*b + 4*G_[:, None] + R4, 32, 1, 1/8) for b in range(2)] for t in range(2)]))
def t_B3(): return f2bf(np.array([[cs_frag(16*b + X_, 16*t + 4*G_[:, None] + R4, 32, -1, 1/4) for t in range(2)] for b in range(2)]))

def model(ref):
    x = bf2f(ref['A_x']).reshape(S, D).astype(np.float64)
    wr = bf2f(ref['A_w_r']).astype(np.float64); wi = bf2f(ref['A_w_i']).astype(np.float64)
    wg = bf2f(ref['B_w_gate']).astype(np.float64); wu = bf2f(ref['B_w_up']).astype(np.float64); wd = bf2f(ref['B_w_down']).astype(np.float64)
    M = {}
    mu = x.mean(1); sig = np.sqrt(x.var(1) + 1e-5); z = (x - mu[:, None]) / sig[:, None]
    M['SM'] = np.stack([a[SOFM].reshape(16, 4, 4, 2, 4).transpose(0, 3, 1, 2, 4).reshape(128, 16) for a in (sig, mu)], 1)
    C = basis(); Zh = z @ C
    Zc = np.stack([Zh[:, rho(c, 0)] + 1j * Zh[:, rho(c, 1)] for c in range(256)], 1)
    Zc[:, 0] = Zh[:, rho(0, 1)]
    Zr = Zc.reshape(4, 4, 4, 2, 16, 256)
    zt = np.concatenate([Zr.real.transpose(5, 0, 3, 1, 4, 2), Zr.imag.transpose(5, 0, 3, 1, 4, 2)], axis=-1)
    M['ZT'] = zt.reshape(256, -1)
    def wt(a): return a[:, 1:].reshape(2, 4, 4, 4, 16, 256).transpose(5, 0, 3, 1, 4, 2)
    M['WT'] = np.stack([wt(wr), wt(wi)], -1).reshape(256, -1)
    W = (wr + 1j * wi)[:, KD]
    Y = np.fft.ifft(np.fft.fft(Zc, axis=0) * W, axis=0)
    Hc = sig[:, None] * Zc + Y
    Hh = np.zeros((S, 512))
    for c in range(256):
        if c == 0: Hh[:, rho(0, 1)] = Hc[:, 0].real
        else: Hh[:, rho(c, 0)] = Hc[:, c].real; Hh[:, rho(c, 1)] = Hc[:, c].imag
    Hm = Hh[SOFM]
    M['HT'] = Hm.reshape(64, 32, 512).transpose(0, 2, 1)
    Wg = C.T @ wg; Wu = C.T @ wu
    kk = 32 * np.arange(16)[:, None, None] + 4 * np.arange(4)[None, :, None] + (16 * (E_ >> 2) + (E_ & 3))[None, None, :]
    wp = np.full((192, 16, 4, 16, 8), np.nan)
    for t in range(16):
        for i in range(16): wp[12 * t + 11, :, :, i, :] = C[16 * t + i][kk]
    for tau in range(172):
        q = tau + tau // 11; n = q % 3
        for mu_, Wm in enumerate((Wg, Wu)):
            T, r8 = (q - n + mu_, n) if n < 2 else (q, mu_)
            for ph in range(8): wp[T, :, :, 8 * r8 + ph, :] = Wm[:, 8 * tau + ph][kk]
    M['WP'] = wp
    i = np.arange(32); q = i >> 3; nloc = 16 * ((i >> 2) & 1) + 4 * (i & 3) + q
    wdp = np.concatenate([wd, np.zeros((32, D))])
    M['WD'] = wdp.reshape(22, 4, 2, 8, 8, 2, 32)[..., nloc].transpose(4, 1, 0, 5, 2, 6, 3)
    h = Hm @ C.T + mu[SOFM][:, None]
    hb = h.reshape(S, 32, 16)
    M['HRES'] = np.stack([np.stack([hb[:, cg], hb[:, 31 - cg]]) for cg in range(16)]).reshape(16, 2, S, 2, 8).transpose(0, 1, 3, 2, 4)
    M['h'] = h
    rstd = 1 / np.sqrt((Hm ** 2).sum(1) / 512 + 1e-5)
    g = (Hm @ Wg) * rstd[:, None]; u = (Hm @ Wu) * rstd[:, None]
    H = 0.5 * g * (1 + np.tanh(np.sqrt(2 / np.pi) * (g + 0.044715 * g ** 3))) * u
    M['HF'] = H.reshape(64, 32, 86, 2, 8).transpose(2, 0, 3, 1, 4)
    out = np.zeros((S, D)); out[SOFM] = h + H @ wd
    M['out'] = out
    return M

if __name__ == '__main__':
    ref = np.load('ref0.npz'); M = model(ref)
    o = bf2f(ref['out']).reshape(S, D)
    e = M['out'] - o
    print('model vs torch ref: max', np.abs(e).max(), 'rms', np.sqrt((e ** 2).mean()), 'thr', 8 / 256 * np.abs(o).max())
    hh = np.zeros((S, D)); hh[SOFM] = M['h']
    print('h err', np.abs(hh - bf2f(ref['h']).reshape(S, D)).max())
    FA = bf2f(t_FA()).astype(np.float64); GB = h2f(t_GB(True)).astype(np.float64)
    z = np.random.randn(512); T = np.zeros((2, 16, 16))
    d1 = 16 * (E_[None, :] >> 2) + 4 * np.arange(4)[:, None] + (E_[None, :] & 3)
    for comp in range(2):
        for sl in range(16):
            for d2 in range(16):
                T[comp, sl, d2] = sum(FA[comp, 16 * g + sl, e] * z[16 * d1[g, e] + d2] for g in range(4) for e in range(8))
    Zh = z @ basis(); err = 0
    for sl in range(16):
        for j in range(16):
            for o_ in range(2):
                v = sum(GB[sl, o_, 16 * g + j, e] * T[e >> 2, sl, 4 * g + (e & 3)] / 4 for g in range(4) for e in range(8))
                c = 16 * sl + j
                want = Zh[rho(c, o_)] if c else (Zh[rho(0, 1)] if o_ == 0 else 0)
                err = max(err, abs(v - want))
    print('two-step table err', err, 'ws used', WS_USED)
```

```python
import sys, math, struct
import numpy as np
from dsl import K
from design import *
from gen import V, A, Sg, fbits, TBL, tables_text, header, kd, NAME, srd, cmul, TPAD

OPT = dict(stamps=False, gblate=True, tpost=True, every=48, mergeland=True, mrate=1.5, nopre=True, w0late=True, nA=6, c1=1, fpos=0, c2=1, prio=True, wgbfirst=True, wdshadow=True, wcont=True, nord=True, hold=True, esamp=7, echk=15, epost=8, wdend=62, lpoll=9, lchk=16, retouch=True, ntx=' nt', ntd=' nt', lp2=17, sbar=True, dpre=12, mfirst=2)
ST, LD = ' sc1', ' sc1'
WSR, RA, RB, RC = 's[24:27]', 's[28:31]', 's[32:35]', 's[36:39]'
WAVE = 's40'
KN = NAME + '_kernel'
SPIN = 400000
TW1, TW2 = 112, 128
B1, A4, A2, B3 = 144, 168, 192, 216
FA, GB = 200, 208
NZ, NC0, NI0 = 128, 216, 248
uid = [0]

def stamp(k, i, pm=False):
    if OPT.get('pst') and 1 <= i <= 5 and not pm: return
    if OPT.get('zdet') and 1 <= i <= 11 and pm != 'z': return
    if pm == 'z' and not OPT.get('zdet'): return
    if OPT.get('bdet') and 1 <= i <= 11 and pm != 'b': return
    if pm == 'b' and not OPT.get('bdet'): return
    if OPT['stamps']: k(f's_{"memtime" if OPT.get("pst") else "memrealtime"} s[{76+2*i}:{77+2*i}]')
def stamp_out(k, n):
    if not OPT['stamps']: return
    k.wait(vm=0, lg=0); stamp(k, n); n += 1; k.wait(lg=0)
    k(f's_lshl_b32 s44, s2, 8\n s_lshl_b32 s45, {WAVE}, 6\n s_add_u32 s44, s44, s45\n s_add_u32 s44, s44, {STAMP}')
    for i in range(16): k(f'v_mov_b32 v{8+i}, s{76+2*i}' if i < n else f'v_mov_b32 v{8+i}, 0')
    k('v_mov_b32 v24, 0\n s_mov_b64 exec, 1')
    for q in range(4): k(f'buffer_store_dwordx4 {V(8+4*q,4)}, v24, {WSR}, s44 offen offset:{16*q}')

def wsrd(k, base, end):
    k(f's_mov_b32 s{base}, s24\n s_mov_b32 s{base+1}, s25\n s_mov_b32 s{base+2}, {end}\n s_mov_b32 s{base+3}, 0x20000')

def tbl_addr(k, vp, soff):
    k(f"""s_add_u32 s46, s42, {soff}
    s_addc_u32 s47, s43, 0
    v_mov_b32 v{vp+1}, s47
    v_add_co_u32 v{vp}, vcc, s46, v4
    v_addc_co_u32 v{vp+1}, vcc, 0, v{vp+1}, vcc""")

def gb_loads(k):
    for q in range(8): k(f'global_load_dwordx4 {A(GB+4*q,4)}, v[8:9], off offset:{1024*q-4096}')

def prologue(k):
    k.raw(f'.globl {KN}\n.p2align 8\n.type {KN},@function\n{KN}:')
    stamp(k, 0)
    k(f"""s_load_dwordx16 s[4:19], s[0:1], 0
    s_load_dwordx4 s[20:23], s[0:1], 64
    s_getpc_b64 s[42:43]""")
    k.raw('L_pc:')
    k(f"""s_cmp_ge_u32 s2, 256
    s_cbranch_scc1 L_end
    v_lshrrev_b32 v5, 6, v0
    v_and_b32 v1, 63, v0
    v_readfirstlane_b32 {WAVE}, v5
    s_lshr_b32 s44, s2, 3
    v_lshl_add_u32 v5, v5, 5, s44
    v_lshlrev_b32 v6, 6, v1
    v_lshl_add_u32 v5, v5, 12, v6      ; 4 KiB slice per wave, one dword per 64 B""")
    k.raw('    v_min_u32 v5, L_image_end-L_pc-4, v5'); k.pos += 1
    k(f"""v_mov_b32 v7, s43
    v_add_co_u32 v6, vcc, s42, v5
    v_addc_co_u32 v7, vcc, 0, v7, vcc
    global_load_dword v255, v[6:7], off
    v_bfe_u32 v2, v0, 4, 2
    v_and_b32 v3, 15, v0
    v_lshlrev_b32 v4, 4, v1""")
    k.raw('    s_add_u32 s42, s42, tables-L_pc\n    s_addc_u32 s43, s43, 0'); k.pos += 2
    k(f's_cmp_ge_u32 s2, {NC0}\n s_cbranch_scc1 L_p1c')
    global st_c
    st_c = k.state()
    tbl_addr(k, 6, TBL['FA'])
    for c in range(2): k(f'global_load_dwordx4 {A(FA+4*c,4)}, v[6:7], off offset:{1024*c}')
    k(f"""s_cmp_lt_u32 s2, {NZ}
    s_cselect_b32 s45, {TBL["GBZ"]+4096}, {TBL["GBW"]+4096}
    s_lshl_b32 s44, {WAVE}, 13
    s_add_u32 s44, s44, s45""".replace(str(TBL["GBW"]+4096), 's47').replace('s_cmp_lt', f's_mov_b32 s47, {TBL["GBW"]+4096}\n s_cmp_lt'))
    tbl_addr(k, 8, 's44')
    if not OPT.get('gblate'): gb_loads(k)

def go_load(k, b):
    k(f'v_mov_b32 v{b}, 0\n global_load_dword v{b+4}, v{b}, s[20:21]{LD}')
def arrive_issue(k, b, cnt, go):
    k(f'v_mov_b32 v{b}, 0\n v_mov_b32 v{b+1}, 1\n s_mov_b64 exec, 1')
    if go:
        uid[0] += 1; u = uid[0]
        k('s_mov_b32 s46, 0')
        k.label(f'L_go{u}')
        k(f"""s_waitcnt vmcnt(0)
        v_cmp_ne_u32 vcc, 0, v{b+4}
        s_add_u32 s46, s46, 1
        s_cbranch_vccnz L_gone{u}
        global_load_dword v{b+4}, v{b}, s[20:21]{LD}
        s_cmp_lt_u32 s46, {SPIN}
        s_cbranch_scc1 L_go{u}""")
        k.label(f'L_gone{u}')
    k(f'buffer_atomic_add v{b+1}, v{b}, {WSR}, {cnt} offen sc0 sc1')
def arrive_check(k, b, flg, last, val):
    uid[0] += 1; u = uid[0]
    k(f"""s_mov_b64 exec, 0xff
    v_lshlrev_b32 v{b+2}, 11, v1
    v_mov_b32 v{b}, {val}
    v_readfirstlane_b32 s47, v{b+1}
    s_cmp_lg_u32 s47, {last}
    s_cbranch_scc1 L_nl{u}""")
    st = k.state()
    k(f'buffer_store_dword v{b}, v{b+2}, {WSR}, {flg} offen{ST}')
    k.restore(st)
    k.label(f'L_nl{u}')
def poll(k, b, val):
    uid[0] += 1; u = uid[0]
    k(f"""s_mov_b64 exec, 0xff
    v_lshlrev_b32 v{b+3}, 8, v1
    s_and_b32 s44, s2, 7
    s_lshl_b32 s44, s44, 11
    s_add_u32 s44, s44, {FLG}
    s_mov_b32 s46, 0""")
    k.label(f'L_bp{u}')
    k(f"""buffer_load_dword v{b+1}, v{b+3}, {WSR}, s44 offen{LD}
    s_add_u32 s46, s46, 1
    s_waitcnt vmcnt(0)
    v_cmp_gt_u32 vcc, {val}, v{b+1}
    s_cmp_gt_u32 s46, {SPIN}
    s_cbranch_scc1 L_bd{u}
    s_cbranch_vccnz L_bp{u}""")
    k.label(f'L_bd{u}')
    k('s_mov_b64 exec, -1')
def only_wave(k, w, fn):
    uid[0] += 1; u = uid[0]
    k(f's_cmp_lg_u32 {WAVE}, {w}\n s_cbranch_scc1 L_ow{u}')
    st = k.state(); fn(); k('s_mov_b64 exec, -1'); k.restore(st); k.label(f'L_ow{u}')

def p2_tables(k, vp=26):
    k(f's_lshl_b32 s44, {WAVE}, 13\n s_add_u32 s44, s44, {TBL["P2W"]+4096}')
    tbl_addr(k, vp, 's44'); tbl_addr(k, vp+2, TBL['P2S']+4096)
    o = [f'global_load_dwordx4 {V(B1+6*u+2,4)}, {V(vp,2)}, off offset:{1024*u-4096}' for u in range(4)]
    o += [f'global_load_dwordx4 {V(A2+6*u+2,4)}, {V(vp+2,2)}, off offset:{1024*u-4096}' for u in range(4)]
    o += [f'global_load_dwordx4 {V(B3+6*u+2,4)}, {V(vp+2,2)}, off offset:{1024*u}' for u in range(4)]
    o += [f'global_load_dwordx4 {V(A4+6*u+2,4)}, {V(vp,2)}, off offset:{1024*u}' for u in range(4)]
    return o
def flush(k):
    sp, k.sprinkle = k.sprinkle, []
    for t in sp: k(t)

def gtouch(k, dst):
    k(f"""s_bitcmp1_b32 s2, 0
    s_cselect_b32 s36, s14, s12
    s_cselect_b32 s37, s15, s13
    s_and_b32 s37, s37, 0xffff
    s_mov_b32 s38, {D*F*2}
    s_lshr_b32 s44, s2, 3
    s_lshl_b32 s44, s44, 2
    s_add_u32 s44, s44, {WAVE}
    s_mul_i32 s44, s44, {8*2752}
    s_bfe_u32 s46, s2, 0x20001
    s_mul_i32 s46, s46, 704
    s_add_u32 s44, s44, s46
    v_and_b32 v15, 7, v1
    v_lshlrev_b32 v15, 7, v15
    v_min_u32 v15, 700, v15
    v_lshrrev_b32 v16, 3, v1
    v_mul_u32_u24 v16, 2752, v16
    v_add_u32 v15, v15, v16
    s_mov_b32 exec_lo, 0x7f7f7f7f
    s_mov_b32 exec_hi, 0x7f7f7f7f
    buffer_load_dword v{dst}, v15, {RC}, s44 offen
    s_mov_b64 exec, -1""")

def p1_z(k):
    X, DA, TR, SS, WL, WO = 32, 48, 80, 96, 104, 120
    k(f"""s_and_b32 s44, s2, 7
    s_lshr_b32 s45, s2, 4
    s_lshl_b32 s45, s45, 3
    s_add_u32 s44, s44, s45
    s_lshl_b32 s44, s44, 1
    s_bfe_u32 s45, s2, 0x10003
    s_add_u32 s60, s44, s45            ; (t,g,beta,bq)
    s_lshr_b32 s61, s60, 3
    s_lshl_b32 s61, s61, 7
    s_and_b32 s44, s60, 7
    s_lshl_b32 s44, s44, 2
    s_add_u32 s44, s44, s61
    s_add_u32 s44, s44, {WAVE}
    s_lshl_b32 s56, s44, 10
    s_add_u32 s57, s56, 0x8000
    s_add_u32 s58, s56, 0x10000
    s_add_u32 s59, s56, 0x18000
    s_mov_b32 s38, {S*D*2}
    s_mov_b32 s39, 0x20000
    s_bfe_u32 s48, s2, 0x20003
    s_and_b32 s44, s2, 7
    s_lshl_b32 s44, s44, 2
    s_add_u32 s48, s48, s44
    s_and_b32 s44, s2, 0x60
    s_add_u32 s48, s48, s44
    s_add_u32 s48, s48, 128""")
    wt_rows(k, 's48', 49)
    k(f's_mul_i32 s44, {WAVE}, {64*514}\n s_add_u32 s49, s49, s44')
    k.wait(lg=0)
    stamp(k, 1, 'z')
    k('s_mov_b32 s36, s4\n s_and_b32 s37, s5, 0xffff')
    for i in range(4): k(f'buffer_load_dwordx4 {V(X+4*i,4)}, v4, {RC}, s{56+i} offen{OPT.get("ntx", "")}')
    k(WSRDS)
    if not OPT.get('nowpf'):
        k(f"""v_lshrrev_b32 v15, 1, v3
        v_mul_u32_u24 v15, 514, v15
        v_and_b32 v16, 1, v1
        v_mul_u32_u24 v16, 126, v16
        v_add_u32 v15, v15, v16
        s_mov_b64 exec, 0xffff
        buffer_load_ushort v{WO}, v15, {RA}, s49 offen{OPT.get('ntw', '')}
        buffer_load_ushort v{WO+1}, v15, {RB}, s49 offen{OPT.get('ntw', '')}
        s_mov_b64 exec, -1""")
    if OPT.get('gpf') == 2: gb_loads(k)
    if OPT.get('gpf'): gtouch(k, WO+2)
    if OPT.get('gpf') != 2: gb_loads(k)
    k('v_mov_b32 v15, v11')
    wl_ = [f'buffer_load_dwordx4 {V(WL,4)}, v15, {RA}, s49 offen', f'buffer_load_dwordx4 {V(WL+4,4)}, v15, {RB}, s49 offen']
    wt_dest(k, 's48', 50)
    k(f"""s_lshl_b32 s44, {WAVE}, 2
    s_add_u32 s44, s44, 0xa000
    v_add_u32 v12, s44, v12
    s_lshl_b32 s44, {WAVE}, 5
    v_xor_b32 v13, s44, v4
    s_lshl_b32 s44, {WAVE}, 11
    s_add_u32 s44, s44, 0xa000
    v_add_u32 v13, s44, v13
    v_xor_b32 v14, 16, v13
    s_mul_i32 s44, {WAVE}, {16*WT_STRIDE}
    s_add_u32 s50, s50, s44
    s_add_u32 s51, s50, {8*WT_STRIDE}""")
    srd(k, 24, 22, WS_USED)
    k(f"""s_lshl_b32 s44, {WAVE}, 12
    v_add_u32 v30, s44, v4
    v_lshrrev_b32 v31, 1, v4
    v_add_u32 v31, s44, v31
    v_mul_u32_u24 v6, {TPAD}, v3
    v_lshl_add_u32 v6, v2, 8, v6
    s_lshl_b32 s44, {WAVE}, 6
    s_add_u32 s44, s44, 16384
    v_add_u32 v6, s44, v6
    s_mul_i32 s44, {WAVE}, {4*TPAD}
    s_add_u32 s44, s44, 16384
    v_add_u32 v7, s44, v4
    v_cmp_eq_u32 vcc, 0, v3
    v_cndmask_b32 v8, 0, 1.0, vcc
    s_mov_b32 s62, 0x3f803f80
    v_mul_u32_u24 v9, {ZT_STRIDE}, v3
    v_lshl_add_u32 v9, v2, 4, v9
    s_lshr_b32 s44, s60, 5
    s_lshl_b32 s44, s44, 11
    s_bfe_u32 s45, s60, 0x10002
    s_lshl_b32 s46, s45, 10
    s_add_u32 s44, s44, s46
    s_bfe_u32 s46, s60, 0x20003
    s_lshl_b32 s46, s46, 8
    s_add_u32 s44, s44, s46
    s_and_b32 s46, s60, 3
    s_lshl_b32 s47, s46, 6
    s_add_u32 s44, s44, s47
    s_lshl_b32 s63, s60, 7
    s_add_u32 s63, s63, {SM}
    s_mul_i32 s47, {WAVE}, {64*ZT_STRIDE}
    s_add_u32 s44, s44, s47
    s_add_u32 s64, s44, {ZT}
    s_add_u32 s65, s64, {16*ZT_STRIDE}
    s_add_u32 s66, s64, {32*ZT_STRIDE}
    s_add_u32 s67, s64, {48*ZT_STRIDE}
    s_lshl_b32 s44, {WAVE}, 4
    s_add_u32 s44, s44, 0x9000
    v_lshl_add_u32 v10, v2, 2, s44""")
    tl = p2_tables(k)
    wp_ = OPT.get('wpos', 16); tl = tl[:wp_] + wl_ + tl[wp_:]
    if True:
        stamp(k, 2, 'z')
        for i in range(4):
            k(f'ds_write_b128 v30, {V(X+4*i,4)} offset:{1024*i}')
            if i == 0: stamp(k, 1)
            for r in range(2): k(f'ds_read_b64_tr_b16 {V(TR+4*i+2*r,2)}, v31 offset:{1024*i+512*r}')
            for j in range(4):
                k(f'v_dot2_f32_bf16 v{SS+i}, v{X+4*i+j}, s62, {"0" if j==0 else V(SS+i)}')
                k(f'v_dot2_f32_bf16 v{SS+4+i}, v{X+4*i+j}, v{X+4*i+j}, {"0" if j==0 else V(SS+4+i)}')
        stamp(k, 3, 'z')
        k.sprinkle = tl; k.every = OPT.get('tev', 28); k.since = 100
        stamp(k, 4, 'z')
        mf = [f'v_mfma_f32_16x16x32_bf16 {V(DA+8*i+4*c,4)}, {V(TR+4*i,4)}, {A(FA+4*c,4)}, 0' for i in range(4) for c in range(2)]
        k(mf.pop(0)); k(mf.pop(0))
        for b in (SS, SS+4):
            k(f'v_permlane32_swap_b32 v{b}, v{b+2}\n v_permlane32_swap_b32 v{b+1}, v{b+3}')
        for b in (SS, SS+4):
            k(f'v_add_f32 v{b}, v{b}, v{b+2}\n v_add_f32 v{b+1}, v{b+1}, v{b+3}')
        k(mf.pop(0))
        for b in (SS, SS+4): k(f'v_permlane16_swap_b32 v{b}, v{b+1}')
        for b in (SS, SS+4): k(f'v_add_f32 v{b}, v{b}, v{b+1}')
        for sh in (8, 4, 2, 1):
            k(mf.pop(0))
            for b in (SS, SS+4): k(f'v_add_f32_dpp v{b}, v{b}, v{b} row_ror:{sh} row_mask:0xf bank_mask:0xf')
        k(mf.pop(0))
        k(f"""v_mul_f32 v{SS}, {fbits(1/512)}, v{SS}
        v_mul_f32 v{SS+4}, {fbits(1/512)}, v{SS+4}
        v_fma_f32 v{SS+4}, -v{SS}, v{SS}, v{SS+4}
        v_max_f32 v{SS+4}, 0, v{SS+4}
        v_add_f32 v{SS+4}, {fbits(1e-5)}, v{SS+4}
        v_rsq_f32 v{SS+1}, v{SS+4}
        v_mul_f32 v{SS+2}, {fbits(-8.0)}, v{SS}
        v_mul_f32 v{SS+2}, v{SS+2}, v{SS+1}
        v_mul_f32 v{SS+3}, {fbits(0.25)}, v{SS+1}""")
        for i in range(4):
            k(f'v_readlane_b32 s{68+2*i}, v{SS+3}, {16*i}\n v_readlane_b32 s{69+2*i}, v{SS+2}, {16*i}')
        for i in range(4):
            d = DA + 8*i
            k(f'v_mul_f32 v{TR}, s{69+2*i}, v8')
            for h in range(2):
                k(f'v_pk_mul_f32 {V(d+4+2*h,2)}, {V(d+4+2*h,2)}, {Sg(68+2*i,2)} op_sel_hi:[1,0]')
            for h in range(2):
                k(f'v_pk_fma_f32 {V(d+2*h,2)}, {V(d+2*h,2)}, {Sg(68+2*i,2)}, {V(TR,2)} op_sel_hi:[1,0,0]')
            for h in (2, 3, 0, 1): k(f'v_cvt_pk_f16_f32 v{X+4*i+h}, v{d+2*h}, v{d+2*h+1}')
            k(f'ds_write_b128 v6, {V(X+4*i,4)} offset:{16*i}')
        k(f"""v_mul_f32 v{SS+4}, v{SS+4}, v{SS+1}
        ds_write2_b32 v10, v{SS+4}, v{SS} offset0:0 offset1:16""")
        print('tables left', len(k.sprinkle)); flush(k)
        def wt_a():
            for i in range(8):
                k(f'v_perm_b32 v{WO+i}, v{WL+4+(i>>1)}, v{WL+(i>>1)}, s{53+(i&1)}')
                k(f'ds_write_b32 v12, v{WO+i} offset:{128*i}')
        if OPT.get('wtearly'): wt_a()
        k.wait(lg=0); k('s_barrier')
        if OPT.get('zst'): stamp(k, 1)
        stamp(k, 5, 'z')
        for q in range(4): k(f'ds_read_b128 {V(TR+4*q,4)}, v7 offset:{TPAD*q}')
        k(f'ds_read_b128 {V(SS,4)}, v4 offset:0x9000')
        go_load(k, 250)
        wt_b = lambda: [k(f'ds_read_b128 {V(WL+4*n,4)}, v{13+n} offset:{1024*n}') for n in range(2)]
        wt_c = lambda: [k(f'buffer_store_dwordx4 {V(WL+4*n,4)}, v11, {WSR}, s{50+n} offen{ST}') for n in range(2)]
        if OPT.get('wtearly'): wt_b()
        for q in range(4):
            for o in range(2): k(f'v_mfma_f32_16x16x32_f16 {V(DA+8*q+4*o,4)}, {V(TR+4*q,4)}, {A(GB+8*q+4*o,4)}, 0')
        k.wait(lg=0)
        if OPT.get('wtearly'): wt_c()
        only_wave(k, 3, lambda: k(f's_mov_b64 exec, 0xff\n buffer_store_dwordx4 {V(SS,4)}, v4, {WSR}, s63 offen{ST}'))
        for q in range(4):
            for h in range(4): k(f'v_cvt_pk_f16_f32 v{X+4*q+h}, v{DA+8*q+2*h}, v{DA+8*q+2*h+1}')
            k(f'buffer_store_dwordx4 {V(X+4*q,4)}, v9, {WSR}, s{64+q} offen{ST}')
        stamp(k, 6, 'z')
        if not OPT.get('wtearly'):
            wt_a(); k.wait(lg=0); k('s_barrier'); wt_b(); wt_c()
        stamp(k, 2)

def p1_w(k):
    OP, DA = 32, 64
    TBASE = 32768
    k(f"""s_and_b32 s61, s2, 1               ; mu
    s_bfe_u32 s60, s2, 0x60001
    s_and_b32 s44, s60, 3
    s_lshl_b32 s44, s44, 1
    s_bfe_u32 s45, s60, 0x10002
    s_add_u32 s44, s44, s45
    s_andn2_b32 s45, s60, 7
    s_add_u32 s44, s44, s45
    s_cmp_lt_u32 s60, 40
    s_cselect_b32 s60, s44, s60        ; phi""" + ("""
    s_bfe_u32 s44, s2, 0x20001
    s_mul_i32 s44, s44, 11
    s_bfe_u32 s45, s2, 0x40003
    s_add_u32 s60, s44, s45""" if OPT.get('wcont') else '') + f"""
    s_mul_i32 s44, {WAVE}, {4*2752}
    s_lshl_b32 s45, s60, 6
    s_add_u32 s62, s44, s45
    v_lshrrev_b32 v10, 2, v1
    v_mul_u32_u24 v30, {16*2752}, v10
    v_and_b32 v11, 3, v1
    v_and_b32 v12, 1, v2
    v_lshlrev_b32 v12, 1, v12
    v_xor_b32 v13, v11, v12
    v_lshl_add_u32 v30, v13, 4, v30    ; DMA source
    s_lshl_b32 s63, {WAVE}, 13
    s_mov_b32 s38, {D*F*2}
    s_mov_b32 s39, 0x20000
    """)
    k(f"""s_bfe_u32 s64, s2, 0x40003
    s_lshl_b32 s64, s64, 2
    s_add_u32 s64, s64, {WAVE}
    s_mul_i32 s64, s64, {12*2752}
    s_bfe_u32 s46, s2, 0x20001
    s_mul_i32 s46, s46, 704
    s_add_u32 s64, s64, s46
    s_add_u32 s65, s64, {8*2752}
    v_and_b32 v14, 7, v1
    v_lshlrev_b32 v14, 7, v14
    v_min_u32 v14, 700, v14
    v_lshrrev_b32 v15, 3, v1
    v_mul_u32_u24 v15, 2752, v15
    v_add_u32 v14, v14, v15""")
    if OPT.get('wgbfirst'): gb_loads(k)
    k.wait(lg=0)
    stamp(k, 1, 'z')
    k(f"""s_cmp_eq_u32 s61, 0
    s_cselect_b32 s36, s12, s14
    s_cselect_b32 s37, s13, s15
    s_and_b32 s37, s37, 0xffff""")
    if not OPT.get('nowt2'):
        k(f"""s_mov_b32 exec_lo, 0x7f7f7f7f
        s_mov_b32 exec_hi, 0x7f7f7f7f
        buffer_load_dword v20, v14, {RC}, s64 offen{OPT.get('ntg', '')}
        s_mov_b32 exec_hi, 0
        buffer_load_dword v21, v14, {RC}, s65 offen{OPT.get('ntg', '')}
        s_mov_b64 exec, -1""")
    pos = []
    for n in range(8):
        k(f's_add_u32 m0, s63, {1024*n}\n s_add_u32 s44, s62, {((n>>1) + 256*(n&1))*2752}')
        k(f'buffer_load_dwordx4 v30, {RC}, s44 offen{OPT.get("ntg", "")} lds'); pos.append(k.nvm)
    if not OPT.get('wgbfirst'): gb_loads(k)
    srd(k, 24, 22, WS_USED)
    k(f"""v_lshlrev_b32 v31, 6, v10
    v_lshl_add_u32 v31, v12, 4, v31
    v_lshl_add_u32 v31, v11, 3, v31
    v_add_u32 v30, s63, v31
    v_xor_b32 v31, 32, v30
    v_mul_u32_u24 v6, {4*TPAD}, v2
    v_lshl_add_u32 v6, v3, 4, v6
    s_lshl_b32 s44, {WAVE}, 8
    s_add_u32 s44, s44, {TBASE}
    v_add_u32 v6, s44, v6              ; T write
    s_mul_i32 s44, {WAVE}, {4*TPAD}
    s_add_u32 s44, s44, {TBASE}
    v_add_u32 v7, s44, v4              ; T read
    s_lshl_b32 s44, s60, 2
    v_lshrrev_b32 v12, 3, v3
    v_and_b32 v13, 7, v3
    v_lshlrev_b32 v13, 4, v13
    v_lshl_add_u32 v13, v2, 8, v13
    s_lshl_b32 s45, {WAVE}, 12
    s_add_u32 s62, s45, {WP}
    v_mov_b32 v19, s61""")
    for pp in range(2):
        k(f"""v_add_u32 v14, s44, v12            ; octet
        v_mul_u32_u24 v15, 373, v14
        v_lshrrev_b32 v15, 12, v15
        v_add_u32 v14, v14, v15            ; q
        v_mul_u32_u24 v15, 171, v14
        v_lshrrev_b32 v15, 9, v15
        v_mul_u32_u24 v15, 3, v15          ; q - q%3
        v_sub_u32 v16, v14, v15            ; n
        v_cmp_eq_u32 vcc, 2, v16
        v_add_u32 v15, s61, v15
        s_add_u32 s44, s44, 2
        v_cndmask_b32 v15, v15, v14, vcc   ; tile
        v_cndmask_b32 v16, v16, v19, vcc
        v_mul_u32_u24 v15, {WPS}, v15
        v_add_u32 v{8+pp}, v15, v13
        v_lshl_add_u32 v{8+pp}, v16, 7, v{8+pp}""")
    tl = p2_tables(k)
    stamp(k, 2, 'z')
    for dl in range(4):
        k(f's_waitcnt vmcnt({k.nvm - pos[2*dl+1]})')
        if dl == 0: stamp(k, 1)
        for pi in range(2):
            for h in range(2): k(f'ds_read_b64_tr_b16 {V(OP+8*dl+4*pi+2*h,2)}, v{30+pi} offset:{2048*dl+1024*h}')
    stamp(k, 3, 'z')
    k.sprinkle = tl; k.every = OPT.get('tev', 28); k.since = 100
    for dl in range(4):
        for pi in range(2):
            for c in range(2):
                k(f'v_mfma_f32_16x16x32_bf16 {V(DA+32*pi+16*c+4*dl,4)}, {A(FA+4*c,4)}, {V(OP+8*dl+4*pi,4)}, 0')
    for pi in range(2):
        for r in range(4):
            u = OP + 16*pi + 4*r
            for c in range(2):
                for h in range(2):
                    d = DA + 32*pi + 16*c + 8*h + r
                    k(f'v_cvt_pk_bf16_f32 v{u+2*c+h}, v{d}, v{d+4}')
            k(f'ds_write_b128 v6, {V(u,4)} offset:{16*TPAD*pi+TPAD*r}')
    flush(k)
    stamp(k, 4, 'z')
    k.wait(lg=0); k('s_barrier')
    stamp(k, 5, 'z')
    for pi in range(2):
        for q in range(4): k(f'ds_read_b128 {V(OP+16*pi+4*q,4)}, v7 offset:{16*TPAD*pi+TPAD*q}')
    go_load(k, 250)
    for pi in range(2):
        for q in range(4):
            for o in range(2):
                k(f'v_mfma_f32_16x16x32_bf16 {V(DA+32*pi+8*q+4*o,4)}, {A(GB+8*q+4*o,4)}, {V(OP+16*pi+4*q,4)}, 0')
    for pi in range(2):
        for p in range(2):
            for o in range(2):
                u = OP + 16*pi + 8*p + 4*o
                for hq in range(2):
                    for h in range(2):
                        d = DA + 32*pi + 8*(2*p+hq) + 4*o + 2*h
                        k(f'v_cvt_pk_bf16_f32 v{u+2*hq+h}, v{d}, v{d+1}')
                k(f'buffer_store_dwordx4 {V(u,4)}, v{8+pi}, {WSR}, s62 offen offset:{(2*p+o)*1024}{ST}')
    stamp(k, 2); stamp(k, 6, 'z')

def wt_rows(k, task, dst):
    k(f"""s_bfe_u32 s44, {task}, 0x30002
    s_lshl_b32 s44, s44, 3
    s_lshr_b32 s45, {task}, 5
    s_lshl_b32 s45, s45, 8
    s_add_u32 s44, s44, s45
    s_mul_i32 s{dst}, s44, 514
    s_and_b32 s45, {task}, 3
    s_lshl_b32 s45, s45, 7
    s_add_u32 s{dst}, s{dst}, s45
    s_add_u32 s{dst}, s{dst}, 2
    v_lshrrev_b32 v12, 3, v1
    v_and_b32 v13, 7, v1
    v_mul_u32_u24 v11, 514, v12
    v_lshl_add_u32 v11, v13, 4, v11
    s_mov_b32 s30, {2048*257*2}
    s_mov_b32 s31, 0x20000
    s_mov_b32 s34, {2048*257*2}
    s_mov_b32 s35, 0x20000""")
def wt_dest(k, task, dst):
    k(f"""s_and_b32 s44, {task}, 3
    s_mul_i32 s{dst}, s44, {64*WT_STRIDE}
    s_lshr_b32 s44, {task}, 7
    s_lshl_b32 s44, s44, 12
    s_add_u32 s{dst}, s{dst}, s44
    s_bfe_u32 s44, {task}, 0x20003
    s_lshl_b32 s44, s44, 10
    s_add_u32 s{dst}, s{dst}, s44
    s_bfe_u32 s44, {task}, 0x20005
    s_lshl_b32 s44, s44, 8
    s_add_u32 s{dst}, s{dst}, s44
    s_bfe_u32 s44, {task}, 0x10002
    s_lshl_b32 s44, s44, 7
    s_add_u32 s{dst}, s{dst}, s44
    s_add_u32 s{dst}, s{dst}, {WT}
    s_mov_b32 s53, 0x05040100
    s_mov_b32 s54, 0x07060302
    v_mul_u32_u24 v11, {WT_STRIDE}, v12
    v_lshl_add_u32 v11, v13, 4, v11
    v_xor_b32 v12, v12, v13
    v_lshlrev_b32 v12, 4, v12
    v_lshl_add_u32 v12, v13, 10, v12""")
WSRDS = 's_mov_b32 s28, s6\n s_and_b32 s29, s7, 0xffff\n s_mov_b32 s32, s8\n s_and_b32 s33, s9, 0xffff'
def p1_t(k):
    WL, WO = 32, 64
    k(f's_sub_u32 s48, s2, {NC0}\n s_lshl_b32 s48, s48, 2\n s_add_u32 s48, s48, {WAVE}')
    wt_rows(k, 's48', 49)
    for r in range(1, 4): k(f's_add_u32 s{49+r}, s49, {64*r*514}')
    k.wait(lg=0)
    k(WSRDS)
    for r in range(4):
        k(f'buffer_load_dwordx4 {V(WL+8*r,4)}, v11, {RA}, s{49+r} offen{OPT.get("ntw", "")}')
        k(f'buffer_load_dwordx4 {V(WL+8*r+4,4)}, v11, {RB}, s{49+r} offen{OPT.get("ntw", "")}')
    srd(k, 24, 22, WS_USED)
    wt_dest(k, 's48', 56)
    k(f's_lshl_b32 s44, {WAVE}, 13\n v_add_u32 v12, s44, v12\n v_add_u32 v14, s44, v4')
    for n in range(1, 8): k(f's_add_u32 s{56+n}, s56, {8*n*WT_STRIDE}\n v_xor_b32 v{14+n}, {16*n}, v14')
    tl = p2_tables(k)
    for i in range(8):
        o = WO + 4*i
        for r in range(4): k(f'v_perm_b32 v{o+r}, v{WL+8*r+4+(i>>1)}, v{WL+8*r+(i>>1)}, s{53+(i&1)}')
        k(f'ds_write_b128 v12, {V(o,4)} offset:{128*i}')
        for t in tl[2*i:2*i+2]: k(t)
    stamp(k, 1)
    for n in range(8): k(f'ds_read_b128 {V(WL+4*n,4)}, v{14+n} offset:{1024*n}')
    go_load(k, 250)
    for n in range(8): k(f'buffer_store_dwordx4 {V(WL+4*n,4)}, v11, {WSR}, s{56+n} offen{ST}')
    stamp(k, 2)

def p1_i(k):
    k.wait(lg=0)
    srd(k, 24, 22, WS_USED)
    k(f"""s_lshl_b32 s44, s2, 2
    s_add_u32 s44, s44, {WAVE}
    s_cmp_lg_u32 s44, {255*4}
    s_cbranch_scc1 L_noinit
    v_lshlrev_b32 v30, 8, v1
    v_lshlrev_b32 v31, 8, v3
    v_mov_b32 v32, 0
    s_mov_b32 s44, {FLG}
    s_mov_b32 s45, {FLG+16384}
    buffer_store_dword v32, v30, {WSR}, s44 offen{ST}
    buffer_store_dword v32, v30, {WSR}, s45 offen{ST}
    buffer_store_dword v32, v31, {WSR}, 0 offen{ST}
    v_mov_b32 v33, 1
    s_waitcnt vmcnt(0)
    s_mov_b64 exec, 1
    global_store_dword v32, v33, s[20:21]{ST}
    s_mov_b64 exec, -1""")
    k.label('L_noinit')
    k(f"""s_sub_u32 s60, s2, {NI0}
    s_lshl_b32 s61, s60, 1
    s_lshr_b32 s44, {WAVE}, 1
    s_add_u32 s61, s61, s44            ; t
    s_and_b32 s62, {WAVE}, 1
    s_lshl_b32 s62, s62, 2             ; p
    s_add_u32 s63, s62, 4
    s_lshl_b32 s44, s61, 5
    s_add_u32 s44, s44, 1
    v_lshl_add_u32 v30, v3, 1, s44     ; 2d+1
    v_and_b32 v31, 1, v2
    v_lshlrev_b32 v31, 7, v31
    v_cmp_lt_u32 s[64:65], 1, v2
    v_mov_b32 v36, {fbits(1/16)}
    s_mul_i32 s61, s61, {12*WPS}
    s_add_u32 s61, s61, {WP+11*WPS}""")
    for t in p2_tables(k): k(t)
    stamp(k, 1)
    k.fence(); k.label('L_inv')
    k(f"""s_lshl_b32 s44, s62, 1
    s_sub_u32 s45, 32, s44
    s_cmp_eq_u32 s44, 0
    s_cselect_b32 s45, 16, s45
    v_mov_b32 v33, s44
    v_mov_b32 v34, s45
    v_cndmask_b32 v33, v33, v34, s[64:65]
    v_add_u32 v33, v33, v31
    s_add_u32 s44, s44, 1
    s_sub_u32 s45, 32, s44
    v_mov_b32 v34, s44
    v_mov_b32 v35, s45
    v_cndmask_b32 v34, v34, v35, s[64:65]
    v_add_u32 v34, v34, v31
    v_cmp_eq_u32 vcc, 0, v33
    v_mov_b32 v35, 0x100
    v_mov_b32 v37, {fbits(1/math.sqrt(512))}
    v_cndmask_b32 v35, v33, v35, vcc
    v_cndmask_b32 v37, v36, v37, vcc
    s_lshl_b32 s45, s62, 11
    s_add_u32 s66, s61, s45""")
    for e in range(8):
        src = 'v35' if e == 0 else None
        if e: k(f'v_add_u32 v{40+e}, {32*(e&3)}, v{33+(e>>2)}')
        k(f'v_mul_u32_u24 v{40+e}, {src or V(40+e)}, v30')
        k(f'v_and_b32 v{40+e}, 0x3ff, v{40+e}')
        k(f'v_cvt_f32_u32 v{40+e}, v{40+e}')
        k(f'v_mul_f32 v{40+e}, {fbits(1/1024)}, v{40+e}')
    for e in range(8):
        k(f'v_cos_f32 v{48+e}, v{40+e}\n v_sin_f32 v{56+e}, v{40+e}')
    for e in range(8):
        sc = 'v37' if e == 0 else 'v36'
        k(f'v_mul_f32 v{48+e}, {sc}, v{48+e}\n v_mul_f32 v{56+e}, {sc}, -v{56+e}')
    for part in range(2):
        for h in range(4): k(f'v_cvt_pk_bf16_f32 v{64+4*part+h}, v{48+8*part+2*h}, v{48+8*part+2*h+1}')
        k(f'buffer_store_dwordx4 {V(64+4*part,4)}, v4, {WSR}, s66 offen offset:{1024*part}{ST}')
    k('s_add_u32 s62, s62, 1\n s_cmp_lt_u32 s62, s63\n s_cbranch_scc1 L_inv')
    go_load(k, 250)
    stamp(k, 2)

WDL = 40
def wd_issue(k):
    srd(k, 36, 16, F*D*2)
    k(f"""s_lshl_b32 s44, {WAVE}, 7
    s_add_u32 s44, s44, s2
    s_sub_u32 s73, s44, 128
    s_cmp_lt_u32 s2, {NZ}
    s_cselect_b32 s73, s73, 352
    s_min_u32 s73, s73, 352
    s_lshr_b32 s44, s73, 1
    s_lshl_b32 s44, s44, 13
    s_and_b32 s45, s73, 1
    s_lshl_b32 s45, s45, 9
    s_add_u32 s44, s44, s45
    s_add_u32 s45, s44, 4096
    v_lshlrev_b32 v20, 3, v1""")
    for e in range(8): k(f'buffer_load_dwordx2 {V(WDL+2*e,2)}, v20, {RC}, s{44+(e>>2)} offen offset:{1024*(e&3)}{OPT.get("ntd", "")}')
def wd_finish(k, inp2=False):
    if not inp2:
        k(f's_cmp_ge_u32 s73, 352\n s_cbranch_scc1 L_nowd')
        st = k.state()
    k(f"""s_lshr_b32 s44, s73, 4
    s_bfe_u32 s45, s73, 0x20002
    s_lshl_b32 s44, s44, 11
    s_mul_i32 s45, s45, {WDS}
    s_add_u32 s44, s44, s45
    s_and_b32 s45, s73, 1
    s_mul_i32 s45, s45, {16*WDS}
    s_add_u32 s44, s44, s45
    s_bfe_u32 s45, s73, 0x10001
    s_lshl_b32 s45, s45, 9
    s_add_u32 s44, s44, s45
    s_add_u32 s44, s44, {WD}
    s_cmp_lt_u32 s73, 352
    s_cselect_b32 s44, s44, {WS_USED}
    s_mov_b32 s46, 0x05040100
    s_mov_b32 s47, 0x07060302
    v_mul_u32_u24 v30, {4*WDS}, v2
    v_bfe_u32 v31, v1, 3, 1
    v_lshl_add_u32 v30, v31, 10, v30
    v_and_b32 v31, 7, v1
    v_lshl_add_u32 v30, v31, 4, v30""")
    for pi in range(4):
        o = WDL + 16 + 4*(pi & 1)
        for h in range(4): k(f'v_perm_b32 v{o+h}, v{WDL+4*h+2+(pi>>1)}, v{WDL+4*h+(pi>>1)}, s{46+(pi&1)}')
        k(f'buffer_store_dwordx4 {V(o,4)}, v30, {WSR}, s44 offen offset:{128*pi}{ST}')
    if not inp2:
        k.fence()
        k.restore(st); k.label('L_nowd')

STATL = 131072
def p4_ids(k):
    k(f"""s_and_b32 s44, s2, 7
    s_lshl_b32 s44, s44, 2
    s_bfe_u32 s46, s2, 0x20003
    s_add_u32 s44, s44, s46
    s_lshr_b32 s45, s2, 5""")

def setup(k):
    if OPT.get('x216'):
        k(f"""s_and_b32 s44, s2, 7
        s_lshl_b32 s44, s44, 1
        s_bfe_u32 s45, s2, 0x10003
        s_add_u32 s48, s44, s45
        s_lshr_b32 s49, s2, 4
        s_lshl_b32 s45, s45, 2
        s_mov_b32 s46, s49""")
    elif OPT.get('x48'):
        k(f"""s_and_b32 s44, s2, 3
        s_lshl_b32 s44, s44, 2
        s_bfe_u32 s45, s2, 0x20003
        s_add_u32 s48, s44, s45
        s_and_b32 s44, s2, 4
        s_lshl_b32 s44, s44, 1
        s_lshr_b32 s46, s2, 5
        s_add_u32 s49, s44, s46
        s_lshl_b32 s45, s45, 1""")
    else:
        k(f"""s_and_b32 s44, s2, 1
        s_lshl_b32 s44, s44, 3
        s_bfe_u32 s45, s2, 0x30003
        s_add_u32 s48, s44, s45
        s_bfe_u32 s44, s2, 0x20001
        s_lshl_b32 s44, s44, 2
        s_lshr_b32 s46, s2, 6
        s_add_u32 s49, s44, s46
        s_lshl_b32 s46, s46, 1""")
    k(f"""s_mov_b32 s53, 0
    s_lshl_b32 s46, s48, 11
    s_lshl_b32 s47, s49, 7
    s_add_u32 s41, s46, s47
    s_add_u32 s41, s41, {RBF}
    v_mov_b32 v250, 0""")
    stamp(k, 7, 'z')
    k(f"""v_and_b32 v23, 7, v1
    v_lshlrev_b32 v23, 8, v23
    s_and_b32 s74, s2, 7
    s_lshl_b32 s74, s74, 8
    s_add_u32 s75, s74, {FLG}
    s_sub_u32 s44, s2, {NZ}
    s_cmp_lt_u32 s44, {NC0-NZ}
    s_cselect_b32 s46, 1, 0
    s_cmp_ge_u32 s2, {NI0}
    s_cselect_b32 s46, 1, s46
    s_lshl_b32 s44, s46, 11
    s_lshl_b32 s45, s46, 14
    s_lshl_b32 s46, s46, 3
    s_sub_u32 s70, 19, s46
    s_add_u32 s71, s74, s44
    s_add_u32 s72, s75, s45
    s_lshl_b32 s44, s74, 3
    s_add_u32 s44, s44, {FLG+16384}
    v_add_u32 v23, s44, v23
    v_mov_b32 v251, 1
    s_mov_b32 s63, 0x80008000""")
    wd_issue(k)
    if OPT.get('searly'): setup_late(k)

def setup_late(k):
    k(f"""s_lshl_b32 s44, {WAVE}, 4
    v_add_u32 v240, s44, v3
    v_cvt_f32_u32 v240, v240
    v_mul_f32 v240, {fbits(1/2048)}, v240
    v_lshlrev_b32 v241, 2, v2
    v_add_u32 v242, s44, v241
    v_cvt_f32_u32 v241, v241
    v_cvt_f32_u32 v242, v242
    v_cvt_f32_u32 v243, v3
    v_mul_f32 v243, {fbits(1/2048)}, v243""")
    for be in range(2):
        for r in range(4):
            t = TW1 + 8*be + r
            k(f'v_add_f32 v{t}, {fbits(16*be+r)}, v241\n v_mul_f32 v{t}, v{t}, v240')
            k(f'v_sin_f32 v{t+4}, v{t}\n v_cos_f32 v{t}, v{t}')
    for be in range(2):
        if be: k(f'v_add_f32 v243, {fbits(16/2048)}, v243')
        for r in range(4):
            t = TW2 + 8*be + r
            k(f'v_add_f32 v{t}, {fbits(r)}, v242\n v_mul_f32 v{t}, v{t}, v243')
            k(f'v_sin_f32 v{t+4}, v{t}\n v_cos_f32 v{t}, v{t}')
    k(f's_mul_i32 s44, s2, {ZT_STRIDE}\n s_add_u32 s44, s44, {ZT}')
    for u in range(4):
        k(f's_add_u32 s45, {WAVE}, {u}\n s_and_b32 s45, s45, 3\n s_lshl_b32 s45, s45, 11\n s_add_u32 s{55+u}, s44, s45\n v_add_u32 v{16+u}, s45, v4')
    k(f"""s_lshr_b32 s44, s2, 4
    s_sub_u32 s45, 32, s44
    s_cmp_eq_u32 s44, 0
    s_cselect_b32 s45, 16, s45
    s_bitcmp1_b32 s2, 3
    s_cselect_b32 s44, s45, s44
    s_and_b32 s45, s2, 7
    s_lshl_b32 s45, s45, 5
    s_add_u32 s44, s44, s45
    s_sub_u32 s44, s44, 1
    s_and_b32 s44, s44, 255
    s_mul_i32 s44, s44, {WT_STRIDE}
    s_lshl_b32 s45, {WAVE}, 10
    s_add_u32 s44, s44, s45
    s_add_u32 s59, s44, {WT}
    s_add_u32 s60, s59, 4096
    s_lshl_b32 s45, {WAVE}, 12
    s_add_u32 s61, s45, {SM}
    v_lshrrev_b32 v21, 2, v3
    v_lshlrev_b32 v21, 7, v21
    v_lshl_add_u32 v21, v2, 10, v21
    v_and_b32 v22, 3, v1
    v_lshl_add_u32 v22, v22, 4, v21
    s_mov_b32 s63, 0x80008000""")

def setup2(k):
    k(f"""v_lshrrev_b32 v20, 2, v1
    v_lshlrev_b32 v20, 15, v20
    v_and_b32 v24, 3, v1
    v_lshl_add_u32 v20, v24, 4, v20
    s_lshr_b32 s44, s2, 5
    s_lshl_b32 s44, s44, 6
    s_and_b32 s45, s2, 31
    s_add_u32 s44, s44, s45
    s_lshl_b32 s44, s44, 6
    s_lshl_b32 s45, {WAVE}, 19
    s_add_u32 s44, s44, s45
    s_add_u32 s62, s44, {HT}
    s_mul_i32 s44, s49, 11
    s_mul_i32 s45, {WAVE}, 3
    s_add_u32 s50, s44, s45
    s_add_u32 s44, s50, s49
    s_mul_i32 s44, s44, {WPS}
    s_add_u32 s44, s44, {WP}
    v_add_u32 v248, s44, v4
    v_add_u32 v249, {WPS}, v248
    v_add_u32 v255, {2*WPS}, v248
    s_and_b32 s46, {WAVE}, 1
    s_lshr_b32 s47, {WAVE}, 1
    s_lshl_b32 s45, s46, 15
    s_lshl_b32 s54, s47, 12
    s_add_u32 m0, s54, s45
    s_lshl_b32 s44, s48, 17
    s_add_u32 s44, s44, {HT}
    v_and_b32 v6, 1, v2
    v_lshlrev_b32 v6, 5, v6
    v_xor_b32 v5, v6, v4
    v_add_u32 v5, s44, v5
    v_lshrrev_b32 v7, 2, v1
    v_lshl_add_u32 v6, v7, 6, v6
    v_lshl_add_u32 v6, v24, 3, v6
    s_lshl_b32 s44, s47, 5
    s_add_u32 s44, s44, s45
    v_xor_b32 v6, s44, v6
    v_xor_b32 v7, 32, v6
    v_lshrrev_b32 v9, 2, v3
    v_cmp_eq_u32 vcc, v9, v2
    s_lshl_b32 s47, s47, 8
    s_lshl_b32 s44, s46, 9
    s_add_u32 s44, s44, s47
    s_add_u32 s44, s44, {STATL}
    v_lshl_add_u32 v10, v3, 4, s44     ; statistics reads
    v_xor_b32 v8, 0x100, v10
    v_add_u32 v9, {STATL+2048}, v4
    v_cndmask_b32 v9, v9, v10, vcc     ; statistics write (other lanes go to a dummy area)
    v_lshrrev_b32 v24, 1, v2
    v_lshlrev_b32 v11, 8, v24
    v_xor_b32 v11, v11, v10            ; statistics for the mixed tile
    s_mov_b32 s64, 0x22222222
    s_mov_b32 s65, s64
    s_mov_b32 s66, 0x44444444
    s_mov_b32 s67, s66
    s_mov_b32 s68, 0x88888888
    s_mov_b32 s69, s68
    v_add_u32 v25, s50, v24
    v_lshrrev_b32 v12, 1, v25
    v_mul_u32_u24 v12, {HFS}, v12
    v_and_b32 v25, 1, v25
    v_lshl_add_u32 v12, v25, 9, v12
    v_and_b32 v25, 0x1f0, v4
    v_xor_b32 v25, s47, v25
    v_add_u32 v12, v25, v12
    s_add_u32 s44, s50, 2
    s_lshr_b32 s45, s44, 1
    s_mul_i32 s45, s45, {HFS}
    s_and_b32 s44, s44, 1
    s_lshl_b32 s44, s44, 9
    s_add_u32 s44, s44, s45
    v_lshlrev_b32 v13, 8, v24
    v_xor_b32 v13, s47, v13
    v_add_u32 v13, s44, v13
    v_lshl_add_u32 v13, v3, 4, v13
    v_and_b32 v25, 1, v2
    v_xor_b32 v25, 1, v25
    v_lshlrev_b32 v25, 10, v25
    s_lshl_b32 s44, s46, 1
    s_sub_u32 s44, 1, s44
    v_mul_i32_i24 v25, s44, v25
    v_sub_u32 v13, v13, v25""")
    wsrd(k, 32, HF+86*HFS)
    if OPT.get('wtouch'):
        k(f"""s_and_b32 s44, s48, 7
        s_lshl_b32 s44, s44, 11
        v_sub_u32 v14, v248, v4
        v_lshl_add_u32 v14, v2, 14, v14
        v_lshl_add_u32 v14, v3, 7, v14
        v_add_u32 v14, s44, v14
        v_cmp_gt_u32 vcc, 3, v2
        v_cndmask_b32 v14, -1, v14, vcc""")

def p2_negs(k, base):
    for u in range(4):
        for h in range(2): k(f'v_xor_b32 v{base+6*u+h}, s63, v{base+6*u+4+h}')

def wd_reg(u, i): return A(192+8*u+4*i, 4) if u < 8 else V(144+8*(u-8)+4*i, 4)
def wd_loads(u):
    o = [f'buffer_load_dwordx4 {wd_reg(u+s,i)}, v15, {WSR}, s51 offen offset:{2048*s+1024*i}{LD}' for s in range(2) for i in range(2)]
    return o + ['s_add_u32 s51, s51, 4096']
def wloads(R=RA):
    return [f'buffer_load_dwordx4 {A(12*ka+4*t,4)}, v{(248, 249, 255)[t]}, {R}, {("0", "s70", "s71", "s72")[ka>>2]} offen offset:{1024*(ka&3)}{LD}' for ka in range(16) for t in range(3)]

def p2(k):
    Z, WW, SG, DD, TT, PK = 32, 64, 80, 88, 104, 240
    for u in range(1 if not OPT.get('zall') else 4):
        for be in range(2): k(f'buffer_load_dwordx4 {V(Z+8*u+4*be,4)}, v4, {WSR}, s{55+u} offen offset:{1024*be}{LD}')
    lds_ = f"""buffer_load_dwordx4 {V(WW+4,4)}, v4, {WSR}, s59 offen{LD}
    buffer_load_dwordx4 {V(WW+12,4)}, v4, {WSR}, s60 offen{LD}
    buffer_load_dwordx4 {V(SG,4)}, v22, {WSR}, s61 offen{LD}
    buffer_load_dwordx4 {V(SG+4,4)}, v22, {WSR}, s61 offen offset:512{LD}""".split('\n')
    lds_.insert(OPT.get('fpos', 2), f'buffer_load_dword v26, v23, {WSR}, 0 offen{LD}')
    if OPT.get('wnow'):
        for t in lds_: k(t)
    else:
        k.sprinkle = [t.strip() for t in lds_]; k.every = 60; k.since = 0
    setup2(k); flush(k)
    if not OPT.get('wdshadow'): wd_finish(k, True)
    k(f"""s_mov_b32 s28, s24
    s_mov_b32 s29, s25
    s_mov_b32 s31, 0x20000
    s_mov_b32 s36, s24
    s_mov_b32 s37, s25
    s_mov_b32 s39, 0x20000
    s_mov_b32 s70, 4096
    s_mov_b32 s71, 8192
    s_mov_b32 s72, 12288""")
    def check1():
        k(f'v_cmp_ne_u32 vcc, 1, v26\n s_cmp_eq_u64 vcc, 0\n s_cselect_b32 s30, {WS_USED}, 0')
        k(f'buffer_load_dword v27, v23, {WSR}, 0 offen{LD}')
        if OPT.get('wtouch'): k(f'buffer_load_dword v25, v14, {RA}, 0 offen{LD}')
        k.sprinkle = wloads(); k.every = OPT.get('every', 64); k.since = 100; k.lazy = OPT.get('lazy', 1)
    def unpack():
        for t in range(2):
            for r in range(4):
                k(f'v_lshlrev_b32 v{WW+8*t+r}, 16, v{WW+8*t+4+r}\n v_and_b32 v{WW+8*t+4+r}, 0xffff0000, v{WW+8*t+4+r}')
    if not OPT.get('zall'):
        for be in range(2): k(f'ds_write_b128 v16, {V(Z+4*be,4)} offset:{8192+1024*be}')
    for u in range(4):
        for be in range(2):
            for o in range(2):
                d = V(DD+8*be+4*o, 4)
                k(f'v_mfma_f32_16x16x32_f16 {d}, {V(Z+8*u+4*be,4)}, {V(B1+6*u+2-2*o,4)}, {"0" if u==0 else d}')
        if u == 0:
            stamp(k, 5); stamp(k, 2, 'b')
            if not OPT.get('zall'):
                k.wait(lg=0); k('s_barrier')
                for v in range(1, 4):
                    for be in range(2): k(f'ds_read_b128 {V(Z+8*v+4*be,4)}, v{16+v} offset:{8192+1024*be}')
                if OPT.get('c1') == 0: check1()
    if OPT.get('c1') == 1: check1()
    E = Z + 8
    for be in range(2):
        cmul(k, DD+8*be, DD+8*be+4, TW1+8*be, TW1+8*be+4, TT, TT+4, True)
        for h in range(4): k(f'v_cvt_pk_f16_f32 v{PK+4*be+h}, v{TT+2*h}, v{TT+2*h+1}')
        for t in range(2):
            for o in range(2):
                d = V(E+8*t+4*o, 4)
                k(f'v_mfma_f32_16x16x32_f16 {d}, {V(A2+6*(2*t+be)+2-2*o,4)}, {V(PK+4*be,4)}, {"0" if be==0 else d}')
    def check2():
        global n1
        n1 = 48 - len(k.sprinkle); k.sprinkle = []
        k(f'v_cmp_ne_u32 vcc, 1, v27\n s_cmp_eq_u64 vcc, 0\n s_cselect_b32 s38, {WS_USED}, 0')
        if OPT.get('wtouch') == 2: k(f's_sub_u32 s44, {WS_USED}, s30\n s_cselect_b32 s44, 0, 0\n s_cmp_eq_u32 s30, 0\n s_cselect_b32 s44, 0, {WS_USED}\n buffer_load_dword v25, v14, {RC}, s44 offen{LD}')
        k.sprinkle = wloads(RC)[n1:]
    if OPT.get('c1') == 2: check1()
    unpack()
    stamp(k, 3, 'b')
    if OPT.get('c2', 0) == 0: check2()
    for t in range(2):
        cmul(k, E+8*t, E+8*t+4, WW+8*t, WW+8*t+4, TT, TT+4, False)
        for h in range(4): k(f'v_cvt_pk_bf16_f32 v{PK+4*t+h}, v{TT+2*h}, v{TT+2*h+1}')
        for be in range(2):
            for o in range(2):
                d = V(DD+8*be+4*o, 4)
                k(f'v_mfma_f32_16x16x32_bf16 {d}, {V(PK+4*t,4)}, {V(B3+6*(2*be+t)+2-2*o,4)}, {"0" if t==0 else d}')
    if OPT.get('c2', 0) == 1: check2()
    for be in range(2):
        cmul(k, DD+8*be, DD+8*be+4, TW2+8*be, TW2+8*be+4, TT, TT+4, False)
        for h in range(4): k(f'v_cvt_pk_bf16_f32 v{PK+4*be+h}, v{TT+2*h}, v{TT+2*h+1}')
        k(f'ds_write_b128 v16, {V(PK+4*be,4)} offset:{1024*be}')
    def step4(u, src):
        for be in range(2):
            for o in range(2):
                d = V(DD+8*be+4*o, 4)
                k(f'v_mfma_f32_16x16x32_bf16 {d}, {V(A4+6*u+2-2*o,4)}, {V(src+4*be,4)}, {d}')
    for o in range(2):
        for be in range(2):
            for r in range(4):
                d = DD+8*be+4*o+r; hi = r & 1
                k(f'v_fma_mix_f32 v{d}, v{SG+4*be+r}, v{Z+4*be+2*o+(r>>1)}, 0 op_sel:[0,{hi},0] op_sel_hi:[0,1,0]')
    stamp(k, 4, 'b')
    k.wait(lg=0); k('s_barrier')
    for u in range(1, 4):
        for be in range(2): k(f'ds_read_b128 {V(Z+8*u+4*be,4)}, v{16+u} offset:{1024*be}')
    step4(0, PK)
    for u in range(1, 4): step4(u, Z+8*u)
    OUT = 64
    rest, k.sprinkle = k.sprinkle, []
    for o in range(2):
        for be in range(2):
            for h in range(2): k(f'v_cvt_pk_bf16_f32 v{OUT+4*o+2*be+h}, v{DD+8*be+4*o+2*h}, v{DD+8*be+4*o+2*h+1}')
    k('s_cmp_lg_u32 s2, 0\n s_cbranch_scc1 L_p2_st')
    for h in range(4): k(f'v_mov_b32 v{OUT+4+h}, v{OUT+h}\n v_mov_b32 v{OUT+h}, 0')
    k.label('L_p2_st')
    for o in range(2): k(f'buffer_store_dwordx4 {V(OUT+4*o,4)}, v20, {WSR}, s62 offen offset:{2048*o}{ST}')
    stamp(k, 5, 'b')
    return rest

def barrier2(k, rest):
    print('weight loads left after phase 2:', len(rest))
    k(f's_lshl_b32 s44, s48, 12\n s_add_u32 s44, s44, {HF}')
    k(f's_and_b32 s46, {WAVE}, 1')
    for p in range(4): k(f's_xor_b32 s45, s46, {p}\n s_lshl_b32 s45, s45, 10\n s_add_u32 s{55+p}, s44, s45')
    k(f"""s_lshl_b32 s44, s49, 17
    s_lshl_b32 s45, s48, 11
    s_add_u32 s44, s44, s45
    s_add_u32 s59, s44, {HRES}
    s_add_u32 s60, s59, 0x10000
    s_lshl_b32 s44, s48, 10
    s_add_u32 s61, s44, {SM+64}
    s_mov_b32 s46, 0""")
    print('group 1:', n1)
    stamp(k, 6)
    nA = min(OPT.get('nA', 12), len(rest)); nB = min(OPT.get('nB', 48), len(rest) - nA)
    n2 = 48 - len(rest) + nA
    for t in rest[:nA]: k(t)
    rest = [t.replace(RC, WSR) for t in rest]
    stamp(k, 6, 'b')
    k(f'v_mov_b32 v250, 0\n v_mov_b32 v251, 1\n s_cmp_lg_u32 {WAVE}, 0\n s_cbranch_scc1 L_b2o')
    st = k.state()
    k(f's_mov_b64 exec, 1\n s_waitcnt vmcnt({nA})'); stamp(k, 7, 'b'); k('s_barrier'); stamp(k, 8, 'b')
    k(f'buffer_atomic_add v251, v250, {WSR}, s74 offen sc0 sc1')
    k('s_barrier')
    stamp(k, 9, 'b'); arrive_check(k, 250, 's75', 51, 2); stamp(k, 10, 'b')
    if OPT.get('hold'): k('s_barrier')
    k('s_mov_b64 exec, -1\n s_branch L_b2m')
    k.restore(st); k.label('L_b2o')
    k(f's_waitcnt vmcnt({nA})'); stamp(k, 7, 'b'); k('s_barrier'); stamp(k, 8, 'b')
    k('s_barrier')
    if OPT.get('hold'): k('s_barrier')
    stamp(k, 9, 'b'); stamp(k, 10, 'b')
    k.label('L_b2m')
    k(f's_cmp_lg_u32 s30, 0\n s_cbranch_scc1 L_bok')
    st = k.state()
    k(f's_cmp_lg_u32 s38, 0\n s_cbranch_scc1 L_bok2')
    k.label('L_bchk')
    k(f"""buffer_load_dword v26, v23, {WSR}, 0 offen{LD}
    s_add_u32 s46, s46, 1
    s_waitcnt vmcnt(0)
    v_cmp_ne_u32 vcc, 1, v26
    s_cmp_gt_u32 s46, {SPIN}
    s_cbranch_scc1 L_bgo
    s_cbranch_vccnz L_bchk""")
    k.label('L_bgo')
    for t in wloads(WSR)[n1:n2]: k(t)
    k.label('L_bok2')
    for t in wloads(WSR)[:n1]: k(t)
    k.restore(st)
    k.label('L_bok')
    for t in rest[nA:nA+nB]: k(t)
    if OPT.get('retouch'):
        def rt():
            k('s_lshr_b32 s44, s2, 3\n s_lshl_b32 s44, s44, 10\n v_lshl_add_u32 v252, v3, 6, s44')
            k.raw('    v_min_u32 v252, L_notz-L_b2x-4, v252\n    s_sub_u32 s44, s42, tables-L_b2x\n    s_subb_u32 s45, s43, 0'); k.pos += 3
            k('v_mov_b32 v253, s45\n v_add_co_u32 v252, vcc, s44, v252\n v_addc_co_u32 v253, vcc, 0, v253, vcc\n s_mov_b64 exec, 0xffff\n global_load_dword v254, v[252:253], off')
        only_wave(k, 2, rt)
    only_wave(k, 0, lambda: poll(k, 250, 2))
    global late_w
    late_w = rest[nA+nB:]
    def hw():
        k('v_bfe_u32 v16, v1, 2, 1\n v_lshlrev_b32 v16, 9, v16\n v_bfe_u32 v17, v1, 3, 1\n v_lshl_add_u32 v16, v17, 4, v16\n v_and_b32 v17, 3, v1\n v_lshl_add_u32 v16, v17, 2, v16')
        for j in range(8): k(f'buffer_load_dword v{MUV+j}, v16, {WSR}, s61 offen offset:{128*((j^3)>>1)+32*((j^3)&1)}{LD}')
    global hw_means, st3
    hw_means = hw
    k(f's_cmp_eq_u32 {WAVE}, 3\n s_cbranch_scc1 L_p3h')
    st3 = k.state()
    if OPT.get('isl'):
        k(f's_mov_b64 exec, 0\n s_cmp_eq_u32 {WAVE}, 1\n s_cbranch_scc1 L_isl0_0\n s_branch L_isl0_{OPT.get("islmid", 32)}')
        k.label('L_islret0'); k('s_mov_b64 exec, -1')
    k.label('L_b2x')

ACT, ACC, TM, STV, MUV = 32, 64, 128, 16, 24
def cost(t):
    m = t.split()[0]
    if m.startswith('buffer'): return 18 + 4 * t.count('\n')
    if m.startswith(('v_exp', 'v_rcp', 'v_rsq', 'v_permlane', 'ds_write')): return 8
    return 4 * (t.count('\n') + 1)

def p3_body(k, hw):
    acc = lambda p, n, m, par=0: ACC + 32*(p & 1) + 8*(n + (par if n == 2 and hw else 0)) + 4*m
    GR = 28 if not hw else TM + 12
    dma_pos = []
    def dma(j):
        return f'buffer_load_dwordx4 v5, {WSR}, m0 offen offset:{1024*(j&3)}{LD} lds'
    def m0step(j): return [f's_add_u32 m0, m0, {8192 + (32768 if j == 15 else 0)}'] if j & 3 == 3 and j < 31 else []
    def slot(g, m): return ACT + 8*(g & 3) + 4*m
    def reads(g):
        p, ka = divmod(g, 16); o = []
        if p and ka == 0:
            x = (p ^ (p-1)) << 15
            o = [f'v_xor_b32 v6, {x:#x}, v6', f'v_xor_b32 v7, {x:#x}, v7']
        return o + [f'ds_read_b64_tr_b16 {V(slot(g,m)+2*h,2)}, v{6+m} offset:{2048*ka+1024*h}' for m in range(2) for h in range(2)]
    def chains(p, J):
        if p == 3:
            P = J[::2]
            o = [f'v_pk_mul_f32 {V(t,2)}, {V(g,2)}, {V(g,2)}' for g, u, t, c in P]
            o += [f'v_pk_fma_f32 {V(t,2)}, {V(t,2)}, {V(c,2)}, {V(c,2)} op_sel:[0,1,0] op_sel_hi:[1,1,0]' for g, u, t, c in P]
            o += [f'v_pk_mul_f32 {V(t,2)}, {V(t,2)}, {V(g,2)}' for g, u, t, c in P]
            o += [f'v_exp_f32 v{t}, v{t}' for g, u, t, c in J]
            o += [f'v_pk_mul_f32 {V(g,2)}, {V(g,2)}, {V(u,2)}' for g, u, t, c in P]
            o += [f'v_pk_fma_f32 {V(t,2)}, {V(t,2)}, {V(c+2,2)}, {V(c+2,2)} op_sel_hi:[1,0,0]' for g, u, t, c in P]
            o += [f'v_rcp_f32 v{t}, v{t}' for g, u, t, c in J]
            o += [f'v_pk_mul_f32 {V(g,2)}, {V(g,2)}, {V(t,2)}' for g, u, t, c in P]
            return o
        o = [f'v_mul_f32 v{t}, v{g}, v{g}' for g, u, t, c in J]
        o += [f'v_fma_f32 v{t}, v{t}, v{c+1}, v{c}' for g, u, t, c in J]
        o += [f'v_mul_f32 v{t}, v{t}, v{g}' for g, u, t, c in J]
        for g, u, t, c in J: o += [f'v_exp_f32 v{t}, v{t}', f'v_mul_f32 v{g}, v{g}, v{u}']
        o += [f'v_fma_f32 v{t}, v{t}, v{c+2}, v{c+2}' for g, u, t, c in J]
        o += [f'v_rcp_f32 v{t}, v{t}' for g, u, t, c in J]
        o += [f'v_mul_f32 v{g}, v{g}, v{t}' for g, u, t, c in J]
        return o
    def epilogue(p):
        HA, HX = TM + 8, TM + 12
        J = [(acc(p, 0, m)+r, acc(p, 1, m)+r, TM+4*m+r, STV+4*m) for m in range(2) for r in range(4)]
        o = []
        if not hw: o += [f'v_permlane32_swap_b32 v{acc(p,2,0)+r}, v{acc(p,2,1)+r}' for r in range(4)]
        o += chains(p, J)
        o += [f'v_cvt_pk_bf16_f32 v{HA+2*m+h}, v{acc(p,0,m)+2*h}, v{acc(p,0,m)+2*h+1}' for h in range(2) for m in range(2)]
        tail = [f'v_permlane16_swap_b32 v{HA}, v{HA+2}', f'v_permlane16_swap_b32 v{HA+1}, v{HA+3}',
                f'buffer_store_dwordx4 {V(HA,4)}, v12, {RB}, s{55+p} offen{ST}']
        if not hw:
            x = chains(p, [(acc(p, 2, 0)+r, acc(p, 2, 1)+r, TM+r, STV+8) for r in range(4)])
            o += x[:2] + tail + x[2:]
            o += [f'v_cvt_pk_bf16_f32 v{HX+2*(p&1)+h}, v{acc(p,2,0)+2*h}, v{acc(p,2,0)+2*h+1}' for h in range(2)]
            if p & 1: o += [f'v_permlane16_swap_b32 v{HX}, v{HX+2}', f'v_permlane16_swap_b32 v{HX+1}, v{HX+3}',
                            f'buffer_store_dwordx4 {V(HX,4)}, v13, {RB}, s{55+p} offen{ST}']
        else:
            for m in range(2):
                e, od = acc(p, 2, m), acc(p, 2, m, 1); t = TM
                o += [f'v_add_f32 v{e+r}, v{e+r}, v{MUV+2*p+m}' for r in range(4)]
                if m == 0: o += tail
                for r in range(4): o += [f'v_add_f32 v{t+r}, v{e+r}, v{od+r}', f'v_sub_f32 v{t+4+r}, v{e+r}, v{od+r}']
                P0, P1 = acc(p, 2, 0), acc(p, 2, 0, 1)
                o += [f'v_cvt_pk_bf16_f32 v{P0+2*m}, v{t}, v{t+1}', f'v_cvt_pk_bf16_f32 v{P0+2*m+1}, v{t+2}, v{t+3}',
                      f'v_cvt_pk_bf16_f32 v{P1+2-2*m}, v{t+7}, v{t+6}', f'v_cvt_pk_bf16_f32 v{P1+3-2*m}, v{t+5}, v{t+4}']
            off = 512*(p ^ 1)
            o += [f'v_permlane16_swap_b32 v{P0}, v{P0+2}', f'v_permlane16_swap_b32 v{P0+1}, v{P0+3}',
                  f'buffer_store_dwordx4 {V(P0,4)}, v13, {WSR}, s59 offen offset:{off}{ST}',
                  f'v_permlane16_swap_b32 v{P1+2}, v{P1}', f'v_permlane16_swap_b32 v{P1+3}, v{P1+1}',
                  f'buffer_store_dwordx4 {V(P1,4)}, v14, {WSR}, s60 offen offset:{off}{ST}']
        return o
    def stats(p):
        K0 = -2*math.sqrt(2/math.pi)*math.log2(math.e); b = GR
        return [f'v_cndmask_b32 v{b}, v{b}, v{b+1}, s[64:65]', f'v_cndmask_b32 v{b}, v{b}, v{b+2}, s[66:67]', f'v_cndmask_b32 v{b}, v{b}, v{b+3}, s[68:69]',
                f'v_mov_b32 v{b+2}, {fbits(1e-5)}', f'v_fmac_f32 v{b+2}, {fbits(1/512)}, v{b}', f'v_rsq_f32 v{b+3}, v{b+2}',
                f'v_mul_f32 v{b}, {fbits(K0)}, v{b+3}', f'v_mul_f32 v{b+3}, v{b+3}, v{b+3}', f'v_mul_f32 v{b+1}, {fbits(0.044715)}, v{b}', f'v_mul_f32 v{b+1}, v{b+1}, v{b+3}',
                f'ds_write_b128 v9, {V(b,4)} offset:{512*p}']
    def getstats(p):
        R = [(10, STV), (8, STV+4)] + ([] if hw else [(11, STV+8)])
        o = [f'v_xor_b32 v{a}, 0x200, v{a}' for a, _ in R] if p else []
        return o + [f'ds_read_b128 {V(d,4)}, v{a} offset:{1024*(p>>1)}' for a, d in R]
    def issue_dma(j): k(dma(j)); dma_pos.append(k.nvm)
    if hw:
        hw_means()
        if OPT.get('isl'):
            k('s_mov_b64 exec, 0\n s_branch L_isl1_0'); k.label('L_islret1'); k('s_mov_b64 exec, -1')
    k('s_barrier')
    stamp(k, 7); stamp(k, 11, 'b')
    def island(g):
        G = OPT.get('isl')
        if not G or g % G: return
        mid = OPT.get('islmid', 32)
        k.label(f'L_isl{int(hw)}_{g}')
        k(f's_cbranch_execz L_isl{int(hw)}_{g+G}' if g + G < 64 and (hw or g + G != mid) else (f's_cbranch_execz L_islret{int(hw)}' if g + G >= 64 else f's_cbranch_execz L_islret0'))
    DP = OPT.get('dpre', 16)
    for j in range(DP):
        issue_dma(j)
        for t in m0step(j): k(t)
    if hw: k('v_and_b32 v13, 0x1f0, v4\n v_xor_b32 v13, 0x100, v13\n v_lshrrev_b32 v14, 5, v1\n v_lshl_add_u32 v13, v14, 15, v13\n v_xor_b32 v14, 0x8000, v13')
    p4_ids(k)
    k(f"""s_mov_b32 s51, 0
    s_lshl_b32 s45, s45, 2
    s_add_u32 s45, s45, {WAVE}
    s_mul_i32 s45, s45, {WDS}
    s_add_u32 s45, s45, {WD}
    v_add_u32 v15, s45, v4
    s_lshr_b32 s46, s44, 1
    s_lshl_b32 s45, s46, 11
    s_add_u32 s62, s45, {RBF}
    s_add_u32 s63, s62, 0x8000
    s_lshl_b32 s46, s46, 2
    s_and_b32 s44, s44, 1
    s_add_u32 s73, s46, s44
    s_lshl_b32 s46, s73, 10
    s_mul_i32 s47, {WAVE}, {HFS}
    s_add_u32 s46, s46, s47
    s_add_u32 s74, s46, {HF}
    s_mov_b32 s75, 0""")
    def landed(j): k(f's_waitcnt vmcnt({min(63, k.nvm - dma_pos[j])})'); k('s_barrier')
    landed(3)
    stamp(k, 8)
    rd_pos = {}
    def do_reads(g):
        for t in reads(g): k(t)
        rd_pos[g] = k.nlg
    do_reads(0); do_reads(1)
    NWD = OPT.get('wdin', 22)
    memq = [('dma', j) for j in range(DP, 16)]
    lw = list(late_w)
    memq += lw + [('dma', j) for j in range(16, 32)]
    after = []
    nfast = len(memq)
    wl = [t for u in range(0, NWD, 2) for t in wd_loads(u)]
    wdq = [wl[i] + ('\n' + wl[i+1] if i % 5 == 3 else '') for i in range(len(wl)) if i % 5 != 4]
    W1 = OPT.get('wdend', 57)
    st_pos = None
    wrate = min(1.0, len(wdq) / (W1 - nfast / OPT.get('mrate', 1)))
    eq = [hload(0, u, RC) for u in range(22)]
    ismem = lambda t: isinstance(t, tuple) or t.startswith(('ds_', 'buffer'))
    vcost = lambda t: 8 if t.startswith(('v_exp', 'v_rcp', 'v_rsq', 'v_permlane')) else 4 * (t.count('\n') + 1)
    hcost = lambda t: 4 if (t[0] == 'rd' if isinstance(t, tuple) else t.startswith('ds_read')) else 8
    salu = []
    def emit_mem(f):
        nonlocal stat_pos
        if isinstance(f, tuple):
            if f[0] == 'dma':
                while salu: k(salu.pop(0))
                issue_dma(f[1]); salu.extend(m0step(f[1]))
            else: k(f[1]); rd_pos[f[2]] = k.nlg
        else:
            t = f.split('\n')
            if t[0].startswith('buffer_load_dwordx4'):
                while salu: k(salu.pop(0))
            k(t[0]); salu.extend(x.strip() for x in t[1:])
            if f.startswith('ds_write'): stat_pos = k.nlg
    stat_pos = None
    k.wait(lg=k.nlg - rd_pos[0])
    for p in range(4):
        pre = stats(p-1) if p & 1 else []
        bg = (epilogue(p-1) + (getstats(p) if p & 1 else [])) if p else []
        nind = (8 if hw else 12) if p & 1 else 0
        nbg = len(bg)
        k1 = OPT.get('e1end', 12) if p == 2 else 16
        tot = sum(vcost(t) for t in bg); done = 0
        val = []
        for ka in range(16):
            g = 16*p + ka
            if OPT.get('gst') and g in OPT['gst']: stamp(k, 1 + OPT['gst'].index(g), True)
            sync = None
            if p & 1 and ka == 2: sync = 'stat'
            if p == 0 and ka in (2, 6, 10): sync = ka + 5
            if p == 1 and ka == 13 and not OPT.get('mergeland'): sync = 31
            rds = []
            if g + 2 < 64:
                for t in reads(g + 2):
                    if t.startswith('ds_'): rds.append(('rd', t, g + 2))
            if g + 3 < 64 and (g + 3) % 16 == 0: late_x = [t for t in reads(g + 3) if not t.startswith('ds_')]
            else: late_x = []
            mem = []
            if memq:
                mr = OPT.get('mrate', 1); n = int((g + 1) * mr) - int(g * mr); n = OPT.get('mfirst', n) if len(dma_pos) < 16 else n; mem = memq[:n]; memq = memq[n:]
            elif wdq:
                left = W1 - g
                n = (len(wdq) + left - 1) // left if len(wdq) >= left else int((g + 1) * wrate) - int(g * wrate)
                mem = wdq[:n]; wdq = wdq[n:]
            if ka <= 1 and pre:
                n = 6 if ka == 0 else len(pre); val += pre[:n]; pre = pre[n:]
            o1 = 1 if p & 1 else 0
            budget = tot * (ka + 1 - o1) / (k1 - o1)
            if p & 1 and ka <= 1: budget = -1
            if p & 1 and ka == 2: val += getstats(p-1)
            while bg and (done + vcost(bg[0])/2 <= budget or ka == k1 - 1) and not (p & 1 and ka == 2 and nbg - len(bg) >= nind):
                done += vcost(bg[0]); val.append(bg.pop(0))
            if g == 48 + OPT.get('esamp', 8) - 1: val += ['v_lshlrev_b32 v5, 7, v3', 'v_add_u32 v3, s74, v4']
            if g == 48 + OPT.get('esamp', 8): mem = [f'buffer_load_dword v9, v5, {WSR}, s62 offen{LD}'] + mem
            if g == 48 + OPT.get('echk', 11): val += [f'v_cmp_ne_u32 vcc, 1, v9\n s_cmp_eq_u64 vcc, 0\n s_cselect_b32 s38, s34, 0']
            if g > 48 + OPT.get('echk', 11):
                er = OPT.get('erate', 1); mem = mem + eq[:er]; eq = eq[er:]
            mf = []
            for m in range(2):
                b_ = V(slot(g, m), 4)
                for n in range(3):
                    d = V(acc(p, n, m, ka & 1), 4)
                    first = ka == 0 or (n == 2 and ka == 1 and hw)
                    mf.append(f'v_mfma_f32_16x16x32_bf16 {d}, {A(12*ka+4*n,4)}, {b_}, {"0" if first else d}')
            mf = [mf[i] for i in (0, 3, 4, 1, 2, 5)]
            if p % 2 == 0: mf.insert(0, f'v_mfma_f32_16x16x32_bf16 {V(GR,4)}, {V(slot(g,0),4)}, {V(slot(g,0),4)}, {"0" if ka==0 else V(GR,4)}')
            heads = list(rds)
            for i, t in enumerate(mem): heads.insert(min(len(heads), 2 + 2*i + (1 if len(mem) == 1 else 0)), t)
            N = len(mf)
            ftot = sum(map(hcost, heads)) + sum(hcost(t) if ismem(t) else vcost(t) for t in val) + 4*len(late_x); fd = 0
            flush_val = ka == 15 or (p == 2 and ka == k1 - 1) or (p & 1 and ka == 1) or g - 48 in (OPT.get('esamp', 8) - 1, OPT.get('echk', 11))
            for i, t in enumerate(mf):
                k(t)
                last = i == N - 1
                if i == 0 and sync is not None:
                    if sync == 'stat':
                        assert not pre and not any(x.startswith('ds_write') for x in val)
                        k.wait(lg=k.nlg - stat_pos)
                        if p == 3 or OPT.get('mergeland'): k(f's_waitcnt vmcnt({min(63, k.nvm - (st_pos if p == 3 else dma_pos[31]))})')
                        k('s_barrier')
                        if p == 3 and hw: k(f'v_mov_b32 v{MUV}, 0\n v_mov_b32 v{MUV+1}, 1\n s_mov_b64 exec, 1\n buffer_store_dword v{MUV+1}, v{MUV}, {WSR}, s41 offen{ST}\n s_mov_b64 exec, -1')
                    else: landed(sync)
                if i == 1: island(g)
                nh = 0
                nxt = val[0] if val and ismem(val[0]) else (heads[0] if heads else None)
                if last and g + 1 < 64: k.wait(lg=k.nlg - rd_pos[g + 1])
                elif salu and (nxt is None or hcost(nxt) == 4) and not (i == 1 and OPT.get('isl')): k(salu.pop(0))
                while True:
                    if val and ismem(val[0]) and nh == 0: f = val.pop(0)
                    elif heads and (nh == 0 or len(heads) > N - 1 - i): f = heads.pop(0)
                    else: break
                    emit_mem(f); fd += hcost(f); nh += 1
                if last:
                    for x in late_x: k(x)
                while val and ((not ismem(val[0]) and fd + vcost(val[0])/2 <= ftot * (i+1) / N + 1e-6) or (last and flush_val)):
                    f = val.pop(0)
                    if ismem(f): emit_mem(f); fd += hcost(f)
                    else: k(f); fd += vcost(f)
            assert not heads
            if p == 2 and ka == k1 - 1: st_pos = k.nvm
        assert not bg and not val
        if p == 0: stamp(k, 9)
        if OPT.get('pst'): stamp(k, 1+p, True)
    while salu: k(salu.pop(0))
    assert not wdq
    stamp(k, 10)
    ep = epilogue(3); ne = OPT.get('eepi', 0); gap = 5
    for i, t in enumerate(ep):
        k(t)
        if i % gap == gap - 1 and ne > 0: k(eq.pop(0)); ne -= 1
    assert ne == 0
    if OPT.get('echk') > 15: k(f'v_cmp_ne_u32 vcc, 1, v9\n s_cmp_eq_u64 vcc, 0\n s_cselect_b32 s38, s34, 0')
    if OPT.get('pst'): stamp(k, 5, True)
    return 22 - len(eq)

def hload(hf, u, R):
    return f'buffer_load_dwordx4 {A(88*hf+4*u,4)}, v3, {R}, s75 offen offset:{2048*hf}{LD}\n ' + (f's_add_u32 s75, s75, {4*HFS}' if u < 21 else 's_mov_b32 s75, 0')

def redo(k, soff, hf, n, again=None, pre=None):
    uid[0] += 1; u = uid[0]
    k(f's_cmp_lg_u32 s38, 0\n s_cbranch_scc1 L_sd{u}')
    st = k.state()
    k('s_mov_b32 s46, 0')
    if pre: k(f'v_cmp_ne_u32 vcc, 1, v{pre}\n s_cbranch_vccz L_sg{u}')
    k.label(f'L_sp{u}')
    k(f"""buffer_load_dword v6, v5, {WSR}, {soff} offen{LD}
    s_add_u32 s46, s46, 1
    s_waitcnt vmcnt(0)
    v_cmp_ne_u32 vcc, 1, v6
    s_cmp_gt_u32 s46, {SPIN}
    s_cbranch_scc1 L_sg{u}
    s_cbranch_vccnz L_sp{u}""")
    k.label(f'L_sg{u}')
    k('s_mov_b32 s75, 0')
    for j in range(n): k(hload(hf, j, RB))
    if again: again()
    k.restore(st)
    k.vm = [set()] * 8 + [{('a', 88*hf+4*j+r) for r in range(4)} for j in range(n)]
    k.label(f'L_sd{u}')

def spin(k, reg, soff):
    uid[0] += 1; u = uid[0]
    k(f'v_cmp_ne_u32 vcc, 1, v{reg}\n s_mov_b32 s46, 0\n s_cbranch_vccz L_sd{u}')
    st = k.state()
    k.label(f'L_sp{u}')
    k(f"""buffer_load_dword v{reg}, v5, {WSR}, {soff} offen{LD}
    s_add_u32 s46, s46, 1
    s_waitcnt vmcnt(0)
    v_cmp_ne_u32 vcc, 1, v{reg}
    s_cmp_gt_u32 s46, {SPIN}
    s_cbranch_scc1 L_sd{u}
    s_cbranch_vccnz L_sp{u}""")
    k.restore(st)
    k.label(f'L_sd{u}')

QS, INS, PS = 1152, 4736, 9472
def p4(k, n0, nst):
    HR, RD, SUM = 32, 40, 128
    PRE = OPT.get('p4pre', 14)
    EP = OPT.get('epost', 6)
    k.vm = [{('a', 4*j+r) for r in range(4)} for j in range(n0)] + [set()] * nst
    if OPT.get('sbar'): k('s_barrier')
    el = [hload(0, j, RC) for j in range(n0, n0 + EP)]
    if not OPT.get('mix'):
        for t in el: k(t)
        el = []
    U0 = n0 if not OPT.get('nopre') else 0
    n0 += EP
    setup = f"""s_mov_b32 s28, s18
    s_and_b32 s29, s19, 0xffff
    s_mov_b32 s30, {S*D*2}
    s_lshr_b32 s65, s2, 5
    v_lshrrev_b32 v16, 3, v1
    v_bfe_u32 v17, v1, 1, 2
    s_lshl_b32 s46, s65, 2
    v_add_u32 v17, s46, v17            ; 16-column block
    v_sub_u32 v18, 31, v17
    v_min_u32 v18, v17, v18
    v_lshlrev_b32 v18, 17, v18
    v_lshrrev_b32 v17, 4, v17
    v_lshl_add_u32 v18, v17, 16, v18
    v_lshl_add_u32 v18, v16, 4, v18
    v_and_b32 v17, 1, v1
    v_lshl_add_u32 v8, v17, 15, v18    ; residual
    s_lshl_b32 s66, s73, 9
    s_lshl_b32 s46, {WAVE}, 7
    s_add_u32 s66, s66, s46
    s_add_u32 s66, s66, {HRES}
    v_mov_b32 v20, 0
    v_mov_b32 v21, 1
    s_add_u32 s41, s41, 0x8000
    s_lshr_b32 s46, s73, 2
    s_lshl_b32 s46, s46, 17
    s_and_b32 s44, s73, 3
    s_lshl_b32 s44, s44, 2
    s_add_u32 s44, s44, {WAVE}
    s_lshl_b32 s44, s44, 10
    s_add_u32 s67, s46, s44
    s_lshl_b32 s45, s65, 7
    s_add_u32 s67, s67, s45
    s_add_u32 s68, s67, 0x2000
    v_and_b32 v9, 7, v1
    v_lshlrev_b32 v9, 4, v9
    v_and_b32 v18, 3, v16
    v_lshl_add_u32 v9, v18, 15, v9
    v_lshrrev_b32 v18, 2, v16
    v_lshl_add_u32 v9, v18, 14, v9     ; output
    v_lshrrev_b32 v18, 5, v1
    v_lshl_add_u32 v10, v18, 6, v4
    s_mul_i32 s44, {WAVE}, {PS}
    v_add_u32 v10, s44, v10            ; partial sums, write
    v_bfe_u32 v18, v1, 2, 1
    v_mul_u32_u24 v11, {INS}, v18
    v_bfe_u32 v18, v1, 1, 1
    v_mul_u32_u24 v18, 576, v18
    v_add_u32 v11, v11, v18
    v_lshl_add_u32 v11, v16, 4, v11
    v_lshl_add_u32 v11, v17, 3, v11
    s_lshl_b32 s44, {WAVE}, 7
    v_add_u32 v11, s44, v11            ; partial sums, read
    v_add_u32 v12, {4*PS}, v11""".split('\n')
    def resid(hf): k(f'buffer_load_dwordx4 {V(HR+4*hf,4)}, v8, {WSR}, s66 offen offset:{1024*hf}{LD}')
    def mf(hf, u, i):
        d = V(ACC+32*hf+16*i, 16)
        return f'v_mfma_f32_32x32x16_bf16 {d}, {wd_reg(u, i)}, {A(88*hf+4*u,4)}, {"0" if u==0 else d}'
    def mm(hf, issued, hook):
        q = []
        for j in range(22):
            if hf == 0 and j >= OPT.get('wdin', 22) and j % 2 == 0:
                w = wd_loads(j); q += [lambda t=t: k(t) for t in w[:3] + [w[3] + '\n' + w[4]]]
            if j >= issued: q.append(lambda j=j: k(hload(hf, j, RB)))
        q.append(lambda: resid(hf))
        TL = OPT.get('tl', 0) if hf == 1 else 0
        for u in range(U0 if hf == 0 else 0, 22 - TL):
            for i in range(2):
                k(mf(hf, u, i))
                if q and (i == 0 or len(q) > 22 - u - OPT.get('lead', 8)): q.pop(0)()
                hook(u, i)
    def red_write(hf):
        o = [f'ds_write_b128 v10, {V(ACC+32*hf+16*i+4*q,4)} offset:{4*PS*hf+INS*i+QS*q}' for i in range(2) for q in range(4)]
        for j in range(4):
            o += [f'v_lshlrev_b32 v{SUM+4*(j&1)+(j>>1)}, 16, v{HR+4*hf+j}', f'v_and_b32 v{SUM+4*(j&1)+2+(j>>1)}, 0xffff0000, v{HR+4*hf+j}']
        return o
    def red_read(hf, pk=True):
        R = lambda w, q: (RD + 8*w + 2*q) if w < 3 else SUM + 8 + 2*q
        o = [f'ds_read_b64 {V(R(w,q),2)}, v{11+hf} offset:{PS*w+QS*q}' for w in range(4) for q in range(4)]
        if pk: o += [f'v_pk_add_f32 {V(SUM+2*q,2)}, {V(SUM+2*q,2)}, {V(R(w,q),2)}' for w in range(4) for q in range(4)]
        else: o += [f'v_add_f32 v{SUM+2*q+h}, v{SUM+2*q+h}, v{R(w,q)+h}' for w in range(4) for q in range(4) for h in range(2)]
        o += [f'v_cvt_pk_bf16_f32 v{HR+4*hf+j}, v{SUM+4*(j&1)+(j>>1)}, v{SUM+4*(j&1)+2+(j>>1)}' for j in range(4)]
        return o + [f'buffer_store_dwordx4 {V(HR+4*hf,4)}, v9, {RA}, s{67+hf} offen{OPT.get("ost", "")}']
    pre = [mf(0, u, i) for u in range(U0) for i in range(2)]
    for t in pre:
        k(t)
        for x in setup[:5]: k(x)
        setup = setup[5:]
    while setup or el:
        if el: k(el.pop(0))
        for x in setup[:4]: k(x)
        setup = setup[4:]
    k(f's_waitcnt vmcnt({EP})'); k('s_barrier')
    only_wave(k, 0, lambda: k(f's_mov_b64 exec, 1\n buffer_store_dword v21, v20, {WSR}, s41 offen{ST}'))
    stamp(k, 11)
    redo(k, 's62', 0, n0, lambda: [k(t) for t in pre])
    if OPT.get('p4st'): stamp(k, 1, True)
    LP, LC = OPT.get('lpoll', 11), OPT.get('lchk', 15)
    nl = [0]
    def hook0(u, i):
        if u == LP and i == 1: k(f'buffer_load_dword v6, v5, {WSR}, s63 offen{LD}')
        if u == LC and i == 0: k('v_cmp_ne_u32 vcc, 1, v6\n s_cmp_eq_u64 vcc, 0\n s_cselect_b32 s38, s34, 0')
        if u == OPT.get('lp2', -1) and i == 0: k(f'buffer_load_dword v7, v5, {WSR}, s63 offen{LD}')
        if (u, i) > (LC, 0) and (i == 1 or OPT.get('lrate2')): k(hload(1, nl[0], RC)); nl[0] += 1
    mm(0, n0, hook0)
    if OPT.get('p4st'): stamp(k, 2, True)
    for j, t in enumerate(red_write(0)):
        k(t)
        if j < OPT.get('lmid', 5): k(hload(1, nl[0], RC)); nl[0] += 1
    if OPT.get('p4st'): stamp(k, 3, True)
    redo(k, 's63', 1, nl[0], pre=7 if OPT.get('lp2') else None)
    if OPT.get('p4st'): stamp(k, 4, True)
    rr = red_read(0, False)
    def hook1(u, i):
        if u == 1 and i == 1: k.wait(lg=0); k('s_barrier')
        if u >= 2:
            for _ in range(4 if i else 2):
                if rr: k(rr.pop(0))
    mm(1, nl[0], hook1)
    assert not rr
    if OPT.get('p4st'): stamp(k, 5, True)
    TL = OPT.get('tl', 0); rw = red_write(1)
    for u in range(22 - TL, 22): k(mf(1, u, 0))
    for j, u in enumerate(range(22 - TL, 22)):
        k(mf(1, u, 1))
        if j == 0:
            for t in rw[8:]: k(t)
            rw = rw[:8]
        elif len(rw) > 4 and j >= 2: k(rw.pop(0))
    for t in rw: k(t)
    k.wait(lg=0); k('s_barrier')
    for t in red_read(1): k(t)

def fused():
    k = K()
    prologue(k)
    if OPT.get('prio'): only_wave(k, 0, lambda: k('s_setprio 3'))
    k(f's_cmp_ge_u32 s2, {NZ}\n s_cbranch_scc1 L_notz')
    st0 = k.state()
    p1_z(k)
    k.label('L_join1')
    k.vm = [set()] * 40; k.lg = []
    setup(k)
    stamp(k, 3)
    negs = lambda: [p2_negs(k, b) for b in (B1, A2, B3, A4)]
    stamp(k, 8, 'z')
    k(f's_cmp_lg_u32 {WAVE}, 0\n s_cbranch_scc1 L_b1o')
    st = k.state()
    k('s_mov_b64 exec, 1\n s_mov_b32 s46, 0\n s_waitcnt vmcnt(8)')
    k.label('L_go')
    k(f"""v_cmp_ne_u32 vcc, 0, v254
    s_add_u32 s46, s46, 1
    s_cbranch_vccnz L_gone
    global_load_dword v254, v250, s[20:21]{LD}
    s_waitcnt vmcnt(0)
    s_cmp_lt_u32 s46, {SPIN}
    s_cbranch_scc1 L_go""")
    k.restore(st); k.vm = k.vm[-8:]
    k.label('L_gone')
    stamp(k, 9, 'z')
    k('s_barrier')
    k(f'buffer_atomic_add v251, v250, {WSR}, s71 offen sc0 sc1\n s_mov_b64 exec, -1')
    stamp(k, 10, 'z')
    negs(); arrive_check(k, 250, 's72', 's70', 1)
    k('s_mov_b64 exec, -1\n s_branch L_b1m')
    k.restore(st); k.label('L_b1o')
    k('s_waitcnt vmcnt(8)')
    stamp(k, 9, 'z')
    k('s_barrier')
    stamp(k, 10, 'z')
    negs()
    k.label('L_b1m')
    setup_late(k)
    wd_finish(k)
    only_wave(k, 1, lambda: k(f'v_lshlrev_b32 v252, 15, v1\n s_mov_b64 exec, 3\n buffer_store_dword v250, v252, {WSR}, s41 offen{ST}'))
    only_wave(k, 0, lambda: poll(k, 250, 1))
    k.vm = []
    k('s_barrier')
    stamp(k, 4)
    stamp(k, 11, 'z'); stamp(k, 1, 'b')
    barrier2(k, p2(k))
    n0 = p3_body(k, False)
    nst = 0
    nst = 2
    k.label('L_join3')
    k.fence()
    p4(k, n0, nst)
    stamp_out(k, 12)
    k.label('L_end'); k('s_endpgm')
    k.restore(st3); k.label('L_p3h'); assert p3_body(k, True) == n0
    assert not any(k.vm[-nst:]); k('s_branch L_join3')
    k.restore(st0); k.label('L_notz')
    p1_w(k); k('s_branch L_join1')
    k.restore(st_c); k.label('L_p1c')
    k(f's_cmp_ge_u32 s2, {NI0}\n s_cbranch_scc1 L_p1i')
    st1 = k.state()
    p1_t(k); k('s_branch L_join1')
    k.restore(st1); k.label('L_p1i'); p1_i(k); k('s_branch L_join1')
    o = header()
    o += f'; @launch grid=(256,1,1) block=(256,1,1) lds={STATL+4096}\n'
    o += '.amdgcn_target "amdgcn-amd-amdhsa--gfx950"\n.text\n' + k.text()
    o += tables_text() + 'L_image_end:\n'
    o += '.section .rodata,"a"\n.p2align 6\n' + kd(KN, k)
    return o

if __name__ == '__main__':
    out = sys.argv[1]
    for a in sys.argv[2:]:
        key, _, val = a.partition('=')
        OPT[key] = eval(val) if val else True
    open(out, 'w').write(fused())
```

```python
import numpy as np
S, D, F = 2048, 512, 1376

def f2bf(x):
    u = np.ascontiguousarray(x, np.float32).view(np.uint32).astype(np.uint64)
    return (((u + 0x7FFF + ((u >> 16) & 1)) >> 16) & 0xFFFF).astype(np.uint16)
def bf2f(u): return (np.asarray(u).astype(np.uint32) << 16).view(np.float32)
def f2h(x): return np.asarray(x, np.float64).astype(np.float16).view(np.uint16)
def h2f(u): return np.asarray(u).view(np.float16).astype(np.float32)

import os
ZT_STRIDE = int(os.environ.get("ZS", 8448))
WT_STRIDE = int(os.environ.get("WS", 8448))
off = 0x10000
CNT, FLG, RBF = 0, 4096, 0x10000
off = 0x20000
def alloc(n):
    global off
    o = off; off = (off + n + 4095) // 4096 * 4096; return o
ZT = alloc(256 * 10240)
WT = alloc(256 * 10240)
SM = alloc(S * 8)
HT = alloc(512 * S * 2)
HFS = 65536 + int(os.environ.get('HFP', 0)); WPS = 16384 + int(os.environ.get('WPP', 0)); WDS = 22 * 2048 + int(os.environ.get('WDP', 0))
WP = alloc(192 * 20480)
WD = alloc(32 * 49152)
HF = alloc(88 * 73728)
HRES = alloc(S * D * 2)
STAMP = alloc(1 << 20)
WS_USED = off

def kd_of(c):
    s, j = c >> 4, c & 15
    if c == 0: return 256
    if j < 8: return s + 32 * j
    return (16 if s == 0 else 32 - s) + 32 * (j - 8)
KD = np.array([kd_of(c) for c in range(256)])
def s_of_m(m):
    w, g, bl, be, r = m >> 9, (m >> 7) & 3, (m >> 3) & 15, (m >> 2) & 1, m & 3
    return 32 * (16 * w + 4 * g + r) + 16 * be + bl
SOFM = np.array([s_of_m(m) for m in range(S)])
def rho(c, part): return 64 * (c >> 5) + 32 * part + (c & 31)

def basis():
    C = np.zeros((D, 512)); d = np.arange(D)
    for c in range(256):
        ph = 2 * np.pi * KD[c] * (d + 0.5) / 512
        if c == 0: C[:, rho(0, 1)] = -np.sin(ph) / np.sqrt(512)
        else:
            C[:, rho(c, 0)] = np.cos(ph) / 16; C[:, rho(c, 1)] = -np.sin(ph) / 16
    return C

L = np.arange(64); G_ = L >> 4; X_ = L & 15; E_ = np.arange(8)
def clean(a):
    a = np.where(np.abs(a) < 1e-12, 0.0, a); return a + 0.0
def t_FA():
    d1 = 16 * (E_[None, :] >> 2) + 4 * G_[:, None] + (E_[None, :] & 3)
    th = 2 * np.pi * X_[:, None] * d1 / 32
    re = np.cos(th); im = np.where(X_[:, None] == 0, np.cos(np.pi * d1), -np.sin(th))
    return f2bf(clean(np.stack([re, im])))
def t_GB(zpath):
    out = np.zeros((16, 2, 64, 8))
    for s in range(16):
        for l in range(64):
            g, j = l >> 4, l & 15; c = 16 * s + j
            for e in range(8):
                d2, comp = 4 * g + (e & 3), e >> 2
                ph = 2 * np.pi * KD[c] * (d2 + 0.5) / 512; co, si = np.cos(ph), np.sin(ph)
                if c == 0:
                    v = (-si / np.sqrt(2) if comp == 0 else 0.0)
                    re, im = (v, 0.0) if zpath else (0.0, v)
                elif s == 0:
                    use = (comp == 0) if j < 8 else (comp == 1)
                    re, im = (co, -si) if use else (0.0, 0.0)
                elif j < 8: re, im = (co, -si) if comp == 0 else (si, co)
                else: re, im = (co, -si) if comp == 0 else (-si, -co)
                out[s, 0, l, e] = re; out[s, 1, l, e] = im
    return f2h(clean(out / 4)) if zpath else f2bf(clean(out / 16))
def cs_frag(x, y, n, sgn, scale):
    th = 2 * np.pi * x[:, None] * y / n
    return clean(np.concatenate([np.cos(th), sgn * np.sin(th)], axis=1) * scale)
R4 = np.arange(4)
def t_B1(): return f2h(np.array([[cs_frag(16*w + X_, 16*((u+w) % 4) + 4*G_[:, None] + R4, 64, 1, 1/8) for u in range(4)] for w in range(4)]))
def t_A4(): return f2bf(np.array([[cs_frag(16*w + X_, 16*((u+w) % 4) + 4*G_[:, None] + R4, 64, -1, 1/8) for u in range(4)] for w in range(4)]))
def t_A2(): return f2h(np.array([[cs_frag(16*t + X_, 16*b + 4*G_[:, None] + R4, 32, 1, 1/8) for b in range(2)] for t in range(2)]))
def t_B3(): return f2bf(np.array([[cs_frag(16*b + X_, 16*t + 4*G_[:, None] + R4, 32, -1, 1/4) for t in range(2)] for b in range(2)]))

def model(ref):
    x = bf2f(ref['A_x']).reshape(S, D).astype(np.float64)
    wr = bf2f(ref['A_w_r']).astype(np.float64); wi = bf2f(ref['A_w_i']).astype(np.float64)
    wg = bf2f(ref['B_w_gate']).astype(np.float64); wu = bf2f(ref['B_w_up']).astype(np.float64); wd = bf2f(ref['B_w_down']).astype(np.float64)
    M = {}
    mu = x.mean(1); sig = np.sqrt(x.var(1) + 1e-5); z = (x - mu[:, None]) / sig[:, None]
    M['SM'] = np.stack([a[SOFM].reshape(16, 4, 4, 2, 4).transpose(0, 3, 1, 2, 4).reshape(128, 16) for a in (sig, mu)], 1)
    C = basis(); Zh = z @ C
    Zc = np.stack([Zh[:, rho(c, 0)] + 1j * Zh[:, rho(c, 1)] for c in range(256)], 1)
    Zc[:, 0] = Zh[:, rho(0, 1)]
    Zr = Zc.reshape(4, 4, 4, 2, 16, 256)
    zt = np.concatenate([Zr.real.transpose(5, 0, 3, 1, 4, 2), Zr.imag.transpose(5, 0, 3, 1, 4, 2)], axis=-1)
    M['ZT'] = zt.reshape(256, -1)
    M['ZT2'] = zt.reshape(256, 4, 2, 4, 4, 4, 8).transpose(1, 3, 2, 4, 0, 5, 6)
    def wt(a): return a[:, 1:].reshape(2, 4, 4, 4, 16, 256).transpose(5, 0, 3, 1, 4, 2)
    M['WT'] = np.stack([wt(wr), wt(wi)], -1).reshape(256, -1)
    M['WT2'] = M['WT'].reshape(4, 64, 2, 4, 4, 2, 8, 8).transpose(2, 4, 3, 5, 0, 1, 6, 7)
    W = (wr + 1j * wi)[:, KD]
    Y = np.fft.ifft(np.fft.fft(Zc, axis=0) * W, axis=0)
    Hc = sig[:, None] * Zc + Y
    Hh = np.zeros((S, 512))
    for c in range(256):
        if c == 0: Hh[:, rho(0, 1)] = Hc[:, 0].real
        else: Hh[:, rho(c, 0)] = Hc[:, c].real; Hh[:, rho(c, 1)] = Hc[:, c].imag
    Hm = Hh[SOFM]
    M['HT'] = Hm.reshape(64, 32, 512).transpose(0, 2, 1)
    Wg = C.T @ wg; Wu = C.T @ wu
    kk = 32 * np.arange(16)[:, None, None] + 4 * np.arange(4)[None, :, None] + (16 * (E_ >> 2) + (E_ & 3))[None, None, :]
    wp = np.full((192, 16, 4, 16, 8), np.nan)
    for t in range(16):
        for i in range(16): wp[12 * t + 11, :, :, i, :] = C[16 * t + i][kk]
    for tau in range(172):
        q = tau + tau // 11; n = q % 3
        for mu_, Wm in enumerate((Wg, Wu)):
            T, r8 = (q - n + mu_, n) if n < 2 else (q, mu_)
            for ph in range(8): wp[T, :, :, 8 * r8 + ph, :] = Wm[:, 8 * tau + ph][kk]
    M['WP'] = wp
    d1 = np.arange(32); sl = np.arange(16)
    FAf = np.stack([np.cos(2*np.pi*np.outer(sl, d1)/32), np.where(sl[:, None] == 0, np.cos(np.pi*d1)[None, :], -np.sin(2*np.pi*np.outer(sl, d1)/32))])
    def stepA(col): return np.einsum('csd,de->sec', FAf, col.reshape(32, 16)).reshape(16, 4, 4, 2).transpose(0, 1, 3, 2).reshape(16, 4, 8)
    tp = np.full((192, 16, 4, 16, 8), np.nan)
    for t in range(16):
        for i in range(16): tp[12*t+11, :, :, i, :] = stepA(np.eye(512)[16*t+i])
    for tau in range(172):
        q = tau + tau // 11; n = q % 3
        for mu_, Wm in enumerate((wg, wu)):
            T, r8 = (q - n + mu_, n) if n < 2 else (q, mu_)
            for ph in range(8): tp[T, :, :, 8*r8+ph, :] = stepA(Wm[:, 8*tau+ph])
    M['TP'] = tp
    i = np.arange(32); q = i >> 3; nloc = 16 * ((i >> 2) & 1) + 4 * (i & 3) + q
    wdp = np.concatenate([wd, np.zeros((32, D))])
    M['WD'] = wdp.reshape(22, 4, 2, 8, 8, 2, 32)[..., nloc].transpose(4, 1, 0, 5, 2, 6, 3)
    h = Hm @ C.T + mu[SOFM][:, None]
    hb = h.reshape(S, 32, 16)
    M['HRES'] = np.stack([np.stack([hb[:, cg], hb[:, 31 - cg]]) for cg in range(16)]).reshape(16, 2, S, 2, 8).transpose(0, 1, 3, 2, 4)
    M['h'] = h
    rstd = 1 / np.sqrt((Hm ** 2).sum(1) / 512 + 1e-5)
    g = (Hm @ Wg) * rstd[:, None]; u = (Hm @ Wu) * rstd[:, None]
    H = 0.5 * g * (1 + np.tanh(np.sqrt(2 / np.pi) * (g + 0.044715 * g ** 3))) * u
    M['HF'] = H.reshape(64, 32, 86, 2, 8).transpose(2, 0, 3, 1, 4)
    out = np.zeros((S, D)); out[SOFM] = h + H @ wd
    M['out'] = out
    return M

if __name__ == '__main__':
    ref = np.load('ref0.npz'); M = model(ref)
    o = bf2f(ref['out']).reshape(S, D)
    e = M['out'] - o
    print('model vs torch ref: max', np.abs(e).max(), 'rms', np.sqrt((e ** 2).mean()), 'thr', 8 / 256 * np.abs(o).max())
    hh = np.zeros((S, D)); hh[SOFM] = M['h']
    print('h err', np.abs(hh - bf2f(ref['h']).reshape(S, D)).max())
    FA = bf2f(t_FA()).astype(np.float64); GB = h2f(t_GB(True)).astype(np.float64)
    z = np.random.randn(512); T = np.zeros((2, 16, 16))
    d1 = 16 * (E_[None, :] >> 2) + 4 * np.arange(4)[:, None] + (E_[None, :] & 3)
    for comp in range(2):
        for sl in range(16):
            for d2 in range(16):
                T[comp, sl, d2] = sum(FA[comp, 16 * g + sl, e] * z[16 * d1[g, e] + d2] for g in range(4) for e in range(8))
    Zh = z @ basis(); err = 0
    for sl in range(16):
        for j in range(16):
            for o_ in range(2):
                v = sum(GB[sl, o_, 16 * g + j, e] * T[e >> 2, sl, 4 * g + (e & 3)] / 4 for g in range(4) for e in range(8))
                c = 16 * sl + j
                want = Zh[rho(c, o_)] if c else (Zh[rho(0, 1)] if o_ == 0 else 0)
                err = max(err, abs(v - want))
    print('two-step table err', err, 'ws used', WS_USED)
```

```python
import sys, math, struct
import numpy as np
from dsl import K
from design import *
from gen import V, A, Sg, fbits, TBL, tables_text, header, kd, NAME, srd, cmul, TPAD

OPT = dict(stamps=False, gblate=True, tpost=True, every=48, mergeland=True, mrate=1.5, nopre=True, w0late=True, nA=6, c1=1, fpos=0, c2=1, prio=True, wgbfirst=True, wdshadow=True, wcont=True, nord=True, hold=True, esamp=8, e1end=13, echk=15, epost=8, wdend=62, lpoll=9, lchk=16, retouch=True, ntx=' nt', ntd=' nt', lp2=17, sbar=True, dpre=12, mfirst=2)
ST, LD = ' sc1', ' sc1'
WSR, RA, RB, RC = 's[24:27]', 's[28:31]', 's[32:35]', 's[36:39]'
WAVE = 's40'
KN = NAME + '_kernel'
SPIN = 400000
TW1, TW2 = 112, 128
B1, A4, A2, B3 = 144, 168, 192, 216
FA, GB = 200, 208
NZ, NC0, NI0 = 128, 216, 248
uid = [0]

def stamp(k, i, pm=False):
    if OPT.get('pst') and 1 <= i <= 5 and not pm: return
    if OPT.get('zdet') and 1 <= i <= 11 and pm != 'z': return
    if pm == 'z' and not OPT.get('zdet'): return
    if OPT.get('bdet') and 1 <= i <= 11 and pm != 'b': return
    if pm == 'b' and not OPT.get('bdet'): return
    if OPT['stamps']: k(f's_{"memtime" if OPT.get("pst") else "memrealtime"} s[{76+2*i}:{77+2*i}]')
def stamp_out(k, n):
    if not OPT['stamps']: return
    k.wait(vm=0, lg=0); stamp(k, n); n += 1; k.wait(lg=0)
    k(f's_lshl_b32 s44, s2, 8\n s_lshl_b32 s45, {WAVE}, 6\n s_add_u32 s44, s44, s45\n s_add_u32 s44, s44, {STAMP}')
    for i in range(16): k(f'v_mov_b32 v{8+i}, s{76+2*i}' if i < n else f'v_mov_b32 v{8+i}, 0')
    k('v_mov_b32 v24, 0\n s_mov_b64 exec, 1')
    for q in range(4): k(f'buffer_store_dwordx4 {V(8+4*q,4)}, v24, {WSR}, s44 offen offset:{16*q}')

def wsrd(k, base, end):
    k(f's_mov_b32 s{base}, s24\n s_mov_b32 s{base+1}, s25\n s_mov_b32 s{base+2}, {end}\n s_mov_b32 s{base+3}, 0x20000')

def tbl_addr(k, vp, soff):
    k(f"""s_add_u32 s46, s42, {soff}
    s_addc_u32 s47, s43, 0
    v_mov_b32 v{vp+1}, s47
    v_add_co_u32 v{vp}, vcc, s46, v4
    v_addc_co_u32 v{vp+1}, vcc, 0, v{vp+1}, vcc""")

def gb_loads(k):
    for q in range(8): k(f'global_load_dwordx4 {A(GB+4*q,4)}, v[8:9], off offset:{1024*q-4096}')

def prologue(k):
    k.raw(f'.globl {KN}\n.p2align 8\n.type {KN},@function\n{KN}:')
    stamp(k, 0)
    k(f"""s_load_dwordx16 s[4:19], s[0:1], 0
    s_load_dwordx4 s[20:23], s[0:1], 64
    s_getpc_b64 s[42:43]""")
    k.raw('L_pc:')
    k(f"""s_cmp_ge_u32 s2, 256
    s_cbranch_scc1 L_end
    v_lshrrev_b32 v5, 6, v0
    v_and_b32 v1, 63, v0
    v_readfirstlane_b32 {WAVE}, v5
    s_lshr_b32 s44, s2, 3
    v_lshl_add_u32 v5, v5, 5, s44
    v_lshlrev_b32 v6, 6, v1
    v_lshl_add_u32 v5, v5, 12, v6      ; 4 KiB slice per wave, one dword per 64 B""")
    k.raw('    v_min_u32 v5, L_image_end-L_pc-4, v5'); k.pos += 1
    k(f"""v_mov_b32 v7, s43
    v_add_co_u32 v6, vcc, s42, v5
    v_addc_co_u32 v7, vcc, 0, v7, vcc
    global_load_dword v255, v[6:7], off
    v_bfe_u32 v2, v0, 4, 2
    v_and_b32 v3, 15, v0
    v_lshlrev_b32 v4, 4, v1""")
    k.raw('    s_add_u32 s42, s42, tables-L_pc\n    s_addc_u32 s43, s43, 0'); k.pos += 2
    k(f's_cmp_ge_u32 s2, {NC0}\n s_cbranch_scc1 L_p1c')
    global st_c
    st_c = k.state()
    tbl_addr(k, 6, TBL['FA'])
    for c in range(2): k(f'global_load_dwordx4 {A(FA+4*c,4)}, v[6:7], off offset:{1024*c}')
    k(f"""s_cmp_lt_u32 s2, {NZ}
    s_cselect_b32 s45, {TBL["GBZ"]+4096}, {TBL["GBW"]+4096}
    s_lshl_b32 s44, {WAVE}, 13
    s_add_u32 s44, s44, s45""".replace(str(TBL["GBW"]+4096), 's47').replace('s_cmp_lt', f's_mov_b32 s47, {TBL["GBW"]+4096}\n s_cmp_lt'))
    tbl_addr(k, 8, 's44')
    if not OPT.get('gblate'): gb_loads(k)

def go_load(k, b):
    k(f'v_mov_b32 v{b}, 0\n global_load_dword v{b+4}, v{b}, s[20:21]{LD}')
def arrive_issue(k, b, cnt, go):
    k(f'v_mov_b32 v{b}, 0\n v_mov_b32 v{b+1}, 1\n s_mov_b64 exec, 1')
    if go:
        uid[0] += 1; u = uid[0]
        k('s_mov_b32 s46, 0')
        k.label(f'L_go{u}')
        k(f"""s_waitcnt vmcnt(0)
        v_cmp_ne_u32 vcc, 0, v{b+4}
        s_add_u32 s46, s46, 1
        s_cbranch_vccnz L_gone{u}
        global_load_dword v{b+4}, v{b}, s[20:21]{LD}
        s_cmp_lt_u32 s46, {SPIN}
        s_cbranch_scc1 L_go{u}""")
        k.label(f'L_gone{u}')
    k(f'buffer_atomic_add v{b+1}, v{b}, {WSR}, {cnt} offen sc0 sc1')
def arrive_check(k, b, flg, last, val):
    uid[0] += 1; u = uid[0]
    k(f"""s_mov_b64 exec, 0xff
    v_lshlrev_b32 v{b+2}, 11, v1
    v_mov_b32 v{b}, {val}
    v_readfirstlane_b32 s47, v{b+1}
    s_cmp_lg_u32 s47, {last}
    s_cbranch_scc1 L_nl{u}""")
    st = k.state()
    k(f'buffer_store_dword v{b}, v{b+2}, {WSR}, {flg} offen{ST}')
    k.restore(st)
    k.label(f'L_nl{u}')
def poll(k, b, val):
    uid[0] += 1; u = uid[0]
    k(f"""s_mov_b64 exec, 0xff
    v_lshlrev_b32 v{b+3}, 8, v1
    s_and_b32 s44, s2, 7
    s_lshl_b32 s44, s44, 11
    s_add_u32 s44, s44, {FLG}
    s_mov_b32 s46, 0""")
    k.label(f'L_bp{u}')
    k(f"""buffer_load_dword v{b+1}, v{b+3}, {WSR}, s44 offen{LD}
    s_add_u32 s46, s46, 1
    s_waitcnt vmcnt(0)
    v_cmp_gt_u32 vcc, {val}, v{b+1}
    s_cmp_gt_u32 s46, {SPIN}
    s_cbranch_scc1 L_bd{u}
    s_cbranch_vccnz L_bp{u}""")
    k.label(f'L_bd{u}')
    k('s_mov_b64 exec, -1')
def only_wave(k, w, fn):
    uid[0] += 1; u = uid[0]
    k(f's_cmp_lg_u32 {WAVE}, {w}\n s_cbranch_scc1 L_ow{u}')
    st = k.state(); fn(); k('s_mov_b64 exec, -1'); k.restore(st); k.label(f'L_ow{u}')

def p2_tables(k, vp=26):
    k(f's_lshl_b32 s44, {WAVE}, 13\n s_add_u32 s44, s44, {TBL["P2W"]+4096}')
    tbl_addr(k, vp, 's44'); tbl_addr(k, vp+2, TBL['P2S']+4096)
    o = [f'global_load_dwordx4 {V(B1+6*u+2,4)}, {V(vp,2)}, off offset:{1024*u-4096}' for u in range(4)]
    o += [f'global_load_dwordx4 {V(A2+6*u+2,4)}, {V(vp+2,2)}, off offset:{1024*u-4096}' for u in range(4)]
    o += [f'global_load_dwordx4 {V(B3+6*u+2,4)}, {V(vp+2,2)}, off offset:{1024*u}' for u in range(4)]
    o += [f'global_load_dwordx4 {V(A4+6*u+2,4)}, {V(vp,2)}, off offset:{1024*u}' for u in range(4)]
    return o
def flush(k):
    sp, k.sprinkle = k.sprinkle, []
    for t in sp: k(t)

def gtouch(k, dst):
    k(f"""s_bitcmp1_b32 s2, 0
    s_cselect_b32 s36, s14, s12
    s_cselect_b32 s37, s15, s13
    s_and_b32 s37, s37, 0xffff
    s_mov_b32 s38, {D*F*2}
    s_lshr_b32 s44, s2, 3
    s_lshl_b32 s44, s44, 2
    s_add_u32 s44, s44, {WAVE}
    s_mul_i32 s44, s44, {8*2752}
    s_bfe_u32 s46, s2, 0x20001
    s_mul_i32 s46, s46, 704
    s_add_u32 s44, s44, s46
    v_and_b32 v15, 7, v1
    v_lshlrev_b32 v15, 7, v15
    v_min_u32 v15, 700, v15
    v_lshrrev_b32 v16, 3, v1
    v_mul_u32_u24 v16, 2752, v16
    v_add_u32 v15, v15, v16
    s_mov_b32 exec_lo, 0x7f7f7f7f
    s_mov_b32 exec_hi, 0x7f7f7f7f
    buffer_load_dword v{dst}, v15, {RC}, s44 offen
    s_mov_b64 exec, -1""")

def p1_z(k):
    X, DA, TR, SS, WL, WO = 32, 48, 80, 96, 104, 120
    k(f"""s_and_b32 s44, s2, 7
    s_lshr_b32 s45, s2, 4
    s_lshl_b32 s45, s45, 3
    s_add_u32 s44, s44, s45
    s_lshl_b32 s44, s44, 1
    s_bfe_u32 s45, s2, 0x10003
    s_add_u32 s60, s44, s45            ; (t,g,beta,bq)
    s_lshr_b32 s61, s60, 3
    s_lshl_b32 s61, s61, 7
    s_and_b32 s44, s60, 7
    s_lshl_b32 s44, s44, 2
    s_add_u32 s44, s44, s61
    s_add_u32 s44, s44, {WAVE}
    s_lshl_b32 s56, s44, 10
    s_add_u32 s57, s56, 0x8000
    s_add_u32 s58, s56, 0x10000
    s_add_u32 s59, s56, 0x18000
    s_mov_b32 s38, {S*D*2}
    s_mov_b32 s39, 0x20000
    s_bfe_u32 s48, s2, 0x20003
    s_and_b32 s44, s2, 7
    s_lshl_b32 s44, s44, 2
    s_add_u32 s48, s48, s44
    s_and_b32 s44, s2, 0x60
    s_add_u32 s48, s48, s44
    s_add_u32 s48, s48, 128""")
    wt_rows(k, 's48', 49)
    k(f's_mul_i32 s44, {WAVE}, {64*514}\n s_add_u32 s49, s49, s44')
    k.wait(lg=0)
    stamp(k, 1, 'z')
    k('s_mov_b32 s36, s4\n s_and_b32 s37, s5, 0xffff')
    for i in range(4): k(f'buffer_load_dwordx4 {V(X+4*i,4)}, v4, {RC}, s{56+i} offen{OPT.get("ntx", "")}')
    k(WSRDS)
    if not OPT.get('nowpf'):
        k(f"""v_lshrrev_b32 v15, 1, v3
        v_mul_u32_u24 v15, 514, v15
        v_and_b32 v16, 1, v1
        v_mul_u32_u24 v16, 126, v16
        v_add_u32 v15, v15, v16
        s_mov_b64 exec, 0xffff
        buffer_load_ushort v{WO}, v15, {RA}, s49 offen{OPT.get('ntw', '')}
        buffer_load_ushort v{WO+1}, v15, {RB}, s49 offen{OPT.get('ntw', '')}
        s_mov_b64 exec, -1""")
    if OPT.get('gpf') == 2: gb_loads(k)
    if OPT.get('gpf'): gtouch(k, WO+2)
    if OPT.get('gpf') != 2: gb_loads(k)
    k('v_mov_b32 v15, v11')
    wl_ = [f'buffer_load_dwordx4 {V(WL,4)}, v15, {RA}, s49 offen', f'buffer_load_dwordx4 {V(WL+4,4)}, v15, {RB}, s49 offen']
    wt_dest(k, 's48', 50)
    k(f"""s_lshl_b32 s44, {WAVE}, 2
    s_add_u32 s44, s44, 0xa000
    v_add_u32 v12, s44, v12
    s_lshl_b32 s44, {WAVE}, 5
    v_xor_b32 v13, s44, v4
    s_lshl_b32 s44, {WAVE}, 11
    s_add_u32 s44, s44, 0xa000
    v_add_u32 v13, s44, v13
    v_xor_b32 v14, 16, v13
    s_lshl_b32 s44, {WAVE}, 11
    s_add_u32 s50, s50, s44
    s_add_u32 s51, s50, 1024""")
    srd(k, 24, 22, WS_USED)
    k(f"""s_lshl_b32 s44, {WAVE}, 12
    v_add_u32 v30, s44, v4
    v_lshrrev_b32 v31, 1, v4
    v_add_u32 v31, s44, v31
    v_mul_u32_u24 v6, {TPAD}, v3
    v_lshl_add_u32 v6, v2, 8, v6
    s_lshl_b32 s44, {WAVE}, 6
    s_add_u32 s44, s44, 16384
    v_add_u32 v6, s44, v6
    s_mul_i32 s44, {WAVE}, {4*TPAD}
    s_add_u32 s44, s44, 16384
    v_add_u32 v7, s44, v4
    v_cmp_eq_u32 vcc, 0, v3
    v_cndmask_b32 v8, 0, 1.0, vcc
    s_mov_b32 s62, 0x3f803f80
    v_lshlrev_b32 v9, 6, v3
    v_lshl_add_u32 v9, v2, 4, v9
    s_lshl_b32 s44, s60, 14
    s_lshl_b32 s63, s60, 7
    s_add_u32 s63, s63, {SM}
    s_lshl_b32 s47, {WAVE}, 12
    s_add_u32 s44, s44, s47
    s_add_u32 s64, s44, {ZT}
    s_lshl_b32 s44, {WAVE}, 4
    s_add_u32 s44, s44, 0x9000
    v_lshl_add_u32 v10, v2, 2, s44""")
    tl = p2_tables(k)
    wp_ = OPT.get('wpos', 16); tl = tl[:wp_] + wl_ + tl[wp_:]
    if True:
        stamp(k, 2, 'z')
        for i in range(4):
            k(f'ds_write_b128 v30, {V(X+4*i,4)} offset:{1024*i}')
            if i == 0: stamp(k, 1)
            for r in range(2): k(f'ds_read_b64_tr_b16 {V(TR+4*i+2*r,2)}, v31 offset:{1024*i+512*r}')
            for j in range(4):
                k(f'v_dot2_f32_bf16 v{SS+i}, v{X+4*i+j}, s62, {"0" if j==0 else V(SS+i)}')
                k(f'v_dot2_f32_bf16 v{SS+4+i}, v{X+4*i+j}, v{X+4*i+j}, {"0" if j==0 else V(SS+4+i)}')
        stamp(k, 3, 'z')
        k.sprinkle = tl; k.every = OPT.get('tev', 28); k.since = 100
        stamp(k, 4, 'z')
        mf = [f'v_mfma_f32_16x16x32_bf16 {V(DA+8*i+4*c,4)}, {V(TR+4*i,4)}, {A(FA+4*c,4)}, 0' for i in range(4) for c in range(2)]
        k(mf.pop(0)); k(mf.pop(0))
        for b in (SS, SS+4):
            k(f'v_permlane32_swap_b32 v{b}, v{b+2}\n v_permlane32_swap_b32 v{b+1}, v{b+3}')
        for b in (SS, SS+4):
            k(f'v_add_f32 v{b}, v{b}, v{b+2}\n v_add_f32 v{b+1}, v{b+1}, v{b+3}')
        k(mf.pop(0))
        for b in (SS, SS+4): k(f'v_permlane16_swap_b32 v{b}, v{b+1}')
        for b in (SS, SS+4): k(f'v_add_f32 v{b}, v{b}, v{b+1}')
        for sh in (8, 4, 2, 1):
            k(mf.pop(0))
            for b in (SS, SS+4): k(f'v_add_f32_dpp v{b}, v{b}, v{b} row_ror:{sh} row_mask:0xf bank_mask:0xf')
        k(mf.pop(0))
        k(f"""v_mul_f32 v{SS}, {fbits(1/512)}, v{SS}
        v_mul_f32 v{SS+4}, {fbits(1/512)}, v{SS+4}
        v_fma_f32 v{SS+4}, -v{SS}, v{SS}, v{SS+4}
        v_max_f32 v{SS+4}, 0, v{SS+4}
        v_add_f32 v{SS+4}, {fbits(1e-5)}, v{SS+4}
        v_rsq_f32 v{SS+1}, v{SS+4}
        v_mul_f32 v{SS+2}, {fbits(-8.0)}, v{SS}
        v_mul_f32 v{SS+2}, v{SS+2}, v{SS+1}
        v_mul_f32 v{SS+3}, {fbits(0.25)}, v{SS+1}""")
        for i in range(4):
            k(f'v_readlane_b32 s{68+2*i}, v{SS+3}, {16*i}\n v_readlane_b32 s{69+2*i}, v{SS+2}, {16*i}')
        for i in range(4):
            d = DA + 8*i
            k(f'v_mul_f32 v{TR}, s{69+2*i}, v8')
            for h in range(2):
                k(f'v_pk_mul_f32 {V(d+4+2*h,2)}, {V(d+4+2*h,2)}, {Sg(68+2*i,2)} op_sel_hi:[1,0]')
            for h in range(2):
                k(f'v_pk_fma_f32 {V(d+2*h,2)}, {V(d+2*h,2)}, {Sg(68+2*i,2)}, {V(TR,2)} op_sel_hi:[1,0,0]')
            for h in (2, 3, 0, 1): k(f'v_cvt_pk_f16_f32 v{X+4*i+h}, v{d+2*h}, v{d+2*h+1}')
            k(f'ds_write_b128 v6, {V(X+4*i,4)} offset:{16*i}')
        k(f"""v_mul_f32 v{SS+4}, v{SS+4}, v{SS+1}
        ds_write2_b32 v10, v{SS+4}, v{SS} offset0:0 offset1:16""")
        print('tables left', len(k.sprinkle)); flush(k)
        def wt_a():
            for i in range(8):
                k(f'v_perm_b32 v{WO+i}, v{WL+4+(i>>1)}, v{WL+(i>>1)}, s{53+(i&1)}')
                k(f'ds_write_b32 v12, v{WO+i} offset:{128*i}')
        if OPT.get('wtearly'): wt_a()
        k.wait(lg=0); k('s_barrier')
        if OPT.get('zst'): stamp(k, 1)
        stamp(k, 5, 'z')
        for q in range(4): k(f'ds_read_b128 {V(TR+4*q,4)}, v7 offset:{TPAD*q}')
        k(f'ds_read_b128 {V(SS,4)}, v4 offset:0x9000')
        go_load(k, 250)
        wt_b = lambda: [k(f'ds_read_b128 {V(WL+4*n,4)}, v{13+n} offset:{1024*n}') for n in range(2)]
        wt_c = lambda: [k(f'buffer_store_dwordx4 {V(WL+4*n,4)}, v11, {WSR}, s{50+n} offen{ST}') for n in range(2)]
        if OPT.get('wtearly'): wt_b()
        for q in range(4):
            for o in range(2): k(f'v_mfma_f32_16x16x32_f16 {V(DA+8*q+4*o,4)}, {V(TR+4*q,4)}, {A(GB+8*q+4*o,4)}, 0')
        k.wait(lg=0)
        if OPT.get('wtearly'): wt_c()
        only_wave(k, 3, lambda: k(f's_mov_b64 exec, 0xff\n buffer_store_dwordx4 {V(SS,4)}, v4, {WSR}, s63 offen{ST}'))
        for q in range(4):
            for h in range(4): k(f'v_cvt_pk_f16_f32 v{X+4*q+h}, v{DA+8*q+2*h}, v{DA+8*q+2*h+1}')
            k(f'buffer_store_dwordx4 {V(X+4*q,4)}, v9, {WSR}, s64 offen offset:{1024*q}{ST}')
        stamp(k, 6, 'z')
        if not OPT.get('wtearly'):
            wt_a(); k.wait(lg=0); k('s_barrier'); wt_b(); wt_c()
        stamp(k, 2)

def p1_w(k):
    OP, DA = 32, 64
    TBASE = 32768
    k(f"""s_and_b32 s61, s2, 1               ; mu
    s_bfe_u32 s60, s2, 0x60001
    s_and_b32 s44, s60, 3
    s_lshl_b32 s44, s44, 1
    s_bfe_u32 s45, s60, 0x10002
    s_add_u32 s44, s44, s45
    s_andn2_b32 s45, s60, 7
    s_add_u32 s44, s44, s45
    s_cmp_lt_u32 s60, 40
    s_cselect_b32 s60, s44, s60        ; phi""" + ("""
    s_bfe_u32 s44, s2, 0x20001
    s_mul_i32 s44, s44, 11
    s_bfe_u32 s45, s2, 0x40003
    s_add_u32 s60, s44, s45""" if OPT.get('wcont') else '') + f"""
    s_mul_i32 s44, {WAVE}, {4*2752}
    s_lshl_b32 s45, s60, 6
    s_add_u32 s62, s44, s45
    v_lshrrev_b32 v10, 2, v1
    v_mul_u32_u24 v30, {16*2752}, v10
    v_and_b32 v11, 3, v1
    v_and_b32 v12, 1, v2
    v_lshlrev_b32 v12, 1, v12
    v_xor_b32 v13, v11, v12
    v_lshl_add_u32 v30, v13, 4, v30    ; DMA source
    s_lshl_b32 s63, {WAVE}, 13
    s_mov_b32 s38, {D*F*2}
    s_mov_b32 s39, 0x20000
    """)
    k(f"""s_bfe_u32 s64, s2, 0x40003
    s_lshl_b32 s64, s64, 2
    s_add_u32 s64, s64, {WAVE}
    s_mul_i32 s64, s64, {12*2752}
    s_bfe_u32 s46, s2, 0x20001
    s_mul_i32 s46, s46, 704
    s_add_u32 s64, s64, s46
    s_add_u32 s65, s64, {8*2752}
    v_and_b32 v14, 7, v1
    v_lshlrev_b32 v14, 7, v14
    v_min_u32 v14, 700, v14
    v_lshrrev_b32 v15, 3, v1
    v_mul_u32_u24 v15, 2752, v15
    v_add_u32 v14, v14, v15""")
    if OPT.get('wgbfirst'): gb_loads(k)
    k.wait(lg=0)
    stamp(k, 1, 'z')
    k(f"""s_cmp_eq_u32 s61, 0
    s_cselect_b32 s36, s12, s14
    s_cselect_b32 s37, s13, s15
    s_and_b32 s37, s37, 0xffff""")
    if not OPT.get('nowt2'):
        k(f"""s_mov_b32 exec_lo, 0x7f7f7f7f
        s_mov_b32 exec_hi, 0x7f7f7f7f
        buffer_load_dword v20, v14, {RC}, s64 offen{OPT.get('ntg', '')}
        s_mov_b32 exec_hi, 0
        buffer_load_dword v21, v14, {RC}, s65 offen{OPT.get('ntg', '')}
        s_mov_b64 exec, -1""")
    pos = []
    for n in range(8):
        k(f's_add_u32 m0, s63, {1024*n}\n s_add_u32 s44, s62, {((n>>1) + 256*(n&1))*2752}')
        k(f'buffer_load_dwordx4 v30, {RC}, s44 offen{OPT.get("ntg", "")} lds'); pos.append(k.nvm)
    if not OPT.get('wgbfirst'): gb_loads(k)
    srd(k, 24, 22, WS_USED)
    k(f"""v_lshlrev_b32 v31, 6, v10
    v_lshl_add_u32 v31, v12, 4, v31
    v_lshl_add_u32 v31, v11, 3, v31
    v_add_u32 v30, s63, v31
    v_xor_b32 v31, 32, v30
    v_mul_u32_u24 v6, {4*TPAD}, v2
    v_lshl_add_u32 v6, v3, 4, v6
    s_lshl_b32 s44, {WAVE}, 8
    s_add_u32 s44, s44, {TBASE}
    v_add_u32 v6, s44, v6              ; T write
    s_mul_i32 s44, {WAVE}, {4*TPAD}
    s_add_u32 s44, s44, {TBASE}
    v_add_u32 v7, s44, v4              ; T read
    s_lshl_b32 s44, s60, 2
    v_lshrrev_b32 v12, 3, v3
    v_and_b32 v13, 7, v3
    v_lshlrev_b32 v13, 4, v13
    v_lshl_add_u32 v13, v2, 8, v13
    s_lshl_b32 s45, {WAVE}, 12
    s_add_u32 s62, s45, {WP}
    v_mov_b32 v19, s61""")
    for pp in range(2):
        k(f"""v_add_u32 v14, s44, v12            ; octet
        v_mul_u32_u24 v15, 373, v14
        v_lshrrev_b32 v15, 12, v15
        v_add_u32 v14, v14, v15            ; q
        v_mul_u32_u24 v15, 171, v14
        v_lshrrev_b32 v15, 9, v15
        v_mul_u32_u24 v15, 3, v15          ; q - q%3
        v_sub_u32 v16, v14, v15            ; n
        v_cmp_eq_u32 vcc, 2, v16
        v_add_u32 v15, s61, v15
        s_add_u32 s44, s44, 2
        v_cndmask_b32 v15, v15, v14, vcc   ; tile
        v_cndmask_b32 v16, v16, v19, vcc
        v_mul_u32_u24 v15, {WPS}, v15
        v_add_u32 v{8+pp}, v15, v13
        v_lshl_add_u32 v{8+pp}, v16, 7, v{8+pp}""")
    tl = p2_tables(k)
    stamp(k, 2, 'z')
    for dl in range(4):
        k(f's_waitcnt vmcnt({k.nvm - pos[2*dl+1]})')
        if dl == 0: stamp(k, 1)
        for pi in range(2):
            for h in range(2): k(f'ds_read_b64_tr_b16 {V(OP+8*dl+4*pi+2*h,2)}, v{30+pi} offset:{2048*dl+1024*h}')
    stamp(k, 3, 'z')
    k.sprinkle = tl; k.every = OPT.get('tev', 28); k.since = 100
    for dl in range(4):
        for pi in range(2):
            for c in range(2):
                k(f'v_mfma_f32_16x16x32_bf16 {V(DA+32*pi+16*c+4*dl,4)}, {A(FA+4*c,4)}, {V(OP+8*dl+4*pi,4)}, 0')
    for pi in range(2):
        for r in range(4):
            u = OP + 16*pi + 4*r
            for c in range(2):
                for h in range(2):
                    d = DA + 32*pi + 16*c + 8*h + r
                    k(f'v_cvt_pk_bf16_f32 v{u+2*c+h}, v{d}, v{d+4}')
            k(f'ds_write_b128 v6, {V(u,4)} offset:{16*TPAD*pi+TPAD*r}')
    flush(k)
    stamp(k, 4, 'z')
    k.wait(lg=0); k('s_barrier')
    stamp(k, 5, 'z')
    for pi in range(2):
        for q in range(4): k(f'ds_read_b128 {V(OP+16*pi+4*q,4)}, v7 offset:{16*TPAD*pi+TPAD*q}')
    go_load(k, 250)
    for pi in range(2):
        for q in range(4):
            for o in range(2):
                k(f'v_mfma_f32_16x16x32_bf16 {V(DA+32*pi+8*q+4*o,4)}, {A(GB+8*q+4*o,4)}, {V(OP+16*pi+4*q,4)}, 0')
    for pi in range(2):
        for p in range(2):
            for o in range(2):
                u = OP + 16*pi + 8*p + 4*o
                for hq in range(2):
                    for h in range(2):
                        d = DA + 32*pi + 8*(2*p+hq) + 4*o + 2*h
                        k(f'v_cvt_pk_bf16_f32 v{u+2*hq+h}, v{d}, v{d+1}')
                k(f'buffer_store_dwordx4 {V(u,4)}, v{8+pi}, {WSR}, s62 offen offset:{(2*p+o)*1024}{ST}')
    stamp(k, 2); stamp(k, 6, 'z')

def wt_rows(k, task, dst):
    k(f"""s_bfe_u32 s44, {task}, 0x30002
    s_lshl_b32 s44, s44, 3
    s_lshr_b32 s45, {task}, 5
    s_lshl_b32 s45, s45, 8
    s_add_u32 s44, s44, s45
    s_mul_i32 s{dst}, s44, 514
    s_and_b32 s45, {task}, 3
    s_lshl_b32 s45, s45, 7
    s_add_u32 s{dst}, s{dst}, s45
    s_add_u32 s{dst}, s{dst}, 2
    v_lshrrev_b32 v12, 3, v1
    v_and_b32 v13, 7, v1
    v_mul_u32_u24 v11, 514, v12
    v_lshl_add_u32 v11, v13, 4, v11
    s_mov_b32 s30, {2048*257*2}
    s_mov_b32 s31, 0x20000
    s_mov_b32 s34, {2048*257*2}
    s_mov_b32 s35, 0x20000""")
def wt_dest(k, task, dst):
    k(f"""s_lshl_b32 s{dst}, {task}, 13
    s_add_u32 s{dst}, s{dst}, {WT}
    s_mov_b32 s53, 0x05040100
    s_mov_b32 s54, 0x07060302
    v_mov_b32 v11, v4
    v_xor_b32 v12, v12, v13
    v_lshlrev_b32 v12, 4, v12
    v_lshl_add_u32 v12, v13, 10, v12""")
WSRDS = 's_mov_b32 s28, s6\n s_and_b32 s29, s7, 0xffff\n s_mov_b32 s32, s8\n s_and_b32 s33, s9, 0xffff'
def p1_t(k):
    WL, WO = 32, 64
    k(f's_sub_u32 s48, s2, {NC0}\n s_lshl_b32 s48, s48, 2\n s_add_u32 s48, s48, {WAVE}')
    wt_rows(k, 's48', 49)
    for r in range(1, 4): k(f's_add_u32 s{49+r}, s49, {64*r*514}')
    k.wait(lg=0)
    k(WSRDS)
    for r in range(4):
        k(f'buffer_load_dwordx4 {V(WL+8*r,4)}, v11, {RA}, s{49+r} offen{OPT.get("ntw", "")}')
        k(f'buffer_load_dwordx4 {V(WL+8*r+4,4)}, v11, {RB}, s{49+r} offen{OPT.get("ntw", "")}')
    srd(k, 24, 22, WS_USED)
    wt_dest(k, 's48', 56)
    k(f's_lshl_b32 s44, {WAVE}, 13\n v_add_u32 v12, s44, v12\n v_add_u32 v14, s44, v4')
    for n in range(1, 8): k(f's_add_u32 s{56+n}, s56, {1024*n}\n v_xor_b32 v{14+n}, {16*n}, v14')
    tl = p2_tables(k)
    for i in range(8):
        o = WO + 4*i
        for r in range(4): k(f'v_perm_b32 v{o+r}, v{WL+8*r+4+(i>>1)}, v{WL+8*r+(i>>1)}, s{53+(i&1)}')
        k(f'ds_write_b128 v12, {V(o,4)} offset:{128*i}')
        for t in tl[2*i:2*i+2]: k(t)
    stamp(k, 1)
    for n in range(8): k(f'ds_read_b128 {V(WL+4*n,4)}, v{14+n} offset:{1024*n}')
    go_load(k, 250)
    for n in range(8): k(f'buffer_store_dwordx4 {V(WL+4*n,4)}, v11, {WSR}, s{56+n} offen{ST}')
    stamp(k, 2)

def p1_i(k):
    k.wait(lg=0)
    srd(k, 24, 22, WS_USED)
    k(f"""s_lshl_b32 s44, s2, 2
    s_add_u32 s44, s44, {WAVE}
    s_cmp_lg_u32 s44, {255*4}
    s_cbranch_scc1 L_noinit
    v_lshlrev_b32 v30, 8, v1
    v_lshlrev_b32 v31, 8, v3
    v_mov_b32 v32, 0
    s_mov_b32 s44, {FLG}
    s_mov_b32 s45, {FLG+16384}
    buffer_store_dword v32, v30, {WSR}, s44 offen{ST}
    v_lshlrev_b32 v33, 7, v1
    buffer_store_dword v32, v33, {WSR}, s45 offen{ST}
    s_add_u32 s45, s45, 8192
    buffer_store_dword v32, v33, {WSR}, s45 offen{ST}
    buffer_store_dword v32, v31, {WSR}, 0 offen{ST}
    v_mov_b32 v33, 1
    s_waitcnt vmcnt(0)
    s_mov_b64 exec, 1
    global_store_dword v32, v33, s[20:21]{ST}
    s_mov_b64 exec, -1""")
    k.label('L_noinit')
    k(f"""s_sub_u32 s60, s2, {NI0}
    s_lshl_b32 s61, s60, 1
    s_lshr_b32 s44, {WAVE}, 1
    s_add_u32 s61, s61, s44            ; t
    s_and_b32 s62, {WAVE}, 1
    s_lshl_b32 s62, s62, 2             ; p
    s_add_u32 s63, s62, 4
    s_lshl_b32 s44, s61, 5
    s_add_u32 s44, s44, 1
    v_lshl_add_u32 v30, v3, 1, s44     ; 2d+1
    v_and_b32 v31, 1, v2
    v_lshlrev_b32 v31, 7, v31
    v_cmp_lt_u32 s[64:65], 1, v2
    v_mov_b32 v36, {fbits(1/16)}
    s_mul_i32 s61, s61, {12*WPS}
    s_add_u32 s61, s61, {WP+11*WPS}""")
    for t in p2_tables(k): k(t)
    stamp(k, 1)
    k.fence(); k.label('L_inv')
    k(f"""s_lshl_b32 s44, s62, 1
    s_sub_u32 s45, 32, s44
    s_cmp_eq_u32 s44, 0
    s_cselect_b32 s45, 16, s45
    v_mov_b32 v33, s44
    v_mov_b32 v34, s45
    v_cndmask_b32 v33, v33, v34, s[64:65]
    v_add_u32 v33, v33, v31
    s_add_u32 s44, s44, 1
    s_sub_u32 s45, 32, s44
    v_mov_b32 v34, s44
    v_mov_b32 v35, s45
    v_cndmask_b32 v34, v34, v35, s[64:65]
    v_add_u32 v34, v34, v31
    v_cmp_eq_u32 vcc, 0, v33
    v_mov_b32 v35, 0x100
    v_mov_b32 v37, {fbits(1/math.sqrt(512))}
    v_cndmask_b32 v35, v33, v35, vcc
    v_cndmask_b32 v37, v36, v37, vcc
    s_lshl_b32 s45, s62, 11
    s_add_u32 s66, s61, s45""")
    for e in range(8):
        src = 'v35' if e == 0 else None
        if e: k(f'v_add_u32 v{40+e}, {32*(e&3)}, v{33+(e>>2)}')
        k(f'v_mul_u32_u24 v{40+e}, {src or V(40+e)}, v30')
        k(f'v_and_b32 v{40+e}, 0x3ff, v{40+e}')
        k(f'v_cvt_f32_u32 v{40+e}, v{40+e}')
        k(f'v_mul_f32 v{40+e}, {fbits(1/1024)}, v{40+e}')
    for e in range(8):
        k(f'v_cos_f32 v{48+e}, v{40+e}\n v_sin_f32 v{56+e}, v{40+e}')
    for e in range(8):
        sc = 'v37' if e == 0 else 'v36'
        k(f'v_mul_f32 v{48+e}, {sc}, v{48+e}\n v_mul_f32 v{56+e}, {sc}, -v{56+e}')
    for part in range(2):
        for h in range(4): k(f'v_cvt_pk_bf16_f32 v{64+4*part+h}, v{48+8*part+2*h}, v{48+8*part+2*h+1}')
        k(f'buffer_store_dwordx4 {V(64+4*part,4)}, v4, {WSR}, s66 offen offset:{1024*part}{ST}')
    k('s_add_u32 s62, s62, 1\n s_cmp_lt_u32 s62, s63\n s_cbranch_scc1 L_inv')
    go_load(k, 250)
    stamp(k, 2)

WDL = 40
def wd_issue(k):
    srd(k, 36, 16, F*D*2)
    k(f"""s_lshl_b32 s44, {WAVE}, 7
    s_add_u32 s44, s44, s2
    s_sub_u32 s73, s44, 128
    s_cmp_lt_u32 s2, {NZ}
    s_cselect_b32 s73, s73, 352
    s_min_u32 s73, s73, 352
    s_lshr_b32 s44, s73, 1
    s_lshl_b32 s44, s44, 13
    s_and_b32 s45, s73, 1
    s_lshl_b32 s45, s45, 9
    s_add_u32 s44, s44, s45
    s_add_u32 s45, s44, 4096
    v_lshlrev_b32 v20, 3, v1""")
    for e in range(8): k(f'buffer_load_dwordx2 {V(WDL+2*e,2)}, v20, {RC}, s{44+(e>>2)} offen offset:{1024*(e&3)}{OPT.get("ntd", "")}')
def wd_finish(k, inp2=False):
    if not inp2:
        k(f's_cmp_ge_u32 s73, 352\n s_cbranch_scc1 L_nowd')
        st = k.state()
    k(f"""s_lshr_b32 s44, s73, 4
    s_bfe_u32 s45, s73, 0x20002
    s_lshl_b32 s44, s44, 11
    s_mul_i32 s45, s45, {WDS}
    s_add_u32 s44, s44, s45
    s_and_b32 s45, s73, 1
    s_mul_i32 s45, s45, {16*WDS}
    s_add_u32 s44, s44, s45
    s_bfe_u32 s45, s73, 0x10001
    s_lshl_b32 s45, s45, 9
    s_add_u32 s44, s44, s45
    s_add_u32 s44, s44, {WD}
    s_cmp_lt_u32 s73, 352
    s_cselect_b32 s44, s44, {WS_USED}
    s_mov_b32 s46, 0x05040100
    s_mov_b32 s47, 0x07060302
    v_mul_u32_u24 v30, {4*WDS}, v2
    v_bfe_u32 v31, v1, 3, 1
    v_lshl_add_u32 v30, v31, 10, v30
    v_and_b32 v31, 7, v1
    v_lshl_add_u32 v30, v31, 4, v30""")
    for pi in range(4):
        o = WDL + 16 + 4*(pi & 1)
        for h in range(4): k(f'v_perm_b32 v{o+h}, v{WDL+4*h+2+(pi>>1)}, v{WDL+4*h+(pi>>1)}, s{46+(pi&1)}')
        k(f'buffer_store_dwordx4 {V(o,4)}, v30, {WSR}, s44 offen offset:{128*pi}{ST}')
    if not inp2:
        k.fence()
        k.restore(st); k.label('L_nowd')

STATL = 131072
def p4_ids(k):
    k(f"""s_and_b32 s44, s2, 7
    s_lshl_b32 s44, s44, 2
    s_bfe_u32 s46, s2, 0x20003
    s_add_u32 s44, s44, s46
    s_lshr_b32 s45, s2, 5""")

def setup(k):
    if OPT.get('x216'):
        k(f"""s_and_b32 s44, s2, 7
        s_lshl_b32 s44, s44, 1
        s_bfe_u32 s45, s2, 0x10003
        s_add_u32 s48, s44, s45
        s_lshr_b32 s49, s2, 4
        s_lshl_b32 s45, s45, 2
        s_mov_b32 s46, s49""")
    elif OPT.get('x48'):
        k(f"""s_and_b32 s44, s2, 3
        s_lshl_b32 s44, s44, 2
        s_bfe_u32 s45, s2, 0x20003
        s_add_u32 s48, s44, s45
        s_and_b32 s44, s2, 4
        s_lshl_b32 s44, s44, 1
        s_lshr_b32 s46, s2, 5
        s_add_u32 s49, s44, s46
        s_lshl_b32 s45, s45, 1""")
    else:
        k(f"""s_and_b32 s44, s2, 1
        s_lshl_b32 s44, s44, 3
        s_bfe_u32 s45, s2, 0x30003
        s_add_u32 s48, s44, s45
        s_bfe_u32 s44, s2, 0x20001
        s_lshl_b32 s44, s44, 2
        s_lshr_b32 s46, s2, 6
        s_add_u32 s49, s44, s46
        s_lshl_b32 s46, s46, 1""")
    k(f"""s_mov_b32 s53, 0
    s_lshl_b32 s46, s48, 11
    s_lshl_b32 s47, s49, 7
    s_add_u32 s41, s46, s47
    s_add_u32 s41, s41, {RBF}
    v_mov_b32 v250, 0""")
    stamp(k, 7, 'z')
    k(f"""s_and_b32 s74, s2, 7
    s_lshl_b32 s74, s74, 8
    s_add_u32 s75, s74, {FLG}
    s_and_b32 s44, s2, 1
    s_mul_i32 s44, s44, 44
    s_bfe_u32 s45, s2, 0x20001
    s_mul_i32 s45, s45, 11
    s_add_u32 s44, s44, s45
    s_bfe_u32 s45, s2, 0x40003
    s_add_u32 s44, s44, s45
    s_sub_u32 s45, s2, {NI0-88}
    s_cmp_ge_u32 s2, {NI0}
    s_cselect_b32 s44, s45, s44
    s_cselect_b32 s46, 0, s2
    s_lshl_b32 s44, s44, 7
    s_add_u32 s71, s44, {FLG+16384}
    s_cmp_lt_u32 s2, {NZ}
    s_cselect_b32 s71, 0, s71
    s_cmp_ge_u32 s46, {NC0}
    s_cselect_b32 s71, 0, s71
    v_mov_b32 v251, 1
    s_mov_b32 s63, 0x80008000""")
    wd_issue(k)
    if OPT.get('searly'): setup_late(k)

def setup_late(k):
    k(f"""s_mul_i32 s44, s49, 11
    s_add_u32 s45, s44, 10
    s_lshr_b32 s44, s44, 2
    s_lshr_b32 s45, s45, 2
    v_and_b32 v23, 3, v1
    v_add_u32 v23, s44, v23
    v_min_u32 v23, s45, v23
    v_bfe_u32 v240, v1, 2, 1
    v_mul_u32_u24 v240, 44, v240
    v_add_u32 v23, v23, v240
    s_lshr_b32 s44, s49, 1
    s_add_u32 s44, s44, 88
    v_mov_b32 v240, s44
    v_cmp_gt_u32 vcc, 8, v1
    v_cndmask_b32 v23, v240, v23, vcc
    v_lshlrev_b32 v23, 7, v23
    v_add_u32 v23, {FLG+16384}, v23""")
    k(f"""s_lshl_b32 s44, {WAVE}, 4
    v_add_u32 v240, s44, v3
    v_cvt_f32_u32 v240, v240
    v_mul_f32 v240, {fbits(1/2048)}, v240
    v_lshlrev_b32 v241, 2, v2
    v_add_u32 v242, s44, v241
    v_cvt_f32_u32 v241, v241
    v_cvt_f32_u32 v242, v242
    v_cvt_f32_u32 v243, v3
    v_mul_f32 v243, {fbits(1/2048)}, v243""")
    for be in range(2):
        for r in range(4):
            t = TW1 + 8*be + r
            k(f'v_add_f32 v{t}, {fbits(16*be+r)}, v241\n v_mul_f32 v{t}, v{t}, v240')
            k(f'v_sin_f32 v{t+4}, v{t}\n v_cos_f32 v{t}, v{t}')
    for be in range(2):
        if be: k(f'v_add_f32 v243, {fbits(16/2048)}, v243')
        for r in range(4):
            t = TW2 + 8*be + r
            k(f'v_add_f32 v{t}, {fbits(r)}, v242\n v_mul_f32 v{t}, v{t}, v243')
            k(f'v_sin_f32 v{t+4}, v{t}\n v_cos_f32 v{t}, v{t}')
    for u in range(4):
        k(f's_add_u32 s45, {WAVE}, {u}\n s_and_b32 s45, s45, 3\n s_lshl_b32 s45, s45, 11\n v_add_u32 v{16+u}, s45, v4')
    k(f"""s_and_b32 s58, s2, 0xf6
    s_bfe_u32 s45, s2, 0x10003
    s_add_u32 s58, s58, s45
    s_and_b32 s45, s2, 1
    s_lshl_b32 s45, s45, 3
    s_add_u32 s58, s58, s45
    s_lshl_b32 s44, s58, 6
    s_lshl_b32 s45, {WAVE}, 19
    s_add_u32 s44, s44, s45
    s_add_u32 s55, s44, {ZT}
    s_add_u32 s56, s55, 0x10000
    s_lshr_b32 s44, s58, 4
    s_sub_u32 s45, 32, s44
    s_cmp_eq_u32 s44, 0
    s_cselect_b32 s45, 16, s45
    s_bitcmp1_b32 s58, 3
    s_cselect_b32 s44, s45, s44
    s_and_b32 s45, s58, 7
    s_lshl_b32 s45, s45, 5
    s_add_u32 s44, s44, s45
    s_sub_u32 s44, s44, 1
    s_and_b32 s44, s44, 255
    s_lshl_b32 s44, s44, 7
    s_lshl_b32 s45, {WAVE}, 16
    s_add_u32 s44, s44, s45
    s_add_u32 s59, s44, {WT}
    s_add_u32 s60, s59, 0x100000
    v_and_b32 v15, 7, v1
    v_lshlrev_b32 v15, 4, v15
    v_bfe_u32 v14, v1, 3, 1
    v_lshl_add_u32 v15, v14, 15, v15
    v_lshl_add_u32 v15, v2, 18, v15
    s_lshl_b32 s45, {WAVE}, 12
    s_add_u32 s61, s45, {SM}
    v_lshrrev_b32 v21, 2, v3
    v_lshlrev_b32 v21, 7, v21
    v_lshl_add_u32 v21, v2, 10, v21
    v_and_b32 v22, 3, v1
    v_lshlrev_b32 v14, 4, v22
    v_lshl_add_u32 v14, v21, 7, v14
    v_lshl_add_u32 v22, v22, 4, v21
    s_mov_b32 s63, 0x80008000""")

def setup2(k):
    k(f"""v_lshrrev_b32 v20, 2, v1
    v_lshlrev_b32 v20, 15, v20
    v_and_b32 v24, 3, v1
    v_lshl_add_u32 v20, v24, 4, v20
    s_lshr_b32 s44, s58, 5
    s_lshl_b32 s44, s44, 6
    s_and_b32 s45, s58, 31
    s_add_u32 s44, s44, s45
    s_lshl_b32 s44, s44, 6
    s_lshl_b32 s45, {WAVE}, 19
    s_add_u32 s44, s44, s45
    s_add_u32 s62, s44, {HT}
    s_mul_i32 s44, s49, 11
    s_mul_i32 s45, {WAVE}, 3
    s_add_u32 s50, s44, s45
    s_add_u32 s44, s50, s49
    s_mul_i32 s44, s44, {WPS}
    s_add_u32 s44, s44, {WP}
    v_add_u32 v248, s44, v4
    v_add_u32 v249, {WPS}, v248
    v_add_u32 v255, {2*WPS}, v248
    s_and_b32 s46, {WAVE}, 1
    s_lshr_b32 s47, {WAVE}, 1
    s_lshl_b32 s45, s46, 15
    s_lshl_b32 s54, s47, 12
    s_add_u32 m0, s54, s45
    s_lshl_b32 s44, s48, 17
    s_add_u32 s44, s44, {HT}
    v_and_b32 v6, 1, v2
    v_lshlrev_b32 v6, 5, v6
    v_xor_b32 v5, v6, v4
    v_add_u32 v5, s44, v5
    v_lshrrev_b32 v7, 2, v1
    v_lshl_add_u32 v6, v7, 6, v6
    v_lshl_add_u32 v6, v24, 3, v6
    s_lshl_b32 s44, s47, 5
    s_add_u32 s44, s44, s45
    v_xor_b32 v6, s44, v6
    v_xor_b32 v7, 32, v6
    v_lshrrev_b32 v9, 2, v3
    v_cmp_eq_u32 vcc, v9, v2
    s_lshl_b32 s47, s47, 8
    s_lshl_b32 s44, s46, 9
    s_add_u32 s44, s44, s47
    s_add_u32 s44, s44, {STATL}
    v_lshl_add_u32 v10, v3, 4, s44     ; statistics reads
    v_xor_b32 v8, 0x100, v10
    v_add_u32 v9, {STATL+2048}, v4
    v_cndmask_b32 v9, v9, v10, vcc     ; statistics write (other lanes go to a dummy area)
    v_lshrrev_b32 v24, 1, v2
    v_lshlrev_b32 v11, 8, v24
    v_xor_b32 v11, v11, v10            ; statistics for the mixed tile
    s_mov_b32 s64, 0x22222222
    s_mov_b32 s65, s64
    s_mov_b32 s66, 0x44444444
    s_mov_b32 s67, s66
    s_mov_b32 s68, 0x88888888
    s_mov_b32 s69, s68
    v_add_u32 v25, s50, v24
    v_lshrrev_b32 v12, 1, v25
    v_mul_u32_u24 v12, {HFS}, v12
    v_and_b32 v25, 1, v25
    v_lshl_add_u32 v12, v25, 9, v12
    v_and_b32 v25, 0x1f0, v4
    v_xor_b32 v25, s47, v25
    v_add_u32 v12, v25, v12
    s_add_u32 s44, s50, 2
    s_lshr_b32 s45, s44, 1
    s_mul_i32 s45, s45, {HFS}
    s_and_b32 s44, s44, 1
    s_lshl_b32 s44, s44, 9
    s_add_u32 s44, s44, s45
    v_lshlrev_b32 v13, 8, v24
    v_xor_b32 v13, s47, v13
    v_add_u32 v13, s44, v13
    v_lshl_add_u32 v13, v3, 4, v13
    v_and_b32 v25, 1, v2
    v_xor_b32 v25, 1, v25
    v_lshlrev_b32 v25, 10, v25
    s_lshl_b32 s44, s46, 1
    s_sub_u32 s44, 1, s44
    v_mul_i32_i24 v25, s44, v25
    v_sub_u32 v13, v13, v25""")
    wsrd(k, 32, HF+86*HFS)
    if OPT.get('wtouch'):
        k(f"""s_and_b32 s44, s48, 7
        s_lshl_b32 s44, s44, 11
        v_sub_u32 v14, v248, v4
        v_lshl_add_u32 v14, v2, 14, v14
        v_lshl_add_u32 v14, v3, 7, v14
        v_add_u32 v14, s44, v14
        v_cmp_gt_u32 vcc, 3, v2
        v_cndmask_b32 v14, -1, v14, vcc""")

def p2_negs(k, base):
    for u in range(4):
        for h in range(2): k(f'v_xor_b32 v{base+6*u+h}, s63, v{base+6*u+4+h}')

def wd_reg(u, i): return A(192+8*u+4*i, 4) if u < 8 else V(144+8*(u-8)+4*i, 4)
def wd_loads(u):
    o = [f'buffer_load_dwordx4 {wd_reg(u+s,i)}, v15, {WSR}, s51 offen offset:{2048*s+1024*i}{LD}' for s in range(2) for i in range(2)]
    return o + ['s_add_u32 s51, s51, 4096']
def wloads(R=RA):
    return [f'buffer_load_dwordx4 {A(12*ka+4*t,4)}, v{(248, 249, 255)[t]}, {R}, {("0", "s70", "s71", "s72")[ka>>2]} offen offset:{1024*(ka&3)}{LD}' for ka in range(16) for t in range(3)]

def p2(k):
    Z, WW, SG, DD, TT, PK = 32, 64, 80, 88, 104, 240
    for u in range(1 if not OPT.get('zall') else 4):
        for be in range(2): k(f'buffer_load_dwordx4 {V(Z+8*u+4*be,4)}, v14, {WSR}, s{55+be} offen{LD}')
    lds_ = f"""buffer_load_dwordx4 {V(WW+4,4)}, v15, {WSR}, s59 offen{LD}
    buffer_load_dwordx4 {V(WW+12,4)}, v15, {WSR}, s60 offen{LD}
    buffer_load_dwordx4 {V(SG,4)}, v22, {WSR}, s61 offen{LD}
    buffer_load_dwordx4 {V(SG+4,4)}, v22, {WSR}, s61 offen offset:512{LD}""".split('\n')
    lds_.insert(OPT.get('fpos', 2), f'buffer_load_dword v26, v23, {WSR}, 0 offen{LD}')
    if OPT.get('wnow'):
        for t in lds_: k(t)
    else:
        k.sprinkle = [t.strip() for t in lds_]; k.every = 60; k.since = 0
    setup2(k); flush(k)
    if not OPT.get('wdshadow'): wd_finish(k, True)
    k(f"""s_mov_b32 s28, s24
    s_mov_b32 s29, s25
    s_mov_b32 s31, 0x20000
    s_mov_b32 s36, s24
    s_mov_b32 s37, s25
    s_mov_b32 s39, 0x20000
    s_mov_b32 s70, 4096
    s_mov_b32 s71, 8192
    s_mov_b32 s72, 12288""")
    def check1():
        k(f'v_cmp_ne_u32 vcc, 1, v26\n s_cmp_eq_u64 vcc, 0\n s_cselect_b32 s30, {WS_USED}, 0')
        k(f'buffer_load_dword v27, v23, {WSR}, 0 offen{LD}')
        if OPT.get('wtouch'): k(f'buffer_load_dword v25, v14, {RA}, 0 offen{LD}')
        k.sprinkle = wloads(); k.every = OPT.get('every', 64); k.since = 100; k.lazy = OPT.get('lazy', 1)
    def unpack():
        for t in range(2):
            for r in range(4):
                k(f'v_lshlrev_b32 v{WW+8*t+r}, 16, v{WW+8*t+4+r}\n v_and_b32 v{WW+8*t+4+r}, 0xffff0000, v{WW+8*t+4+r}')
    if not OPT.get('zall'):
        for be in range(2): k(f'ds_write_b128 v16, {V(Z+4*be,4)} offset:{8192+1024*be}')
    for u in range(4):
        for be in range(2):
            for o in range(2):
                d = V(DD+8*be+4*o, 4)
                k(f'v_mfma_f32_16x16x32_f16 {d}, {V(Z+8*u+4*be,4)}, {V(B1+6*u+2-2*o,4)}, {"0" if u==0 else d}')
        if u == 0:
            stamp(k, 5); stamp(k, 2, 'b')
            if not OPT.get('zall'):
                k.wait(lg=0); k('s_barrier')
                for v in range(1, 4):
                    for be in range(2): k(f'ds_read_b128 {V(Z+8*v+4*be,4)}, v{16+v} offset:{8192+1024*be}')
                if OPT.get('c1') == 0: check1()
    if OPT.get('c1') == 1: check1()
    E = Z + 8
    for be in range(2):
        cmul(k, DD+8*be, DD+8*be+4, TW1+8*be, TW1+8*be+4, TT, TT+4, True)
        for h in range(4): k(f'v_cvt_pk_f16_f32 v{PK+4*be+h}, v{TT+2*h}, v{TT+2*h+1}')
        for t in range(2):
            for o in range(2):
                d = V(E+8*t+4*o, 4)
                k(f'v_mfma_f32_16x16x32_f16 {d}, {V(A2+6*(2*t+be)+2-2*o,4)}, {V(PK+4*be,4)}, {"0" if be==0 else d}')
    def check2():
        global n1
        n1 = 48 - len(k.sprinkle); k.sprinkle = []
        k(f'v_cmp_ne_u32 vcc, 1, v27\n s_cmp_eq_u64 vcc, 0\n s_cselect_b32 s38, {WS_USED}, 0')
        if OPT.get('wtouch') == 2: k(f's_sub_u32 s44, {WS_USED}, s30\n s_cselect_b32 s44, 0, 0\n s_cmp_eq_u32 s30, 0\n s_cselect_b32 s44, 0, {WS_USED}\n buffer_load_dword v25, v14, {RC}, s44 offen{LD}')
        k.sprinkle = wloads(RC)[n1:]
    if OPT.get('c1') == 2: check1()
    unpack()
    stamp(k, 3, 'b')
    if OPT.get('c2', 0) == 0: check2()
    for t in range(2):
        cmul(k, E+8*t, E+8*t+4, WW+8*t, WW+8*t+4, TT, TT+4, False)
        for h in range(4): k(f'v_cvt_pk_bf16_f32 v{PK+4*t+h}, v{TT+2*h}, v{TT+2*h+1}')
        for be in range(2):
            for o in range(2):
                d = V(DD+8*be+4*o, 4)
                k(f'v_mfma_f32_16x16x32_bf16 {d}, {V(PK+4*t,4)}, {V(B3+6*(2*be+t)+2-2*o,4)}, {"0" if t==0 else d}')
    if OPT.get('c2', 0) == 1: check2()
    for be in range(2):
        cmul(k, DD+8*be, DD+8*be+4, TW2+8*be, TW2+8*be+4, TT, TT+4, False)
        for h in range(4): k(f'v_cvt_pk_bf16_f32 v{PK+4*be+h}, v{TT+2*h}, v{TT+2*h+1}')
        k(f'ds_write_b128 v16, {V(PK+4*be,4)} offset:{1024*be}')
    def step4(u, src):
        for be in range(2):
            for o in range(2):
                d = V(DD+8*be+4*o, 4)
                k(f'v_mfma_f32_16x16x32_bf16 {d}, {V(A4+6*u+2-2*o,4)}, {V(src+4*be,4)}, {d}')
    for o in range(2):
        for be in range(2):
            for r in range(4):
                d = DD+8*be+4*o+r; hi = r & 1
                k(f'v_fma_mix_f32 v{d}, v{SG+4*be+r}, v{Z+4*be+2*o+(r>>1)}, 0 op_sel:[0,{hi},0] op_sel_hi:[0,1,0]')
    stamp(k, 4, 'b')
    k.wait(lg=0); k('s_barrier')
    for u in range(1, 4):
        for be in range(2): k(f'ds_read_b128 {V(Z+8*u+4*be,4)}, v{16+u} offset:{1024*be}')
    step4(0, PK)
    for u in range(1, 4): step4(u, Z+8*u)
    OUT = 64
    rest, k.sprinkle = k.sprinkle, []
    for o in range(2):
        for be in range(2):
            for h in range(2): k(f'v_cvt_pk_bf16_f32 v{OUT+4*o+2*be+h}, v{DD+8*be+4*o+2*h}, v{DD+8*be+4*o+2*h+1}')
    k('s_cmp_lg_u32 s2, 0\n s_cbranch_scc1 L_p2_st')
    for h in range(4): k(f'v_mov_b32 v{OUT+4+h}, v{OUT+h}\n v_mov_b32 v{OUT+h}, 0')
    k.label('L_p2_st')
    for o in range(2): k(f'buffer_store_dwordx4 {V(OUT+4*o,4)}, v20, {WSR}, s62 offen offset:{2048*o}{ST}')
    stamp(k, 5, 'b')
    return rest

def barrier2(k, rest):
    print('weight loads left after phase 2:', len(rest))
    k(f's_lshl_b32 s44, s48, 12\n s_add_u32 s44, s44, {HF}')
    k(f's_and_b32 s46, {WAVE}, 1')
    for p in range(4): k(f's_xor_b32 s45, s46, {p}\n s_lshl_b32 s45, s45, 10\n s_add_u32 s{55+p}, s44, s45')
    k(f"""s_lshl_b32 s44, s49, 17
    s_lshl_b32 s45, s48, 11
    s_add_u32 s44, s44, s45
    s_add_u32 s59, s44, {HRES}
    s_add_u32 s60, s59, 0x10000
    s_lshl_b32 s44, s48, 10
    s_add_u32 s61, s44, {SM+64}
    s_mov_b32 s46, 0""")
    print('group 1:', n1)
    stamp(k, 6)
    nA = min(OPT.get('nA', 12), len(rest)); nB = min(OPT.get('nB', 48), len(rest) - nA)
    n2 = 48 - len(rest) + nA
    for t in rest[:nA]: k(t)
    rest = [t.replace(RC, WSR) for t in rest]
    stamp(k, 6, 'b')
    k(f'v_mov_b32 v250, 0\n v_mov_b32 v251, 1\n s_cmp_lg_u32 {WAVE}, 0\n s_cbranch_scc1 L_b2o')
    st = k.state()
    k(f's_mov_b64 exec, 1\n s_waitcnt vmcnt({nA})'); stamp(k, 7, 'b'); k('s_barrier'); stamp(k, 8, 'b')
    k(f'buffer_atomic_add v251, v250, {WSR}, s74 offen sc0 sc1')
    k('s_barrier')
    stamp(k, 9, 'b'); arrive_check(k, 250, 's75', 51, 2); stamp(k, 10, 'b')
    if OPT.get('hold'): k('s_barrier')
    k('s_mov_b64 exec, -1\n s_branch L_b2m')
    k.restore(st); k.label('L_b2o')
    k(f's_waitcnt vmcnt({nA})'); stamp(k, 7, 'b'); k('s_barrier'); stamp(k, 8, 'b')
    k('s_barrier')
    if OPT.get('hold'): k('s_barrier')
    stamp(k, 9, 'b'); stamp(k, 10, 'b')
    k.label('L_b2m')
    k(f's_cmp_lg_u32 s30, 0\n s_cbranch_scc1 L_bok')
    st = k.state()
    k(f's_cmp_lg_u32 s38, 0\n s_cbranch_scc1 L_bok2')
    k.label('L_bchk')
    k(f"""buffer_load_dword v26, v23, {WSR}, 0 offen{LD}
    s_add_u32 s46, s46, 1
    s_waitcnt vmcnt(0)
    v_cmp_ne_u32 vcc, 1, v26
    s_cmp_gt_u32 s46, {SPIN}
    s_cbranch_scc1 L_bgo
    s_cbranch_vccnz L_bchk""")
    k.label('L_bgo')
    for t in wloads(WSR)[n1:n2]: k(t)
    k.label('L_bok2')
    for t in wloads(WSR)[:n1]: k(t)
    k.restore(st)
    k.label('L_bok')
    for t in rest[nA:nA+nB]: k(t)
    if OPT.get('retouch'):
        def rt():
            k('s_lshr_b32 s44, s2, 3\n s_lshl_b32 s44, s44, 10\n v_lshl_add_u32 v252, v3, 6, s44')
            k.raw('    v_min_u32 v252, L_notz-L_b2x-4, v252\n    s_sub_u32 s44, s42, tables-L_b2x\n    s_subb_u32 s45, s43, 0'); k.pos += 3
            k('v_mov_b32 v253, s45\n v_add_co_u32 v252, vcc, s44, v252\n v_addc_co_u32 v253, vcc, 0, v253, vcc\n s_mov_b64 exec, 0xffff\n global_load_dword v254, v[252:253], off')
        only_wave(k, 2, rt)
    only_wave(k, 0, lambda: poll(k, 250, 2))
    global late_w
    late_w = rest[nA+nB:]
    def hw():
        k('v_bfe_u32 v16, v1, 2, 1\n v_lshlrev_b32 v16, 9, v16\n v_bfe_u32 v17, v1, 3, 1\n v_lshl_add_u32 v16, v17, 4, v16\n v_and_b32 v17, 3, v1\n v_lshl_add_u32 v16, v17, 2, v16')
        for j in range(8): k(f'buffer_load_dword v{MUV+j}, v16, {WSR}, s61 offen offset:{128*((j^3)>>1)+32*((j^3)&1)}{LD}')
    global hw_means, st3
    hw_means = hw
    k(f's_cmp_eq_u32 {WAVE}, 3\n s_cbranch_scc1 L_p3h')
    st3 = k.state()
    if OPT.get('isl'):
        k(f's_mov_b64 exec, 0\n s_cmp_eq_u32 {WAVE}, 1\n s_cbranch_scc1 L_isl0_0\n s_branch L_isl0_{OPT.get("islmid", 32)}')
        k.label('L_islret0'); k('s_mov_b64 exec, -1')
    k.label('L_b2x')

ACT, ACC, TM, STV, MUV = 32, 64, 128, 16, 24
def cost(t):
    m = t.split()[0]
    if m.startswith('buffer'): return 18 + 4 * t.count('\n')
    if m.startswith(('v_exp', 'v_rcp', 'v_rsq', 'v_permlane', 'ds_write')): return 8
    return 4 * (t.count('\n') + 1)

def p3_body(k, hw):
    acc = lambda p, n, m, par=0: ACC + 32*(p & 1) + 8*(n + (par if n == 2 and hw else 0)) + 4*m
    GR = 28 if not hw else TM + 12
    dma_pos = []
    def dma(j):
        return f'buffer_load_dwordx4 v5, {WSR}, m0 offen offset:{1024*(j&3)}{LD} lds'
    def m0step(j): return [f's_add_u32 m0, m0, {8192 + (32768 if j == 15 else 0)}'] if j & 3 == 3 and j < 31 else []
    def slot(g, m): return ACT + 8*(g & 3) + 4*m
    def reads(g):
        p, ka = divmod(g, 16); o = []
        if p and ka == 0:
            x = (p ^ (p-1)) << 15
            o = [f'v_xor_b32 v6, {x:#x}, v6', f'v_xor_b32 v7, {x:#x}, v7']
        return o + [f'ds_read_b64_tr_b16 {V(slot(g,m)+2*h,2)}, v{6+m} offset:{2048*ka+1024*h}' for m in range(2) for h in range(2)]
    def chains(p, J):
        if p == 3:
            P = J[::2]
            o = [f'v_pk_mul_f32 {V(t,2)}, {V(g,2)}, {V(g,2)}' for g, u, t, c in P]
            o += [f'v_pk_fma_f32 {V(t,2)}, {V(t,2)}, {V(c,2)}, {V(c,2)} op_sel:[0,1,0] op_sel_hi:[1,1,0]' for g, u, t, c in P]
            o += [f'v_pk_mul_f32 {V(t,2)}, {V(t,2)}, {V(g,2)}' for g, u, t, c in P]
            o += [f'v_exp_f32 v{t}, v{t}' for g, u, t, c in J]
            o += [f'v_pk_mul_f32 {V(g,2)}, {V(g,2)}, {V(u,2)}' for g, u, t, c in P]
            o += [f'v_pk_fma_f32 {V(t,2)}, {V(t,2)}, {V(c+2,2)}, {V(c+2,2)} op_sel_hi:[1,0,0]' for g, u, t, c in P]
            o += [f'v_rcp_f32 v{t}, v{t}' for g, u, t, c in J]
            o += [f'v_pk_mul_f32 {V(g,2)}, {V(g,2)}, {V(t,2)}' for g, u, t, c in P]
            return o
        o = [f'v_mul_f32 v{t}, v{g}, v{g}' for g, u, t, c in J]
        o += [f'v_mul_f32 v{u}, v{g}, v{u}' for g, u, t, c in J]
        o += [f'v_fma_f32 v{t}, v{t}, v{c+1}, v{c}' for g, u, t, c in J]
        o += [f'v_mul_f32 v{t}, v{t}, v{g}' for g, u, t, c in J]
        o += [f'v_exp_f32 v{t}, v{t}' for g, u, t, c in J]
        o += [f'v_fma_f32 v{t}, v{t}, v{c+2}, v{c+2}' for g, u, t, c in J]
        o += [f'v_rcp_f32 v{t}, v{t}' for g, u, t, c in J]
        o += [f'v_mul_f32 v{g}, v{u}, v{t}' for g, u, t, c in J]
        return o
    def epilogue(p):
        HA, HX = TM + 8, TM + 12
        J = [(acc(p, 0, m)+r, acc(p, 1, m)+r, TM+4*m+r, STV+4*m) for m in range(2) for r in range(4)]
        o = []
        if not hw: o += [f'v_permlane32_swap_b32 v{acc(p,2,0)+r}, v{acc(p,2,1)+r}' for r in range(4)]
        o += chains(p, J)
        o += [f'v_cvt_pk_bf16_f32 v{HA+2*m+h}, v{acc(p,0,m)+2*h}, v{acc(p,0,m)+2*h+1}' for h in range(2) for m in range(2)]
        tail = [f'v_permlane16_swap_b32 v{HA}, v{HA+2}', f'v_permlane16_swap_b32 v{HA+1}, v{HA+3}',
                f'buffer_store_dwordx4 {V(HA,4)}, v12, {RB}, s{55+p} offen{ST}']
        if not hw:
            x = chains(p, [(acc(p, 2, 0)+r, acc(p, 2, 1)+r, TM+r, STV+8) for r in range(4)])
            o += x[:2] + tail + x[2:]
            o += [f'v_cvt_pk_bf16_f32 v{HX+2*(p&1)+h}, v{acc(p,2,0)+2*h}, v{acc(p,2,0)+2*h+1}' for h in range(2)]
            if p & 1: o += [f'v_permlane16_swap_b32 v{HX}, v{HX+2}', f'v_permlane16_swap_b32 v{HX+1}, v{HX+3}',
                            f'buffer_store_dwordx4 {V(HX,4)}, v13, {RB}, s{55+p} offen{ST}']
        else:
            for m in range(2):
                e, od = acc(p, 2, m), acc(p, 2, m, 1); t = TM
                o += [f'v_add_f32 v{e+r}, v{e+r}, v{MUV+2*p+m}' for r in range(4)]
                if m == 0: o += tail
                for r in range(4): o += [f'v_add_f32 v{t+r}, v{e+r}, v{od+r}', f'v_sub_f32 v{t+4+r}, v{e+r}, v{od+r}']
                P0, P1 = acc(p, 2, 0), acc(p, 2, 0, 1)
                o += [f'v_cvt_pk_bf16_f32 v{P0+2*m}, v{t}, v{t+1}', f'v_cvt_pk_bf16_f32 v{P0+2*m+1}, v{t+2}, v{t+3}',
                      f'v_cvt_pk_bf16_f32 v{P1+2-2*m}, v{t+7}, v{t+6}', f'v_cvt_pk_bf16_f32 v{P1+3-2*m}, v{t+5}, v{t+4}']
            off = 512*(p ^ 1)
            o += [f'v_permlane16_swap_b32 v{P0}, v{P0+2}', f'v_permlane16_swap_b32 v{P0+1}, v{P0+3}',
                  f'buffer_store_dwordx4 {V(P0,4)}, v13, {WSR}, s59 offen offset:{off}{ST}',
                  f'v_permlane16_swap_b32 v{P1+2}, v{P1}', f'v_permlane16_swap_b32 v{P1+3}, v{P1+1}',
                  f'buffer_store_dwordx4 {V(P1,4)}, v14, {WSR}, s60 offen offset:{off}{ST}']
        return o
    def stats(p):
        K0 = -2*math.sqrt(2/math.pi)*math.log2(math.e); b = GR
        return [f'v_cndmask_b32 v{b}, v{b}, v{b+1}, s[64:65]', f'v_cndmask_b32 v{b}, v{b}, v{b+2}, s[66:67]', f'v_cndmask_b32 v{b}, v{b}, v{b+3}, s[68:69]',
                f'v_mov_b32 v{b+2}, {fbits(1e-5)}', f'v_fmac_f32 v{b+2}, {fbits(1/512)}, v{b}', f'v_rsq_f32 v{b+3}, v{b+2}',
                f'v_mul_f32 v{b}, {fbits(K0)}, v{b+3}', f'v_mul_f32 v{b+3}, v{b+3}, v{b+3}', f'v_mul_f32 v{b+1}, {fbits(0.044715)}, v{b}', f'v_mul_f32 v{b+1}, v{b+1}, v{b+3}',
                f'ds_write_b128 v9, {V(b,4)} offset:{512*p}']
    def getstats(p):
        R = [(10, STV), (8, STV+4)] + ([] if hw else [(11, STV+8)])
        o = [f'v_xor_b32 v{a}, 0x200, v{a}' for a, _ in R] if p else []
        return o + [f'ds_read_b128 {V(d,4)}, v{a} offset:{1024*(p>>1)}' for a, d in R]
    def issue_dma(j): k(dma(j)); dma_pos.append(k.nvm)
    if hw:
        hw_means()
        if OPT.get('isl'):
            k('s_mov_b64 exec, 0\n s_branch L_isl1_0'); k.label('L_islret1'); k('s_mov_b64 exec, -1')
    k('s_barrier')
    stamp(k, 7); stamp(k, 11, 'b')
    def island(g):
        G = OPT.get('isl')
        if not G or g % G: return
        mid = OPT.get('islmid', 32)
        k.label(f'L_isl{int(hw)}_{g}')
        k(f's_cbranch_execz L_isl{int(hw)}_{g+G}' if g + G < 64 and (hw or g + G != mid) else (f's_cbranch_execz L_islret{int(hw)}' if g + G >= 64 else f's_cbranch_execz L_islret0'))
    DP = OPT.get('dpre', 16)
    for j in range(DP):
        issue_dma(j)
        for t in m0step(j): k(t)
    if hw: k('v_and_b32 v13, 0x1f0, v4\n v_xor_b32 v13, 0x100, v13\n v_lshrrev_b32 v14, 5, v1\n v_lshl_add_u32 v13, v14, 15, v13\n v_xor_b32 v14, 0x8000, v13')
    p4_ids(k)
    k(f"""s_mov_b32 s51, 0
    s_lshl_b32 s45, s45, 2
    s_add_u32 s45, s45, {WAVE}
    s_mul_i32 s45, s45, {WDS}
    s_add_u32 s45, s45, {WD}
    v_add_u32 v15, s45, v4
    s_lshr_b32 s46, s44, 1
    s_lshl_b32 s45, s46, 11
    s_add_u32 s62, s45, {RBF}
    s_add_u32 s63, s62, 0x8000
    s_lshl_b32 s46, s46, 2
    s_and_b32 s44, s44, 1
    s_add_u32 s73, s46, s44
    s_lshl_b32 s46, s73, 10
    s_mul_i32 s47, {WAVE}, {HFS}
    s_add_u32 s46, s46, s47
    s_add_u32 s74, s46, {HF}
    s_mov_b32 s75, 0""")
    def landed(j): k(f's_waitcnt vmcnt({min(63, k.nvm - dma_pos[j])})'); k('s_barrier')
    landed(3)
    stamp(k, 8)
    rd_pos = {}
    def do_reads(g):
        for t in reads(g): k(t)
        rd_pos[g] = k.nlg
    do_reads(0); do_reads(1)
    NWD = OPT.get('wdin', 22)
    memq = [('dma', j) for j in range(DP, 16)]
    lw = list(late_w)
    memq += lw + [('dma', j) for j in range(16, 32)]
    after = []
    nfast = len(memq)
    wl = [t for u in range(0, NWD, 2) for t in wd_loads(u)]
    wdq = [wl[i] + ('\n' + wl[i+1] if i % 5 == 3 else '') for i in range(len(wl)) if i % 5 != 4]
    W1 = OPT.get('wdend', 57)
    st_pos = None
    wrate = min(1.0, len(wdq) / (W1 - nfast / OPT.get('mrate', 1)))
    eq = [hload(0, u, RC) for u in range(22)]
    ismem = lambda t: isinstance(t, tuple) or t.startswith(('ds_', 'buffer'))
    vcost = lambda t: 8 if t.startswith(('v_exp', 'v_rcp', 'v_rsq', 'v_permlane')) else 4 * (t.count('\n') + 1)
    hcost = lambda t: 4 if (t[0] == 'rd' if isinstance(t, tuple) else t.startswith('ds_read')) else 8
    salu = []
    def emit_mem(f):
        nonlocal stat_pos
        if isinstance(f, tuple):
            if f[0] == 'dma':
                while salu: k(salu.pop(0))
                issue_dma(f[1]); salu.extend(m0step(f[1]))
            else: k(f[1]); rd_pos[f[2]] = k.nlg
        else:
            t = f.split('\n')
            if t[0].startswith('buffer_load_dwordx4'):
                while salu: k(salu.pop(0))
            k(t[0]); salu.extend(x.strip() for x in t[1:])
            if f.startswith('ds_write'): stat_pos = k.nlg
    stat_pos = None
    k.wait(lg=k.nlg - rd_pos[0])
    for p in range(4):
        pre = stats(p-1) if p & 1 else []
        bg = (epilogue(p-1) + (getstats(p) if p & 1 else [])) if p else []
        nind = (16 if hw else 20) if p & 1 else 0
        SB = OPT.get('sb', 3)
        nbg = len(bg)
        k1 = OPT.get('e1end', 12) if p == 2 else 16
        tot = sum(vcost(t) for t in bg); done = 0
        val = []
        for ka in range(16):
            g = 16*p + ka
            if OPT.get('gst') and g in OPT['gst']: stamp(k, 1 + OPT['gst'].index(g), True)
            sync = None
            if p & 1 and ka == SB: sync = 'stat'
            if p == 0 and ka in (2, 6, 10): sync = ka + 5
            if p == 1 and ka == 13 and not OPT.get('mergeland'): sync = 31
            rds = []
            if g + 2 < 64:
                for t in reads(g + 2):
                    if t.startswith('ds_'): rds.append(('rd', t, g + 2))
            if g + 3 < 64 and (g + 3) % 16 == 0: late_x = [t for t in reads(g + 3) if not t.startswith('ds_')]
            else: late_x = []
            mem = []
            if memq:
                mr = OPT.get('mrate', 1); n = int((g + 1) * mr) - int(g * mr); n = OPT.get('mfirst', n) if len(dma_pos) < 16 else n; mem = memq[:n]; memq = memq[n:]
            elif wdq and not (p & 1 and ka == SB):
                left = W1 - g
                n = (len(wdq) + left - 1) // left if len(wdq) >= left else int((g + 1) * wrate) - int(g * wrate)
                mem = wdq[:n]; wdq = wdq[n:]
            if ka <= 1 and pre:
                n = 6 if ka == 0 else len(pre); val += pre[:n]; pre = pre[n:]
            o1 = 1 if p & 1 else 0
            budget = tot * (ka + 1 - o1) / (k1 - o1)
            if p & 1 and ka <= 1: budget = -1
            if p & 1 and ka == SB: rds = rds + [t for t in getstats(p-1) if t.startswith('ds_')]
            if p & 1 and ka == 1: val += [t for t in getstats(p-1) if not t.startswith('ds_')]
            while bg and (done + vcost(bg[0])/2 <= budget or ka == k1 - 1) and not (p & 1 and ka <= SB and nbg - len(bg) >= nind):
                done += vcost(bg[0]); val.append(bg.pop(0))
            if g == 48 + OPT.get('esamp', 8) - 1: val += ['v_lshlrev_b32 v5, 7, v3', 'v_add_u32 v3, s74, v4']
            if g == 48 + OPT.get('esamp', 8): mem = [f'buffer_load_dword v9, v5, {WSR}, s62 offen{LD}'] + mem
            if g == 48 + OPT.get('echk', 11): val += [f'v_cmp_ne_u32 vcc, 1, v9\n s_cmp_eq_u64 vcc, 0\n s_cselect_b32 s38, s34, 0']
            if g > 48 + OPT.get('echk', 11):
                er = OPT.get('erate', 1); mem = mem + eq[:er]; eq = eq[er:]
            mf = []
            for m in range(2):
                b_ = V(slot(g, m), 4)
                for n in range(3):
                    d = V(acc(p, n, m, ka & 1), 4)
                    first = ka == 0 or (n == 2 and ka == 1 and hw)
                    mf.append(f'v_mfma_f32_16x16x32_bf16 {d}, {A(12*ka+4*n,4)}, {b_}, {"0" if first else d}')
            mf = [mf[i] for i in (0, 3, 4, 1, 2, 5)]
            if p % 2 == 0: mf.insert(0, f'v_mfma_f32_16x16x32_bf16 {V(GR,4)}, {V(slot(g,0),4)}, {V(slot(g,0),4)}, {"0" if ka==0 else V(GR,4)}')
            heads = list(rds)
            for i, t in enumerate(mem): heads.insert(min(len(heads), 2 + 2*i + (1 if len(mem) == 1 else 0)), t)
            N = len(mf)
            ftot = sum(map(hcost, heads)) + sum(hcost(t) if ismem(t) else vcost(t) for t in val) + 4*len(late_x); fd = 0
            flush_val = ka == 15 or (p == 2 and ka == k1 - 1) or (p & 1 and ka == 1) or g - 48 in (OPT.get('esamp', 8) - 1, OPT.get('echk', 11))
            for i, t in enumerate(mf):
                k(t)
                last = i == N - 1
                if i == 0 and sync is not None:
                    if sync == 'stat':
                        assert not pre and not any(x.startswith('ds_write') for x in val)
                        k.wait(lg=k.nlg - stat_pos)
                        if p == 3 or OPT.get('mergeland'): k(f's_waitcnt vmcnt({min(63, k.nvm - (st_pos if p == 3 else dma_pos[31]))})')
                        k('s_barrier')
                        if p == 3 and hw: k(f'v_mov_b32 v{MUV}, 0\n v_mov_b32 v{MUV+1}, 1\n s_mov_b64 exec, 1\n buffer_store_dword v{MUV+1}, v{MUV}, {WSR}, s41 offen{ST}\n s_mov_b64 exec, -1')
                    else: landed(sync)
                if i == 1: island(g)
                nh = 0
                nxt = val[0] if val and ismem(val[0]) else (heads[0] if heads else None)
                if last and g + 1 < 64: k.wait(lg=k.nlg - rd_pos[g + 1])
                elif salu and (nxt is None or hcost(nxt) == 4) and not (i == 1 and OPT.get('isl')): k(salu.pop(0))
                while True:
                    if val and ismem(val[0]) and nh == 0: f = val.pop(0)
                    elif heads and (nh == 0 or len(heads) > N - 1 - i): f = heads.pop(0)
                    else: break
                    emit_mem(f); fd += hcost(f); nh += 1
                if last:
                    for x in late_x: k(x)
                while val and ((not ismem(val[0]) and fd + vcost(val[0])/2 <= ftot * (i+1) / N + 1e-6) or (last and flush_val)):
                    f = val.pop(0)
                    if ismem(f): emit_mem(f); fd += hcost(f)
                    else: k(f); fd += vcost(f)
            assert not heads
            if p == 2 and ka == k1 - 1: st_pos = k.nvm
        assert not bg and not val
        if p == 0: stamp(k, 9)
        if OPT.get('pst'): stamp(k, 1+p, True)
    while salu: k(salu.pop(0))
    assert not wdq
    stamp(k, 10)
    ep = epilogue(3); ne = OPT.get('eepi', 0); gap = 5
    for i, t in enumerate(ep):
        k(t)
        if i % gap == gap - 1 and ne > 0: k(eq.pop(0)); ne -= 1
    assert ne == 0
    if OPT.get('echk') > 15: k(f'v_cmp_ne_u32 vcc, 1, v9\n s_cmp_eq_u64 vcc, 0\n s_cselect_b32 s38, s34, 0')
    if OPT.get('pst'): stamp(k, 5, True)
    return 22 - len(eq)

def hload(hf, u, R):
    return f'buffer_load_dwordx4 {A(88*hf+4*u,4)}, v3, {R}, s75 offen offset:{2048*hf}{LD}\n ' + (f's_add_u32 s75, s75, {4*HFS}' if u < 21 else 's_mov_b32 s75, 0')

def redo(k, soff, hf, n, again=None, pre=None):
    uid[0] += 1; u = uid[0]
    k(f's_cmp_lg_u32 s38, 0\n s_cbranch_scc1 L_sd{u}')
    st = k.state()
    k('s_mov_b32 s46, 0')
    if pre: k(f'v_cmp_ne_u32 vcc, 1, v{pre}\n s_cbranch_vccz L_sg{u}')
    k.label(f'L_sp{u}')
    k(f"""buffer_load_dword v6, v5, {WSR}, {soff} offen{LD}
    s_add_u32 s46, s46, 1
    s_waitcnt vmcnt(0)
    v_cmp_ne_u32 vcc, 1, v6
    s_cmp_gt_u32 s46, {SPIN}
    s_cbranch_scc1 L_sg{u}
    s_cbranch_vccnz L_sp{u}""")
    k.label(f'L_sg{u}')
    k('s_mov_b32 s75, 0')
    for j in range(n): k(hload(hf, j, RB))
    if again: again()
    k.restore(st)
    k.vm = [set()] * 8 + [{('a', 88*hf+4*j+r) for r in range(4)} for j in range(n)]
    k.label(f'L_sd{u}')

def spin(k, reg, soff):
    uid[0] += 1; u = uid[0]
    k(f'v_cmp_ne_u32 vcc, 1, v{reg}\n s_mov_b32 s46, 0\n s_cbranch_vccz L_sd{u}')
    st = k.state()
    k.label(f'L_sp{u}')
    k(f"""buffer_load_dword v{reg}, v5, {WSR}, {soff} offen{LD}
    s_add_u32 s46, s46, 1
    s_waitcnt vmcnt(0)
    v_cmp_ne_u32 vcc, 1, v{reg}
    s_cmp_gt_u32 s46, {SPIN}
    s_cbranch_scc1 L_sd{u}
    s_cbranch_vccnz L_sp{u}""")
    k.restore(st)
    k.label(f'L_sd{u}')

QS, INS, PS = 1152, 4736, 9472
def p4(k, n0, nst):
    HR, RD, SUM = 32, 40, 128
    PRE = OPT.get('p4pre', 14)
    EP = OPT.get('epost', 6)
    k.vm = [{('a', 4*j+r) for r in range(4)} for j in range(n0)] + [set()] * nst
    if OPT.get('sbar'): k('s_barrier')
    el = [hload(0, j, RC) for j in range(n0, n0 + EP)]
    if not OPT.get('mix'):
        for t in el: k(t)
        el = []
    U0 = n0 if not OPT.get('nopre') else 0
    n0 += EP
    setup = f"""s_mov_b32 s28, s18
    s_and_b32 s29, s19, 0xffff
    s_mov_b32 s30, {S*D*2}
    s_lshr_b32 s65, s2, 5
    v_lshrrev_b32 v16, 3, v1
    v_bfe_u32 v17, v1, 1, 2
    s_lshl_b32 s46, s65, 2
    v_add_u32 v17, s46, v17            ; 16-column block
    v_sub_u32 v18, 31, v17
    v_min_u32 v18, v17, v18
    v_lshlrev_b32 v18, 17, v18
    v_lshrrev_b32 v17, 4, v17
    v_lshl_add_u32 v18, v17, 16, v18
    v_lshl_add_u32 v18, v16, 4, v18
    v_and_b32 v17, 1, v1
    v_lshl_add_u32 v8, v17, 15, v18    ; residual
    s_lshl_b32 s66, s73, 9
    s_lshl_b32 s46, {WAVE}, 7
    s_add_u32 s66, s66, s46
    s_add_u32 s66, s66, {HRES}
    v_mov_b32 v20, 0
    v_mov_b32 v21, 1
    s_add_u32 s41, s41, 0x8000
    s_lshr_b32 s46, s73, 2
    s_lshl_b32 s46, s46, 17
    s_and_b32 s44, s73, 3
    s_lshl_b32 s44, s44, 2
    s_add_u32 s44, s44, {WAVE}
    s_lshl_b32 s44, s44, 10
    s_add_u32 s67, s46, s44
    s_lshl_b32 s45, s65, 7
    s_add_u32 s67, s67, s45
    s_add_u32 s68, s67, 0x2000
    v_and_b32 v9, 7, v1
    v_lshlrev_b32 v9, 4, v9
    v_and_b32 v18, 3, v16
    v_lshl_add_u32 v9, v18, 15, v9
    v_lshrrev_b32 v18, 2, v16
    v_lshl_add_u32 v9, v18, 14, v9     ; output
    v_lshrrev_b32 v18, 5, v1
    v_lshl_add_u32 v10, v18, 6, v4
    s_mul_i32 s44, {WAVE}, {PS}
    v_add_u32 v10, s44, v10            ; partial sums, write
    v_bfe_u32 v18, v1, 2, 1
    v_mul_u32_u24 v11, {INS}, v18
    v_bfe_u32 v18, v1, 1, 1
    v_mul_u32_u24 v18, 576, v18
    v_add_u32 v11, v11, v18
    v_lshl_add_u32 v11, v16, 4, v11
    v_lshl_add_u32 v11, v17, 3, v11
    s_lshl_b32 s44, {WAVE}, 7
    v_add_u32 v11, s44, v11            ; partial sums, read
    v_add_u32 v12, {4*PS}, v11""".split('\n')
    def resid(hf): k(f'buffer_load_dwordx4 {V(HR+4*hf,4)}, v8, {WSR}, s66 offen offset:{1024*hf}{LD}')
    def mf(hf, u, i):
        d = V(ACC+32*hf+16*i, 16)
        return f'v_mfma_f32_32x32x16_bf16 {d}, {wd_reg(u, i)}, {A(88*hf+4*u,4)}, {"0" if u==0 else d}'
    def mm(hf, issued, hook):
        q = []
        for j in range(22):
            if hf == 0 and j >= OPT.get('wdin', 22) and j % 2 == 0:
                w = wd_loads(j); q += [lambda t=t: k(t) for t in w[:3] + [w[3] + '\n' + w[4]]]
            if j >= issued: q.append(lambda j=j: k(hload(hf, j, RB)))
        q.append(lambda: resid(hf))
        TL = OPT.get('tl', 0) if hf == 1 else 0
        for u in range(U0 if hf == 0 else 0, 22 - TL):
            for i in range(2):
                k(mf(hf, u, i))
                if q and (i == 0 or len(q) > 22 - u - OPT.get('lead', 8)): q.pop(0)()
                hook(u, i)
    def red_write(hf):
        o = [f'ds_write_b128 v10, {V(ACC+32*hf+16*i+4*q,4)} offset:{4*PS*hf+INS*i+QS*q}' for i in range(2) for q in range(4)]
        for j in range(4):
            o += [f'v_lshlrev_b32 v{SUM+4*(j&1)+(j>>1)}, 16, v{HR+4*hf+j}', f'v_and_b32 v{SUM+4*(j&1)+2+(j>>1)}, 0xffff0000, v{HR+4*hf+j}']
        return o
    def red_read(hf, pk=True):
        R = lambda w, q: (RD + 8*w + 2*q) if w < 3 else SUM + 8 + 2*q
        o = [f'ds_read_b64 {V(R(w,q),2)}, v{11+hf} offset:{PS*w+QS*q}' for w in range(4) for q in range(4)]
        if pk: o += [f'v_pk_add_f32 {V(SUM+2*q,2)}, {V(SUM+2*q,2)}, {V(R(w,q),2)}' for w in range(4) for q in range(4)]
        else: o += [f'v_add_f32 v{SUM+2*q+h}, v{SUM+2*q+h}, v{R(w,q)+h}' for w in range(4) for q in range(4) for h in range(2)]
        o += [f'v_cvt_pk_bf16_f32 v{HR+4*hf+j}, v{SUM+4*(j&1)+(j>>1)}, v{SUM+4*(j&1)+2+(j>>1)}' for j in range(4)]
        return o + [f'buffer_store_dwordx4 {V(HR+4*hf,4)}, v9, {RA}, s{67+hf} offen{OPT.get("ost", "")}']
    pre = [mf(0, u, i) for u in range(U0) for i in range(2)]
    for t in pre:
        k(t)
        for x in setup[:5]: k(x)
        setup = setup[5:]
    while setup or el:
        if el: k(el.pop(0))
        for x in setup[:4]: k(x)
        setup = setup[4:]
    k(f's_waitcnt vmcnt({EP})'); k('s_barrier')
    only_wave(k, 0, lambda: k(f's_mov_b64 exec, 1\n buffer_store_dword v21, v20, {WSR}, s41 offen{ST}'))
    stamp(k, 11)
    redo(k, 's62', 0, n0, lambda: [k(t) for t in pre])
    if OPT.get('p4st'): stamp(k, 1, True)
    LP, LC = OPT.get('lpoll', 11), OPT.get('lchk', 15)
    nl = [0]
    def hook0(u, i):
        if u == LP and i == 1: k(f'buffer_load_dword v6, v5, {WSR}, s63 offen{LD}')
        if u == LC and i == 0: k('v_cmp_ne_u32 vcc, 1, v6\n s_cmp_eq_u64 vcc, 0\n s_cselect_b32 s38, s34, 0')
        if u == OPT.get('lp2', -1) and i == 0: k(f'buffer_load_dword v7, v5, {WSR}, s63 offen{LD}')
        if (u, i) > (LC, 0) and (i == 1 or OPT.get('lrate2')): k(hload(1, nl[0], RC)); nl[0] += 1
    mm(0, n0, hook0)
    if OPT.get('p4st'): stamp(k, 2, True)
    for j, t in enumerate(red_write(0)):
        k(t)
        if j < OPT.get('lmid', 5): k(hload(1, nl[0], RC)); nl[0] += 1
    if OPT.get('p4st'): stamp(k, 3, True)
    redo(k, 's63', 1, nl[0], pre=7 if OPT.get('lp2') else None)
    if OPT.get('p4st'): stamp(k, 4, True)
    rr = red_read(0, False)
    def hook1(u, i):
        if u == 1 and i == 1: k.wait(lg=0); k('s_barrier')
        if u >= 2:
            for _ in range(4 if i else 2):
                if rr: k(rr.pop(0))
    mm(1, nl[0], hook1)
    assert not rr
    if OPT.get('p4st'): stamp(k, 5, True)
    TL = OPT.get('tl', 0); rw = red_write(1)
    for u in range(22 - TL, 22): k(mf(1, u, 0))
    for j, u in enumerate(range(22 - TL, 22)):
        k(mf(1, u, 1))
        if j == 0:
            for t in rw[8:]: k(t)
            rw = rw[:8]
        elif len(rw) > 4 and j >= 2: k(rw.pop(0))
    for t in rw: k(t)
    k.wait(lg=0); k('s_barrier')
    for t in red_read(1): k(t)

def fused():
    k = K()
    prologue(k)
    if OPT.get('prio'): only_wave(k, 0, lambda: k('s_setprio 3'))
    k(f's_cmp_ge_u32 s2, {NZ}\n s_cbranch_scc1 L_notz')
    st0 = k.state()
    p1_z(k)
    k.label('L_join1')
    k.vm = [set()] * 40; k.lg = []
    setup(k)
    stamp(k, 3)
    negs = lambda: [p2_negs(k, b) for b in (B1, A2, B3, A4)]
    stamp(k, 8, 'z')
    k(f's_cmp_lg_u32 {WAVE}, 0\n s_cbranch_scc1 L_b1o')
    st = k.state()
    k('s_mov_b64 exec, 1\n s_mov_b32 s46, 0\n s_waitcnt vmcnt(8)')
    k.label('L_go')
    k(f"""v_cmp_ne_u32 vcc, 0, v254
    s_add_u32 s46, s46, 1
    s_cbranch_vccnz L_gone
    global_load_dword v254, v250, s[20:21]{LD}
    s_waitcnt vmcnt(0)
    s_cmp_lt_u32 s46, {SPIN}
    s_cbranch_scc1 L_go""")
    k.restore(st); k.vm = k.vm[-8:]
    k.label('L_gone')
    stamp(k, 9, 'z')
    k('s_barrier')
    k(f's_cmp_eq_u32 s71, 0\n s_cbranch_scc1 L_b1a\n buffer_store_dword v251, v250, {WSR}, s71 offen{ST}\n s_mov_b64 exec, -1\n s_branch L_b1n')
    k.label('L_b1a')
    k(f'buffer_atomic_add v251, v250, {WSR}, s74 offen sc0 sc1\n s_mov_b64 exec, -1')
    stamp(k, 10, 'z')
    negs(); arrive_check(k, 250, 's75', 19, 1)
    k('s_mov_b64 exec, -1\n s_branch L_b1m')
    k.restore(st); k.label('L_b1o')
    k('s_waitcnt vmcnt(8)')
    stamp(k, 9, 'z')
    k('s_barrier')
    k.label('L_b1n')
    stamp(k, 10, 'z')
    negs()
    k.label('L_b1m')
    setup_late(k)
    wd_finish(k)
    only_wave(k, 1, lambda: k(f'v_lshlrev_b32 v252, 15, v1\n s_mov_b64 exec, 3\n buffer_store_dword v250, v252, {WSR}, s41 offen{ST}'))
    only_wave(k, 0, lambda: poll(k, 250, 1))
    k.vm = []
    k('s_barrier')
    stamp(k, 4)
    stamp(k, 11, 'z'); stamp(k, 1, 'b')
    barrier2(k, p2(k))
    n0 = p3_body(k, False)
    nst = 0
    nst = 2
    k.label('L_join3')
    k.fence()
    p4(k, n0, nst)
    stamp_out(k, 12)
    k.label('L_end'); k('s_endpgm')
    k.restore(st3); k.label('L_p3h'); assert p3_body(k, True) == n0
    assert not any(k.vm[-nst:]); k('s_branch L_join3')
    k.restore(st0); k.label('L_notz')
    p1_w(k); k('s_branch L_join1')
    k.restore(st_c); k.label('L_p1c')
    k(f's_cmp_ge_u32 s2, {NI0}\n s_cbranch_scc1 L_p1i')
    st1 = k.state()
    p1_t(k); k('s_branch L_join1')
    k.restore(st1); k.label('L_p1i'); p1_i(k); k('s_branch L_join1')
    o = header()
    o += f'; @launch grid=(256,1,1) block=(256,1,1) lds={STATL+4096}\n'
    o += '.amdgcn_target "amdgcn-amd-amdhsa--gfx950"\n.text\n' + k.text()
    o += tables_text() + 'L_image_end:\n'
    o += '.section .rodata,"a"\n.p2align 6\n' + kd(KN, k)
    return o

if __name__ == '__main__':
    out = sys.argv[1]
    for a in sys.argv[2:]:
        key, _, val = a.partition('=')
        OPT[key] = eval(val) if val else True
    open(out, 'w').write(fused())
```

```python
import sys, math, struct
import numpy as np
from dsl import K
from design import *
from gen import V, A, Sg, fbits, TBL, tables_text, header, kd, NAME, srd, cmul, TPAD

OPT = dict(stamps=False, gblate=True, tpost=True, every=48, mergeland=True, mrate=1.5, nopre=True, w0late=True, nA=6, c1=1, fpos=0, c2=1, prio=True, wgbfirst=False, wdshadow=True, wcont=True, nord=True, hold=True, esamp=8, e1end=13, echk=15, epost=8, wdend=62, lpoll=9, lchk=16, retouch=True, ntx=' nt', ntd=' nt', lp2=17, sbar=True, dpre=12, mfirst=2, zfirst=True)
ST, LD = ' sc1', ' sc1'
WSR, RA, RB, RC = 's[24:27]', 's[28:31]', 's[32:35]', 's[36:39]'
WAVE = 's40'
KN = NAME + '_kernel'
SPIN = 400000
TW1, TW2 = 112, 128
B1, A4, A2, B3 = 144, 168, 192, 216
FA, GB = 200, 208
NZ, NC0, NI0 = 128, 216, 248
uid = [0]

def stamp(k, i, pm=False):
    if OPT.get('pst') and 1 <= i <= 5 and not pm: return
    if OPT.get('zdet') and 1 <= i <= 11 and pm != 'z': return
    if pm == 'z' and not OPT.get('zdet'): return
    if OPT.get('bdet') and 1 <= i <= 11 and pm != 'b': return
    if pm == 'b' and not OPT.get('bdet'): return
    if OPT['stamps']: k(f's_{"memtime" if OPT.get("pst") else "memrealtime"} s[{76+2*i}:{77+2*i}]')
def stamp_out(k, n):
    if not OPT['stamps']: return
    k.wait(vm=0, lg=0); stamp(k, n); n += 1; k.wait(lg=0)
    k(f's_lshl_b32 s44, s2, 8\n s_lshl_b32 s45, {WAVE}, 6\n s_add_u32 s44, s44, s45\n s_add_u32 s44, s44, {STAMP}')
    for i in range(16): k(f'v_mov_b32 v{8+i}, s{76+2*i}' if i < n else f'v_mov_b32 v{8+i}, 0')
    k('v_mov_b32 v24, 0\n s_mov_b64 exec, 1')
    for q in range(4): k(f'buffer_store_dwordx4 {V(8+4*q,4)}, v24, {WSR}, s44 offen offset:{16*q}')

def wsrd(k, base, end):
    k(f's_mov_b32 s{base}, s24\n s_mov_b32 s{base+1}, s25\n s_mov_b32 s{base+2}, {end}\n s_mov_b32 s{base+3}, 0x20000')

def tbl_addr(k, vp, soff):
    k(f"""s_add_u32 s46, s42, {soff}
    s_addc_u32 s47, s43, 0
    v_mov_b32 v{vp+1}, s47
    v_add_co_u32 v{vp}, vcc, s46, v4
    v_addc_co_u32 v{vp+1}, vcc, 0, v{vp+1}, vcc""")

def gb_loads(k):
    for q in range(8): k(f'global_load_dwordx4 {A(GB+4*q,4)}, v[8:9], off offset:{1024*q-4096}')

def prologue(k):
    k.raw(f'.globl {KN}\n.p2align 8\n.type {KN},@function\n{KN}:')
    stamp(k, 0)
    k(f"""s_load_dwordx16 s[4:19], s[0:1], 0
    s_load_dwordx4 s[20:23], s[0:1], 64
    s_getpc_b64 s[42:43]""")
    k.raw('L_pc:')
    k(f"""s_cmp_ge_u32 s2, 256
    s_cbranch_scc1 L_end
    v_lshrrev_b32 v5, 6, v0
    v_and_b32 v1, 63, v0
    v_readfirstlane_b32 {WAVE}, v5
    s_lshr_b32 s44, s2, 3
    v_lshl_add_u32 v5, v5, 5, s44
    v_lshlrev_b32 v6, 6, v1
    v_lshl_add_u32 v5, v5, 12, v6      ; 4 KiB slice per wave, one dword per 64 B""")
    k.raw('    v_min_u32 v5, L_image_end-L_pc-4, v5'); k.pos += 1
    k(f"""v_mov_b32 v7, s43
    v_add_co_u32 v6, vcc, s42, v5
    v_addc_co_u32 v7, vcc, 0, v7, vcc
    global_load_dword v255, v[6:7], off
    v_bfe_u32 v2, v0, 4, 2
    v_and_b32 v3, 15, v0
    v_lshlrev_b32 v4, 4, v1""")
    k.raw('    s_add_u32 s42, s42, tables-L_pc\n    s_addc_u32 s43, s43, 0'); k.pos += 2
    k(f's_cmp_ge_u32 s2, {NC0}\n s_cbranch_scc1 L_p1c')
    global st_c
    st_c = k.state()
    tbl_addr(k, 6, TBL['FA'])
    for c in range(2): k(f'global_load_dwordx4 {A(FA+4*c,4)}, v[6:7], off offset:{1024*c}')
    k(f"""s_cmp_lt_u32 s2, {NZ}
    s_cselect_b32 s45, {TBL["GBZ"]+4096}, {TBL["GBW"]+4096}
    s_lshl_b32 s44, {WAVE}, 13
    s_add_u32 s44, s44, s45""".replace(str(TBL["GBW"]+4096), 's47').replace('s_cmp_lt', f's_mov_b32 s47, {TBL["GBW"]+4096}\n s_cmp_lt'))
    tbl_addr(k, 8, 's44')
    if not OPT.get('gblate'): gb_loads(k)

def go_load(k, b):
    k(f'v_mov_b32 v{b}, 0\n global_load_dword v{b+4}, v{b}, s[20:21]{LD}')
def arrive_issue(k, b, cnt, go):
    k(f'v_mov_b32 v{b}, 0\n v_mov_b32 v{b+1}, 1\n s_mov_b64 exec, 1')
    if go:
        uid[0] += 1; u = uid[0]
        k('s_mov_b32 s46, 0')
        k.label(f'L_go{u}')
        k(f"""s_waitcnt vmcnt(0)
        v_cmp_ne_u32 vcc, 0, v{b+4}
        s_add_u32 s46, s46, 1
        s_cbranch_vccnz L_gone{u}
        global_load_dword v{b+4}, v{b}, s[20:21]{LD}
        s_cmp_lt_u32 s46, {SPIN}
        s_cbranch_scc1 L_go{u}""")
        k.label(f'L_gone{u}')
    k(f'buffer_atomic_add v{b+1}, v{b}, {WSR}, {cnt} offen sc0 sc1')
def arrive_check(k, b, flg, last, val):
    uid[0] += 1; u = uid[0]
    k(f"""s_mov_b64 exec, 0xff
    v_lshlrev_b32 v{b+2}, 11, v1
    v_mov_b32 v{b}, {val}
    v_readfirstlane_b32 s47, v{b+1}
    s_cmp_lg_u32 s47, {last}
    s_cbranch_scc1 L_nl{u}""")
    st = k.state()
    k(f'buffer_store_dword v{b}, v{b+2}, {WSR}, {flg} offen{ST}')
    k.restore(st)
    k.label(f'L_nl{u}')
def poll(k, b, val):
    uid[0] += 1; u = uid[0]
    k(f"""s_mov_b64 exec, 0xff
    v_lshlrev_b32 v{b+3}, 8, v1
    s_and_b32 s44, s2, 7
    s_lshl_b32 s44, s44, 11
    s_add_u32 s44, s44, {FLG}
    s_mov_b32 s46, 0""")
    k.label(f'L_bp{u}')
    k(f"""buffer_load_dword v{b+1}, v{b+3}, {WSR}, s44 offen{LD}
    s_add_u32 s46, s46, 1
    s_waitcnt vmcnt(0)
    v_cmp_gt_u32 vcc, {val}, v{b+1}
    s_cmp_gt_u32 s46, {SPIN}
    s_cbranch_scc1 L_bd{u}
    s_cbranch_vccnz L_bp{u}""")
    k.label(f'L_bd{u}')
    k('s_mov_b64 exec, -1')
def only_wave(k, w, fn):
    uid[0] += 1; u = uid[0]
    k(f's_cmp_lg_u32 {WAVE}, {w}\n s_cbranch_scc1 L_ow{u}')
    st = k.state(); fn(); k('s_mov_b64 exec, -1'); k.restore(st); k.label(f'L_ow{u}')

def p2_tables(k, vp=26):
    k(f's_lshl_b32 s44, {WAVE}, 13\n s_add_u32 s44, s44, {TBL["P2W"]+4096}')
    tbl_addr(k, vp, 's44'); tbl_addr(k, vp+2, TBL['P2S']+4096)
    o = [f'global_load_dwordx4 {V(B1+6*u+2,4)}, {V(vp,2)}, off offset:{1024*u-4096}' for u in range(4)]
    o += [f'global_load_dwordx4 {V(A2+6*u+2,4)}, {V(vp+2,2)}, off offset:{1024*u-4096}' for u in range(4)]
    o += [f'global_load_dwordx4 {V(B3+6*u+2,4)}, {V(vp+2,2)}, off offset:{1024*u}' for u in range(4)]
    o += [f'global_load_dwordx4 {V(A4+6*u+2,4)}, {V(vp,2)}, off offset:{1024*u}' for u in range(4)]
    return o
def flush(k):
    sp, k.sprinkle = k.sprinkle, []
    for t in sp: k(t)

def gtouch(k, dst):
    k(f"""s_bitcmp1_b32 s2, 0
    s_cselect_b32 s36, s14, s12
    s_cselect_b32 s37, s15, s13
    s_and_b32 s37, s37, 0xffff
    s_mov_b32 s38, {D*F*2}
    s_lshr_b32 s44, s2, 3
    s_lshl_b32 s44, s44, 2
    s_add_u32 s44, s44, {WAVE}
    s_mul_i32 s44, s44, {8*2752}
    s_bfe_u32 s46, s2, 0x20001
    s_mul_i32 s46, s46, 704
    s_add_u32 s44, s44, s46
    v_and_b32 v15, 7, v1
    v_lshlrev_b32 v15, 7, v15
    v_min_u32 v15, 700, v15
    v_lshrrev_b32 v16, 3, v1
    v_mul_u32_u24 v16, 2752, v16
    v_add_u32 v15, v15, v16
    s_mov_b32 exec_lo, 0x7f7f7f7f
    s_mov_b32 exec_hi, 0x7f7f7f7f
    buffer_load_dword v{dst}, v15, {RC}, s44 offen
    s_mov_b64 exec, -1""")

def p1_z(k):
    X, DA, TR, SS, WL, WO = 32, 48, 80, 96, 104, 120
    k(f"""s_and_b32 s44, s2, 7
    s_lshr_b32 s45, s2, 4
    s_lshl_b32 s45, s45, 3
    s_add_u32 s44, s44, s45
    s_lshl_b32 s44, s44, 1
    s_bfe_u32 s45, s2, 0x10003
    s_add_u32 s60, s44, s45            ; (t,g,beta,bq)
    s_lshr_b32 s61, s60, 3
    s_lshl_b32 s61, s61, 7
    s_and_b32 s44, s60, 7
    s_lshl_b32 s44, s44, 2
    s_add_u32 s44, s44, s61
    s_add_u32 s44, s44, {WAVE}
    s_lshl_b32 s56, s44, 10
    s_add_u32 s57, s56, 0x8000
    s_add_u32 s58, s56, 0x10000
    s_add_u32 s59, s56, 0x18000
    s_mov_b32 s38, {S*D*2}
    s_mov_b32 s39, 0x20000
    s_bfe_u32 s48, s2, 0x20003
    s_and_b32 s44, s2, 7
    s_lshl_b32 s44, s44, 2
    s_add_u32 s48, s48, s44
    s_and_b32 s44, s2, 0x60
    s_add_u32 s48, s48, s44
    s_add_u32 s48, s48, 128""")
    wt_rows(k, 's48', 49)
    k(f's_mul_i32 s44, {WAVE}, {64*514}\n s_add_u32 s49, s49, s44')
    k.wait(lg=0)
    stamp(k, 1, 'z')
    k('s_mov_b32 s36, s4\n s_and_b32 s37, s5, 0xffff')
    for i in range(4): k(f'buffer_load_dwordx4 {V(X+4*i,4)}, v4, {RC}, s{56+i} offen{OPT.get("ntx", "")}')
    k(WSRDS)
    if not OPT.get('nowpf'):
        k(f"""v_lshrrev_b32 v15, 1, v3
        v_mul_u32_u24 v15, 514, v15
        v_and_b32 v16, 1, v1
        v_mul_u32_u24 v16, 126, v16
        v_add_u32 v15, v15, v16
        s_mov_b64 exec, 0xffff
        buffer_load_ushort v{WO}, v15, {RA}, s49 offen{OPT.get('ntw', '')}
        buffer_load_ushort v{WO+1}, v15, {RB}, s49 offen{OPT.get('ntw', '')}
        s_mov_b64 exec, -1""")
    if OPT.get('gbz') == 0: gb_loads(k)
    for t in wd_issue(k): k(t)
    k('v_mov_b32 v24, v8\n v_mov_b32 v25, v9')
    gbl_ = [f'global_load_dwordx4 {A(GB+4*q,4)}, v[24:25], off offset:{1024*q-4096}' for q in range(8)] if OPT.get('gbz') != 0 else []
    k('v_mov_b32 v15, v11')
    wl_ = [f'buffer_load_dwordx4 {V(WL,4)}, v15, {RA}, s49 offen', f'buffer_load_dwordx4 {V(WL+4,4)}, v15, {RB}, s49 offen']
    wt_dest(k, 's48', 50)
    k(f"""s_lshl_b32 s44, {WAVE}, 2
    s_add_u32 s44, s44, 0xa000
    v_add_u32 v12, s44, v12
    s_lshl_b32 s44, {WAVE}, 5
    v_xor_b32 v13, s44, v4
    s_lshl_b32 s44, {WAVE}, 11
    s_add_u32 s44, s44, 0xa000
    v_add_u32 v13, s44, v13
    v_xor_b32 v14, 16, v13
    s_lshl_b32 s44, {WAVE}, 11
    s_add_u32 s50, s50, s44
    s_add_u32 s51, s50, 1024""")
    srd(k, 24, 22, WS_USED)
    k(f"""s_lshl_b32 s44, {WAVE}, 12
    v_add_u32 v30, s44, v4
    v_lshrrev_b32 v31, 1, v4
    v_add_u32 v31, s44, v31
    v_mul_u32_u24 v6, {TPAD}, v3
    v_lshl_add_u32 v6, v2, 8, v6
    s_lshl_b32 s44, {WAVE}, 6
    s_add_u32 s44, s44, 16384
    v_add_u32 v6, s44, v6
    s_mul_i32 s44, {WAVE}, {4*TPAD}
    s_add_u32 s44, s44, 16384
    v_add_u32 v7, s44, v4
    v_cmp_eq_u32 vcc, 0, v3
    v_cndmask_b32 v8, 0, 1.0, vcc
    s_mov_b32 s62, 0x3f803f80
    v_lshlrev_b32 v9, 6, v3
    v_lshl_add_u32 v9, v2, 4, v9
    s_lshl_b32 s44, s60, 14
    s_lshl_b32 s63, s60, 7
    s_add_u32 s63, s63, {SM}
    s_lshl_b32 s47, {WAVE}, 12
    s_add_u32 s44, s44, s47
    s_add_u32 s64, s44, {ZT}
    s_lshl_b32 s44, {WAVE}, 4
    s_add_u32 s44, s44, 0x9000
    v_lshl_add_u32 v10, v2, 2, s44""")
    tl = gbl_ + wl_
    if True:
        stamp(k, 2, 'z')
        for i in range(4):
            k(f'ds_write_b128 v30, {V(X+4*i,4)} offset:{1024*i}')
            if i == 0: stamp(k, 1)
            for r in range(2): k(f'ds_read_b64_tr_b16 {V(TR+4*i+2*r,2)}, v31 offset:{1024*i+512*r}')
            for j in range(4):
                k(f'v_dot2_f32_bf16 v{SS+i}, v{X+4*i+j}, s62, {"0" if j==0 else V(SS+i)}')
                k(f'v_dot2_f32_bf16 v{SS+4+i}, v{X+4*i+j}, v{X+4*i+j}, {"0" if j==0 else V(SS+4+i)}')
        stamp(k, 3, 'z')
        k.sprinkle = tl; k.every = OPT.get('zev', 40); k.since = 100
        stamp(k, 4, 'z')
        mf = [f'v_mfma_f32_16x16x32_bf16 {V(DA+8*i+4*c,4)}, {V(TR+4*i,4)}, {A(FA+4*c,4)}, 0' for i in range(4) for c in range(2)]
        k(mf.pop(0)); k(mf.pop(0))
        for b in (SS, SS+4):
            k(f'v_permlane32_swap_b32 v{b}, v{b+2}\n v_permlane32_swap_b32 v{b+1}, v{b+3}')
        for b in (SS, SS+4):
            k(f'v_add_f32 v{b}, v{b}, v{b+2}\n v_add_f32 v{b+1}, v{b+1}, v{b+3}')
        k(mf.pop(0))
        for b in (SS, SS+4): k(f'v_permlane16_swap_b32 v{b}, v{b+1}')
        for b in (SS, SS+4): k(f'v_add_f32 v{b}, v{b}, v{b+1}')
        for sh in (8, 4, 2, 1):
            k(mf.pop(0))
            for b in (SS, SS+4): k(f'v_add_f32_dpp v{b}, v{b}, v{b} row_ror:{sh} row_mask:0xf bank_mask:0xf')
        k(mf.pop(0))
        k(f"""v_mul_f32 v{SS}, {fbits(1/512)}, v{SS}
        v_mul_f32 v{SS+4}, {fbits(1/512)}, v{SS+4}
        v_fma_f32 v{SS+4}, -v{SS}, v{SS}, v{SS+4}
        v_max_f32 v{SS+4}, 0, v{SS+4}
        v_add_f32 v{SS+4}, {fbits(1e-5)}, v{SS+4}
        v_rsq_f32 v{SS+1}, v{SS+4}
        v_mul_f32 v{SS+2}, {fbits(-8.0)}, v{SS}
        v_mul_f32 v{SS+2}, v{SS+2}, v{SS+1}
        v_mul_f32 v{SS+3}, {fbits(0.25)}, v{SS+1}""")
        for i in range(4):
            k(f'v_readlane_b32 s{68+2*i}, v{SS+3}, {16*i}\n v_readlane_b32 s{69+2*i}, v{SS+2}, {16*i}')
        for i in range(4):
            d = DA + 8*i
            k(f'v_mul_f32 v{TR}, s{69+2*i}, v8')
            for h in range(2):
                k(f'v_pk_mul_f32 {V(d+4+2*h,2)}, {V(d+4+2*h,2)}, {Sg(68+2*i,2)} op_sel_hi:[1,0]')
            for h in range(2):
                k(f'v_pk_fma_f32 {V(d+2*h,2)}, {V(d+2*h,2)}, {Sg(68+2*i,2)}, {V(TR,2)} op_sel_hi:[1,0,0]')
            for h in (2, 3, 0, 1): k(f'v_cvt_pk_f16_f32 v{X+4*i+h}, v{d+2*h}, v{d+2*h+1}')
            k(f'ds_write_b128 v6, {V(X+4*i,4)} offset:{16*i}')
        k(f"""v_mul_f32 v{SS+4}, v{SS+4}, v{SS+1}
        ds_write2_b32 v10, v{SS+4}, v{SS} offset0:0 offset1:16""")
        print('tables left', len(k.sprinkle)); flush(k)
        def wt_a():
            for i in range(8):
                k(f'v_perm_b32 v{WO+i}, v{WL+4+(i>>1)}, v{WL+(i>>1)}, s{53+(i&1)}')
                k(f'ds_write_b32 v12, v{WO+i} offset:{128*i}')
        if OPT.get('wtearly'): wt_a()
        k.wait(lg=0); k('s_barrier')
        if OPT.get('zst'): stamp(k, 1)
        stamp(k, 5, 'z')
        for q in range(4): k(f'ds_read_b128 {V(TR+4*q,4)}, v7 offset:{TPAD*q}')
        k(f'ds_read_b128 {V(SS,4)}, v4 offset:0x9000')
        go_load(k, 250)
        wt_b = lambda: [k(f'ds_read_b128 {V(WL+4*n,4)}, v{13+n} offset:{1024*n}') for n in range(2)]
        wt_c = lambda: [k(f'buffer_store_dwordx4 {V(WL+4*n,4)}, v11, {WSR}, s{50+n} offen{ST}') for n in range(2)]
        if OPT.get('wtearly'): wt_b()
        for q in range(4):
            for o in range(2): k(f'v_mfma_f32_16x16x32_f16 {V(DA+8*q+4*o,4)}, {V(TR+4*q,4)}, {A(GB+8*q+4*o,4)}, 0')
        k.wait(lg=0)
        if OPT.get('wtearly'): wt_c()
        only_wave(k, 3, lambda: k(f's_mov_b64 exec, 0xff\n buffer_store_dwordx4 {V(SS,4)}, v4, {WSR}, s63 offen{ST}'))
        for q in range(4):
            for h in range(4): k(f'v_cvt_pk_f16_f32 v{X+4*q+h}, v{DA+8*q+2*h}, v{DA+8*q+2*h+1}')
            k(f'buffer_store_dwordx4 {V(X+4*q,4)}, v9, {WSR}, s64 offen offset:{1024*q}{ST}')
        stamp(k, 6, 'z')
        if not OPT.get('wtearly'):
            wt_a(); k.wait(lg=0); k('s_barrier'); wt_b(); wt_c()
        wd_pack(k)
        global ztl
        ztl = p2_tables(k)
        if OPT.get('ztpre'):
            for t in ztl: k(t)
        stamp(k, 2)

def p1_w(k):
    OP, DA = 32, 64
    TBASE = 32768
    k(f"""s_and_b32 s61, s2, 1               ; mu
    s_bfe_u32 s60, s2, 0x60001
    s_and_b32 s44, s60, 3
    s_lshl_b32 s44, s44, 1
    s_bfe_u32 s45, s60, 0x10002
    s_add_u32 s44, s44, s45
    s_andn2_b32 s45, s60, 7
    s_add_u32 s44, s44, s45
    s_cmp_lt_u32 s60, 40
    s_cselect_b32 s60, s44, s60        ; phi""" + ("""
    s_bfe_u32 s44, s2, 0x20001
    s_mul_i32 s44, s44, 11
    s_bfe_u32 s45, s2, 0x40003
    s_add_u32 s60, s44, s45""" if OPT.get('wcont') else '') + f"""
    s_mul_i32 s44, {WAVE}, {4*2752}
    s_lshl_b32 s45, s60, 6
    s_add_u32 s66, s44, s45
    v_lshrrev_b32 v10, 2, v1
    v_mul_u32_u24 v30, {16*2752}, v10
    v_and_b32 v11, 3, v1
    v_and_b32 v12, 1, v2
    v_lshlrev_b32 v12, 1, v12
    v_xor_b32 v13, v11, v12
    v_lshl_add_u32 v30, v13, 4, v30    ; DMA source
    s_lshl_b32 s67, {WAVE}, 13
    s_mov_b32 s38, {D*F*2}
    s_mov_b32 s39, 0x20000
    """)
    k(f"""s_bfe_u32 s64, s2, 0x40003
    s_lshl_b32 s64, s64, 2
    s_add_u32 s64, s64, {WAVE}
    s_mul_i32 s64, s64, {12*2752}
    s_bfe_u32 s46, s2, 0x20001
    s_mul_i32 s46, s46, 704
    s_add_u32 s64, s64, s46
    s_add_u32 s65, s64, {8*2752}
    v_and_b32 v14, 7, v1
    v_lshlrev_b32 v14, 7, v14
    v_min_u32 v14, 700, v14
    v_lshrrev_b32 v15, 3, v1
    v_mul_u32_u24 v15, 2752, v15
    v_add_u32 v14, v14, v15""")
    if OPT.get('wgbfirst'): gb_loads(k)
    k.wait(lg=0)
    stamp(k, 1, 'z')
    k(f"""s_cmp_eq_u32 s61, 0
    s_cselect_b32 s36, s12, s14
    s_cselect_b32 s37, s13, s15
    s_and_b32 s37, s37, 0xffff""")
    if not OPT.get('nowt2'):
        k(f"""s_mov_b32 exec_lo, 0x7f7f7f7f
        s_mov_b32 exec_hi, 0x7f7f7f7f
        buffer_load_dword v5, v14, {RC}, s64 offen{OPT.get('ntg', '')}
        s_mov_b32 exec_hi, 0
        buffer_load_dword v248, v14, {RC}, s65 offen{OPT.get('ntg', '')}
        s_mov_b64 exec, -1""")
    k('v_mov_b32 v249, v30\n v_mov_b32 v24, v8\n v_mov_b32 v25, v9')
    def dmas():
        nonlocal pos
        pos = []
        for n in range(8):
            k(f's_add_u32 m0, s67, {1024*n}\n s_add_u32 s44, s66, {((n>>1) + 256*(n&1))*2752}')
            k(f'buffer_load_dwordx4 v249, {RC}, s44 offen{OPT.get("ntg", "")} lds'); pos.append(k.nvm)
        for q in range(8): k(f'global_load_dwordx4 {A(GB+4*q,4)}, v[24:25], off offset:{1024*q-4096}')
    pos = None
    if OPT.get('dfirst'): dmas()
    srd(k, 24, 22, WS_USED)
    k(f"""v_lshlrev_b32 v31, 6, v10
    v_lshl_add_u32 v31, v12, 4, v31
    v_lshl_add_u32 v31, v11, 3, v31
    v_add_u32 v30, s67, v31
    v_xor_b32 v31, 32, v30
    v_mul_u32_u24 v6, {4*TPAD}, v2
    v_lshl_add_u32 v6, v3, 4, v6
    s_lshl_b32 s44, {WAVE}, 8
    s_add_u32 s44, s44, {TBASE}
    v_add_u32 v6, s44, v6              ; T write
    s_mul_i32 s44, {WAVE}, {4*TPAD}
    s_add_u32 s44, s44, {TBASE}
    v_add_u32 v7, s44, v4              ; T read
    s_lshl_b32 s44, s60, 2
    v_lshrrev_b32 v12, 3, v3
    v_and_b32 v13, 7, v3
    v_lshlrev_b32 v13, 4, v13
    v_lshl_add_u32 v13, v2, 8, v13
    s_lshl_b32 s45, {WAVE}, 12
    s_add_u32 s68, s45, {WP}
    v_mov_b32 v19, s61""")
    for pp in range(2):
        k(f"""v_add_u32 v14, s44, v12            ; octet
        v_mul_u32_u24 v15, 373, v14
        v_lshrrev_b32 v15, 12, v15
        v_add_u32 v14, v14, v15            ; q
        v_mul_u32_u24 v15, 171, v14
        v_lshrrev_b32 v15, 9, v15
        v_mul_u32_u24 v15, 3, v15          ; q - q%3
        v_sub_u32 v16, v14, v15            ; n
        v_cmp_eq_u32 vcc, 2, v16
        v_add_u32 v15, s61, v15
        s_add_u32 s44, s44, 2
        v_cndmask_b32 v15, v15, v14, vcc   ; tile
        v_cndmask_b32 v16, v16, v19, vcc
        v_mul_u32_u24 v15, {WPS}, v15
        v_add_u32 v{8+pp}, v15, v13
        v_lshl_add_u32 v{8+pp}, v16, 7, v{8+pp}""")
    tl = p2_tables(k)
    setup(k); setup_late(k, 'addr')
    if not OPT.get('dfirst'): dmas()
    stamp(k, 2, 'z')
    for dl in range(4):
        k(f's_waitcnt vmcnt({k.nvm - pos[2*dl+1]})')
        if dl == 0: stamp(k, 1)
        for pi in range(2):
            for h in range(2): k(f'ds_read_b64_tr_b16 {V(OP+8*dl+4*pi+2*h,2)}, v{30+pi} offset:{2048*dl+1024*h}')
    stamp(k, 3, 'z')
    k.sprinkle = tl; k.every = OPT.get('tev', 28); k.since = 100
    for dl in range(4):
        for pi in range(2):
            for c in range(2):
                k(f'v_mfma_f32_16x16x32_bf16 {V(DA+32*pi+16*c+4*dl,4)}, {A(FA+4*c,4)}, {V(OP+8*dl+4*pi,4)}, 0')
    for pi in range(2):
        for r in range(4):
            u = OP + 16*pi + 4*r
            for c in range(2):
                for h in range(2):
                    d = DA + 32*pi + 16*c + 8*h + r
                    k(f'v_cvt_pk_bf16_f32 v{u+2*c+h}, v{d}, v{d+4}')
            k(f'ds_write_b128 v6, {V(u,4)} offset:{16*TPAD*pi+TPAD*r}')
    flush(k)
    stamp(k, 4, 'z')
    k.wait(lg=0); k('s_barrier')
    stamp(k, 5, 'z')
    for pi in range(2):
        for q in range(4): k(f'ds_read_b128 {V(OP+16*pi+4*q,4)}, v7 offset:{16*TPAD*pi+TPAD*q}')
    go_load(k, 250)
    for pi in range(2):
        for q in range(4):
            for o in range(2):
                k(f'v_mfma_f32_16x16x32_bf16 {V(DA+32*pi+8*q+4*o,4)}, {A(GB+8*q+4*o,4)}, {V(OP+16*pi+4*q,4)}, 0')
    for pi in range(2):
        for p in range(2):
            for o in range(2):
                u = OP + 16*pi + 8*p + 4*o
                for hq in range(2):
                    for h in range(2):
                        d = DA + 32*pi + 8*(2*p+hq) + 4*o + 2*h
                        k(f'v_cvt_pk_bf16_f32 v{u+2*hq+h}, v{d}, v{d+1}')
                k(f'buffer_store_dwordx4 {V(u,4)}, v{8+pi}, {WSR}, s68 offen offset:{(2*p+o)*1024}{ST}')
    stamp(k, 2); stamp(k, 6, 'z')

def wt_rows(k, task, dst):
    k(f"""s_bfe_u32 s44, {task}, 0x30002
    s_lshl_b32 s44, s44, 3
    s_lshr_b32 s45, {task}, 5
    s_lshl_b32 s45, s45, 8
    s_add_u32 s44, s44, s45
    s_mul_i32 s{dst}, s44, 514
    s_and_b32 s45, {task}, 3
    s_lshl_b32 s45, s45, 7
    s_add_u32 s{dst}, s{dst}, s45
    s_add_u32 s{dst}, s{dst}, 2
    v_lshrrev_b32 v12, 3, v1
    v_and_b32 v13, 7, v1
    v_mul_u32_u24 v11, 514, v12
    v_lshl_add_u32 v11, v13, 4, v11
    s_mov_b32 s30, {2048*257*2}
    s_mov_b32 s31, 0x20000
    s_mov_b32 s34, {2048*257*2}
    s_mov_b32 s35, 0x20000""")
def wt_dest(k, task, dst):
    k(f"""s_lshl_b32 s{dst}, {task}, 13
    s_add_u32 s{dst}, s{dst}, {WT}
    s_mov_b32 s53, 0x05040100
    s_mov_b32 s54, 0x07060302
    v_mov_b32 v11, v4
    v_xor_b32 v12, v12, v13
    v_lshlrev_b32 v12, 4, v12
    v_lshl_add_u32 v12, v13, 10, v12""")
WSRDS = 's_mov_b32 s28, s6\n s_and_b32 s29, s7, 0xffff\n s_mov_b32 s32, s8\n s_and_b32 s33, s9, 0xffff'
def p1_t(k):
    WL, WO = 32, 64
    k(f's_sub_u32 s48, s2, {NC0}\n s_lshl_b32 s48, s48, 2\n s_add_u32 s48, s48, {WAVE}')
    wt_rows(k, 's48', 49)
    for r in range(1, 4): k(f's_add_u32 s{49+r}, s49, {64*r*514}')
    k.wait(lg=0)
    k(WSRDS)
    for r in range(4):
        k(f'buffer_load_dwordx4 {V(WL+8*r,4)}, v11, {RA}, s{49+r} offen{OPT.get("ntw", "")}')
        k(f'buffer_load_dwordx4 {V(WL+8*r+4,4)}, v11, {RB}, s{49+r} offen{OPT.get("ntw", "")}')
    srd(k, 24, 22, WS_USED)
    wt_dest(k, 's48', 56)
    k(f's_lshl_b32 s44, {WAVE}, 13\n v_add_u32 v12, s44, v12\n v_add_u32 v14, s44, v4')
    for n in range(1, 8): k(f's_add_u32 s{56+n}, s56, {1024*n}\n v_xor_b32 v{14+n}, {16*n}, v14')
    tl = p2_tables(k)
    for i in range(8):
        o = WO + 4*i
        for r in range(4): k(f'v_perm_b32 v{o+r}, v{WL+8*r+4+(i>>1)}, v{WL+8*r+(i>>1)}, s{53+(i&1)}')
        k(f'ds_write_b128 v12, {V(o,4)} offset:{128*i}')
        if OPT.get('ttpre'):
            for t in tl[2*i:2*i+2]: k(t)
    stamp(k, 1)
    for n in range(8): k(f'ds_read_b128 {V(WL+4*n,4)}, v{14+n} offset:{1024*n}')
    go_load(k, 250)
    for n in range(8): k(f'buffer_store_dwordx4 {V(WL+4*n,4)}, v11, {WSR}, s{56+n} offen{ST}')
    stamp(k, 2)

def p1_i(k):
    k.wait(lg=0)
    srd(k, 24, 22, WS_USED)
    k(f"""s_lshl_b32 s44, s2, 2
    s_add_u32 s44, s44, {WAVE}
    s_cmp_lg_u32 s44, {255*4}
    s_cbranch_scc1 L_noinit
    v_lshlrev_b32 v30, 8, v1
    v_lshlrev_b32 v31, 8, v3
    v_mov_b32 v32, 0
    s_mov_b32 s44, {FLG}
    s_mov_b32 s45, {FLG+16384}
    buffer_store_dword v32, v30, {WSR}, s44 offen{ST}
    v_lshlrev_b32 v33, 7, v1
    buffer_store_dword v32, v33, {WSR}, s45 offen{ST}
    s_add_u32 s45, s45, 8192
    buffer_store_dword v32, v33, {WSR}, s45 offen{ST}
    buffer_store_dword v32, v31, {WSR}, 0 offen{ST}
    v_mov_b32 v33, 1
    s_waitcnt vmcnt(0)
    s_mov_b64 exec, 1
    global_store_dword v32, v33, s[20:21]{ST}
    s_mov_b64 exec, -1""")
    k.label('L_noinit')
    k(f"""s_sub_u32 s60, s2, {NI0}
    s_lshl_b32 s61, s60, 1
    s_lshr_b32 s44, {WAVE}, 1
    s_add_u32 s61, s61, s44            ; t
    s_and_b32 s62, {WAVE}, 1
    s_lshl_b32 s62, s62, 2             ; p
    s_add_u32 s63, s62, 4
    s_lshl_b32 s44, s61, 5
    s_add_u32 s44, s44, 1
    v_lshl_add_u32 v30, v3, 1, s44     ; 2d+1
    v_and_b32 v31, 1, v2
    v_lshlrev_b32 v31, 7, v31
    v_cmp_lt_u32 s[64:65], 1, v2
    v_mov_b32 v36, {fbits(1/16)}
    s_mul_i32 s61, s61, {12*WPS}
    s_add_u32 s61, s61, {WP+11*WPS}""")
    for t in p2_tables(k): k(t)
    stamp(k, 1)
    k.fence(); k.label('L_inv')
    k(f"""s_lshl_b32 s44, s62, 1
    s_sub_u32 s45, 32, s44
    s_cmp_eq_u32 s44, 0
    s_cselect_b32 s45, 16, s45
    v_mov_b32 v33, s44
    v_mov_b32 v34, s45
    v_cndmask_b32 v33, v33, v34, s[64:65]
    v_add_u32 v33, v33, v31
    s_add_u32 s44, s44, 1
    s_sub_u32 s45, 32, s44
    v_mov_b32 v34, s44
    v_mov_b32 v35, s45
    v_cndmask_b32 v34, v34, v35, s[64:65]
    v_add_u32 v34, v34, v31
    v_cmp_eq_u32 vcc, 0, v33
    v_mov_b32 v35, 0x100
    v_mov_b32 v37, {fbits(1/math.sqrt(512))}
    v_cndmask_b32 v35, v33, v35, vcc
    v_cndmask_b32 v37, v36, v37, vcc
    s_lshl_b32 s45, s62, 11
    s_add_u32 s66, s61, s45""")
    for e in range(8):
        src = 'v35' if e == 0 else None
        if e: k(f'v_add_u32 v{40+e}, {32*(e&3)}, v{33+(e>>2)}')
        k(f'v_mul_u32_u24 v{40+e}, {src or V(40+e)}, v30')
        k(f'v_and_b32 v{40+e}, 0x3ff, v{40+e}')
        k(f'v_cvt_f32_u32 v{40+e}, v{40+e}')
        k(f'v_mul_f32 v{40+e}, {fbits(1/1024)}, v{40+e}')
    for e in range(8):
        k(f'v_cos_f32 v{48+e}, v{40+e}\n v_sin_f32 v{56+e}, v{40+e}')
    for e in range(8):
        sc = 'v37' if e == 0 else 'v36'
        k(f'v_mul_f32 v{48+e}, {sc}, v{48+e}\n v_mul_f32 v{56+e}, {sc}, -v{56+e}')
    for part in range(2):
        for h in range(4): k(f'v_cvt_pk_bf16_f32 v{64+4*part+h}, v{48+8*part+2*h}, v{48+8*part+2*h+1}')
        k(f'buffer_store_dwordx4 {V(64+4*part,4)}, v4, {WSR}, s66 offen offset:{1024*part}{ST}')
    k('s_add_u32 s62, s62, 1\n s_cmp_lt_u32 s62, s63\n s_cbranch_scc1 L_inv')
    go_load(k, 250)
    stamp(k, 2)

WDL, WDO = 128, 48
def wd_task(k):
    k(f"""s_lshl_b32 s44, {WAVE}, 7
    s_add_u32 s44, s44, s2
    s_sub_u32 s44, s44, 128
    s_min_u32 s44, s44, 352""")
def wd_issue(k):
    srd(k, 36, 16, F*D*2)
    wd_task(k)
    k(f"""s_and_b32 s45, s44, 1
    s_lshr_b32 s44, s44, 1
    s_lshl_b32 s44, s44, 13
    s_lshl_b32 s45, s45, 9
    s_add_u32 s56, s44, s45
    s_add_u32 s57, s56, 4096
    v_lshlrev_b32 v20, 3, v1""")
    return [f'buffer_load_dwordx2 {V(WDL+2*e,2)}, v20, {RC}, s{56+(e>>2)} offen offset:{1024*(e&3)}{OPT.get("ntd", "")}' for e in range(8)]
def wd_pack(k):
    for pi in range(4):
        for h in range(4): k(f'v_perm_b32 v{WDO+4*pi+h}, v{WDL+4*h+2+(pi>>1)}, v{WDL+4*h+(pi>>1)}, s{53+(pi&1)}')
def wd_finish(k):
    wd_task(k)
    k(f's_cmp_lt_u32 s2, {NZ}\n s_cselect_b32 s73, s44, 352\n s_cmp_ge_u32 s73, 352\n s_cbranch_scc1 L_nowd')
    st = k.state()
    k(f"""s_lshr_b32 s44, s73, 4
    s_bfe_u32 s45, s73, 0x20002
    s_lshl_b32 s44, s44, 11
    s_mul_i32 s45, s45, {WDS}
    s_add_u32 s44, s44, s45
    s_and_b32 s45, s73, 1
    s_mul_i32 s45, s45, {16*WDS}
    s_add_u32 s44, s44, s45
    s_bfe_u32 s45, s73, 0x10001
    s_lshl_b32 s45, s45, 9
    s_add_u32 s44, s44, s45
    s_add_u32 s44, s44, {WD}
    v_mul_u32_u24 v30, {4*WDS}, v2
    v_bfe_u32 v31, v1, 3, 1
    v_lshl_add_u32 v30, v31, 10, v30
    v_and_b32 v31, 7, v1
    v_lshl_add_u32 v30, v31, 4, v30""")
    for pi in range(4): k(f'buffer_store_dwordx4 {V(WDO+4*pi,4)}, v30, {WSR}, s44 offen offset:{128*pi}{ST}')
    k.fence()
    k.restore(st); k.label('L_nowd')

STATL = 131072
def p4_ids(k):
    k(f"""s_and_b32 s44, s2, 7
    s_lshl_b32 s44, s44, 2
    s_bfe_u32 s46, s2, 0x20003
    s_add_u32 s44, s44, s46
    s_lshr_b32 s45, s2, 5""")

def setup(k):
    if OPT.get('x216'):
        k(f"""s_and_b32 s44, s2, 7
        s_lshl_b32 s44, s44, 1
        s_bfe_u32 s45, s2, 0x10003
        s_add_u32 s48, s44, s45
        s_lshr_b32 s49, s2, 4
        s_lshl_b32 s45, s45, 2
        s_mov_b32 s46, s49""")
    elif OPT.get('x48'):
        k(f"""s_and_b32 s44, s2, 3
        s_lshl_b32 s44, s44, 2
        s_bfe_u32 s45, s2, 0x20003
        s_add_u32 s48, s44, s45
        s_and_b32 s44, s2, 4
        s_lshl_b32 s44, s44, 1
        s_lshr_b32 s46, s2, 5
        s_add_u32 s49, s44, s46
        s_lshl_b32 s45, s45, 1""")
    else:
        k(f"""s_and_b32 s44, s2, 1
        s_lshl_b32 s44, s44, 3
        s_bfe_u32 s45, s2, 0x30003
        s_add_u32 s48, s44, s45
        s_bfe_u32 s44, s2, 0x20001
        s_lshl_b32 s44, s44, 2
        s_lshr_b32 s46, s2, 6
        s_add_u32 s49, s44, s46
        s_lshl_b32 s46, s46, 1""")
    k(f"""s_mov_b32 s53, 0
    s_lshl_b32 s46, s48, 11
    s_lshl_b32 s47, s49, 7
    s_add_u32 s41, s46, s47
    s_add_u32 s41, s41, {RBF}
    v_mov_b32 v250, 0""")
    stamp(k, 7, 'z')
    k(f"""s_and_b32 s74, s2, 7
    s_lshl_b32 s74, s74, 8
    s_add_u32 s75, s74, {FLG}
    s_and_b32 s44, s2, 1
    s_mul_i32 s44, s44, 44
    s_bfe_u32 s45, s2, 0x20001
    s_mul_i32 s45, s45, 11
    s_add_u32 s44, s44, s45
    s_bfe_u32 s45, s2, 0x40003
    s_add_u32 s44, s44, s45
    s_sub_u32 s45, s2, {NI0-88}
    s_cmp_ge_u32 s2, {NI0}
    s_cselect_b32 s44, s45, s44
    s_cselect_b32 s46, 0, s2
    s_lshl_b32 s44, s44, 7
    s_add_u32 s71, s44, {FLG+16384}
    s_cmp_lt_u32 s2, {NZ}
    s_cselect_b32 s71, 0, s71
    s_cmp_ge_u32 s46, {NC0}
    s_cselect_b32 s71, 0, s71
    v_mov_b32 v251, 1
    s_mov_b32 s63, 0x80008000""")

def twiddles(k):
    k(f"""s_lshl_b32 s44, {WAVE}, 4
    v_add_u32 v240, s44, v3
    v_cvt_f32_u32 v240, v240
    v_mul_f32 v240, {fbits(1/2048)}, v240
    v_lshlrev_b32 v241, 2, v2
    v_add_u32 v242, s44, v241
    v_cvt_f32_u32 v241, v241
    v_cvt_f32_u32 v242, v242
    v_cvt_f32_u32 v243, v3
    v_mul_f32 v243, {fbits(1/2048)}, v243""")
    for be in range(2):
        for r in range(4):
            t = TW1 + 8*be + r
            k(f'v_add_f32 v{t}, {fbits(16*be+r)}, v241\n v_mul_f32 v{t}, v{t}, v240')
            k(f'v_sin_f32 v{t+4}, v{t}\n v_cos_f32 v{t}, v{t}')
    for be in range(2):
        if be: k(f'v_add_f32 v243, {fbits(16/2048)}, v243')
        for r in range(4):
            t = TW2 + 8*be + r
            k(f'v_add_f32 v{t}, {fbits(r)}, v242\n v_mul_f32 v{t}, v{t}, v243')
            k(f'v_sin_f32 v{t+4}, v{t}\n v_cos_f32 v{t}, v{t}')

def setup_late(k, part=None):
    k(f"""s_mul_i32 s44, s49, 11
    s_add_u32 s45, s44, 10
    s_lshr_b32 s44, s44, 2
    s_lshr_b32 s45, s45, 2
    v_and_b32 v23, 3, v1
    v_add_u32 v23, s44, v23
    v_min_u32 v23, s45, v23
    v_bfe_u32 v240, v1, 2, 1
    v_mul_u32_u24 v240, 44, v240
    v_add_u32 v23, v23, v240
    s_lshr_b32 s44, s49, 1
    s_add_u32 s44, s44, 88
    v_mov_b32 v240, s44
    v_cmp_gt_u32 vcc, 8, v1
    v_cndmask_b32 v23, v240, v23, vcc
    v_lshlrev_b32 v23, 7, v23
    v_add_u32 v23, {FLG+16384}, v23""")
    if part != 'addr': twiddles(k)
    for u in range(4):
        k(f's_add_u32 s45, {WAVE}, {u}\n s_and_b32 s45, s45, 3\n s_lshl_b32 s45, s45, 11\n v_add_u32 v{16+u}, s45, v4')
    k(f"""s_and_b32 s58, s2, 0xf6
    s_bfe_u32 s45, s2, 0x10003
    s_add_u32 s58, s58, s45
    s_and_b32 s45, s2, 1
    s_lshl_b32 s45, s45, 3
    s_add_u32 s58, s58, s45
    s_lshl_b32 s44, s58, 6
    s_lshl_b32 s45, {WAVE}, 19
    s_add_u32 s44, s44, s45
    s_add_u32 s55, s44, {ZT}
    s_add_u32 s56, s55, 0x10000
    s_lshr_b32 s44, s58, 4
    s_sub_u32 s45, 32, s44
    s_cmp_eq_u32 s44, 0
    s_cselect_b32 s45, 16, s45
    s_bitcmp1_b32 s58, 3
    s_cselect_b32 s44, s45, s44
    s_and_b32 s45, s58, 7
    s_lshl_b32 s45, s45, 5
    s_add_u32 s44, s44, s45
    s_sub_u32 s44, s44, 1
    s_and_b32 s44, s44, 255
    s_lshl_b32 s44, s44, 7
    s_lshl_b32 s45, {WAVE}, 16
    s_add_u32 s44, s44, s45
    s_add_u32 s59, s44, {WT}
    s_add_u32 s60, s59, 0x100000
    v_and_b32 v15, 7, v1
    v_lshlrev_b32 v15, 4, v15
    v_bfe_u32 v14, v1, 3, 1
    v_lshl_add_u32 v15, v14, 15, v15
    v_lshl_add_u32 v15, v2, 18, v15
    s_lshl_b32 s45, {WAVE}, 12
    s_add_u32 s61, s45, {SM}
    v_lshrrev_b32 v21, 2, v3
    v_lshlrev_b32 v21, 7, v21
    v_lshl_add_u32 v21, v2, 10, v21
    v_and_b32 v22, 3, v1
    v_lshlrev_b32 v14, 4, v22
    v_lshl_add_u32 v14, v21, 7, v14
    v_lshl_add_u32 v22, v22, 4, v21
    s_mov_b32 s63, 0x80008000""")

def setup2(k):
    k(f"""v_lshrrev_b32 v20, 2, v1
    v_lshlrev_b32 v20, 15, v20
    v_and_b32 v24, 3, v1
    v_lshl_add_u32 v20, v24, 4, v20
    s_lshr_b32 s44, s58, 5
    s_lshl_b32 s44, s44, 6
    s_and_b32 s45, s58, 31
    s_add_u32 s44, s44, s45
    s_lshl_b32 s44, s44, 6
    s_lshl_b32 s45, {WAVE}, 19
    s_add_u32 s44, s44, s45
    s_add_u32 s62, s44, {HT}
    s_mul_i32 s44, s49, 11
    s_mul_i32 s45, {WAVE}, 3
    s_add_u32 s50, s44, s45
    s_add_u32 s44, s50, s49
    s_mul_i32 s44, s44, {WPS}
    s_add_u32 s44, s44, {WP}
    v_add_u32 v248, s44, v4
    v_add_u32 v249, {WPS}, v248
    v_add_u32 v255, {2*WPS}, v248
    s_and_b32 s46, {WAVE}, 1
    s_lshr_b32 s47, {WAVE}, 1
    s_lshl_b32 s45, s46, 15
    s_lshl_b32 s54, s47, 12
    s_add_u32 m0, s54, s45
    s_lshl_b32 s44, s48, 17
    s_add_u32 s44, s44, {HT}
    v_and_b32 v6, 1, v2
    v_lshlrev_b32 v6, 5, v6
    v_xor_b32 v5, v6, v4
    v_add_u32 v5, s44, v5
    v_lshrrev_b32 v7, 2, v1
    v_lshl_add_u32 v6, v7, 6, v6
    v_lshl_add_u32 v6, v24, 3, v6
    s_lshl_b32 s44, s47, 5
    s_add_u32 s44, s44, s45
    v_xor_b32 v6, s44, v6
    v_xor_b32 v7, 32, v6
    v_lshrrev_b32 v9, 2, v3
    v_cmp_eq_u32 vcc, v9, v2
    s_lshl_b32 s47, s47, 8
    s_lshl_b32 s44, s46, 9
    s_add_u32 s44, s44, s47
    s_add_u32 s44, s44, {STATL}
    v_lshl_add_u32 v10, v3, 4, s44     ; statistics reads
    v_xor_b32 v8, 0x100, v10
    v_add_u32 v9, {STATL+2048}, v4
    v_cndmask_b32 v9, v9, v10, vcc     ; statistics write (other lanes go to a dummy area)
    v_lshrrev_b32 v24, 1, v2
    v_lshlrev_b32 v11, 8, v24
    v_xor_b32 v11, v11, v10            ; statistics for the mixed tile
    s_mov_b32 s64, 0x22222222
    s_mov_b32 s65, s64
    s_mov_b32 s66, 0x44444444
    s_mov_b32 s67, s66
    s_mov_b32 s68, 0x88888888
    s_mov_b32 s69, s68
    v_add_u32 v25, s50, v24
    v_lshrrev_b32 v12, 1, v25
    v_mul_u32_u24 v12, {HFS}, v12
    v_and_b32 v25, 1, v25
    v_lshl_add_u32 v12, v25, 9, v12
    v_and_b32 v25, 0x1f0, v4
    v_xor_b32 v25, s47, v25
    v_add_u32 v12, v25, v12
    s_add_u32 s44, s50, 2
    s_lshr_b32 s45, s44, 1
    s_mul_i32 s45, s45, {HFS}
    s_and_b32 s44, s44, 1
    s_lshl_b32 s44, s44, 9
    s_add_u32 s44, s44, s45
    v_lshlrev_b32 v13, 8, v24
    v_xor_b32 v13, s47, v13
    v_add_u32 v13, s44, v13
    v_lshl_add_u32 v13, v3, 4, v13
    v_and_b32 v25, 1, v2
    v_xor_b32 v25, 1, v25
    v_lshlrev_b32 v25, 10, v25
    s_lshl_b32 s44, s46, 1
    s_sub_u32 s44, 1, s44
    v_mul_i32_i24 v25, s44, v25
    v_sub_u32 v13, v13, v25""")
    wsrd(k, 32, HF+86*HFS)
    if OPT.get('wtouch'):
        k(f"""s_and_b32 s44, s48, 7
        s_lshl_b32 s44, s44, 11
        v_sub_u32 v14, v248, v4
        v_lshl_add_u32 v14, v2, 14, v14
        v_lshl_add_u32 v14, v3, 7, v14
        v_add_u32 v14, s44, v14
        v_cmp_gt_u32 vcc, 3, v2
        v_cndmask_b32 v14, -1, v14, vcc""")

def p2_negs(k, base):
    for u in range(4):
        for h in range(2): k(f'v_xor_b32 v{base+6*u+h}, s63, v{base+6*u+4+h}')

def wd_reg(u, i): return A(192+8*u+4*i, 4) if u < 8 else V(144+8*(u-8)+4*i, 4)
def wd_loads(u):
    o = [f'buffer_load_dwordx4 {wd_reg(u+s,i)}, v15, {WSR}, s51 offen offset:{2048*s+1024*i}{LD}' for s in range(2) for i in range(2)]
    return o + ['s_add_u32 s51, s51, 4096']
def wloads(R=RA):
    return [f'buffer_load_dwordx4 {A(12*ka+4*t,4)}, v{(248, 249, 255)[t]}, {R}, {("0", "s70", "s71", "s72")[ka>>2]} offen offset:{1024*(ka&3)}{LD}' for ka in range(16) for t in range(3)]

def p2(k):
    Z, WW, SG, DD, TT, PK = 32, 64, 80, 88, 104, 240
    for u in range(1 if not OPT.get('zall') else 4):
        for be in range(2): k(f'buffer_load_dwordx4 {V(Z+8*u+4*be,4)}, v14, {WSR}, s{55+be} offen{LD}')
    lds_ = f"""buffer_load_dwordx4 {V(WW+4,4)}, v15, {WSR}, s59 offen{LD}
    buffer_load_dwordx4 {V(WW+12,4)}, v15, {WSR}, s60 offen{LD}
    buffer_load_dwordx4 {V(SG,4)}, v22, {WSR}, s61 offen{LD}
    buffer_load_dwordx4 {V(SG+4,4)}, v22, {WSR}, s61 offen offset:512{LD}""".split('\n')
    lds_.insert(OPT.get('fpos', 2), f'buffer_load_dword v26, v23, {WSR}, 0 offen{LD}')
    if OPT.get('wnow'):
        for t in lds_: k(t)
    else:
        k.sprinkle = [t.strip() for t in lds_]; k.every = 60; k.since = 0
    setup2(k); flush(k)
    k(f"""s_mov_b32 s28, s24
    s_mov_b32 s29, s25
    s_mov_b32 s31, 0x20000
    s_mov_b32 s36, s24
    s_mov_b32 s37, s25
    s_mov_b32 s39, 0x20000
    s_mov_b32 s70, 4096
    s_mov_b32 s71, 8192
    s_mov_b32 s72, 12288""")
    def check1():
        k(f'v_cmp_ne_u32 vcc, 1, v26\n s_cmp_eq_u64 vcc, 0\n s_cselect_b32 s30, {WS_USED}, 0')
        k(f'buffer_load_dword v27, v23, {WSR}, 0 offen{LD}')
        if OPT.get('wtouch'): k(f'buffer_load_dword v25, v14, {RA}, 0 offen{LD}')
        k.sprinkle = wloads(); k.every = OPT.get('every', 64); k.since = 100; k.lazy = OPT.get('lazy', 1)
    def unpack():
        for t in range(2):
            for r in range(4):
                k(f'v_lshlrev_b32 v{WW+8*t+r}, 16, v{WW+8*t+4+r}\n v_and_b32 v{WW+8*t+4+r}, 0xffff0000, v{WW+8*t+4+r}')
    if not OPT.get('zall'):
        for be in range(2): k(f'ds_write_b128 v16, {V(Z+4*be,4)} offset:{8192+1024*be}')
    for u in range(4):
        for be in range(2):
            for o in range(2):
                d = V(DD+8*be+4*o, 4)
                k(f'v_mfma_f32_16x16x32_f16 {d}, {V(Z+8*u+4*be,4)}, {V(B1+6*u+2-2*o,4)}, {"0" if u==0 else d}')
        if u == 0:
            stamp(k, 5); stamp(k, 2, 'b')
            if not OPT.get('zall'):
                k.wait(lg=0); k('s_barrier')
                for v in range(1, 4):
                    for be in range(2): k(f'ds_read_b128 {V(Z+8*v+4*be,4)}, v{16+v} offset:{8192+1024*be}')
                if OPT.get('c1') == 0: check1()
    if OPT.get('c1') == 1: check1()
    E = Z + 8
    for be in range(2):
        cmul(k, DD+8*be, DD+8*be+4, TW1+8*be, TW1+8*be+4, TT, TT+4, True)
        for h in range(4): k(f'v_cvt_pk_f16_f32 v{PK+4*be+h}, v{TT+2*h}, v{TT+2*h+1}')
        for t in range(2):
            for o in range(2):
                d = V(E+8*t+4*o, 4)
                k(f'v_mfma_f32_16x16x32_f16 {d}, {V(A2+6*(2*t+be)+2-2*o,4)}, {V(PK+4*be,4)}, {"0" if be==0 else d}')
    def check2():
        global n1
        n1 = 48 - len(k.sprinkle); k.sprinkle = []
        k(f'v_cmp_ne_u32 vcc, 1, v27\n s_cmp_eq_u64 vcc, 0\n s_cselect_b32 s38, {WS_USED}, 0')
        if OPT.get('wtouch') == 2: k(f's_sub_u32 s44, {WS_USED}, s30\n s_cselect_b32 s44, 0, 0\n s_cmp_eq_u32 s30, 0\n s_cselect_b32 s44, 0, {WS_USED}\n buffer_load_dword v25, v14, {RC}, s44 offen{LD}')
        k.sprinkle = wloads(RC)[n1:]
    if OPT.get('c1') == 2: check1()
    unpack()
    stamp(k, 3, 'b')
    if OPT.get('c2', 0) == 0: check2()
    for t in range(2):
        cmul(k, E+8*t, E+8*t+4, WW+8*t, WW+8*t+4, TT, TT+4, False)
        for h in range(4): k(f'v_cvt_pk_bf16_f32 v{PK+4*t+h}, v{TT+2*h}, v{TT+2*h+1}')
        for be in range(2):
            for o in range(2):
                d = V(DD+8*be+4*o, 4)
                k(f'v_mfma_f32_16x16x32_bf16 {d}, {V(PK+4*t,4)}, {V(B3+6*(2*be+t)+2-2*o,4)}, {"0" if t==0 else d}')
    if OPT.get('c2', 0) == 1: check2()
    for be in range(2):
        cmul(k, DD+8*be, DD+8*be+4, TW2+8*be, TW2+8*be+4, TT, TT+4, False)
        for h in range(4): k(f'v_cvt_pk_bf16_f32 v{PK+4*be+h}, v{TT+2*h}, v{TT+2*h+1}')
        k(f'ds_write_b128 v16, {V(PK+4*be,4)} offset:{1024*be}')
    def step4(u, src):
        for be in range(2):
            for o in range(2):
                d = V(DD+8*be+4*o, 4)
                k(f'v_mfma_f32_16x16x32_bf16 {d}, {V(A4+6*u+2-2*o,4)}, {V(src+4*be,4)}, {d}')
    for o in range(2):
        for be in range(2):
            for r in range(4):
                d = DD+8*be+4*o+r; hi = r & 1
                k(f'v_fma_mix_f32 v{d}, v{SG+4*be+r}, v{Z+4*be+2*o+(r>>1)}, 0 op_sel:[0,{hi},0] op_sel_hi:[0,1,0]')
    stamp(k, 4, 'b')
    k.wait(lg=0); k('s_barrier')
    for u in range(1, 4):
        for be in range(2): k(f'ds_read_b128 {V(Z+8*u+4*be,4)}, v{16+u} offset:{1024*be}')
    step4(0, PK)
    for u in range(1, 4): step4(u, Z+8*u)
    OUT = 64
    rest, k.sprinkle = k.sprinkle, []
    for o in range(2):
        for be in range(2):
            for h in range(2): k(f'v_cvt_pk_bf16_f32 v{OUT+4*o+2*be+h}, v{DD+8*be+4*o+2*h}, v{DD+8*be+4*o+2*h+1}')
    k('s_cmp_lg_u32 s2, 0\n s_cbranch_scc1 L_p2_st')
    for h in range(4): k(f'v_mov_b32 v{OUT+4+h}, v{OUT+h}\n v_mov_b32 v{OUT+h}, 0')
    k.label('L_p2_st')
    for o in range(2): k(f'buffer_store_dwordx4 {V(OUT+4*o,4)}, v20, {WSR}, s62 offen offset:{2048*o}{ST}')
    stamp(k, 5, 'b')
    return rest

def barrier2(k, rest):
    print('weight loads left after phase 2:', len(rest))
    k(f's_lshl_b32 s44, s48, 12\n s_add_u32 s44, s44, {HF}')
    k(f's_and_b32 s46, {WAVE}, 1')
    for p in range(4): k(f's_xor_b32 s45, s46, {p}\n s_lshl_b32 s45, s45, 10\n s_add_u32 s{55+p}, s44, s45')
    k(f"""s_lshl_b32 s44, s49, 17
    s_lshl_b32 s45, s48, 11
    s_add_u32 s44, s44, s45
    s_add_u32 s59, s44, {HRES}
    s_add_u32 s60, s59, 0x10000
    s_lshl_b32 s44, s48, 10
    s_add_u32 s61, s44, {SM+64}
    s_mov_b32 s46, 0""")
    print('group 1:', n1)
    stamp(k, 6)
    nA = min(OPT.get('nA', 12), len(rest)); nB = min(OPT.get('nB', 48), len(rest) - nA)
    n2 = 48 - len(rest) + nA
    for t in rest[:nA]: k(t)
    rest = [t.replace(RC, WSR) for t in rest]
    stamp(k, 6, 'b')
    k(f'v_mov_b32 v250, 0\n v_mov_b32 v251, 1\n s_cmp_lg_u32 {WAVE}, 0\n s_cbranch_scc1 L_b2o')
    st = k.state()
    k(f's_mov_b64 exec, 1\n s_waitcnt vmcnt({nA})'); stamp(k, 7, 'b'); k('s_barrier'); stamp(k, 8, 'b')
    k(f'buffer_atomic_add v251, v250, {WSR}, s74 offen sc0 sc1')
    k('s_barrier')
    stamp(k, 9, 'b'); arrive_check(k, 250, 's75', 51, 2); stamp(k, 10, 'b')
    if OPT.get('hold'): k('s_barrier')
    k('s_mov_b64 exec, -1\n s_branch L_b2m')
    k.restore(st); k.label('L_b2o')
    k(f's_waitcnt vmcnt({nA})'); stamp(k, 7, 'b'); k('s_barrier'); stamp(k, 8, 'b')
    k('s_barrier')
    if OPT.get('hold'): k('s_barrier')
    stamp(k, 9, 'b'); stamp(k, 10, 'b')
    k.label('L_b2m')
    k(f's_cmp_lg_u32 s30, 0\n s_cbranch_scc1 L_bok')
    st = k.state()
    k(f's_cmp_lg_u32 s38, 0\n s_cbranch_scc1 L_bok2')
    k.label('L_bchk')
    k(f"""buffer_load_dword v26, v23, {WSR}, 0 offen{LD}
    s_add_u32 s46, s46, 1
    s_waitcnt vmcnt(0)
    v_cmp_ne_u32 vcc, 1, v26
    s_cmp_gt_u32 s46, {SPIN}
    s_cbranch_scc1 L_bgo
    s_cbranch_vccnz L_bchk""")
    k.label('L_bgo')
    for t in wloads(WSR)[n1:n2]: k(t)
    k.label('L_bok2')
    for t in wloads(WSR)[:n1]: k(t)
    k.restore(st)
    k.label('L_bok')
    for t in rest[nA:nA+nB]: k(t)
    if OPT.get('retouch'):
        def rt():
            k('s_lshr_b32 s44, s2, 3\n s_lshl_b32 s44, s44, 10\n v_lshl_add_u32 v252, v3, 6, s44')
            k.raw('    v_min_u32 v252, L_notz-L_b2x-4, v252\n    s_sub_u32 s44, s42, tables-L_b2x\n    s_subb_u32 s45, s43, 0'); k.pos += 3
            k('v_mov_b32 v253, s45\n v_add_co_u32 v252, vcc, s44, v252\n v_addc_co_u32 v253, vcc, 0, v253, vcc\n s_mov_b64 exec, 0xffff\n global_load_dword v254, v[252:253], off')
        only_wave(k, 2, rt)
    only_wave(k, 0, lambda: poll(k, 250, 2))
    global late_w
    late_w = rest[nA+nB:]
    def hw():
        k('v_bfe_u32 v16, v1, 2, 1\n v_lshlrev_b32 v16, 9, v16\n v_bfe_u32 v17, v1, 3, 1\n v_lshl_add_u32 v16, v17, 4, v16\n v_and_b32 v17, 3, v1\n v_lshl_add_u32 v16, v17, 2, v16')
        for j in range(8): k(f'buffer_load_dword v{MUV+j}, v16, {WSR}, s61 offen offset:{128*((j^3)>>1)+32*((j^3)&1)}{LD}')
    global hw_means, st3
    hw_means = hw
    k(f's_cmp_eq_u32 {WAVE}, 3\n s_cbranch_scc1 L_p3h')
    st3 = k.state()
    if OPT.get('isl'):
        k(f's_mov_b64 exec, 0\n s_cmp_eq_u32 {WAVE}, 1\n s_cbranch_scc1 L_isl0_0\n s_branch L_isl0_{OPT.get("islmid", 32)}')
        k.label('L_islret0'); k('s_mov_b64 exec, -1')
    k.label('L_b2x')

ACT, ACC, TM, STV, MUV = 32, 64, 128, 16, 24
def cost(t):
    m = t.split()[0]
    if m.startswith('buffer'): return 18 + 4 * t.count('\n')
    if m.startswith(('v_exp', 'v_rcp', 'v_rsq', 'v_permlane', 'ds_write')): return 8
    return 4 * (t.count('\n') + 1)

def p3_body(k, hw):
    acc = lambda p, n, m, par=0: ACC + 32*(p & 1) + 8*(n + (par if n == 2 and hw else 0)) + 4*m
    GR = 28 if not hw else TM + 12
    dma_pos = []
    def dma(j):
        return f'buffer_load_dwordx4 v5, {WSR}, m0 offen offset:{1024*(j&3)}{LD} lds'
    def m0step(j): return [f's_add_u32 m0, m0, {8192 + (32768 if j == 15 else 0)}'] if j & 3 == 3 and j < 31 else []
    def slot(g, m): return ACT + 8*(g & 3) + 4*m
    def reads(g):
        p, ka = divmod(g, 16); o = []
        if p and ka == 0:
            x = (p ^ (p-1)) << 15
            o = [f'v_xor_b32 v6, {x:#x}, v6', f'v_xor_b32 v7, {x:#x}, v7']
        return o + [f'ds_read_b64_tr_b16 {V(slot(g,m)+2*h,2)}, v{6+m} offset:{2048*ka+1024*h}' for m in range(2) for h in range(2)]
    def chains(p, J):
        if p == 3:
            P = J[::2]
            o = [f'v_pk_mul_f32 {V(t,2)}, {V(g,2)}, {V(g,2)}' for g, u, t, c in P]
            o += [f'v_pk_fma_f32 {V(t,2)}, {V(t,2)}, {V(c,2)}, {V(c,2)} op_sel:[0,1,0] op_sel_hi:[1,1,0]' for g, u, t, c in P]
            o += [f'v_pk_mul_f32 {V(t,2)}, {V(t,2)}, {V(g,2)}' for g, u, t, c in P]
            o += [f'v_exp_f32 v{t}, v{t}' for g, u, t, c in J]
            o += [f'v_pk_mul_f32 {V(g,2)}, {V(g,2)}, {V(u,2)}' for g, u, t, c in P]
            o += [f'v_pk_fma_f32 {V(t,2)}, {V(t,2)}, {V(c+2,2)}, {V(c+2,2)} op_sel_hi:[1,0,0]' for g, u, t, c in P]
            o += [f'v_rcp_f32 v{t}, v{t}' for g, u, t, c in J]
            o += [f'v_pk_mul_f32 {V(g,2)}, {V(g,2)}, {V(t,2)}' for g, u, t, c in P]
            return o
        o = [f'v_mul_f32 v{t}, v{g}, v{g}' for g, u, t, c in J]
        o += [f'v_mul_f32 v{u}, v{g}, v{u}' for g, u, t, c in J]
        o += [f'v_fma_f32 v{t}, v{t}, v{c+1}, v{c}' for g, u, t, c in J]
        o += [f'v_mul_f32 v{t}, v{t}, v{g}' for g, u, t, c in J]
        o += [f'v_exp_f32 v{t}, v{t}' for g, u, t, c in J]
        o += [f'v_fma_f32 v{t}, v{t}, v{c+2}, v{c+2}' for g, u, t, c in J]
        o += [f'v_rcp_f32 v{t}, v{t}' for g, u, t, c in J]
        o += [f'v_mul_f32 v{g}, v{u}, v{t}' for g, u, t, c in J]
        return o
    def epilogue(p):
        HA, HX = TM + 8, TM + 12
        J = [(acc(p, 0, m)+r, acc(p, 1, m)+r, TM+4*m+r, STV+4*m) for m in range(2) for r in range(4)]
        o = []
        if not hw: o += [f'v_permlane32_swap_b32 v{acc(p,2,0)+r}, v{acc(p,2,1)+r}' for r in range(4)]
        o += chains(p, J)
        o += [f'v_cvt_pk_bf16_f32 v{HA+2*m+h}, v{acc(p,0,m)+2*h}, v{acc(p,0,m)+2*h+1}' for h in range(2) for m in range(2)]
        tail = [f'v_permlane16_swap_b32 v{HA}, v{HA+2}', f'v_permlane16_swap_b32 v{HA+1}, v{HA+3}',
                f'buffer_store_dwordx4 {V(HA,4)}, v12, {RB}, s{55+p} offen{ST}']
        if not hw:
            x = chains(p, [(acc(p, 2, 0)+r, acc(p, 2, 1)+r, TM+r, STV+8) for r in range(4)])
            o += x[:2] + tail + x[2:]
            o += [f'v_cvt_pk_bf16_f32 v{HX+2*(p&1)+h}, v{acc(p,2,0)+2*h}, v{acc(p,2,0)+2*h+1}' for h in range(2)]
            if p & 1: o += [f'v_permlane16_swap_b32 v{HX}, v{HX+2}', f'v_permlane16_swap_b32 v{HX+1}, v{HX+3}',
                            f'buffer_store_dwordx4 {V(HX,4)}, v13, {RB}, s{55+p} offen{ST}']
        else:
            for m in range(2):
                e, od = acc(p, 2, m), acc(p, 2, m, 1); t = TM
                o += [f'v_add_f32 v{e+r}, v{e+r}, v{MUV+2*p+m}' for r in range(4)]
                if m == 0: o += tail
                for r in range(4): o += [f'v_add_f32 v{t+r}, v{e+r}, v{od+r}', f'v_sub_f32 v{t+4+r}, v{e+r}, v{od+r}']
                P0, P1 = acc(p, 2, 0), acc(p, 2, 0, 1)
                o += [f'v_cvt_pk_bf16_f32 v{P0+2*m}, v{t}, v{t+1}', f'v_cvt_pk_bf16_f32 v{P0+2*m+1}, v{t+2}, v{t+3}',
                      f'v_cvt_pk_bf16_f32 v{P1+2-2*m}, v{t+7}, v{t+6}', f'v_cvt_pk_bf16_f32 v{P1+3-2*m}, v{t+5}, v{t+4}']
            off = 512*(p ^ 1)
            o += [f'v_permlane16_swap_b32 v{P0}, v{P0+2}', f'v_permlane16_swap_b32 v{P0+1}, v{P0+3}',
                  f'buffer_store_dwordx4 {V(P0,4)}, v13, {WSR}, s59 offen offset:{off}{ST}',
                  f'v_permlane16_swap_b32 v{P1+2}, v{P1}', f'v_permlane16_swap_b32 v{P1+3}, v{P1+1}',
                  f'buffer_store_dwordx4 {V(P1,4)}, v14, {WSR}, s60 offen offset:{off}{ST}']
        return o
    def stats(p):
        K0 = -2*math.sqrt(2/math.pi)*math.log2(math.e); b = GR
        return [f'v_cndmask_b32 v{b}, v{b}, v{b+1}, s[64:65]', f'v_cndmask_b32 v{b}, v{b}, v{b+2}, s[66:67]', f'v_cndmask_b32 v{b}, v{b}, v{b+3}, s[68:69]',
                f'v_mov_b32 v{b+2}, {fbits(1e-5)}', f'v_fmac_f32 v{b+2}, {fbits(1/512)}, v{b}', f'v_rsq_f32 v{b+3}, v{b+2}',
                f'v_mul_f32 v{b}, {fbits(K0)}, v{b+3}', f'v_mul_f32 v{b+3}, v{b+3}, v{b+3}', f'v_mul_f32 v{b+1}, {fbits(0.044715)}, v{b}', f'v_mul_f32 v{b+1}, v{b+1}, v{b+3}',
                f'ds_write_b128 v9, {V(b,4)} offset:{512*p}']
    def getstats(p):
        R = [(10, STV), (8, STV+4)] + ([] if hw else [(11, STV+8)])
        o = [f'v_xor_b32 v{a}, 0x200, v{a}' for a, _ in R] if p else []
        return o + [f'ds_read_b128 {V(d,4)}, v{a} offset:{1024*(p>>1)}' for a, d in R]
    def issue_dma(j): k(dma(j)); dma_pos.append(k.nvm)
    if hw:
        hw_means()
        if OPT.get('isl'):
            k('s_mov_b64 exec, 0\n s_branch L_isl1_0'); k.label('L_islret1'); k('s_mov_b64 exec, -1')
    k('s_barrier')
    stamp(k, 7); stamp(k, 11, 'b')
    def island(g):
        G = OPT.get('isl')
        if not G or g % G: return
        mid = OPT.get('islmid', 32)
        k.label(f'L_isl{int(hw)}_{g}')
        k(f's_cbranch_execz L_isl{int(hw)}_{g+G}' if g + G < 64 and (hw or g + G != mid) else (f's_cbranch_execz L_islret{int(hw)}' if g + G >= 64 else f's_cbranch_execz L_islret0'))
    DP = OPT.get('dpre', 16)
    for j in range(DP):
        issue_dma(j)
        for t in m0step(j): k(t)
    if hw: k('v_and_b32 v13, 0x1f0, v4\n v_xor_b32 v13, 0x100, v13\n v_lshrrev_b32 v14, 5, v1\n v_lshl_add_u32 v13, v14, 15, v13\n v_xor_b32 v14, 0x8000, v13')
    p4_ids(k)
    k(f"""s_mov_b32 s51, 0
    s_lshl_b32 s45, s45, 2
    s_add_u32 s45, s45, {WAVE}
    s_mul_i32 s45, s45, {WDS}
    s_add_u32 s45, s45, {WD}
    v_add_u32 v15, s45, v4
    s_lshr_b32 s46, s44, 1
    s_lshl_b32 s45, s46, 11
    s_add_u32 s62, s45, {RBF}
    s_add_u32 s63, s62, 0x8000
    s_lshl_b32 s46, s46, 2
    s_and_b32 s44, s44, 1
    s_add_u32 s73, s46, s44
    s_lshl_b32 s46, s73, 10
    s_mul_i32 s47, {WAVE}, {HFS}
    s_add_u32 s46, s46, s47
    s_add_u32 s74, s46, {HF}
    s_mov_b32 s75, 0""")
    def landed(j): k(f's_waitcnt vmcnt({min(63, k.nvm - dma_pos[j])})'); k('s_barrier')
    landed(3)
    stamp(k, 8)
    rd_pos = {}
    def do_reads(g):
        for t in reads(g): k(t)
        rd_pos[g] = k.nlg
    do_reads(0); do_reads(1)
    NWD = OPT.get('wdin', 22)
    memq = [('dma', j) for j in range(DP, 16)]
    lw = list(late_w)
    memq += lw + [('dma', j) for j in range(16, 32)]
    after = []
    nfast = len(memq)
    wl = [t for u in range(0, NWD, 2) for t in wd_loads(u)]
    wdq = [wl[i] + ('\n' + wl[i+1] if i % 5 == 3 else '') for i in range(len(wl)) if i % 5 != 4]
    W1 = OPT.get('wdend', 57)
    st_pos = None
    wrate = min(1.0, len(wdq) / (W1 - nfast / OPT.get('mrate', 1)))
    eq = [hload(0, u, RC) for u in range(22)]
    ismem = lambda t: isinstance(t, tuple) or t.startswith(('ds_', 'buffer'))
    vcost = lambda t: 8 if t.startswith(('v_exp', 'v_rcp', 'v_rsq', 'v_permlane')) else 4 * (t.count('\n') + 1)
    hcost = lambda t: 4 if (t[0] == 'rd' if isinstance(t, tuple) else t.startswith('ds_read')) else 8
    salu = []
    def emit_mem(f):
        nonlocal stat_pos
        if isinstance(f, tuple):
            if f[0] == 'dma':
                while salu: k(salu.pop(0))
                issue_dma(f[1]); salu.extend(m0step(f[1]))
            else: k(f[1]); rd_pos[f[2]] = k.nlg
        else:
            t = f.split('\n')
            if t[0].startswith('buffer_load_dwordx4'):
                while salu: k(salu.pop(0))
            k(t[0]); salu.extend(x.strip() for x in t[1:])
            if f.startswith('ds_write'): stat_pos = k.nlg
    stat_pos = None
    k.wait(lg=k.nlg - rd_pos[0])
    for p in range(4):
        pre = stats(p-1) if p & 1 else []
        bg = (epilogue(p-1) + (getstats(p) if p & 1 else [])) if p else []
        nind = (16 if hw else 20) if p & 1 else 0
        SB = OPT.get('sb', 3)
        nbg = len(bg)
        k1 = OPT.get('e1end', 12) if p == 2 else 16
        tot = sum(vcost(t) for t in bg); done = 0
        val = []
        for ka in range(16):
            g = 16*p + ka
            if OPT.get('gst') and g in OPT['gst']: stamp(k, 1 + OPT['gst'].index(g), True)
            sync = None
            if p & 1 and ka == SB: sync = 'stat'
            if p == 0 and ka in (2, 6, 10): sync = ka + 5
            if p == 1 and ka == 13 and not OPT.get('mergeland'): sync = 31
            rds = []
            if g + 2 < 64:
                for t in reads(g + 2):
                    if t.startswith('ds_'): rds.append(('rd', t, g + 2))
            if g + 3 < 64 and (g + 3) % 16 == 0: late_x = [t for t in reads(g + 3) if not t.startswith('ds_')]
            else: late_x = []
            mem = []
            if memq:
                mr = OPT.get('mrate', 1); n = int((g + 1) * mr) - int(g * mr); n = OPT.get('mfirst', n) if len(dma_pos) < 16 else n; mem = memq[:n]; memq = memq[n:]
            elif wdq and not (p & 1 and ka == SB):
                left = W1 - g
                n = (len(wdq) + left - 1) // left if len(wdq) >= left else int((g + 1) * wrate) - int(g * wrate)
                mem = wdq[:n]; wdq = wdq[n:]
            if ka <= 1 and pre:
                n = 6 if ka == 0 else len(pre); val += pre[:n]; pre = pre[n:]
            o1 = 1 if p & 1 else 0
            budget = tot * (ka + 1 - o1) / (k1 - o1)
            if p & 1 and ka <= 1: budget = -1
            if p & 1 and ka == SB: rds = rds + [t for t in getstats(p-1) if t.startswith('ds_')]
            if p & 1 and ka == 1: val += [t for t in getstats(p-1) if not t.startswith('ds_')]
            while bg and (done + vcost(bg[0])/2 <= budget or ka == k1 - 1) and not (p & 1 and ka <= SB and nbg - len(bg) >= nind):
                done += vcost(bg[0]); val.append(bg.pop(0))
            if g == 48 + OPT.get('esamp', 8) - 1: val += ['v_lshlrev_b32 v5, 7, v3', 'v_add_u32 v3, s74, v4']
            if g == 48 + OPT.get('esamp', 8): mem = [f'buffer_load_dword v9, v5, {WSR}, s62 offen{LD}'] + mem
            if g == 48 + OPT.get('echk', 11): val += [f'v_cmp_ne_u32 vcc, 1, v9\n s_cmp_eq_u64 vcc, 0\n s_cselect_b32 s38, s34, 0']
            if g > 48 + OPT.get('echk', 11):
                er = OPT.get('erate', 1); mem = mem + eq[:er]; eq = eq[er:]
            mf = []
            for m in range(2):
                b_ = V(slot(g, m), 4)
                for n in range(3):
                    d = V(acc(p, n, m, ka & 1), 4)
                    first = ka == 0 or (n == 2 and ka == 1 and hw)
                    mf.append(f'v_mfma_f32_16x16x32_bf16 {d}, {A(12*ka+4*n,4)}, {b_}, {"0" if first else d}')
            mf = [mf[i] for i in (0, 3, 4, 1, 2, 5)]
            if p % 2 == 0: mf.insert(0, f'v_mfma_f32_16x16x32_bf16 {V(GR,4)}, {V(slot(g,0),4)}, {V(slot(g,0),4)}, {"0" if ka==0 else V(GR,4)}')
            heads = list(rds)
            for i, t in enumerate(mem): heads.insert(min(len(heads), 2 + 2*i + (1 if len(mem) == 1 else 0)), t)
            N = len(mf)
            ftot = sum(map(hcost, heads)) + sum(hcost(t) if ismem(t) else vcost(t) for t in val) + 4*len(late_x); fd = 0
            flush_val = ka == 15 or (p == 2 and ka == k1 - 1) or (p & 1 and ka == 1) or g - 48 in (OPT.get('esamp', 8) - 1, OPT.get('echk', 11))
            for i, t in enumerate(mf):
                k(t)
                last = i == N - 1
                if i == 0 and sync is not None:
                    if sync == 'stat':
                        assert not pre and not any(x.startswith('ds_write') for x in val)
                        k.wait(lg=k.nlg - stat_pos)
                        if p == 3 or OPT.get('mergeland'): k(f's_waitcnt vmcnt({min(63, k.nvm - (st_pos if p == 3 else dma_pos[31]))})')
                        k('s_barrier')
                        if p == 3 and hw: k(f'v_mov_b32 v{MUV}, 0\n v_mov_b32 v{MUV+1}, 1\n s_mov_b64 exec, 1\n buffer_store_dword v{MUV+1}, v{MUV}, {WSR}, s41 offen{ST}\n s_mov_b64 exec, -1')
                    else: landed(sync)
                if i == 1: island(g)
                nh = 0
                nxt = val[0] if val and ismem(val[0]) else (heads[0] if heads else None)
                if last and g + 1 < 64: k.wait(lg=k.nlg - rd_pos[g + 1])
                elif salu and (nxt is None or hcost(nxt) == 4) and not (i == 1 and OPT.get('isl')): k(salu.pop(0))
                while True:
                    if val and ismem(val[0]) and nh == 0: f = val.pop(0)
                    elif heads and (nh == 0 or len(heads) > N - 1 - i): f = heads.pop(0)
                    else: break
                    emit_mem(f); fd += hcost(f); nh += 1
                if last:
                    for x in late_x: k(x)
                while val and ((not ismem(val[0]) and fd + vcost(val[0])/2 <= ftot * (i+1) / N + 1e-6) or (last and flush_val)):
                    f = val.pop(0)
                    if ismem(f): emit_mem(f); fd += hcost(f)
                    else: k(f); fd += vcost(f)
            assert not heads
            if p == 2 and ka == k1 - 1: st_pos = k.nvm
        assert not bg and not val
        if p == 0: stamp(k, 9)
        if OPT.get('pst'): stamp(k, 1+p, True)
    while salu: k(salu.pop(0))
    assert not wdq
    stamp(k, 10)
    ep = epilogue(3); ne = OPT.get('eepi', 0); gap = 5
    for i, t in enumerate(ep):
        k(t)
        if i % gap == gap - 1 and ne > 0: k(eq.pop(0)); ne -= 1
    assert ne == 0
    if OPT.get('echk') > 15: k(f'v_cmp_ne_u32 vcc, 1, v9\n s_cmp_eq_u64 vcc, 0\n s_cselect_b32 s38, s34, 0')
    if OPT.get('pst'): stamp(k, 5, True)
    return 22 - len(eq)

def hload(hf, u, R):
    return f'buffer_load_dwordx4 {A(88*hf+4*u,4)}, v3, {R}, s75 offen offset:{2048*hf}{LD}\n ' + (f's_add_u32 s75, s75, {4*HFS}' if u < 21 else 's_mov_b32 s75, 0')

def redo(k, soff, hf, n, again=None, pre=None):
    uid[0] += 1; u = uid[0]
    k(f's_cmp_lg_u32 s38, 0\n s_cbranch_scc1 L_sd{u}')
    st = k.state()
    k('s_mov_b32 s46, 0')
    if pre: k(f'v_cmp_ne_u32 vcc, 1, v{pre}\n s_cbranch_vccz L_sg{u}')
    k.label(f'L_sp{u}')
    k(f"""buffer_load_dword v6, v5, {WSR}, {soff} offen{LD}
    s_add_u32 s46, s46, 1
    s_waitcnt vmcnt(0)
    v_cmp_ne_u32 vcc, 1, v6
    s_cmp_gt_u32 s46, {SPIN}
    s_cbranch_scc1 L_sg{u}
    s_cbranch_vccnz L_sp{u}""")
    k.label(f'L_sg{u}')
    k('s_mov_b32 s75, 0')
    for j in range(n): k(hload(hf, j, RB))
    if again: again()
    k.restore(st)
    k.vm = [set()] * 8 + [{('a', 88*hf+4*j+r) for r in range(4)} for j in range(n)]
    k.label(f'L_sd{u}')

def spin(k, reg, soff):
    uid[0] += 1; u = uid[0]
    k(f'v_cmp_ne_u32 vcc, 1, v{reg}\n s_mov_b32 s46, 0\n s_cbranch_vccz L_sd{u}')
    st = k.state()
    k.label(f'L_sp{u}')
    k(f"""buffer_load_dword v{reg}, v5, {WSR}, {soff} offen{LD}
    s_add_u32 s46, s46, 1
    s_waitcnt vmcnt(0)
    v_cmp_ne_u32 vcc, 1, v{reg}
    s_cmp_gt_u32 s46, {SPIN}
    s_cbranch_scc1 L_sd{u}
    s_cbranch_vccnz L_sp{u}""")
    k.restore(st)
    k.label(f'L_sd{u}')

QS, INS, PS = 1152, 4736, 9472
def p4(k, n0, nst):
    HR, RD, SUM = 32, 40, 128
    PRE = OPT.get('p4pre', 14)
    EP = OPT.get('epost', 6)
    k.vm = [{('a', 4*j+r) for r in range(4)} for j in range(n0)] + [set()] * nst
    if OPT.get('sbar'): k('s_barrier')
    el = [hload(0, j, RC) for j in range(n0, n0 + EP)]
    if not OPT.get('mix'):
        for t in el: k(t)
        el = []
    U0 = n0 if not OPT.get('nopre') else 0
    n0 += EP
    setup = f"""s_mov_b32 s28, s18
    s_and_b32 s29, s19, 0xffff
    s_mov_b32 s30, {S*D*2}
    s_lshr_b32 s65, s2, 5
    v_lshrrev_b32 v16, 3, v1
    v_bfe_u32 v17, v1, 1, 2
    s_lshl_b32 s46, s65, 2
    v_add_u32 v17, s46, v17            ; 16-column block
    v_sub_u32 v18, 31, v17
    v_min_u32 v18, v17, v18
    v_lshlrev_b32 v18, 17, v18
    v_lshrrev_b32 v17, 4, v17
    v_lshl_add_u32 v18, v17, 16, v18
    v_lshl_add_u32 v18, v16, 4, v18
    v_and_b32 v17, 1, v1
    v_lshl_add_u32 v8, v17, 15, v18    ; residual
    s_lshl_b32 s66, s73, 9
    s_lshl_b32 s46, {WAVE}, 7
    s_add_u32 s66, s66, s46
    s_add_u32 s66, s66, {HRES}
    v_mov_b32 v20, 0
    v_mov_b32 v21, 1
    s_add_u32 s41, s41, 0x8000
    s_lshr_b32 s46, s73, 2
    s_lshl_b32 s46, s46, 17
    s_and_b32 s44, s73, 3
    s_lshl_b32 s44, s44, 2
    s_add_u32 s44, s44, {WAVE}
    s_lshl_b32 s44, s44, 10
    s_add_u32 s67, s46, s44
    s_lshl_b32 s45, s65, 7
    s_add_u32 s67, s67, s45
    s_add_u32 s68, s67, 0x2000
    v_and_b32 v9, 7, v1
    v_lshlrev_b32 v9, 4, v9
    v_and_b32 v18, 3, v16
    v_lshl_add_u32 v9, v18, 15, v9
    v_lshrrev_b32 v18, 2, v16
    v_lshl_add_u32 v9, v18, 14, v9     ; output
    v_lshrrev_b32 v18, 5, v1
    v_lshl_add_u32 v10, v18, 6, v4
    s_mul_i32 s44, {WAVE}, {PS}
    v_add_u32 v10, s44, v10            ; partial sums, write
    v_bfe_u32 v18, v1, 2, 1
    v_mul_u32_u24 v11, {INS}, v18
    v_bfe_u32 v18, v1, 1, 1
    v_mul_u32_u24 v18, 576, v18
    v_add_u32 v11, v11, v18
    v_lshl_add_u32 v11, v16, 4, v11
    v_lshl_add_u32 v11, v17, 3, v11
    s_lshl_b32 s44, {WAVE}, 7
    v_add_u32 v11, s44, v11            ; partial sums, read
    v_add_u32 v12, {4*PS}, v11""".split('\n')
    def resid(hf): k(f'buffer_load_dwordx4 {V(HR+4*hf,4)}, v8, {WSR}, s66 offen offset:{1024*hf}{LD}')
    def mf(hf, u, i):
        d = V(ACC+32*hf+16*i, 16)
        return f'v_mfma_f32_32x32x16_bf16 {d}, {wd_reg(u, i)}, {A(88*hf+4*u,4)}, {"0" if u==0 else d}'
    def mm(hf, issued, hook):
        q = []
        for j in range(22):
            if hf == 0 and j >= OPT.get('wdin', 22) and j % 2 == 0:
                w = wd_loads(j); q += [lambda t=t: k(t) for t in w[:3] + [w[3] + '\n' + w[4]]]
            if j >= issued: q.append(lambda j=j: k(hload(hf, j, RB)))
        q.append(lambda: resid(hf))
        TL = OPT.get('tl', 0) if hf == 1 else 0
        for u in range(U0 if hf == 0 else 0, 22 - TL):
            for i in range(2):
                k(mf(hf, u, i))
                if q and (i == 0 or len(q) > 22 - u - OPT.get('lead', 8)): q.pop(0)()
                hook(u, i)
    def red_write(hf):
        o = [f'ds_write_b128 v10, {V(ACC+32*hf+16*i+4*q,4)} offset:{4*PS*hf+INS*i+QS*q}' for i in range(2) for q in range(4)]
        for j in range(4):
            o += [f'v_lshlrev_b32 v{SUM+4*(j&1)+(j>>1)}, 16, v{HR+4*hf+j}', f'v_and_b32 v{SUM+4*(j&1)+2+(j>>1)}, 0xffff0000, v{HR+4*hf+j}']
        return o
    def red_read(hf, pk=True):
        R = lambda w, q: (RD + 8*w + 2*q) if w < 3 else SUM + 8 + 2*q
        o = [f'ds_read_b64 {V(R(w,q),2)}, v{11+hf} offset:{PS*w+QS*q}' for w in range(4) for q in range(4)]
        if pk: o += [f'v_pk_add_f32 {V(SUM+2*q,2)}, {V(SUM+2*q,2)}, {V(R(w,q),2)}' for w in range(4) for q in range(4)]
        else: o += [f'v_add_f32 v{SUM+2*q+h}, v{SUM+2*q+h}, v{R(w,q)+h}' for w in range(4) for q in range(4) for h in range(2)]
        o += [f'v_cvt_pk_bf16_f32 v{HR+4*hf+j}, v{SUM+4*(j&1)+(j>>1)}, v{SUM+4*(j&1)+2+(j>>1)}' for j in range(4)]
        return o + [f'buffer_store_dwordx4 {V(HR+4*hf,4)}, v9, {RA}, s{67+hf} offen{OPT.get("ost", "")}']
    pre = [mf(0, u, i) for u in range(U0) for i in range(2)]
    for t in pre:
        k(t)
        for x in setup[:5]: k(x)
        setup = setup[5:]
    while setup or el:
        if el: k(el.pop(0))
        for x in setup[:4]: k(x)
        setup = setup[4:]
    k(f's_waitcnt vmcnt({EP})'); k('s_barrier')
    only_wave(k, 0, lambda: k(f's_mov_b64 exec, 1\n buffer_store_dword v21, v20, {WSR}, s41 offen{ST}'))
    stamp(k, 11)
    redo(k, 's62', 0, n0, lambda: [k(t) for t in pre])
    if OPT.get('p4st'): stamp(k, 1, True)
    LP, LC = OPT.get('lpoll', 11), OPT.get('lchk', 15)
    nl = [0]
    def hook0(u, i):
        if u == LP and i == 1: k(f'buffer_load_dword v6, v5, {WSR}, s63 offen{LD}')
        if u == LC and i == 0: k('v_cmp_ne_u32 vcc, 1, v6\n s_cmp_eq_u64 vcc, 0\n s_cselect_b32 s38, s34, 0')
        if u == OPT.get('lp2', -1) and i == 0: k(f'buffer_load_dword v7, v5, {WSR}, s63 offen{LD}')
        if (u, i) > (LC, 0) and (i == 1 or OPT.get('lrate2')): k(hload(1, nl[0], RC)); nl[0] += 1
    mm(0, n0, hook0)
    if OPT.get('p4st'): stamp(k, 2, True)
    for j, t in enumerate(red_write(0)):
        k(t)
        if j < OPT.get('lmid', 5): k(hload(1, nl[0], RC)); nl[0] += 1
    if OPT.get('p4st'): stamp(k, 3, True)
    redo(k, 's63', 1, nl[0], pre=7 if OPT.get('lp2') else None)
    if OPT.get('p4st'): stamp(k, 4, True)
    rr = red_read(0, False)
    def hook1(u, i):
        if u == 1 and i == 1: k.wait(lg=0); k('s_barrier')
        if u >= 2:
            for _ in range(4 if i else 2):
                if rr: k(rr.pop(0))
    mm(1, nl[0], hook1)
    assert not rr
    if OPT.get('p4st'): stamp(k, 5, True)
    TL = OPT.get('tl', 0); rw = red_write(1)
    for u in range(22 - TL, 22): k(mf(1, u, 0))
    for j, u in enumerate(range(22 - TL, 22)):
        k(mf(1, u, 1))
        if j == 0:
            for t in rw[8:]: k(t)
            rw = rw[:8]
        elif len(rw) > 4 and j >= 2: k(rw.pop(0))
    for t in rw: k(t)
    k.wait(lg=0); k('s_barrier')
    for t in red_read(1): k(t)

def fused():
    k = K()
    prologue(k)
    if OPT.get('prio'): only_wave(k, 0, lambda: k('s_setprio 3'))
    k(f's_cmp_ge_u32 s2, {NZ}\n s_cbranch_scc1 L_notz')
    st0 = k.state()
    p1_z(k)
    k.label('L_join1')
    k.vm = [set()] * 40; k.lg = []
    setup(k)
    stamp(k, 3)
    negs = lambda: [p2_negs(k, b) for b in (B1, A2, B3, A4)]
    def ztab():
        if OPT.get('ztpre'): return
        uid[0] += 1; u = uid[0]
        k((f's_cmp_ge_u32 s2, {NZ}' if OPT.get('ttpre') else 's_cmp_lg_u32 s71, 0') + f'\n s_cbranch_scc1 L_zt{u}')
        st_ = k.state()
        for t in ztl: k(t)
        k.restore(st_); k.label(f'L_zt{u}')
    stamp(k, 8, 'z')
    k(f's_cmp_lg_u32 {WAVE}, 0\n s_cbranch_scc1 L_b1o')
    st = k.state()
    k('s_mov_b64 exec, 1\n s_mov_b32 s46, 0\n s_waitcnt vmcnt(0)')
    k.label('L_go')
    k(f"""v_cmp_ne_u32 vcc, 0, v254
    s_add_u32 s46, s46, 1
    s_cbranch_vccnz L_gone
    global_load_dword v254, v250, s[20:21]{LD}
    s_waitcnt vmcnt(0)
    s_cmp_lt_u32 s46, {SPIN}
    s_cbranch_scc1 L_go""")
    k.restore(st); k.vm = []
    k.label('L_gone')
    stamp(k, 9, 'z')
    k('s_barrier')
    k(f's_cmp_eq_u32 s71, 0\n s_cbranch_scc1 L_b1a\n buffer_store_dword v251, v250, {WSR}, s71 offen{ST}\n s_mov_b64 exec, -1\n s_branch L_b1n')
    k.label('L_b1a')
    k(f'buffer_atomic_add v251, v250, {WSR}, s74 offen sc0 sc1\n s_mov_b64 exec, -1')
    stamp(k, 10, 'z')
    setup_late(k); arrive_check(k, 250, 's75', 19, 1)
    k('s_mov_b64 exec, -1'); ztab()
    k('s_mov_b64 exec, -1\n s_branch L_b1m')
    k.restore(st); k.label('L_b1o')
    k('s_waitcnt vmcnt(0)')
    stamp(k, 9, 'z')
    k('s_barrier')
    k.label('L_b1n')
    stamp(k, 10, 'z')
    if OPT.get('zfirst'): ztab()
    setup_late(k)
    if not OPT.get('zfirst'): ztab()
    k.label('L_b1m')
    k('s_waitcnt vmcnt(0)')
    negs()
    wd_finish(k)
    rbclear = lambda: k(f'v_lshlrev_b32 v252, 15, v1\n s_mov_b64 exec, 3\n buffer_store_dword v250, v252, {WSR}, s41 offen{ST}')
    k.label('L_b1q')
    only_wave(k, 1, rbclear)
    only_wave(k, 0, lambda: poll(k, 250, 1))
    k.label('L_b1x')
    k.vm = []
    k('s_barrier')
    stamp(k, 4)
    stamp(k, 11, 'z'); stamp(k, 1, 'b')
    barrier2(k, p2(k))
    n0 = p3_body(k, False)
    nst = 0
    nst = 2
    k.label('L_join3')
    k.fence()
    p4(k, n0, nst)
    stamp_out(k, 12)
    k.label('L_end'); k('s_endpgm')
    k.restore(st3); k.label('L_p3h'); assert p3_body(k, True) == n0
    assert not any(k.vm[-nst:]); k('s_branch L_join3')
    k.restore(st0); k.label('L_notz')
    p1_w(k)
    if OPT.get('slowjoin'): k('s_branch L_join1')
    else:
        k(f"""s_lshl_b32 s44, s74, 3
        s_add_u32 s44, s44, {FLG}
        v_and_b32 v252, 7, v1
        v_lshlrev_b32 v252, 8, v252
        v_mov_b32 v254, v254               ; the go word has been read before the flags are sampled
        buffer_load_dword v253, v252, {WSR}, s44 offen{LD}""")
        stamp(k, 3)
        twiddles(k); negs()
        stamp(k, 8, 'z')
        k('s_waitcnt vmcnt(0)\n v_min_u32 v253, v253, v254')
        def go1():
            k('s_mov_b32 s46, 0')
            k.label('L_go2')
            k(f"""v_cmp_ne_u32 vcc, 0, v254
            s_add_u32 s46, s46, 1
            s_cbranch_vccnz L_gone2
            global_load_dword v254, v250, s[20:21]{LD}
            s_waitcnt vmcnt(0)
            s_cmp_lt_u32 s46, {SPIN}
            s_cbranch_scc1 L_go2""")
            k.label('L_gone2')
        only_wave(k, 1, go1)
        stamp(k, 9, 'z')
        k('s_barrier')
        stamp(k, 10, 'z')
        only_wave(k, 1, lambda: k(f's_mov_b64 exec, 1\n buffer_store_dword v251, v250, {WSR}, s71 offen{ST}'))
        k(f'v_cmp_eq_u32 vcc, 0, v253\n s_cbranch_vccnz L_b1q')
        only_wave(k, 1, rbclear)
        k('s_branch L_b1x')
    k.restore(st_c); k.label('L_p1c')
    k(f's_cmp_ge_u32 s2, {NI0}\n s_cbranch_scc1 L_p1i')
    st1 = k.state()
    p1_t(k); k('s_branch L_join1')
    k.restore(st1); k.label('L_p1i'); p1_i(k); k('s_branch L_join1')
    o = header()
    o += f'; @launch grid=(256,1,1) block=(256,1,1) lds={STATL+4096}\n'
    o += '.amdgcn_target "amdgcn-amd-amdhsa--gfx950"\n.text\n' + k.text()
    o += tables_text() + 'L_image_end:\n'
    o += '.section .rodata,"a"\n.p2align 6\n' + kd(KN, k)
    return o

if __name__ == '__main__':
    out = sys.argv[1]
    for a in sys.argv[2:]:
        key, _, val = a.partition('=')
        OPT[key] = eval(val) if val else True
    open(out, 'w').write(fused())
```

```python
import sys, math, struct
import numpy as np
from dsl import K
from design import *
from gen import V, A, Sg, fbits, TBL, tables_text, header, kd, NAME, srd, cmul, TPAD

OPT = dict(stamps=False, gblate=True, tpost=True, every=48, mergeland=True, mrate=1.5, nopre=True, w0late=True, nA=6, c1=1, fpos=0, c2=1, prio=True, wgbfirst=False, wdshadow=True, wcont=True, nord=True, hold=True, esamp=8, e1end=13, echk=15, epost=8, wdend=62, lpoll=9, lchk=16, retouch=True, ntx=' nt', ntd=' nt', lp2=17, sbar=True, dpre=12, mfirst=2, zfirst=True, slate=True, zev=24, twe=True, pf128=True)
ST, LD = ' sc1', ' sc1'
WSR, RA, RB, RC = 's[24:27]', 's[28:31]', 's[32:35]', 's[36:39]'
WAVE = 's40'
KN = NAME + '_kernel'
SPIN = 400000
TW1, TW2 = 112, 128
B1, A4, A2, B3 = 144, 168, 192, 216
FA, GB = 200, 208
NZ, NC0, NI0 = 128, 216, 248
uid = [0]

def stamp(k, i, pm=False):
    if OPT.get('pst') and 1 <= i <= 5 and not pm: return
    if OPT.get('zdet') and 1 <= i <= 11 and pm != 'z': return
    if pm == 'z' and not OPT.get('zdet'): return
    if OPT.get('bdet') and 1 <= i <= 11 and pm != 'b': return
    if pm == 'b' and not OPT.get('bdet'): return
    if OPT['stamps']: k(f's_{"memtime" if OPT.get("pst") else "memrealtime"} s[{76+2*i}:{77+2*i}]')
def stamp_out(k, n):
    if not OPT['stamps']: return
    k.wait(vm=0, lg=0); stamp(k, n); n += 1; k.wait(lg=0)
    k(f's_lshl_b32 s44, s2, 8\n s_lshl_b32 s45, {WAVE}, 6\n s_add_u32 s44, s44, s45\n s_add_u32 s44, s44, {STAMP}')
    for i in range(16): k(f'v_mov_b32 v{8+i}, s{76+2*i}' if i < n else f'v_mov_b32 v{8+i}, 0')
    k('v_mov_b32 v24, 0\n s_mov_b64 exec, 1')
    for q in range(4): k(f'buffer_store_dwordx4 {V(8+4*q,4)}, v24, {WSR}, s44 offen offset:{16*q}')

def wsrd(k, base, end):
    k(f's_mov_b32 s{base}, s24\n s_mov_b32 s{base+1}, s25\n s_mov_b32 s{base+2}, {end}\n s_mov_b32 s{base+3}, 0x20000')

def tbl_addr(k, vp, soff):
    k(f"""s_add_u32 s46, s42, {soff}
    s_addc_u32 s47, s43, 0
    v_mov_b32 v{vp+1}, s47
    v_add_co_u32 v{vp}, vcc, s46, v4
    v_addc_co_u32 v{vp+1}, vcc, 0, v{vp+1}, vcc""")

def gb_loads(k):
    for q in range(8): k(f'global_load_dwordx4 {A(GB+4*q,4)}, v[8:9], off offset:{1024*q-4096}')

def prologue(k):
    k.raw(f'.globl {KN}\n.p2align 8\n.type {KN},@function\n{KN}:')
    stamp(k, 0)
    k(f"""s_load_dwordx16 s[4:19], s[0:1], 0
    s_load_dwordx4 s[20:23], s[0:1], 64
    s_getpc_b64 s[42:43]""")
    k.raw('L_pc:')
    k(f"""s_cmp_ge_u32 s2, 256
    s_cbranch_scc1 L_end
    v_lshrrev_b32 v5, 6, v0
    v_and_b32 v1, 63, v0
    v_readfirstlane_b32 {WAVE}, v5
    s_lshr_b32 s44, s2, 3
    v_lshl_add_u32 v5, v5, 5, s44
    v_lshlrev_b32 v6, {7 if OPT.get('pf128') else 6}, v1
    v_lshl_add_u32 v5, v5, {13 if OPT.get('pf128') else 12}, v6      ; one dword per line""")
    k.raw('    v_min_u32 v5, L_image_end-L_pc-4, v5'); k.pos += 1
    k(f"""v_mov_b32 v7, s43
    v_add_co_u32 v6, vcc, s42, v5
    v_addc_co_u32 v7, vcc, 0, v7, vcc
    global_load_dword v255, v[6:7], off
    v_bfe_u32 v2, v0, 4, 2
    v_and_b32 v3, 15, v0
    v_lshlrev_b32 v4, 4, v1""")
    k.raw('    s_add_u32 s42, s42, tables-L_pc\n    s_addc_u32 s43, s43, 0'); k.pos += 2
    k(f's_cmp_ge_u32 s2, {NC0}\n s_cbranch_scc1 L_p1c')
    global st_c
    st_c = k.state()
    tbl_addr(k, 6, TBL['FA'])
    for c in range(2): k(f'global_load_dwordx4 {A(FA+4*c,4)}, v[6:7], off offset:{1024*c}')
    k(f"""s_cmp_lt_u32 s2, {NZ}
    s_cselect_b32 s45, {TBL["GBZ"]+4096}, {TBL["GBW"]+4096}
    s_lshl_b32 s44, {WAVE}, 13
    s_add_u32 s44, s44, s45""".replace(str(TBL["GBW"]+4096), 's47').replace('s_cmp_lt', f's_mov_b32 s47, {TBL["GBW"]+4096}\n s_cmp_lt'))
    tbl_addr(k, 8, 's44')
    if not OPT.get('gblate'): gb_loads(k)

def go_load(k, b):
    k(f'v_mov_b32 v{b}, 0\n global_load_dword v{b+4}, v{b}, s[20:21]{LD}')
def arrive_issue(k, b, cnt, go):
    k(f'v_mov_b32 v{b}, 0\n v_mov_b32 v{b+1}, 1\n s_mov_b64 exec, 1')
    if go:
        uid[0] += 1; u = uid[0]
        k('s_mov_b32 s46, 0')
        k.label(f'L_go{u}')
        k(f"""s_waitcnt vmcnt(0)
        v_cmp_ne_u32 vcc, 0, v{b+4}
        s_add_u32 s46, s46, 1
        s_cbranch_vccnz L_gone{u}
        global_load_dword v{b+4}, v{b}, s[20:21]{LD}
        s_cmp_lt_u32 s46, {SPIN}
        s_cbranch_scc1 L_go{u}""")
        k.label(f'L_gone{u}')
    k(f'buffer_atomic_add v{b+1}, v{b}, {WSR}, {cnt} offen sc0 sc1')
def arrive_check(k, b, flg, last, val):
    uid[0] += 1; u = uid[0]
    k(f"""s_mov_b64 exec, 0xff
    v_lshlrev_b32 v{b+2}, 11, v1
    v_mov_b32 v{b}, {val}
    v_readfirstlane_b32 s47, v{b+1}
    s_cmp_lg_u32 s47, {last}
    s_cbranch_scc1 L_nl{u}""")
    st = k.state()
    k(f'buffer_store_dword v{b}, v{b+2}, {WSR}, {flg} offen{ST}')
    k.restore(st)
    k.label(f'L_nl{u}')
def poll(k, b, val):
    uid[0] += 1; u = uid[0]
    k(f"""s_mov_b64 exec, 0xff
    v_lshlrev_b32 v{b+3}, 8, v1
    s_and_b32 s44, s2, 7
    s_lshl_b32 s44, s44, 11
    s_add_u32 s44, s44, {FLG}
    s_mov_b32 s46, 0""")
    k.label(f'L_bp{u}')
    k(f"""buffer_load_dword v{b+1}, v{b+3}, {WSR}, s44 offen{LD}
    s_add_u32 s46, s46, 1
    s_waitcnt vmcnt(0)
    v_cmp_gt_u32 vcc, {val}, v{b+1}
    s_cmp_gt_u32 s46, {SPIN}
    s_cbranch_scc1 L_bd{u}
    s_cbranch_vccnz L_bp{u}""")
    k.label(f'L_bd{u}')
    k('s_mov_b64 exec, -1')
def only_wave(k, w, fn):
    uid[0] += 1; u = uid[0]
    k(f's_cmp_lg_u32 {WAVE}, {w}\n s_cbranch_scc1 L_ow{u}')
    st = k.state(); fn(); k('s_mov_b64 exec, -1'); k.restore(st); k.label(f'L_ow{u}')

def p2_tables(k, vp=26):
    k(f's_lshl_b32 s44, {WAVE}, 13\n s_add_u32 s44, s44, {TBL["P2W"]+4096}')
    tbl_addr(k, vp, 's44'); tbl_addr(k, vp+2, TBL['P2S']+4096)
    o = [f'global_load_dwordx4 {V(B1+6*u+2,4)}, {V(vp,2)}, off offset:{1024*u-4096}' for u in range(4)]
    o += [f'global_load_dwordx4 {V(A2+6*u+2,4)}, {V(vp+2,2)}, off offset:{1024*u-4096}' for u in range(4)]
    o += [f'global_load_dwordx4 {V(B3+6*u+2,4)}, {V(vp+2,2)}, off offset:{1024*u}' for u in range(4)]
    o += [f'global_load_dwordx4 {V(A4+6*u+2,4)}, {V(vp,2)}, off offset:{1024*u}' for u in range(4)]
    return o
def flush(k):
    sp, k.sprinkle = k.sprinkle, []
    for t in sp: k(t)

def gtouch(k, dst):
    k(f"""s_bitcmp1_b32 s2, 0
    s_cselect_b32 s36, s14, s12
    s_cselect_b32 s37, s15, s13
    s_and_b32 s37, s37, 0xffff
    s_mov_b32 s38, {D*F*2}
    s_lshr_b32 s44, s2, 3
    s_lshl_b32 s44, s44, 2
    s_add_u32 s44, s44, {WAVE}
    s_mul_i32 s44, s44, {8*2752}
    s_bfe_u32 s46, s2, 0x20001
    s_mul_i32 s46, s46, 704
    s_add_u32 s44, s44, s46
    v_and_b32 v15, 7, v1
    v_lshlrev_b32 v15, 7, v15
    v_min_u32 v15, 700, v15
    v_lshrrev_b32 v16, 3, v1
    v_mul_u32_u24 v16, 2752, v16
    v_add_u32 v15, v15, v16
    s_mov_b32 exec_lo, 0x7f7f7f7f
    s_mov_b32 exec_hi, 0x7f7f7f7f
    buffer_load_dword v{dst}, v15, {RC}, s44 offen
    s_mov_b64 exec, -1""")

def p1_z(k):
    X, DA, TR, SS, WL, WO = 32, 48, 80, 96, 104, 120
    k(f"""s_and_b32 s44, s2, 7
    s_lshr_b32 s45, s2, 4
    s_lshl_b32 s45, s45, 3
    s_add_u32 s44, s44, s45
    s_lshl_b32 s44, s44, 1
    s_bfe_u32 s45, s2, 0x10003
    s_add_u32 s60, s44, s45            ; (t,g,beta,bq)
    s_lshr_b32 s61, s60, 3
    s_lshl_b32 s61, s61, 7
    s_and_b32 s44, s60, 7
    s_lshl_b32 s44, s44, 2
    s_add_u32 s44, s44, s61
    s_add_u32 s44, s44, {WAVE}
    s_lshl_b32 s56, s44, 10
    s_add_u32 s57, s56, 0x8000
    s_add_u32 s58, s56, 0x10000
    s_add_u32 s59, s56, 0x18000
    s_mov_b32 s38, {S*D*2}
    s_mov_b32 s39, 0x20000
    s_bfe_u32 s48, s2, 0x20003
    s_and_b32 s44, s2, 7
    s_lshl_b32 s44, s44, 2
    s_add_u32 s48, s48, s44
    s_and_b32 s44, s2, 0x60
    s_add_u32 s48, s48, s44
    s_add_u32 s48, s48, 128""")
    wt_rows(k, 's48', 49)
    k(f's_mul_i32 s44, {WAVE}, {64*514}\n s_add_u32 s49, s49, s44')
    k.wait(lg=0)
    stamp(k, 1, 'z')
    k('s_mov_b32 s36, s4\n s_and_b32 s37, s5, 0xffff')
    for i in range(4): k(f'buffer_load_dwordx4 {V(X+4*i,4)}, v4, {RC}, s{56+i} offen{OPT.get("ntx", "")}')
    k(WSRDS)
    if not OPT.get('nowpf'):
        k(f"""v_lshrrev_b32 v15, 1, v3
        v_mul_u32_u24 v15, 514, v15
        v_and_b32 v16, 1, v1
        v_mul_u32_u24 v16, 126, v16
        v_add_u32 v15, v15, v16
        s_mov_b64 exec, 0xffff
        buffer_load_ushort v{WO}, v15, {RA}, s49 offen{OPT.get('ntw', '')}
        buffer_load_ushort v{WO+1}, v15, {RB}, s49 offen{OPT.get('ntw', '')}
        s_mov_b64 exec, -1""")
    if OPT.get('wreal'): k(f'buffer_load_dwordx4 {V(WL,4)}, v11, {RA}, s49 offen\n buffer_load_dwordx4 {V(WL+4,4)}, v11, {RB}, s49 offen')
    if OPT.get('gbz') == 0: gb_loads(k)
    for t in wd_issue(k): k(t)
    k('v_mov_b32 v24, v8\n v_mov_b32 v25, v9')
    gbl_ = [f'global_load_dwordx4 {A(GB+4*q,4)}, v[24:25], off offset:{1024*q-4096}' for q in range(8)] if OPT.get('gbz') != 0 else []
    k('v_mov_b32 v15, v11')
    wl_ = [f'buffer_load_dwordx4 {V(WL,4)}, v15, {RA}, s49 offen', f'buffer_load_dwordx4 {V(WL+4,4)}, v15, {RB}, s49 offen']
    wt_dest(k, 's48', 50)
    k(f"""s_lshl_b32 s44, {WAVE}, 2
    s_add_u32 s44, s44, 0xa000
    v_add_u32 v12, s44, v12
    s_lshl_b32 s44, {WAVE}, 5
    v_xor_b32 v13, s44, v4
    s_lshl_b32 s44, {WAVE}, 11
    s_add_u32 s44, s44, 0xa000
    v_add_u32 v13, s44, v13
    v_xor_b32 v14, 16, v13
    s_lshl_b32 s44, {WAVE}, 11
    s_add_u32 s50, s50, s44
    s_add_u32 s51, s50, 1024""")
    srd(k, 24, 22, WS_USED)
    k(f"""s_lshl_b32 s44, {WAVE}, 12
    v_add_u32 v30, s44, v4
    v_lshrrev_b32 v31, 1, v4
    v_add_u32 v31, s44, v31
    v_mul_u32_u24 v6, {TPAD}, v3
    v_lshl_add_u32 v6, v2, 8, v6
    s_lshl_b32 s44, {WAVE}, 6
    s_add_u32 s44, s44, 16384
    v_add_u32 v6, s44, v6
    s_mul_i32 s44, {WAVE}, {4*TPAD}
    s_add_u32 s44, s44, 16384
    v_add_u32 v7, s44, v4
    v_cmp_eq_u32 vcc, 0, v3
    v_cndmask_b32 v8, 0, 1.0, vcc
    s_mov_b32 s62, 0x3f803f80
    v_lshlrev_b32 v9, 6, v3
    v_lshl_add_u32 v9, v2, 4, v9
    s_lshl_b32 s44, s60, 14
    s_lshl_b32 s63, s60, 7
    s_add_u32 s63, s63, {SM}
    s_lshl_b32 s47, {WAVE}, 12
    s_add_u32 s44, s44, s47
    s_add_u32 s64, s44, {ZT}
    s_lshl_b32 s44, {WAVE}, 4
    s_add_u32 s44, s44, 0x9000
    v_lshl_add_u32 v10, v2, 2, s44""")
    tl = gbl_ + ([] if OPT.get('wreal') else wl_) if not OPT.get('wlfirst') else wl_ + gbl_
    if True:
        stamp(k, 2, 'z')
        for i in range(4):
            k(f'ds_write_b128 v30, {V(X+4*i,4)} offset:{1024*i}')
            if i == 0: stamp(k, 1)
            for r in range(2): k(f'ds_read_b64_tr_b16 {V(TR+4*i+2*r,2)}, v31 offset:{1024*i+512*r}')
            for j in range(4):
                k(f'v_dot2_f32_bf16 v{SS+i}, v{X+4*i+j}, s62, {"0" if j==0 else V(SS+i)}')
                k(f'v_dot2_f32_bf16 v{SS+4+i}, v{X+4*i+j}, v{X+4*i+j}, {"0" if j==0 else V(SS+4+i)}')
        stamp(k, 3, 'z')
        k.sprinkle = tl; k.every = OPT.get('zev', 40); k.since = 100
        stamp(k, 4, 'z')
        mf = [f'v_mfma_f32_16x16x32_bf16 {V(DA+8*i+4*c,4)}, {V(TR+4*i,4)}, {A(FA+4*c,4)}, 0' for i in range(4) for c in range(2)]
        k(mf.pop(0)); k(mf.pop(0))
        for b in (SS, SS+4):
            k(f'v_permlane32_swap_b32 v{b}, v{b+2}\n v_permlane32_swap_b32 v{b+1}, v{b+3}')
        for b in (SS, SS+4):
            k(f'v_add_f32 v{b}, v{b}, v{b+2}\n v_add_f32 v{b+1}, v{b+1}, v{b+3}')
        k(mf.pop(0))
        for b in (SS, SS+4): k(f'v_permlane16_swap_b32 v{b}, v{b+1}')
        for b in (SS, SS+4): k(f'v_add_f32 v{b}, v{b}, v{b+1}')
        for sh in (8, 4, 2, 1):
            k(mf.pop(0))
            for b in (SS, SS+4): k(f'v_add_f32_dpp v{b}, v{b}, v{b} row_ror:{sh} row_mask:0xf bank_mask:0xf')
        k(mf.pop(0))
        k(f"""v_mul_f32 v{SS}, {fbits(1/512)}, v{SS}
        v_mul_f32 v{SS+4}, {fbits(1/512)}, v{SS+4}
        v_fma_f32 v{SS+4}, -v{SS}, v{SS}, v{SS+4}
        v_max_f32 v{SS+4}, 0, v{SS+4}
        v_add_f32 v{SS+4}, {fbits(1e-5)}, v{SS+4}
        v_rsq_f32 v{SS+1}, v{SS+4}
        v_mul_f32 v{SS+2}, {fbits(-8.0)}, v{SS}
        v_mul_f32 v{SS+2}, v{SS+2}, v{SS+1}
        v_mul_f32 v{SS+3}, {fbits(0.25)}, v{SS+1}""")
        for i in range(4):
            k(f'v_readlane_b32 s{68+2*i}, v{SS+3}, {16*i}\n v_readlane_b32 s{69+2*i}, v{SS+2}, {16*i}')
        for i in range(4):
            d = DA + 8*i
            k(f'v_mul_f32 v{TR}, s{69+2*i}, v8')
            for h in range(2):
                k(f'v_pk_mul_f32 {V(d+4+2*h,2)}, {V(d+4+2*h,2)}, {Sg(68+2*i,2)} op_sel_hi:[1,0]')
            for h in range(2):
                k(f'v_pk_fma_f32 {V(d+2*h,2)}, {V(d+2*h,2)}, {Sg(68+2*i,2)}, {V(TR,2)} op_sel_hi:[1,0,0]')
            for h in (2, 3, 0, 1): k(f'v_cvt_pk_f16_f32 v{X+4*i+h}, v{d+2*h}, v{d+2*h+1}')
            k(f'ds_write_b128 v6, {V(X+4*i,4)} offset:{16*i}')
        k(f"""v_mul_f32 v{SS+4}, v{SS+4}, v{SS+1}
        ds_write2_b32 v10, v{SS+4}, v{SS} offset0:0 offset1:16""")
        print('tables left', len(k.sprinkle)); flush(k)
        def wt_a():
            for i in range(8):
                k(f'v_perm_b32 v{WO+i}, v{WL+4+(i>>1)}, v{WL+(i>>1)}, s{53+(i&1)}')
                k(f'ds_write_b32 v12, v{WO+i} offset:{128*i}')
        if OPT.get('wtearly'): wt_a()
        k.wait(lg=0); k('s_barrier')
        if OPT.get('zst'): stamp(k, 1)
        stamp(k, 5, 'z')
        for q in range(4): k(f'ds_read_b128 {V(TR+4*q,4)}, v7 offset:{TPAD*q}')
        k(f'ds_read_b128 {V(SS,4)}, v4 offset:0x9000')
        go_load(k, 250)
        wt_b = lambda: [k(f'ds_read_b128 {V(WL+4*n,4)}, v{13+n} offset:{1024*n}') for n in range(2)]
        wt_c = lambda: [k(f'buffer_store_dwordx4 {V(WL+4*n,4)}, v11, {WSR}, s{50+n} offen{ST}') for n in range(2)]
        if OPT.get('wtearly'): wt_b()
        for q in range(4):
            for o in range(2): k(f'v_mfma_f32_16x16x32_f16 {V(DA+8*q+4*o,4)}, {V(TR+4*q,4)}, {A(GB+8*q+4*o,4)}, 0')
        k.wait(lg=0)
        if OPT.get('wtearly'): wt_c()
        only_wave(k, 3, lambda: k(f's_mov_b64 exec, 0xff\n buffer_store_dwordx4 {V(SS,4)}, v4, {WSR}, s63 offen{ST}'))
        for q in range(4):
            for h in range(4): k(f'v_cvt_pk_f16_f32 v{X+4*q+h}, v{DA+8*q+2*h}, v{DA+8*q+2*h+1}')
            k(f'buffer_store_dwordx4 {V(X+4*q,4)}, v9, {WSR}, s64 offen offset:{1024*q}{ST}')
        stamp(k, 6, 'z')
        if not OPT.get('wtearly'):
            wt_a(); k.wait(lg=0); k('s_barrier'); wt_b(); wt_c()
        wd_pack(k)
        global ztl
        ztl = p2_tables(k)
        if OPT.get('ztpre'):
            for t in ztl: k(t)
        stamp(k, 2)

def p1_w(k):
    OP, DA = 32, 64
    TBASE = 32768
    k(f"""s_and_b32 s61, s2, 1               ; mu
    s_bfe_u32 s60, s2, 0x60001
    s_and_b32 s44, s60, 3
    s_lshl_b32 s44, s44, 1
    s_bfe_u32 s45, s60, 0x10002
    s_add_u32 s44, s44, s45
    s_andn2_b32 s45, s60, 7
    s_add_u32 s44, s44, s45
    s_cmp_lt_u32 s60, 40
    s_cselect_b32 s60, s44, s60        ; phi""" + ("""
    s_bfe_u32 s44, s2, 0x20001
    s_mul_i32 s44, s44, 11
    s_bfe_u32 s45, s2, 0x40003
    s_add_u32 s60, s44, s45""" if OPT.get('wcont') else '') + f"""
    s_mul_i32 s44, {WAVE}, {4*2752}
    s_lshl_b32 s45, s60, 6
    s_add_u32 s66, s44, s45
    v_lshrrev_b32 v10, 2, v1
    v_mul_u32_u24 v30, {16*2752}, v10
    v_and_b32 v11, 3, v1
    v_and_b32 v12, 1, v2
    v_lshlrev_b32 v12, 1, v12
    v_xor_b32 v13, v11, v12
    v_lshl_add_u32 v30, v13, 4, v30    ; DMA source
    s_lshl_b32 s67, {WAVE}, 13
    s_mov_b32 s38, {D*F*2}
    s_mov_b32 s39, 0x20000
    """)
    k(f"""s_bfe_u32 s64, s2, 0x40003
    s_lshl_b32 s64, s64, 2
    s_add_u32 s64, s64, {WAVE}
    s_mul_i32 s64, s64, {12*2752}
    s_bfe_u32 s46, s2, 0x20001
    s_mul_i32 s46, s46, 704
    s_add_u32 s64, s64, s46
    s_add_u32 s65, s64, {8*2752}
    v_and_b32 v14, 7, v1
    v_lshlrev_b32 v14, 7, v14
    v_min_u32 v14, 700, v14
    v_lshrrev_b32 v15, 3, v1
    v_mul_u32_u24 v15, 2752, v15
    v_add_u32 v14, v14, v15""")
    if OPT.get('wgbfirst'): gb_loads(k)
    k.wait(lg=0)
    stamp(k, 1, 'z')
    k(f"""s_cmp_eq_u32 s61, 0
    s_cselect_b32 s36, s12, s14
    s_cselect_b32 s37, s13, s15
    s_and_b32 s37, s37, 0xffff""")
    if not OPT.get('nowt2'):
        k(f"""s_mov_b32 exec_lo, 0x7f7f7f7f
        s_mov_b32 exec_hi, 0x7f7f7f7f
        buffer_load_dword v5, v14, {RC}, s64 offen{OPT.get('ntg', '')}
        s_mov_b32 exec_hi, 0
        buffer_load_dword v248, v14, {RC}, s65 offen{OPT.get('ntg', '')}
        s_mov_b64 exec, -1""")
    k('v_mov_b32 v249, v30\n v_mov_b32 v24, v8\n v_mov_b32 v25, v9')
    def dmas():
        nonlocal pos
        pos = []
        for n in range(8):
            k(f's_add_u32 m0, s67, {1024*n}\n s_add_u32 s44, s66, {((n>>1) + 256*(n&1))*2752}')
            k(f'buffer_load_dwordx4 v249, {RC}, s44 offen{OPT.get("ntg", "")} lds'); pos.append(k.nvm)
        for q in range(8): k(f'global_load_dwordx4 {A(GB+4*q,4)}, v[24:25], off offset:{1024*q-4096}')
    pos = None
    if OPT.get('dfirst'): dmas()
    srd(k, 24, 22, WS_USED)
    k(f"""v_lshlrev_b32 v31, 6, v10
    v_lshl_add_u32 v31, v12, 4, v31
    v_lshl_add_u32 v31, v11, 3, v31
    v_add_u32 v30, s67, v31
    v_xor_b32 v31, 32, v30
    v_mul_u32_u24 v6, {4*TPAD}, v2
    v_lshl_add_u32 v6, v3, 4, v6
    s_lshl_b32 s44, {WAVE}, 8
    s_add_u32 s44, s44, {TBASE}
    v_add_u32 v6, s44, v6              ; T write
    s_mul_i32 s44, {WAVE}, {4*TPAD}
    s_add_u32 s44, s44, {TBASE}
    v_add_u32 v7, s44, v4              ; T read
    s_lshl_b32 s44, s60, 2
    v_lshrrev_b32 v12, 3, v3
    v_and_b32 v13, 7, v3
    v_lshlrev_b32 v13, 4, v13
    v_lshl_add_u32 v13, v2, 8, v13
    s_lshl_b32 s45, {WAVE}, 12
    s_add_u32 s68, s45, {WP}
    v_mov_b32 v19, s61""")
    for pp in range(2):
        k(f"""v_add_u32 v14, s44, v12            ; octet
        v_mul_u32_u24 v15, 373, v14
        v_lshrrev_b32 v15, 12, v15
        v_add_u32 v14, v14, v15            ; q
        v_mul_u32_u24 v15, 171, v14
        v_lshrrev_b32 v15, 9, v15
        v_mul_u32_u24 v15, 3, v15          ; q - q%3
        v_sub_u32 v16, v14, v15            ; n
        v_cmp_eq_u32 vcc, 2, v16
        v_add_u32 v15, s61, v15
        s_add_u32 s44, s44, 2
        v_cndmask_b32 v15, v15, v14, vcc   ; tile
        v_cndmask_b32 v16, v16, v19, vcc
        v_mul_u32_u24 v15, {WPS}, v15
        v_add_u32 v{8+pp}, v15, v13
        v_lshl_add_u32 v{8+pp}, v16, 7, v{8+pp}""")
    tl = p2_tables(k)
    setup(k); setup_late(k, 'addr')
    if not OPT.get('dfirst'): dmas()
    stamp(k, 2, 'z')
    for dl in range(4):
        k(f's_waitcnt vmcnt({k.nvm - pos[2*dl+1]})')
        if dl == 0: stamp(k, 1)
        for pi in range(2):
            for h in range(2): k(f'ds_read_b64_tr_b16 {V(OP+8*dl+4*pi+2*h,2)}, v{30+pi} offset:{2048*dl+1024*h}')
    stamp(k, 3, 'z')
    k.sprinkle = tl; k.every = OPT.get('tev', 28); k.since = 100
    for dl in range(4):
        for pi in range(2):
            for c in range(2):
                k(f'v_mfma_f32_16x16x32_bf16 {V(DA+32*pi+16*c+4*dl,4)}, {A(FA+4*c,4)}, {V(OP+8*dl+4*pi,4)}, 0')
    for pi in range(2):
        for r in range(4):
            u = OP + 16*pi + 4*r
            for c in range(2):
                for h in range(2):
                    d = DA + 32*pi + 16*c + 8*h + r
                    k(f'v_cvt_pk_bf16_f32 v{u+2*c+h}, v{d}, v{d+4}')
            k(f'ds_write_b128 v6, {V(u,4)} offset:{16*TPAD*pi+TPAD*r}')
    flush(k)
    stamp(k, 4, 'z')
    k.wait(lg=0); k('s_barrier')
    stamp(k, 5, 'z')
    for pi in range(2):
        for q in range(4): k(f'ds_read_b128 {V(OP+16*pi+4*q,4)}, v7 offset:{16*TPAD*pi+TPAD*q}')
    go_load(k, 250)
    for pi in range(2):
        for q in range(4):
            for o in range(2):
                k(f'v_mfma_f32_16x16x32_bf16 {V(DA+32*pi+8*q+4*o,4)}, {A(GB+8*q+4*o,4)}, {V(OP+16*pi+4*q,4)}, 0')
    for pi in range(2):
        for p in range(2):
            for o in range(2):
                u = OP + 16*pi + 8*p + 4*o
                for hq in range(2):
                    for h in range(2):
                        d = DA + 32*pi + 8*(2*p+hq) + 4*o + 2*h
                        k(f'v_cvt_pk_bf16_f32 v{u+2*hq+h}, v{d}, v{d+1}')
                k(f'buffer_store_dwordx4 {V(u,4)}, v{8+pi}, {WSR}, s68 offen offset:{(2*p+o)*1024}{ST}')
    stamp(k, 2); stamp(k, 6, 'z')

def wt_rows(k, task, dst):
    k(f"""s_bfe_u32 s44, {task}, 0x30002
    s_lshl_b32 s44, s44, 3
    s_lshr_b32 s45, {task}, 5
    s_lshl_b32 s45, s45, 8
    s_add_u32 s44, s44, s45
    s_mul_i32 s{dst}, s44, 514
    s_and_b32 s45, {task}, 3
    s_lshl_b32 s45, s45, 7
    s_add_u32 s{dst}, s{dst}, s45
    s_add_u32 s{dst}, s{dst}, 2
    v_lshrrev_b32 v12, 3, v1
    v_and_b32 v13, 7, v1
    v_mul_u32_u24 v11, 514, v12
    v_lshl_add_u32 v11, v13, 4, v11
    s_mov_b32 s30, {2048*257*2}
    s_mov_b32 s31, 0x20000
    s_mov_b32 s34, {2048*257*2}
    s_mov_b32 s35, 0x20000""")
def wt_dest(k, task, dst):
    k(f"""s_lshl_b32 s{dst}, {task}, 13
    s_add_u32 s{dst}, s{dst}, {WT}
    s_mov_b32 s53, 0x05040100
    s_mov_b32 s54, 0x07060302
    v_mov_b32 v11, v4
    v_xor_b32 v12, v12, v13
    v_lshlrev_b32 v12, 4, v12
    v_lshl_add_u32 v12, v13, 10, v12""")
WSRDS = 's_mov_b32 s28, s6\n s_and_b32 s29, s7, 0xffff\n s_mov_b32 s32, s8\n s_and_b32 s33, s9, 0xffff'
def p1_t(k):
    WL, WO = 32, 64
    k(f's_sub_u32 s48, s2, {NC0}\n s_lshl_b32 s48, s48, 2\n s_add_u32 s48, s48, {WAVE}')
    wt_rows(k, 's48', 49)
    for r in range(1, 4): k(f's_add_u32 s{49+r}, s49, {64*r*514}')
    k.wait(lg=0)
    k(WSRDS)
    for r in range(4):
        k(f'buffer_load_dwordx4 {V(WL+8*r,4)}, v11, {RA}, s{49+r} offen{OPT.get("ntw", "")}')
        k(f'buffer_load_dwordx4 {V(WL+8*r+4,4)}, v11, {RB}, s{49+r} offen{OPT.get("ntw", "")}')
    srd(k, 24, 22, WS_USED)
    wt_dest(k, 's48', 56)
    k(f's_lshl_b32 s44, {WAVE}, 13\n v_add_u32 v12, s44, v12\n v_add_u32 v14, s44, v4')
    for n in range(1, 8): k(f's_add_u32 s{56+n}, s56, {1024*n}\n v_xor_b32 v{14+n}, {16*n}, v14')
    tl = p2_tables(k)
    for i in range(8):
        o = WO + 4*i
        for r in range(4): k(f'v_perm_b32 v{o+r}, v{WL+8*r+4+(i>>1)}, v{WL+8*r+(i>>1)}, s{53+(i&1)}')
        k(f'ds_write_b128 v12, {V(o,4)} offset:{128*i}')
        if OPT.get('ttpre'):
            for t in tl[2*i:2*i+2]: k(t)
    stamp(k, 1)
    if OPT.get('twe'): twiddles(k)
    for n in range(8): k(f'ds_read_b128 {V(WL+4*n,4)}, v{14+n} offset:{1024*n}')
    go_load(k, 250)
    for n in range(8): k(f'buffer_store_dwordx4 {V(WL+4*n,4)}, v11, {WSR}, s{56+n} offen{ST}')
    stamp(k, 2)

def p1_i(k):
    k.wait(lg=0)
    srd(k, 24, 22, WS_USED)
    k(f"""s_lshl_b32 s44, s2, 2
    s_add_u32 s44, s44, {WAVE}
    s_cmp_lg_u32 s44, {255*4}
    s_cbranch_scc1 L_noinit
    v_lshlrev_b32 v30, 8, v1
    v_lshlrev_b32 v31, 8, v3
    v_mov_b32 v32, 0
    s_mov_b32 s44, {FLG}
    s_mov_b32 s45, {FLG+16384}
    buffer_store_dword v32, v30, {WSR}, s44 offen{ST}
    v_lshlrev_b32 v33, 7, v1
    buffer_store_dword v32, v33, {WSR}, s45 offen{ST}
    s_add_u32 s45, s45, 8192
    buffer_store_dword v32, v33, {WSR}, s45 offen{ST}
    buffer_store_dword v32, v31, {WSR}, 0 offen{ST}
    v_mov_b32 v33, 1
    s_waitcnt vmcnt(0)
    s_mov_b64 exec, 1
    global_store_dword v32, v33, s[20:21]{ST}
    s_mov_b64 exec, -1""")
    k.label('L_noinit')
    k(f"""s_sub_u32 s60, s2, {NI0}
    s_lshl_b32 s61, s60, 1
    s_lshr_b32 s44, {WAVE}, 1
    s_add_u32 s61, s61, s44            ; t
    s_and_b32 s62, {WAVE}, 1
    s_lshl_b32 s62, s62, 2             ; p
    s_add_u32 s63, s62, 4
    s_lshl_b32 s44, s61, 5
    s_add_u32 s44, s44, 1
    v_lshl_add_u32 v30, v3, 1, s44     ; 2d+1
    v_and_b32 v31, 1, v2
    v_lshlrev_b32 v31, 7, v31
    v_cmp_lt_u32 s[64:65], 1, v2
    v_mov_b32 v36, {fbits(1/16)}
    s_mul_i32 s61, s61, {12*WPS}
    s_add_u32 s61, s61, {WP+11*WPS}""")
    for t in p2_tables(k): k(t)
    if OPT.get('twe'): twiddles(k)
    stamp(k, 1)
    k.fence(); k.label('L_inv')
    k(f"""s_lshl_b32 s44, s62, 1
    s_sub_u32 s45, 32, s44
    s_cmp_eq_u32 s44, 0
    s_cselect_b32 s45, 16, s45
    v_mov_b32 v33, s44
    v_mov_b32 v34, s45
    v_cndmask_b32 v33, v33, v34, s[64:65]
    v_add_u32 v33, v33, v31
    s_add_u32 s44, s44, 1
    s_sub_u32 s45, 32, s44
    v_mov_b32 v34, s44
    v_mov_b32 v35, s45
    v_cndmask_b32 v34, v34, v35, s[64:65]
    v_add_u32 v34, v34, v31
    v_cmp_eq_u32 vcc, 0, v33
    v_mov_b32 v35, 0x100
    v_mov_b32 v37, {fbits(1/math.sqrt(512))}
    v_cndmask_b32 v35, v33, v35, vcc
    v_cndmask_b32 v37, v36, v37, vcc
    s_lshl_b32 s45, s62, 11
    s_add_u32 s66, s61, s45""")
    for e in range(8):
        src = 'v35' if e == 0 else None
        if e: k(f'v_add_u32 v{40+e}, {32*(e&3)}, v{33+(e>>2)}')
        k(f'v_mul_u32_u24 v{40+e}, {src or V(40+e)}, v30')
        k(f'v_and_b32 v{40+e}, 0x3ff, v{40+e}')
        k(f'v_cvt_f32_u32 v{40+e}, v{40+e}')
        k(f'v_mul_f32 v{40+e}, {fbits(1/1024)}, v{40+e}')
    for e in range(8):
        k(f'v_cos_f32 v{48+e}, v{40+e}\n v_sin_f32 v{56+e}, v{40+e}')
    for e in range(8):
        sc = 'v37' if e == 0 else 'v36'
        k(f'v_mul_f32 v{48+e}, {sc}, v{48+e}\n v_mul_f32 v{56+e}, {sc}, -v{56+e}')
    for part in range(2):
        for h in range(4): k(f'v_cvt_pk_bf16_f32 v{64+4*part+h}, v{48+8*part+2*h}, v{48+8*part+2*h+1}')
        k(f'buffer_store_dwordx4 {V(64+4*part,4)}, v4, {WSR}, s66 offen offset:{1024*part}{ST}')
    k('s_add_u32 s62, s62, 1\n s_cmp_lt_u32 s62, s63\n s_cbranch_scc1 L_inv')
    go_load(k, 250)
    stamp(k, 2)

WDL, WDO = 128, 48
def wd_task(k):
    k(f"""s_lshl_b32 s44, {WAVE}, 7
    s_add_u32 s44, s44, s2
    s_sub_u32 s44, s44, 128
    s_min_u32 s44, s44, 352""")
def wd_issue(k):
    srd(k, 36, 16, F*D*2)
    wd_task(k)
    k(f"""s_and_b32 s45, s44, 1
    s_lshr_b32 s44, s44, 1
    s_lshl_b32 s44, s44, 13
    s_lshl_b32 s45, s45, 9
    s_add_u32 s56, s44, s45
    s_add_u32 s57, s56, 4096
    v_lshlrev_b32 v20, 3, v1""")
    return [f'buffer_load_dwordx2 {V(WDL+2*e,2)}, v20, {RC}, s{56+(e>>2)} offen offset:{1024*(e&3)}{OPT.get("ntd", "")}' for e in range(8)]
def wd_pack(k):
    for pi in range(4):
        for h in range(4): k(f'v_perm_b32 v{WDO+4*pi+h}, v{WDL+4*h+2+(pi>>1)}, v{WDL+4*h+(pi>>1)}, s{53+(pi&1)}')
def wd_finish(k):
    wd_task(k)
    k(f's_cmp_lt_u32 s2, {NZ}\n s_cselect_b32 s73, s44, 352\n s_cmp_ge_u32 s73, 352\n s_cbranch_scc1 L_nowd')
    st = k.state()
    k(f"""s_lshr_b32 s44, s73, 4
    s_bfe_u32 s45, s73, 0x20002
    s_lshl_b32 s44, s44, 11
    s_mul_i32 s45, s45, {WDS}
    s_add_u32 s44, s44, s45
    s_and_b32 s45, s73, 1
    s_mul_i32 s45, s45, {16*WDS}
    s_add_u32 s44, s44, s45
    s_bfe_u32 s45, s73, 0x10001
    s_lshl_b32 s45, s45, 9
    s_add_u32 s44, s44, s45
    s_add_u32 s44, s44, {WD}
    v_mul_u32_u24 v30, {4*WDS}, v2
    v_bfe_u32 v31, v1, 3, 1
    v_lshl_add_u32 v30, v31, 10, v30
    v_and_b32 v31, 7, v1
    v_lshl_add_u32 v30, v31, 4, v30""")
    for pi in range(4): k(f'buffer_store_dwordx4 {V(WDO+4*pi,4)}, v30, {WSR}, s44 offen offset:{128*pi}{ST}')
    k.fence()
    k.restore(st); k.label('L_nowd')

STATL = 131072
def p4_ids(k):
    k(f"""s_and_b32 s44, s2, 7
    s_lshl_b32 s44, s44, 2
    s_bfe_u32 s46, s2, 0x20003
    s_add_u32 s44, s44, s46
    s_lshr_b32 s45, s2, 5""")

def setup(k):
    if OPT.get('x216'):
        k(f"""s_and_b32 s44, s2, 7
        s_lshl_b32 s44, s44, 1
        s_bfe_u32 s45, s2, 0x10003
        s_add_u32 s48, s44, s45
        s_lshr_b32 s49, s2, 4
        s_lshl_b32 s45, s45, 2
        s_mov_b32 s46, s49""")
    elif OPT.get('x48'):
        k(f"""s_and_b32 s44, s2, 3
        s_lshl_b32 s44, s44, 2
        s_bfe_u32 s45, s2, 0x20003
        s_add_u32 s48, s44, s45
        s_and_b32 s44, s2, 4
        s_lshl_b32 s44, s44, 1
        s_lshr_b32 s46, s2, 5
        s_add_u32 s49, s44, s46
        s_lshl_b32 s45, s45, 1""")
    else:
        k(f"""s_and_b32 s44, s2, 1
        s_lshl_b32 s44, s44, 3
        s_bfe_u32 s45, s2, 0x30003
        s_add_u32 s48, s44, s45
        s_bfe_u32 s44, s2, 0x20001
        s_lshl_b32 s44, s44, 2
        s_lshr_b32 s46, s2, 6
        s_add_u32 s49, s44, s46
        s_lshl_b32 s46, s46, 1""")
    k(f"""s_mov_b32 s53, 0
    s_lshl_b32 s46, s48, 11
    s_lshl_b32 s47, s49, 7
    s_add_u32 s41, s46, s47
    s_add_u32 s41, s41, {RBF}
    v_mov_b32 v250, 0""")
    stamp(k, 7, 'z')
    k(f"""s_and_b32 s74, s2, 7
    s_lshl_b32 s74, s74, 8
    s_add_u32 s75, s74, {FLG}
    s_and_b32 s44, s2, 1
    s_mul_i32 s44, s44, 44
    s_bfe_u32 s45, s2, 0x20001
    s_mul_i32 s45, s45, 11
    s_add_u32 s44, s44, s45
    s_bfe_u32 s45, s2, 0x40003
    s_add_u32 s44, s44, s45
    s_sub_u32 s45, s2, {NI0-88}
    s_cmp_ge_u32 s2, {NI0}
    s_cselect_b32 s44, s45, s44
    s_cselect_b32 s46, 0, s2
    s_lshl_b32 s44, s44, 7
    s_add_u32 s71, s44, {FLG+16384}
    s_cmp_lt_u32 s2, {NZ}
    s_cselect_b32 s71, 0, s71
    s_cmp_ge_u32 s46, {NC0}
    s_cselect_b32 s71, 0, s71
    v_mov_b32 v251, 1
    s_mov_b32 s63, 0x80008000""")

def twiddles(k):
    k(f"""s_lshl_b32 s44, {WAVE}, 4
    v_add_u32 v240, s44, v3
    v_cvt_f32_u32 v240, v240
    v_mul_f32 v240, {fbits(1/2048)}, v240
    v_lshlrev_b32 v241, 2, v2
    v_add_u32 v242, s44, v241
    v_cvt_f32_u32 v241, v241
    v_cvt_f32_u32 v242, v242
    v_cvt_f32_u32 v243, v3
    v_mul_f32 v243, {fbits(1/2048)}, v243""")
    for be in range(2):
        for r in range(4):
            t = TW1 + 8*be + r
            k(f'v_add_f32 v{t}, {fbits(16*be+r)}, v241\n v_mul_f32 v{t}, v{t}, v240')
            k(f'v_sin_f32 v{t+4}, v{t}\n v_cos_f32 v{t}, v{t}')
    for be in range(2):
        if be: k(f'v_add_f32 v243, {fbits(16/2048)}, v243')
        for r in range(4):
            t = TW2 + 8*be + r
            k(f'v_add_f32 v{t}, {fbits(r)}, v242\n v_mul_f32 v{t}, v{t}, v243')
            k(f'v_sin_f32 v{t+4}, v{t}\n v_cos_f32 v{t}, v{t}')

def setup_late(k, part=None):
    k(f"""s_mul_i32 s44, s49, 11
    s_add_u32 s45, s44, 10
    s_lshr_b32 s44, s44, 2
    s_lshr_b32 s45, s45, 2
    v_and_b32 v23, 3, v1
    v_add_u32 v23, s44, v23
    v_min_u32 v23, s45, v23
    v_bfe_u32 v240, v1, 2, 1
    v_mul_u32_u24 v240, 44, v240
    v_add_u32 v23, v23, v240
    s_lshr_b32 s44, s49, 1
    s_add_u32 s44, s44, 88
    v_mov_b32 v240, s44
    v_cmp_gt_u32 vcc, 8, v1
    v_cndmask_b32 v23, v240, v23, vcc
    v_lshlrev_b32 v23, 7, v23
    v_add_u32 v23, {FLG+16384}, v23""")
    if part != 'addr':
        if OPT.get('twe'):
            uid[0] += 1; u = uid[0]
            k(f's_cmp_ge_u32 s2, {NC0}\n s_cbranch_scc1 L_tw{u}')
            twiddles(k); k.fence(); k.label(f'L_tw{u}')
        else: twiddles(k)
    for u in range(4):
        k(f's_add_u32 s45, {WAVE}, {u}\n s_and_b32 s45, s45, 3\n s_lshl_b32 s45, s45, 11\n v_add_u32 v{16+u}, s45, v4')
    k(f"""s_and_b32 s58, s2, 0xf6
    s_bfe_u32 s45, s2, 0x10003
    s_add_u32 s58, s58, s45
    s_and_b32 s45, s2, 1
    s_lshl_b32 s45, s45, 3
    s_add_u32 s58, s58, s45
    s_lshl_b32 s44, s58, 6
    s_lshl_b32 s45, {WAVE}, 19
    s_add_u32 s44, s44, s45
    s_add_u32 s55, s44, {ZT}
    s_add_u32 s56, s55, 0x10000
    s_lshr_b32 s44, s58, 4
    s_sub_u32 s45, 32, s44
    s_cmp_eq_u32 s44, 0
    s_cselect_b32 s45, 16, s45
    s_bitcmp1_b32 s58, 3
    s_cselect_b32 s44, s45, s44
    s_and_b32 s45, s58, 7
    s_lshl_b32 s45, s45, 5
    s_add_u32 s44, s44, s45
    s_sub_u32 s44, s44, 1
    s_and_b32 s44, s44, 255
    s_lshl_b32 s44, s44, 7
    s_lshl_b32 s45, {WAVE}, 16
    s_add_u32 s44, s44, s45
    s_add_u32 s59, s44, {WT}
    s_add_u32 s60, s59, 0x100000
    v_and_b32 v15, 7, v1
    v_lshlrev_b32 v15, 4, v15
    v_bfe_u32 v14, v1, 3, 1
    v_lshl_add_u32 v15, v14, 15, v15
    v_lshl_add_u32 v15, v2, 18, v15
    s_lshl_b32 s45, {WAVE}, 12
    s_add_u32 s61, s45, {SM}
    v_lshrrev_b32 v21, 2, v3
    v_lshlrev_b32 v21, 7, v21
    v_lshl_add_u32 v21, v2, 10, v21
    v_and_b32 v22, 3, v1
    v_lshlrev_b32 v14, 4, v22
    v_lshl_add_u32 v14, v21, 7, v14
    v_lshl_add_u32 v22, v22, 4, v21
    s_mov_b32 s63, 0x80008000""")

def setup2(k):
    k(f"""v_lshrrev_b32 v20, 2, v1
    v_lshlrev_b32 v20, 15, v20
    v_and_b32 v24, 3, v1
    v_lshl_add_u32 v20, v24, 4, v20
    s_lshr_b32 s44, s58, 5
    s_lshl_b32 s44, s44, 6
    s_and_b32 s45, s58, 31
    s_add_u32 s44, s44, s45
    s_lshl_b32 s44, s44, 6
    s_lshl_b32 s45, {WAVE}, 19
    s_add_u32 s44, s44, s45
    s_add_u32 s62, s44, {HT}
    s_mul_i32 s44, s49, 11
    s_mul_i32 s45, {WAVE}, 3
    s_add_u32 s50, s44, s45
    s_add_u32 s44, s50, s49
    s_mul_i32 s44, s44, {WPS}
    s_add_u32 s44, s44, {WP}
    v_add_u32 v248, s44, v4
    v_add_u32 v249, {WPS}, v248
    v_add_u32 v255, {2*WPS}, v248
    s_and_b32 s46, {WAVE}, 1
    s_lshr_b32 s47, {WAVE}, 1
    s_lshl_b32 s45, s46, 15
    s_lshl_b32 s54, s47, 12
    s_add_u32 m0, s54, s45
    s_lshl_b32 s44, s48, 17
    s_add_u32 s44, s44, {HT}
    v_and_b32 v6, 1, v2
    v_lshlrev_b32 v6, 5, v6
    v_xor_b32 v5, v6, v4
    v_add_u32 v5, s44, v5
    v_lshrrev_b32 v7, 2, v1
    v_lshl_add_u32 v6, v7, 6, v6
    v_lshl_add_u32 v6, v24, 3, v6
    s_lshl_b32 s44, s47, 5
    s_add_u32 s44, s44, s45
    v_xor_b32 v6, s44, v6
    v_xor_b32 v7, 32, v6
    v_lshrrev_b32 v9, 2, v3
    v_cmp_eq_u32 vcc, v9, v2
    s_lshl_b32 s47, s47, 8
    s_lshl_b32 s44, s46, 9
    s_add_u32 s44, s44, s47
    s_add_u32 s44, s44, {STATL}
    v_lshl_add_u32 v10, v3, 4, s44     ; statistics reads
    v_xor_b32 v8, 0x100, v10
    v_add_u32 v9, {STATL+2048}, v4
    v_cndmask_b32 v9, v9, v10, vcc     ; statistics write (other lanes go to a dummy area)
    v_lshrrev_b32 v24, 1, v2
    v_lshlrev_b32 v11, 8, v24
    v_xor_b32 v11, v11, v10            ; statistics for the mixed tile
    s_mov_b32 s64, 0x22222222
    s_mov_b32 s65, s64
    s_mov_b32 s66, 0x44444444
    s_mov_b32 s67, s66
    s_mov_b32 s68, 0x88888888
    s_mov_b32 s69, s68
    v_add_u32 v25, s50, v24
    v_lshrrev_b32 v12, 1, v25
    v_mul_u32_u24 v12, {HFS}, v12
    v_and_b32 v25, 1, v25
    v_lshl_add_u32 v12, v25, 9, v12
    v_and_b32 v25, 0x1f0, v4
    v_xor_b32 v25, s47, v25
    v_add_u32 v12, v25, v12
    s_add_u32 s44, s50, 2
    s_lshr_b32 s45, s44, 1
    s_mul_i32 s45, s45, {HFS}
    s_and_b32 s44, s44, 1
    s_lshl_b32 s44, s44, 9
    s_add_u32 s44, s44, s45
    v_lshlrev_b32 v13, 8, v24
    v_xor_b32 v13, s47, v13
    v_add_u32 v13, s44, v13
    v_lshl_add_u32 v13, v3, 4, v13
    v_and_b32 v25, 1, v2
    v_xor_b32 v25, 1, v25
    v_lshlrev_b32 v25, 10, v25
    s_lshl_b32 s44, s46, 1
    s_sub_u32 s44, 1, s44
    v_mul_i32_i24 v25, s44, v25
    v_sub_u32 v13, v13, v25""")
    wsrd(k, 32, HF+86*HFS)
    if OPT.get('wtouch'):
        k(f"""s_and_b32 s44, s48, 7
        s_lshl_b32 s44, s44, 11
        v_sub_u32 v14, v248, v4
        v_lshl_add_u32 v14, v2, 14, v14
        v_lshl_add_u32 v14, v3, 7, v14
        v_add_u32 v14, s44, v14
        v_cmp_gt_u32 vcc, 3, v2
        v_cndmask_b32 v14, -1, v14, vcc""")

def p2_negs(k, base):
    for u in range(4):
        for h in range(2): k(f'v_xor_b32 v{base+6*u+h}, s63, v{base+6*u+4+h}')

def wd_reg(u, i): return A(192+8*u+4*i, 4) if u < 8 else V(144+8*(u-8)+4*i, 4)
def wd_loads(u):
    o = [f'buffer_load_dwordx4 {wd_reg(u+s,i)}, v15, {WSR}, s51 offen offset:{2048*s+1024*i}{LD}' for s in range(2) for i in range(2)]
    return o + ['s_add_u32 s51, s51, 4096']
def wloads(R=RA):
    return [f'buffer_load_dwordx4 {A(12*ka+4*t,4)}, v{(248, 249, 255)[t]}, {R}, {("0", "s70", "s71", "s72")[ka>>2]} offen offset:{1024*(ka&3)}{LD}' for ka in range(16) for t in range(3)]

def p2(k):
    Z, WW, SG, DD, TT, PK = 32, 64, 80, 88, 104, 240
    for u in range(1 if not OPT.get('zall') else 4):
        for be in range(2): k(f'buffer_load_dwordx4 {V(Z+8*u+4*be,4)}, v14, {WSR}, s{55+be} offen{LD}')
    lds_ = f"""buffer_load_dwordx4 {V(WW+4,4)}, v15, {WSR}, s59 offen{LD}
    buffer_load_dwordx4 {V(WW+12,4)}, v15, {WSR}, s60 offen{LD}
    buffer_load_dwordx4 {V(SG,4)}, v22, {WSR}, s61 offen{LD}
    buffer_load_dwordx4 {V(SG+4,4)}, v22, {WSR}, s61 offen offset:512{LD}""".split('\n')
    lds_.insert(OPT.get('fpos', 2), f'buffer_load_dword v26, v23, {WSR}, 0 offen{LD}')
    if OPT.get('wnow'):
        for t in lds_: k(t)
    else:
        k.sprinkle = [t.strip() for t in lds_]; k.every = 60; k.since = 0
    setup2(k); flush(k)
    k(f"""s_mov_b32 s28, s24
    s_mov_b32 s29, s25
    s_mov_b32 s31, 0x20000
    s_mov_b32 s36, s24
    s_mov_b32 s37, s25
    s_mov_b32 s39, 0x20000
    s_mov_b32 s70, 4096
    s_mov_b32 s71, 8192
    s_mov_b32 s72, 12288""")
    def check1():
        k(f'v_cmp_ne_u32 vcc, 1, v26\n s_cmp_eq_u64 vcc, 0\n s_cselect_b32 s30, {WS_USED}, 0')
        k(f'buffer_load_dword v27, v23, {WSR}, 0 offen{LD}')
        if OPT.get('wtouch'): k(f'buffer_load_dword v25, v14, {RA}, 0 offen{LD}')
        k.sprinkle = wloads(); k.every = OPT.get('every', 64); k.since = 100; k.lazy = OPT.get('lazy', 1)
    def unpack():
        for t in range(2):
            for r in range(4):
                k(f'v_lshlrev_b32 v{WW+8*t+r}, 16, v{WW+8*t+4+r}\n v_and_b32 v{WW+8*t+4+r}, 0xffff0000, v{WW+8*t+4+r}')
    if not OPT.get('zall'):
        for be in range(2): k(f'ds_write_b128 v16, {V(Z+4*be,4)} offset:{8192+1024*be}')
    for u in range(4):
        for be in range(2):
            for o in range(2):
                d = V(DD+8*be+4*o, 4)
                k(f'v_mfma_f32_16x16x32_f16 {d}, {V(Z+8*u+4*be,4)}, {V(B1+6*u+2-2*o,4)}, {"0" if u==0 else d}')
        if u == 0:
            stamp(k, 5); stamp(k, 2, 'b')
            if not OPT.get('zall'):
                k.wait(lg=0); k('s_barrier')
                for v in range(1, 4):
                    for be in range(2): k(f'ds_read_b128 {V(Z+8*v+4*be,4)}, v{16+v} offset:{8192+1024*be}')
                if OPT.get('c1') == 0: check1()
    if OPT.get('c1') == 1: check1()
    E = Z + 8
    for be in range(2):
        cmul(k, DD+8*be, DD+8*be+4, TW1+8*be, TW1+8*be+4, TT, TT+4, True)
        for h in range(4): k(f'v_cvt_pk_f16_f32 v{PK+4*be+h}, v{TT+2*h}, v{TT+2*h+1}')
        for t in range(2):
            for o in range(2):
                d = V(E+8*t+4*o, 4)
                k(f'v_mfma_f32_16x16x32_f16 {d}, {V(A2+6*(2*t+be)+2-2*o,4)}, {V(PK+4*be,4)}, {"0" if be==0 else d}')
    def check2():
        global n1
        n1 = 48 - len(k.sprinkle); k.sprinkle = []
        k(f'v_cmp_ne_u32 vcc, 1, v27\n s_cmp_eq_u64 vcc, 0\n s_cselect_b32 s38, {WS_USED}, 0')
        if OPT.get('wtouch') == 2: k(f's_sub_u32 s44, {WS_USED}, s30\n s_cselect_b32 s44, 0, 0\n s_cmp_eq_u32 s30, 0\n s_cselect_b32 s44, 0, {WS_USED}\n buffer_load_dword v25, v14, {RC}, s44 offen{LD}')
        k.sprinkle = wloads(RC)[n1:]
    if OPT.get('c1') == 2: check1()
    unpack()
    stamp(k, 3, 'b')
    if OPT.get('c2', 0) == 0: check2()
    for t in range(2):
        cmul(k, E+8*t, E+8*t+4, WW+8*t, WW+8*t+4, TT, TT+4, False)
        for h in range(4): k(f'v_cvt_pk_bf16_f32 v{PK+4*t+h}, v{TT+2*h}, v{TT+2*h+1}')
        for be in range(2):
            for o in range(2):
                d = V(DD+8*be+4*o, 4)
                k(f'v_mfma_f32_16x16x32_bf16 {d}, {V(PK+4*t,4)}, {V(B3+6*(2*be+t)+2-2*o,4)}, {"0" if t==0 else d}')
    if OPT.get('c2', 0) == 1: check2()
    for be in range(2):
        cmul(k, DD+8*be, DD+8*be+4, TW2+8*be, TW2+8*be+4, TT, TT+4, False)
        for h in range(4): k(f'v_cvt_pk_bf16_f32 v{PK+4*be+h}, v{TT+2*h}, v{TT+2*h+1}')
        k(f'ds_write_b128 v16, {V(PK+4*be,4)} offset:{1024*be}')
    def step4(u, src):
        for be in range(2):
            for o in range(2):
                d = V(DD+8*be+4*o, 4)
                k(f'v_mfma_f32_16x16x32_bf16 {d}, {V(A4+6*u+2-2*o,4)}, {V(src+4*be,4)}, {d}')
    for o in range(2):
        for be in range(2):
            for r in range(4):
                d = DD+8*be+4*o+r; hi = r & 1
                k(f'v_fma_mix_f32 v{d}, v{SG+4*be+r}, v{Z+4*be+2*o+(r>>1)}, 0 op_sel:[0,{hi},0] op_sel_hi:[0,1,0]')
    stamp(k, 4, 'b')
    k.wait(lg=0); k('s_barrier')
    for u in range(1, 4):
        for be in range(2): k(f'ds_read_b128 {V(Z+8*u+4*be,4)}, v{16+u} offset:{1024*be}')
    step4(0, PK)
    for u in range(1, 4): step4(u, Z+8*u)
    OUT = 64
    rest, k.sprinkle = k.sprinkle, []
    for o in range(2):
        for be in range(2):
            for h in range(2): k(f'v_cvt_pk_bf16_f32 v{OUT+4*o+2*be+h}, v{DD+8*be+4*o+2*h}, v{DD+8*be+4*o+2*h+1}')
    k('s_cmp_lg_u32 s2, 0\n s_cbranch_scc1 L_p2_st')
    for h in range(4): k(f'v_mov_b32 v{OUT+4+h}, v{OUT+h}\n v_mov_b32 v{OUT+h}, 0')
    k.label('L_p2_st')
    for o in range(2): k(f'buffer_store_dwordx4 {V(OUT+4*o,4)}, v20, {WSR}, s62 offen offset:{2048*o}{ST}')
    stamp(k, 5, 'b')
    return rest

def barrier2(k, rest):
    print('weight loads left after phase 2:', len(rest))
    k(f's_lshl_b32 s44, s48, 12\n s_add_u32 s44, s44, {HF}')
    k(f's_and_b32 s46, {WAVE}, 1')
    for p in range(4): k(f's_xor_b32 s45, s46, {p}\n s_lshl_b32 s45, s45, 10\n s_add_u32 s{55+p}, s44, s45')
    k(f"""s_lshl_b32 s44, s49, 17
    s_lshl_b32 s45, s48, 11
    s_add_u32 s44, s44, s45
    s_add_u32 s59, s44, {HRES}
    s_add_u32 s60, s59, 0x10000
    s_lshl_b32 s44, s48, 10
    s_add_u32 s61, s44, {SM+64}
    s_mov_b32 s46, 0""")
    print('group 1:', n1)
    stamp(k, 6)
    nA = min(OPT.get('nA', 12), len(rest)); nB = min(OPT.get('nB', 48), len(rest) - nA)
    n2 = 48 - len(rest) + nA
    for t in rest[:nA]: k(t)
    rest = [t.replace(RC, WSR) for t in rest]
    stamp(k, 6, 'b')
    k(f'v_mov_b32 v250, 0\n v_mov_b32 v251, 1\n s_cmp_lg_u32 {WAVE}, 0\n s_cbranch_scc1 L_b2o')
    st = k.state()
    k(f's_mov_b64 exec, 1\n s_waitcnt vmcnt({nA})'); stamp(k, 7, 'b'); k('s_barrier'); stamp(k, 8, 'b')
    k(f'buffer_atomic_add v251, v250, {WSR}, s74 offen sc0 sc1')
    k('s_barrier')
    stamp(k, 9, 'b'); arrive_check(k, 250, 's75', 51, 2); stamp(k, 10, 'b')
    if OPT.get('hold'): k('s_barrier')
    k('s_mov_b64 exec, -1\n s_branch L_b2m')
    k.restore(st); k.label('L_b2o')
    k(f's_waitcnt vmcnt({nA})'); stamp(k, 7, 'b'); k('s_barrier'); stamp(k, 8, 'b')
    k('s_barrier')
    if OPT.get('hold'): k('s_barrier')
    stamp(k, 9, 'b'); stamp(k, 10, 'b')
    k.label('L_b2m')
    k(f's_cmp_lg_u32 s30, 0\n s_cbranch_scc1 L_bok')
    st = k.state()
    k(f's_cmp_lg_u32 s38, 0\n s_cbranch_scc1 L_bok2')
    k.label('L_bchk')
    k(f"""buffer_load_dword v26, v23, {WSR}, 0 offen{LD}
    s_add_u32 s46, s46, 1
    s_waitcnt vmcnt(0)
    v_cmp_ne_u32 vcc, 1, v26
    s_cmp_gt_u32 s46, {SPIN}
    s_cbranch_scc1 L_bgo
    s_cbranch_vccnz L_bchk""")
    k.label('L_bgo')
    for t in wloads(WSR)[n1:n2]: k(t)
    k.label('L_bok2')
    for t in wloads(WSR)[:n1]: k(t)
    k.restore(st)
    k.label('L_bok')
    for t in rest[nA:nA+nB]: k(t)
    if OPT.get('retouch'):
        def rt():
            k('s_lshr_b32 s44, s2, 3\n s_lshl_b32 s44, s44, 10\n v_lshl_add_u32 v252, v3, 6, s44')
            k.raw('    v_min_u32 v252, L_notz-L_b2x-4, v252\n    s_sub_u32 s44, s42, tables-L_b2x\n    s_subb_u32 s45, s43, 0'); k.pos += 3
            k('v_mov_b32 v253, s45\n v_add_co_u32 v252, vcc, s44, v252\n v_addc_co_u32 v253, vcc, 0, v253, vcc\n s_mov_b64 exec, 0xffff\n global_load_dword v254, v[252:253], off')
        only_wave(k, 2, rt)
    only_wave(k, 0, lambda: poll(k, 250, 2))
    global late_w
    late_w = rest[nA+nB:]
    def hw():
        k('v_bfe_u32 v16, v1, 2, 1\n v_lshlrev_b32 v16, 9, v16\n v_bfe_u32 v17, v1, 3, 1\n v_lshl_add_u32 v16, v17, 4, v16\n v_and_b32 v17, 3, v1\n v_lshl_add_u32 v16, v17, 2, v16')
        for j in range(8): k(f'buffer_load_dword v{MUV+j}, v16, {WSR}, s61 offen offset:{128*((j^3)>>1)+32*((j^3)&1)}{LD}')
    global hw_means, st3
    hw_means = hw
    k(f's_cmp_eq_u32 {WAVE}, 3\n s_cbranch_scc1 L_p3h')
    st3 = k.state()
    if OPT.get('isl'):
        k(f's_mov_b64 exec, 0\n s_cmp_eq_u32 {WAVE}, 1\n s_cbranch_scc1 L_isl0_0\n s_branch L_isl0_{OPT.get("islmid", 32)}')
        k.label('L_islret0'); k('s_mov_b64 exec, -1')
    k.label('L_b2x')

ACT, ACC, TM, STV, MUV = 32, 64, 128, 16, 24
def cost(t):
    m = t.split()[0]
    if m.startswith('buffer'): return 18 + 4 * t.count('\n')
    if m.startswith(('v_exp', 'v_rcp', 'v_rsq', 'v_permlane', 'ds_write')): return 8
    return 4 * (t.count('\n') + 1)

def p3_body(k, hw):
    acc = lambda p, n, m, par=0: ACC + 32*(p & 1) + 8*(n + (par if n == 2 and hw else 0)) + 4*m
    GR = 28 if not hw else TM + 12
    dma_pos = []
    def dma(j):
        return f'buffer_load_dwordx4 v5, {WSR}, m0 offen offset:{1024*(j&3)}{LD} lds'
    def m0step(j): return [f's_add_u32 m0, m0, {8192 + (32768 if j == 15 else 0)}'] if j & 3 == 3 and j < 31 else []
    def slot(g, m): return ACT + 8*(g & 3) + 4*m
    def reads(g):
        p, ka = divmod(g, 16); o = []
        if p and ka == 0:
            x = (p ^ (p-1)) << 15
            o = [f'v_xor_b32 v6, {x:#x}, v6', f'v_xor_b32 v7, {x:#x}, v7']
        return o + [f'ds_read_b64_tr_b16 {V(slot(g,m)+2*h,2)}, v{6+m} offset:{2048*ka+1024*h}' for m in range(2) for h in range(2)]
    def chains(p, J):
        if p == 3:
            P = J[::2]
            o = [f'v_pk_mul_f32 {V(t,2)}, {V(g,2)}, {V(g,2)}' for g, u, t, c in P]
            o += [f'v_pk_fma_f32 {V(t,2)}, {V(t,2)}, {V(c,2)}, {V(c,2)} op_sel:[0,1,0] op_sel_hi:[1,1,0]' for g, u, t, c in P]
            o += [f'v_pk_mul_f32 {V(t,2)}, {V(t,2)}, {V(g,2)}' for g, u, t, c in P]
            o += [f'v_exp_f32 v{t}, v{t}' for g, u, t, c in J]
            o += [f'v_pk_mul_f32 {V(g,2)}, {V(g,2)}, {V(u,2)}' for g, u, t, c in P]
            o += [f'v_pk_fma_f32 {V(t,2)}, {V(t,2)}, {V(c+2,2)}, {V(c+2,2)} op_sel_hi:[1,0,0]' for g, u, t, c in P]
            o += [f'v_rcp_f32 v{t}, v{t}' for g, u, t, c in J]
            o += [f'v_pk_mul_f32 {V(g,2)}, {V(g,2)}, {V(t,2)}' for g, u, t, c in P]
            return o
        o = [f'v_mul_f32 v{t}, v{g}, v{g}' for g, u, t, c in J]
        o += [f'v_mul_f32 v{u}, v{g}, v{u}' for g, u, t, c in J]
        o += [f'v_fma_f32 v{t}, v{t}, v{c+1}, v{c}' for g, u, t, c in J]
        o += [f'v_mul_f32 v{t}, v{t}, v{g}' for g, u, t, c in J]
        o += [f'v_exp_f32 v{t}, v{t}' for g, u, t, c in J]
        o += [f'v_fma_f32 v{t}, v{t}, v{c+2}, v{c+2}' for g, u, t, c in J]
        o += [f'v_rcp_f32 v{t}, v{t}' for g, u, t, c in J]
        o += [f'v_mul_f32 v{g}, v{u}, v{t}' for g, u, t, c in J]
        return o
    def epilogue(p):
        HA, HX = TM + 8, TM + 12
        J = [(acc(p, 0, m)+r, acc(p, 1, m)+r, TM+4*m+r, STV+4*m) for m in range(2) for r in range(4)]
        o = []
        if not hw: o += [f'v_permlane32_swap_b32 v{acc(p,2,0)+r}, v{acc(p,2,1)+r}' for r in range(4)]
        o += chains(p, J)
        o += [f'v_cvt_pk_bf16_f32 v{HA+2*m+h}, v{acc(p,0,m)+2*h}, v{acc(p,0,m)+2*h+1}' for h in range(2) for m in range(2)]
        tail = [f'v_permlane16_swap_b32 v{HA}, v{HA+2}', f'v_permlane16_swap_b32 v{HA+1}, v{HA+3}',
                f'buffer_store_dwordx4 {V(HA,4)}, v12, {RB}, s{55+p} offen{ST}']
        if not hw:
            x = chains(p, [(acc(p, 2, 0)+r, acc(p, 2, 1)+r, TM+r, STV+8) for r in range(4)])
            o += x[:2] + tail + x[2:]
            o += [f'v_cvt_pk_bf16_f32 v{HX+2*(p&1)+h}, v{acc(p,2,0)+2*h}, v{acc(p,2,0)+2*h+1}' for h in range(2)]
            if p & 1: o += [f'v_permlane16_swap_b32 v{HX}, v{HX+2}', f'v_permlane16_swap_b32 v{HX+1}, v{HX+3}',
                            f'buffer_store_dwordx4 {V(HX,4)}, v13, {RB}, s{55+p} offen{ST}']
        else:
            for m in range(2):
                e, od = acc(p, 2, m), acc(p, 2, m, 1); t = TM
                o += [f'v_add_f32 v{e+r}, v{e+r}, v{MUV+2*p+m}' for r in range(4)]
                if m == 0: o += tail
                for r in range(4): o += [f'v_add_f32 v{t+r}, v{e+r}, v{od+r}', f'v_sub_f32 v{t+4+r}, v{e+r}, v{od+r}']
                P0, P1 = acc(p, 2, 0), acc(p, 2, 0, 1)
                o += [f'v_cvt_pk_bf16_f32 v{P0+2*m}, v{t}, v{t+1}', f'v_cvt_pk_bf16_f32 v{P0+2*m+1}, v{t+2}, v{t+3}',
                      f'v_cvt_pk_bf16_f32 v{P1+2-2*m}, v{t+7}, v{t+6}', f'v_cvt_pk_bf16_f32 v{P1+3-2*m}, v{t+5}, v{t+4}']
            off = 512*(p ^ 1)
            o += [f'v_permlane16_swap_b32 v{P0}, v{P0+2}', f'v_permlane16_swap_b32 v{P0+1}, v{P0+3}',
                  f'buffer_store_dwordx4 {V(P0,4)}, v13, {WSR}, s59 offen offset:{off}{ST}',
                  f'v_permlane16_swap_b32 v{P1+2}, v{P1}', f'v_permlane16_swap_b32 v{P1+3}, v{P1+1}',
                  f'buffer_store_dwordx4 {V(P1,4)}, v14, {WSR}, s60 offen offset:{off}{ST}']
        return o
    def stats(p):
        K0 = -2*math.sqrt(2/math.pi)*math.log2(math.e); b = GR
        return [f'v_cndmask_b32 v{b}, v{b}, v{b+1}, s[64:65]', f'v_cndmask_b32 v{b}, v{b}, v{b+2}, s[66:67]', f'v_cndmask_b32 v{b}, v{b}, v{b+3}, s[68:69]',
                f'v_mov_b32 v{b+2}, {fbits(1e-5)}', f'v_fmac_f32 v{b+2}, {fbits(1/512)}, v{b}', f'v_rsq_f32 v{b+3}, v{b+2}',
                f'v_mul_f32 v{b}, {fbits(K0)}, v{b+3}', f'v_mul_f32 v{b+3}, v{b+3}, v{b+3}', f'v_mul_f32 v{b+1}, {fbits(0.044715)}, v{b}', f'v_mul_f32 v{b+1}, v{b+1}, v{b+3}',
                f'ds_write_b128 v9, {V(b,4)} offset:{512*p}']
    def getstats(p):
        R = [(10, STV), (8, STV+4)] + ([] if hw else [(11, STV+8)])
        o = [f'v_xor_b32 v{a}, 0x200, v{a}' for a, _ in R] if p else []
        return o + [f'ds_read_b128 {V(d,4)}, v{a} offset:{1024*(p>>1)}' for a, d in R]
    def issue_dma(j): k(dma(j)); dma_pos.append(k.nvm)
    if hw:
        hw_means()
        if OPT.get('isl'):
            k('s_mov_b64 exec, 0\n s_branch L_isl1_0'); k.label('L_islret1'); k('s_mov_b64 exec, -1')
    k('s_barrier')
    stamp(k, 7); stamp(k, 11, 'b')
    def island(g):
        G = OPT.get('isl')
        if not G or g % G: return
        mid = OPT.get('islmid', 32)
        k.label(f'L_isl{int(hw)}_{g}')
        k(f's_cbranch_execz L_isl{int(hw)}_{g+G}' if g + G < 64 and (hw or g + G != mid) else (f's_cbranch_execz L_islret{int(hw)}' if g + G >= 64 else f's_cbranch_execz L_islret0'))
    DP = OPT.get('dpre', 16)
    for j in range(DP):
        issue_dma(j)
        for t in m0step(j): k(t)
    if hw: k('v_and_b32 v13, 0x1f0, v4\n v_xor_b32 v13, 0x100, v13\n v_lshrrev_b32 v14, 5, v1\n v_lshl_add_u32 v13, v14, 15, v13\n v_xor_b32 v14, 0x8000, v13')
    p4_ids(k)
    k(f"""s_mov_b32 s51, 0
    s_lshl_b32 s45, s45, 2
    s_add_u32 s45, s45, {WAVE}
    s_mul_i32 s45, s45, {WDS}
    s_add_u32 s45, s45, {WD}
    v_add_u32 v15, s45, v4
    s_lshr_b32 s46, s44, 1
    s_lshl_b32 s45, s46, 11
    s_add_u32 s62, s45, {RBF}
    s_add_u32 s63, s62, 0x8000
    s_lshl_b32 s46, s46, 2
    s_and_b32 s44, s44, 1
    s_add_u32 s73, s46, s44
    s_lshl_b32 s46, s73, 10
    s_mul_i32 s47, {WAVE}, {HFS}
    s_add_u32 s46, s46, s47
    s_add_u32 s74, s46, {HF}
    s_mov_b32 s75, 0""")
    def landed(j): k(f's_waitcnt vmcnt({min(63, k.nvm - dma_pos[j])})'); k('s_barrier')
    landed(3)
    stamp(k, 8)
    rd_pos = {}
    def do_reads(g):
        for t in reads(g): k(t)
        rd_pos[g] = k.nlg
    do_reads(0); do_reads(1)
    NWD = OPT.get('wdin', 22)
    memq = [('dma', j) for j in range(DP, 16)]
    lw = list(late_w)
    memq += lw + [('dma', j) for j in range(16, 32)]
    after = []
    nfast = len(memq)
    wl = [t for u in range(0, NWD, 2) for t in wd_loads(u)]
    wdq = [wl[i] + ('\n' + wl[i+1] if i % 5 == 3 else '') for i in range(len(wl)) if i % 5 != 4]
    W1 = OPT.get('wdend', 57)
    st_pos = None
    wrate = min(1.0, len(wdq) / (W1 - nfast / OPT.get('mrate', 1)))
    eq = [hload(0, u, RC) for u in range(22)]
    ismem = lambda t: isinstance(t, tuple) or t.startswith(('ds_', 'buffer'))
    vcost = lambda t: 8 if t.startswith(('v_exp', 'v_rcp', 'v_rsq', 'v_permlane')) else 4 * (t.count('\n') + 1)
    hcost = lambda t: 4 if (t[0] == 'rd' if isinstance(t, tuple) else t.startswith('ds_read')) else 8
    salu = []
    def emit_mem(f):
        nonlocal stat_pos
        if isinstance(f, tuple):
            if f[0] == 'dma':
                while salu: k(salu.pop(0))
                issue_dma(f[1]); salu.extend(m0step(f[1]))
            else: k(f[1]); rd_pos[f[2]] = k.nlg
        else:
            t = f.split('\n')
            if t[0].startswith('buffer_load_dwordx4'):
                while salu: k(salu.pop(0))
            k(t[0]); salu.extend(x.strip() for x in t[1:])
            if f.startswith('ds_write'): stat_pos = k.nlg
    stat_pos = None
    k.wait(lg=k.nlg - rd_pos[0])
    for p in range(4):
        pre = stats(p-1) if p & 1 else []
        bg = (epilogue(p-1) + (getstats(p) if p & 1 else [])) if p else []
        nind = (16 if hw else 20) if p & 1 else 0
        SB = OPT.get('sb', 3)
        nbg = len(bg)
        k1 = OPT.get('e1end', 12) if p == 2 else 16
        tot = sum(vcost(t) for t in bg); done = 0
        val = []
        for ka in range(16):
            g = 16*p + ka
            if OPT.get('gst') and g in OPT['gst']: stamp(k, 1 + OPT['gst'].index(g), True)
            sync = None
            if p & 1 and ka == SB: sync = 'stat'
            if p == 0 and ka in (2, 6, 10): sync = ka + 5
            if p == 1 and ka == 13 and not OPT.get('mergeland'): sync = 31
            rds = []
            if g + 2 < 64:
                for t in reads(g + 2):
                    if t.startswith('ds_'): rds.append(('rd', t, g + 2))
            if g + 3 < 64 and (g + 3) % 16 == 0: late_x = [t for t in reads(g + 3) if not t.startswith('ds_')]
            else: late_x = []
            mem = []
            if memq:
                mr = OPT.get('mrate', 1); n = int((g + 1) * mr) - int(g * mr); n = OPT.get('mfirst', n) if len(dma_pos) < 16 else n; mem = memq[:n]; memq = memq[n:]
            elif wdq and not (p & 1 and ka == SB):
                left = W1 - g
                n = (len(wdq) + left - 1) // left if len(wdq) >= left else int((g + 1) * wrate) - int(g * wrate)
                mem = wdq[:n]; wdq = wdq[n:]
            if ka <= 1 and pre:
                n = 6 if ka == 0 else len(pre); val += pre[:n]; pre = pre[n:]
            o1 = 1 if p & 1 else 0
            budget = tot * (ka + 1 - o1) / (k1 - o1)
            if p & 1 and ka <= 1: budget = -1
            if p & 1 and ka == SB: rds = rds + [t for t in getstats(p-1) if t.startswith('ds_')]
            if p & 1 and ka == 1: val += [t for t in getstats(p-1) if not t.startswith('ds_')]
            while bg and (done + vcost(bg[0])/2 <= budget or ka == k1 - 1) and not (p & 1 and ka <= SB and nbg - len(bg) >= nind):
                done += vcost(bg[0]); val.append(bg.pop(0))
            if g == 48 + OPT.get('esamp', 8) - 1: val += ['v_lshlrev_b32 v5, 7, v3', 'v_add_u32 v3, s74, v4']
            if g == 48 + OPT.get('esamp', 8): mem = [f'buffer_load_dword v9, v5, {WSR}, s62 offen{LD}'] + mem
            if g == 48 + OPT.get('echk', 11): val += [f'v_cmp_ne_u32 vcc, 1, v9\n s_cmp_eq_u64 vcc, 0\n s_cselect_b32 s38, s34, 0']
            if g > 48 + OPT.get('echk', 11):
                er = OPT.get('erate', 1); mem = mem + eq[:er]; eq = eq[er:]
            mf = []
            for m in range(2):
                b_ = V(slot(g, m), 4)
                for n in range(3):
                    d = V(acc(p, n, m, ka & 1), 4)
                    first = ka == 0 or (n == 2 and ka == 1 and hw)
                    mf.append(f'v_mfma_f32_16x16x32_bf16 {d}, {A(12*ka+4*n,4)}, {b_}, {"0" if first else d}')
            mf = [mf[i] for i in (0, 3, 4, 1, 2, 5)]
            if p % 2 == 0: mf.insert(0, f'v_mfma_f32_16x16x32_bf16 {V(GR,4)}, {V(slot(g,0),4)}, {V(slot(g,0),4)}, {"0" if ka==0 else V(GR,4)}')
            heads = list(rds)
            for i, t in enumerate(mem): heads.insert(min(len(heads), 2 + 2*i + (1 if len(mem) == 1 else 0)), t)
            N = len(mf)
            ftot = sum(map(hcost, heads)) + sum(hcost(t) if ismem(t) else vcost(t) for t in val) + 4*len(late_x); fd = 0
            flush_val = ka == 15 or (p == 2 and ka == k1 - 1) or (p & 1 and ka == 1) or g - 48 in (OPT.get('esamp', 8) - 1, OPT.get('echk', 11))
            for i, t in enumerate(mf):
                k(t)
                last = i == N - 1
                if i == 0 and sync is not None:
                    if sync == 'stat':
                        assert not pre and not any(x.startswith('ds_write') for x in val)
                        k.wait(lg=k.nlg - stat_pos)
                        if p == 3 or OPT.get('mergeland'): k(f's_waitcnt vmcnt({min(63, k.nvm - (st_pos if p == 3 else dma_pos[31]))})')
                        k('s_barrier')
                        if p == 3 and hw: k(f'v_mov_b32 v{MUV}, 0\n v_mov_b32 v{MUV+1}, 1\n s_mov_b64 exec, 1\n buffer_store_dword v{MUV+1}, v{MUV}, {WSR}, s41 offen{ST}\n s_mov_b64 exec, -1')
                    else: landed(sync)
                if i == 1: island(g)
                nh = 0
                nxt = val[0] if val and ismem(val[0]) else (heads[0] if heads else None)
                if last and g + 1 < 64: k.wait(lg=k.nlg - rd_pos[g + 1])
                elif salu and (nxt is None or hcost(nxt) == 4) and not (i == 1 and OPT.get('isl')): k(salu.pop(0))
                while True:
                    if val and ismem(val[0]) and nh == 0: f = val.pop(0)
                    elif heads and (nh == 0 or len(heads) > N - 1 - i): f = heads.pop(0)
                    else: break
                    emit_mem(f); fd += hcost(f); nh += 1
                if last:
                    for x in late_x: k(x)
                while val and ((not ismem(val[0]) and fd + vcost(val[0])/2 <= ftot * (i+1) / N + 1e-6) or (last and flush_val)):
                    f = val.pop(0)
                    if ismem(f): emit_mem(f); fd += hcost(f)
                    else: k(f); fd += vcost(f)
            assert not heads
            if p == 2 and ka == k1 - 1: st_pos = k.nvm
        assert not bg and not val
        if p == 0: stamp(k, 9)
        if OPT.get('pst'): stamp(k, 1+p, True)
    while salu: k(salu.pop(0))
    assert not wdq
    stamp(k, 10)
    ep = epilogue(3); ne = OPT.get('eepi', 0); gap = 5
    for i, t in enumerate(ep):
        k(t)
        if i % gap == gap - 1 and ne > 0: k(eq.pop(0)); ne -= 1
    assert ne == 0
    if OPT.get('echk') > 15: k(f'v_cmp_ne_u32 vcc, 1, v9\n s_cmp_eq_u64 vcc, 0\n s_cselect_b32 s38, s34, 0')
    if OPT.get('pst'): stamp(k, 5, True)
    return 22 - len(eq)

def hload(hf, u, R):
    return f'buffer_load_dwordx4 {A(88*hf+4*u,4)}, v3, {R}, s75 offen offset:{2048*hf}{LD}\n ' + (f's_add_u32 s75, s75, {4*HFS}' if u < 21 else 's_mov_b32 s75, 0')

def redo(k, soff, hf, n, again=None, pre=None):
    uid[0] += 1; u = uid[0]
    k(f's_cmp_lg_u32 s38, 0\n s_cbranch_scc1 L_sd{u}')
    st = k.state()
    k('s_mov_b32 s46, 0')
    if pre: k(f'v_cmp_ne_u32 vcc, 1, v{pre}\n s_cbranch_vccz L_sg{u}')
    k.label(f'L_sp{u}')
    k(f"""buffer_load_dword v6, v5, {WSR}, {soff} offen{LD}
    s_add_u32 s46, s46, 1
    s_waitcnt vmcnt(0)
    v_cmp_ne_u32 vcc, 1, v6
    s_cmp_gt_u32 s46, {SPIN}
    s_cbranch_scc1 L_sg{u}
    s_cbranch_vccnz L_sp{u}""")
    k.label(f'L_sg{u}')
    k('s_mov_b32 s75, 0')
    for j in range(n): k(hload(hf, j, RB))
    if again: again()
    k.restore(st)
    k.vm = [set()] * 8 + [{('a', 88*hf+4*j+r) for r in range(4)} for j in range(n)]
    k.label(f'L_sd{u}')

def spin(k, reg, soff):
    uid[0] += 1; u = uid[0]
    k(f'v_cmp_ne_u32 vcc, 1, v{reg}\n s_mov_b32 s46, 0\n s_cbranch_vccz L_sd{u}')
    st = k.state()
    k.label(f'L_sp{u}')
    k(f"""buffer_load_dword v{reg}, v5, {WSR}, {soff} offen{LD}
    s_add_u32 s46, s46, 1
    s_waitcnt vmcnt(0)
    v_cmp_ne_u32 vcc, 1, v{reg}
    s_cmp_gt_u32 s46, {SPIN}
    s_cbranch_scc1 L_sd{u}
    s_cbranch_vccnz L_sp{u}""")
    k.restore(st)
    k.label(f'L_sd{u}')

QS, INS, PS = 1152, 4736, 9472
def p4(k, n0, nst):
    HR, RD, SUM = 32, 40, 128
    PRE = OPT.get('p4pre', 14)
    EP = OPT.get('epost', 6)
    k.vm = [{('a', 4*j+r) for r in range(4)} for j in range(n0)] + [set()] * nst
    if OPT.get('sbar'): k('s_barrier')
    el = [hload(0, j, RC) for j in range(n0, n0 + EP)]
    if not OPT.get('mix'):
        for t in el: k(t)
        el = []
    U0 = n0 if not OPT.get('nopre') else 0
    n0 += EP
    setup = f"""s_mov_b32 s28, s18
    s_and_b32 s29, s19, 0xffff
    s_mov_b32 s30, {S*D*2}
    s_lshr_b32 s65, s2, 5
    v_lshrrev_b32 v16, 3, v1
    v_bfe_u32 v17, v1, 1, 2
    s_lshl_b32 s46, s65, 2
    v_add_u32 v17, s46, v17            ; 16-column block
    v_sub_u32 v18, 31, v17
    v_min_u32 v18, v17, v18
    v_lshlrev_b32 v18, 17, v18
    v_lshrrev_b32 v17, 4, v17
    v_lshl_add_u32 v18, v17, 16, v18
    v_lshl_add_u32 v18, v16, 4, v18
    v_and_b32 v17, 1, v1
    v_lshl_add_u32 v8, v17, 15, v18    ; residual
    s_lshl_b32 s66, s73, 9
    s_lshl_b32 s46, {WAVE}, 7
    s_add_u32 s66, s66, s46
    s_add_u32 s66, s66, {HRES}
    v_mov_b32 v20, 0
    v_mov_b32 v21, 1
    s_add_u32 s41, s41, 0x8000
    s_lshr_b32 s46, s73, 2
    s_lshl_b32 s46, s46, 17
    s_and_b32 s44, s73, 3
    s_lshl_b32 s44, s44, 2
    s_add_u32 s44, s44, {WAVE}
    s_lshl_b32 s44, s44, 10
    s_add_u32 s67, s46, s44
    s_lshl_b32 s45, s65, 7
    s_add_u32 s67, s67, s45
    s_add_u32 s68, s67, 0x2000
    v_and_b32 v9, 7, v1
    v_lshlrev_b32 v9, 4, v9
    v_and_b32 v18, 3, v16
    v_lshl_add_u32 v9, v18, 15, v9
    v_lshrrev_b32 v18, 2, v16
    v_lshl_add_u32 v9, v18, 14, v9     ; output
    v_lshrrev_b32 v18, 5, v1
    v_lshl_add_u32 v10, v18, 6, v4
    s_mul_i32 s44, {WAVE}, {PS}
    v_add_u32 v10, s44, v10            ; partial sums, write
    v_bfe_u32 v18, v1, 2, 1
    v_mul_u32_u24 v11, {INS}, v18
    v_bfe_u32 v18, v1, 1, 1
    v_mul_u32_u24 v18, 576, v18
    v_add_u32 v11, v11, v18
    v_lshl_add_u32 v11, v16, 4, v11
    v_lshl_add_u32 v11, v17, 3, v11
    s_lshl_b32 s44, {WAVE}, 7
    v_add_u32 v11, s44, v11            ; partial sums, read
    v_add_u32 v12, {4*PS}, v11""".split('\n')
    def resid(hf): k(f'buffer_load_dwordx4 {V(HR+4*hf,4)}, v8, {WSR}, s66 offen offset:{1024*hf}{LD}')
    def mf(hf, u, i):
        d = V(ACC+32*hf+16*i, 16)
        return f'v_mfma_f32_32x32x16_bf16 {d}, {wd_reg(u, i)}, {A(88*hf+4*u,4)}, {"0" if u==0 else d}'
    def mm(hf, issued, hook):
        q = []
        for j in range(22):
            if hf == 0 and j >= OPT.get('wdin', 22) and j % 2 == 0:
                w = wd_loads(j); q += [lambda t=t: k(t) for t in w[:3] + [w[3] + '\n' + w[4]]]
            if j >= issued: q.append(lambda j=j: k(hload(hf, j, RB)))
        q.append(lambda: resid(hf))
        TL = OPT.get('tl', 0) if hf == 1 else 0
        for u in range(U0 if hf == 0 else 0, 22 - TL):
            for i in range(2):
                k(mf(hf, u, i))
                if q and (i == 0 or len(q) > 22 - u - OPT.get('lead', 8)): q.pop(0)()
                hook(u, i)
    def red_write(hf):
        o = [f'ds_write_b128 v10, {V(ACC+32*hf+16*i+4*q,4)} offset:{4*PS*hf+INS*i+QS*q}' for i in range(2) for q in range(4)]
        for j in range(4):
            o += [f'v_lshlrev_b32 v{SUM+4*(j&1)+(j>>1)}, 16, v{HR+4*hf+j}', f'v_and_b32 v{SUM+4*(j&1)+2+(j>>1)}, 0xffff0000, v{HR+4*hf+j}']
        return o
    def red_read(hf, pk=True):
        R = lambda w, q: (RD + 8*w + 2*q) if w < 3 else SUM + 8 + 2*q
        o = [f'ds_read_b64 {V(R(w,q),2)}, v{11+hf} offset:{PS*w+QS*q}' for w in range(4) for q in range(4)]
        if pk: o += [f'v_pk_add_f32 {V(SUM+2*q,2)}, {V(SUM+2*q,2)}, {V(R(w,q),2)}' for w in range(4) for q in range(4)]
        else: o += [f'v_add_f32 v{SUM+2*q+h}, v{SUM+2*q+h}, v{R(w,q)+h}' for w in range(4) for q in range(4) for h in range(2)]
        o += [f'v_cvt_pk_bf16_f32 v{HR+4*hf+j}, v{SUM+4*(j&1)+(j>>1)}, v{SUM+4*(j&1)+2+(j>>1)}' for j in range(4)]
        return o + [f'buffer_store_dwordx4 {V(HR+4*hf,4)}, v9, {RA}, s{67+hf} offen{OPT.get("ost", "")}']
    pre = [mf(0, u, i) for u in range(U0) for i in range(2)]
    for t in pre:
        k(t)
        for x in setup[:5]: k(x)
        setup = setup[5:]
    while setup or el:
        if el: k(el.pop(0))
        for x in setup[:4]: k(x)
        setup = setup[4:]
    k(f's_waitcnt vmcnt({EP})'); k('s_barrier')
    only_wave(k, 0, lambda: k(f's_mov_b64 exec, 1\n buffer_store_dword v21, v20, {WSR}, s41 offen{ST}'))
    stamp(k, 11)
    redo(k, 's62', 0, n0, lambda: [k(t) for t in pre])
    if OPT.get('p4st'): stamp(k, 1, True)
    LP, LC = OPT.get('lpoll', 11), OPT.get('lchk', 15)
    nl = [0]
    def hook0(u, i):
        if u == LP and i == 1: k(f'buffer_load_dword v6, v5, {WSR}, s63 offen{LD}')
        if u == LC and i == 0: k('v_cmp_ne_u32 vcc, 1, v6\n s_cmp_eq_u64 vcc, 0\n s_cselect_b32 s38, s34, 0')
        if u == OPT.get('lp2', -1) and i == 0: k(f'buffer_load_dword v7, v5, {WSR}, s63 offen{LD}')
        if (u, i) > (LC, 0) and (i == 1 or OPT.get('lrate2')): k(hload(1, nl[0], RC)); nl[0] += 1
    mm(0, n0, hook0)
    if OPT.get('p4st'): stamp(k, 2, True)
    for j, t in enumerate(red_write(0)):
        k(t)
        if j < OPT.get('lmid', 5): k(hload(1, nl[0], RC)); nl[0] += 1
    if OPT.get('p4st'): stamp(k, 3, True)
    redo(k, 's63', 1, nl[0], pre=7 if OPT.get('lp2') else None)
    if OPT.get('p4st'): stamp(k, 4, True)
    rr = red_read(0, False)
    def hook1(u, i):
        if u == 1 and i == 1: k.wait(lg=0); k('s_barrier')
        if u >= 2:
            for _ in range(4 if i else 2):
                if rr: k(rr.pop(0))
    mm(1, nl[0], hook1)
    assert not rr
    if OPT.get('p4st'): stamp(k, 5, True)
    TL = OPT.get('tl', 0); rw = red_write(1)
    for u in range(22 - TL, 22): k(mf(1, u, 0))
    for j, u in enumerate(range(22 - TL, 22)):
        k(mf(1, u, 1))
        if j == 0:
            for t in rw[8:]: k(t)
            rw = rw[:8]
        elif len(rw) > 4 and j >= 2: k(rw.pop(0))
    for t in rw: k(t)
    k.wait(lg=0); k('s_barrier')
    for t in red_read(1): k(t)

def fused():
    k = K()
    prologue(k)
    if OPT.get('prio'): only_wave(k, 0, lambda: k('s_setprio 3'))
    k(f's_cmp_ge_u32 s2, {NZ}\n s_cbranch_scc1 L_notz')
    st0 = k.state()
    p1_z(k)
    k.label('L_join1')
    k.vm = [set()] * 40; k.lg = []
    setup(k)
    stamp(k, 3)
    negs = lambda: [p2_negs(k, b) for b in (B1, A2, B3, A4)]
    def ztab():
        if OPT.get('ztpre'): return
        uid[0] += 1; u = uid[0]
        k((f's_cmp_ge_u32 s2, {NZ}' if OPT.get('ttpre') else 's_cmp_lg_u32 s71, 0') + f'\n s_cbranch_scc1 L_zt{u}')
        st_ = k.state()
        for t in ztl: k(t)
        k.restore(st_); k.label(f'L_zt{u}')
    stamp(k, 8, 'z')
    k(f's_cmp_lg_u32 {WAVE}, 0\n s_cbranch_scc1 L_b1o')
    st = k.state()
    k('s_mov_b64 exec, 1\n s_mov_b32 s46, 0\n s_waitcnt vmcnt(0)')
    k.label('L_go')
    k(f"""v_cmp_ne_u32 vcc, 0, v254
    s_add_u32 s46, s46, 1
    s_cbranch_vccnz L_gone
    global_load_dword v254, v250, s[20:21]{LD}
    s_waitcnt vmcnt(0)
    s_cmp_lt_u32 s46, {SPIN}
    s_cbranch_scc1 L_go""")
    k.restore(st); k.vm = []
    k.label('L_gone')
    stamp(k, 9, 'z')
    k('s_barrier')
    k(f's_cmp_eq_u32 s71, 0\n s_cbranch_scc1 L_b1a\n buffer_store_dword v251, v250, {WSR}, s71 offen{ST}\n s_mov_b64 exec, -1\n s_branch L_b1n')
    k.label('L_b1a')
    k(f'buffer_atomic_add v251, v250, {WSR}, s74 offen sc0 sc1\n s_mov_b64 exec, -1')
    stamp(k, 10, 'z')
    setup_late(k); arrive_check(k, 250, 's75', 19, 1)
    k('s_mov_b64 exec, -1'); ztab()
    k('s_mov_b64 exec, -1\n s_branch L_b1m')
    k.restore(st); k.label('L_b1o')
    k('s_waitcnt vmcnt(0)')
    stamp(k, 9, 'z')
    k('s_barrier')
    k.label('L_b1n')
    stamp(k, 10, 'z')
    if OPT.get('zfirst'): ztab()
    setup_late(k)
    if not OPT.get('zfirst'): ztab()
    k.label('L_b1m')
    k('s_waitcnt vmcnt(0)')
    negs()
    wd_finish(k)
    rbclear = lambda: k(f'v_lshlrev_b32 v252, 15, v1\n s_mov_b64 exec, 3\n buffer_store_dword v250, v252, {WSR}, s41 offen{ST}')
    k.label('L_b1q')
    only_wave(k, 1, rbclear)
    only_wave(k, 0, lambda: poll(k, 250, 1))
    k.label('L_b1x')
    k.vm = []
    k('s_barrier')
    stamp(k, 4)
    stamp(k, 11, 'z'); stamp(k, 1, 'b')
    barrier2(k, p2(k))
    n0 = p3_body(k, False)
    nst = 0
    nst = 2
    k.label('L_join3')
    k.fence()
    p4(k, n0, nst)
    stamp_out(k, 12)
    k.label('L_end'); k('s_endpgm')
    k.restore(st3); k.label('L_p3h'); assert p3_body(k, True) == n0
    assert not any(k.vm[-nst:]); k('s_branch L_join3')
    k.restore(st0); k.label('L_notz')
    p1_w(k)
    if OPT.get('slowjoin'): k('s_branch L_join1')
    else:
        stamp(k, 3)
        if OPT.get('slate'): twiddles(k); negs()
        k(f"""s_lshl_b32 s44, s74, 3
        s_add_u32 s44, s44, {FLG}
        v_and_b32 v252, 7, v1
        v_lshlrev_b32 v252, 8, v252
        v_mov_b32 v254, v254               ; the go word has been read before the flags are sampled
        buffer_load_dword v253, v252, {WSR}, s44 offen{LD}""")
        if not OPT.get('slate'): twiddles(k); negs()
        stamp(k, 8, 'z')
        k('s_waitcnt vmcnt(1)')
        def go1():
            k('s_mov_b32 s46, 0')
            k.label('L_go2')
            k(f"""v_cmp_ne_u32 vcc, 0, v254
            s_add_u32 s46, s46, 1
            s_cbranch_vccnz L_gone2
            global_load_dword v254, v250, s[20:21]{LD}
            s_waitcnt vmcnt(0)
            s_cmp_lt_u32 s46, {SPIN}
            s_cbranch_scc1 L_go2""")
            k.label('L_gone2')
        only_wave(k, 1, go1)
        stamp(k, 9, 'z')
        k('s_barrier')
        stamp(k, 10, 'z')
        only_wave(k, 1, lambda: k(f's_mov_b64 exec, 1\n buffer_store_dword v251, v250, {WSR}, s71 offen{ST}'))
        k(f's_cmp_lg_u32 {WAVE}, 0\n s_cbranch_scc1 L_b1q')
        k(f'v_min_u32 v253, v253, v254\n v_cmp_eq_u32 vcc, 0, v253\n s_cbranch_vccnz L_b1q')
        k('s_branch L_b1x')
    k.restore(st_c); k.label('L_p1c')
    k(f's_cmp_ge_u32 s2, {NI0}\n s_cbranch_scc1 L_p1i')
    st1 = k.state()
    p1_t(k); k('s_branch L_join1')
    k.restore(st1); k.label('L_p1i'); p1_i(k); k('s_branch L_join1')
    o = header()
    o += f'; @launch grid=(256,1,1) block=(256,1,1) lds={STATL+4096}\n'
    o += '.amdgcn_target "amdgcn-amd-amdhsa--gfx950"\n.text\n' + k.text()
    o += tables_text() + 'L_image_end:\n'
    o += '.section .rodata,"a"\n.p2align 6\n' + kd(KN, k)
    return o

if __name__ == '__main__':
    out = sys.argv[1]
    for a in sys.argv[2:]:
        key, _, val = a.partition('=')
        OPT[key] = eval(val) if val else True
    open(out, 'w').write(fused())
```

```python
import sys, math, struct
import numpy as np
from dsl import K
from design import *
from gen import V, A, Sg, fbits, TBL, tables_text, header, kd, NAME, srd, cmul, TPAD

OPT = dict(stamps=False, gblate=True, tpost=True, every=48, mergeland=True, mrate=1.5, nopre=True, w0late=True, nA=6, c1=1, fpos=0, c2=1, prio=True, wgbfirst=False, wdshadow=True, wcont=True, nord=True, hold=True, esamp=8, e1end=13, echk=15, epost=8, wdend=62, lpoll=9, lchk=16, retouch=True, ntx=' nt', ntd=' nt', lp2=17, sbar=True, dpre=12, mfirst=2, zfirst=True, slate=True, zev=24, twe=True, th=True)
ST, LD = ' sc1', ' sc1'
WSR, RA, RB, RC = 's[24:27]', 's[28:31]', 's[32:35]', 's[36:39]'
WAVE = 's40'
KN = NAME + '_kernel'
SPIN = 400000
TW1, TW2 = 112, 128
B1, A4, A2, B3 = 144, 168, 192, 216
FA, GB = 200, 208
NZ, NC0, NI0 = 128, 216, 248
uid = [0]

def stamp(k, i, pm=False):
    if OPT.get('pst') and 1 <= i <= 5 and not pm: return
    if OPT.get('zdet') and 1 <= i <= 11 and pm != 'z': return
    if pm == 'z' and not OPT.get('zdet'): return
    if OPT.get('bdet') and 1 <= i <= 11 and pm != 'b': return
    if pm == 'b' and not OPT.get('bdet'): return
    if OPT['stamps']: k(f's_{"memtime" if OPT.get("pst") else "memrealtime"} s[{76+2*i}:{77+2*i}]')
def stamp_out(k, n):
    if not OPT['stamps']: return
    k.wait(vm=0, lg=0); stamp(k, n); n += 1; k.wait(lg=0)
    k(f's_lshl_b32 s44, s2, 8\n s_lshl_b32 s45, {WAVE}, 6\n s_add_u32 s44, s44, s45\n s_add_u32 s44, s44, {STAMP}')
    for i in range(16): k(f'v_mov_b32 v{8+i}, s{76+2*i}' if i < n else f'v_mov_b32 v{8+i}, 0')
    k('v_mov_b32 v24, 0\n s_mov_b64 exec, 1')
    for q in range(4): k(f'buffer_store_dwordx4 {V(8+4*q,4)}, v24, {WSR}, s44 offen offset:{16*q}')

def wsrd(k, base, end):
    k(f's_mov_b32 s{base}, s24\n s_mov_b32 s{base+1}, s25\n s_mov_b32 s{base+2}, {end}\n s_mov_b32 s{base+3}, 0x20000')

def tbl_addr(k, vp, soff):
    k(f"""s_add_u32 s46, s42, {soff}
    s_addc_u32 s47, s43, 0
    v_mov_b32 v{vp+1}, s47
    v_add_co_u32 v{vp}, vcc, s46, v4
    v_addc_co_u32 v{vp+1}, vcc, 0, v{vp+1}, vcc""")

def gb_loads(k):
    for q in range(8): k(f'global_load_dwordx4 {A(GB+4*q,4)}, v[8:9], off offset:{1024*q-4096}')

def prologue(k):
    k.raw(f'.globl {KN}\n.p2align 8\n.type {KN},@function\n{KN}:')
    stamp(k, 0)
    k(f"""s_load_dwordx16 s[4:19], s[0:1], 0
    s_load_dwordx4 s[20:23], s[0:1], 64
    s_getpc_b64 s[42:43]""")
    k.raw('L_pc:')
    k(f"""s_cmp_ge_u32 s2, 256
    s_cbranch_scc1 L_end
    v_lshrrev_b32 v5, 6, v0
    v_and_b32 v1, 63, v0
    v_readfirstlane_b32 {WAVE}, v5
    s_lshr_b32 s44, s2, 3
    v_lshl_add_u32 v5, v5, 5, s44
    v_lshlrev_b32 v6, {7 if OPT.get('pf128') else 6}, v1
    v_lshl_add_u32 v5, v5, {13 if OPT.get('pf128') else 12}, v6      ; one dword per line""")
    k.raw('    v_min_u32 v5, L_image_end-L_pc-4, v5'); k.pos += 1
    k(f"""v_mov_b32 v7, s43
    v_add_co_u32 v6, vcc, s42, v5
    v_addc_co_u32 v7, vcc, 0, v7, vcc
    global_load_dword v255, v[6:7], off
    v_bfe_u32 v2, v0, 4, 2
    v_and_b32 v3, 15, v0
    v_lshlrev_b32 v4, 4, v1""")
    k.raw('    s_add_u32 s42, s42, tables-L_pc\n    s_addc_u32 s43, s43, 0'); k.pos += 2
    k(f's_cmp_ge_u32 s2, {NC0}\n s_cbranch_scc1 L_p1c')
    global st_c
    st_c = k.state()
    tbl_addr(k, 6, TBL['FA'])
    for c in range(2): k(f'global_load_dwordx4 {A(FA+4*c,4)}, v[6:7], off offset:{1024*c}')
    k(f"""s_cmp_lt_u32 s2, {NZ}
    s_cselect_b32 s45, {TBL["GBZ"]+4096}, {TBL["GBW"]+4096}
    s_lshl_b32 s44, {WAVE}, 13
    s_add_u32 s44, s44, s45""".replace(str(TBL["GBW"]+4096), 's47').replace('s_cmp_lt', f's_mov_b32 s47, {TBL["GBW"]+4096}\n s_cmp_lt'))
    tbl_addr(k, 8, 's44')
    if not OPT.get('gblate'): gb_loads(k)

def go_load(k, b):
    k(f'v_mov_b32 v{b}, 0\n global_load_dword v{b+4}, v{b}, s[20:21]{LD}')
def arrive_issue(k, b, cnt, go):
    k(f'v_mov_b32 v{b}, 0\n v_mov_b32 v{b+1}, 1\n s_mov_b64 exec, 1')
    if go:
        uid[0] += 1; u = uid[0]
        k('s_mov_b32 s46, 0')
        k.label(f'L_go{u}')
        k(f"""s_waitcnt vmcnt(0)
        v_cmp_ne_u32 vcc, 0, v{b+4}
        s_add_u32 s46, s46, 1
        s_cbranch_vccnz L_gone{u}
        global_load_dword v{b+4}, v{b}, s[20:21]{LD}
        s_cmp_lt_u32 s46, {SPIN}
        s_cbranch_scc1 L_go{u}""")
        k.label(f'L_gone{u}')
    k(f'buffer_atomic_add v{b+1}, v{b}, {WSR}, {cnt} offen sc0 sc1')
def arrive_check(k, b, flg, last, val):
    uid[0] += 1; u = uid[0]
    k(f"""s_mov_b64 exec, 0xff
    v_lshlrev_b32 v{b+2}, 11, v1
    v_mov_b32 v{b}, {val}
    v_readfirstlane_b32 s47, v{b+1}
    s_cmp_lg_u32 s47, {last}
    s_cbranch_scc1 L_nl{u}""")
    st = k.state()
    k(f'buffer_store_dword v{b}, v{b+2}, {WSR}, {flg} offen{ST}')
    k.restore(st)
    k.label(f'L_nl{u}')
def poll(k, b, val):
    uid[0] += 1; u = uid[0]
    k(f"""s_mov_b64 exec, 0xff
    v_lshlrev_b32 v{b+3}, 8, v1
    s_and_b32 s44, s2, 7
    s_lshl_b32 s44, s44, 11
    s_add_u32 s44, s44, {FLG}
    s_mov_b32 s46, 0""")
    k.label(f'L_bp{u}')
    k(f"""buffer_load_dword v{b+1}, v{b+3}, {WSR}, s44 offen{LD}
    s_add_u32 s46, s46, 1
    s_waitcnt vmcnt(0)
    v_cmp_gt_u32 vcc, {val}, v{b+1}
    s_cmp_gt_u32 s46, {SPIN}
    s_cbranch_scc1 L_bd{u}
    s_cbranch_vccnz L_bp{u}""")
    k.label(f'L_bd{u}')
    k('s_mov_b64 exec, -1')
def only_wave(k, w, fn):
    uid[0] += 1; u = uid[0]
    k(f's_cmp_lg_u32 {WAVE}, {w}\n s_cbranch_scc1 L_ow{u}')
    st = k.state(); fn(); k('s_mov_b64 exec, -1'); k.restore(st); k.label(f'L_ow{u}')

def p2_tables(k, vp=26):
    k(f's_lshl_b32 s44, {WAVE}, 13\n s_add_u32 s44, s44, {TBL["P2W"]+4096}')
    tbl_addr(k, vp, 's44'); tbl_addr(k, vp+2, TBL['P2S']+4096)
    o = [f'global_load_dwordx4 {V(B1+6*u+2,4)}, {V(vp,2)}, off offset:{1024*u-4096}' for u in range(4)]
    o += [f'global_load_dwordx4 {V(A2+6*u+2,4)}, {V(vp+2,2)}, off offset:{1024*u-4096}' for u in range(4)]
    o += [f'global_load_dwordx4 {V(B3+6*u+2,4)}, {V(vp+2,2)}, off offset:{1024*u}' for u in range(4)]
    o += [f'global_load_dwordx4 {V(A4+6*u+2,4)}, {V(vp,2)}, off offset:{1024*u}' for u in range(4)]
    return o
def flush(k):
    sp, k.sprinkle = k.sprinkle, []
    for t in sp: k(t)

def gtouch(k, dst):
    k(f"""s_bitcmp1_b32 s2, 0
    s_cselect_b32 s36, s14, s12
    s_cselect_b32 s37, s15, s13
    s_and_b32 s37, s37, 0xffff
    s_mov_b32 s38, {D*F*2}
    s_lshr_b32 s44, s2, 3
    s_lshl_b32 s44, s44, 2
    s_add_u32 s44, s44, {WAVE}
    s_mul_i32 s44, s44, {8*2752}
    s_bfe_u32 s46, s2, 0x20001
    s_mul_i32 s46, s46, 704
    s_add_u32 s44, s44, s46
    v_and_b32 v15, 7, v1
    v_lshlrev_b32 v15, 7, v15
    v_min_u32 v15, 700, v15
    v_lshrrev_b32 v16, 3, v1
    v_mul_u32_u24 v16, 2752, v16
    v_add_u32 v15, v15, v16
    s_mov_b32 exec_lo, 0x7f7f7f7f
    s_mov_b32 exec_hi, 0x7f7f7f7f
    buffer_load_dword v{dst}, v15, {RC}, s44 offen
    s_mov_b64 exec, -1""")

def p1_z(k):
    X, DA, TR, SS, WL, WO = 32, 48, 80, 96, 104, 120
    k(f"""s_and_b32 s44, s2, 7
    s_lshr_b32 s45, s2, 4
    s_lshl_b32 s45, s45, 3
    s_add_u32 s44, s44, s45
    s_lshl_b32 s44, s44, 1
    s_bfe_u32 s45, s2, 0x10003
    s_add_u32 s60, s44, s45            ; (t,g,beta,bq)
    s_lshr_b32 s61, s60, 3
    s_lshl_b32 s61, s61, 7
    s_and_b32 s44, s60, 7
    s_lshl_b32 s44, s44, 2
    s_add_u32 s44, s44, s61
    s_add_u32 s44, s44, {WAVE}
    s_lshl_b32 s56, s44, 10
    s_add_u32 s57, s56, 0x8000
    s_add_u32 s58, s56, 0x10000
    s_add_u32 s59, s56, 0x18000
    s_mov_b32 s38, {S*D*2}
    s_mov_b32 s39, 0x20000
    s_bfe_u32 s48, s2, 0x20003
    s_and_b32 s44, s2, 7
    s_lshl_b32 s44, s44, 2
    s_add_u32 s48, s48, s44
    s_and_b32 s44, s2, 0x60
    s_add_u32 s48, s48, s44
    s_add_u32 s48, s48, 128""")
    wt_rows(k, 's48', 49)
    k(f's_mul_i32 s44, {WAVE}, {64*514}\n s_add_u32 s49, s49, s44')
    k.wait(lg=0)
    stamp(k, 1, 'z')
    k('s_mov_b32 s36, s4\n s_and_b32 s37, s5, 0xffff')
    for i in range(4): k(f'buffer_load_dwordx4 {V(X+4*i,4)}, v4, {RC}, s{56+i} offen{OPT.get("ntx", "")}')
    k(WSRDS)
    if not OPT.get('nowpf'):
        k(f"""v_lshrrev_b32 v15, 1, v3
        v_mul_u32_u24 v15, 514, v15
        v_and_b32 v16, 1, v1
        v_mul_u32_u24 v16, 126, v16
        v_add_u32 v15, v15, v16
        s_mov_b32 s45, 0x5555
        s_and_b32 s44, s48, 3
        s_cmp_eq_u32 s44, 3
        s_cselect_b32 exec_lo, 0xffff, {'s45' if OPT.get('th') else '0xffff'}
        s_mov_b32 exec_hi, 0
        buffer_load_ushort v{WO}, v15, {RA}, s49 offen{OPT.get('ntw', '')}
        buffer_load_ushort v{WO+1}, v15, {RB}, s49 offen{OPT.get('ntw', '')}
        s_mov_b64 exec, -1""")
    if OPT.get('wreal'): k(f'buffer_load_dwordx4 {V(WL,4)}, v11, {RA}, s49 offen\n buffer_load_dwordx4 {V(WL+4,4)}, v11, {RB}, s49 offen')
    if OPT.get('gbz') == 0: gb_loads(k)
    for t in wd_issue(k): k(t)
    k('v_mov_b32 v24, v8\n v_mov_b32 v25, v9')
    gbl_ = [f'global_load_dwordx4 {A(GB+4*q,4)}, v[24:25], off offset:{1024*q-4096}' for q in range(8)] if OPT.get('gbz') != 0 else []
    k('v_mov_b32 v15, v11')
    wl_ = [f'buffer_load_dwordx4 {V(WL,4)}, v15, {RA}, s49 offen', f'buffer_load_dwordx4 {V(WL+4,4)}, v15, {RB}, s49 offen']
    wt_dest(k, 's48', 50)
    k(f"""s_lshl_b32 s44, {WAVE}, 2
    s_add_u32 s44, s44, 0xa000
    v_add_u32 v12, s44, v12
    s_lshl_b32 s44, {WAVE}, 5
    v_xor_b32 v13, s44, v4
    s_lshl_b32 s44, {WAVE}, 11
    s_add_u32 s44, s44, 0xa000
    v_add_u32 v13, s44, v13
    v_xor_b32 v14, 16, v13
    s_lshl_b32 s44, {WAVE}, 11
    s_add_u32 s50, s50, s44
    s_add_u32 s51, s50, 1024""")
    srd(k, 24, 22, WS_USED)
    k(f"""s_lshl_b32 s44, {WAVE}, 12
    v_add_u32 v30, s44, v4
    v_lshrrev_b32 v31, 1, v4
    v_add_u32 v31, s44, v31
    v_mul_u32_u24 v6, {TPAD}, v3
    v_lshl_add_u32 v6, v2, 8, v6
    s_lshl_b32 s44, {WAVE}, 6
    s_add_u32 s44, s44, 16384
    v_add_u32 v6, s44, v6
    s_mul_i32 s44, {WAVE}, {4*TPAD}
    s_add_u32 s44, s44, 16384
    v_add_u32 v7, s44, v4
    v_cmp_eq_u32 vcc, 0, v3
    v_cndmask_b32 v8, 0, 1.0, vcc
    s_mov_b32 s62, 0x3f803f80
    v_lshlrev_b32 v9, 6, v3
    v_lshl_add_u32 v9, v2, 4, v9
    s_lshl_b32 s44, s60, 14
    s_lshl_b32 s63, s60, 7
    s_add_u32 s63, s63, {SM}
    s_lshl_b32 s47, {WAVE}, 12
    s_add_u32 s44, s44, s47
    s_add_u32 s64, s44, {ZT}
    s_lshl_b32 s44, {WAVE}, 4
    s_add_u32 s44, s44, 0x9000
    v_lshl_add_u32 v10, v2, 2, s44""")
    tl = gbl_ + ([] if OPT.get('wreal') else wl_) if not OPT.get('wlfirst') else wl_ + gbl_
    if True:
        stamp(k, 2, 'z')
        for i in range(4):
            k(f'ds_write_b128 v30, {V(X+4*i,4)} offset:{1024*i}')
            if i == 0: stamp(k, 1)
            for r in range(2): k(f'ds_read_b64_tr_b16 {V(TR+4*i+2*r,2)}, v31 offset:{1024*i+512*r}')
            for j in range(4):
                k(f'v_dot2_f32_bf16 v{SS+i}, v{X+4*i+j}, s62, {"0" if j==0 else V(SS+i)}')
                k(f'v_dot2_f32_bf16 v{SS+4+i}, v{X+4*i+j}, v{X+4*i+j}, {"0" if j==0 else V(SS+4+i)}')
        stamp(k, 3, 'z')
        k.sprinkle = tl; k.every = OPT.get('zev', 40); k.since = 100
        stamp(k, 4, 'z')
        mf = [f'v_mfma_f32_16x16x32_bf16 {V(DA+8*i+4*c,4)}, {V(TR+4*i,4)}, {A(FA+4*c,4)}, 0' for i in range(4) for c in range(2)]
        k(mf.pop(0)); k(mf.pop(0))
        for b in (SS, SS+4):
            k(f'v_permlane32_swap_b32 v{b}, v{b+2}\n v_permlane32_swap_b32 v{b+1}, v{b+3}')
        for b in (SS, SS+4):
            k(f'v_add_f32 v{b}, v{b}, v{b+2}\n v_add_f32 v{b+1}, v{b+1}, v{b+3}')
        k(mf.pop(0))
        for b in (SS, SS+4): k(f'v_permlane16_swap_b32 v{b}, v{b+1}')
        for b in (SS, SS+4): k(f'v_add_f32 v{b}, v{b}, v{b+1}')
        for sh in (8, 4, 2, 1):
            k(mf.pop(0))
            for b in (SS, SS+4): k(f'v_add_f32_dpp v{b}, v{b}, v{b} row_ror:{sh} row_mask:0xf bank_mask:0xf')
        k(mf.pop(0))
        k(f"""v_mul_f32 v{SS}, {fbits(1/512)}, v{SS}
        v_mul_f32 v{SS+4}, {fbits(1/512)}, v{SS+4}
        v_fma_f32 v{SS+4}, -v{SS}, v{SS}, v{SS+4}
        v_max_f32 v{SS+4}, 0, v{SS+4}
        v_add_f32 v{SS+4}, {fbits(1e-5)}, v{SS+4}
        v_rsq_f32 v{SS+1}, v{SS+4}
        v_mul_f32 v{SS+2}, {fbits(-8.0)}, v{SS}
        v_mul_f32 v{SS+2}, v{SS+2}, v{SS+1}
        v_mul_f32 v{SS+3}, {fbits(0.25)}, v{SS+1}""")
        for i in range(4):
            k(f'v_readlane_b32 s{68+2*i}, v{SS+3}, {16*i}\n v_readlane_b32 s{69+2*i}, v{SS+2}, {16*i}')
        for i in range(4):
            d = DA + 8*i
            k(f'v_mul_f32 v{TR}, s{69+2*i}, v8')
            for h in range(2):
                k(f'v_pk_mul_f32 {V(d+4+2*h,2)}, {V(d+4+2*h,2)}, {Sg(68+2*i,2)} op_sel_hi:[1,0]')
            for h in range(2):
                k(f'v_pk_fma_f32 {V(d+2*h,2)}, {V(d+2*h,2)}, {Sg(68+2*i,2)}, {V(TR,2)} op_sel_hi:[1,0,0]')
            for h in (2, 3, 0, 1): k(f'v_cvt_pk_f16_f32 v{X+4*i+h}, v{d+2*h}, v{d+2*h+1}')
            k(f'ds_write_b128 v6, {V(X+4*i,4)} offset:{16*i}')
        k(f"""v_mul_f32 v{SS+4}, v{SS+4}, v{SS+1}
        ds_write2_b32 v10, v{SS+4}, v{SS} offset0:0 offset1:16""")
        print('tables left', len(k.sprinkle)); flush(k)
        def wt_a():
            for i in range(8):
                k(f'v_perm_b32 v{WO+i}, v{WL+4+(i>>1)}, v{WL+(i>>1)}, s{53+(i&1)}')
                k(f'ds_write_b32 v12, v{WO+i} offset:{128*i}')
        if OPT.get('wtearly'): wt_a()
        k.wait(lg=0); k('s_barrier')
        if OPT.get('zst'): stamp(k, 1)
        stamp(k, 5, 'z')
        for q in range(4): k(f'ds_read_b128 {V(TR+4*q,4)}, v7 offset:{TPAD*q}')
        k(f'ds_read_b128 {V(SS,4)}, v4 offset:0x9000')
        go_load(k, 250)
        wt_b = lambda: [k(f'ds_read_b128 {V(WL+4*n,4)}, v{13+n} offset:{1024*n}') for n in range(2)]
        wt_c = lambda: [k(f'buffer_store_dwordx4 {V(WL+4*n,4)}, v11, {WSR}, s{50+n} offen{ST}') for n in range(2)]
        if OPT.get('wtearly'): wt_b()
        for q in range(4):
            for o in range(2): k(f'v_mfma_f32_16x16x32_f16 {V(DA+8*q+4*o,4)}, {V(TR+4*q,4)}, {A(GB+8*q+4*o,4)}, 0')
        k.wait(lg=0)
        if OPT.get('wtearly'): wt_c()
        only_wave(k, 3, lambda: k(f's_mov_b64 exec, 0xff\n buffer_store_dwordx4 {V(SS,4)}, v4, {WSR}, s63 offen{ST}'))
        for q in range(4):
            for h in range(4): k(f'v_cvt_pk_f16_f32 v{X+4*q+h}, v{DA+8*q+2*h}, v{DA+8*q+2*h+1}')
            k(f'buffer_store_dwordx4 {V(X+4*q,4)}, v9, {WSR}, s64 offen offset:{1024*q}{ST}')
        stamp(k, 6, 'z')
        if not OPT.get('wtearly'):
            wt_a(); k.wait(lg=0); k('s_barrier'); wt_b(); wt_c()
        wd_pack(k)
        global ztl
        ztl = p2_tables(k)
        if OPT.get('ztpre'):
            for t in ztl: k(t)
        stamp(k, 2)

def p1_w(k):
    OP, DA = 32, 64
    TBASE = 32768
    k(f"""s_and_b32 s61, s2, 1               ; mu
    s_bfe_u32 s60, s2, 0x60001
    s_and_b32 s44, s60, 3
    s_lshl_b32 s44, s44, 1
    s_bfe_u32 s45, s60, 0x10002
    s_add_u32 s44, s44, s45
    s_andn2_b32 s45, s60, 7
    s_add_u32 s44, s44, s45
    s_cmp_lt_u32 s60, 40
    s_cselect_b32 s60, s44, s60        ; phi""" + ("""
    s_bfe_u32 s44, s2, 0x20001
    s_mul_i32 s44, s44, 11
    s_bfe_u32 s45, s2, 0x40003
    s_add_u32 s60, s44, s45""" if OPT.get('wcont') else '') + f"""
    s_mul_i32 s44, {WAVE}, {4*2752}
    s_lshl_b32 s45, s60, 6
    s_add_u32 s66, s44, s45
    v_lshrrev_b32 v10, 2, v1
    v_mul_u32_u24 v30, {16*2752}, v10
    v_and_b32 v11, 3, v1
    v_and_b32 v12, 1, v2
    v_lshlrev_b32 v12, 1, v12
    v_xor_b32 v13, v11, v12
    v_lshl_add_u32 v30, v13, 4, v30    ; DMA source
    s_lshl_b32 s67, {WAVE}, 13
    s_mov_b32 s38, {D*F*2}
    s_mov_b32 s39, 0x20000
    """)
    k(f"""s_bfe_u32 s64, s2, 0x40003
    s_lshl_b32 s64, s64, 2
    s_add_u32 s64, s64, {WAVE}
    s_mul_i32 s64, s64, {12*2752}
    s_bfe_u32 s46, s2, 0x20001
    s_mul_i32 s46, s46, 704
    s_add_u32 s64, s64, s46
    s_add_u32 s65, s64, {8*2752}
    v_and_b32 v14, 7, v1
    v_lshlrev_b32 v14, 7, v14
    v_min_u32 v14, 700, v14
    v_lshrrev_b32 v15, 3, v1
    v_mul_u32_u24 v15, 2752, v15
    v_add_u32 v14, v14, v15""")
    if OPT.get('wgbfirst'): gb_loads(k)
    k.wait(lg=0)
    stamp(k, 1, 'z')
    k(f"""s_cmp_eq_u32 s61, 0
    s_cselect_b32 s36, s12, s14
    s_cselect_b32 s37, s13, s15
    s_and_b32 s37, s37, 0xffff""")
    if not OPT.get('nowt2'):
        k(f"""s_mov_b32 exec_lo, 0x7f7f7f7f
        s_mov_b32 exec_hi, 0x7f7f7f7f
        buffer_load_dword v5, v14, {RC}, s64 offen{OPT.get('ntg', '')}
        s_mov_b32 exec_hi, 0
        buffer_load_dword v248, v14, {RC}, s65 offen{OPT.get('ntg', '')}
        s_mov_b64 exec, -1""")
    k('v_mov_b32 v249, v30\n v_mov_b32 v24, v8\n v_mov_b32 v25, v9')
    def dmas():
        nonlocal pos
        pos = []
        for n in range(8):
            k(f's_add_u32 m0, s67, {1024*n}\n s_add_u32 s44, s66, {((n>>1) + 256*(n&1))*2752}')
            k(f'buffer_load_dwordx4 v249, {RC}, s44 offen{OPT.get("ntg", "")} lds'); pos.append(k.nvm)
        for q in range(8): k(f'global_load_dwordx4 {A(GB+4*q,4)}, v[24:25], off offset:{1024*q-4096}')
    pos = None
    if OPT.get('dfirst'): dmas()
    srd(k, 24, 22, WS_USED)
    k(f"""v_lshlrev_b32 v31, 6, v10
    v_lshl_add_u32 v31, v12, 4, v31
    v_lshl_add_u32 v31, v11, 3, v31
    v_add_u32 v30, s67, v31
    v_xor_b32 v31, 32, v30
    v_mul_u32_u24 v6, {4*TPAD}, v2
    v_lshl_add_u32 v6, v3, 4, v6
    s_lshl_b32 s44, {WAVE}, 8
    s_add_u32 s44, s44, {TBASE}
    v_add_u32 v6, s44, v6              ; T write
    s_mul_i32 s44, {WAVE}, {4*TPAD}
    s_add_u32 s44, s44, {TBASE}
    v_add_u32 v7, s44, v4              ; T read
    s_lshl_b32 s44, s60, 2
    v_lshrrev_b32 v12, 3, v3
    v_and_b32 v13, 7, v3
    v_lshlrev_b32 v13, 4, v13
    v_lshl_add_u32 v13, v2, 8, v13
    s_lshl_b32 s45, {WAVE}, 12
    s_add_u32 s68, s45, {WP}
    v_mov_b32 v19, s61""")
    for pp in range(2):
        k(f"""v_add_u32 v14, s44, v12            ; octet
        v_mul_u32_u24 v15, 373, v14
        v_lshrrev_b32 v15, 12, v15
        v_add_u32 v14, v14, v15            ; q
        v_mul_u32_u24 v15, 171, v14
        v_lshrrev_b32 v15, 9, v15
        v_mul_u32_u24 v15, 3, v15          ; q - q%3
        v_sub_u32 v16, v14, v15            ; n
        v_cmp_eq_u32 vcc, 2, v16
        v_add_u32 v15, s61, v15
        s_add_u32 s44, s44, 2
        v_cndmask_b32 v15, v15, v14, vcc   ; tile
        v_cndmask_b32 v16, v16, v19, vcc
        v_mul_u32_u24 v15, {WPS}, v15
        v_add_u32 v{8+pp}, v15, v13
        v_lshl_add_u32 v{8+pp}, v16, 7, v{8+pp}""")
    tl = p2_tables(k)
    setup(k); setup_late(k, 'addr')
    if not OPT.get('dfirst'): dmas()
    stamp(k, 2, 'z')
    for dl in range(4):
        k(f's_waitcnt vmcnt({k.nvm - pos[2*dl+1]})')
        if dl == 0: stamp(k, 1)
        for pi in range(2):
            for h in range(2): k(f'ds_read_b64_tr_b16 {V(OP+8*dl+4*pi+2*h,2)}, v{30+pi} offset:{2048*dl+1024*h}')
    stamp(k, 3, 'z')
    k.sprinkle = tl; k.every = OPT.get('tev', 28); k.since = 100
    for dl in range(4):
        for pi in range(2):
            for c in range(2):
                k(f'v_mfma_f32_16x16x32_bf16 {V(DA+32*pi+16*c+4*dl,4)}, {A(FA+4*c,4)}, {V(OP+8*dl+4*pi,4)}, 0')
    for pi in range(2):
        for r in range(4):
            u = OP + 16*pi + 4*r
            for c in range(2):
                for h in range(2):
                    d = DA + 32*pi + 16*c + 8*h + r
                    k(f'v_cvt_pk_bf16_f32 v{u+2*c+h}, v{d}, v{d+4}')
            k(f'ds_write_b128 v6, {V(u,4)} offset:{16*TPAD*pi+TPAD*r}')
    flush(k)
    stamp(k, 4, 'z')
    k.wait(lg=0); k('s_barrier')
    stamp(k, 5, 'z')
    for pi in range(2):
        for q in range(4): k(f'ds_read_b128 {V(OP+16*pi+4*q,4)}, v7 offset:{16*TPAD*pi+TPAD*q}')
    go_load(k, 250)
    for pi in range(2):
        for q in range(4):
            for o in range(2):
                k(f'v_mfma_f32_16x16x32_bf16 {V(DA+32*pi+8*q+4*o,4)}, {A(GB+8*q+4*o,4)}, {V(OP+16*pi+4*q,4)}, 0')
    for pi in range(2):
        for p in range(2):
            for o in range(2):
                u = OP + 16*pi + 8*p + 4*o
                for hq in range(2):
                    for h in range(2):
                        d = DA + 32*pi + 8*(2*p+hq) + 4*o + 2*h
                        k(f'v_cvt_pk_bf16_f32 v{u+2*hq+h}, v{d}, v{d+1}')
                k(f'buffer_store_dwordx4 {V(u,4)}, v{8+pi}, {WSR}, s68 offen offset:{(2*p+o)*1024}{ST}')
    stamp(k, 2); stamp(k, 6, 'z')

def wt_rows(k, task, dst):
    k(f"""s_bfe_u32 s44, {task}, 0x30002
    s_lshl_b32 s44, s44, 3
    s_lshr_b32 s45, {task}, 5
    s_lshl_b32 s45, s45, 8
    s_add_u32 s44, s44, s45
    s_mul_i32 s{dst}, s44, 514
    s_and_b32 s45, {task}, 3
    s_lshl_b32 s45, s45, 7
    s_add_u32 s{dst}, s{dst}, s45
    s_add_u32 s{dst}, s{dst}, 2
    v_lshrrev_b32 v12, 3, v1
    v_and_b32 v13, 7, v1
    v_mul_u32_u24 v11, 514, v12
    v_lshl_add_u32 v11, v13, 4, v11
    s_mov_b32 s30, {2048*257*2}
    s_mov_b32 s31, 0x20000
    s_mov_b32 s34, {2048*257*2}
    s_mov_b32 s35, 0x20000""")
def wt_dest(k, task, dst):
    k(f"""s_lshl_b32 s{dst}, {task}, 13
    s_add_u32 s{dst}, s{dst}, {WT}
    s_mov_b32 s53, 0x05040100
    s_mov_b32 s54, 0x07060302
    v_mov_b32 v11, v4
    v_xor_b32 v12, v12, v13
    v_lshlrev_b32 v12, 4, v12
    v_lshl_add_u32 v12, v13, 10, v12""")
WSRDS = 's_mov_b32 s28, s6\n s_and_b32 s29, s7, 0xffff\n s_mov_b32 s32, s8\n s_and_b32 s33, s9, 0xffff'
def p1_t(k):
    WL, WO = 32, 64
    k(f's_sub_u32 s48, s2, {NC0}\n s_lshl_b32 s48, s48, 2\n s_add_u32 s48, s48, {WAVE}')
    wt_rows(k, 's48', 49)
    for r in range(1, 4): k(f's_add_u32 s{49+r}, s49, {64*r*514}')
    k.wait(lg=0)
    k(WSRDS)
    for r in range(4):
        k(f'buffer_load_dwordx4 {V(WL+8*r,4)}, v11, {RA}, s{49+r} offen{OPT.get("ntw", "")}')
        k(f'buffer_load_dwordx4 {V(WL+8*r+4,4)}, v11, {RB}, s{49+r} offen{OPT.get("ntw", "")}')
    srd(k, 24, 22, WS_USED)
    wt_dest(k, 's48', 56)
    k(f's_lshl_b32 s44, {WAVE}, 13\n v_add_u32 v12, s44, v12\n v_add_u32 v14, s44, v4')
    for n in range(1, 8): k(f's_add_u32 s{56+n}, s56, {1024*n}\n v_xor_b32 v{14+n}, {16*n}, v14')
    tl = p2_tables(k)
    for i in range(8):
        o = WO + 4*i
        for r in range(4): k(f'v_perm_b32 v{o+r}, v{WL+8*r+4+(i>>1)}, v{WL+8*r+(i>>1)}, s{53+(i&1)}')
        k(f'ds_write_b128 v12, {V(o,4)} offset:{128*i}')
        if OPT.get('ttpre'):
            for t in tl[2*i:2*i+2]: k(t)
    stamp(k, 1)
    if OPT.get('twe'): twiddles(k)
    for n in range(8): k(f'ds_read_b128 {V(WL+4*n,4)}, v{14+n} offset:{1024*n}')
    go_load(k, 250)
    for n in range(8): k(f'buffer_store_dwordx4 {V(WL+4*n,4)}, v11, {WSR}, s{56+n} offen{ST}')
    stamp(k, 2)

def p1_i(k):
    k.wait(lg=0)
    srd(k, 24, 22, WS_USED)
    k(f"""s_lshl_b32 s44, s2, 2
    s_add_u32 s44, s44, {WAVE}
    s_cmp_lg_u32 s44, {255*4}
    s_cbranch_scc1 L_noinit
    v_lshlrev_b32 v30, 8, v1
    v_lshlrev_b32 v31, 8, v3
    v_mov_b32 v32, 0
    s_mov_b32 s44, {FLG}
    s_mov_b32 s45, {FLG+16384}
    buffer_store_dword v32, v30, {WSR}, s44 offen{ST}
    v_lshlrev_b32 v33, 7, v1
    buffer_store_dword v32, v33, {WSR}, s45 offen{ST}
    s_add_u32 s45, s45, 8192
    buffer_store_dword v32, v33, {WSR}, s45 offen{ST}
    buffer_store_dword v32, v31, {WSR}, 0 offen{ST}
    v_mov_b32 v33, 1
    s_waitcnt vmcnt(0)
    s_mov_b64 exec, 1
    global_store_dword v32, v33, s[20:21]{ST}
    s_mov_b64 exec, -1""")
    k.label('L_noinit')
    k(f"""s_sub_u32 s60, s2, {NI0}
    s_lshl_b32 s61, s60, 1
    s_lshr_b32 s44, {WAVE}, 1
    s_add_u32 s61, s61, s44            ; t
    s_and_b32 s62, {WAVE}, 1
    s_lshl_b32 s62, s62, 2             ; p
    s_add_u32 s63, s62, 4
    s_lshl_b32 s44, s61, 5
    s_add_u32 s44, s44, 1
    v_lshl_add_u32 v30, v3, 1, s44     ; 2d+1
    v_and_b32 v31, 1, v2
    v_lshlrev_b32 v31, 7, v31
    v_cmp_lt_u32 s[64:65], 1, v2
    v_mov_b32 v36, {fbits(1/16)}
    s_mul_i32 s61, s61, {12*WPS}
    s_add_u32 s61, s61, {WP+11*WPS}""")
    for t in p2_tables(k): k(t)
    if OPT.get('twe'): twiddles(k)
    stamp(k, 1)
    k.fence(); k.label('L_inv')
    k(f"""s_lshl_b32 s44, s62, 1
    s_sub_u32 s45, 32, s44
    s_cmp_eq_u32 s44, 0
    s_cselect_b32 s45, 16, s45
    v_mov_b32 v33, s44
    v_mov_b32 v34, s45
    v_cndmask_b32 v33, v33, v34, s[64:65]
    v_add_u32 v33, v33, v31
    s_add_u32 s44, s44, 1
    s_sub_u32 s45, 32, s44
    v_mov_b32 v34, s44
    v_mov_b32 v35, s45
    v_cndmask_b32 v34, v34, v35, s[64:65]
    v_add_u32 v34, v34, v31
    v_cmp_eq_u32 vcc, 0, v33
    v_mov_b32 v35, 0x100
    v_mov_b32 v37, {fbits(1/math.sqrt(512))}
    v_cndmask_b32 v35, v33, v35, vcc
    v_cndmask_b32 v37, v36, v37, vcc
    s_lshl_b32 s45, s62, 11
    s_add_u32 s66, s61, s45""")
    for e in range(8):
        src = 'v35' if e == 0 else None
        if e: k(f'v_add_u32 v{40+e}, {32*(e&3)}, v{33+(e>>2)}')
        k(f'v_mul_u32_u24 v{40+e}, {src or V(40+e)}, v30')
        k(f'v_and_b32 v{40+e}, 0x3ff, v{40+e}')
        k(f'v_cvt_f32_u32 v{40+e}, v{40+e}')
        k(f'v_mul_f32 v{40+e}, {fbits(1/1024)}, v{40+e}')
    for e in range(8):
        k(f'v_cos_f32 v{48+e}, v{40+e}\n v_sin_f32 v{56+e}, v{40+e}')
    for e in range(8):
        sc = 'v37' if e == 0 else 'v36'
        k(f'v_mul_f32 v{48+e}, {sc}, v{48+e}\n v_mul_f32 v{56+e}, {sc}, -v{56+e}')
    for part in range(2):
        for h in range(4): k(f'v_cvt_pk_bf16_f32 v{64+4*part+h}, v{48+8*part+2*h}, v{48+8*part+2*h+1}')
        k(f'buffer_store_dwordx4 {V(64+4*part,4)}, v4, {WSR}, s66 offen offset:{1024*part}{ST}')
    k('s_add_u32 s62, s62, 1\n s_cmp_lt_u32 s62, s63\n s_cbranch_scc1 L_inv')
    go_load(k, 250)
    stamp(k, 2)

WDL, WDO = 128, 48
def wd_task(k):
    k(f"""s_lshl_b32 s44, {WAVE}, 7
    s_add_u32 s44, s44, s2
    s_sub_u32 s44, s44, 128
    s_min_u32 s44, s44, 352""")
def wd_issue(k):
    srd(k, 36, 16, F*D*2)
    wd_task(k)
    k(f"""s_and_b32 s45, s44, 1
    s_lshr_b32 s44, s44, 1
    s_lshl_b32 s44, s44, 13
    s_lshl_b32 s45, s45, 9
    s_add_u32 s56, s44, s45
    s_add_u32 s57, s56, 4096
    v_lshlrev_b32 v20, 3, v1""")
    return [f'buffer_load_dwordx2 {V(WDL+2*e,2)}, v20, {RC}, s{56+(e>>2)} offen offset:{1024*(e&3)}{OPT.get("ntd", "")}' for e in range(8)]
def wd_pack(k):
    for pi in range(4):
        for h in range(4): k(f'v_perm_b32 v{WDO+4*pi+h}, v{WDL+4*h+2+(pi>>1)}, v{WDL+4*h+(pi>>1)}, s{53+(pi&1)}')
def wd_finish(k):
    wd_task(k)
    k(f's_cmp_lt_u32 s2, {NZ}\n s_cselect_b32 s73, s44, 352\n s_cmp_ge_u32 s73, 352\n s_cbranch_scc1 L_nowd')
    st = k.state()
    k(f"""s_lshr_b32 s44, s73, 4
    s_bfe_u32 s45, s73, 0x20002
    s_lshl_b32 s44, s44, 11
    s_mul_i32 s45, s45, {WDS}
    s_add_u32 s44, s44, s45
    s_and_b32 s45, s73, 1
    s_mul_i32 s45, s45, {16*WDS}
    s_add_u32 s44, s44, s45
    s_bfe_u32 s45, s73, 0x10001
    s_lshl_b32 s45, s45, 9
    s_add_u32 s44, s44, s45
    s_add_u32 s44, s44, {WD}
    v_mul_u32_u24 v30, {4*WDS}, v2
    v_bfe_u32 v31, v1, 3, 1
    v_lshl_add_u32 v30, v31, 10, v30
    v_and_b32 v31, 7, v1
    v_lshl_add_u32 v30, v31, 4, v30""")
    for pi in range(4): k(f'buffer_store_dwordx4 {V(WDO+4*pi,4)}, v30, {WSR}, s44 offen offset:{128*pi}{ST}')
    k.fence()
    k.restore(st); k.label('L_nowd')

STATL = 131072
def p4_ids(k):
    k(f"""s_and_b32 s44, s2, 7
    s_lshl_b32 s44, s44, 2
    s_bfe_u32 s46, s2, 0x20003
    s_add_u32 s44, s44, s46
    s_lshr_b32 s45, s2, 5""")

def setup(k):
    if OPT.get('x216'):
        k(f"""s_and_b32 s44, s2, 7
        s_lshl_b32 s44, s44, 1
        s_bfe_u32 s45, s2, 0x10003
        s_add_u32 s48, s44, s45
        s_lshr_b32 s49, s2, 4
        s_lshl_b32 s45, s45, 2
        s_mov_b32 s46, s49""")
    elif OPT.get('x48'):
        k(f"""s_and_b32 s44, s2, 3
        s_lshl_b32 s44, s44, 2
        s_bfe_u32 s45, s2, 0x20003
        s_add_u32 s48, s44, s45
        s_and_b32 s44, s2, 4
        s_lshl_b32 s44, s44, 1
        s_lshr_b32 s46, s2, 5
        s_add_u32 s49, s44, s46
        s_lshl_b32 s45, s45, 1""")
    else:
        k(f"""s_and_b32 s44, s2, 1
        s_lshl_b32 s44, s44, 3
        s_bfe_u32 s45, s2, 0x30003
        s_add_u32 s48, s44, s45
        s_bfe_u32 s44, s2, 0x20001
        s_lshl_b32 s44, s44, 2
        s_lshr_b32 s46, s2, 6
        s_add_u32 s49, s44, s46
        s_lshl_b32 s46, s46, 1""")
    k(f"""s_mov_b32 s53, 0
    s_lshl_b32 s46, s48, 11
    s_lshl_b32 s47, s49, 7
    s_add_u32 s41, s46, s47
    s_add_u32 s41, s41, {RBF}
    v_mov_b32 v250, 0""")
    stamp(k, 7, 'z')
    k(f"""s_and_b32 s74, s2, 7
    s_lshl_b32 s74, s74, 8
    s_add_u32 s75, s74, {FLG}
    s_and_b32 s44, s2, 1
    s_mul_i32 s44, s44, 44
    s_bfe_u32 s45, s2, 0x20001
    s_mul_i32 s45, s45, 11
    s_add_u32 s44, s44, s45
    s_bfe_u32 s45, s2, 0x40003
    s_add_u32 s44, s44, s45
    s_sub_u32 s45, s2, {NI0-88}
    s_cmp_ge_u32 s2, {NI0}
    s_cselect_b32 s44, s45, s44
    s_cselect_b32 s46, 0, s2
    s_lshl_b32 s44, s44, 7
    s_add_u32 s71, s44, {FLG+16384}
    s_cmp_lt_u32 s2, {NZ}
    s_cselect_b32 s71, 0, s71
    s_cmp_ge_u32 s46, {NC0}
    s_cselect_b32 s71, 0, s71
    v_mov_b32 v251, 1
    s_mov_b32 s63, 0x80008000""")

def twiddles(k):
    k(f"""s_lshl_b32 s44, {WAVE}, 4
    v_add_u32 v240, s44, v3
    v_cvt_f32_u32 v240, v240
    v_mul_f32 v240, {fbits(1/2048)}, v240
    v_lshlrev_b32 v241, 2, v2
    v_add_u32 v242, s44, v241
    v_cvt_f32_u32 v241, v241
    v_cvt_f32_u32 v242, v242
    v_cvt_f32_u32 v243, v3
    v_mul_f32 v243, {fbits(1/2048)}, v243""")
    for be in range(2):
        for r in range(4):
            t = TW1 + 8*be + r
            k(f'v_add_f32 v{t}, {fbits(16*be+r)}, v241\n v_mul_f32 v{t}, v{t}, v240')
            k(f'v_sin_f32 v{t+4}, v{t}\n v_cos_f32 v{t}, v{t}')
    for be in range(2):
        if be: k(f'v_add_f32 v243, {fbits(16/2048)}, v243')
        for r in range(4):
            t = TW2 + 8*be + r
            k(f'v_add_f32 v{t}, {fbits(r)}, v242\n v_mul_f32 v{t}, v{t}, v243')
            k(f'v_sin_f32 v{t+4}, v{t}\n v_cos_f32 v{t}, v{t}')

def setup_late(k, part=None):
    k(f"""s_mul_i32 s44, s49, 11
    s_add_u32 s45, s44, 10
    s_lshr_b32 s44, s44, 2
    s_lshr_b32 s45, s45, 2
    v_and_b32 v23, 3, v1
    v_add_u32 v23, s44, v23
    v_min_u32 v23, s45, v23
    v_bfe_u32 v240, v1, 2, 1
    v_mul_u32_u24 v240, 44, v240
    v_add_u32 v23, v23, v240
    s_lshr_b32 s44, s49, 1
    s_add_u32 s44, s44, 88
    v_mov_b32 v240, s44
    v_cmp_gt_u32 vcc, 8, v1
    v_cndmask_b32 v23, v240, v23, vcc
    v_lshlrev_b32 v23, 7, v23
    v_add_u32 v23, {FLG+16384}, v23""")
    if part != 'addr':
        if OPT.get('twe'):
            uid[0] += 1; u = uid[0]
            k(f's_cmp_ge_u32 s2, {NC0}\n s_cbranch_scc1 L_tw{u}')
            twiddles(k); k.fence(); k.label(f'L_tw{u}')
        else: twiddles(k)
    for u in range(4):
        k(f's_add_u32 s45, {WAVE}, {u}\n s_and_b32 s45, s45, 3\n s_lshl_b32 s45, s45, 11\n v_add_u32 v{16+u}, s45, v4')
    k(f"""s_and_b32 s58, s2, 0xf6
    s_bfe_u32 s45, s2, 0x10003
    s_add_u32 s58, s58, s45
    s_and_b32 s45, s2, 1
    s_lshl_b32 s45, s45, 3
    s_add_u32 s58, s58, s45
    s_lshl_b32 s44, s58, 6
    s_lshl_b32 s45, {WAVE}, 19
    s_add_u32 s44, s44, s45
    s_add_u32 s55, s44, {ZT}
    s_add_u32 s56, s55, 0x10000
    s_lshr_b32 s44, s58, 4
    s_sub_u32 s45, 32, s44
    s_cmp_eq_u32 s44, 0
    s_cselect_b32 s45, 16, s45
    s_bitcmp1_b32 s58, 3
    s_cselect_b32 s44, s45, s44
    s_and_b32 s45, s58, 7
    s_lshl_b32 s45, s45, 5
    s_add_u32 s44, s44, s45
    s_sub_u32 s44, s44, 1
    s_and_b32 s44, s44, 255
    s_lshl_b32 s44, s44, 7
    s_lshl_b32 s45, {WAVE}, 16
    s_add_u32 s44, s44, s45
    s_add_u32 s59, s44, {WT}
    s_add_u32 s60, s59, 0x100000
    v_and_b32 v15, 7, v1
    v_lshlrev_b32 v15, 4, v15
    v_bfe_u32 v14, v1, 3, 1
    v_lshl_add_u32 v15, v14, 15, v15
    v_lshl_add_u32 v15, v2, 18, v15
    s_lshl_b32 s45, {WAVE}, 12
    s_add_u32 s61, s45, {SM}
    v_lshrrev_b32 v21, 2, v3
    v_lshlrev_b32 v21, 7, v21
    v_lshl_add_u32 v21, v2, 10, v21
    v_and_b32 v22, 3, v1
    v_lshlrev_b32 v14, 4, v22
    v_lshl_add_u32 v14, v21, 7, v14
    v_lshl_add_u32 v22, v22, 4, v21
    s_mov_b32 s63, 0x80008000""")

def setup2(k):
    k(f"""v_lshrrev_b32 v20, 2, v1
    v_lshlrev_b32 v20, 15, v20
    v_and_b32 v24, 3, v1
    v_lshl_add_u32 v20, v24, 4, v20
    s_lshr_b32 s44, s58, 5
    s_lshl_b32 s44, s44, 6
    s_and_b32 s45, s58, 31
    s_add_u32 s44, s44, s45
    s_lshl_b32 s44, s44, 6
    s_lshl_b32 s45, {WAVE}, 19
    s_add_u32 s44, s44, s45
    s_add_u32 s62, s44, {HT}
    s_mul_i32 s44, s49, 11
    s_mul_i32 s45, {WAVE}, 3
    s_add_u32 s50, s44, s45
    s_add_u32 s44, s50, s49
    s_mul_i32 s44, s44, {WPS}
    s_add_u32 s44, s44, {WP}
    v_add_u32 v248, s44, v4
    v_add_u32 v249, {WPS}, v248
    v_add_u32 v255, {2*WPS}, v248
    s_and_b32 s46, {WAVE}, 1
    s_lshr_b32 s47, {WAVE}, 1
    s_lshl_b32 s45, s46, 15
    s_lshl_b32 s54, s47, 12
    s_add_u32 m0, s54, s45
    s_lshl_b32 s44, s48, 17
    s_add_u32 s44, s44, {HT}
    v_and_b32 v6, 1, v2
    v_lshlrev_b32 v6, 5, v6
    v_xor_b32 v5, v6, v4
    v_add_u32 v5, s44, v5
    v_lshrrev_b32 v7, 2, v1
    v_lshl_add_u32 v6, v7, 6, v6
    v_lshl_add_u32 v6, v24, 3, v6
    s_lshl_b32 s44, s47, 5
    s_add_u32 s44, s44, s45
    v_xor_b32 v6, s44, v6
    v_xor_b32 v7, 32, v6
    v_lshrrev_b32 v9, 2, v3
    v_cmp_eq_u32 vcc, v9, v2
    s_lshl_b32 s47, s47, 8
    s_lshl_b32 s44, s46, 9
    s_add_u32 s44, s44, s47
    s_add_u32 s44, s44, {STATL}
    v_lshl_add_u32 v10, v3, 4, s44     ; statistics reads
    v_xor_b32 v8, 0x100, v10
    v_add_u32 v9, {STATL+2048}, v4
    v_cndmask_b32 v9, v9, v10, vcc     ; statistics write (other lanes go to a dummy area)
    v_lshrrev_b32 v24, 1, v2
    v_lshlrev_b32 v11, 8, v24
    v_xor_b32 v11, v11, v10            ; statistics for the mixed tile
    s_mov_b32 s64, 0x22222222
    s_mov_b32 s65, s64
    s_mov_b32 s66, 0x44444444
    s_mov_b32 s67, s66
    s_mov_b32 s68, 0x88888888
    s_mov_b32 s69, s68
    v_add_u32 v25, s50, v24
    v_lshrrev_b32 v12, 1, v25
    v_mul_u32_u24 v12, {HFS}, v12
    v_and_b32 v25, 1, v25
    v_lshl_add_u32 v12, v25, 9, v12
    v_and_b32 v25, 0x1f0, v4
    v_xor_b32 v25, s47, v25
    v_add_u32 v12, v25, v12
    s_add_u32 s44, s50, 2
    s_lshr_b32 s45, s44, 1
    s_mul_i32 s45, s45, {HFS}
    s_and_b32 s44, s44, 1
    s_lshl_b32 s44, s44, 9
    s_add_u32 s44, s44, s45
    v_lshlrev_b32 v13, 8, v24
    v_xor_b32 v13, s47, v13
    v_add_u32 v13, s44, v13
    v_lshl_add_u32 v13, v3, 4, v13
    v_and_b32 v25, 1, v2
    v_xor_b32 v25, 1, v25
    v_lshlrev_b32 v25, 10, v25
    s_lshl_b32 s44, s46, 1
    s_sub_u32 s44, 1, s44
    v_mul_i32_i24 v25, s44, v25
    v_sub_u32 v13, v13, v25""")
    wsrd(k, 32, HF+86*HFS)
    if OPT.get('wtouch'):
        k(f"""s_and_b32 s44, s48, 7
        s_lshl_b32 s44, s44, 11
        v_sub_u32 v14, v248, v4
        v_lshl_add_u32 v14, v2, 14, v14
        v_lshl_add_u32 v14, v3, 7, v14
        v_add_u32 v14, s44, v14
        v_cmp_gt_u32 vcc, 3, v2
        v_cndmask_b32 v14, -1, v14, vcc""")

def p2_negs(k, base):
    for u in range(4):
        for h in range(2): k(f'v_xor_b32 v{base+6*u+h}, s63, v{base+6*u+4+h}')

def wd_reg(u, i): return A(192+8*u+4*i, 4) if u < 8 else V(144+8*(u-8)+4*i, 4)
def wd_loads(u):
    o = [f'buffer_load_dwordx4 {wd_reg(u+s,i)}, v15, {WSR}, s51 offen offset:{2048*s+1024*i}{LD}' for s in range(2) for i in range(2)]
    return o + ['s_add_u32 s51, s51, 4096']
def wloads(R=RA):
    return [f'buffer_load_dwordx4 {A(12*ka+4*t,4)}, v{(248, 249, 255)[t]}, {R}, {("0", "s70", "s71", "s72")[ka>>2]} offen offset:{1024*(ka&3)}{LD}' for ka in range(16) for t in range(3)]

def p2(k):
    Z, WW, SG, DD, TT, PK = 32, 64, 80, 88, 104, 240
    for u in range(1 if not OPT.get('zall') else 4):
        for be in range(2): k(f'buffer_load_dwordx4 {V(Z+8*u+4*be,4)}, v14, {WSR}, s{55+be} offen{LD}')
    lds_ = f"""buffer_load_dwordx4 {V(WW+4,4)}, v15, {WSR}, s59 offen{LD}
    buffer_load_dwordx4 {V(WW+12,4)}, v15, {WSR}, s60 offen{LD}
    buffer_load_dwordx4 {V(SG,4)}, v22, {WSR}, s61 offen{LD}
    buffer_load_dwordx4 {V(SG+4,4)}, v22, {WSR}, s61 offen offset:512{LD}""".split('\n')
    lds_.insert(OPT.get('fpos', 2), f'buffer_load_dword v26, v23, {WSR}, 0 offen{LD}')
    if OPT.get('wnow'):
        for t in lds_: k(t)
    else:
        k.sprinkle = [t.strip() for t in lds_]; k.every = 60; k.since = 0
    setup2(k); flush(k)
    k(f"""s_mov_b32 s28, s24
    s_mov_b32 s29, s25
    s_mov_b32 s31, 0x20000
    s_mov_b32 s36, s24
    s_mov_b32 s37, s25
    s_mov_b32 s39, 0x20000
    s_mov_b32 s70, 4096
    s_mov_b32 s71, 8192
    s_mov_b32 s72, 12288""")
    def check1():
        k(f'v_cmp_ne_u32 vcc, 1, v26\n s_cmp_eq_u64 vcc, 0\n s_cselect_b32 s30, {WS_USED}, 0')
        k(f'buffer_load_dword v27, v23, {WSR}, 0 offen{LD}')
        if OPT.get('wtouch'): k(f'buffer_load_dword v25, v14, {RA}, 0 offen{LD}')
        k.sprinkle = wloads(); k.every = OPT.get('every', 64); k.since = 100; k.lazy = OPT.get('lazy', 1)
    def unpack():
        for t in range(2):
            for r in range(4):
                k(f'v_lshlrev_b32 v{WW+8*t+r}, 16, v{WW+8*t+4+r}\n v_and_b32 v{WW+8*t+4+r}, 0xffff0000, v{WW+8*t+4+r}')
    if not OPT.get('zall'):
        for be in range(2): k(f'ds_write_b128 v16, {V(Z+4*be,4)} offset:{8192+1024*be}')
    for u in range(4):
        for be in range(2):
            for o in range(2):
                d = V(DD+8*be+4*o, 4)
                k(f'v_mfma_f32_16x16x32_f16 {d}, {V(Z+8*u+4*be,4)}, {V(B1+6*u+2-2*o,4)}, {"0" if u==0 else d}')
        if u == 0:
            stamp(k, 5); stamp(k, 2, 'b')
            if not OPT.get('zall'):
                k.wait(lg=0); k('s_barrier')
                for v in range(1, 4):
                    for be in range(2): k(f'ds_read_b128 {V(Z+8*v+4*be,4)}, v{16+v} offset:{8192+1024*be}')
                if OPT.get('c1') == 0: check1()
    if OPT.get('c1') == 1: check1()
    E = Z + 8
    for be in range(2):
        cmul(k, DD+8*be, DD+8*be+4, TW1+8*be, TW1+8*be+4, TT, TT+4, True)
        for h in range(4): k(f'v_cvt_pk_f16_f32 v{PK+4*be+h}, v{TT+2*h}, v{TT+2*h+1}')
        for t in range(2):
            for o in range(2):
                d = V(E+8*t+4*o, 4)
                k(f'v_mfma_f32_16x16x32_f16 {d}, {V(A2+6*(2*t+be)+2-2*o,4)}, {V(PK+4*be,4)}, {"0" if be==0 else d}')
    def check2():
        global n1
        n1 = 48 - len(k.sprinkle); k.sprinkle = []
        k(f'v_cmp_ne_u32 vcc, 1, v27\n s_cmp_eq_u64 vcc, 0\n s_cselect_b32 s38, {WS_USED}, 0')
        if OPT.get('wtouch') == 2: k(f's_sub_u32 s44, {WS_USED}, s30\n s_cselect_b32 s44, 0, 0\n s_cmp_eq_u32 s30, 0\n s_cselect_b32 s44, 0, {WS_USED}\n buffer_load_dword v25, v14, {RC}, s44 offen{LD}')
        k.sprinkle = wloads(RC)[n1:]
    if OPT.get('c1') == 2: check1()
    unpack()
    stamp(k, 3, 'b')
    if OPT.get('c2', 0) == 0: check2()
    for t in range(2):
        cmul(k, E+8*t, E+8*t+4, WW+8*t, WW+8*t+4, TT, TT+4, False)
        for h in range(4): k(f'v_cvt_pk_bf16_f32 v{PK+4*t+h}, v{TT+2*h}, v{TT+2*h+1}')
        for be in range(2):
            for o in range(2):
                d = V(DD+8*be+4*o, 4)
                k(f'v_mfma_f32_16x16x32_bf16 {d}, {V(PK+4*t,4)}, {V(B3+6*(2*be+t)+2-2*o,4)}, {"0" if t==0 else d}')
    if OPT.get('c2', 0) == 1: check2()
    for be in range(2):
        cmul(k, DD+8*be, DD+8*be+4, TW2+8*be, TW2+8*be+4, TT, TT+4, False)
        for h in range(4): k(f'v_cvt_pk_bf16_f32 v{PK+4*be+h}, v{TT+2*h}, v{TT+2*h+1}')
        k(f'ds_write_b128 v16, {V(PK+4*be,4)} offset:{1024*be}')
    def step4(u, src):
        for be in range(2):
            for o in range(2):
                d = V(DD+8*be+4*o, 4)
                k(f'v_mfma_f32_16x16x32_bf16 {d}, {V(A4+6*u+2-2*o,4)}, {V(src+4*be,4)}, {d}')
    for o in range(2):
        for be in range(2):
            for r in range(4):
                d = DD+8*be+4*o+r; hi = r & 1
                k(f'v_fma_mix_f32 v{d}, v{SG+4*be+r}, v{Z+4*be+2*o+(r>>1)}, 0 op_sel:[0,{hi},0] op_sel_hi:[0,1,0]')
    stamp(k, 4, 'b')
    k.wait(lg=0); k('s_barrier')
    for u in range(1, 4):
        for be in range(2): k(f'ds_read_b128 {V(Z+8*u+4*be,4)}, v{16+u} offset:{1024*be}')
    step4(0, PK)
    for u in range(1, 4): step4(u, Z+8*u)
    OUT = 64
    rest, k.sprinkle = k.sprinkle, []
    for o in range(2):
        for be in range(2):
            for h in range(2): k(f'v_cvt_pk_bf16_f32 v{OUT+4*o+2*be+h}, v{DD+8*be+4*o+2*h}, v{DD+8*be+4*o+2*h+1}')
    k('s_cmp_lg_u32 s2, 0\n s_cbranch_scc1 L_p2_st')
    for h in range(4): k(f'v_mov_b32 v{OUT+4+h}, v{OUT+h}\n v_mov_b32 v{OUT+h}, 0')
    k.label('L_p2_st')
    for o in range(2): k(f'buffer_store_dwordx4 {V(OUT+4*o,4)}, v20, {WSR}, s62 offen offset:{2048*o}{ST}')
    stamp(k, 5, 'b')
    return rest

def barrier2(k, rest):
    print('weight loads left after phase 2:', len(rest))
    k(f's_lshl_b32 s44, s48, 12\n s_add_u32 s44, s44, {HF}')
    k(f's_and_b32 s46, {WAVE}, 1')
    for p in range(4): k(f's_xor_b32 s45, s46, {p}\n s_lshl_b32 s45, s45, 10\n s_add_u32 s{55+p}, s44, s45')
    k(f"""s_lshl_b32 s44, s49, 17
    s_lshl_b32 s45, s48, 11
    s_add_u32 s44, s44, s45
    s_add_u32 s59, s44, {HRES}
    s_add_u32 s60, s59, 0x10000
    s_lshl_b32 s44, s48, 10
    s_add_u32 s61, s44, {SM+64}
    s_mov_b32 s46, 0""")
    print('group 1:', n1)
    stamp(k, 6)
    nA = min(OPT.get('nA', 12), len(rest)); nB = min(OPT.get('nB', 48), len(rest) - nA)
    n2 = 48 - len(rest) + nA
    for t in rest[:nA]: k(t)
    rest = [t.replace(RC, WSR) for t in rest]
    stamp(k, 6, 'b')
    k(f'v_mov_b32 v250, 0\n v_mov_b32 v251, 1\n s_cmp_lg_u32 {WAVE}, 0\n s_cbranch_scc1 L_b2o')
    st = k.state()
    k(f's_mov_b64 exec, 1\n s_waitcnt vmcnt({nA})'); stamp(k, 7, 'b'); k('s_barrier'); stamp(k, 8, 'b')
    k(f'buffer_atomic_add v251, v250, {WSR}, s74 offen sc0 sc1')
    k('s_barrier')
    stamp(k, 9, 'b'); arrive_check(k, 250, 's75', 51, 2); stamp(k, 10, 'b')
    if OPT.get('hold'): k('s_barrier')
    k('s_mov_b64 exec, -1\n s_branch L_b2m')
    k.restore(st); k.label('L_b2o')
    k(f's_waitcnt vmcnt({nA})'); stamp(k, 7, 'b'); k('s_barrier'); stamp(k, 8, 'b')
    k('s_barrier')
    if OPT.get('hold'): k('s_barrier')
    stamp(k, 9, 'b'); stamp(k, 10, 'b')
    k.label('L_b2m')
    k(f's_cmp_lg_u32 s30, 0\n s_cbranch_scc1 L_bok')
    st = k.state()
    k(f's_cmp_lg_u32 s38, 0\n s_cbranch_scc1 L_bok2')
    k.label('L_bchk')
    k(f"""buffer_load_dword v26, v23, {WSR}, 0 offen{LD}
    s_add_u32 s46, s46, 1
    s_waitcnt vmcnt(0)
    v_cmp_ne_u32 vcc, 1, v26
    s_cmp_gt_u32 s46, {SPIN}
    s_cbranch_scc1 L_bgo
    s_cbranch_vccnz L_bchk""")
    k.label('L_bgo')
    for t in wloads(WSR)[n1:n2]: k(t)
    k.label('L_bok2')
    for t in wloads(WSR)[:n1]: k(t)
    k.restore(st)
    k.label('L_bok')
    for t in rest[nA:nA+nB]: k(t)
    if OPT.get('retouch'):
        def rt():
            k('s_lshr_b32 s44, s2, 3\n s_lshl_b32 s44, s44, 10\n v_lshl_add_u32 v252, v3, 6, s44')
            k.raw('    v_min_u32 v252, L_notz-L_b2x-4, v252\n    s_sub_u32 s44, s42, tables-L_b2x\n    s_subb_u32 s45, s43, 0'); k.pos += 3
            k('v_mov_b32 v253, s45\n v_add_co_u32 v252, vcc, s44, v252\n v_addc_co_u32 v253, vcc, 0, v253, vcc\n s_mov_b64 exec, 0xffff\n global_load_dword v254, v[252:253], off')
        only_wave(k, 2, rt)
    only_wave(k, 0, lambda: poll(k, 250, 2))
    global late_w
    late_w = rest[nA+nB:]
    def hw():
        k('v_bfe_u32 v16, v1, 2, 1\n v_lshlrev_b32 v16, 9, v16\n v_bfe_u32 v17, v1, 3, 1\n v_lshl_add_u32 v16, v17, 4, v16\n v_and_b32 v17, 3, v1\n v_lshl_add_u32 v16, v17, 2, v16')
        for j in range(8): k(f'buffer_load_dword v{MUV+j}, v16, {WSR}, s61 offen offset:{128*((j^3)>>1)+32*((j^3)&1)}{LD}')
    global hw_means, st3
    hw_means = hw
    k(f's_cmp_eq_u32 {WAVE}, 3\n s_cbranch_scc1 L_p3h')
    st3 = k.state()
    if OPT.get('isl'):
        k(f's_mov_b64 exec, 0\n s_cmp_eq_u32 {WAVE}, 1\n s_cbranch_scc1 L_isl0_0\n s_branch L_isl0_{OPT.get("islmid", 32)}')
        k.label('L_islret0'); k('s_mov_b64 exec, -1')
    k.label('L_b2x')

ACT, ACC, TM, STV, MUV = 32, 64, 128, 16, 24
def cost(t):
    m = t.split()[0]
    if m.startswith('buffer'): return 18 + 4 * t.count('\n')
    if m.startswith(('v_exp', 'v_rcp', 'v_rsq', 'v_permlane', 'ds_write')): return 8
    return 4 * (t.count('\n') + 1)

def p3_body(k, hw):
    acc = lambda p, n, m, par=0: ACC + 32*(p & 1) + 8*(n + (par if n == 2 and hw else 0)) + 4*m
    GR = 28 if not hw else TM + 12
    dma_pos = []
    def dma(j):
        return f'buffer_load_dwordx4 v5, {WSR}, m0 offen offset:{1024*(j&3)}{LD} lds'
    def m0step(j): return [f's_add_u32 m0, m0, {8192 + (32768 if j == 15 else 0)}'] if j & 3 == 3 and j < 31 else []
    def slot(g, m): return ACT + 8*(g & 3) + 4*m
    def reads(g):
        p, ka = divmod(g, 16); o = []
        if p and ka == 0:
            x = (p ^ (p-1)) << 15
            o = [f'v_xor_b32 v6, {x:#x}, v6', f'v_xor_b32 v7, {x:#x}, v7']
        return o + [f'ds_read_b64_tr_b16 {V(slot(g,m)+2*h,2)}, v{6+m} offset:{2048*ka+1024*h}' for m in range(2) for h in range(2)]
    def chains(p, J):
        if p == 3:
            P = J[::2]
            o = [f'v_pk_mul_f32 {V(t,2)}, {V(g,2)}, {V(g,2)}' for g, u, t, c in P]
            o += [f'v_pk_fma_f32 {V(t,2)}, {V(t,2)}, {V(c,2)}, {V(c,2)} op_sel:[0,1,0] op_sel_hi:[1,1,0]' for g, u, t, c in P]
            o += [f'v_pk_mul_f32 {V(t,2)}, {V(t,2)}, {V(g,2)}' for g, u, t, c in P]
            o += [f'v_exp_f32 v{t}, v{t}' for g, u, t, c in J]
            o += [f'v_pk_mul_f32 {V(g,2)}, {V(g,2)}, {V(u,2)}' for g, u, t, c in P]
            o += [f'v_pk_fma_f32 {V(t,2)}, {V(t,2)}, {V(c+2,2)}, {V(c+2,2)} op_sel_hi:[1,0,0]' for g, u, t, c in P]
            o += [f'v_rcp_f32 v{t}, v{t}' for g, u, t, c in J]
            o += [f'v_pk_mul_f32 {V(g,2)}, {V(g,2)}, {V(t,2)}' for g, u, t, c in P]
            return o
        o = [f'v_mul_f32 v{t}, v{g}, v{g}' for g, u, t, c in J]
        o += [f'v_mul_f32 v{u}, v{g}, v{u}' for g, u, t, c in J]
        o += [f'v_fma_f32 v{t}, v{t}, v{c+1}, v{c}' for g, u, t, c in J]
        o += [f'v_mul_f32 v{t}, v{t}, v{g}' for g, u, t, c in J]
        o += [f'v_exp_f32 v{t}, v{t}' for g, u, t, c in J]
        o += [f'v_fma_f32 v{t}, v{t}, v{c+2}, v{c+2}' for g, u, t, c in J]
        o += [f'v_rcp_f32 v{t}, v{t}' for g, u, t, c in J]
        o += [f'v_mul_f32 v{g}, v{u}, v{t}' for g, u, t, c in J]
        return o
    def epilogue(p):
        HA, HX = TM + 8, TM + 12
        J = [(acc(p, 0, m)+r, acc(p, 1, m)+r, TM+4*m+r, STV+4*m) for m in range(2) for r in range(4)]
        o = []
        if not hw: o += [f'v_permlane32_swap_b32 v{acc(p,2,0)+r}, v{acc(p,2,1)+r}' for r in range(4)]
        o += chains(p, J)
        o += [f'v_cvt_pk_bf16_f32 v{HA+2*m+h}, v{acc(p,0,m)+2*h}, v{acc(p,0,m)+2*h+1}' for h in range(2) for m in range(2)]
        tail = [f'v_permlane16_swap_b32 v{HA}, v{HA+2}', f'v_permlane16_swap_b32 v{HA+1}, v{HA+3}',
                f'buffer_store_dwordx4 {V(HA,4)}, v12, {RB}, s{55+p} offen{ST}']
        if not hw:
            x = chains(p, [(acc(p, 2, 0)+r, acc(p, 2, 1)+r, TM+r, STV+8) for r in range(4)])
            o += x[:2] + tail + x[2:]
            o += [f'v_cvt_pk_bf16_f32 v{HX+2*(p&1)+h}, v{acc(p,2,0)+2*h}, v{acc(p,2,0)+2*h+1}' for h in range(2)]
            if p & 1: o += [f'v_permlane16_swap_b32 v{HX}, v{HX+2}', f'v_permlane16_swap_b32 v{HX+1}, v{HX+3}',
                            f'buffer_store_dwordx4 {V(HX,4)}, v13, {RB}, s{55+p} offen{ST}']
        else:
            for m in range(2):
                e, od = acc(p, 2, m), acc(p, 2, m, 1); t = TM
                o += [f'v_add_f32 v{e+r}, v{e+r}, v{MUV+2*p+m}' for r in range(4)]
                if m == 0: o += tail
                for r in range(4): o += [f'v_add_f32 v{t+r}, v{e+r}, v{od+r}', f'v_sub_f32 v{t+4+r}, v{e+r}, v{od+r}']
                P0, P1 = acc(p, 2, 0), acc(p, 2, 0, 1)
                o += [f'v_cvt_pk_bf16_f32 v{P0+2*m}, v{t}, v{t+1}', f'v_cvt_pk_bf16_f32 v{P0+2*m+1}, v{t+2}, v{t+3}',
                      f'v_cvt_pk_bf16_f32 v{P1+2-2*m}, v{t+7}, v{t+6}', f'v_cvt_pk_bf16_f32 v{P1+3-2*m}, v{t+5}, v{t+4}']
            off = 512*(p ^ 1)
            o += [f'v_permlane16_swap_b32 v{P0}, v{P0+2}', f'v_permlane16_swap_b32 v{P0+1}, v{P0+3}',
                  f'buffer_store_dwordx4 {V(P0,4)}, v13, {WSR}, s59 offen offset:{off}{ST}',
                  f'v_permlane16_swap_b32 v{P1+2}, v{P1}', f'v_permlane16_swap_b32 v{P1+3}, v{P1+1}',
                  f'buffer_store_dwordx4 {V(P1,4)}, v14, {WSR}, s60 offen offset:{off}{ST}']
        return o
    def stats(p):
        K0 = -2*math.sqrt(2/math.pi)*math.log2(math.e); b = GR
        return [f'v_cndmask_b32 v{b}, v{b}, v{b+1}, s[64:65]', f'v_cndmask_b32 v{b}, v{b}, v{b+2}, s[66:67]', f'v_cndmask_b32 v{b}, v{b}, v{b+3}, s[68:69]',
                f'v_mov_b32 v{b+2}, {fbits(1e-5)}', f'v_fmac_f32 v{b+2}, {fbits(1/512)}, v{b}', f'v_rsq_f32 v{b+3}, v{b+2}',
                f'v_mul_f32 v{b}, {fbits(K0)}, v{b+3}', f'v_mul_f32 v{b+3}, v{b+3}, v{b+3}', f'v_mul_f32 v{b+1}, {fbits(0.044715)}, v{b}', f'v_mul_f32 v{b+1}, v{b+1}, v{b+3}',
                f'ds_write_b128 v9, {V(b,4)} offset:{512*p}']
    def getstats(p):
        R = [(10, STV), (8, STV+4)] + ([] if hw else [(11, STV+8)])
        o = [f'v_xor_b32 v{a}, 0x200, v{a}' for a, _ in R] if p else []
        return o + [f'ds_read_b128 {V(d,4)}, v{a} offset:{1024*(p>>1)}' for a, d in R]
    def issue_dma(j): k(dma(j)); dma_pos.append(k.nvm)
    if hw:
        hw_means()
        if OPT.get('isl'):
            k('s_mov_b64 exec, 0\n s_branch L_isl1_0'); k.label('L_islret1'); k('s_mov_b64 exec, -1')
    k('s_barrier')
    stamp(k, 7); stamp(k, 11, 'b')
    def island(g):
        G = OPT.get('isl')
        if not G or g % G: return
        mid = OPT.get('islmid', 32)
        k.label(f'L_isl{int(hw)}_{g}')
        k(f's_cbranch_execz L_isl{int(hw)}_{g+G}' if g + G < 64 and (hw or g + G != mid) else (f's_cbranch_execz L_islret{int(hw)}' if g + G >= 64 else f's_cbranch_execz L_islret0'))
    DP = OPT.get('dpre', 16)
    for j in range(DP):
        issue_dma(j)
        for t in m0step(j): k(t)
    if hw: k('v_and_b32 v13, 0x1f0, v4\n v_xor_b32 v13, 0x100, v13\n v_lshrrev_b32 v14, 5, v1\n v_lshl_add_u32 v13, v14, 15, v13\n v_xor_b32 v14, 0x8000, v13')
    p4_ids(k)
    k(f"""s_mov_b32 s51, 0
    s_lshl_b32 s45, s45, 2
    s_add_u32 s45, s45, {WAVE}
    s_mul_i32 s45, s45, {WDS}
    s_add_u32 s45, s45, {WD}
    v_add_u32 v15, s45, v4
    s_lshr_b32 s46, s44, 1
    s_lshl_b32 s45, s46, 11
    s_add_u32 s62, s45, {RBF}
    s_add_u32 s63, s62, 0x8000
    s_lshl_b32 s46, s46, 2
    s_and_b32 s44, s44, 1
    s_add_u32 s73, s46, s44
    s_lshl_b32 s46, s73, 10
    s_mul_i32 s47, {WAVE}, {HFS}
    s_add_u32 s46, s46, s47
    s_add_u32 s74, s46, {HF}
    s_mov_b32 s75, 0""")
    def landed(j): k(f's_waitcnt vmcnt({min(63, k.nvm - dma_pos[j])})'); k('s_barrier')
    landed(3)
    stamp(k, 8)
    rd_pos = {}
    def do_reads(g):
        for t in reads(g): k(t)
        rd_pos[g] = k.nlg
    do_reads(0); do_reads(1)
    NWD = OPT.get('wdin', 22)
    memq = [('dma', j) for j in range(DP, 16)]
    lw = list(late_w)
    memq += lw + [('dma', j) for j in range(16, 32)]
    after = []
    nfast = len(memq)
    wl = [t for u in range(0, NWD, 2) for t in wd_loads(u)]
    wdq = [wl[i] + ('\n' + wl[i+1] if i % 5 == 3 else '') for i in range(len(wl)) if i % 5 != 4]
    W1 = OPT.get('wdend', 57)
    st_pos = None
    wrate = min(1.0, len(wdq) / (W1 - nfast / OPT.get('mrate', 1)))
    eq = [hload(0, u, RC) for u in range(22)]
    ismem = lambda t: isinstance(t, tuple) or t.startswith(('ds_', 'buffer'))
    vcost = lambda t: 8 if t.startswith(('v_exp', 'v_rcp', 'v_rsq', 'v_permlane')) else 4 * (t.count('\n') + 1)
    hcost = lambda t: 4 if (t[0] == 'rd' if isinstance(t, tuple) else t.startswith('ds_read')) else 8
    salu = []
    def emit_mem(f):
        nonlocal stat_pos
        if isinstance(f, tuple):
            if f[0] == 'dma':
                while salu: k(salu.pop(0))
                issue_dma(f[1]); salu.extend(m0step(f[1]))
            else: k(f[1]); rd_pos[f[2]] = k.nlg
        else:
            t = f.split('\n')
            if t[0].startswith('buffer_load_dwordx4'):
                while salu: k(salu.pop(0))
            k(t[0]); salu.extend(x.strip() for x in t[1:])
            if f.startswith('ds_write'): stat_pos = k.nlg
    stat_pos = None
    k.wait(lg=k.nlg - rd_pos[0])
    for p in range(4):
        pre = stats(p-1) if p & 1 else []
        bg = (epilogue(p-1) + (getstats(p) if p & 1 else [])) if p else []
        nind = (16 if hw else 20) if p & 1 else 0
        SB = OPT.get('sb', 3)
        nbg = len(bg)
        k1 = OPT.get('e1end', 12) if p == 2 else 16
        tot = sum(vcost(t) for t in bg); done = 0
        val = []
        for ka in range(16):
            g = 16*p + ka
            if OPT.get('gst') and g in OPT['gst']: stamp(k, 1 + OPT['gst'].index(g), True)
            sync = None
            if p & 1 and ka == SB: sync = 'stat'
            if p == 0 and ka in (2, 6, 10): sync = ka + 5
            if p == 1 and ka == 13 and not OPT.get('mergeland'): sync = 31
            rds = []
            if g + 2 < 64:
                for t in reads(g + 2):
                    if t.startswith('ds_'): rds.append(('rd', t, g + 2))
            if g + 3 < 64 and (g + 3) % 16 == 0: late_x = [t for t in reads(g + 3) if not t.startswith('ds_')]
            else: late_x = []
            mem = []
            if memq:
                mr = OPT.get('mrate', 1); n = int((g + 1) * mr) - int(g * mr); n = OPT.get('mfirst', n) if len(dma_pos) < 16 else n; mem = memq[:n]; memq = memq[n:]
            elif wdq and not (p & 1 and ka == SB):
                left = W1 - g
                n = (len(wdq) + left - 1) // left if len(wdq) >= left else int((g + 1) * wrate) - int(g * wrate)
                mem = wdq[:n]; wdq = wdq[n:]
            if ka <= 1 and pre:
                n = 6 if ka == 0 else len(pre); val += pre[:n]; pre = pre[n:]
            o1 = 1 if p & 1 else 0
            budget = tot * (ka + 1 - o1) / (k1 - o1)
            if p & 1 and ka <= 1: budget = -1
            if p & 1 and ka == SB: rds = rds + [t for t in getstats(p-1) if t.startswith('ds_')]
            if p & 1 and ka == 1: val += [t for t in getstats(p-1) if not t.startswith('ds_')]
            while bg and (done + vcost(bg[0])/2 <= budget or ka == k1 - 1) and not (p & 1 and ka <= SB and nbg - len(bg) >= nind):
                done += vcost(bg[0]); val.append(bg.pop(0))
            if g == 48 + OPT.get('esamp', 8) - 1: val += ['v_lshlrev_b32 v5, 7, v3', 'v_lshl_add_u32 v5, v2, 28, v5', 'v_min_u32 v0, 1, v2', 'v_xor_b32 v0, 1, v0', 'v_add_u32 v3, s74, v4']
            if g == 48 + OPT.get('esamp', 8): mem = [f'buffer_load_dword v9, v5, {WSR}, s62 offen{LD}'] + mem
            if g == 48 + OPT.get('echk', 11): val += [f'v_cmp_ne_u32 vcc, v0, v9\n s_cmp_eq_u64 vcc, 0\n s_cselect_b32 s38, s34, 0']
            if g > 48 + OPT.get('echk', 11):
                er = OPT.get('erate', 1); mem = mem + eq[:er]; eq = eq[er:]
            mf = []
            for m in range(2):
                b_ = V(slot(g, m), 4)
                for n in range(3):
                    d = V(acc(p, n, m, ka & 1), 4)
                    first = ka == 0 or (n == 2 and ka == 1 and hw)
                    mf.append(f'v_mfma_f32_16x16x32_bf16 {d}, {A(12*ka+4*n,4)}, {b_}, {"0" if first else d}')
            mf = [mf[i] for i in (0, 3, 4, 1, 2, 5)]
            if p % 2 == 0: mf.insert(0, f'v_mfma_f32_16x16x32_bf16 {V(GR,4)}, {V(slot(g,0),4)}, {V(slot(g,0),4)}, {"0" if ka==0 else V(GR,4)}')
            heads = list(rds)
            for i, t in enumerate(mem): heads.insert(min(len(heads), 2 + 2*i + (1 if len(mem) == 1 else 0)), t)
            N = len(mf)
            ftot = sum(map(hcost, heads)) + sum(hcost(t) if ismem(t) else vcost(t) for t in val) + 4*len(late_x); fd = 0
            flush_val = ka == 15 or (p == 2 and ka == k1 - 1) or (p & 1 and ka == 1) or g - 48 in (OPT.get('esamp', 8) - 1, OPT.get('echk', 11))
            for i, t in enumerate(mf):
                k(t)
                last = i == N - 1
                if i == 0 and sync is not None:
                    if sync == 'stat':
                        assert not pre and not any(x.startswith('ds_write') for x in val)
                        k.wait(lg=k.nlg - stat_pos)
                        if p == 3 or OPT.get('mergeland'): k(f's_waitcnt vmcnt({min(63, k.nvm - (st_pos if p == 3 else dma_pos[31]))})')
                        k('s_barrier')
                        if p == 3 and hw: k(f'v_mov_b32 v{MUV}, 0\n v_mov_b32 v{MUV+1}, 1\n s_mov_b64 exec, 1\n buffer_store_dword v{MUV+1}, v{MUV}, {WSR}, s41 offen{ST}\n s_mov_b64 exec, -1')
                    else: landed(sync)
                if i == 1: island(g)
                nh = 0
                nxt = val[0] if val and ismem(val[0]) else (heads[0] if heads else None)
                if last and g + 1 < 64: k.wait(lg=k.nlg - rd_pos[g + 1])
                elif salu and (nxt is None or hcost(nxt) == 4) and not (i == 1 and OPT.get('isl')): k(salu.pop(0))
                while True:
                    if val and ismem(val[0]) and nh == 0: f = val.pop(0)
                    elif heads and (nh == 0 or len(heads) > N - 1 - i): f = heads.pop(0)
                    else: break
                    emit_mem(f); fd += hcost(f); nh += 1
                if last:
                    for x in late_x: k(x)
                while val and ((not ismem(val[0]) and fd + vcost(val[0])/2 <= ftot * (i+1) / N + 1e-6) or (last and flush_val)):
                    f = val.pop(0)
                    if ismem(f): emit_mem(f); fd += hcost(f)
                    else: k(f); fd += vcost(f)
            assert not heads
            if p == 2 and ka == k1 - 1: st_pos = k.nvm
        assert not bg and not val
        if p == 0: stamp(k, 9)
        if OPT.get('pst'): stamp(k, 1+p, True)
    while salu: k(salu.pop(0))
    assert not wdq
    stamp(k, 10)
    ep = epilogue(3); ne = OPT.get('eepi', 0); gap = 5
    for i, t in enumerate(ep):
        k(t)
        if i % gap == gap - 1 and ne > 0: k(eq.pop(0)); ne -= 1
    assert ne == 0
    if OPT.get('echk') > 15: k(f'v_cmp_ne_u32 vcc, v0, v9\n s_cmp_eq_u64 vcc, 0\n s_cselect_b32 s38, s34, 0')
    if OPT.get('pst'): stamp(k, 5, True)
    return 22 - len(eq)

def hload(hf, u, R):
    return f'buffer_load_dwordx4 {A(88*hf+4*u,4)}, v3, {R}, s75 offen offset:{2048*hf}{LD}\n ' + (f's_add_u32 s75, s75, {4*HFS if not OPT.get("hsame") else 0}' if u < 21 else 's_mov_b32 s75, 0')

def redo(k, soff, hf, n, again=None, pre=None):
    uid[0] += 1; u = uid[0]
    k(f's_cmp_lg_u32 s38, 0\n s_cbranch_scc1 L_sd{u}')
    st = k.state()
    k('s_mov_b32 s46, 0')
    if pre: k(f'v_cmp_ne_u32 vcc, v0, v{pre}\n s_cbranch_vccz L_sg{u}')
    k.label(f'L_sp{u}')
    k(f"""buffer_load_dword v6, v5, {WSR}, {soff} offen{LD}
    s_add_u32 s46, s46, 1
    s_waitcnt vmcnt(0)
    v_cmp_ne_u32 vcc, v0, v6
    s_cmp_gt_u32 s46, {SPIN}
    s_cbranch_scc1 L_sg{u}
    s_cbranch_vccnz L_sp{u}""")
    k.label(f'L_sg{u}')
    k('s_mov_b32 s75, 0')
    for j in range(n): k(hload(hf, j, RB))
    if again: again()
    k.restore(st)
    k.vm = [set()] * 8 + [{('a', 88*hf+4*j+r) for r in range(4)} for j in range(n)]
    k.label(f'L_sd{u}')

def spin(k, reg, soff):
    uid[0] += 1; u = uid[0]
    k(f'v_cmp_ne_u32 vcc, v0, v{reg}\n s_mov_b32 s46, 0\n s_cbranch_vccz L_sd{u}')
    st = k.state()
    k.label(f'L_sp{u}')
    k(f"""buffer_load_dword v{reg}, v5, {WSR}, {soff} offen{LD}
    s_add_u32 s46, s46, 1
    s_waitcnt vmcnt(0)
    v_cmp_ne_u32 vcc, v0, v{reg}
    s_cmp_gt_u32 s46, {SPIN}
    s_cbranch_scc1 L_sd{u}
    s_cbranch_vccnz L_sp{u}""")
    k.restore(st)
    k.label(f'L_sd{u}')

QS, INS, PS = 1152, 4736, 9472
def p4(k, n0, nst):
    HR, RD, SUM = 32, 40, 128
    PRE = OPT.get('p4pre', 14)
    EP = OPT.get('epost', 6)
    k.vm = [{('a', 4*j+r) for r in range(4)} for j in range(n0)] + [set()] * nst
    if OPT.get('sbar'): k('s_barrier')
    el = [hload(0, j, RC) for j in range(n0, n0 + EP)]
    if not OPT.get('mix'):
        for t in el: k(t)
        el = []
    U0 = n0 if not OPT.get('nopre') else 0
    n0 += EP
    setup = f"""s_mov_b32 s28, s18
    s_and_b32 s29, s19, 0xffff
    s_mov_b32 s30, {S*D*2}
    s_lshr_b32 s65, s2, 5
    v_lshrrev_b32 v16, 3, v1
    v_bfe_u32 v17, v1, 1, 2
    s_lshl_b32 s46, s65, 2
    v_add_u32 v17, s46, v17            ; 16-column block
    v_sub_u32 v18, 31, v17
    v_min_u32 v18, v17, v18
    v_lshlrev_b32 v18, 17, v18
    v_lshrrev_b32 v17, 4, v17
    v_lshl_add_u32 v18, v17, 16, v18
    v_lshl_add_u32 v18, v16, 4, v18
    v_and_b32 v17, 1, v1
    v_lshl_add_u32 v8, v17, 15, v18    ; residual
    s_lshl_b32 s66, s73, 9
    s_lshl_b32 s46, {WAVE}, 7
    s_add_u32 s66, s66, s46
    s_add_u32 s66, s66, {HRES}
    v_mov_b32 v20, 0
    v_mov_b32 v21, 1
    s_add_u32 s41, s41, 0x8000
    s_lshr_b32 s46, s73, 2
    s_lshl_b32 s46, s46, 17
    s_and_b32 s44, s73, 3
    s_lshl_b32 s44, s44, 2
    s_add_u32 s44, s44, {WAVE}
    s_lshl_b32 s44, s44, 10
    s_add_u32 s67, s46, s44
    s_lshl_b32 s45, s65, 7
    s_add_u32 s67, s67, s45
    s_add_u32 s68, s67, 0x2000
    v_and_b32 v9, 7, v1
    v_lshlrev_b32 v9, 4, v9
    v_and_b32 v18, 3, v16
    v_lshl_add_u32 v9, v18, 15, v9
    v_lshrrev_b32 v18, 2, v16
    v_lshl_add_u32 v9, v18, 14, v9     ; output
    v_lshrrev_b32 v18, 5, v1
    v_lshl_add_u32 v10, v18, 6, v4
    s_mul_i32 s44, {WAVE}, {PS}
    v_add_u32 v10, s44, v10            ; partial sums, write
    v_bfe_u32 v18, v1, 2, 1
    v_mul_u32_u24 v11, {INS}, v18
    v_bfe_u32 v18, v1, 1, 1
    v_mul_u32_u24 v18, 576, v18
    v_add_u32 v11, v11, v18
    v_lshl_add_u32 v11, v16, 4, v11
    v_lshl_add_u32 v11, v17, 3, v11
    s_lshl_b32 s44, {WAVE}, 7
    v_add_u32 v11, s44, v11            ; partial sums, read
    v_add_u32 v12, {4*PS}, v11""".split('\n')
    def resid(hf): k(f'buffer_load_dwordx4 {V(HR+4*hf,4)}, v8, {WSR}, s66 offen offset:{1024*hf}{LD}')
    def mf(hf, u, i):
        d = V(ACC+32*hf+16*i, 16)
        return f'v_mfma_f32_32x32x16_bf16 {d}, {wd_reg(u, i)}, {A(88*hf+4*u,4)}, {"0" if u==0 else d}'
    def mm(hf, issued, hook):
        q = []
        for j in range(22):
            if hf == 0 and j >= OPT.get('wdin', 22) and j % 2 == 0:
                w = wd_loads(j); q += [lambda t=t: k(t) for t in w[:3] + [w[3] + '\n' + w[4]]]
            if j >= issued: q.append(lambda j=j: k(hload(hf, j, RB)))
        if not OPT.get('nores'): q.append(lambda: resid(hf))
        TL = OPT.get('tl', 0) if hf == 1 else 0
        for u in range(U0 if hf == 0 else 0, 22 - TL):
            for i in range(2):
                k(mf(hf, u, i))
                if q and (i == 0 or len(q) > 22 - u - OPT.get('lead', 8)): q.pop(0)()
                hook(u, i)
    def red_write(hf):
        o = [f'ds_write_b128 v10, {V(ACC+32*hf+16*i+4*q,4)} offset:{4*PS*hf+INS*i+QS*q}' for i in range(2) for q in range(4)]
        for j in range(4):
            o += [f'v_lshlrev_b32 v{SUM+4*(j&1)+(j>>1)}, 16, v{HR+4*hf+j}', f'v_and_b32 v{SUM+4*(j&1)+2+(j>>1)}, 0xffff0000, v{HR+4*hf+j}']
        return o
    def red_read(hf, pk=True):
        R = lambda w, q: (RD + 8*w + 2*q) if w < 3 else SUM + 8 + 2*q
        o = [f'ds_read_b64 {V(R(w,q),2)}, v{11+hf} offset:{PS*w+QS*q}' for w in range(4) for q in range(4)]
        if pk: o += [f'v_pk_add_f32 {V(SUM+2*q,2)}, {V(SUM+2*q,2)}, {V(R(w,q),2)}' for w in range(4) for q in range(4)]
        else: o += [f'v_add_f32 v{SUM+2*q+h}, v{SUM+2*q+h}, v{R(w,q)+h}' for w in range(4) for q in range(4) for h in range(2)]
        o += [f'v_cvt_pk_bf16_f32 v{HR+4*hf+j}, v{SUM+4*(j&1)+(j>>1)}, v{SUM+4*(j&1)+2+(j>>1)}' for j in range(4)]
        return o + [f'buffer_store_dwordx4 {V(HR+4*hf,4)}, v9, {RA}, s{67+hf} offen{OPT.get("ost", "")}']
    pre = [mf(0, u, i) for u in range(U0) for i in range(2)]
    for t in pre:
        k(t)
        for x in setup[:5]: k(x)
        setup = setup[5:]
    while setup or el:
        if el: k(el.pop(0))
        for x in setup[:4]: k(x)
        setup = setup[4:]
    k(f's_waitcnt vmcnt({EP})'); k('s_barrier')
    only_wave(k, 0, lambda: k(f's_mov_b64 exec, 1\n buffer_store_dword v21, v20, {WSR}, s41 offen{ST}'))
    stamp(k, 11)
    redo(k, 's62', 0, n0, lambda: [k(t) for t in pre])
    if OPT.get('p4st'): stamp(k, 1, True)
    LP, LC = OPT.get('lpoll', 11), OPT.get('lchk', 15)
    nl = [0]
    def hook0(u, i):
        if u == LP and i == 1 and not OPT.get('nochk'): k(f'buffer_load_dword v6, v5, {WSR}, s63 offen{LD}')
        if u == LC and i == 0: k('v_cmp_ne_u32 vcc, v0, v6\n s_cmp_eq_u64 vcc, 0\n s_cselect_b32 s38, s34, 0' if not OPT.get('nochk') else 's_mov_b32 s38, s34')
        if u == OPT.get('lp2', -1) and i == 0: k(f'buffer_load_dword v7, v5, {WSR}, s63 offen{LD}')
        if (u, i) > (LC, 0) and (i == 1 or OPT.get('lrate2')): k(hload(1, nl[0], RC)); nl[0] += 1
    mm(0, n0, hook0)
    if OPT.get('p4st'): stamp(k, 2, True)
    for j, t in enumerate(red_write(0)):
        k(t)
        if j < OPT.get('lmid', 5): k(hload(1, nl[0], RC)); nl[0] += 1
    if OPT.get('p4st'): stamp(k, 3, True)
    redo(k, 's63', 1, nl[0], pre=7 if OPT.get('lp2') else None)
    if OPT.get('p4st'): stamp(k, 4, True)
    rr = red_read(0, False)
    def hook1(u, i):
        if u == 1 and i == 1: k.wait(lg=0); k('s_barrier')
        if u >= 2:
            for _ in range(4 if i else 2):
                if rr: k(rr.pop(0))
    mm(1, nl[0], hook1)
    assert not rr
    if OPT.get('p4st'): stamp(k, 5, True)
    TL = OPT.get('tl', 0); rw = red_write(1)
    for u in range(22 - TL, 22): k(mf(1, u, 0))
    for j, u in enumerate(range(22 - TL, 22)):
        k(mf(1, u, 1))
        if j == 0:
            for t in rw[8:]: k(t)
            rw = rw[:8]
        elif len(rw) > 4 and j >= 2: k(rw.pop(0))
    for t in rw: k(t)
    k.wait(lg=0); k('s_barrier')
    for t in red_read(1): k(t)

DOC = """;
;   phase 1  rows: LN1 statistics + Z = LN1(x) C (two MFMA steps, 32 x 16);  weights: W' = C^T [Wgate|Wup];
; Hand-offs: write-through (sc1) stores, vmcnt wait, workgroup barrier, then a counter / flag; consumers use sc1 loads.
"""
def fused():
    k = K()
    prologue(k)
    if OPT.get('prio'): only_wave(k, 0, lambda: k('s_setprio 3'))
    k(f's_cmp_ge_u32 s2, {NZ}\n s_cbranch_scc1 L_notz')
    st0 = k.state()
    p1_z(k)
    k.label('L_join1')
    k.vm = [set()] * 40; k.lg = []
    setup(k)
    stamp(k, 3)
    negs = lambda: [p2_negs(k, b) for b in (B1, A2, B3, A4)]
    def ztab():
        if OPT.get('ztpre'): return
        uid[0] += 1; u = uid[0]
        k((f's_cmp_ge_u32 s2, {NZ}' if OPT.get('ttpre') else 's_cmp_lg_u32 s71, 0') + f'\n s_cbranch_scc1 L_zt{u}')
        st_ = k.state()
        for t in ztl: k(t)
        k.restore(st_); k.label(f'L_zt{u}')
    stamp(k, 8, 'z')
    k(f's_cmp_lg_u32 {WAVE}, 0\n s_cbranch_scc1 L_b1o')
    st = k.state()
    k('s_mov_b64 exec, 1\n s_mov_b32 s46, 0\n s_waitcnt vmcnt(0)')
    k.label('L_go')
    k(f"""v_cmp_ne_u32 vcc, 0, v254
    s_add_u32 s46, s46, 1
    s_cbranch_vccnz L_gone
    global_load_dword v254, v250, s[20:21]{LD}
    s_waitcnt vmcnt(0)
    s_cmp_lt_u32 s46, {SPIN}
    s_cbranch_scc1 L_go""")
    k.restore(st); k.vm = []
    k.label('L_gone')
    stamp(k, 9, 'z')
    k('s_barrier')
    k(f's_cmp_eq_u32 s71, 0\n s_cbranch_scc1 L_b1a\n buffer_store_dword v251, v250, {WSR}, s71 offen{ST}\n s_mov_b64 exec, -1\n s_branch L_b1n')
    k.label('L_b1a')
    k(f'buffer_atomic_add v251, v250, {WSR}, s74 offen sc0 sc1\n s_mov_b64 exec, -1')
    stamp(k, 10, 'z')
    setup_late(k); arrive_check(k, 250, 's75', 19, 1)
    k('s_mov_b64 exec, -1'); ztab()
    k('s_mov_b64 exec, -1\n s_branch L_b1m')
    k.restore(st); k.label('L_b1o')
    k('s_waitcnt vmcnt(0)')
    stamp(k, 9, 'z')
    k('s_barrier')
    k.label('L_b1n')
    stamp(k, 10, 'z')
    if OPT.get('zfirst'): ztab()
    setup_late(k)
    if not OPT.get('zfirst'): ztab()
    k.label('L_b1m')
    k('s_waitcnt vmcnt(0)')
    negs()
    wd_finish(k)
    rbclear = lambda: k(f'v_lshlrev_b32 v252, 15, v1\n s_mov_b64 exec, 3\n buffer_store_dword v250, v252, {WSR}, s41 offen{ST}')
    k.label('L_b1q')
    only_wave(k, 1, rbclear)
    only_wave(k, 0, lambda: poll(k, 250, 1))
    k.label('L_b1x')
    k.vm = []
    k('s_barrier')
    stamp(k, 4)
    stamp(k, 11, 'z'); stamp(k, 1, 'b')
    barrier2(k, p2(k))
    n0 = p3_body(k, False)
    nst = 0
    nst = 2
    k.label('L_join3')
    k.fence()
    p4(k, n0, nst)
    stamp_out(k, 12)
    k.label('L_end'); k('s_endpgm')
    k.restore(st3); k.label('L_p3h'); assert p3_body(k, True) == n0
    assert not any(k.vm[-nst:]); k('s_branch L_join3')
    k.restore(st0); k.label('L_notz')
    p1_w(k)
    if OPT.get('slowjoin'): k('s_branch L_join1')
    else:
        stamp(k, 3)
        if OPT.get('slate'): twiddles(k); negs()
        k(f"""s_lshl_b32 s44, s74, 3
        s_add_u32 s44, s44, {FLG}
        v_and_b32 v252, 7, v1
        v_lshlrev_b32 v252, 8, v252
        v_mov_b32 v254, v254               ; the go word has been read before the flags are sampled
        buffer_load_dword v253, v252, {WSR}, s44 offen{LD}""")
        if not OPT.get('slate'): twiddles(k); negs()
        stamp(k, 8, 'z')
        k('s_waitcnt vmcnt(1)')
        def go1():
            k('s_mov_b32 s46, 0')
            k.label('L_go2')
            k(f"""v_cmp_ne_u32 vcc, 0, v254
            s_add_u32 s46, s46, 1
            s_cbranch_vccnz L_gone2
            global_load_dword v254, v250, s[20:21]{LD}
            s_waitcnt vmcnt(0)
            s_cmp_lt_u32 s46, {SPIN}
            s_cbranch_scc1 L_go2""")
            k.label('L_gone2')
        only_wave(k, 1, go1)
        stamp(k, 9, 'z')
        k('s_barrier')
        stamp(k, 10, 'z')
        only_wave(k, 1, lambda: k(f's_mov_b64 exec, 1\n buffer_store_dword v251, v250, {WSR}, s71 offen{ST}'))
        k(f's_cmp_lg_u32 {WAVE}, 0\n s_cbranch_scc1 L_b1q')
        k(f'v_min_u32 v253, v253, v254\n v_cmp_eq_u32 vcc, 0, v253\n s_cbranch_vccnz L_b1q')
        k('s_branch L_b1x')
    k.restore(st_c); k.label('L_p1c')
    k(f's_cmp_ge_u32 s2, {NI0}\n s_cbranch_scc1 L_p1i')
    st1 = k.state()
    p1_t(k); k('s_branch L_join1')
    k.restore(st1); k.label('L_p1i'); p1_i(k); k('s_branch L_join1')
    o = header()
    o += f'; @launch grid=(256,1,1) block=(256,1,1) lds={STATL+4096}\n'
    o += DOC
    o += '.amdgcn_target "amdgcn-amd-amdhsa--gfx950"\n.text\n' + k.text()
    o += tables_text() + 'L_image_end:\n'
    o += '.section .rodata,"a"\n.p2align 6\n' + kd(KN, k)
    return o

if __name__ == '__main__':
    out = sys.argv[1]
    for a in sys.argv[2:]:
        key, _, val = a.partition('=')
        OPT[key] = eval(val) if val else True
    open(out, 'w').write(fused())
```

```python
import sys, math, struct
import numpy as np
from dsl import K
from design import *
from gen import V, A, Sg, fbits, TBL, tables_text, header, kd, NAME, srd, cmul, TPAD

OPT = dict(stamps=False, gblate=True, tpost=True, every=48, mergeland=True, mrate=1.5, nopre=True, w0late=True, nA=6, c1=1, fpos=0, c2=1, prio=True, wgbfirst=False, wdshadow=True, wcont=True, nord=True, hold=True, esamp=8, e1end=13, echk=15, epost=8, wdend=62, lpoll=9, lchk=16, retouch=True, ntx=' nt', ntd=' nt', lp2=17, sbar=True, dpre=12, mfirst=2, zfirst=True, slate=True, zev=24, twe=True, th=True)
ST, LD = ' sc1', ' sc1'
WSR, RA, RB, RC = 's[24:27]', 's[28:31]', 's[32:35]', 's[36:39]'
WAVE = 's40'
KN = NAME + '_kernel'
SPIN = 400000
TW1, TW2 = 112, 128
B1, A4, A2, B3 = 144, 168, 192, 216
FA, GB = 200, 208
NZ, NC0, NI0 = 128, 216, 248
uid = [0]

def stamp(k, i, pm=False):
    if OPT.get('pst') and 1 <= i <= 5 and not pm: return
    if OPT.get('zdet') and 1 <= i <= 11 and pm != 'z': return
    if pm == 'z' and not OPT.get('zdet'): return
    if OPT.get('bdet') and 1 <= i <= 11 and pm != 'b': return
    if pm == 'b' and not OPT.get('bdet'): return
    if OPT['stamps']: k(f's_{"memtime" if OPT.get("pst") else "memrealtime"} s[{76+2*i}:{77+2*i}]')
def stamp_out(k, n):
    if not OPT['stamps']: return
    k.wait(vm=0, lg=0); stamp(k, n); n += 1; k.wait(lg=0)
    k(f's_lshl_b32 s44, s2, 8\n s_lshl_b32 s45, {WAVE}, 6\n s_add_u32 s44, s44, s45\n s_add_u32 s44, s44, {STAMP}')
    for i in range(16): k(f'v_mov_b32 v{8+i}, s{76+2*i}' if i < n else f'v_mov_b32 v{8+i}, 0')
    k('v_mov_b32 v24, 0\n s_mov_b64 exec, 1')
    for q in range(4): k(f'buffer_store_dwordx4 {V(8+4*q,4)}, v24, {WSR}, s44 offen offset:{16*q}')

def wsrd(k, base, end):
    k(f's_mov_b32 s{base}, s24\n s_mov_b32 s{base+1}, s25\n s_mov_b32 s{base+2}, {end}\n s_mov_b32 s{base+3}, 0x20000')

def tbl_addr(k, vp, soff):
    k(f"""s_add_u32 s46, s42, {soff}
    s_addc_u32 s47, s43, 0
    v_mov_b32 v{vp+1}, s47
    v_add_co_u32 v{vp}, vcc, s46, v4
    v_addc_co_u32 v{vp+1}, vcc, 0, v{vp+1}, vcc""")

def gb_loads(k):
    for q in range(8): k(f'global_load_dwordx4 {A(GB+4*q,4)}, v[8:9], off offset:{1024*q-4096}')

def prologue(k):
    k.raw(f'.globl {KN}\n.p2align 8\n.type {KN},@function\n{KN}:')
    stamp(k, 0)
    k(f"""s_load_dwordx16 s[4:19], s[0:1], 0
    s_load_dwordx4 s[20:23], s[0:1], 64
    s_getpc_b64 s[42:43]""")
    k.raw('L_pc:')
    k(f"""s_cmp_ge_u32 s2, 256
    s_cbranch_scc1 L_end
    v_lshrrev_b32 v5, 6, v0
    v_and_b32 v1, 63, v0
    v_readfirstlane_b32 {WAVE}, v5
    s_lshr_b32 s44, s2, 3
    v_lshl_add_u32 v5, v5, 5, s44
    v_lshlrev_b32 v6, {7 if OPT.get('pf128') else 6}, v1
    v_lshl_add_u32 v5, v5, {13 if OPT.get('pf128') else 12}, v6      ; one dword per line""")
    k.raw('    v_min_u32 v5, L_image_end-L_pc-4, v5'); k.pos += 1
    k(f"""v_mov_b32 v7, s43
    v_add_co_u32 v6, vcc, s42, v5
    v_addc_co_u32 v7, vcc, 0, v7, vcc
    global_load_dword v255, v[6:7], off
    v_bfe_u32 v2, v0, 4, 2
    v_and_b32 v3, 15, v0
    v_lshlrev_b32 v4, 4, v1""")
    k.raw('    s_add_u32 s42, s42, tables-L_pc\n    s_addc_u32 s43, s43, 0'); k.pos += 2
    k(f's_cmp_ge_u32 s2, {NC0}\n s_cbranch_scc1 L_p1c')
    global st_c
    st_c = k.state()
    tbl_addr(k, 6, TBL['FA'])
    for c in range(2): k(f'global_load_dwordx4 {A(FA+4*c,4)}, v[6:7], off offset:{1024*c}')
    k(f"""s_cmp_lt_u32 s2, {NZ}
    s_cselect_b32 s45, {TBL["GBZ"]+4096}, {TBL["GBW"]+4096}
    s_lshl_b32 s44, {WAVE}, 13
    s_add_u32 s44, s44, s45""".replace(str(TBL["GBW"]+4096), 's47').replace('s_cmp_lt', f's_mov_b32 s47, {TBL["GBW"]+4096}\n s_cmp_lt'))
    tbl_addr(k, 8, 's44')
    if not OPT.get('gblate'): gb_loads(k)

def go_load(k, b):
    k(f'v_mov_b32 v{b}, 0\n global_load_dword v{b+4}, v{b}, s[20:21]{LD}')
def arrive_issue(k, b, cnt, go):
    k(f'v_mov_b32 v{b}, 0\n v_mov_b32 v{b+1}, 1\n s_mov_b64 exec, 1')
    if go:
        uid[0] += 1; u = uid[0]
        k('s_mov_b32 s46, 0')
        k.label(f'L_go{u}')
        k(f"""s_waitcnt vmcnt(0)
        v_cmp_ne_u32 vcc, 0, v{b+4}
        s_add_u32 s46, s46, 1
        s_cbranch_vccnz L_gone{u}
        global_load_dword v{b+4}, v{b}, s[20:21]{LD}
        s_cmp_lt_u32 s46, {SPIN}
        s_cbranch_scc1 L_go{u}""")
        k.label(f'L_gone{u}')
    k(f'buffer_atomic_add v{b+1}, v{b}, {WSR}, {cnt} offen sc0 sc1')
def arrive_check(k, b, flg, last, val):
    uid[0] += 1; u = uid[0]
    k(f"""s_mov_b64 exec, 0xff
    v_lshlrev_b32 v{b+2}, 11, v1
    v_mov_b32 v{b}, {val}
    v_readfirstlane_b32 s47, v{b+1}
    s_cmp_lg_u32 s47, {last}
    s_cbranch_scc1 L_nl{u}""")
    st = k.state()
    k(f'buffer_store_dword v{b}, v{b+2}, {WSR}, {flg} offen{ST}')
    k.restore(st)
    k.label(f'L_nl{u}')
def poll(k, b, val):
    uid[0] += 1; u = uid[0]
    k(f"""s_mov_b64 exec, 0xff
    v_lshlrev_b32 v{b+3}, 8, v1
    s_and_b32 s44, s2, 7
    s_lshl_b32 s44, s44, 11
    s_add_u32 s44, s44, {FLG}
    s_mov_b32 s46, 0""")
    k.label(f'L_bp{u}')
    k(f"""buffer_load_dword v{b+1}, v{b+3}, {WSR}, s44 offen{LD}
    s_add_u32 s46, s46, 1
    s_waitcnt vmcnt(0)
    v_cmp_gt_u32 vcc, {val}, v{b+1}
    s_cmp_gt_u32 s46, {SPIN}
    s_cbranch_scc1 L_bd{u}
    s_cbranch_vccnz L_bp{u}""")
    k.label(f'L_bd{u}')
    k('s_mov_b64 exec, -1')
def only_wave(k, w, fn):
    uid[0] += 1; u = uid[0]
    k(f's_cmp_lg_u32 {WAVE}, {w}\n s_cbranch_scc1 L_ow{u}')
    st = k.state(); fn(); k('s_mov_b64 exec, -1'); k.restore(st); k.label(f'L_ow{u}')

def p2_tables(k, vp=26):
    k(f's_lshl_b32 s44, {WAVE}, 13\n s_add_u32 s44, s44, {TBL["P2W"]+4096}')
    tbl_addr(k, vp, 's44'); tbl_addr(k, vp+2, TBL['P2S']+4096)
    o = [f'global_load_dwordx4 {V(B1+6*u+2,4)}, {V(vp,2)}, off offset:{1024*u-4096}' for u in range(4)]
    o += [f'global_load_dwordx4 {V(A2+6*u+2,4)}, {V(vp+2,2)}, off offset:{1024*u-4096}' for u in range(4)]
    o += [f'global_load_dwordx4 {V(B3+6*u+2,4)}, {V(vp+2,2)}, off offset:{1024*u}' for u in range(4)]
    o += [f'global_load_dwordx4 {V(A4+6*u+2,4)}, {V(vp,2)}, off offset:{1024*u}' for u in range(4)]
    return o
def flush(k):
    sp, k.sprinkle = k.sprinkle, []
    for t in sp: k(t)

def gtouch(k, dst):
    k(f"""s_bitcmp1_b32 s2, 0
    s_cselect_b32 s36, s14, s12
    s_cselect_b32 s37, s15, s13
    s_and_b32 s37, s37, 0xffff
    s_mov_b32 s38, {D*F*2}
    s_lshr_b32 s44, s2, 3
    s_lshl_b32 s44, s44, 2
    s_add_u32 s44, s44, {WAVE}
    s_mul_i32 s44, s44, {8*2752}
    s_bfe_u32 s46, s2, 0x20001
    s_mul_i32 s46, s46, 704
    s_add_u32 s44, s44, s46
    v_and_b32 v15, 7, v1
    v_lshlrev_b32 v15, 7, v15
    v_min_u32 v15, 700, v15
    v_lshrrev_b32 v16, 3, v1
    v_mul_u32_u24 v16, 2752, v16
    v_add_u32 v15, v15, v16
    s_mov_b32 exec_lo, 0x7f7f7f7f
    s_mov_b32 exec_hi, 0x7f7f7f7f
    buffer_load_dword v{dst}, v15, {RC}, s44 offen
    s_mov_b64 exec, -1""")

def p1_z(k):
    X, DA, TR, SS, WL, WO = 32, 48, 80, 96, 104, 120
    k(f"""s_and_b32 s44, s2, 7
    s_lshr_b32 s45, s2, 4
    s_lshl_b32 s45, s45, 3
    s_add_u32 s44, s44, s45
    s_lshl_b32 s44, s44, 1
    s_bfe_u32 s45, s2, 0x10003
    s_add_u32 s60, s44, s45            ; (t,g,beta,bq)
    s_lshr_b32 s61, s60, 3
    s_lshl_b32 s61, s61, 7
    s_and_b32 s44, s60, 7
    s_lshl_b32 s44, s44, 2
    s_add_u32 s44, s44, s61
    s_add_u32 s44, s44, {WAVE}
    s_lshl_b32 s56, s44, 10
    s_add_u32 s57, s56, 0x8000
    s_add_u32 s58, s56, 0x10000
    s_add_u32 s59, s56, 0x18000
    s_mov_b32 s38, {S*D*2}
    s_mov_b32 s39, 0x20000
    s_bfe_u32 s48, s2, 0x20003
    s_and_b32 s44, s2, 7
    s_lshl_b32 s44, s44, 2
    s_add_u32 s48, s48, s44
    s_and_b32 s44, s2, 0x60
    s_add_u32 s48, s48, s44
    s_add_u32 s48, s48, 128""")
    wt_rows(k, 's48', 49)
    k(f's_mul_i32 s44, {WAVE}, {64*514}\n s_add_u32 s49, s49, s44')
    k.wait(lg=0)
    stamp(k, 1, 'z')
    k('s_mov_b32 s36, s4\n s_and_b32 s37, s5, 0xffff')
    for i in range(4): k(f'buffer_load_dwordx4 {V(X+4*i,4)}, v4, {RC}, s{56+i} offen{OPT.get("ntx", "")}')
    k(WSRDS)
    if not OPT.get('nowpf'):
        k(f"""v_lshrrev_b32 v15, 1, v3
        v_mul_u32_u24 v15, 514, v15
        v_and_b32 v16, 1, v1
        v_mul_u32_u24 v16, 126, v16
        v_add_u32 v15, v15, v16
        s_mov_b32 s45, 0x5555
        s_and_b32 s44, s48, 3
        s_cmp_eq_u32 s44, 3
        s_cselect_b32 exec_lo, 0xffff, {'s45' if OPT.get('th') else '0xffff'}
        s_mov_b32 exec_hi, 0
        buffer_load_ushort v{WO}, v15, {RA}, s49 offen{OPT.get('ntw', '')}
        buffer_load_ushort v{WO+1}, v15, {RB}, s49 offen{OPT.get('ntw', '')}
        s_mov_b64 exec, -1""")
    if OPT.get('wreal'): k(f'buffer_load_dwordx4 {V(WL,4)}, v11, {RA}, s49 offen\n buffer_load_dwordx4 {V(WL+4,4)}, v11, {RB}, s49 offen')
    if OPT.get('gbz') == 0: gb_loads(k)
    for t in wd_issue(k): k(t)
    k('v_mov_b32 v24, v8\n v_mov_b32 v25, v9')
    gbl_ = [f'global_load_dwordx4 {A(GB+4*q,4)}, v[24:25], off offset:{1024*q-4096}' for q in range(8)] if OPT.get('gbz') != 0 else []
    k('v_mov_b32 v15, v11')
    wl_ = [f'buffer_load_dwordx4 {V(WL,4)}, v15, {RA}, s49 offen', f'buffer_load_dwordx4 {V(WL+4,4)}, v15, {RB}, s49 offen']
    wt_dest(k, 's48', 50)
    k(f"""s_lshl_b32 s44, {WAVE}, 2
    s_add_u32 s44, s44, 0xa000
    v_add_u32 v12, s44, v12
    s_lshl_b32 s44, {WAVE}, 5
    v_xor_b32 v13, s44, v4
    s_lshl_b32 s44, {WAVE}, 11
    s_add_u32 s44, s44, 0xa000
    v_add_u32 v13, s44, v13
    v_xor_b32 v14, 16, v13
    s_lshl_b32 s44, {WAVE}, 11
    s_add_u32 s50, s50, s44
    s_add_u32 s51, s50, 1024""")
    srd(k, 24, 22, WS_USED)
    k(f"""s_lshl_b32 s44, {WAVE}, 12
    v_add_u32 v30, s44, v4
    v_lshrrev_b32 v31, 1, v4
    v_add_u32 v31, s44, v31
    v_mul_u32_u24 v6, {TPAD}, v3
    v_lshl_add_u32 v6, v2, 8, v6
    s_lshl_b32 s44, {WAVE}, 6
    s_add_u32 s44, s44, 16384
    v_add_u32 v6, s44, v6
    s_mul_i32 s44, {WAVE}, {4*TPAD}
    s_add_u32 s44, s44, 16384
    v_add_u32 v7, s44, v4
    v_cmp_eq_u32 vcc, 0, v3
    v_cndmask_b32 v8, 0, 1.0, vcc
    s_mov_b32 s62, 0x3f803f80
    v_lshlrev_b32 v9, 6, v3
    v_lshl_add_u32 v9, v2, 4, v9
    s_lshl_b32 s44, s60, 14
    s_lshl_b32 s63, s60, 7
    s_add_u32 s63, s63, {SM}
    s_lshl_b32 s47, {WAVE}, 12
    s_add_u32 s44, s44, s47
    s_add_u32 s64, s44, {ZT}
    s_lshl_b32 s44, {WAVE}, 4
    s_add_u32 s44, s44, 0x9000
    v_lshl_add_u32 v10, v2, 2, s44""")
    tl = gbl_ + ([] if OPT.get('wreal') else wl_) if not OPT.get('wlfirst') else wl_ + gbl_
    if True:
        stamp(k, 2, 'z')
        for i in range(4):
            k(f'ds_write_b128 v30, {V(X+4*i,4)} offset:{1024*i}')
            if i == 0: stamp(k, 1)
            for r in range(2): k(f'ds_read_b64_tr_b16 {V(TR+4*i+2*r,2)}, v31 offset:{1024*i+512*r}')
            for j in range(4):
                k(f'v_dot2_f32_bf16 v{SS+i}, v{X+4*i+j}, s62, {"0" if j==0 else V(SS+i)}')
                k(f'v_dot2_f32_bf16 v{SS+4+i}, v{X+4*i+j}, v{X+4*i+j}, {"0" if j==0 else V(SS+4+i)}')
        stamp(k, 3, 'z')
        k.sprinkle = tl; k.every = OPT.get('zev', 40); k.since = 100
        stamp(k, 4, 'z')
        mf = [f'v_mfma_f32_16x16x32_bf16 {V(DA+8*i+4*c,4)}, {V(TR+4*i,4)}, {A(FA+4*c,4)}, 0' for i in range(4) for c in range(2)]
        k(mf.pop(0)); k(mf.pop(0))
        for b in (SS, SS+4):
            k(f'v_permlane32_swap_b32 v{b}, v{b+2}\n v_permlane32_swap_b32 v{b+1}, v{b+3}')
        for b in (SS, SS+4):
            k(f'v_add_f32 v{b}, v{b}, v{b+2}\n v_add_f32 v{b+1}, v{b+1}, v{b+3}')
        k(mf.pop(0))
        for b in (SS, SS+4): k(f'v_permlane16_swap_b32 v{b}, v{b+1}')
        for b in (SS, SS+4): k(f'v_add_f32 v{b}, v{b}, v{b+1}')
        for sh in (8, 4, 2, 1):
            k(mf.pop(0))
            for b in (SS, SS+4): k(f'v_add_f32_dpp v{b}, v{b}, v{b} row_ror:{sh} row_mask:0xf bank_mask:0xf')
        k(mf.pop(0))
        k(f"""v_mul_f32 v{SS}, {fbits(1/512)}, v{SS}
        v_mul_f32 v{SS+4}, {fbits(1/512)}, v{SS+4}
        v_fma_f32 v{SS+4}, -v{SS}, v{SS}, v{SS+4}
        v_max_f32 v{SS+4}, 0, v{SS+4}
        v_add_f32 v{SS+4}, {fbits(1e-5)}, v{SS+4}
        v_rsq_f32 v{SS+1}, v{SS+4}
        v_mul_f32 v{SS+2}, {fbits(-8.0)}, v{SS}
        v_mul_f32 v{SS+2}, v{SS+2}, v{SS+1}
        v_mul_f32 v{SS+3}, {fbits(0.25)}, v{SS+1}""")
        for i in range(4):
            k(f'v_readlane_b32 s{68+2*i}, v{SS+3}, {16*i}\n v_readlane_b32 s{69+2*i}, v{SS+2}, {16*i}')
        for i in range(4):
            d = DA + 8*i
            k(f'v_mul_f32 v{TR}, s{69+2*i}, v8')
            for h in range(2):
                k(f'v_pk_mul_f32 {V(d+4+2*h,2)}, {V(d+4+2*h,2)}, {Sg(68+2*i,2)} op_sel_hi:[1,0]')
            for h in range(2):
                k(f'v_pk_fma_f32 {V(d+2*h,2)}, {V(d+2*h,2)}, {Sg(68+2*i,2)}, {V(TR,2)} op_sel_hi:[1,0,0]')
            for h in (2, 3, 0, 1): k(f'v_cvt_pk_f16_f32 v{X+4*i+h}, v{d+2*h}, v{d+2*h+1}')
            k(f'ds_write_b128 v6, {V(X+4*i,4)} offset:{16*i}')
        k(f"""v_mul_f32 v{SS+4}, v{SS+4}, v{SS+1}
        ds_write2_b32 v10, v{SS+4}, v{SS} offset0:0 offset1:16""")
        print('tables left', len(k.sprinkle)); flush(k)
        def wt_a():
            for i in range(8):
                k(f'v_perm_b32 v{WO+i}, v{WL+4+(i>>1)}, v{WL+(i>>1)}, s{53+(i&1)}')
                k(f'ds_write_b32 v12, v{WO+i} offset:{128*i}')
        if OPT.get('wtearly'): wt_a()
        k.wait(lg=0); k('s_barrier')
        if OPT.get('zst'): stamp(k, 1)
        stamp(k, 5, 'z')
        for q in range(4): k(f'ds_read_b128 {V(TR+4*q,4)}, v7 offset:{TPAD*q}')
        k(f'ds_read_b128 {V(SS,4)}, v4 offset:0x9000')
        go_load(k, 250)
        wt_b = lambda: [k(f'ds_read_b128 {V(WL+4*n,4)}, v{13+n} offset:{1024*n}') for n in range(2)]
        wt_c = lambda: [k(f'buffer_store_dwordx4 {V(WL+4*n,4)}, v11, {WSR}, s{50+n} offen{ST}') for n in range(2)]
        if OPT.get('wtearly'): wt_b()
        for q in range(4):
            for o in range(2): k(f'v_mfma_f32_16x16x32_f16 {V(DA+8*q+4*o,4)}, {V(TR+4*q,4)}, {A(GB+8*q+4*o,4)}, 0')
        k.wait(lg=0)
        if OPT.get('wtearly'): wt_c()
        only_wave(k, 3, lambda: k(f's_mov_b64 exec, 0xff\n buffer_store_dwordx4 {V(SS,4)}, v4, {WSR}, s63 offen{ST}'))
        for q in range(4):
            for h in range(4): k(f'v_cvt_pk_f16_f32 v{X+4*q+h}, v{DA+8*q+2*h}, v{DA+8*q+2*h+1}')
            k(f'buffer_store_dwordx4 {V(X+4*q,4)}, v9, {WSR}, s64 offen offset:{1024*q}{ST}')
        stamp(k, 6, 'z')
        if not OPT.get('wtearly'):
            wt_a(); k.wait(lg=0); k('s_barrier'); wt_b(); wt_c()
        wd_pack(k)
        global ztl
        ztl = p2_tables(k)
        if OPT.get('ztpre'):
            for t in ztl: k(t)
        stamp(k, 2)

def p1_w(k):
    OP, DA = 32, 64
    TBASE = 32768
    k(f"""s_and_b32 s61, s2, 1               ; mu
    s_bfe_u32 s60, s2, 0x60001
    s_and_b32 s44, s60, 3
    s_lshl_b32 s44, s44, 1
    s_bfe_u32 s45, s60, 0x10002
    s_add_u32 s44, s44, s45
    s_andn2_b32 s45, s60, 7
    s_add_u32 s44, s44, s45
    s_cmp_lt_u32 s60, 40
    s_cselect_b32 s60, s44, s60        ; phi""" + ("""
    s_bfe_u32 s44, s2, 0x20001
    s_mul_i32 s44, s44, 11
    s_bfe_u32 s45, s2, 0x40003
    s_add_u32 s60, s44, s45""" if OPT.get('wcont') else '') + f"""
    s_mul_i32 s44, {WAVE}, {4*2752}
    s_lshl_b32 s45, s60, 6
    s_add_u32 s66, s44, s45
    v_lshrrev_b32 v10, 2, v1
    v_mul_u32_u24 v30, {16*2752}, v10
    v_and_b32 v11, 3, v1
    v_and_b32 v12, 1, v2
    v_lshlrev_b32 v12, 1, v12
    v_xor_b32 v13, v11, v12
    v_lshl_add_u32 v30, v13, 4, v30    ; DMA source
    s_lshl_b32 s67, {WAVE}, 13
    s_mov_b32 s38, {D*F*2}
    s_mov_b32 s39, 0x20000
    """)
    k(f"""s_bfe_u32 s64, s2, 0x40003
    s_lshl_b32 s64, s64, 2
    s_add_u32 s64, s64, {WAVE}
    s_mul_i32 s64, s64, {12*2752}
    s_bfe_u32 s46, s2, 0x20001
    s_mul_i32 s46, s46, 704
    s_add_u32 s64, s64, s46
    s_add_u32 s65, s64, {8*2752}
    v_and_b32 v14, 7, v1
    v_lshlrev_b32 v14, 7, v14
    v_min_u32 v14, 700, v14
    v_lshrrev_b32 v15, 3, v1
    v_mul_u32_u24 v15, 2752, v15
    v_add_u32 v14, v14, v15""")
    if OPT.get('wgbfirst'): gb_loads(k)
    k.wait(lg=0)
    stamp(k, 1, 'z')
    k(f"""s_cmp_eq_u32 s61, 0
    s_cselect_b32 s36, s12, s14
    s_cselect_b32 s37, s13, s15
    s_and_b32 s37, s37, 0xffff""")
    if not OPT.get('nowt2'):
        k(f"""s_mov_b32 exec_lo, 0x7f7f7f7f
        s_mov_b32 exec_hi, 0x7f7f7f7f
        buffer_load_dword v5, v14, {RC}, s64 offen{OPT.get('ntg', '')}
        s_mov_b32 exec_hi, 0
        buffer_load_dword v248, v14, {RC}, s65 offen{OPT.get('ntg', '')}
        s_mov_b64 exec, -1""")
    k('v_mov_b32 v249, v30\n v_mov_b32 v24, v8\n v_mov_b32 v25, v9')
    def dmas():
        nonlocal pos
        pos = []
        for n in range(8):
            k(f's_add_u32 m0, s67, {1024*n}\n s_add_u32 s44, s66, {((n>>1) + 256*(n&1))*2752}')
            k(f'buffer_load_dwordx4 v249, {RC}, s44 offen{OPT.get("ntg", "")} lds'); pos.append(k.nvm)
        for q in range(8): k(f'global_load_dwordx4 {A(GB+4*q,4)}, v[24:25], off offset:{1024*q-4096}')
    pos = None
    if OPT.get('dfirst'): dmas()
    srd(k, 24, 22, WS_USED)
    k(f"""v_lshlrev_b32 v31, 6, v10
    v_lshl_add_u32 v31, v12, 4, v31
    v_lshl_add_u32 v31, v11, 3, v31
    v_add_u32 v30, s67, v31
    v_xor_b32 v31, 32, v30
    v_mul_u32_u24 v6, {4*TPAD}, v2
    v_lshl_add_u32 v6, v3, 4, v6
    s_lshl_b32 s44, {WAVE}, 8
    s_add_u32 s44, s44, {TBASE}
    v_add_u32 v6, s44, v6              ; T write
    s_mul_i32 s44, {WAVE}, {4*TPAD}
    s_add_u32 s44, s44, {TBASE}
    v_add_u32 v7, s44, v4              ; T read
    s_lshl_b32 s44, s60, 2
    v_lshrrev_b32 v12, 3, v3
    v_and_b32 v13, 7, v3
    v_lshlrev_b32 v13, 4, v13
    v_lshl_add_u32 v13, v2, 8, v13
    s_lshl_b32 s45, {WAVE}, 12
    s_add_u32 s68, s45, {WP}
    v_mov_b32 v19, s61""")
    for pp in range(2):
        k(f"""v_add_u32 v14, s44, v12            ; octet
        v_mul_u32_u24 v15, 373, v14
        v_lshrrev_b32 v15, 12, v15
        v_add_u32 v14, v14, v15            ; q
        v_mul_u32_u24 v15, 171, v14
        v_lshrrev_b32 v15, 9, v15
        v_mul_u32_u24 v15, 3, v15          ; q - q%3
        v_sub_u32 v16, v14, v15            ; n
        v_cmp_eq_u32 vcc, 2, v16
        v_add_u32 v15, s61, v15
        s_add_u32 s44, s44, 2
        v_cndmask_b32 v15, v15, v14, vcc   ; tile
        v_cndmask_b32 v16, v16, v19, vcc
        v_mul_u32_u24 v15, {WPS}, v15
        v_add_u32 v{8+pp}, v15, v13
        v_lshl_add_u32 v{8+pp}, v16, 7, v{8+pp}""")
    tl = p2_tables(k)
    setup(k); setup_late(k, 'addr')
    if not OPT.get('dfirst'): dmas()
    stamp(k, 2, 'z')
    for dl in range(4):
        k(f's_waitcnt vmcnt({k.nvm - pos[2*dl+1]})')
        if dl == 0: stamp(k, 1)
        for pi in range(2):
            for h in range(2): k(f'ds_read_b64_tr_b16 {V(OP+8*dl+4*pi+2*h,2)}, v{30+pi} offset:{2048*dl+1024*h}')
    stamp(k, 3, 'z')
    k.sprinkle = tl; k.every = OPT.get('tev', 28); k.since = 100
    for dl in range(4):
        for pi in range(2):
            for c in range(2):
                k(f'v_mfma_f32_16x16x32_bf16 {V(DA+32*pi+16*c+4*dl,4)}, {A(FA+4*c,4)}, {V(OP+8*dl+4*pi,4)}, 0')
    for pi in range(2):
        for r in range(4):
            u = OP + 16*pi + 4*r
            for c in range(2):
                for h in range(2):
                    d = DA + 32*pi + 16*c + 8*h + r
                    k(f'v_cvt_pk_bf16_f32 v{u+2*c+h}, v{d}, v{d+4}')
            k(f'ds_write_b128 v6, {V(u,4)} offset:{16*TPAD*pi+TPAD*r}')
    flush(k)
    stamp(k, 4, 'z')
    k.wait(lg=0); k('s_barrier')
    stamp(k, 5, 'z')
    for pi in range(2):
        for q in range(4): k(f'ds_read_b128 {V(OP+16*pi+4*q,4)}, v7 offset:{16*TPAD*pi+TPAD*q}')
    go_load(k, 250)
    for pi in range(2):
        for q in range(4):
            for o in range(2):
                k(f'v_mfma_f32_16x16x32_bf16 {V(DA+32*pi+8*q+4*o,4)}, {A(GB+8*q+4*o,4)}, {V(OP+16*pi+4*q,4)}, 0')
    for pi in range(2):
        for p in range(2):
            for o in range(2):
                u = OP + 16*pi + 8*p + 4*o
                for hq in range(2):
                    for h in range(2):
                        d = DA + 32*pi + 8*(2*p+hq) + 4*o + 2*h
                        k(f'v_cvt_pk_bf16_f32 v{u+2*hq+h}, v{d}, v{d+1}')
                k(f'buffer_store_dwordx4 {V(u,4)}, v{8+pi}, {WSR}, s68 offen offset:{(2*p+o)*1024}{ST}')
    stamp(k, 2); stamp(k, 6, 'z')

def wt_rows(k, task, dst):
    k(f"""s_bfe_u32 s44, {task}, 0x30002
    s_lshl_b32 s44, s44, 3
    s_lshr_b32 s45, {task}, 5
    s_lshl_b32 s45, s45, 8
    s_add_u32 s44, s44, s45
    s_mul_i32 s{dst}, s44, 514
    s_and_b32 s45, {task}, 3
    s_lshl_b32 s45, s45, 7
    s_add_u32 s{dst}, s{dst}, s45
    s_add_u32 s{dst}, s{dst}, 2
    v_lshrrev_b32 v12, 3, v1
    v_and_b32 v13, 7, v1
    v_mul_u32_u24 v11, 514, v12
    v_lshl_add_u32 v11, v13, 4, v11
    s_mov_b32 s30, {2048*257*2}
    s_mov_b32 s31, 0x20000
    s_mov_b32 s34, {2048*257*2}
    s_mov_b32 s35, 0x20000""")
def wt_dest(k, task, dst):
    k(f"""s_lshl_b32 s{dst}, {task}, 13
    s_add_u32 s{dst}, s{dst}, {WT}
    s_mov_b32 s53, 0x05040100
    s_mov_b32 s54, 0x07060302
    v_mov_b32 v11, v4
    v_xor_b32 v12, v12, v13
    v_lshlrev_b32 v12, 4, v12
    v_lshl_add_u32 v12, v13, 10, v12""")
WSRDS = 's_mov_b32 s28, s6\n s_and_b32 s29, s7, 0xffff\n s_mov_b32 s32, s8\n s_and_b32 s33, s9, 0xffff'
def p1_t(k):
    WL, WO = 32, 64
    k(f's_sub_u32 s48, s2, {NC0}\n s_lshl_b32 s48, s48, 2\n s_add_u32 s48, s48, {WAVE}')
    wt_rows(k, 's48', 49)
    for r in range(1, 4): k(f's_add_u32 s{49+r}, s49, {64*r*514}')
    k.wait(lg=0)
    k(WSRDS)
    for r in range(4):
        k(f'buffer_load_dwordx4 {V(WL+8*r,4)}, v11, {RA}, s{49+r} offen{OPT.get("ntw", "")}')
        k(f'buffer_load_dwordx4 {V(WL+8*r+4,4)}, v11, {RB}, s{49+r} offen{OPT.get("ntw", "")}')
    srd(k, 24, 22, WS_USED)
    wt_dest(k, 's48', 56)
    k(f's_lshl_b32 s44, {WAVE}, 13\n v_add_u32 v12, s44, v12\n v_add_u32 v14, s44, v4')
    for n in range(1, 8): k(f's_add_u32 s{56+n}, s56, {1024*n}\n v_xor_b32 v{14+n}, {16*n}, v14')
    tl = p2_tables(k)
    for i in range(8):
        o = WO + 4*i
        for r in range(4): k(f'v_perm_b32 v{o+r}, v{WL+8*r+4+(i>>1)}, v{WL+8*r+(i>>1)}, s{53+(i&1)}')
        k(f'ds_write_b128 v12, {V(o,4)} offset:{128*i}')
        if OPT.get('ttpre'):
            for t in tl[2*i:2*i+2]: k(t)
    stamp(k, 1)
    if OPT.get('twe'): twiddles(k)
    for n in range(8): k(f'ds_read_b128 {V(WL+4*n,4)}, v{14+n} offset:{1024*n}')
    go_load(k, 250)
    for n in range(8): k(f'buffer_store_dwordx4 {V(WL+4*n,4)}, v11, {WSR}, s{56+n} offen{ST}')
    stamp(k, 2)

def p1_i(k):
    k.wait(lg=0)
    srd(k, 24, 22, WS_USED)
    k(f"""s_lshl_b32 s44, s2, 2
    s_add_u32 s44, s44, {WAVE}
    s_cmp_lg_u32 s44, {255*4}
    s_cbranch_scc1 L_noinit
    v_lshlrev_b32 v30, 8, v1
    v_lshlrev_b32 v31, 8, v3
    v_mov_b32 v32, 0
    s_mov_b32 s44, {FLG}
    s_mov_b32 s45, {FLG+16384}
    buffer_store_dword v32, v30, {WSR}, s44 offen{ST}
    v_lshlrev_b32 v33, 7, v1
    buffer_store_dword v32, v33, {WSR}, s45 offen{ST}
    s_add_u32 s45, s45, 8192
    buffer_store_dword v32, v33, {WSR}, s45 offen{ST}
    buffer_store_dword v32, v31, {WSR}, 0 offen{ST}
    v_mov_b32 v33, 1
    s_waitcnt vmcnt(0)
    s_mov_b64 exec, 1
    global_store_dword v32, v33, s[20:21]{ST}
    s_mov_b64 exec, -1""")
    k.label('L_noinit')
    k(f"""s_sub_u32 s60, s2, {NI0}
    s_lshl_b32 s61, s60, 1
    s_lshr_b32 s44, {WAVE}, 1
    s_add_u32 s61, s61, s44            ; t
    s_and_b32 s62, {WAVE}, 1
    s_lshl_b32 s62, s62, 2             ; p
    s_add_u32 s63, s62, 4
    s_lshl_b32 s44, s61, 5
    s_add_u32 s44, s44, 1
    v_lshl_add_u32 v30, v3, 1, s44     ; 2d+1
    v_and_b32 v31, 1, v2
    v_lshlrev_b32 v31, 7, v31
    v_cmp_lt_u32 s[64:65], 1, v2
    v_mov_b32 v36, {fbits(1/16)}
    s_mul_i32 s61, s61, {12*WPS}
    s_add_u32 s61, s61, {WP+11*WPS}""")
    for t in p2_tables(k): k(t)
    if OPT.get('twe'): twiddles(k)
    stamp(k, 1)
    k.fence(); k.label('L_inv')
    k(f"""s_lshl_b32 s44, s62, 1
    s_sub_u32 s45, 32, s44
    s_cmp_eq_u32 s44, 0
    s_cselect_b32 s45, 16, s45
    v_mov_b32 v33, s44
    v_mov_b32 v34, s45
    v_cndmask_b32 v33, v33, v34, s[64:65]
    v_add_u32 v33, v33, v31
    s_add_u32 s44, s44, 1
    s_sub_u32 s45, 32, s44
    v_mov_b32 v34, s44
    v_mov_b32 v35, s45
    v_cndmask_b32 v34, v34, v35, s[64:65]
    v_add_u32 v34, v34, v31
    v_cmp_eq_u32 vcc, 0, v33
    v_mov_b32 v35, 0x100
    v_mov_b32 v37, {fbits(1/math.sqrt(512))}
    v_cndmask_b32 v35, v33, v35, vcc
    v_cndmask_b32 v37, v36, v37, vcc
    s_lshl_b32 s45, s62, 11
    s_add_u32 s66, s61, s45""")
    for e in range(8):
        src = 'v35' if e == 0 else None
        if e: k(f'v_add_u32 v{40+e}, {32*(e&3)}, v{33+(e>>2)}')
        k(f'v_mul_u32_u24 v{40+e}, {src or V(40+e)}, v30')
        k(f'v_and_b32 v{40+e}, 0x3ff, v{40+e}')
        k(f'v_cvt_f32_u32 v{40+e}, v{40+e}')
        k(f'v_mul_f32 v{40+e}, {fbits(1/1024)}, v{40+e}')
    for e in range(8):
        k(f'v_cos_f32 v{48+e}, v{40+e}\n v_sin_f32 v{56+e}, v{40+e}')
    for e in range(8):
        sc = 'v37' if e == 0 else 'v36'
        k(f'v_mul_f32 v{48+e}, {sc}, v{48+e}\n v_mul_f32 v{56+e}, {sc}, -v{56+e}')
    for part in range(2):
        for h in range(4): k(f'v_cvt_pk_bf16_f32 v{64+4*part+h}, v{48+8*part+2*h}, v{48+8*part+2*h+1}')
        k(f'buffer_store_dwordx4 {V(64+4*part,4)}, v4, {WSR}, s66 offen offset:{1024*part}{ST}')
    k('s_add_u32 s62, s62, 1\n s_cmp_lt_u32 s62, s63\n s_cbranch_scc1 L_inv')
    go_load(k, 250)
    stamp(k, 2)

WDL, WDO = 128, 48
def wd_task(k):
    k(f"""s_lshl_b32 s44, {WAVE}, 7
    s_add_u32 s44, s44, s2
    s_sub_u32 s44, s44, 128
    s_min_u32 s44, s44, 352""")
def wd_issue(k):
    srd(k, 36, 16, F*D*2)
    wd_task(k)
    k(f"""s_and_b32 s45, s44, 1
    s_lshr_b32 s44, s44, 1
    s_lshl_b32 s44, s44, 13
    s_lshl_b32 s45, s45, 9
    s_add_u32 s56, s44, s45
    s_add_u32 s57, s56, 4096
    v_lshlrev_b32 v20, 3, v1""")
    return [f'buffer_load_dwordx2 {V(WDL+2*e,2)}, v20, {RC}, s{56+(e>>2)} offen offset:{1024*(e&3)}{OPT.get("ntd", "")}' for e in range(8)]
def wd_pack(k):
    for pi in range(4):
        for h in range(4): k(f'v_perm_b32 v{WDO+4*pi+h}, v{WDL+4*h+2+(pi>>1)}, v{WDL+4*h+(pi>>1)}, s{53+(pi&1)}')
def wd_finish(k):
    wd_task(k)
    k(f's_cmp_lt_u32 s2, {NZ}\n s_cselect_b32 s73, s44, 352\n s_cmp_ge_u32 s73, 352\n s_cbranch_scc1 L_nowd')
    st = k.state()
    k(f"""s_lshr_b32 s44, s73, 4
    s_bfe_u32 s45, s73, 0x20002
    s_lshl_b32 s44, s44, 11
    s_mul_i32 s45, s45, {WDS}
    s_add_u32 s44, s44, s45
    s_and_b32 s45, s73, 1
    s_mul_i32 s45, s45, {16*WDS}
    s_add_u32 s44, s44, s45
    s_bfe_u32 s45, s73, 0x10001
    s_lshl_b32 s45, s45, 9
    s_add_u32 s44, s44, s45
    s_add_u32 s44, s44, {WD}
    v_mul_u32_u24 v30, {4*WDS}, v2
    v_bfe_u32 v31, v1, 3, 1
    v_lshl_add_u32 v30, v31, 10, v30
    v_and_b32 v31, 7, v1
    v_lshl_add_u32 v30, v31, 4, v30""")
    for pi in range(4): k(f'buffer_store_dwordx4 {V(WDO+4*pi,4)}, v30, {WSR}, s44 offen offset:{128*pi}{ST}')
    k.fence()
    k.restore(st); k.label('L_nowd')

STATL = 131072
def p4_ids(k):
    k(f"""s_and_b32 s44, s2, 7
    s_lshl_b32 s44, s44, 2
    s_bfe_u32 s46, s2, 0x20003
    s_add_u32 s44, s44, s46
    s_lshr_b32 s45, s2, 5""")

def setup(k):
    if OPT.get('x216'):
        k(f"""s_and_b32 s44, s2, 7
        s_lshl_b32 s44, s44, 1
        s_bfe_u32 s45, s2, 0x10003
        s_add_u32 s48, s44, s45
        s_lshr_b32 s49, s2, 4
        s_lshl_b32 s45, s45, 2
        s_mov_b32 s46, s49""")
    elif OPT.get('x48'):
        k(f"""s_and_b32 s44, s2, 3
        s_lshl_b32 s44, s44, 2
        s_bfe_u32 s45, s2, 0x20003
        s_add_u32 s48, s44, s45
        s_and_b32 s44, s2, 4
        s_lshl_b32 s44, s44, 1
        s_lshr_b32 s46, s2, 5
        s_add_u32 s49, s44, s46
        s_lshl_b32 s45, s45, 1""")
    else:
        k(f"""s_and_b32 s44, s2, 1
        s_lshl_b32 s44, s44, 3
        s_bfe_u32 s45, s2, 0x30003
        s_add_u32 s48, s44, s45
        s_bfe_u32 s44, s2, 0x20001
        s_lshl_b32 s44, s44, 2
        s_lshr_b32 s46, s2, 6
        s_add_u32 s49, s44, s46
        s_lshl_b32 s46, s46, 1""")
    k(f"""s_mov_b32 s53, 0
    s_lshl_b32 s46, s48, 11
    s_lshl_b32 s47, s49, 7
    s_add_u32 s41, s46, s47
    s_add_u32 s41, s41, {RBF}
    v_mov_b32 v250, 0""")
    stamp(k, 7, 'z')
    k(f"""s_and_b32 s74, s2, 7
    s_lshl_b32 s74, s74, 8
    s_add_u32 s75, s74, {FLG}
    s_and_b32 s44, s2, 1
    s_mul_i32 s44, s44, 44
    s_bfe_u32 s45, s2, 0x20001
    s_mul_i32 s45, s45, 11
    s_add_u32 s44, s44, s45
    s_bfe_u32 s45, s2, 0x40003
    s_add_u32 s44, s44, s45
    s_sub_u32 s45, s2, {NI0-88}
    s_cmp_ge_u32 s2, {NI0}
    s_cselect_b32 s44, s45, s44
    s_cselect_b32 s46, 0, s2
    s_lshl_b32 s44, s44, 7
    s_add_u32 s71, s44, {FLG+16384}
    s_cmp_lt_u32 s2, {NZ}
    s_cselect_b32 s71, 0, s71
    s_cmp_ge_u32 s46, {NC0}
    s_cselect_b32 s71, 0, s71
    v_mov_b32 v251, 1
    s_mov_b32 s63, 0x80008000""")

def twiddles(k):
    k(f"""s_lshl_b32 s44, {WAVE}, 4
    v_add_u32 v240, s44, v3
    v_cvt_f32_u32 v240, v240
    v_mul_f32 v240, {fbits(1/2048)}, v240
    v_lshlrev_b32 v241, 2, v2
    v_add_u32 v242, s44, v241
    v_cvt_f32_u32 v241, v241
    v_cvt_f32_u32 v242, v242
    v_cvt_f32_u32 v243, v3
    v_mul_f32 v243, {fbits(1/2048)}, v243""")
    for be in range(2):
        for r in range(4):
            t = TW1 + 8*be + r
            k(f'v_add_f32 v{t}, {fbits(16*be+r)}, v241\n v_mul_f32 v{t}, v{t}, v240')
            k(f'v_sin_f32 v{t+4}, v{t}\n v_cos_f32 v{t}, v{t}')
    for be in range(2):
        if be: k(f'v_add_f32 v243, {fbits(16/2048)}, v243')
        for r in range(4):
            t = TW2 + 8*be + r
            k(f'v_add_f32 v{t}, {fbits(r)}, v242\n v_mul_f32 v{t}, v{t}, v243')
            k(f'v_sin_f32 v{t+4}, v{t}\n v_cos_f32 v{t}, v{t}')

def setup_late(k, part=None):
    k(f"""s_mul_i32 s44, s49, 11
    s_add_u32 s45, s44, 10
    s_lshr_b32 s44, s44, 2
    s_lshr_b32 s45, s45, 2
    v_and_b32 v23, 3, v1
    v_add_u32 v23, s44, v23
    v_min_u32 v23, s45, v23
    v_bfe_u32 v240, v1, 2, 1
    v_mul_u32_u24 v240, 44, v240
    v_add_u32 v23, v23, v240
    s_lshr_b32 s44, s49, 1
    s_add_u32 s44, s44, 88
    v_mov_b32 v240, s44
    v_cmp_gt_u32 vcc, 8, v1
    v_cndmask_b32 v23, v240, v23, vcc
    v_lshlrev_b32 v23, 7, v23
    v_add_u32 v23, {FLG+16384}, v23""")
    if part != 'addr':
        if OPT.get('twe'):
            uid[0] += 1; u = uid[0]
            k(f's_cmp_ge_u32 s2, {NC0}\n s_cbranch_scc1 L_tw{u}')
            twiddles(k); k.fence(); k.label(f'L_tw{u}')
        else: twiddles(k)
    for u in range(4):
        k(f's_add_u32 s45, {WAVE}, {u}\n s_and_b32 s45, s45, 3\n s_lshl_b32 s45, s45, 11\n v_add_u32 v{16+u}, s45, v4')
    k(f"""s_and_b32 s58, s2, 0xf6
    s_bfe_u32 s45, s2, 0x10003
    s_add_u32 s58, s58, s45
    s_and_b32 s45, s2, 1
    s_lshl_b32 s45, s45, 3
    s_add_u32 s58, s58, s45
    s_lshl_b32 s44, s58, 6
    s_lshl_b32 s45, {WAVE}, 19
    s_add_u32 s44, s44, s45
    s_add_u32 s55, s44, {ZT}
    s_add_u32 s56, s55, 0x10000
    s_lshr_b32 s44, s58, 4
    s_sub_u32 s45, 32, s44
    s_cmp_eq_u32 s44, 0
    s_cselect_b32 s45, 16, s45
    s_bitcmp1_b32 s58, 3
    s_cselect_b32 s44, s45, s44
    s_and_b32 s45, s58, 7
    s_lshl_b32 s45, s45, 5
    s_add_u32 s44, s44, s45
    s_sub_u32 s44, s44, 1
    s_and_b32 s44, s44, 255
    s_lshl_b32 s44, s44, 7
    s_lshl_b32 s45, {WAVE}, 16
    s_add_u32 s44, s44, s45
    s_add_u32 s59, s44, {WT}
    s_add_u32 s60, s59, 0x100000
    v_and_b32 v15, 7, v1
    v_lshlrev_b32 v15, 4, v15
    v_bfe_u32 v14, v1, 3, 1
    v_lshl_add_u32 v15, v14, 15, v15
    v_lshl_add_u32 v15, v2, 18, v15
    s_lshl_b32 s45, {WAVE}, 12
    s_add_u32 s61, s45, {SM}
    v_lshrrev_b32 v21, 2, v3
    v_lshlrev_b32 v21, 7, v21
    v_lshl_add_u32 v21, v2, 10, v21
    v_and_b32 v22, 3, v1
    v_lshlrev_b32 v14, 4, v22
    v_lshl_add_u32 v14, v21, 7, v14
    v_lshl_add_u32 v22, v22, 4, v21
    s_mov_b32 s63, 0x80008000""")

def setup2(k):
    k(f"""v_lshrrev_b32 v20, 2, v1
    v_lshlrev_b32 v20, 15, v20
    v_and_b32 v24, 3, v1
    v_lshl_add_u32 v20, v24, 4, v20
    s_lshr_b32 s44, s58, 5
    s_lshl_b32 s44, s44, 6
    s_and_b32 s45, s58, 31
    s_add_u32 s44, s44, s45
    s_lshl_b32 s44, s44, 6
    s_lshl_b32 s45, {WAVE}, 19
    s_add_u32 s44, s44, s45
    s_add_u32 s62, s44, {HT}
    s_mul_i32 s44, s49, 11
    s_mul_i32 s45, {WAVE}, 3
    s_add_u32 s50, s44, s45
    s_add_u32 s44, s50, s49
    s_mul_i32 s44, s44, {WPS}
    s_add_u32 s44, s44, {WP}
    v_add_u32 v248, s44, v4
    v_add_u32 v249, {WPS}, v248
    v_add_u32 v255, {2*WPS}, v248
    s_and_b32 s46, {WAVE}, 1
    s_lshr_b32 s47, {WAVE}, 1
    s_lshl_b32 s45, s46, 15
    s_lshl_b32 s54, s47, 12
    s_add_u32 m0, s54, s45
    s_lshl_b32 s44, s48, 17
    s_add_u32 s44, s44, {HT}
    v_and_b32 v6, 1, v2
    v_lshlrev_b32 v6, 5, v6
    v_xor_b32 v5, v6, v4
    v_add_u32 v5, s44, v5
    v_lshrrev_b32 v7, 2, v1
    v_lshl_add_u32 v6, v7, 6, v6
    v_lshl_add_u32 v6, v24, 3, v6
    s_lshl_b32 s44, s47, 5
    s_add_u32 s44, s44, s45
    v_xor_b32 v6, s44, v6
    v_xor_b32 v7, 32, v6
    v_lshrrev_b32 v9, 2, v3
    v_cmp_eq_u32 vcc, v9, v2
    s_lshl_b32 s47, s47, 8
    s_lshl_b32 s44, s46, 9
    s_add_u32 s44, s44, s47
    s_add_u32 s44, s44, {STATL}
    v_lshl_add_u32 v10, v3, 4, s44     ; statistics reads
    v_xor_b32 v8, 0x100, v10
    v_add_u32 v9, {STATL+2048}, v4
    v_cndmask_b32 v9, v9, v10, vcc     ; statistics write (other lanes go to a dummy area)
    v_lshrrev_b32 v24, 1, v2
    v_lshlrev_b32 v11, 8, v24
    v_xor_b32 v11, v11, v10            ; statistics for the mixed tile
    s_mov_b32 s64, 0x22222222
    s_mov_b32 s65, s64
    s_mov_b32 s66, 0x44444444
    s_mov_b32 s67, s66
    s_mov_b32 s68, 0x88888888
    s_mov_b32 s69, s68
    v_add_u32 v25, s50, v24
    v_lshrrev_b32 v12, 1, v25
    v_mul_u32_u24 v12, {HFS}, v12
    v_and_b32 v25, 1, v25
    v_lshl_add_u32 v12, v25, 9, v12
    v_and_b32 v25, 0x1f0, v4
    v_xor_b32 v25, s47, v25
    v_add_u32 v12, v25, v12
    s_add_u32 s44, s50, 2
    s_lshr_b32 s45, s44, 1
    s_mul_i32 s45, s45, {HFS}
    s_and_b32 s44, s44, 1
    s_lshl_b32 s44, s44, 9
    s_add_u32 s44, s44, s45
    v_lshlrev_b32 v13, 8, v24
    v_xor_b32 v13, s47, v13
    v_add_u32 v13, s44, v13
    v_lshl_add_u32 v13, v3, 4, v13
    v_and_b32 v25, 1, v2
    v_xor_b32 v25, 1, v25
    v_lshlrev_b32 v25, 10, v25
    s_lshl_b32 s44, s46, 1
    s_sub_u32 s44, 1, s44
    v_mul_i32_i24 v25, s44, v25
    v_sub_u32 v13, v13, v25""")
    wsrd(k, 32, HF+86*HFS)
    if OPT.get('wtouch'):
        k(f"""s_and_b32 s44, s48, 7
        s_lshl_b32 s44, s44, 11
        v_sub_u32 v14, v248, v4
        v_lshl_add_u32 v14, v2, 14, v14
        v_lshl_add_u32 v14, v3, 7, v14
        v_add_u32 v14, s44, v14
        v_cmp_gt_u32 vcc, 3, v2
        v_cndmask_b32 v14, -1, v14, vcc""")

def p2_negs(k, base):
    for u in range(4):
        for h in range(2): k(f'v_xor_b32 v{base+6*u+h}, s63, v{base+6*u+4+h}')

def wd_reg(u, i): return A(192+8*u+4*i, 4) if u < 8 else V(144+8*(u-8)+4*i, 4)
def wd_loads(u):
    o = [f'buffer_load_dwordx4 {wd_reg(u+s,i)}, v15, {WSR}, s51 offen offset:{2048*s+1024*i}{LD}' for s in range(2) for i in range(2)]
    return o + ['s_add_u32 s51, s51, 4096']
def wloads(R=RA):
    return [f'buffer_load_dwordx4 {A(12*ka+4*t,4)}, v{(248, 249, 255)[t]}, {R}, {("0", "s70", "s71", "s72")[ka>>2]} offen offset:{1024*(ka&3)}{LD}' for ka in range(16) for t in range(3)]

def p2(k):
    Z, WW, SG, DD, TT, PK = 32, 64, 80, 88, 104, 240
    for u in range(1 if not OPT.get('zall') else 4):
        for be in range(2): k(f'buffer_load_dwordx4 {V(Z+8*u+4*be,4)}, v14, {WSR}, s{55+be} offen{LD}')
    lds_ = f"""buffer_load_dwordx4 {V(WW+4,4)}, v15, {WSR}, s59 offen{LD}
    buffer_load_dwordx4 {V(WW+12,4)}, v15, {WSR}, s60 offen{LD}
    buffer_load_dwordx4 {V(SG,4)}, v22, {WSR}, s61 offen{LD}
    buffer_load_dwordx4 {V(SG+4,4)}, v22, {WSR}, s61 offen offset:512{LD}""".split('\n')
    lds_.insert(OPT.get('fpos', 2), f'buffer_load_dword v26, v23, {WSR}, 0 offen{LD}')
    if OPT.get('wnow'):
        for t in lds_: k(t)
    else:
        k.sprinkle = [t.strip() for t in lds_]; k.every = 60; k.since = 0
    setup2(k); flush(k)
    k(f"""s_mov_b32 s28, s24
    s_mov_b32 s29, s25
    s_mov_b32 s31, 0x20000
    s_mov_b32 s36, s24
    s_mov_b32 s37, s25
    s_mov_b32 s39, 0x20000
    s_mov_b32 s70, 4096
    s_mov_b32 s71, 8192
    s_mov_b32 s72, 12288""")
    def check1():
        k(f'v_cmp_ne_u32 vcc, 1, v26\n s_cmp_eq_u64 vcc, 0\n s_cselect_b32 s30, {WS_USED}, 0')
        k(f'buffer_load_dword v27, v23, {WSR}, 0 offen{LD}')
        if OPT.get('wtouch'): k(f'buffer_load_dword v25, v14, {RA}, 0 offen{LD}')
        k.sprinkle = wloads(); k.every = OPT.get('every', 64); k.since = 100; k.lazy = OPT.get('lazy', 1)
    def unpack():
        for t in range(2):
            for r in range(4):
                k(f'v_lshlrev_b32 v{WW+8*t+r}, 16, v{WW+8*t+4+r}\n v_and_b32 v{WW+8*t+4+r}, 0xffff0000, v{WW+8*t+4+r}')
    if not OPT.get('zall'):
        for be in range(2): k(f'ds_write_b128 v16, {V(Z+4*be,4)} offset:{8192+1024*be}')
    for u in range(4):
        for be in range(2):
            for o in range(2):
                d = V(DD+8*be+4*o, 4)
                k(f'v_mfma_f32_16x16x32_f16 {d}, {V(Z+8*u+4*be,4)}, {V(B1+6*u+2-2*o,4)}, {"0" if u==0 else d}')
        if u == 0:
            stamp(k, 5); stamp(k, 2, 'b')
            if not OPT.get('zall'):
                k.wait(lg=0); k('s_barrier')
                for v in range(1, 4):
                    for be in range(2): k(f'ds_read_b128 {V(Z+8*v+4*be,4)}, v{16+v} offset:{8192+1024*be}')
                if OPT.get('c1') == 0: check1()
    if OPT.get('c1') == 1: check1()
    E = Z + 8
    for be in range(2):
        cmul(k, DD+8*be, DD+8*be+4, TW1+8*be, TW1+8*be+4, TT, TT+4, True)
        for h in range(4): k(f'v_cvt_pk_f16_f32 v{PK+4*be+h}, v{TT+2*h}, v{TT+2*h+1}')
        for t in range(2):
            for o in range(2):
                d = V(E+8*t+4*o, 4)
                k(f'v_mfma_f32_16x16x32_f16 {d}, {V(A2+6*(2*t+be)+2-2*o,4)}, {V(PK+4*be,4)}, {"0" if be==0 else d}')
    def check2():
        global n1
        n1 = 48 - len(k.sprinkle); k.sprinkle = []
        k(f'v_cmp_ne_u32 vcc, 1, v27\n s_cmp_eq_u64 vcc, 0\n s_cselect_b32 s38, {WS_USED}, 0')
        if OPT.get('wtouch') == 2: k(f's_sub_u32 s44, {WS_USED}, s30\n s_cselect_b32 s44, 0, 0\n s_cmp_eq_u32 s30, 0\n s_cselect_b32 s44, 0, {WS_USED}\n buffer_load_dword v25, v14, {RC}, s44 offen{LD}')
        k.sprinkle = wloads(RC)[n1:]
    if OPT.get('c1') == 2: check1()
    unpack()
    stamp(k, 3, 'b')
    if OPT.get('c2', 0) == 0: check2()
    for t in range(2):
        cmul(k, E+8*t, E+8*t+4, WW+8*t, WW+8*t+4, TT, TT+4, False)
        for h in range(4): k(f'v_cvt_pk_bf16_f32 v{PK+4*t+h}, v{TT+2*h}, v{TT+2*h+1}')
        for be in range(2):
            for o in range(2):
                d = V(DD+8*be+4*o, 4)
                k(f'v_mfma_f32_16x16x32_bf16 {d}, {V(PK+4*t,4)}, {V(B3+6*(2*be+t)+2-2*o,4)}, {"0" if t==0 else d}')
    if OPT.get('c2', 0) == 1: check2()
    for be in range(2):
        cmul(k, DD+8*be, DD+8*be+4, TW2+8*be, TW2+8*be+4, TT, TT+4, False)
        for h in range(4): k(f'v_cvt_pk_bf16_f32 v{PK+4*be+h}, v{TT+2*h}, v{TT+2*h+1}')
        k(f'ds_write_b128 v16, {V(PK+4*be,4)} offset:{1024*be}')
    def step4(u, src):
        for be in range(2):
            for o in range(2):
                d = V(DD+8*be+4*o, 4)
                k(f'v_mfma_f32_16x16x32_bf16 {d}, {V(A4+6*u+2-2*o,4)}, {V(src+4*be,4)}, {d}')
    for o in range(2):
        for be in range(2):
            for r in range(4):
                d = DD+8*be+4*o+r; hi = r & 1
                k(f'v_fma_mix_f32 v{d}, v{SG+4*be+r}, v{Z+4*be+2*o+(r>>1)}, 0 op_sel:[0,{hi},0] op_sel_hi:[0,1,0]')
    stamp(k, 4, 'b')
    k.wait(lg=0); k('s_barrier')
    for u in range(1, 4):
        for be in range(2): k(f'ds_read_b128 {V(Z+8*u+4*be,4)}, v{16+u} offset:{1024*be}')
    step4(0, PK)
    for u in range(1, 4): step4(u, Z+8*u)
    OUT = 64
    rest, k.sprinkle = k.sprinkle, []
    for o in range(2):
        for be in range(2):
            for h in range(2): k(f'v_cvt_pk_bf16_f32 v{OUT+4*o+2*be+h}, v{DD+8*be+4*o+2*h}, v{DD+8*be+4*o+2*h+1}')
    k('s_cmp_lg_u32 s2, 0\n s_cbranch_scc1 L_p2_st')
    for h in range(4): k(f'v_mov_b32 v{OUT+4+h}, v{OUT+h}\n v_mov_b32 v{OUT+h}, 0')
    k.label('L_p2_st')
    for o in range(2): k(f'buffer_store_dwordx4 {V(OUT+4*o,4)}, v20, {WSR}, s62 offen offset:{2048*o}{ST}')
    stamp(k, 5, 'b')
    return rest

def barrier2(k, rest):
    print('weight loads left after phase 2:', len(rest))
    k(f's_lshl_b32 s44, s48, 12\n s_add_u32 s44, s44, {HF}')
    k(f's_and_b32 s46, {WAVE}, 1')
    for p in range(4): k(f's_xor_b32 s45, s46, {p}\n s_lshl_b32 s45, s45, 10\n s_add_u32 s{55+p}, s44, s45')
    k(f"""s_lshl_b32 s44, s49, 17
    s_lshl_b32 s45, s48, 11
    s_add_u32 s44, s44, s45
    s_add_u32 s59, s44, {HRES}
    s_add_u32 s60, s59, 0x10000
    s_lshl_b32 s44, s48, 10
    s_add_u32 s61, s44, {SM+64}
    s_mov_b32 s46, 0""")
    print('group 1:', n1)
    stamp(k, 6)
    nA = min(OPT.get('nA', 12), len(rest)); nB = min(OPT.get('nB', 48), len(rest) - nA)
    n2 = 48 - len(rest) + nA
    for t in rest[:nA]: k(t)
    rest = [t.replace(RC, WSR) for t in rest]
    stamp(k, 6, 'b')
    k(f'v_mov_b32 v250, 0\n v_mov_b32 v251, 1\n s_cmp_lg_u32 {WAVE}, 0\n s_cbranch_scc1 L_b2o')
    st = k.state()
    k(f's_mov_b64 exec, 1\n s_waitcnt vmcnt({nA})'); stamp(k, 7, 'b'); k('s_barrier'); stamp(k, 8, 'b')
    k(f'buffer_atomic_add v251, v250, {WSR}, s74 offen sc0 sc1')
    k('s_barrier')
    stamp(k, 9, 'b'); arrive_check(k, 250, 's75', 51, 2); stamp(k, 10, 'b')
    if OPT.get('hold'): k('s_barrier')
    k('s_mov_b64 exec, -1\n s_branch L_b2m')
    k.restore(st); k.label('L_b2o')
    k(f's_waitcnt vmcnt({nA})'); stamp(k, 7, 'b'); k('s_barrier'); stamp(k, 8, 'b')
    k('s_barrier')
    if OPT.get('hold'): k('s_barrier')
    stamp(k, 9, 'b'); stamp(k, 10, 'b')
    k.label('L_b2m')
    k(f's_cmp_lg_u32 s30, 0\n s_cbranch_scc1 L_bok')
    st = k.state()
    k(f's_cmp_lg_u32 s38, 0\n s_cbranch_scc1 L_bok2')
    k.label('L_bchk')
    k(f"""buffer_load_dword v26, v23, {WSR}, 0 offen{LD}
    s_add_u32 s46, s46, 1
    s_waitcnt vmcnt(0)
    v_cmp_ne_u32 vcc, 1, v26
    s_cmp_gt_u32 s46, {SPIN}
    s_cbranch_scc1 L_bgo
    s_cbranch_vccnz L_bchk""")
    k.label('L_bgo')
    for t in wloads(WSR)[n1:n2]: k(t)
    k.label('L_bok2')
    for t in wloads(WSR)[:n1]: k(t)
    k.restore(st)
    k.label('L_bok')
    for t in rest[nA:nA+nB]: k(t)
    if OPT.get('retouch'):
        def rt():
            k('s_lshr_b32 s44, s2, 3\n s_lshl_b32 s44, s44, 10\n v_lshl_add_u32 v252, v3, 6, s44')
            k.raw('    v_min_u32 v252, L_notz-L_b2x-4, v252\n    s_sub_u32 s44, s42, tables-L_b2x\n    s_subb_u32 s45, s43, 0'); k.pos += 3
            k('v_mov_b32 v253, s45\n v_add_co_u32 v252, vcc, s44, v252\n v_addc_co_u32 v253, vcc, 0, v253, vcc\n s_mov_b64 exec, 0xffff\n global_load_dword v254, v[252:253], off')
        only_wave(k, 2, rt)
    only_wave(k, 0, lambda: poll(k, 250, 2))
    global late_w
    late_w = rest[nA+nB:]
    def hw():
        k('v_bfe_u32 v16, v1, 2, 1\n v_lshlrev_b32 v16, 9, v16\n v_bfe_u32 v17, v1, 3, 1\n v_lshl_add_u32 v16, v17, 4, v16\n v_and_b32 v17, 3, v1\n v_lshl_add_u32 v16, v17, 2, v16')
        for j in range(8): k(f'buffer_load_dword v{MUV+j}, v16, {WSR}, s61 offen offset:{128*((j^3)>>1)+32*((j^3)&1)}{LD}')
    global hw_means, st3
    hw_means = hw
    k(f's_cmp_eq_u32 {WAVE}, 3\n s_cbranch_scc1 L_p3h')
    st3 = k.state()
    if OPT.get('isl'):
        k(f's_mov_b64 exec, 0\n s_cmp_eq_u32 {WAVE}, 1\n s_cbranch_scc1 L_isl0_0\n s_branch L_isl0_{OPT.get("islmid", 32)}')
        k.label('L_islret0'); k('s_mov_b64 exec, -1')
    k.label('L_b2x')

ACT, ACC, TM, STV, MUV = 32, 64, 128, 16, 24
def cost(t):
    m = t.split()[0]
    if m.startswith('buffer'): return 18 + 4 * t.count('\n')
    if m.startswith(('v_exp', 'v_rcp', 'v_rsq', 'v_permlane', 'ds_write')): return 8
    return 4 * (t.count('\n') + 1)

def p3_body(k, hw):
    acc = lambda p, n, m, par=0: ACC + 32*(p & 1) + 8*(n + (par if n == 2 and hw else 0)) + 4*m
    GR = 28 if not hw else TM + 12
    dma_pos = []
    def dma(j):
        return f'buffer_load_dwordx4 v5, {WSR}, m0 offen offset:{1024*(j&3)}{LD} lds'
    def m0step(j): return [f's_add_u32 m0, m0, {8192 + (32768 if j == 15 else 0)}'] if j & 3 == 3 and j < 31 else []
    def slot(g, m): return ACT + 8*(g & 3) + 4*m
    def reads(g):
        p, ka = divmod(g, 16); o = []
        if p and ka == 0:
            x = (p ^ (p-1)) << 15
            o = [f'v_xor_b32 v6, {x:#x}, v6', f'v_xor_b32 v7, {x:#x}, v7']
        return o + [f'ds_read_b64_tr_b16 {V(slot(g,m)+2*h,2)}, v{6+m} offset:{2048*ka+1024*h}' for m in range(2) for h in range(2)]
    def chains(p, J):
        if p == 3:
            P = J[::2]
            o = [f'v_pk_mul_f32 {V(t,2)}, {V(g,2)}, {V(g,2)}' for g, u, t, c in P]
            o += [f'v_pk_fma_f32 {V(t,2)}, {V(t,2)}, {V(c,2)}, {V(c,2)} op_sel:[0,1,0] op_sel_hi:[1,1,0]' for g, u, t, c in P]
            o += [f'v_pk_mul_f32 {V(t,2)}, {V(t,2)}, {V(g,2)}' for g, u, t, c in P]
            o += [f'v_exp_f32 v{t}, v{t}' for g, u, t, c in J]
            o += [f'v_pk_mul_f32 {V(g,2)}, {V(g,2)}, {V(u,2)}' for g, u, t, c in P]
            o += [f'v_pk_fma_f32 {V(t,2)}, {V(t,2)}, {V(c+2,2)}, {V(c+2,2)} op_sel_hi:[1,0,0]' for g, u, t, c in P]
            o += [f'v_rcp_f32 v{t}, v{t}' for g, u, t, c in J]
            o += [f'v_pk_mul_f32 {V(g,2)}, {V(g,2)}, {V(t,2)}' for g, u, t, c in P]
            return o
        o = [f'v_mul_f32 v{t}, v{g}, v{g}' for g, u, t, c in J]
        o += [f'v_mul_f32 v{u}, v{g}, v{u}' for g, u, t, c in J]
        o += [f'v_fma_f32 v{t}, v{t}, v{c+1}, v{c}' for g, u, t, c in J]
        o += [f'v_mul_f32 v{t}, v{t}, v{g}' for g, u, t, c in J]
        o += [f'v_exp_f32 v{t}, v{t}' for g, u, t, c in J]
        o += [f'v_fma_f32 v{t}, v{t}, v{c+2}, v{c+2}' for g, u, t, c in J]
        o += [f'v_rcp_f32 v{t}, v{t}' for g, u, t, c in J]
        o += [f'v_mul_f32 v{g}, v{u}, v{t}' for g, u, t, c in J]
        return o
    def epilogue(p):
        HA, HX = TM + 8, TM + 12
        J = [(acc(p, 0, m)+r, acc(p, 1, m)+r, TM+4*m+r, STV+4*m) for m in range(2) for r in range(4)]
        o = []
        if not hw: o += [f'v_permlane32_swap_b32 v{acc(p,2,0)+r}, v{acc(p,2,1)+r}' for r in range(4)]
        o += chains(p, J)
        o += [f'v_cvt_pk_bf16_f32 v{HA+2*m+h}, v{acc(p,0,m)+2*h}, v{acc(p,0,m)+2*h+1}' for h in range(2) for m in range(2)]
        tail = [f'v_permlane16_swap_b32 v{HA}, v{HA+2}', f'v_permlane16_swap_b32 v{HA+1}, v{HA+3}',
                f'buffer_store_dwordx4 {V(HA,4)}, v12, {RB}, s{55+p} offen{ST}']
        if not hw:
            x = chains(p, [(acc(p, 2, 0)+r, acc(p, 2, 1)+r, TM+r, STV+8) for r in range(4)])
            o += x[:2] + tail + x[2:]
            o += [f'v_cvt_pk_bf16_f32 v{HX+2*(p&1)+h}, v{acc(p,2,0)+2*h}, v{acc(p,2,0)+2*h+1}' for h in range(2)]
            if p & 1: o += [f'v_permlane16_swap_b32 v{HX}, v{HX+2}', f'v_permlane16_swap_b32 v{HX+1}, v{HX+3}',
                            f'buffer_store_dwordx4 {V(HX,4)}, v13, {RB}, s{55+p} offen{ST}']
        else:
            for m in range(2):
                e, od = acc(p, 2, m), acc(p, 2, m, 1); t = TM
                o += [f'v_add_f32 v{e+r}, v{e+r}, v{MUV+2*p+m}' for r in range(4)]
                if m == 0: o += tail
                for r in range(4): o += [f'v_add_f32 v{t+r}, v{e+r}, v{od+r}', f'v_sub_f32 v{t+4+r}, v{e+r}, v{od+r}']
                P0, P1 = acc(p, 2, 0), acc(p, 2, 0, 1)
                o += [f'v_cvt_pk_bf16_f32 v{P0+2*m}, v{t}, v{t+1}', f'v_cvt_pk_bf16_f32 v{P0+2*m+1}, v{t+2}, v{t+3}',
                      f'v_cvt_pk_bf16_f32 v{P1+2-2*m}, v{t+7}, v{t+6}', f'v_cvt_pk_bf16_f32 v{P1+3-2*m}, v{t+5}, v{t+4}']
            off = 512*(p ^ 1)
            o += [f'v_permlane16_swap_b32 v{P0}, v{P0+2}', f'v_permlane16_swap_b32 v{P0+1}, v{P0+3}',
                  f'buffer_store_dwordx4 {V(P0,4)}, v13, {WSR}, s59 offen offset:{off}{ST}',
                  f'v_permlane16_swap_b32 v{P1+2}, v{P1}', f'v_permlane16_swap_b32 v{P1+3}, v{P1+1}',
                  f'buffer_store_dwordx4 {V(P1,4)}, v14, {WSR}, s60 offen offset:{off}{ST}']
        return o
    def stats(p):
        K0 = -2*math.sqrt(2/math.pi)*math.log2(math.e); b = GR
        return [f'v_cndmask_b32 v{b}, v{b}, v{b+1}, s[64:65]', f'v_cndmask_b32 v{b}, v{b}, v{b+2}, s[66:67]', f'v_cndmask_b32 v{b}, v{b}, v{b+3}, s[68:69]',
                f'v_mov_b32 v{b+2}, {fbits(1e-5)}', f'v_fmac_f32 v{b+2}, {fbits(1/512)}, v{b}', f'v_rsq_f32 v{b+3}, v{b+2}',
                f'v_mul_f32 v{b}, {fbits(K0)}, v{b+3}', f'v_mul_f32 v{b+3}, v{b+3}, v{b+3}', f'v_mul_f32 v{b+1}, {fbits(0.044715)}, v{b}', f'v_mul_f32 v{b+1}, v{b+1}, v{b+3}',
                f'ds_write_b128 v9, {V(b,4)} offset:{512*p}']
    def getstats(p):
        R = [(10, STV), (8, STV+4)] + ([] if hw else [(11, STV+8)])
        o = [f'v_xor_b32 v{a}, 0x200, v{a}' for a, _ in R] if p else []
        return o + [f'ds_read_b128 {V(d,4)}, v{a} offset:{1024*(p>>1)}' for a, d in R]
    def issue_dma(j): k(dma(j)); dma_pos.append(k.nvm)
    if hw:
        hw_means()
        if OPT.get('isl'):
            k('s_mov_b64 exec, 0\n s_branch L_isl1_0'); k.label('L_islret1'); k('s_mov_b64 exec, -1')
    k('s_barrier')
    stamp(k, 7); stamp(k, 11, 'b')
    def island(g):
        G = OPT.get('isl')
        if not G or g % G: return
        mid = OPT.get('islmid', 32)
        k.label(f'L_isl{int(hw)}_{g}')
        k(f's_cbranch_execz L_isl{int(hw)}_{g+G}' if g + G < 64 and (hw or g + G != mid) else (f's_cbranch_execz L_islret{int(hw)}' if g + G >= 64 else f's_cbranch_execz L_islret0'))
    DP = OPT.get('dpre', 16)
    for j in range(DP):
        issue_dma(j)
        for t in m0step(j): k(t)
    if hw: k('v_and_b32 v13, 0x1f0, v4\n v_xor_b32 v13, 0x100, v13\n v_lshrrev_b32 v14, 5, v1\n v_lshl_add_u32 v13, v14, 15, v13\n v_xor_b32 v14, 0x8000, v13')
    p4_ids(k)
    k(f"""s_mov_b32 s51, 0
    s_lshl_b32 s45, s45, 2
    s_add_u32 s45, s45, {WAVE}
    s_mul_i32 s45, s45, {WDS}
    s_add_u32 s45, s45, {WD}
    v_add_u32 v15, s45, v4
    s_lshr_b32 s46, s44, 1
    s_lshl_b32 s45, s46, 11
    s_add_u32 s62, s45, {RBF}
    s_add_u32 s63, s62, 0x8000
    s_lshl_b32 s46, s46, 2
    s_and_b32 s44, s44, 1
    s_add_u32 s73, s46, s44
    s_lshl_b32 s46, s73, 10
    s_mul_i32 s47, {WAVE}, {HFS}
    s_add_u32 s46, s46, s47
    s_add_u32 s74, s46, {HF}
    s_mov_b32 s75, 0""")
    def landed(j): k(f's_waitcnt vmcnt({min(63, k.nvm - dma_pos[j])})'); k('s_barrier')
    landed(3)
    stamp(k, 8)
    rd_pos = {}
    def do_reads(g):
        for t in reads(g): k(t)
        rd_pos[g] = k.nlg
    do_reads(0); do_reads(1)
    NWD = OPT.get('wdin', 22)
    memq = [('dma', j) for j in range(DP, 16)]
    lw = list(late_w)
    memq += lw + [('dma', j) for j in range(16, 32)]
    after = []
    nfast = len(memq)
    wl = [t for u in range(0, NWD, 2) for t in wd_loads(u)]
    wdq = [wl[i] + ('\n' + wl[i+1] if i % 5 == 3 else '') for i in range(len(wl)) if i % 5 != 4]
    W1 = OPT.get('wdend', 57)
    st_pos = None
    wrate = min(1.0, len(wdq) / (W1 - nfast / OPT.get('mrate', 1)))
    eq = [hload(0, u, RC) for u in range(22)]
    ismem = lambda t: isinstance(t, tuple) or t.startswith(('ds_', 'buffer'))
    vcost = lambda t: 8 if t.startswith(('v_exp', 'v_rcp', 'v_rsq', 'v_permlane')) else 4 * (t.count('\n') + 1)
    hcost = lambda t: 4 if (t[0] == 'rd' if isinstance(t, tuple) else t.startswith('ds_read')) else 8
    salu = []
    def emit_mem(f):
        nonlocal stat_pos
        if isinstance(f, tuple):
            if f[0] == 'dma':
                while salu: k(salu.pop(0))
                issue_dma(f[1]); salu.extend(m0step(f[1]))
            else: k(f[1]); rd_pos[f[2]] = k.nlg
        else:
            t = f.split('\n')
            if t[0].startswith('buffer_load_dwordx4'):
                while salu: k(salu.pop(0))
            k(t[0]); salu.extend(x.strip() for x in t[1:])
            if f.startswith('ds_write'): stat_pos = k.nlg
    stat_pos = None
    k.wait(lg=k.nlg - rd_pos[0])
    for p in range(4):
        pre = stats(p-1) if p & 1 else []
        bg = (epilogue(p-1) + (getstats(p) if p & 1 else [])) if p else []
        nind = (16 if hw else 20) if p & 1 else 0
        SB = OPT.get('sb', 3)
        nbg = len(bg)
        k1 = OPT.get('e1end', 12) if p == 2 else 16
        tot = sum(vcost(t) for t in bg); done = 0
        val = []
        for ka in range(16):
            g = 16*p + ka
            if OPT.get('gst') and g in OPT['gst']: stamp(k, 1 + OPT['gst'].index(g), True)
            sync = None
            if p & 1 and ka == SB: sync = 'stat'
            if p == 0 and ka in (2, 6, 10): sync = ka + 5
            if p == 1 and ka == 13 and not OPT.get('mergeland'): sync = 31
            rds = []
            if g + 2 < 64:
                for t in reads(g + 2):
                    if t.startswith('ds_'): rds.append(('rd', t, g + 2))
            if g + 3 < 64 and (g + 3) % 16 == 0: late_x = [t for t in reads(g + 3) if not t.startswith('ds_')]
            else: late_x = []
            mem = []
            if memq:
                mr = OPT.get('mrate', 1); n = int((g + 1) * mr) - int(g * mr); n = OPT.get('mfirst', n) if len(dma_pos) < 16 else n; mem = memq[:n]; memq = memq[n:]
            elif wdq and not (p & 1 and ka == SB):
                left = W1 - g
                n = (len(wdq) + left - 1) // left if len(wdq) >= left else int((g + 1) * wrate) - int(g * wrate)
                mem = wdq[:n]; wdq = wdq[n:]
            if ka <= 1 and pre:
                n = 6 if ka == 0 else len(pre); val += pre[:n]; pre = pre[n:]
            o1 = 1 if p & 1 else 0
            budget = tot * (ka + 1 - o1) / (k1 - o1)
            if p & 1 and ka <= 1: budget = -1
            if p & 1 and ka == SB: rds = rds + [t for t in getstats(p-1) if t.startswith('ds_')]
            if p & 1 and ka == 1: val += [t for t in getstats(p-1) if not t.startswith('ds_')]
            while bg and (done + vcost(bg[0])/2 <= budget or ka == k1 - 1) and not (p & 1 and ka <= SB and nbg - len(bg) >= nind):
                done += vcost(bg[0]); val.append(bg.pop(0))
            if g == 48 + OPT.get('esamp', 8) - 1: val += ['v_lshlrev_b32 v5, 7, v3', 'v_lshl_add_u32 v5, v2, 28, v5', 'v_min_u32 v0, 1, v2', 'v_xor_b32 v0, 1, v0', 'v_add_u32 v3, s74, v4']
            if g == 48 + OPT.get('esamp', 8): mem = [f'buffer_load_dword v9, v5, {WSR}, s62 offen{LD}'] + mem
            if g == 48 + OPT.get('echk', 11): val += [f'v_cmp_ne_u32 vcc, v0, v9\n s_cmp_eq_u64 vcc, 0\n s_cselect_b32 s38, s34, 0']
            if g > 48 + OPT.get('echk', 11):
                er = OPT.get('erate', 1); mem = mem + eq[:er]; eq = eq[er:]
            mf = []
            for m in range(2):
                b_ = V(slot(g, m), 4)
                for n in range(3):
                    d = V(acc(p, n, m, ka & 1), 4)
                    first = ka == 0 or (n == 2 and ka == 1 and hw)
                    mf.append(f'v_mfma_f32_16x16x32_bf16 {d}, {A(12*ka+4*n,4)}, {b_}, {"0" if first else d}')
            mf = [mf[i] for i in (0, 3, 4, 1, 2, 5)]
            if p % 2 == 0: mf.insert(0, f'v_mfma_f32_16x16x32_bf16 {V(GR,4)}, {V(slot(g,0),4)}, {V(slot(g,0),4)}, {"0" if ka==0 else V(GR,4)}')
            heads = list(rds)
            for i, t in enumerate(mem): heads.insert(min(len(heads), 2 + 2*i + (1 if len(mem) == 1 else 0)), t)
            N = len(mf)
            ftot = sum(map(hcost, heads)) + sum(hcost(t) if ismem(t) else vcost(t) for t in val) + 4*len(late_x); fd = 0
            flush_val = ka == 15 or (p == 2 and ka == k1 - 1) or (p & 1 and ka == 1) or g - 48 in (OPT.get('esamp', 8) - 1, OPT.get('echk', 11))
            for i, t in enumerate(mf):
                k(t)
                last = i == N - 1
                if i == 0 and sync is not None:
                    if sync == 'stat':
                        assert not pre and not any(x.startswith('ds_write') for x in val)
                        k.wait(lg=k.nlg - stat_pos)
                        if p == 3 or OPT.get('mergeland'): k(f's_waitcnt vmcnt({min(63, k.nvm - (st_pos if p == 3 else dma_pos[31]))})')
                        k('s_barrier')
                        if p == 3 and hw: k(f'v_mov_b32 v{MUV}, 0\n v_mov_b32 v{MUV+1}, 1\n s_mov_b64 exec, 1\n buffer_store_dword v{MUV+1}, v{MUV}, {WSR}, s41 offen{ST}\n s_mov_b64 exec, -1')
                    else: landed(sync)
                if i == 1: island(g)
                nh = 0
                nxt = val[0] if val and ismem(val[0]) else (heads[0] if heads else None)
                if last and g + 1 < 64: k.wait(lg=k.nlg - rd_pos[g + 1])
                elif salu and (nxt is None or hcost(nxt) == 4) and not (i == 1 and OPT.get('isl')): k(salu.pop(0))
                while True:
                    if val and ismem(val[0]) and nh == 0: f = val.pop(0)
                    elif heads and (nh == 0 or len(heads) > N - 1 - i): f = heads.pop(0)
                    else: break
                    emit_mem(f); fd += hcost(f); nh += 1
                if last:
                    for x in late_x: k(x)
                while val and ((not ismem(val[0]) and fd + vcost(val[0])/2 <= ftot * (i+1) / N + 1e-6) or (last and flush_val)):
                    f = val.pop(0)
                    if ismem(f): emit_mem(f); fd += hcost(f)
                    else: k(f); fd += vcost(f)
            assert not heads
            if p == 2 and ka == k1 - 1: st_pos = k.nvm
        assert not bg and not val
        if p == 0: stamp(k, 9)
        if OPT.get('pst'): stamp(k, 1+p, True)
    while salu: k(salu.pop(0))
    assert not wdq
    stamp(k, 10)
    ep = epilogue(3); ne = OPT.get('eepi', 0); gap = 5
    for i, t in enumerate(ep):
        k(t)
        if i % gap == gap - 1 and ne > 0: k(eq.pop(0)); ne -= 1
    assert ne == 0
    if OPT.get('echk') > 15: k(f'v_cmp_ne_u32 vcc, v0, v9\n s_cmp_eq_u64 vcc, 0\n s_cselect_b32 s38, s34, 0')
    if OPT.get('pst'): stamp(k, 5, True)
    return 22 - len(eq)

def hload(hf, u, R):
    return f'buffer_load_dwordx4 {A(88*hf+4*u,4)}, v3, {R}, s75 offen offset:{2048*hf}{LD}\n ' + (f's_add_u32 s75, s75, {4*HFS}' if u < 21 else 's_mov_b32 s75, 0')

def redo(k, soff, hf, n, again=None, pre=None):
    uid[0] += 1; u = uid[0]
    k(f's_cmp_lg_u32 s38, 0\n s_cbranch_scc1 L_sd{u}')
    st = k.state()
    k('s_mov_b32 s46, 0')
    if pre: k(f'v_cmp_ne_u32 vcc, v0, v{pre}\n s_cbranch_vccz L_sg{u}')
    k.label(f'L_sp{u}')
    k(f"""buffer_load_dword v6, v5, {WSR}, {soff} offen{LD}
    s_add_u32 s46, s46, 1
    s_waitcnt vmcnt(0)
    v_cmp_ne_u32 vcc, v0, v6
    s_cmp_gt_u32 s46, {SPIN}
    s_cbranch_scc1 L_sg{u}
    s_cbranch_vccnz L_sp{u}""")
    k.label(f'L_sg{u}')
    k('s_mov_b32 s75, 0')
    for j in range(n): k(hload(hf, j, RB))
    if again: again()
    k.restore(st)
    k.vm = [set()] * 8 + [{('a', 88*hf+4*j+r) for r in range(4)} for j in range(n)]
    k.label(f'L_sd{u}')

def spin(k, reg, soff):
    uid[0] += 1; u = uid[0]
    k(f'v_cmp_ne_u32 vcc, v0, v{reg}\n s_mov_b32 s46, 0\n s_cbranch_vccz L_sd{u}')
    st = k.state()
    k.label(f'L_sp{u}')
    k(f"""buffer_load_dword v{reg}, v5, {WSR}, {soff} offen{LD}
    s_add_u32 s46, s46, 1
    s_waitcnt vmcnt(0)
    v_cmp_ne_u32 vcc, v0, v{reg}
    s_cmp_gt_u32 s46, {SPIN}
    s_cbranch_scc1 L_sd{u}
    s_cbranch_vccnz L_sp{u}""")
    k.restore(st)
    k.label(f'L_sd{u}')

QS, INS, PS = 1152, 4736, 9472
def p4(k, n0, nst):
    HR, RD, SUM = 32, 40, 128
    PRE = OPT.get('p4pre', 14)
    EP = OPT.get('epost', 6)
    k.vm = [{('a', 4*j+r) for r in range(4)} for j in range(n0)] + [set()] * nst
    if OPT.get('sbar'): k('s_barrier')
    el = [hload(0, j, RC) for j in range(n0, n0 + EP)]
    if not OPT.get('mix'):
        for t in el: k(t)
        el = []
    U0 = n0 if not OPT.get('nopre') else 0
    n0 += EP
    setup = f"""s_mov_b32 s28, s18
    s_and_b32 s29, s19, 0xffff
    s_mov_b32 s30, {S*D*2}
    s_lshr_b32 s65, s2, 5
    v_lshrrev_b32 v16, 3, v1
    v_bfe_u32 v17, v1, 1, 2
    s_lshl_b32 s46, s65, 2
    v_add_u32 v17, s46, v17            ; 16-column block
    v_sub_u32 v18, 31, v17
    v_min_u32 v18, v17, v18
    v_lshlrev_b32 v18, 17, v18
    v_lshrrev_b32 v17, 4, v17
    v_lshl_add_u32 v18, v17, 16, v18
    v_lshl_add_u32 v18, v16, 4, v18
    v_and_b32 v17, 1, v1
    v_lshl_add_u32 v8, v17, 15, v18    ; residual
    s_lshl_b32 s66, s73, 9
    s_lshl_b32 s46, {WAVE}, 7
    s_add_u32 s66, s66, s46
    s_add_u32 s66, s66, {HRES}
    v_mov_b32 v20, 0
    v_mov_b32 v21, 1
    s_add_u32 s41, s41, 0x8000
    s_lshr_b32 s46, s73, 2
    s_lshl_b32 s46, s46, 17
    s_and_b32 s44, s73, 3
    s_lshl_b32 s44, s44, 2
    s_add_u32 s44, s44, {WAVE}
    s_lshl_b32 s44, s44, 10
    s_add_u32 s67, s46, s44
    s_lshl_b32 s45, s65, 7
    s_add_u32 s67, s67, s45
    s_add_u32 s68, s67, 0x2000
    v_and_b32 v9, 7, v1
    v_lshlrev_b32 v9, 4, v9
    v_and_b32 v18, 3, v16
    v_lshl_add_u32 v9, v18, 15, v9
    v_lshrrev_b32 v18, 2, v16
    v_lshl_add_u32 v9, v18, 14, v9     ; output
    v_lshrrev_b32 v18, 5, v1
    v_lshl_add_u32 v10, v18, 6, v4
    s_mul_i32 s44, {WAVE}, {PS}
    v_add_u32 v10, s44, v10            ; partial sums, write
    v_bfe_u32 v18, v1, 2, 1
    v_mul_u32_u24 v11, {INS}, v18
    v_bfe_u32 v18, v1, 1, 1
    v_mul_u32_u24 v18, 576, v18
    v_add_u32 v11, v11, v18
    v_lshl_add_u32 v11, v16, 4, v11
    v_lshl_add_u32 v11, v17, 3, v11
    s_lshl_b32 s44, {WAVE}, 7
    v_add_u32 v11, s44, v11            ; partial sums, read
    v_add_u32 v12, {4*PS}, v11""".split('\n')
    def resid(hf): k(f'buffer_load_dwordx4 {V(HR+4*hf,4)}, v8, {WSR}, s66 offen offset:{1024*hf}{LD}')
    def mf(hf, u, i):
        d = V(ACC+32*hf+16*i, 16)
        return f'v_mfma_f32_32x32x16_bf16 {d}, {wd_reg(u, i)}, {A(88*hf+4*u,4)}, {"0" if u==0 else d}'
    def mm(hf, issued, hook):
        q = []
        for j in range(22):
            if hf == 0 and j >= OPT.get('wdin', 22) and j % 2 == 0:
                w = wd_loads(j); q += [lambda t=t: k(t) for t in w[:3] + [w[3] + '\n' + w[4]]]
            if j >= issued: q.append(lambda j=j: k(hload(hf, j, RB)))
        q.append(lambda: resid(hf))
        TL = OPT.get('tl', 0) if hf == 1 else 0
        for u in range(U0 if hf == 0 else 0, 22 - TL):
            for i in range(2):
                k(mf(hf, u, i))
                if q and (i == 0 or len(q) > 22 - u - OPT.get('lead', 8)): q.pop(0)()
                hook(u, i)
    def red_write(hf):
        o = [f'ds_write_b128 v10, {V(ACC+32*hf+16*i+4*q,4)} offset:{4*PS*hf+INS*i+QS*q}' for i in range(2) for q in range(4)]
        for j in range(4):
            o += [f'v_lshlrev_b32 v{SUM+4*(j&1)+(j>>1)}, 16, v{HR+4*hf+j}', f'v_and_b32 v{SUM+4*(j&1)+2+(j>>1)}, 0xffff0000, v{HR+4*hf+j}']
        return o
    def red_read(hf, pk=True):
        R = lambda w, q: (RD + 8*w + 2*q) if w < 3 else SUM + 8 + 2*q
        o = [f'ds_read_b64 {V(R(w,q),2)}, v{11+hf} offset:{PS*w+QS*q}' for w in range(4) for q in range(4)]
        if pk: o += [f'v_pk_add_f32 {V(SUM+2*q,2)}, {V(SUM+2*q,2)}, {V(R(w,q),2)}' for w in range(4) for q in range(4)]
        else: o += [f'v_add_f32 v{SUM+2*q+h}, v{SUM+2*q+h}, v{R(w,q)+h}' for w in range(4) for q in range(4) for h in range(2)]
        o += [f'v_cvt_pk_bf16_f32 v{HR+4*hf+j}, v{SUM+4*(j&1)+(j>>1)}, v{SUM+4*(j&1)+2+(j>>1)}' for j in range(4)]
        return o + [f'buffer_store_dwordx4 {V(HR+4*hf,4)}, v9, {RA}, s{67+hf} offen{OPT.get("ost", "")}']
    pre = [mf(0, u, i) for u in range(U0) for i in range(2)]
    for t in pre:
        k(t)
        for x in setup[:5]: k(x)
        setup = setup[5:]
    while setup or el:
        if el: k(el.pop(0))
        for x in setup[:4]: k(x)
        setup = setup[4:]
    k(f's_waitcnt vmcnt({EP})'); k('s_barrier')
    only_wave(k, 0, lambda: k(f's_mov_b64 exec, 1\n buffer_store_dword v21, v20, {WSR}, s41 offen{ST}'))
    stamp(k, 11)
    redo(k, 's62', 0, n0, lambda: [k(t) for t in pre])
    if OPT.get('p4st'): stamp(k, 1, True)
    LP, LC = OPT.get('lpoll', 11), OPT.get('lchk', 15)
    nl = [0]
    def hook0(u, i):
        if u == LP and i == 1: k(f'buffer_load_dword v6, v5, {WSR}, s63 offen{LD}')
        if u == LC and i == 0: k('v_cmp_ne_u32 vcc, v0, v6\n s_cmp_eq_u64 vcc, 0\n s_cselect_b32 s38, s34, 0')
        if u == OPT.get('lp2', -1) and i == 0: k(f'buffer_load_dword v7, v5, {WSR}, s63 offen{LD}')
        if (u, i) > (LC, 0) and (i == 1 or OPT.get('lrate2')): k(hload(1, nl[0], RC)); nl[0] += 1
    mm(0, n0, hook0)
    if OPT.get('p4st'): stamp(k, 2, True)
    for j, t in enumerate(red_write(0)):
        k(t)
        if j < OPT.get('lmid', 5): k(hload(1, nl[0], RC)); nl[0] += 1
    if OPT.get('p4st'): stamp(k, 3, True)
    redo(k, 's63', 1, nl[0], pre=7 if OPT.get('lp2') else None)
    if OPT.get('p4st'): stamp(k, 4, True)
    rr = red_read(0, False)
    def hook1(u, i):
        if u == 1 and i == 1: k.wait(lg=0); k('s_barrier')
        if u >= 2:
            for _ in range(4 if i else 2):
                if rr: k(rr.pop(0))
    mm(1, nl[0], hook1)
    assert not rr
    if OPT.get('p4st'): stamp(k, 5, True)
    TL = OPT.get('tl', 0); rw = red_write(1)
    for u in range(22 - TL, 22): k(mf(1, u, 0))
    for j, u in enumerate(range(22 - TL, 22)):
        k(mf(1, u, 1))
        if j == 0:
            for t in rw[8:]: k(t)
            rw = rw[:8]
        elif len(rw) > 4 and j >= 2: k(rw.pop(0))
    for t in rw: k(t)
    k.wait(lg=0); k('s_barrier')
    for t in red_read(1): k(t)

DOC = """;
;   phase 1  rows: LN1 statistics + Z = LN1(x) C (two MFMA steps, 32 x 16);  weights: W' = C^T [Wgate|Wup];
; Hand-offs: write-through (sc1) stores, vmcnt wait, workgroup barrier, then a counter / flag; consumers use sc1 loads.
"""
def fused():
    k = K()
    prologue(k)
    if OPT.get('prio'): only_wave(k, 0, lambda: k('s_setprio 3'))
    k(f's_cmp_ge_u32 s2, {NZ}\n s_cbranch_scc1 L_notz')
    st0 = k.state()
    p1_z(k)
    k.label('L_join1')
    k.vm = [set()] * 40; k.lg = []
    setup(k)
    stamp(k, 3)
    negs = lambda: [p2_negs(k, b) for b in (B1, A2, B3, A4)]
    def ztab():
        if OPT.get('ztpre'): return
        uid[0] += 1; u = uid[0]
        k((f's_cmp_ge_u32 s2, {NZ}' if OPT.get('ttpre') else 's_cmp_lg_u32 s71, 0') + f'\n s_cbranch_scc1 L_zt{u}')
        st_ = k.state()
        for t in ztl: k(t)
        k.restore(st_); k.label(f'L_zt{u}')
    stamp(k, 8, 'z')
    k(f's_cmp_lg_u32 {WAVE}, 0\n s_cbranch_scc1 L_b1o')
    st = k.state()
    k('s_mov_b64 exec, 1\n s_mov_b32 s46, 0\n s_waitcnt vmcnt(0)')
    k.label('L_go')
    k(f"""v_cmp_ne_u32 vcc, 0, v254
    s_add_u32 s46, s46, 1
    s_cbranch_vccnz L_gone
    global_load_dword v254, v250, s[20:21]{LD}
    s_waitcnt vmcnt(0)
    s_cmp_lt_u32 s46, {SPIN}
    s_cbranch_scc1 L_go""")
    k.restore(st); k.vm = []
    k.label('L_gone')
    stamp(k, 9, 'z')
    k('s_barrier')
    k(f's_cmp_eq_u32 s71, 0\n s_cbranch_scc1 L_b1a\n buffer_store_dword v251, v250, {WSR}, s71 offen{ST}\n s_mov_b64 exec, -1\n s_branch L_b1n')
    k.label('L_b1a')
    k(f'buffer_atomic_add v251, v250, {WSR}, s74 offen sc0 sc1\n s_mov_b64 exec, -1')
    stamp(k, 10, 'z')
    setup_late(k); arrive_check(k, 250, 's75', 19, 1)
    k('s_mov_b64 exec, -1'); ztab()
    k('s_mov_b64 exec, -1\n s_branch L_b1m')
    k.restore(st); k.label('L_b1o')
    k('s_waitcnt vmcnt(0)')
    stamp(k, 9, 'z')
    k('s_barrier')
    k.label('L_b1n')
    stamp(k, 10, 'z')
    if OPT.get('zfirst'): ztab()
    setup_late(k)
    if not OPT.get('zfirst'): ztab()
    k.label('L_b1m')
    k('s_waitcnt vmcnt(0)')
    negs()
    wd_finish(k)
    rbclear = lambda: k(f'v_lshlrev_b32 v252, 15, v1\n s_mov_b64 exec, 3\n buffer_store_dword v250, v252, {WSR}, s41 offen{ST}')
    k.label('L_b1q')
    only_wave(k, 1, rbclear)
    only_wave(k, 0, lambda: poll(k, 250, 1))
    k.label('L_b1x')
    k.vm = []
    k('s_barrier')
    stamp(k, 4)
    stamp(k, 11, 'z'); stamp(k, 1, 'b')
    barrier2(k, p2(k))
    n0 = p3_body(k, False)
    nst = 0
    nst = 2
    k.label('L_join3')
    k.fence()
    p4(k, n0, nst)
    stamp_out(k, 12)
    k.label('L_end'); k('s_endpgm')
    k.restore(st3); k.label('L_p3h'); assert p3_body(k, True) == n0
    assert not any(k.vm[-nst:]); k('s_branch L_join3')
    k.restore(st0); k.label('L_notz')
    p1_w(k)
    if OPT.get('slowjoin'): k('s_branch L_join1')
    else:
        stamp(k, 3)
        if OPT.get('slate'): twiddles(k); negs()
        k(f"""s_lshl_b32 s44, s74, 3
        s_add_u32 s44, s44, {FLG}
        v_and_b32 v252, 7, v1
        v_lshlrev_b32 v252, 8, v252
        v_mov_b32 v254, v254               ; the go word has been read before the flags are sampled
        buffer_load_dword v253, v252, {WSR}, s44 offen{LD}""")
        if not OPT.get('slate'): twiddles(k); negs()
        stamp(k, 8, 'z')
        k('s_waitcnt vmcnt(1)')
        def go1():
            k('s_mov_b32 s46, 0')
            k.label('L_go2')
            k(f"""v_cmp_ne_u32 vcc, 0, v254
            s_add_u32 s46, s46, 1
            s_cbranch_vccnz L_gone2
            global_load_dword v254, v250, s[20:21]{LD}
            s_waitcnt vmcnt(0)
            s_cmp_lt_u32 s46, {SPIN}
            s_cbranch_scc1 L_go2""")
            k.label('L_gone2')
        only_wave(k, 1, go1)
        stamp(k, 9, 'z')
        k('s_barrier')
        stamp(k, 10, 'z')
        only_wave(k, 1, lambda: k(f's_mov_b64 exec, 1\n buffer_store_dword v251, v250, {WSR}, s71 offen{ST}'))
        k(f's_cmp_lg_u32 {WAVE}, 0\n s_cbranch_scc1 L_b1q')
        k(f'v_min_u32 v253, v253, v254\n v_cmp_eq_u32 vcc, 0, v253\n s_cbranch_vccnz L_b1q')
        k('s_branch L_b1x')
    k.restore(st_c); k.label('L_p1c')
    k(f's_cmp_ge_u32 s2, {NI0}\n s_cbranch_scc1 L_p1i')
    st1 = k.state()
    p1_t(k); k('s_branch L_join1')
    k.restore(st1); k.label('L_p1i'); p1_i(k); k('s_branch L_join1')
    o = header()
    o += f'; @launch grid=(256,1,1) block=(256,1,1) lds={STATL+4096}\n'
    o += DOC
    o += '.amdgcn_target "amdgcn-amd-amdhsa--gfx950"\n.text\n' + k.text()
    o += tables_text() + 'L_image_end:\n'
    o += '.section .rodata,"a"\n.p2align 6\n' + kd(KN, k)
    return o

if __name__ == '__main__':
    out = sys.argv[1]
    for a in sys.argv[2:]:
        key, _, val = a.partition('=')
        OPT[key] = eval(val) if val else True
    open(out, 'w').write(fused())
```

```python
import sys, math, struct
import numpy as np
from dsl import K
from design import *
import gen
from gen import V, A, Sg, fbits, TBL, tables_text, header, kd, NAME, srd, cmul, TPAD
del gen.tbl_data[1:3]
TBL['P2W'] -= 65536; TBL['P2S'] -= 65536

OPT = dict(stamps=False, gblate=True, tpost=True, every=48, mergeland=True, mrate=1.5, nopre=True, w0late=True, nA=6, c1=1, fpos=0, c2=1, prio=True, wgbfirst=False, wdshadow=True, wcont=True, nord=True, hold=True, esamp=8, e1end=13, echk=15, epost=8, wdend=62, lpoll=9, lchk=16, retouch=True, ntx=' nt', ntd=' nt', lp2=17, sbar=True, dpre=12, mfirst=2, zfirst=True, slate=True, zev=24, twe=True, th=True)
ST, LD = ' sc1', ' sc1'
WSR, RA, RB, RC = 's[24:27]', 's[28:31]', 's[32:35]', 's[36:39]'
WAVE = 's40'
KN = NAME + '_kernel'
SPIN = 400000
TW1, TW2 = 112, 128
B1, A4, A2, B3 = 144, 168, 192, 216
FA, GB = 200, 208
NZ, NC0, NI0 = 128, 216, 248
uid = [0]

def stamp(k, i, pm=False):
    if OPT.get('pst') and 1 <= i <= 5 and not pm: return
    if OPT.get('zdet') and 1 <= i <= 11 and pm != 'z': return
    if pm == 'z' and not OPT.get('zdet'): return
    if OPT.get('bdet') and 1 <= i <= 11 and pm != 'b': return
    if pm == 'b' and not OPT.get('bdet'): return
    if OPT['stamps']: k(f's_{"memtime" if OPT.get("pst") else "memrealtime"} s[{76+2*i}:{77+2*i}]')
def stamp_out(k, n):
    if not OPT['stamps']: return
    k.wait(vm=0, lg=0); stamp(k, n); n += 1; k.wait(lg=0)
    k(f's_lshl_b32 s44, s2, 8\n s_lshl_b32 s45, {WAVE}, 6\n s_add_u32 s44, s44, s45\n s_add_u32 s44, s44, {STAMP}')
    for i in range(16): k(f'v_mov_b32 v{8+i}, s{76+2*i}' if i < n else f'v_mov_b32 v{8+i}, 0')
    k('v_mov_b32 v24, 0\n s_mov_b64 exec, 1')
    for q in range(4): k(f'buffer_store_dwordx4 {V(8+4*q,4)}, v24, {WSR}, s44 offen offset:{16*q}')

def wsrd(k, base, end):
    k(f's_mov_b32 s{base}, s24\n s_mov_b32 s{base+1}, s25\n s_mov_b32 s{base+2}, {end}\n s_mov_b32 s{base+3}, 0x20000')

def tbl_addr(k, vp, soff):
    k(f"""s_add_u32 s46, s42, {soff}
    s_addc_u32 s47, s43, 0
    v_mov_b32 v{vp+1}, s47
    v_add_co_u32 v{vp}, vcc, s46, v4
    v_addc_co_u32 v{vp+1}, vcc, 0, v{vp+1}, vcc""")

def gb_loads(k):
    for q in range(8): k(f'global_load_dwordx4 {A(GB+4*q,4)}, v[8:9], off offset:{1024*q-4096}')

GV = 144
def gb_gen(k, zpath, T=176):
    cvt = 'v_cvt_pk_f16_f32' if zpath else 'v_cvt_pk_bf16_f32'
    k(f"""v_cmp_gt_u32 vcc, 8, v3
    v_and_b32 v{T}, 7, v3
    v_lshlrev_b32 v{T}, 5, v{T}
    v_mov_b32 v{T+1}, 0x80008000
    v_cndmask_b32 v{T+2}, 0, v{T+1}, vcc
    v_cndmask_b32 v{T+3}, v{T+1}, 0, vcc
    v_lshl_add_u32 v{T+4}, v2, 3, 1
    v_cvt_f32_u32 v{T+4}, v{T+4}
    v_mul_f32 v{T+4}, {fbits(1/1024)}, v{T+4}
    v_add_f32 v{T+5}, {fbits(2/1024)}, v{T+4}
    v_add_f32 v{T+6}, {fbits(4/1024)}, v{T+4}
    v_add_f32 v{T+7}, {fbits(6/1024)}, v{T+4}
    s_lshl_b32 s46, {WAVE}, 2
    v_cndmask_b32 v{T+1}, -1.0, 1.0, vcc
    s_sub_u32 s47, 32, s46
    v_mov_b32 v{T+8}, s47
    v_mov_b32 v{T+9}, s46
    v_cndmask_b32 v{T+8}, v{T+8}, v{T+9}, vcc
    v_add_u32 v{T+8}, v{T+8}, v{T}
    v_cvt_f32_u32 v{T+8}, v{T+8}""")
    def one(q, kf, off=None, sc=None):
        A_, G = T + 10, GV + 8*q
        for r in range(4):
            k(f'v_mul_f32 v{A_+r}, v{kf}, v{T+4+r}' if off is None else f'v_fma_f32 v{A_+r}, v{kf}, v{T+4+r}, v{off}')
            k(f'v_fract_f32 v{A_+r}, v{A_+r}')
        for r in range(4): k(f'v_sin_f32 v{A_+4+r}, v{A_+r}\n v_cos_f32 v{A_+r}, v{A_+r}')
        if sc is not None:
            for r in range(8): k(f'v_mul_f32 v{A_+r}, v{A_+r}, v{sc}')
        for h in range(2):
            k(f'{cvt} v{G+h}, v{A_+2*h}, v{A_+2*h+1}\n {cvt} v{G+4+h}, -v{A_+4+2*h}, -v{A_+4+2*h+1}')
    for q in range(4):
        one(q, T+8)
        for h in range(2): k(f'v_xor_b32 v{GV+8*q+2+h}, v{GV+8*q+4+h}, v{T+2}\n v_xor_b32 v{GV+8*q+6+h}, v{GV+8*q+h}, v{T+3}')
        if q < 3: k(f'v_add_f32 v{T+8}, v{T+8}, v{T+1}')
    def slot0():
        k(f"""v_cmp_gt_u32 vcc, 8, v3
        v_add_u32 v{T+8}, 16, v{T}
        v_cmp_eq_u32 s[46:47], 0, v3
        v_cndmask_b32 v{T+8}, v{T+8}, v{T}, vcc
        v_mov_b32 v{T+9}, 0x100
        v_mov_b32 v{T+18}, {fbits(math.sqrt(0.5))}
        v_mov_b32 v{T+19}, {fbits(0.25 if zpath else 0.0)}
        v_cndmask_b32 v{T+8}, v{T+8}, v{T+9}, s[46:47]
        v_cndmask_b32 v{T+18}, 1.0, v{T+18}, s[46:47]
        v_cndmask_b32 v{T+19}, 0, v{T+19}, s[46:47]
        v_cvt_f32_u32 v{T+8}, v{T+8}""")
        one(0, T+8, T+19, T+18)
        for o in (0, 4):
            for h in range(2): k(f'v_cndmask_b32 v{GV+o+2+h}, v{GV+o+h}, 0, vcc\n v_cndmask_b32 v{GV+o+h}, 0, v{GV+o+h}, vcc')
        k.fence()
    only_wave(k, 0, slot0)
    if not zpath:
        for i in range(32): k(f'v_accvgpr_write_b32 a{GB+i}, v{GV+i}')

def prologue(k):
    k.raw(f'.globl {KN}\n.p2align 8\n.type {KN},@function\n{KN}:')
    stamp(k, 0)
    k(f"""s_load_dwordx16 s[4:19], s[0:1], 0
    s_load_dwordx4 s[20:23], s[0:1], 64
    s_getpc_b64 s[42:43]""")
    k.raw('L_pc:')
    k(f"""s_cmp_ge_u32 s2, 256
    s_cbranch_scc1 L_end
    v_lshrrev_b32 v5, 6, v0
    v_and_b32 v1, 63, v0
    v_readfirstlane_b32 {WAVE}, v5
    s_lshr_b32 s44, s2, 3
    v_lshl_add_u32 v5, v5, 5, s44
    v_lshlrev_b32 v6, {7 if OPT.get('pf128') else 6}, v1
    v_lshl_add_u32 v5, v5, {13 if OPT.get('pf128') else 12}, v6      ; one dword per line""")
    k.raw('    v_min_u32 v5, L_image_end-L_pc-4, v5'); k.pos += 1
    k(f"""v_mov_b32 v7, s43
    v_add_co_u32 v6, vcc, s42, v5
    v_addc_co_u32 v7, vcc, 0, v7, vcc
    global_load_dword v255, v[6:7], off
    v_bfe_u32 v2, v0, 4, 2
    v_and_b32 v3, 15, v0
    v_lshlrev_b32 v4, 4, v1""")
    k.raw('    s_add_u32 s42, s42, tables-L_pc\n    s_addc_u32 s43, s43, 0'); k.pos += 2
    k(f's_cmp_ge_u32 s2, {NC0}\n s_cbranch_scc1 L_p1c')
    global st_c
    st_c = k.state()
    tbl_addr(k, 6, TBL['FA'])
    for c in range(2): k(f'global_load_dwordx4 {A(FA+4*c,4)}, v[6:7], off offset:{1024*c}')

def go_load(k, b):
    k(f'v_mov_b32 v{b}, 0\n global_load_dword v{b+4}, v{b}, s[20:21]{LD}')
def arrive_issue(k, b, cnt, go):
    k(f'v_mov_b32 v{b}, 0\n v_mov_b32 v{b+1}, 1\n s_mov_b64 exec, 1')
    if go:
        uid[0] += 1; u = uid[0]
        k('s_mov_b32 s46, 0')
        k.label(f'L_go{u}')
        k(f"""s_waitcnt vmcnt(0)
        v_cmp_ne_u32 vcc, 0, v{b+4}
        s_add_u32 s46, s46, 1
        s_cbranch_vccnz L_gone{u}
        global_load_dword v{b+4}, v{b}, s[20:21]{LD}
        s_cmp_lt_u32 s46, {SPIN}
        s_cbranch_scc1 L_go{u}""")
        k.label(f'L_gone{u}')
    k(f'buffer_atomic_add v{b+1}, v{b}, {WSR}, {cnt} offen sc0 sc1')
def arrive_check(k, b, flg, last, val):
    uid[0] += 1; u = uid[0]
    k(f"""s_mov_b64 exec, 0xff
    v_lshlrev_b32 v{b+2}, 11, v1
    v_mov_b32 v{b}, {val}
    v_readfirstlane_b32 s47, v{b+1}
    s_cmp_lg_u32 s47, {last}
    s_cbranch_scc1 L_nl{u}""")
    st = k.state()
    k(f'buffer_store_dword v{b}, v{b+2}, {WSR}, {flg} offen{ST}')
    k.restore(st)
    k.label(f'L_nl{u}')
def poll(k, b, val):
    uid[0] += 1; u = uid[0]
    k(f"""s_mov_b64 exec, 0xff
    v_lshlrev_b32 v{b+3}, 8, v1
    s_and_b32 s44, s2, 7
    s_lshl_b32 s44, s44, 11
    s_add_u32 s44, s44, {FLG}
    s_mov_b32 s46, 0""")
    k.label(f'L_bp{u}')
    k(f"""buffer_load_dword v{b+1}, v{b+3}, {WSR}, s44 offen{LD}
    s_add_u32 s46, s46, 1
    s_waitcnt vmcnt(0)
    v_cmp_gt_u32 vcc, {val}, v{b+1}
    s_cmp_gt_u32 s46, {SPIN}
    s_cbranch_scc1 L_bd{u}
    s_cbranch_vccnz L_bp{u}""")
    k.label(f'L_bd{u}')
    k('s_mov_b64 exec, -1')
def only_wave(k, w, fn):
    uid[0] += 1; u = uid[0]
    k(f's_cmp_lg_u32 {WAVE}, {w}\n s_cbranch_scc1 L_ow{u}')
    st = k.state(); fn(); k('s_mov_b64 exec, -1'); k.restore(st); k.label(f'L_ow{u}')

def p2_tables(k, vp=26):
    k(f's_lshl_b32 s44, {WAVE}, 13\n s_add_u32 s44, s44, {TBL["P2W"]+4096}')
    tbl_addr(k, vp, 's44'); tbl_addr(k, vp+2, TBL['P2S']+4096)
    o = [f'global_load_dwordx4 {V(B1+6*u+2,4)}, {V(vp,2)}, off offset:{1024*u-4096}' for u in range(4)]
    o += [f'global_load_dwordx4 {V(A2+6*u+2,4)}, {V(vp+2,2)}, off offset:{1024*u-4096}' for u in range(4)]
    o += [f'global_load_dwordx4 {V(B3+6*u+2,4)}, {V(vp+2,2)}, off offset:{1024*u}' for u in range(4)]
    o += [f'global_load_dwordx4 {V(A4+6*u+2,4)}, {V(vp,2)}, off offset:{1024*u}' for u in range(4)]
    return o
def flush(k):
    sp, k.sprinkle = k.sprinkle, []
    for t in sp: k(t)

def gtouch(k, dst):
    k(f"""s_bitcmp1_b32 s2, 0
    s_cselect_b32 s36, s14, s12
    s_cselect_b32 s37, s15, s13
    s_and_b32 s37, s37, 0xffff
    s_mov_b32 s38, {D*F*2}
    s_lshr_b32 s44, s2, 3
    s_lshl_b32 s44, s44, 2
    s_add_u32 s44, s44, {WAVE}
    s_mul_i32 s44, s44, {8*2752}
    s_bfe_u32 s46, s2, 0x20001
    s_mul_i32 s46, s46, 704
    s_add_u32 s44, s44, s46
    v_and_b32 v15, 7, v1
    v_lshlrev_b32 v15, 7, v15
    v_min_u32 v15, 700, v15
    v_lshrrev_b32 v16, 3, v1
    v_mul_u32_u24 v16, 2752, v16
    v_add_u32 v15, v15, v16
    s_mov_b32 exec_lo, 0x7f7f7f7f
    s_mov_b32 exec_hi, 0x7f7f7f7f
    buffer_load_dword v{dst}, v15, {RC}, s44 offen
    s_mov_b64 exec, -1""")

def p1_z(k):
    X, DA, TR, SS, WL, WO = 32, 48, 80, 96, 104, 120
    k(f"""s_and_b32 s44, s2, 7
    s_lshr_b32 s45, s2, 4
    s_lshl_b32 s45, s45, 3
    s_add_u32 s44, s44, s45
    s_lshl_b32 s44, s44, 1
    s_bfe_u32 s45, s2, 0x10003
    s_add_u32 s60, s44, s45            ; (t,g,beta,bq)
    s_lshr_b32 s61, s60, 3
    s_lshl_b32 s61, s61, 7
    s_and_b32 s44, s60, 7
    s_lshl_b32 s44, s44, 2
    s_add_u32 s44, s44, s61
    s_add_u32 s44, s44, {WAVE}
    s_lshl_b32 s56, s44, 10
    s_add_u32 s57, s56, 0x8000
    s_add_u32 s58, s56, 0x10000
    s_add_u32 s59, s56, 0x18000
    s_mov_b32 s38, {S*D*2}
    s_mov_b32 s39, 0x20000
    s_bfe_u32 s48, s2, 0x20003
    s_and_b32 s44, s2, 7
    s_lshl_b32 s44, s44, 2
    s_add_u32 s48, s48, s44
    s_and_b32 s44, s2, 0x60
    s_add_u32 s48, s48, s44
    s_add_u32 s48, s48, 128""")
    wt_rows(k, 's48', 49)
    k(f's_mul_i32 s44, {WAVE}, {64*514}\n s_add_u32 s49, s49, s44')
    if OPT.get('gp', 0) == 0: gb_gen(k, True)
    k.wait(lg=0)
    stamp(k, 1, 'z')
    k('s_mov_b32 s36, s4\n s_and_b32 s37, s5, 0xffff')
    for i in range(4): k(f'buffer_load_dwordx4 {V(X+4*i,4)}, v4, {RC}, s{56+i} offen{OPT.get("ntx", "")}')
    if OPT.get('gp', 0) == 1: gb_gen(k, True)
    k(WSRDS)
    if not OPT.get('nowpf'):
        k(f"""v_lshrrev_b32 v15, 1, v3
        v_mul_u32_u24 v15, 514, v15
        v_and_b32 v16, 1, v1
        v_mul_u32_u24 v16, 126, v16
        v_add_u32 v15, v15, v16
        s_mov_b32 s45, 0x5555
        s_and_b32 s44, s48, 3
        s_cmp_eq_u32 s44, 3
        s_cselect_b32 exec_lo, 0xffff, {'s45' if OPT.get('th') else '0xffff'}
        s_mov_b32 exec_hi, 0
        buffer_load_ushort v{WO}, v15, {RA}, s49 offen{OPT.get('ntw', '')}
        buffer_load_ushort v{WO+1}, v15, {RB}, s49 offen{OPT.get('ntw', '')}
        s_mov_b64 exec, -1""")
    if OPT.get('wreal'): k(f'buffer_load_dwordx4 {V(WL,4)}, v11, {RA}, s49 offen\n buffer_load_dwordx4 {V(WL+4,4)}, v11, {RB}, s49 offen')
    if OPT.get('gbz') == 0: gb_loads(k)
    if OPT.get('gp', 0) == 2: gb_gen(k, True)
    k('v_mov_b32 v15, v11')
    wl_ = [f'buffer_load_dwordx4 {V(WL,4)}, v15, {RA}, s49 offen', f'buffer_load_dwordx4 {V(WL+4,4)}, v15, {RB}, s49 offen']
    wt_dest(k, 's48', 50)
    k(f"""s_lshl_b32 s44, {WAVE}, 2
    s_add_u32 s44, s44, 0xa000
    v_add_u32 v12, s44, v12
    s_lshl_b32 s44, {WAVE}, 5
    v_xor_b32 v13, s44, v4
    s_lshl_b32 s44, {WAVE}, 11
    s_add_u32 s44, s44, 0xa000
    v_add_u32 v13, s44, v13
    v_xor_b32 v14, 16, v13
    s_lshl_b32 s44, {WAVE}, 11
    s_add_u32 s50, s50, s44
    s_add_u32 s51, s50, 1024""")
    srd(k, 24, 22, WS_USED)
    k(f"""s_lshl_b32 s44, {WAVE}, 12
    v_add_u32 v30, s44, v4
    v_lshrrev_b32 v31, 1, v4
    v_add_u32 v31, s44, v31
    v_mul_u32_u24 v6, {TPAD}, v3
    v_lshl_add_u32 v6, v2, 8, v6
    s_lshl_b32 s44, {WAVE}, 6
    s_add_u32 s44, s44, 16384
    v_add_u32 v6, s44, v6
    s_mul_i32 s44, {WAVE}, {4*TPAD}
    s_add_u32 s44, s44, 16384
    v_add_u32 v7, s44, v4
    v_cmp_eq_u32 vcc, 0, v3
    v_cndmask_b32 v8, 0, 1.0, vcc
    s_mov_b32 s62, 0x3f803f80
    v_lshlrev_b32 v9, 6, v3
    v_lshl_add_u32 v9, v2, 4, v9
    s_lshl_b32 s44, s60, 14
    s_lshl_b32 s63, s60, 7
    s_add_u32 s63, s63, {SM}
    s_lshl_b32 s47, {WAVE}, 12
    s_add_u32 s44, s44, s47
    s_add_u32 s64, s44, {ZT}
    s_lshl_b32 s44, {WAVE}, 4
    s_add_u32 s44, s44, 0x9000
    v_lshl_add_u32 v10, v2, 2, s44""")
    if OPT.get('gp', 0) == 3: gb_gen(k, True)
    tl = []
    if True:
        stamp(k, 2, 'z')
        for i in range(4):
            k(f'ds_write_b128 v30, {V(X+4*i,4)} offset:{1024*i}')
            if i == 0: stamp(k, 1)
            for r in range(2): k(f'ds_read_b64_tr_b16 {V(TR+4*i+2*r,2)}, v31 offset:{1024*i+512*r}')
            for j in range(4):
                k(f'v_dot2_f32_bf16 v{SS+i}, v{X+4*i+j}, s62, {"0" if j==0 else V(SS+i)}')
                k(f'v_dot2_f32_bf16 v{SS+4+i}, v{X+4*i+j}, v{X+4*i+j}, {"0" if j==0 else V(SS+4+i)}')
        stamp(k, 3, 'z')
        k.sprinkle = tl; k.every = OPT.get('zev', 40); k.since = 100
        stamp(k, 4, 'z')
        mf = [f'v_mfma_f32_16x16x32_bf16 {V(DA+8*i+4*c,4)}, {V(TR+4*i,4)}, {A(FA+4*c,4)}, 0' for i in range(4) for c in range(2)]
        k(mf.pop(0)); k(mf.pop(0))
        for b in (SS, SS+4):
            k(f'v_permlane32_swap_b32 v{b}, v{b+2}\n v_permlane32_swap_b32 v{b+1}, v{b+3}')
        for b in (SS, SS+4):
            k(f'v_add_f32 v{b}, v{b}, v{b+2}\n v_add_f32 v{b+1}, v{b+1}, v{b+3}')
        k(mf.pop(0))
        for b in (SS, SS+4): k(f'v_permlane16_swap_b32 v{b}, v{b+1}')
        for b in (SS, SS+4): k(f'v_add_f32 v{b}, v{b}, v{b+1}')
        for sh in (8, 4, 2, 1):
            k(mf.pop(0))
            for b in (SS, SS+4): k(f'v_add_f32_dpp v{b}, v{b}, v{b} row_ror:{sh} row_mask:0xf bank_mask:0xf')
        k(mf.pop(0))
        k(f"""v_mul_f32 v{SS}, {fbits(1/512)}, v{SS}
        v_mul_f32 v{SS+4}, {fbits(1/512)}, v{SS+4}
        v_fma_f32 v{SS+4}, -v{SS}, v{SS}, v{SS+4}
        v_max_f32 v{SS+4}, 0, v{SS+4}
        v_add_f32 v{SS+4}, {fbits(1e-5)}, v{SS+4}
        v_rsq_f32 v{SS+1}, v{SS+4}
        v_mul_f32 v{SS+2}, {fbits(-2.0)}, v{SS}
        v_mul_f32 v{SS+2}, v{SS+2}, v{SS+1}
        v_mul_f32 v{SS+3}, {fbits(1/16)}, v{SS+1}""")
        for i in range(4):
            k(f'v_readlane_b32 s{68+2*i}, v{SS+3}, {16*i}\n v_readlane_b32 s{69+2*i}, v{SS+2}, {16*i}')
        for i in range(4):
            d = DA + 8*i
            k(f'v_mul_f32 v{TR}, s{69+2*i}, v8')
            for h in range(2):
                k(f'v_pk_mul_f32 {V(d+4+2*h,2)}, {V(d+4+2*h,2)}, {Sg(68+2*i,2)} op_sel_hi:[1,0]')
            for h in range(2):
                k(f'v_pk_fma_f32 {V(d+2*h,2)}, {V(d+2*h,2)}, {Sg(68+2*i,2)}, {V(TR,2)} op_sel_hi:[1,0,0]')
            for h in (2, 3, 0, 1): k(f'v_cvt_pk_f16_f32 v{X+4*i+h}, v{d+2*h}, v{d+2*h+1}')
            k(f'ds_write_b128 v6, {V(X+4*i,4)} offset:{16*i}')
        k(f"""v_mul_f32 v{SS+4}, v{SS+4}, v{SS+1}
        ds_write2_b32 v10, v{SS+4}, v{SS} offset0:0 offset1:16""")
        if OPT.get('wlp', 0) == 0:
            for t in wl_: k(t)
        def wt_a():
            for i in range(8):
                k(f'v_perm_b32 v{WO+i}, v{WL+4+(i>>1)}, v{WL+(i>>1)}, s{53+(i&1)}')
                k(f'ds_write_b32 v12, v{WO+i} offset:{128*i}')
        if OPT.get('wtearly'): wt_a()
        k.wait(lg=0); k('s_barrier')
        if OPT.get('zst'): stamp(k, 1)
        stamp(k, 5, 'z')
        for q in range(4): k(f'ds_read_b128 {V(TR+4*q,4)}, v7 offset:{TPAD*q}')
        k(f'ds_read_b128 {V(SS,4)}, v4 offset:0x9000')
        if OPT.get('wlp', 0) == 1:
            for t in wl_: k(t)
        go_load(k, 250)
        wt_b = lambda: [k(f'ds_read_b128 {V(WL+4*n,4)}, v{13+n} offset:{1024*n}') for n in range(2)]
        wt_c = lambda: [k(f'buffer_store_dwordx4 {V(WL+4*n,4)}, v11, {WSR}, s{50+n} offen{ST}') for n in range(2)]
        if OPT.get('wtearly'): wt_b()
        for q in range(4):
            for o in range(2): k(f'v_mfma_f32_16x16x32_f16 {V(DA+8*q+4*o,4)}, {V(TR+4*q,4)}, {V(GV+8*q+4*o,4)}, 0')
        k.wait(lg=0)
        if OPT.get('wtearly'): wt_c()
        only_wave(k, 3, lambda: k(f's_mov_b64 exec, 0xff\n buffer_store_dwordx4 {V(SS,4)}, v4, {WSR}, s63 offen{ST}'))
        for q in range(4):
            for h in range(4): k(f'v_cvt_pk_f16_f32 v{X+4*q+h}, v{DA+8*q+2*h}, v{DA+8*q+2*h+1}')
            k(f'buffer_store_dwordx4 {V(X+4*q,4)}, v9, {WSR}, s64 offen offset:{1024*q}{ST}')
        stamp(k, 6, 'z')
        if not OPT.get('wtearly'):
            wt_a(); k.wait(lg=0); k('s_barrier'); wt_b(); wt_c()
        global ztl
        ztl = p2_tables(k)
        if OPT.get('ztpre'):
            for t in ztl: k(t)
        stamp(k, 2)

def p1_w(k):
    OP, DA = 32, 64
    TBASE = 32768
    k(f"""s_and_b32 s61, s2, 1               ; mu
    s_bfe_u32 s60, s2, 0x60001
    s_and_b32 s44, s60, 3
    s_lshl_b32 s44, s44, 1
    s_bfe_u32 s45, s60, 0x10002
    s_add_u32 s44, s44, s45
    s_andn2_b32 s45, s60, 7
    s_add_u32 s44, s44, s45
    s_cmp_lt_u32 s60, 40
    s_cselect_b32 s60, s44, s60        ; phi""" + ("""
    s_bfe_u32 s44, s2, 0x20001
    s_mul_i32 s44, s44, 11
    s_bfe_u32 s45, s2, 0x40003
    s_add_u32 s60, s44, s45""" if OPT.get('wcont') else '') + f"""
    s_mul_i32 s44, {WAVE}, {4*2752}
    s_lshl_b32 s45, s60, 6
    s_add_u32 s66, s44, s45
    v_lshrrev_b32 v10, 2, v1
    v_mul_u32_u24 v30, {16*2752}, v10
    v_and_b32 v11, 3, v1
    v_and_b32 v12, 1, v2
    v_lshlrev_b32 v12, 1, v12
    v_xor_b32 v13, v11, v12
    v_lshl_add_u32 v30, v13, 4, v30    ; DMA source
    s_lshl_b32 s67, {WAVE}, 13
    s_mov_b32 s38, {D*F*2}
    s_mov_b32 s39, 0x20000
    """)
    k(f"""s_bfe_u32 s64, s2, 0x40003
    s_lshl_b32 s64, s64, 2
    s_add_u32 s64, s64, {WAVE}
    s_mul_i32 s64, s64, {12*2752}
    s_bfe_u32 s46, s2, 0x20001
    s_mul_i32 s46, s46, 704
    s_add_u32 s64, s64, s46
    s_add_u32 s65, s64, {8*2752}
    v_and_b32 v14, 7, v1
    v_lshlrev_b32 v14, 7, v14
    v_min_u32 v14, 700, v14
    v_lshrrev_b32 v15, 3, v1
    v_mul_u32_u24 v15, 2752, v15
    v_add_u32 v14, v14, v15""")
    k.wait(lg=0)
    stamp(k, 1, 'z')
    k(f"""s_cmp_eq_u32 s61, 0
    s_cselect_b32 s36, s12, s14
    s_cselect_b32 s37, s13, s15
    s_and_b32 s37, s37, 0xffff""")
    if OPT.get('wdi', 3) == 2: wd_issue(k)
    if not OPT.get('nowt2'):
        k(f"""s_mov_b32 exec_lo, 0x7f7f7f7f
        s_mov_b32 exec_hi, 0x7f7f7f7f
        buffer_load_dword v5, v14, {RC}, s64 offen{OPT.get('ntg', '')}
        s_mov_b32 exec_hi, 0
        buffer_load_dword v248, v14, {RC}, s65 offen{OPT.get('ntg', '')}
        s_mov_b64 exec, -1""")
    if OPT.get('wdi', 3) == 3: wd_issue(k)
    k('v_mov_b32 v249, v30')
    def dmas():
        nonlocal pos
        pos = []
        for n in range(8):
            k(f's_add_u32 m0, s67, {1024*n}\n s_add_u32 s44, s66, {((n>>1) + 256*(n&1))*2752}')
            k(f'buffer_load_dwordx4 v249, {RC}, s44 offen{OPT.get("ntg", "")} lds'); pos.append(k.nvm)
    pos = None
    if OPT.get('dfirst'): dmas()
    srd(k, 24, 22, WS_USED)
    k(f"""v_lshlrev_b32 v31, 6, v10
    v_lshl_add_u32 v31, v12, 4, v31
    v_lshl_add_u32 v31, v11, 3, v31
    v_add_u32 v30, s67, v31
    v_xor_b32 v31, 32, v30
    v_mul_u32_u24 v6, {4*TPAD}, v2
    v_lshl_add_u32 v6, v3, 4, v6
    s_lshl_b32 s44, {WAVE}, 8
    s_add_u32 s44, s44, {TBASE}
    v_add_u32 v6, s44, v6              ; T write
    s_mul_i32 s44, {WAVE}, {4*TPAD}
    s_add_u32 s44, s44, {TBASE}
    v_add_u32 v7, s44, v4              ; T read
    s_lshl_b32 s44, s60, 2
    v_lshrrev_b32 v12, 3, v3
    v_and_b32 v13, 7, v3
    v_lshlrev_b32 v13, 4, v13
    v_lshl_add_u32 v13, v2, 8, v13
    s_lshl_b32 s45, {WAVE}, 12
    s_add_u32 s68, s45, {WP}
    v_mov_b32 v19, s61""")
    for pp in range(2):
        k(f"""v_add_u32 v14, s44, v12            ; octet
        v_mul_u32_u24 v15, 373, v14
        v_lshrrev_b32 v15, 12, v15
        v_add_u32 v14, v14, v15            ; q
        v_mul_u32_u24 v15, 171, v14
        v_lshrrev_b32 v15, 9, v15
        v_mul_u32_u24 v15, 3, v15          ; q - q%3
        v_sub_u32 v16, v14, v15            ; n
        v_cmp_eq_u32 vcc, 2, v16
        v_add_u32 v15, s61, v15
        s_add_u32 s44, s44, 2
        v_cndmask_b32 v15, v15, v14, vcc   ; tile
        v_cndmask_b32 v16, v16, v19, vcc
        v_mul_u32_u24 v15, {WPS}, v15
        v_add_u32 v{8+pp}, v15, v13
        v_lshl_add_u32 v{8+pp}, v16, 7, v{8+pp}""")
    tl = p2_tables(k)
    setup(k); setup_late(k, 'addr')
    if OPT.get('wgen', 0) == 0: gb_gen(k, False)
    if not OPT.get('dfirst'): dmas()
    if OPT.get('wgen', 0) == 1: gb_gen(k, False)
    stamp(k, 2, 'z')
    for dl in range(4):
        k(f's_waitcnt vmcnt({k.nvm - pos[2*dl+1]})')
        if dl == 0: stamp(k, 1)
        for pi in range(2):
            for h in range(2): k(f'ds_read_b64_tr_b16 {V(OP+8*dl+4*pi+2*h,2)}, v{30+pi} offset:{2048*dl+1024*h}')
    stamp(k, 3, 'z')
    k.sprinkle = tl; k.every = OPT.get('tev', 28); k.since = 100
    for dl in range(4):
        for pi in range(2):
            for c in range(2):
                k(f'v_mfma_f32_16x16x32_bf16 {V(DA+32*pi+16*c+4*dl,4)}, {A(FA+4*c,4)}, {V(OP+8*dl+4*pi,4)}, 0')
    for pi in range(2):
        for r in range(4):
            u = OP + 16*pi + 4*r
            for c in range(2):
                for h in range(2):
                    d = DA + 32*pi + 16*c + 8*h + r
                    k(f'v_cvt_pk_bf16_f32 v{u+2*c+h}, v{d}, v{d+4}')
            k(f'ds_write_b128 v6, {V(u,4)} offset:{16*TPAD*pi+TPAD*r}')
    flush(k)
    stamp(k, 4, 'z')
    k.wait(lg=0); k('s_barrier')
    stamp(k, 5, 'z')
    for pi in range(2):
        for q in range(4): k(f'ds_read_b128 {V(OP+16*pi+4*q,4)}, v7 offset:{16*TPAD*pi+TPAD*q}')
    go_load(k, 250)
    for pi in range(2):
        for q in range(4):
            for o in range(2):
                k(f'v_mfma_f32_16x16x32_bf16 {V(DA+32*pi+8*q+4*o,4)}, {A(GB+8*q+4*o,4)}, {V(OP+16*pi+4*q,4)}, 0')
    for pi in range(2):
        for p in range(2):
            for o in range(2):
                u = OP + 16*pi + 8*p + 4*o
                for hq in range(2):
                    for h in range(2):
                        d = DA + 32*pi + 8*(2*p+hq) + 4*o + 2*h
                        k(f'v_cvt_pk_bf16_f32 v{u+2*hq+h}, v{d}, v{d+1}')
                k(f'buffer_store_dwordx4 {V(u,4)}, v{8+pi}, {WSR}, s68 offen offset:{(2*p+o)*1024}{ST}')
    stamp(k, 2); stamp(k, 6, 'z')

def wt_rows(k, task, dst):
    k(f"""s_bfe_u32 s44, {task}, 0x30002
    s_lshl_b32 s44, s44, 3
    s_lshr_b32 s45, {task}, 5
    s_lshl_b32 s45, s45, 8
    s_add_u32 s44, s44, s45
    s_mul_i32 s{dst}, s44, 514
    s_and_b32 s45, {task}, 3
    s_lshl_b32 s45, s45, 7
    s_add_u32 s{dst}, s{dst}, s45
    s_add_u32 s{dst}, s{dst}, 2
    v_lshrrev_b32 v12, 3, v1
    v_and_b32 v13, 7, v1
    v_mul_u32_u24 v11, 514, v12
    v_lshl_add_u32 v11, v13, 4, v11
    s_mov_b32 s30, {2048*257*2}
    s_mov_b32 s31, 0x20000
    s_mov_b32 s34, {2048*257*2}
    s_mov_b32 s35, 0x20000""")
def wt_dest(k, task, dst):
    k(f"""s_lshl_b32 s{dst}, {task}, 13
    s_add_u32 s{dst}, s{dst}, {WT}
    s_mov_b32 s53, 0x05040100
    s_mov_b32 s54, 0x07060302
    v_mov_b32 v11, v4
    v_xor_b32 v12, v12, v13
    v_lshlrev_b32 v12, 4, v12
    v_lshl_add_u32 v12, v13, 10, v12""")
WSRDS = 's_mov_b32 s28, s6\n s_and_b32 s29, s7, 0xffff\n s_mov_b32 s32, s8\n s_and_b32 s33, s9, 0xffff'
def p1_t(k):
    WL, WO = 32, 64
    k(f's_sub_u32 s48, s2, {NC0}\n s_lshl_b32 s48, s48, 2\n s_add_u32 s48, s48, {WAVE}')
    wt_rows(k, 's48', 49)
    for r in range(1, 4): k(f's_add_u32 s{49+r}, s49, {64*r*514}')
    k.wait(lg=0)
    k(WSRDS)
    for r in range(4):
        k(f'buffer_load_dwordx4 {V(WL+8*r,4)}, v11, {RA}, s{49+r} offen{OPT.get("ntw", "")}')
        k(f'buffer_load_dwordx4 {V(WL+8*r+4,4)}, v11, {RB}, s{49+r} offen{OPT.get("ntw", "")}')
    srd(k, 24, 22, WS_USED)
    wt_dest(k, 's48', 56)
    k(f's_lshl_b32 s44, {WAVE}, 13\n v_add_u32 v12, s44, v12\n v_add_u32 v14, s44, v4')
    for n in range(1, 8): k(f's_add_u32 s{56+n}, s56, {1024*n}\n v_xor_b32 v{14+n}, {16*n}, v14')
    tl = p2_tables(k)
    for i in range(8):
        o = WO + 4*i
        for r in range(4): k(f'v_perm_b32 v{o+r}, v{WL+8*r+4+(i>>1)}, v{WL+8*r+(i>>1)}, s{53+(i&1)}')
        k(f'ds_write_b128 v12, {V(o,4)} offset:{128*i}')
        if OPT.get('ttpre'):
            for t in tl[2*i:2*i+2]: k(t)
    stamp(k, 1)
    if OPT.get('twe'): twiddles(k)
    for n in range(8): k(f'ds_read_b128 {V(WL+4*n,4)}, v{14+n} offset:{1024*n}')
    go_load(k, 250)
    for n in range(8): k(f'buffer_store_dwordx4 {V(WL+4*n,4)}, v11, {WSR}, s{56+n} offen{ST}')
    stamp(k, 2)

def p1_i(k):
    k.wait(lg=0)
    srd(k, 24, 22, WS_USED)
    k(f"""s_lshl_b32 s44, s2, 2
    s_add_u32 s44, s44, {WAVE}
    s_cmp_lg_u32 s44, {255*4}
    s_cbranch_scc1 L_noinit
    v_lshlrev_b32 v30, 8, v1
    v_lshlrev_b32 v31, 8, v3
    v_mov_b32 v32, 0
    s_mov_b32 s44, {FLG}
    s_mov_b32 s45, {FLG+16384}
    buffer_store_dword v32, v30, {WSR}, s44 offen{ST}
    v_lshlrev_b32 v33, 7, v1
    buffer_store_dword v32, v33, {WSR}, s45 offen{ST}
    s_add_u32 s45, s45, 8192
    buffer_store_dword v32, v33, {WSR}, s45 offen{ST}
    buffer_store_dword v32, v31, {WSR}, 0 offen{ST}
    v_mov_b32 v33, 1
    s_waitcnt vmcnt(0)
    s_mov_b64 exec, 1
    global_store_dword v32, v33, s[20:21]{ST}
    s_mov_b64 exec, -1""")
    k.label('L_noinit')
    k(f"""s_sub_u32 s60, s2, {NI0}
    s_lshl_b32 s61, s60, 1
    s_lshr_b32 s44, {WAVE}, 1
    s_add_u32 s61, s61, s44            ; t
    s_and_b32 s62, {WAVE}, 1
    s_lshl_b32 s62, s62, 2             ; p
    s_add_u32 s63, s62, 4
    s_lshl_b32 s44, s61, 5
    s_add_u32 s44, s44, 1
    v_lshl_add_u32 v30, v3, 1, s44     ; 2d+1
    v_and_b32 v31, 1, v2
    v_lshlrev_b32 v31, 7, v31
    v_cmp_lt_u32 s[64:65], 1, v2
    v_mov_b32 v36, {fbits(1/16)}
    s_mul_i32 s61, s61, {12*WPS}
    s_add_u32 s61, s61, {WP+11*WPS}""")
    for t in p2_tables(k): k(t)
    if OPT.get('twe'): twiddles(k)
    stamp(k, 1)
    k.fence(); k.label('L_inv')
    k(f"""s_lshl_b32 s44, s62, 1
    s_sub_u32 s45, 32, s44
    s_cmp_eq_u32 s44, 0
    s_cselect_b32 s45, 16, s45
    v_mov_b32 v33, s44
    v_mov_b32 v34, s45
    v_cndmask_b32 v33, v33, v34, s[64:65]
    v_add_u32 v33, v33, v31
    s_add_u32 s44, s44, 1
    s_sub_u32 s45, 32, s44
    v_mov_b32 v34, s44
    v_mov_b32 v35, s45
    v_cndmask_b32 v34, v34, v35, s[64:65]
    v_add_u32 v34, v34, v31
    v_cmp_eq_u32 vcc, 0, v33
    v_mov_b32 v35, 0x100
    v_mov_b32 v37, {fbits(1/math.sqrt(512))}
    v_cndmask_b32 v35, v33, v35, vcc
    v_cndmask_b32 v37, v36, v37, vcc
    s_lshl_b32 s45, s62, 11
    s_add_u32 s66, s61, s45""")
    for e in range(8):
        src = 'v35' if e == 0 else None
        if e: k(f'v_add_u32 v{40+e}, {32*(e&3)}, v{33+(e>>2)}')
        k(f'v_mul_u32_u24 v{40+e}, {src or V(40+e)}, v30')
        k(f'v_and_b32 v{40+e}, 0x3ff, v{40+e}')
        k(f'v_cvt_f32_u32 v{40+e}, v{40+e}')
        k(f'v_mul_f32 v{40+e}, {fbits(1/1024)}, v{40+e}')
    for e in range(8):
        k(f'v_cos_f32 v{48+e}, v{40+e}\n v_sin_f32 v{56+e}, v{40+e}')
    for e in range(8):
        sc = 'v37' if e == 0 else 'v36'
        k(f'v_mul_f32 v{48+e}, {sc}, v{48+e}\n v_mul_f32 v{56+e}, {sc}, -v{56+e}')
    for part in range(2):
        for h in range(4): k(f'v_cvt_pk_bf16_f32 v{64+4*part+h}, v{48+8*part+2*h}, v{48+8*part+2*h+1}')
        k(f'buffer_store_dwordx4 {V(64+4*part,4)}, v4, {WSR}, s66 offen offset:{1024*part}{ST}')
    k('s_add_u32 s62, s62, 1\n s_cmp_lt_u32 s62, s63\n s_cbranch_scc1 L_inv')
    go_load(k, 250)
    stamp(k, 2)

WDL, WDO = 128, 64
def wd_issue(k):
    srd(k, 28, 16, F*D*2)
    k(f"""s_sub_u32 s44, s2, {NZ}
    s_lshl_b32 s44, s44, 14
    s_lshr_b32 s45, {WAVE}, 1
    s_lshl_b32 s45, s45, 13
    s_add_u32 s44, s44, s45
    s_and_b32 s45, {WAVE}, 1
    s_lshl_b32 s45, s45, 9
    s_add_u32 s69, s44, s45
    s_add_u32 s70, s69, 4096
    v_lshlrev_b32 v13, 3, v1""")
    for e in range(8): k(f'buffer_load_dwordx2 {V(WDL+2*e,2)}, v13, {RA}, s{69+(e>>2)} offen offset:{1024*(e&3)}{OPT.get("ntd", "")}')
def wd_pack(k):
    k('s_mov_b32 s64, 0x05040100\n s_mov_b32 s65, 0x07060302')
    for pi in range(4):
        for h in range(4): k(f'v_perm_b32 v{WDO+4*pi+h}, v{WDL+4*h+2+(pi>>1)}, v{WDL+4*h+(pi>>1)}, s{64+(pi&1)}')
def wd_finish(k):
    k(f's_sub_u32 s73, s2, {NZ}')
    k(f"""s_lshr_b32 s44, s73, 2
    s_lshl_b32 s44, s44, 11
    s_and_b32 s45, s73, 3
    s_mul_i32 s45, s45, {WDS}
    s_add_u32 s44, s44, s45
    s_and_b32 s45, {WAVE}, 1
    s_mul_i32 s45, s45, {16*WDS}
    s_add_u32 s44, s44, s45
    s_lshr_b32 s45, {WAVE}, 1
    s_lshl_b32 s45, s45, 9
    s_add_u32 s44, s44, s45
    s_add_u32 s44, s44, {WD}
    v_mul_u32_u24 v30, {4*WDS}, v2
    v_bfe_u32 v31, v1, 3, 1
    v_lshl_add_u32 v30, v31, 10, v30
    v_and_b32 v31, 7, v1
    v_lshl_add_u32 v30, v31, 4, v30""")
    for pi in range(4): k(f'buffer_store_dwordx4 {V(WDO+4*pi,4)}, v30, {WSR}, s44 offen offset:{128*pi}{ST}')

STATL = 131072
def p4_ids(k):
    k(f"""s_and_b32 s44, s2, 7
    s_lshl_b32 s44, s44, 2
    s_bfe_u32 s46, s2, 0x20003
    s_add_u32 s44, s44, s46
    s_lshr_b32 s45, s2, 5""")

def setup(k):
    if OPT.get('x216'):
        k(f"""s_and_b32 s44, s2, 7
        s_lshl_b32 s44, s44, 1
        s_bfe_u32 s45, s2, 0x10003
        s_add_u32 s48, s44, s45
        s_lshr_b32 s49, s2, 4
        s_lshl_b32 s45, s45, 2
        s_mov_b32 s46, s49""")
    elif OPT.get('x48'):
        k(f"""s_and_b32 s44, s2, 3
        s_lshl_b32 s44, s44, 2
        s_bfe_u32 s45, s2, 0x20003
        s_add_u32 s48, s44, s45
        s_and_b32 s44, s2, 4
        s_lshl_b32 s44, s44, 1
        s_lshr_b32 s46, s2, 5
        s_add_u32 s49, s44, s46
        s_lshl_b32 s45, s45, 1""")
    else:
        k(f"""s_and_b32 s44, s2, 1
        s_lshl_b32 s44, s44, 3
        s_bfe_u32 s45, s2, 0x30003
        s_add_u32 s48, s44, s45
        s_bfe_u32 s44, s2, 0x20001
        s_lshl_b32 s44, s44, 2
        s_lshr_b32 s46, s2, 6
        s_add_u32 s49, s44, s46
        s_lshl_b32 s46, s46, 1""")
    k(f"""s_mov_b32 s53, 0
    s_lshl_b32 s46, s48, 11
    s_lshl_b32 s47, s49, 7
    s_add_u32 s41, s46, s47
    s_add_u32 s41, s41, {RBF}
    v_mov_b32 v250, 0""")
    stamp(k, 7, 'z')
    k(f"""s_and_b32 s74, s2, 7
    s_lshl_b32 s74, s74, 8
    s_add_u32 s75, s74, {FLG}
    s_and_b32 s44, s2, 1
    s_mul_i32 s44, s44, 44
    s_bfe_u32 s45, s2, 0x20001
    s_mul_i32 s45, s45, 11
    s_add_u32 s44, s44, s45
    s_bfe_u32 s45, s2, 0x40003
    s_add_u32 s44, s44, s45
    s_sub_u32 s45, s2, {NI0-88}
    s_cmp_ge_u32 s2, {NI0}
    s_cselect_b32 s44, s45, s44
    s_cselect_b32 s46, 0, s2
    s_lshl_b32 s44, s44, 7
    s_add_u32 s71, s44, {FLG+16384}
    s_cmp_lt_u32 s2, {NZ}
    s_cselect_b32 s71, 0, s71
    s_cmp_ge_u32 s46, {NC0}
    s_cselect_b32 s71, 0, s71
    v_mov_b32 v251, 1
    s_mov_b32 s63, 0x80008000""")

def twiddles(k):
    k(f"""s_lshl_b32 s44, {WAVE}, 4
    v_add_u32 v240, s44, v3
    v_cvt_f32_u32 v240, v240
    v_mul_f32 v240, {fbits(1/2048)}, v240
    v_lshlrev_b32 v241, 2, v2
    v_add_u32 v242, s44, v241
    v_cvt_f32_u32 v241, v241
    v_cvt_f32_u32 v242, v242
    v_cvt_f32_u32 v243, v3
    v_mul_f32 v243, {fbits(1/2048)}, v243""")
    for be in range(2):
        for r in range(4):
            t = TW1 + 8*be + r
            k(f'v_add_f32 v{t}, {fbits(16*be+r)}, v241\n v_mul_f32 v{t}, v{t}, v240')
            k(f'v_sin_f32 v{t+4}, v{t}\n v_cos_f32 v{t}, v{t}')
    for be in range(2):
        if be: k(f'v_add_f32 v243, {fbits(16/2048)}, v243')
        for r in range(4):
            t = TW2 + 8*be + r
            k(f'v_add_f32 v{t}, {fbits(r)}, v242\n v_mul_f32 v{t}, v{t}, v243')
            k(f'v_sin_f32 v{t+4}, v{t}\n v_cos_f32 v{t}, v{t}')

def setup_late(k, part=None):
    k(f"""s_mul_i32 s44, s49, 11
    s_add_u32 s45, s44, 10
    s_lshr_b32 s44, s44, 2
    s_lshr_b32 s45, s45, 2
    v_and_b32 v23, 3, v1
    v_add_u32 v23, s44, v23
    v_min_u32 v23, s45, v23
    v_bfe_u32 v240, v1, 2, 1
    v_mul_u32_u24 v240, 44, v240
    v_add_u32 v23, v23, v240
    s_lshr_b32 s44, s49, 1
    s_add_u32 s44, s44, 88
    v_mov_b32 v240, s44
    v_cmp_gt_u32 vcc, 8, v1
    v_cndmask_b32 v23, v240, v23, vcc
    v_lshlrev_b32 v23, 7, v23
    v_add_u32 v23, {FLG+16384}, v23""")
    if part != 'addr':
        if OPT.get('twe'):
            uid[0] += 1; u = uid[0]
            k(f's_cmp_ge_u32 s2, {NC0}\n s_cbranch_scc1 L_tw{u}')
            twiddles(k); k.fence(); k.label(f'L_tw{u}')
        else: twiddles(k)
    for u in range(4):
        k(f's_add_u32 s45, {WAVE}, {u}\n s_and_b32 s45, s45, 3\n s_lshl_b32 s45, s45, 11\n v_add_u32 v{16+u}, s45, v4')
    k(f"""s_and_b32 s58, s2, 0xf6
    s_bfe_u32 s45, s2, 0x10003
    s_add_u32 s58, s58, s45
    s_and_b32 s45, s2, 1
    s_lshl_b32 s45, s45, 3
    s_add_u32 s58, s58, s45
    s_lshl_b32 s44, s58, 6
    s_lshl_b32 s45, {WAVE}, 19
    s_add_u32 s44, s44, s45
    s_add_u32 s55, s44, {ZT}
    s_add_u32 s56, s55, 0x10000
    s_lshr_b32 s44, s58, 4
    s_sub_u32 s45, 32, s44
    s_cmp_eq_u32 s44, 0
    s_cselect_b32 s45, 16, s45
    s_bitcmp1_b32 s58, 3
    s_cselect_b32 s44, s45, s44
    s_and_b32 s45, s58, 7
    s_lshl_b32 s45, s45, 5
    s_add_u32 s44, s44, s45
    s_sub_u32 s44, s44, 1
    s_and_b32 s44, s44, 255
    s_lshl_b32 s44, s44, 7
    s_lshl_b32 s45, {WAVE}, 16
    s_add_u32 s44, s44, s45
    s_add_u32 s59, s44, {WT}
    s_add_u32 s60, s59, 0x100000
    v_and_b32 v15, 7, v1
    v_lshlrev_b32 v15, 4, v15
    v_bfe_u32 v14, v1, 3, 1
    v_lshl_add_u32 v15, v14, 15, v15
    v_lshl_add_u32 v15, v2, 18, v15
    s_lshl_b32 s45, {WAVE}, 12
    s_add_u32 s61, s45, {SM}
    v_lshrrev_b32 v21, 2, v3
    v_lshlrev_b32 v21, 7, v21
    v_lshl_add_u32 v21, v2, 10, v21
    v_and_b32 v22, 3, v1
    v_lshlrev_b32 v14, 4, v22
    v_lshl_add_u32 v14, v21, 7, v14
    v_lshl_add_u32 v22, v22, 4, v21
    s_mov_b32 s63, 0x80008000""")

def setup2(k):
    k(f"""v_lshrrev_b32 v20, 2, v1
    v_lshlrev_b32 v20, 15, v20
    v_and_b32 v24, 3, v1
    v_lshl_add_u32 v20, v24, 4, v20
    s_lshr_b32 s44, s58, 5
    s_lshl_b32 s44, s44, 6
    s_and_b32 s45, s58, 31
    s_add_u32 s44, s44, s45
    s_lshl_b32 s44, s44, 6
    s_lshl_b32 s45, {WAVE}, 19
    s_add_u32 s44, s44, s45
    s_add_u32 s62, s44, {HT}
    s_mul_i32 s44, s49, 11
    s_mul_i32 s45, {WAVE}, 3
    s_add_u32 s50, s44, s45
    s_add_u32 s44, s50, s49
    s_mul_i32 s44, s44, {WPS}
    s_add_u32 s44, s44, {WP}
    v_add_u32 v248, s44, v4
    v_add_u32 v249, {WPS}, v248
    v_add_u32 v255, {2*WPS}, v248
    s_and_b32 s46, {WAVE}, 1
    s_lshr_b32 s47, {WAVE}, 1
    s_lshl_b32 s45, s46, 15
    s_lshl_b32 s54, s47, 12
    s_add_u32 m0, s54, s45
    s_lshl_b32 s44, s48, 17
    s_add_u32 s44, s44, {HT}
    v_and_b32 v6, 1, v2
    v_lshlrev_b32 v6, 5, v6
    v_xor_b32 v5, v6, v4
    v_add_u32 v5, s44, v5
    v_lshrrev_b32 v7, 2, v1
    v_lshl_add_u32 v6, v7, 6, v6
    v_lshl_add_u32 v6, v24, 3, v6
    s_lshl_b32 s44, s47, 5
    s_add_u32 s44, s44, s45
    v_xor_b32 v6, s44, v6
    v_xor_b32 v7, 32, v6
    v_lshrrev_b32 v9, 2, v3
    v_cmp_eq_u32 vcc, v9, v2
    s_lshl_b32 s47, s47, 8
    s_lshl_b32 s44, s46, 9
    s_add_u32 s44, s44, s47
    s_add_u32 s44, s44, {STATL}
    v_lshl_add_u32 v10, v3, 4, s44     ; statistics reads
    v_xor_b32 v8, 0x100, v10
    v_add_u32 v9, {STATL+2048}, v4
    v_cndmask_b32 v9, v9, v10, vcc     ; statistics write (other lanes go to a dummy area)
    v_lshrrev_b32 v24, 1, v2
    v_lshlrev_b32 v11, 8, v24
    v_xor_b32 v11, v11, v10            ; statistics for the mixed tile
    s_mov_b32 s64, 0x22222222
    s_mov_b32 s65, s64
    s_mov_b32 s66, 0x44444444
    s_mov_b32 s67, s66
    s_mov_b32 s68, 0x88888888
    s_mov_b32 s69, s68
    v_add_u32 v25, s50, v24
    v_lshrrev_b32 v12, 1, v25
    v_mul_u32_u24 v12, {HFS}, v12
    v_and_b32 v25, 1, v25
    v_lshl_add_u32 v12, v25, 9, v12
    v_and_b32 v25, 0x1f0, v4
    v_xor_b32 v25, s47, v25
    v_add_u32 v12, v25, v12
    s_add_u32 s44, s50, 2
    s_lshr_b32 s45, s44, 1
    s_mul_i32 s45, s45, {HFS}
    s_and_b32 s44, s44, 1
    s_lshl_b32 s44, s44, 9
    s_add_u32 s44, s44, s45
    v_lshlrev_b32 v13, 8, v24
    v_xor_b32 v13, s47, v13
    v_add_u32 v13, s44, v13
    v_lshl_add_u32 v13, v3, 4, v13
    v_and_b32 v25, 1, v2
    v_xor_b32 v25, 1, v25
    v_lshlrev_b32 v25, 10, v25
    s_lshl_b32 s44, s46, 1
    s_sub_u32 s44, 1, s44
    v_mul_i32_i24 v25, s44, v25
    v_sub_u32 v13, v13, v25""")
    wsrd(k, 32, HF+86*HFS)
    if OPT.get('wtouch'):
        k(f"""s_and_b32 s44, s48, 7
        s_lshl_b32 s44, s44, 11
        v_sub_u32 v14, v248, v4
        v_lshl_add_u32 v14, v2, 14, v14
        v_lshl_add_u32 v14, v3, 7, v14
        v_add_u32 v14, s44, v14
        v_cmp_gt_u32 vcc, 3, v2
        v_cndmask_b32 v14, -1, v14, vcc""")

def p2_negs(k, base):
    for u in range(4):
        for h in range(2): k(f'v_xor_b32 v{base+6*u+h}, s63, v{base+6*u+4+h}')

def wd_reg(u, i): return A(192+8*u+4*i, 4) if u < 8 else V(144+8*(u-8)+4*i, 4)
def wd_loads(u):
    o = [f'buffer_load_dwordx4 {wd_reg(u+s,i)}, v15, {WSR}, s51 offen offset:{2048*s+1024*i}{LD}' for s in range(2) for i in range(2)]
    return o + ['s_add_u32 s51, s51, 4096']
def wloads(R=RA):
    return [f'buffer_load_dwordx4 {A(12*ka+4*t,4)}, v{(248, 249, 255)[t]}, {R}, {("0", "s70", "s71", "s72")[ka>>2]} offen offset:{1024*(ka&3)}{LD}' for ka in range(16) for t in range(3)]

def p2(k):
    Z, WW, SG, DD, TT, PK = 32, 64, 80, 88, 104, 240
    for u in range(1 if not OPT.get('zall') else 4):
        for be in range(2): k(f'buffer_load_dwordx4 {V(Z+8*u+4*be,4)}, v14, {WSR}, s{55+be} offen{LD}')
    lds_ = f"""buffer_load_dwordx4 {V(WW+4,4)}, v15, {WSR}, s59 offen{LD}
    buffer_load_dwordx4 {V(WW+12,4)}, v15, {WSR}, s60 offen{LD}
    buffer_load_dwordx4 {V(SG,4)}, v22, {WSR}, s61 offen{LD}
    buffer_load_dwordx4 {V(SG+4,4)}, v22, {WSR}, s61 offen offset:512{LD}""".split('\n')
    lds_.insert(OPT.get('fpos', 2), f'buffer_load_dword v26, v23, {WSR}, 0 offen{LD}')
    if OPT.get('wnow'):
        for t in lds_: k(t)
    else:
        k.sprinkle = [t.strip() for t in lds_]; k.every = 60; k.since = 0
    setup2(k); flush(k)
    k(f"""s_mov_b32 s28, s24
    s_mov_b32 s29, s25
    s_mov_b32 s31, 0x20000
    s_mov_b32 s36, s24
    s_mov_b32 s37, s25
    s_mov_b32 s39, 0x20000
    s_mov_b32 s70, 4096
    s_mov_b32 s71, 8192
    s_mov_b32 s72, 12288""")
    def check1():
        k(f'v_cmp_ne_u32 vcc, 1, v26\n s_cmp_eq_u64 vcc, 0\n s_cselect_b32 s30, {WS_USED}, 0')
        k(f'buffer_load_dword v27, v23, {WSR}, 0 offen{LD}')
        if OPT.get('wtouch'): k(f'buffer_load_dword v25, v14, {RA}, 0 offen{LD}')
        k.sprinkle = wloads(); k.every = OPT.get('every', 64); k.since = 100; k.lazy = OPT.get('lazy', 1)
    def unpack():
        for t in range(2):
            for r in range(4):
                k(f'v_lshlrev_b32 v{WW+8*t+r}, 16, v{WW+8*t+4+r}\n v_and_b32 v{WW+8*t+4+r}, 0xffff0000, v{WW+8*t+4+r}')
    if not OPT.get('zall'):
        for be in range(2): k(f'ds_write_b128 v16, {V(Z+4*be,4)} offset:{8192+1024*be}')
    for u in range(4):
        for be in range(2):
            for o in range(2):
                d = V(DD+8*be+4*o, 4)
                k(f'v_mfma_f32_16x16x32_f16 {d}, {V(Z+8*u+4*be,4)}, {V(B1+6*u+2-2*o,4)}, {"0" if u==0 else d}')
        if u == 0:
            stamp(k, 5); stamp(k, 2, 'b')
            if not OPT.get('zall'):
                k.wait(lg=0); k('s_barrier')
                for v in range(1, 4):
                    for be in range(2): k(f'ds_read_b128 {V(Z+8*v+4*be,4)}, v{16+v} offset:{8192+1024*be}')
                if OPT.get('c1') == 0: check1()
    if OPT.get('c1') == 1: check1()
    E = Z + 8
    for be in range(2):
        cmul(k, DD+8*be, DD+8*be+4, TW1+8*be, TW1+8*be+4, TT, TT+4, True)
        for h in range(4): k(f'v_cvt_pk_f16_f32 v{PK+4*be+h}, v{TT+2*h}, v{TT+2*h+1}')
        for t in range(2):
            for o in range(2):
                d = V(E+8*t+4*o, 4)
                k(f'v_mfma_f32_16x16x32_f16 {d}, {V(A2+6*(2*t+be)+2-2*o,4)}, {V(PK+4*be,4)}, {"0" if be==0 else d}')
    def check2():
        global n1
        n1 = 48 - len(k.sprinkle); k.sprinkle = []
        k(f'v_cmp_ne_u32 vcc, 1, v27\n s_cmp_eq_u64 vcc, 0\n s_cselect_b32 s38, {WS_USED}, 0')
        if OPT.get('wtouch') == 2: k(f's_sub_u32 s44, {WS_USED}, s30\n s_cselect_b32 s44, 0, 0\n s_cmp_eq_u32 s30, 0\n s_cselect_b32 s44, 0, {WS_USED}\n buffer_load_dword v25, v14, {RC}, s44 offen{LD}')
        k.sprinkle = wloads(RC)[n1:]
    if OPT.get('c1') == 2: check1()
    unpack()
    stamp(k, 3, 'b')
    if OPT.get('c2', 0) == 0: check2()
    for t in range(2):
        cmul(k, E+8*t, E+8*t+4, WW+8*t, WW+8*t+4, TT, TT+4, False)
        for h in range(4): k(f'v_cvt_pk_bf16_f32 v{PK+4*t+h}, v{TT+2*h}, v{TT+2*h+1}')
        for be in range(2):
            for o in range(2):
                d = V(DD+8*be+4*o, 4)
                k(f'v_mfma_f32_16x16x32_bf16 {d}, {V(PK+4*t,4)}, {V(B3+6*(2*be+t)+2-2*o,4)}, {"0" if t==0 else d}')
    if OPT.get('c2', 0) == 1: check2()
    for be in range(2):
        cmul(k, DD+8*be, DD+8*be+4, TW2+8*be, TW2+8*be+4, TT, TT+4, False)
        for h in range(4): k(f'v_cvt_pk_bf16_f32 v{PK+4*be+h}, v{TT+2*h}, v{TT+2*h+1}')
        k(f'ds_write_b128 v16, {V(PK+4*be,4)} offset:{1024*be}')
    def step4(u, src):
        for be in range(2):
            for o in range(2):
                d = V(DD+8*be+4*o, 4)
                k(f'v_mfma_f32_16x16x32_bf16 {d}, {V(A4+6*u+2-2*o,4)}, {V(src+4*be,4)}, {d}')
    for o in range(2):
        for be in range(2):
            for r in range(4):
                d = DD+8*be+4*o+r; hi = r & 1
                k(f'v_fma_mix_f32 v{d}, v{SG+4*be+r}, v{Z+4*be+2*o+(r>>1)}, 0 op_sel:[0,{hi},0] op_sel_hi:[0,1,0]')
    stamp(k, 4, 'b')
    k.wait(lg=0); k('s_barrier')
    for u in range(1, 4):
        for be in range(2): k(f'ds_read_b128 {V(Z+8*u+4*be,4)}, v{16+u} offset:{1024*be}')
    step4(0, PK)
    for u in range(1, 4): step4(u, Z+8*u)
    OUT = 64
    rest, k.sprinkle = k.sprinkle, []
    for o in range(2):
        for be in range(2):
            for h in range(2): k(f'v_cvt_pk_bf16_f32 v{OUT+4*o+2*be+h}, v{DD+8*be+4*o+2*h}, v{DD+8*be+4*o+2*h+1}')
    k('s_cmp_lg_u32 s2, 0\n s_cbranch_scc1 L_p2_st')
    for h in range(4): k(f'v_mov_b32 v{OUT+4+h}, v{OUT+h}\n v_mov_b32 v{OUT+h}, 0')
    k.label('L_p2_st')
    for o in range(2): k(f'buffer_store_dwordx4 {V(OUT+4*o,4)}, v20, {WSR}, s62 offen offset:{2048*o}{ST}')
    stamp(k, 5, 'b')
    return rest

def barrier2(k, rest):
    print('weight loads left after phase 2:', len(rest))
    k(f's_lshl_b32 s44, s48, 12\n s_add_u32 s44, s44, {HF}')
    k(f's_and_b32 s46, {WAVE}, 1')
    for p in range(4): k(f's_xor_b32 s45, s46, {p}\n s_lshl_b32 s45, s45, 10\n s_add_u32 s{55+p}, s44, s45')
    k(f"""s_lshl_b32 s44, s49, 17
    s_lshl_b32 s45, s48, 11
    s_add_u32 s44, s44, s45
    s_add_u32 s59, s44, {HRES}
    s_add_u32 s60, s59, 0x10000
    s_lshl_b32 s44, s48, 10
    s_add_u32 s61, s44, {SM+64}
    s_mov_b32 s46, 0""")
    print('group 1:', n1)
    stamp(k, 6)
    nA = min(OPT.get('nA', 12), len(rest)); nB = min(OPT.get('nB', 48), len(rest) - nA)
    n2 = 48 - len(rest) + nA
    for t in rest[:nA]: k(t)
    rest = [t.replace(RC, WSR) for t in rest]
    stamp(k, 6, 'b')
    k(f'v_mov_b32 v250, 0\n v_mov_b32 v251, 1\n s_cmp_lg_u32 {WAVE}, 0\n s_cbranch_scc1 L_b2o')
    st = k.state()
    k(f's_mov_b64 exec, 1\n s_waitcnt vmcnt({nA})'); stamp(k, 7, 'b'); k('s_barrier'); stamp(k, 8, 'b')
    k(f'buffer_atomic_add v251, v250, {WSR}, s74 offen sc0 sc1')
    k('s_barrier')
    stamp(k, 9, 'b'); arrive_check(k, 250, 's75', 51, 2); stamp(k, 10, 'b')
    if OPT.get('hold'): k('s_barrier')
    k('s_mov_b64 exec, -1\n s_branch L_b2m')
    k.restore(st); k.label('L_b2o')
    k(f's_waitcnt vmcnt({nA})'); stamp(k, 7, 'b'); k('s_barrier'); stamp(k, 8, 'b')
    k('s_barrier')
    if OPT.get('hold'): k('s_barrier')
    stamp(k, 9, 'b'); stamp(k, 10, 'b')
    k.label('L_b2m')
    k(f's_cmp_lg_u32 s30, 0\n s_cbranch_scc1 L_bok')
    st = k.state()
    k(f's_cmp_lg_u32 s38, 0\n s_cbranch_scc1 L_bok2')
    k.label('L_bchk')
    k(f"""buffer_load_dword v26, v23, {WSR}, 0 offen{LD}
    s_add_u32 s46, s46, 1
    s_waitcnt vmcnt(0)
    v_cmp_ne_u32 vcc, 1, v26
    s_cmp_gt_u32 s46, {SPIN}
    s_cbranch_scc1 L_bgo
    s_cbranch_vccnz L_bchk""")
    k.label('L_bgo')
    for t in wloads(WSR)[n1:n2]: k(t)
    k.label('L_bok2')
    for t in wloads(WSR)[:n1]: k(t)
    k.restore(st)
    k.label('L_bok')
    for t in rest[nA:nA+nB]: k(t)
    if OPT.get('retouch'):
        def rt():
            k('s_lshr_b32 s44, s2, 3\n s_lshl_b32 s44, s44, 10\n v_lshl_add_u32 v252, v3, 6, s44')
            k.raw('    v_min_u32 v252, L_notz-L_b2x-4, v252\n    s_sub_u32 s44, s42, tables-L_b2x\n    s_subb_u32 s45, s43, 0'); k.pos += 3
            k('v_mov_b32 v253, s45\n v_add_co_u32 v252, vcc, s44, v252\n v_addc_co_u32 v253, vcc, 0, v253, vcc\n s_mov_b64 exec, 0xffff\n global_load_dword v254, v[252:253], off')
        only_wave(k, 2, rt)
    only_wave(k, 0, lambda: poll(k, 250, 2))
    global late_w
    late_w = rest[nA+nB:]
    def hw():
        k('v_bfe_u32 v16, v1, 2, 1\n v_lshlrev_b32 v16, 9, v16\n v_bfe_u32 v17, v1, 3, 1\n v_lshl_add_u32 v16, v17, 4, v16\n v_and_b32 v17, 3, v1\n v_lshl_add_u32 v16, v17, 2, v16')
        for j in range(8): k(f'buffer_load_dword v{MUV+j}, v16, {WSR}, s61 offen offset:{128*((j^3)>>1)+32*((j^3)&1)}{LD}')
    global hw_means, st3
    hw_means = hw
    k(f's_cmp_eq_u32 {WAVE}, 3\n s_cbranch_scc1 L_p3h')
    st3 = k.state()
    if OPT.get('isl'):
        k(f's_mov_b64 exec, 0\n s_cmp_eq_u32 {WAVE}, 1\n s_cbranch_scc1 L_isl0_0\n s_branch L_isl0_{OPT.get("islmid", 32)}')
        k.label('L_islret0'); k('s_mov_b64 exec, -1')
    k.label('L_b2x')

ACT, ACC, TM, STV, MUV = 32, 64, 128, 16, 24
def cost(t):
    m = t.split()[0]
    if m.startswith('buffer'): return 18 + 4 * t.count('\n')
    if m.startswith(('v_exp', 'v_rcp', 'v_rsq', 'v_permlane', 'ds_write')): return 8
    return 4 * (t.count('\n') + 1)

def p3_body(k, hw):
    acc = lambda p, n, m, par=0: ACC + 32*(p & 1) + 8*(n + (par if n == 2 and hw else 0)) + 4*m
    GR = 28 if not hw else TM + 12
    dma_pos = []
    def dma(j):
        return f'buffer_load_dwordx4 v5, {WSR}, m0 offen offset:{1024*(j&3)}{LD} lds'
    def m0step(j): return [f's_add_u32 m0, m0, {8192 + (32768 if j == 15 else 0)}'] if j & 3 == 3 and j < 31 else []
    def slot(g, m): return ACT + 8*(g & 3) + 4*m
    def reads(g):
        p, ka = divmod(g, 16); o = []
        if p and ka == 0:
            x = (p ^ (p-1)) << 15
            o = [f'v_xor_b32 v6, {x:#x}, v6', f'v_xor_b32 v7, {x:#x}, v7']
        return o + [f'ds_read_b64_tr_b16 {V(slot(g,m)+2*h,2)}, v{6+m} offset:{2048*ka+1024*h}' for m in range(2) for h in range(2)]
    def chains(p, J):
        if p == 3:
            P = J[::2]
            o = [f'v_pk_mul_f32 {V(t,2)}, {V(g,2)}, {V(g,2)}' for g, u, t, c in P]
            o += [f'v_pk_fma_f32 {V(t,2)}, {V(t,2)}, {V(c,2)}, {V(c,2)} op_sel:[0,1,0] op_sel_hi:[1,1,0]' for g, u, t, c in P]
            o += [f'v_pk_mul_f32 {V(t,2)}, {V(t,2)}, {V(g,2)}' for g, u, t, c in P]
            o += [f'v_exp_f32 v{t}, v{t}' for g, u, t, c in J]
            o += [f'v_pk_mul_f32 {V(g,2)}, {V(g,2)}, {V(u,2)}' for g, u, t, c in P]
            o += [f'v_pk_fma_f32 {V(t,2)}, {V(t,2)}, {V(c+2,2)}, {V(c+2,2)} op_sel_hi:[1,0,0]' for g, u, t, c in P]
            o += [f'v_rcp_f32 v{t}, v{t}' for g, u, t, c in J]
            o += [f'v_pk_mul_f32 {V(g,2)}, {V(g,2)}, {V(t,2)}' for g, u, t, c in P]
            return o
        o = [f'v_mul_f32 v{t}, v{g}, v{g}' for g, u, t, c in J]
        o += [f'v_mul_f32 v{u}, v{g}, v{u}' for g, u, t, c in J]
        o += [f'v_fma_f32 v{t}, v{t}, v{c+1}, v{c}' for g, u, t, c in J]
        o += [f'v_mul_f32 v{t}, v{t}, v{g}' for g, u, t, c in J]
        o += [f'v_exp_f32 v{t}, v{t}' for g, u, t, c in J]
        o += [f'v_fma_f32 v{t}, v{t}, v{c+2}, v{c+2}' for g, u, t, c in J]
        o += [f'v_rcp_f32 v{t}, v{t}' for g, u, t, c in J]
        o += [f'v_mul_f32 v{g}, v{u}, v{t}' for g, u, t, c in J]
        return o
    def epilogue(p):
        HA, HX = TM + 8, TM + 12
        J = [(acc(p, 0, m)+r, acc(p, 1, m)+r, TM+4*m+r, STV+4*m) for m in range(2) for r in range(4)]
        o = []
        if not hw: o += [f'v_permlane32_swap_b32 v{acc(p,2,0)+r}, v{acc(p,2,1)+r}' for r in range(4)]
        o += chains(p, J)
        o += [f'v_cvt_pk_bf16_f32 v{HA+2*m+h}, v{acc(p,0,m)+2*h}, v{acc(p,0,m)+2*h+1}' for h in range(2) for m in range(2)]
        tail = [f'v_permlane16_swap_b32 v{HA}, v{HA+2}', f'v_permlane16_swap_b32 v{HA+1}, v{HA+3}',
                f'buffer_store_dwordx4 {V(HA,4)}, v12, {RB}, s{55+p} offen{ST}']
        if not hw:
            x = chains(p, [(acc(p, 2, 0)+r, acc(p, 2, 1)+r, TM+r, STV+8) for r in range(4)])
            o += x[:2] + tail + x[2:]
            o += [f'v_cvt_pk_bf16_f32 v{HX+2*(p&1)+h}, v{acc(p,2,0)+2*h}, v{acc(p,2,0)+2*h+1}' for h in range(2)]
            if p & 1: o += [f'v_permlane16_swap_b32 v{HX}, v{HX+2}', f'v_permlane16_swap_b32 v{HX+1}, v{HX+3}',
                            f'buffer_store_dwordx4 {V(HX,4)}, v13, {RB}, s{55+p} offen{ST}']
        else:
            for m in range(2):
                e, od = acc(p, 2, m), acc(p, 2, m, 1); t = TM
                o += [f'v_add_f32 v{e+r}, v{e+r}, v{MUV+2*p+m}' for r in range(4)]
                if m == 0: o += tail
                for r in range(4): o += [f'v_add_f32 v{t+r}, v{e+r}, v{od+r}', f'v_sub_f32 v{t+4+r}, v{e+r}, v{od+r}']
                P0, P1 = acc(p, 2, 0), acc(p, 2, 0, 1)
                o += [f'v_cvt_pk_bf16_f32 v{P0+2*m}, v{t}, v{t+1}', f'v_cvt_pk_bf16_f32 v{P0+2*m+1}, v{t+2}, v{t+3}',
                      f'v_cvt_pk_bf16_f32 v{P1+2-2*m}, v{t+7}, v{t+6}', f'v_cvt_pk_bf16_f32 v{P1+3-2*m}, v{t+5}, v{t+4}']
            off = 512*(p ^ 1)
            o += [f'v_permlane16_swap_b32 v{P0}, v{P0+2}', f'v_permlane16_swap_b32 v{P0+1}, v{P0+3}',
                  f'buffer_store_dwordx4 {V(P0,4)}, v13, {WSR}, s59 offen offset:{off}{ST}',
                  f'v_permlane16_swap_b32 v{P1+2}, v{P1}', f'v_permlane16_swap_b32 v{P1+3}, v{P1+1}',
                  f'buffer_store_dwordx4 {V(P1,4)}, v14, {WSR}, s60 offen offset:{off}{ST}']
        return o
    def stats(p):
        K0 = -2*math.sqrt(2/math.pi)*math.log2(math.e); b = GR
        return [f'v_cndmask_b32 v{b}, v{b}, v{b+1}, s[64:65]', f'v_cndmask_b32 v{b}, v{b}, v{b+2}, s[66:67]', f'v_cndmask_b32 v{b}, v{b}, v{b+3}, s[68:69]',
                f'v_mov_b32 v{b+2}, {fbits(256e-5)}', f'v_fmac_f32 v{b+2}, 0.5, v{b}', f'v_rsq_f32 v{b+3}, v{b+2}',
                f'v_mul_f32 v{b}, {fbits(K0)}, v{b+3}', f'v_mul_f32 v{b+3}, v{b+3}, v{b+3}', f'v_mul_f32 v{b+1}, {fbits(0.044715)}, v{b}', f'v_mul_f32 v{b+1}, v{b+1}, v{b+3}',
                f'ds_write_b128 v9, {V(b,4)} offset:{512*p}']
    def getstats(p):
        R = [(10, STV), (8, STV+4)] + ([] if hw else [(11, STV+8)])
        o = [f'v_xor_b32 v{a}, 0x200, v{a}' for a, _ in R] if p else []
        return o + [f'ds_read_b128 {V(d,4)}, v{a} offset:{1024*(p>>1)}' for a, d in R]
    def issue_dma(j): k(dma(j)); dma_pos.append(k.nvm)
    if hw:
        hw_means()
        if OPT.get('isl'):
            k('s_mov_b64 exec, 0\n s_branch L_isl1_0'); k.label('L_islret1'); k('s_mov_b64 exec, -1')
    k('s_barrier')
    stamp(k, 7); stamp(k, 11, 'b')
    def island(g):
        G = OPT.get('isl')
        if not G or g % G: return
        mid = OPT.get('islmid', 32)
        k.label(f'L_isl{int(hw)}_{g}')
        k(f's_cbranch_execz L_isl{int(hw)}_{g+G}' if g + G < 64 and (hw or g + G != mid) else (f's_cbranch_execz L_islret{int(hw)}' if g + G >= 64 else f's_cbranch_execz L_islret0'))
    DP = OPT.get('dpre', 16)
    for j in range(DP):
        issue_dma(j)
        for t in m0step(j): k(t)
    if hw: k('v_and_b32 v13, 0x1f0, v4\n v_xor_b32 v13, 0x100, v13\n v_lshrrev_b32 v14, 5, v1\n v_lshl_add_u32 v13, v14, 15, v13\n v_xor_b32 v14, 0x8000, v13')
    p4_ids(k)
    k(f"""s_mov_b32 s51, 0
    s_lshl_b32 s45, s45, 2
    s_add_u32 s45, s45, {WAVE}
    s_mul_i32 s45, s45, {WDS}
    s_add_u32 s45, s45, {WD}
    v_add_u32 v15, s45, v4
    s_lshr_b32 s46, s44, 1
    s_lshl_b32 s45, s46, 11
    s_add_u32 s62, s45, {RBF}
    s_add_u32 s63, s62, 0x8000
    s_lshl_b32 s46, s46, 2
    s_and_b32 s44, s44, 1
    s_add_u32 s73, s46, s44
    s_lshl_b32 s46, s73, 10
    s_mul_i32 s47, {WAVE}, {HFS}
    s_add_u32 s46, s46, s47
    s_add_u32 s74, s46, {HF}
    s_mov_b32 s75, 0""")
    def landed(j): k(f's_waitcnt vmcnt({min(63, k.nvm - dma_pos[j])})'); k('s_barrier')
    landed(3)
    stamp(k, 8)
    rd_pos = {}
    def do_reads(g):
        for t in reads(g): k(t)
        rd_pos[g] = k.nlg
    do_reads(0); do_reads(1)
    NWD = OPT.get('wdin', 22)
    memq = [('dma', j) for j in range(DP, 16)]
    lw = list(late_w)
    memq += lw + [('dma', j) for j in range(16, 32)]
    after = []
    nfast = len(memq)
    wl = [t for u in range(0, NWD, 2) for t in wd_loads(u)]
    wdq = [wl[i] + ('\n' + wl[i+1] if i % 5 == 3 else '') for i in range(len(wl)) if i % 5 != 4]
    W1 = OPT.get('wdend', 57)
    st_pos = None
    wrate = min(1.0, len(wdq) / (W1 - nfast / OPT.get('mrate', 1)))
    eq = [hload(0, u, RC) for u in range(22)]
    ismem = lambda t: isinstance(t, tuple) or t.startswith(('ds_', 'buffer'))
    vcost = lambda t: 8 if t.startswith(('v_exp', 'v_rcp', 'v_rsq', 'v_permlane')) else 4 * (t.count('\n') + 1)
    hcost = lambda t: 4 if (t[0] == 'rd' if isinstance(t, tuple) else t.startswith('ds_read')) else 8
    salu = []
    def emit_mem(f):
        nonlocal stat_pos
        if isinstance(f, tuple):
            if f[0] == 'dma':
                while salu: k(salu.pop(0))
                issue_dma(f[1]); salu.extend(m0step(f[1]))
            else: k(f[1]); rd_pos[f[2]] = k.nlg
        else:
            t = f.split('\n')
            if t[0].startswith('buffer_load_dwordx4'):
                while salu: k(salu.pop(0))
            k(t[0]); salu.extend(x.strip() for x in t[1:])
            if f.startswith('ds_write'): stat_pos = k.nlg
    stat_pos = None
    k.wait(lg=k.nlg - rd_pos[0])
    for p in range(4):
        pre = stats(p-1) if p & 1 else []
        bg = (epilogue(p-1) + (getstats(p) if p & 1 else [])) if p else []
        nind = (16 if hw else 20) if p & 1 else 0
        SB = OPT.get('sb', 3)
        nbg = len(bg)
        k1 = OPT.get('e1end', 12) if p == 2 else 16
        tot = sum(vcost(t) for t in bg); done = 0
        val = []
        for ka in range(16):
            g = 16*p + ka
            if OPT.get('gst') and g in OPT['gst']: stamp(k, 1 + OPT['gst'].index(g), True)
            sync = None
            if p & 1 and ka == SB: sync = 'stat'
            if p == 0 and ka in (2, 6, 10): sync = ka + 5
            if p == 1 and ka == 13 and not OPT.get('mergeland'): sync = 31
            rds = []
            if g + 2 < 64:
                for t in reads(g + 2):
                    if t.startswith('ds_'): rds.append(('rd', t, g + 2))
            if g + 3 < 64 and (g + 3) % 16 == 0: late_x = [t for t in reads(g + 3) if not t.startswith('ds_')]
            else: late_x = []
            mem = []
            if memq:
                mr = OPT.get('mrate', 1); n = int((g + 1) * mr) - int(g * mr); n = OPT.get('mfirst', n) if len(dma_pos) < 16 else n; mem = memq[:n]; memq = memq[n:]
            elif wdq and not (p & 1 and ka == SB):
                left = W1 - g
                n = (len(wdq) + left - 1) // left if len(wdq) >= left else int((g + 1) * wrate) - int(g * wrate)
                mem = wdq[:n]; wdq = wdq[n:]
            if ka <= 1 and pre:
                n = 6 if ka == 0 else len(pre); val += pre[:n]; pre = pre[n:]
            o1 = 1 if p & 1 else 0
            budget = tot * (ka + 1 - o1) / (k1 - o1)
            if p & 1 and ka <= 1: budget = -1
            if p & 1 and ka == SB: rds = rds + [t for t in getstats(p-1) if t.startswith('ds_')]
            if p & 1 and ka == 1: val += [t for t in getstats(p-1) if not t.startswith('ds_')]
            while bg and (done + vcost(bg[0])/2 <= budget or ka == k1 - 1) and not (p & 1 and ka <= SB and nbg - len(bg) >= nind):
                done += vcost(bg[0]); val.append(bg.pop(0))
            if g == 48 + OPT.get('esamp', 8) - 1: val += ['v_lshlrev_b32 v5, 7, v3', 'v_lshl_add_u32 v5, v2, 28, v5', 'v_min_u32 v0, 1, v2', 'v_xor_b32 v0, 1, v0', 'v_add_u32 v3, s74, v4']
            if g == 48 + OPT.get('esamp', 8): mem = [f'buffer_load_dword v9, v5, {WSR}, s62 offen{LD}'] + mem
            if g == 48 + OPT.get('echk', 11): val += [f'v_cmp_ne_u32 vcc, v0, v9\n s_cmp_eq_u64 vcc, 0\n s_cselect_b32 s38, s34, 0']
            if g > 48 + OPT.get('echk', 11):
                er = OPT.get('erate', 1); mem = mem + eq[:er]; eq = eq[er:]
            mf = []
            for m in range(2):
                b_ = V(slot(g, m), 4)
                for n in range(3):
                    d = V(acc(p, n, m, ka & 1), 4)
                    first = ka == 0 or (n == 2 and ka == 1 and hw)
                    mf.append(f'v_mfma_f32_16x16x32_bf16 {d}, {A(12*ka+4*n,4)}, {b_}, {"0" if first else d}')
            mf = [mf[i] for i in (0, 3, 4, 1, 2, 5)]
            if p % 2 == 0: mf.insert(0, f'v_mfma_f32_16x16x32_bf16 {V(GR,4)}, {V(slot(g,0),4)}, {V(slot(g,0),4)}, {"0" if ka==0 else V(GR,4)}')
            heads = list(rds)
            for i, t in enumerate(mem): heads.insert(min(len(heads), 2 + 2*i + (1 if len(mem) == 1 else 0)), t)
            N = len(mf)
            ftot = sum(map(hcost, heads)) + sum(hcost(t) if ismem(t) else vcost(t) for t in val) + 4*len(late_x); fd = 0
            flush_val = ka == 15 or (p == 2 and ka == k1 - 1) or (p & 1 and ka == 1) or g - 48 in (OPT.get('esamp', 8) - 1, OPT.get('echk', 11))
            for i, t in enumerate(mf):
                k(t)
                last = i == N - 1
                if i == 0 and sync is not None:
                    if sync == 'stat':
                        assert not pre and not any(x.startswith('ds_write') for x in val)
                        k.wait(lg=k.nlg - stat_pos)
                        if p == 3 or OPT.get('mergeland'): k(f's_waitcnt vmcnt({min(63, k.nvm - (st_pos if p == 3 else dma_pos[31]))})')
                        k('s_barrier')
                        if p == 3 and hw: k(f'v_mov_b32 v{MUV}, 0\n v_mov_b32 v{MUV+1}, 1\n s_mov_b64 exec, 1\n buffer_store_dword v{MUV+1}, v{MUV}, {WSR}, s41 offen{ST}\n s_mov_b64 exec, -1')
                    else: landed(sync)
                if i == 1: island(g)
                nh = 0
                nxt = val[0] if val and ismem(val[0]) else (heads[0] if heads else None)
                if last and g + 1 < 64: k.wait(lg=k.nlg - rd_pos[g + 1])
                elif salu and (nxt is None or hcost(nxt) == 4) and not (i == 1 and OPT.get('isl')): k(salu.pop(0))
                while True:
                    if val and ismem(val[0]) and nh == 0: f = val.pop(0)
                    elif heads and (nh == 0 or len(heads) > N - 1 - i): f = heads.pop(0)
                    else: break
                    emit_mem(f); fd += hcost(f); nh += 1
                if last:
                    for x in late_x: k(x)
                while val and ((not ismem(val[0]) and fd + vcost(val[0])/2 <= ftot * (i+1) / N + 1e-6) or (last and flush_val)):
                    f = val.pop(0)
                    if ismem(f): emit_mem(f); fd += hcost(f)
                    else: k(f); fd += vcost(f)
            assert not heads
            if p == 2 and ka == k1 - 1: st_pos = k.nvm
        assert not bg and not val
        if p == 0: stamp(k, 9)
        if OPT.get('pst'): stamp(k, 1+p, True)
    while salu: k(salu.pop(0))
    assert not wdq
    stamp(k, 10)
    ep = epilogue(3); ne = OPT.get('eepi', 0); gap = 5
    for i, t in enumerate(ep):
        k(t)
        if i % gap == gap - 1 and ne > 0: k(eq.pop(0)); ne -= 1
    assert ne == 0
    if OPT.get('echk') > 15: k(f'v_cmp_ne_u32 vcc, v0, v9\n s_cmp_eq_u64 vcc, 0\n s_cselect_b32 s38, s34, 0')
    if OPT.get('pst'): stamp(k, 5, True)
    return 22 - len(eq)

def hload(hf, u, R):
    return f'buffer_load_dwordx4 {A(88*hf+4*u,4)}, v3, {R}, s75 offen offset:{2048*hf}{LD}\n ' + (f's_add_u32 s75, s75, {4*HFS}' if u < 21 else 's_mov_b32 s75, 0')

def redo(k, soff, hf, n, again=None, pre=None):
    uid[0] += 1; u = uid[0]
    k(f's_cmp_lg_u32 s38, 0\n s_cbranch_scc1 L_sd{u}')
    st = k.state()
    k('s_mov_b32 s46, 0')
    if pre: k(f'v_cmp_ne_u32 vcc, v0, v{pre}\n s_cbranch_vccz L_sg{u}')
    k.label(f'L_sp{u}')
    k(f"""buffer_load_dword v6, v5, {WSR}, {soff} offen{LD}
    s_add_u32 s46, s46, 1
    s_waitcnt vmcnt(0)
    v_cmp_ne_u32 vcc, v0, v6
    s_cmp_gt_u32 s46, {SPIN}
    s_cbranch_scc1 L_sg{u}
    s_cbranch_vccnz L_sp{u}""")
    k.label(f'L_sg{u}')
    k('s_mov_b32 s75, 0')
    for j in range(n): k(hload(hf, j, RB))
    if again: again()
    k.restore(st)
    k.vm = [set()] * 8 + [{('a', 88*hf+4*j+r) for r in range(4)} for j in range(n)]
    k.label(f'L_sd{u}')

def spin(k, reg, soff):
    uid[0] += 1; u = uid[0]
    k(f'v_cmp_ne_u32 vcc, v0, v{reg}\n s_mov_b32 s46, 0\n s_cbranch_vccz L_sd{u}')
    st = k.state()
    k.label(f'L_sp{u}')
    k(f"""buffer_load_dword v{reg}, v5, {WSR}, {soff} offen{LD}
    s_add_u32 s46, s46, 1
    s_waitcnt vmcnt(0)
    v_cmp_ne_u32 vcc, v0, v{reg}
    s_cmp_gt_u32 s46, {SPIN}
    s_cbranch_scc1 L_sd{u}
    s_cbranch_vccnz L_sp{u}""")
    k.restore(st)
    k.label(f'L_sd{u}')

QS, INS, PS = 1152, 4736, 9472
def p4(k, n0, nst):
    HR, RD, SUM = 32, 40, 128
    PRE = OPT.get('p4pre', 14)
    EP = OPT.get('epost', 6)
    k.vm = [{('a', 4*j+r) for r in range(4)} for j in range(n0)] + [set()] * nst
    if OPT.get('sbar'): k('s_barrier')
    el = [hload(0, j, RC) for j in range(n0, n0 + EP)]
    if not OPT.get('mix'):
        for t in el: k(t)
        el = []
    U0 = n0 if not OPT.get('nopre') else 0
    n0 += EP
    setup = f"""s_mov_b32 s28, s18
    s_and_b32 s29, s19, 0xffff
    s_mov_b32 s30, {S*D*2}
    s_lshr_b32 s65, s2, 5
    v_lshrrev_b32 v16, 3, v1
    v_bfe_u32 v17, v1, 1, 2
    s_lshl_b32 s46, s65, 2
    v_add_u32 v17, s46, v17            ; 16-column block
    v_sub_u32 v18, 31, v17
    v_min_u32 v18, v17, v18
    v_lshlrev_b32 v18, 17, v18
    v_lshrrev_b32 v17, 4, v17
    v_lshl_add_u32 v18, v17, 16, v18
    v_lshl_add_u32 v18, v16, 4, v18
    v_and_b32 v17, 1, v1
    v_lshl_add_u32 v8, v17, 15, v18    ; residual
    s_lshl_b32 s66, s73, 9
    s_lshl_b32 s46, {WAVE}, 7
    s_add_u32 s66, s66, s46
    s_add_u32 s66, s66, {HRES}
    v_mov_b32 v20, 0
    v_mov_b32 v21, 1
    s_add_u32 s41, s41, 0x8000
    s_lshr_b32 s46, s73, 2
    s_lshl_b32 s46, s46, 17
    s_and_b32 s44, s73, 3
    s_lshl_b32 s44, s44, 2
    s_add_u32 s44, s44, {WAVE}
    s_lshl_b32 s44, s44, 10
    s_add_u32 s67, s46, s44
    s_lshl_b32 s45, s65, 7
    s_add_u32 s67, s67, s45
    s_add_u32 s68, s67, 0x2000
    v_and_b32 v9, 7, v1
    v_lshlrev_b32 v9, 4, v9
    v_and_b32 v18, 3, v16
    v_lshl_add_u32 v9, v18, 15, v9
    v_lshrrev_b32 v18, 2, v16
    v_lshl_add_u32 v9, v18, 14, v9     ; output
    v_lshrrev_b32 v18, 5, v1
    v_lshl_add_u32 v10, v18, 6, v4
    s_mul_i32 s44, {WAVE}, {PS}
    v_add_u32 v10, s44, v10            ; partial sums, write
    v_bfe_u32 v18, v1, 2, 1
    v_mul_u32_u24 v11, {INS}, v18
    v_bfe_u32 v18, v1, 1, 1
    v_mul_u32_u24 v18, 576, v18
    v_add_u32 v11, v11, v18
    v_lshl_add_u32 v11, v16, 4, v11
    v_lshl_add_u32 v11, v17, 3, v11
    s_lshl_b32 s44, {WAVE}, 7
    v_add_u32 v11, s44, v11            ; partial sums, read
    v_add_u32 v12, {4*PS}, v11""".split('\n')
    def resid(hf): k(f'buffer_load_dwordx4 {V(HR+4*hf,4)}, v8, {WSR}, s66 offen offset:{1024*hf}{LD}')
    def mf(hf, u, i):
        d = V(ACC+32*hf+16*i, 16)
        return f'v_mfma_f32_32x32x16_bf16 {d}, {wd_reg(u, i)}, {A(88*hf+4*u,4)}, {"0" if u==0 else d}'
    def mm(hf, issued, hook):
        q = []
        for j in range(22):
            if hf == 0 and j >= OPT.get('wdin', 22) and j % 2 == 0:
                w = wd_loads(j); q += [lambda t=t: k(t) for t in w[:3] + [w[3] + '\n' + w[4]]]
            if j >= issued: q.append(lambda j=j: k(hload(hf, j, RB)))
        q.append(lambda: resid(hf))
        TL = OPT.get('tl', 0) if hf == 1 else 0
        for u in range(U0 if hf == 0 else 0, 22 - TL):
            for i in range(2):
                k(mf(hf, u, i))
                if q and (i == 0 or len(q) > 22 - u - OPT.get('lead', 8)): q.pop(0)()
                hook(u, i)
    def red_write(hf):
        o = [f'ds_write_b128 v10, {V(ACC+32*hf+16*i+4*q,4)} offset:{4*PS*hf+INS*i+QS*q}' for i in range(2) for q in range(4)]
        for j in range(4):
            o += [f'v_lshlrev_b32 v{SUM+4*(j&1)+(j>>1)}, 16, v{HR+4*hf+j}', f'v_and_b32 v{SUM+4*(j&1)+2+(j>>1)}, 0xffff0000, v{HR+4*hf+j}']
        return o
    def red_read(hf, pk=True):
        R = lambda w, q: (RD + 8*w + 2*q) if w < 3 else SUM + 8 + 2*q
        o = [f'ds_read_b64 {V(R(w,q),2)}, v{11+hf} offset:{PS*w+QS*q}' for w in range(4) for q in range(4)]
        if pk: o += [f'v_pk_add_f32 {V(SUM+2*q,2)}, {V(SUM+2*q,2)}, {V(R(w,q),2)}' for w in range(4) for q in range(4)]
        else: o += [f'v_add_f32 v{SUM+2*q+h}, v{SUM+2*q+h}, v{R(w,q)+h}' for w in range(4) for q in range(4) for h in range(2)]
        o += [f'v_cvt_pk_bf16_f32 v{HR+4*hf+j}, v{SUM+4*(j&1)+(j>>1)}, v{SUM+4*(j&1)+2+(j>>1)}' for j in range(4)]
        return o + [f'buffer_store_dwordx4 {V(HR+4*hf,4)}, v9, {RA}, s{67+hf} offen{OPT.get("ost", "")}']
    pre = [mf(0, u, i) for u in range(U0) for i in range(2)]
    for t in pre:
        k(t)
        for x in setup[:5]: k(x)
        setup = setup[5:]
    while setup or el:
        if el: k(el.pop(0))
        for x in setup[:4]: k(x)
        setup = setup[4:]
    k(f's_waitcnt vmcnt({EP})'); k('s_barrier')
    only_wave(k, 0, lambda: k(f's_mov_b64 exec, 1\n buffer_store_dword v21, v20, {WSR}, s41 offen{ST}'))
    stamp(k, 11)
    redo(k, 's62', 0, n0, lambda: [k(t) for t in pre])
    if OPT.get('p4st'): stamp(k, 1, True)
    LP, LC = OPT.get('lpoll', 11), OPT.get('lchk', 15)
    nl = [0]
    def hook0(u, i):
        if u == LP and i == 1: k(f'buffer_load_dword v6, v5, {WSR}, s63 offen{LD}')
        if u == LC and i == 0: k('v_cmp_ne_u32 vcc, v0, v6\n s_cmp_eq_u64 vcc, 0\n s_cselect_b32 s38, s34, 0')
        if u == OPT.get('lp2', -1) and i == 0: k(f'buffer_load_dword v7, v5, {WSR}, s63 offen{LD}')
        if (u, i) > (LC, 0) and (i == 1 or OPT.get('lrate2')): k(hload(1, nl[0], RC)); nl[0] += 1
    mm(0, n0, hook0)
    if OPT.get('p4st'): stamp(k, 2, True)
    for j, t in enumerate(red_write(0)):
        k(t)
        if j < OPT.get('lmid', 5): k(hload(1, nl[0], RC)); nl[0] += 1
    if OPT.get('p4st'): stamp(k, 3, True)
    redo(k, 's63', 1, nl[0], pre=7 if OPT.get('lp2') else None)
    if OPT.get('p4st'): stamp(k, 4, True)
    rr = red_read(0, False)
    def hook1(u, i):
        if u == 1 and i == 1: k.wait(lg=0); k('s_barrier')
        if u >= 2:
            for _ in range(4 if i else 2):
                if rr: k(rr.pop(0))
    mm(1, nl[0], hook1)
    assert not rr
    if OPT.get('p4st'): stamp(k, 5, True)
    TL = OPT.get('tl', 0); rw = red_write(1)
    for u in range(22 - TL, 22): k(mf(1, u, 0))
    for j, u in enumerate(range(22 - TL, 22)):
        k(mf(1, u, 1))
        if j == 0:
            for t in rw[8:]: k(t)
            rw = rw[:8]
        elif len(rw) > 4 and j >= 2: k(rw.pop(0))
    for t in rw: k(t)
    k.wait(lg=0); k('s_barrier')
    for t in red_read(1): k(t)

DOC = """;
;   phase 1  rows: LN1 statistics + Z = LN1(x) C (two MFMA steps, 32 x 16);  weights: W' = C^T [Wgate|Wup];
; Hand-offs: write-through (sc1) stores, vmcnt wait, workgroup barrier, then a counter / flag; consumers use sc1 loads.
"""
def fused():
    k = K()
    prologue(k)
    if OPT.get('prio'): only_wave(k, 0, lambda: k('s_setprio 3'))
    k(f's_cmp_ge_u32 s2, {NZ}\n s_cbranch_scc1 L_notz')
    st0 = k.state()
    p1_z(k)
    k.label('L_join1')
    k.vm = [set()] * 40; k.lg = []
    setup(k)
    stamp(k, 3)
    negs = lambda: [p2_negs(k, b) for b in (B1, A2, B3, A4)]
    def ztab():
        if OPT.get('ztpre'): return
        uid[0] += 1; u = uid[0]
        k((f's_cmp_ge_u32 s2, {NZ}' if OPT.get('ttpre') else 's_cmp_lg_u32 s71, 0') + f'\n s_cbranch_scc1 L_zt{u}')
        st_ = k.state()
        for t in ztl: k(t)
        k.restore(st_); k.label(f'L_zt{u}')
    stamp(k, 8, 'z')
    k(f's_cmp_lg_u32 {WAVE}, 0\n s_cbranch_scc1 L_b1o')
    st = k.state()
    k('s_mov_b64 exec, 1\n s_mov_b32 s46, 0\n s_waitcnt vmcnt(0)')
    k.label('L_go')
    k(f"""v_cmp_ne_u32 vcc, 0, v254
    s_add_u32 s46, s46, 1
    s_cbranch_vccnz L_gone
    global_load_dword v254, v250, s[20:21]{LD}
    s_waitcnt vmcnt(0)
    s_cmp_lt_u32 s46, {SPIN}
    s_cbranch_scc1 L_go""")
    k.restore(st); k.vm = []
    k.label('L_gone')
    stamp(k, 9, 'z')
    k('s_barrier')
    k(f's_cmp_eq_u32 s71, 0\n s_cbranch_scc1 L_b1a\n buffer_store_dword v251, v250, {WSR}, s71 offen{ST}\n s_mov_b64 exec, -1\n s_branch L_b1n')
    k.label('L_b1a')
    k(f'buffer_atomic_add v251, v250, {WSR}, s74 offen sc0 sc1\n s_mov_b64 exec, -1')
    stamp(k, 10, 'z')
    if OPT.get('z0'):
        for t in ztl: k(t)
    setup_late(k); arrive_check(k, 250, 's75', 19, 1)
    k('s_mov_b64 exec, -1')
    if not OPT.get('z0'): ztab()
    k('s_mov_b64 exec, -1\n s_branch L_b1m')
    k.restore(st); k.label('L_b1o')
    k('s_waitcnt vmcnt(0)')
    stamp(k, 9, 'z')
    k('s_barrier')
    k.label('L_b1n')
    stamp(k, 10, 'z')
    if OPT.get('zfirst'): ztab()
    setup_late(k)
    if not OPT.get('zfirst'): ztab()
    k.label('L_b1m')
    k('s_waitcnt vmcnt(0)')
    negs()
    rbclear = lambda: k(f'v_lshlrev_b32 v252, 15, v1\n s_mov_b64 exec, 3\n buffer_store_dword v250, v252, {WSR}, s41 offen{ST}')
    k.label('L_b1q')
    only_wave(k, 1, rbclear)
    only_wave(k, 0, lambda: poll(k, 250, 1))
    k.label('L_b1x')
    k.vm = []
    k('s_barrier')
    stamp(k, 4)
    stamp(k, 11, 'z'); stamp(k, 1, 'b')
    barrier2(k, p2(k))
    n0 = p3_body(k, False)
    nst = 0
    nst = 2
    k.label('L_join3')
    k.fence()
    p4(k, n0, nst)
    stamp_out(k, 12)
    k.label('L_end'); k('s_endpgm')
    k.restore(st3); k.label('L_p3h'); assert p3_body(k, True) == n0
    assert not any(k.vm[-nst:]); k('s_branch L_join3')
    k.restore(st0); k.label('L_notz')
    p1_w(k)
    if OPT.get('slowjoin'): k('s_branch L_join1')
    else:
        stamp(k, 3)
        wd_pack(k)
        if OPT.get('slate'): twiddles(k); negs()
        k(f"""s_lshl_b32 s44, s74, 3
        s_add_u32 s44, s44, {FLG}
        v_and_b32 v252, 7, v1
        v_lshlrev_b32 v252, 8, v252
        v_mov_b32 v254, v254               ; the go word has been read before the flags are sampled
        buffer_load_dword v253, v252, {WSR}, s44 offen{LD}""")
        if not OPT.get('slate'): twiddles(k); negs()
        stamp(k, 8, 'z')
        k('s_waitcnt vmcnt(1)')
        def go1():
            k('s_mov_b32 s46, 0')
            k.label('L_go2')
            k(f"""v_cmp_ne_u32 vcc, 0, v254
            s_add_u32 s46, s46, 1
            s_cbranch_vccnz L_gone2
            global_load_dword v254, v250, s[20:21]{LD}
            s_waitcnt vmcnt(0)
            s_cmp_lt_u32 s46, {SPIN}
            s_cbranch_scc1 L_go2""")
            k.label('L_gone2')
        only_wave(k, 1, go1)
        stamp(k, 9, 'z')
        k('s_barrier')
        stamp(k, 10, 'z')
        only_wave(k, 1, lambda: k(f's_mov_b64 exec, 1\n buffer_store_dword v251, v250, {WSR}, s71 offen{ST}'))
        wd_finish(k)
        k(f's_cmp_lg_u32 {WAVE}, 0\n s_cbranch_scc1 L_b1q')
        k(f'v_min_u32 v253, v253, v254\n v_cmp_eq_u32 vcc, 0, v253\n s_cbranch_vccnz L_b1q')
        k('s_branch L_b1x')
    k.restore(st_c); k.label('L_p1c')
    k(f's_cmp_ge_u32 s2, {NI0}\n s_cbranch_scc1 L_p1i')
    st1 = k.state()
    p1_t(k); k('s_branch L_join1')
    k.restore(st1); k.label('L_p1i'); p1_i(k); k('s_branch L_join1')
    o = header()
    o += f'; @launch grid=(256,1,1) block=(256,1,1) lds={STATL+4096}\n'
    o += DOC
    o += '.amdgcn_target "amdgcn-amd-amdhsa--gfx950"\n.text\n' + k.text()
    o += tables_text() + 'L_image_end:\n'
    o += '.section .rodata,"a"\n.p2align 6\n' + kd(KN, k)
    return o

if __name__ == '__main__':
    out = sys.argv[1]
    for a in sys.argv[2:]:
        key, _, val = a.partition('=')
        OPT[key] = eval(val) if val else True
    open(out, 'w').write(fused())
```

```python
import sys, math, struct
import numpy as np
from dsl import K
from design import *
import gen
from gen import V, A, Sg, fbits, TBL, tables_text, header, kd, NAME, srd, cmul, TPAD
del gen.tbl_data[1:3]
TBL['P2W'] -= 65536; TBL['P2S'] -= 65536

OPT = dict(stamps=False, gblate=True, tpost=True, every=48, mergeland=True, mrate=1.5, nopre=True, w0late=True, nA=6, c1=1, fpos=0, c2=1, prio=True, wgbfirst=False, wdshadow=True, wcont=True, nord=True, hold=True, esamp=8, e1end=13, echk=15, epost=8, wdend=62, lpoll=9, lchk=16, retouch=True, ntx=' nt', ntd=' nt', lp2=17, sbar=True, dpre=12, mfirst=2, zfirst=True, slate=True, zev=24, twe=True, th=True, ost=' sc1')
ST, LD = ' sc1', ' sc1'
WSR, RA, RB, RC = 's[24:27]', 's[28:31]', 's[32:35]', 's[36:39]'
WAVE = 's40'
KN = NAME + '_kernel'
SPIN = 400000
TW1, TW2 = 112, 128
B1, A4, A2, B3 = 144, 168, 192, 216
FA, GB = 200, 208
NZ, NC0, NI0 = 128, 216, 248
uid = [0]

def stamp(k, i, pm=False):
    if OPT.get('pst') and 1 <= i <= 5 and not pm: return
    if OPT.get('zdet') and 1 <= i <= 11 and pm != 'z': return
    if pm == 'z' and not OPT.get('zdet'): return
    if OPT.get('bdet') and 1 <= i <= 11 and pm != 'b': return
    if pm == 'b' and not OPT.get('bdet'): return
    if OPT['stamps']: k(f's_{"memtime" if OPT.get("pst") else "memrealtime"} s[{76+2*i}:{77+2*i}]')
def stamp_out(k, n):
    if not OPT['stamps']: return
    k.wait(vm=0, lg=0); stamp(k, n); n += 1; k.wait(lg=0)
    k(f's_lshl_b32 s44, s2, 8\n s_lshl_b32 s45, {WAVE}, 6\n s_add_u32 s44, s44, s45\n s_add_u32 s44, s44, {STAMP}')
    for i in range(16): k(f'v_mov_b32 v{8+i}, s{76+2*i}' if i < n else f'v_mov_b32 v{8+i}, 0')
    k('v_mov_b32 v24, 0\n s_mov_b64 exec, 1')
    for q in range(4): k(f'buffer_store_dwordx4 {V(8+4*q,4)}, v24, {WSR}, s44 offen offset:{16*q}')

def wsrd(k, base, end):
    k(f's_mov_b32 s{base}, s24\n s_mov_b32 s{base+1}, s25\n s_mov_b32 s{base+2}, {end}\n s_mov_b32 s{base+3}, 0x20000')

def tbl_addr(k, vp, soff):
    k(f"""s_add_u32 s46, s42, {soff}
    s_addc_u32 s47, s43, 0
    v_mov_b32 v{vp+1}, s47
    v_add_co_u32 v{vp}, vcc, s46, v4
    v_addc_co_u32 v{vp+1}, vcc, 0, v{vp+1}, vcc""")

def gb_loads(k):
    for q in range(8): k(f'global_load_dwordx4 {A(GB+4*q,4)}, v[8:9], off offset:{1024*q-4096}')

GV = 144
def gb_gen(k, zpath, T=176):
    cvt = 'v_cvt_pk_f16_f32' if zpath else 'v_cvt_pk_bf16_f32'
    k(f"""v_cmp_gt_u32 vcc, 8, v3
    v_and_b32 v{T}, 7, v3
    v_lshlrev_b32 v{T}, 5, v{T}
    v_mov_b32 v{T+1}, 0x80008000
    v_cndmask_b32 v{T+2}, 0, v{T+1}, vcc
    v_cndmask_b32 v{T+3}, v{T+1}, 0, vcc
    v_lshl_add_u32 v{T+4}, v2, 3, 1
    v_cvt_f32_u32 v{T+4}, v{T+4}
    v_mul_f32 v{T+4}, {fbits(1/1024)}, v{T+4}
    v_add_f32 v{T+5}, {fbits(2/1024)}, v{T+4}
    v_add_f32 v{T+6}, {fbits(4/1024)}, v{T+4}
    v_add_f32 v{T+7}, {fbits(6/1024)}, v{T+4}
    s_lshl_b32 s46, {WAVE}, 2
    v_cndmask_b32 v{T+1}, -1.0, 1.0, vcc
    s_sub_u32 s47, 32, s46
    v_mov_b32 v{T+8}, s47
    v_mov_b32 v{T+9}, s46
    v_cndmask_b32 v{T+8}, v{T+8}, v{T+9}, vcc
    v_add_u32 v{T+8}, v{T+8}, v{T}
    v_cvt_f32_u32 v{T+8}, v{T+8}""")
    def one(q, kf, off=None, sc=None):
        A_, G = T + 10, GV + 8*q
        for r in range(4):
            k(f'v_mul_f32 v{A_+r}, v{kf}, v{T+4+r}' if off is None else f'v_fma_f32 v{A_+r}, v{kf}, v{T+4+r}, v{off}')
            k(f'v_fract_f32 v{A_+r}, v{A_+r}')
        for r in range(4): k(f'v_sin_f32 v{A_+4+r}, v{A_+r}\n v_cos_f32 v{A_+r}, v{A_+r}')
        if sc is not None:
            for r in range(8): k(f'v_mul_f32 v{A_+r}, v{A_+r}, v{sc}')
        for h in range(2):
            k(f'{cvt} v{G+h}, v{A_+2*h}, v{A_+2*h+1}\n {cvt} v{G+4+h}, -v{A_+4+2*h}, -v{A_+4+2*h+1}')
    for q in range(4):
        one(q, T+8)
        for h in range(2): k(f'v_xor_b32 v{GV+8*q+2+h}, v{GV+8*q+4+h}, v{T+2}\n v_xor_b32 v{GV+8*q+6+h}, v{GV+8*q+h}, v{T+3}')
        if q < 3: k(f'v_add_f32 v{T+8}, v{T+8}, v{T+1}')
    def slot0():
        k(f"""v_cmp_gt_u32 vcc, 8, v3
        v_add_u32 v{T+8}, 16, v{T}
        v_cmp_eq_u32 s[46:47], 0, v3
        v_cndmask_b32 v{T+8}, v{T+8}, v{T}, vcc
        v_mov_b32 v{T+9}, 0x100
        v_mov_b32 v{T+18}, {fbits(math.sqrt(0.5))}
        v_mov_b32 v{T+19}, {fbits(0.25 if zpath else 0.0)}
        v_cndmask_b32 v{T+8}, v{T+8}, v{T+9}, s[46:47]
        v_cndmask_b32 v{T+18}, 1.0, v{T+18}, s[46:47]
        v_cndmask_b32 v{T+19}, 0, v{T+19}, s[46:47]
        v_cvt_f32_u32 v{T+8}, v{T+8}""")
        one(0, T+8, T+19, T+18)
        for o in (0, 4):
            for h in range(2): k(f'v_cndmask_b32 v{GV+o+2+h}, v{GV+o+h}, 0, vcc\n v_cndmask_b32 v{GV+o+h}, 0, v{GV+o+h}, vcc')
        k.fence()
    only_wave(k, 0, slot0)
    if not zpath:
        for i in range(32): k(f'v_accvgpr_write_b32 a{GB+i}, v{GV+i}')

def prologue(k):
    k.raw(f'.globl {KN}\n.p2align 8\n.type {KN},@function\n{KN}:')
    stamp(k, 0)
    k(f"""s_load_dwordx16 s[4:19], s[0:1], 0
    s_load_dwordx4 s[20:23], s[0:1], 64
    s_getpc_b64 s[42:43]""")
    k.raw('L_pc:')
    k(f"""s_cmp_ge_u32 s2, 256
    s_cbranch_scc1 L_end
    v_lshrrev_b32 v5, 6, v0
    v_and_b32 v1, 63, v0
    v_readfirstlane_b32 {WAVE}, v5
    s_lshr_b32 s44, s2, 3
    v_lshl_add_u32 v5, v5, 5, s44
    v_lshlrev_b32 v6, {7 if OPT.get('pf128') else 6}, v1
    v_lshl_add_u32 v5, v5, {13 if OPT.get('pf128') else 12}, v6      ; one dword per line""")
    k.raw('    v_min_u32 v5, L_image_end-L_pc-4, v5'); k.pos += 1
    k(f"""v_mov_b32 v7, s43
    v_add_co_u32 v6, vcc, s42, v5
    v_addc_co_u32 v7, vcc, 0, v7, vcc
    global_load_dword v255, v[6:7], off
    v_bfe_u32 v2, v0, 4, 2
    v_and_b32 v3, 15, v0
    v_lshlrev_b32 v4, 4, v1""")
    k.raw('    s_add_u32 s42, s42, tables-L_pc\n    s_addc_u32 s43, s43, 0'); k.pos += 2
    k(f's_cmp_ge_u32 s2, {NC0}\n s_cbranch_scc1 L_p1c')
    global st_c
    st_c = k.state()
    tbl_addr(k, 6, TBL['FA'])
    for c in range(2): k(f'global_load_dwordx4 {A(FA+4*c,4)}, v[6:7], off offset:{1024*c}')

def go_load(k, b):
    k(f'v_mov_b32 v{b}, 0\n global_load_dword v{b+4}, v{b}, s[20:21]{LD}')
def arrive_issue(k, b, cnt, go):
    k(f'v_mov_b32 v{b}, 0\n v_mov_b32 v{b+1}, 1\n s_mov_b64 exec, 1')
    if go:
        uid[0] += 1; u = uid[0]
        k('s_mov_b32 s46, 0')
        k.label(f'L_go{u}')
        k(f"""s_waitcnt vmcnt(0)
        v_cmp_ne_u32 vcc, 0, v{b+4}
        s_add_u32 s46, s46, 1
        s_cbranch_vccnz L_gone{u}
        global_load_dword v{b+4}, v{b}, s[20:21]{LD}
        s_cmp_lt_u32 s46, {SPIN}
        s_cbranch_scc1 L_go{u}""")
        k.label(f'L_gone{u}')
    k(f'buffer_atomic_add v{b+1}, v{b}, {WSR}, {cnt} offen sc0 sc1')
def arrive_check(k, b, flg, last, val):
    uid[0] += 1; u = uid[0]
    k(f"""s_mov_b64 exec, 0xff
    v_lshlrev_b32 v{b+2}, 11, v1
    v_mov_b32 v{b}, {val}
    v_readfirstlane_b32 s47, v{b+1}
    s_cmp_lg_u32 s47, {last}
    s_cbranch_scc1 L_nl{u}""")
    st = k.state()
    k(f'buffer_store_dword v{b}, v{b+2}, {WSR}, {flg} offen{ST}')
    k.restore(st)
    k.label(f'L_nl{u}')
def poll(k, b, val):
    uid[0] += 1; u = uid[0]
    k(f"""s_mov_b64 exec, 0xff
    v_lshlrev_b32 v{b+3}, 8, v1
    s_and_b32 s44, s2, 7
    s_lshl_b32 s44, s44, 11
    s_add_u32 s44, s44, {FLG}
    s_mov_b32 s46, 0""")
    k.label(f'L_bp{u}')
    k(f"""buffer_load_dword v{b+1}, v{b+3}, {WSR}, s44 offen{LD}
    s_add_u32 s46, s46, 1
    s_waitcnt vmcnt(0)
    v_cmp_gt_u32 vcc, {val}, v{b+1}
    s_cmp_gt_u32 s46, {SPIN}
    s_cbranch_scc1 L_bd{u}
    s_cbranch_vccnz L_bp{u}""")
    k.label(f'L_bd{u}')
    k('s_mov_b64 exec, -1')
def only_wave(k, w, fn):
    uid[0] += 1; u = uid[0]
    k(f's_cmp_lg_u32 {WAVE}, {w}\n s_cbranch_scc1 L_ow{u}')
    st = k.state(); fn(); k('s_mov_b64 exec, -1'); k.restore(st); k.label(f'L_ow{u}')

def p2_tables(k, vp=26):
    k(f's_lshl_b32 s44, {WAVE}, 13\n s_add_u32 s44, s44, {TBL["P2W"]+4096}')
    tbl_addr(k, vp, 's44'); tbl_addr(k, vp+2, TBL['P2S']+4096)
    o = [f'global_load_dwordx4 {V(B1+6*u+2,4)}, {V(vp,2)}, off offset:{1024*u-4096}' for u in range(4)]
    o += [f'global_load_dwordx4 {V(A2+6*u+2,4)}, {V(vp+2,2)}, off offset:{1024*u-4096}' for u in range(4)]
    o += [f'global_load_dwordx4 {V(B3+6*u+2,4)}, {V(vp+2,2)}, off offset:{1024*u}' for u in range(4)]
    o += [f'global_load_dwordx4 {V(A4+6*u+2,4)}, {V(vp,2)}, off offset:{1024*u}' for u in range(4)]
    return o
def flush(k):
    sp, k.sprinkle = k.sprinkle, []
    for t in sp: k(t)

def gtouch(k, dst):
    k(f"""s_bitcmp1_b32 s2, 0
    s_cselect_b32 s36, s14, s12
    s_cselect_b32 s37, s15, s13
    s_and_b32 s37, s37, 0xffff
    s_mov_b32 s38, {D*F*2}
    s_lshr_b32 s44, s2, 3
    s_lshl_b32 s44, s44, 2
    s_add_u32 s44, s44, {WAVE}
    s_mul_i32 s44, s44, {8*2752}
    s_bfe_u32 s46, s2, 0x20001
    s_mul_i32 s46, s46, 704
    s_add_u32 s44, s44, s46
    v_and_b32 v15, 7, v1
    v_lshlrev_b32 v15, 7, v15
    v_min_u32 v15, 700, v15
    v_lshrrev_b32 v16, 3, v1
    v_mul_u32_u24 v16, 2752, v16
    v_add_u32 v15, v15, v16
    s_mov_b32 exec_lo, 0x7f7f7f7f
    s_mov_b32 exec_hi, 0x7f7f7f7f
    buffer_load_dword v{dst}, v15, {RC}, s44 offen
    s_mov_b64 exec, -1""")

def p1_z(k):
    X, DA, TR, SS, WL, WO = 32, 48, 80, 96, 104, 120
    k(f"""s_and_b32 s44, s2, 7
    s_lshr_b32 s45, s2, 4
    s_lshl_b32 s45, s45, 3
    s_add_u32 s44, s44, s45
    s_lshl_b32 s44, s44, 1
    s_bfe_u32 s45, s2, 0x10003
    s_add_u32 s60, s44, s45            ; (t,g,beta,bq)
    s_lshr_b32 s61, s60, 3
    s_lshl_b32 s61, s61, 7
    s_and_b32 s44, s60, 7
    s_lshl_b32 s44, s44, 2
    s_add_u32 s44, s44, s61
    s_add_u32 s44, s44, {WAVE}
    s_lshl_b32 s56, s44, 10
    s_add_u32 s57, s56, 0x8000
    s_add_u32 s58, s56, 0x10000
    s_add_u32 s59, s56, 0x18000
    s_mov_b32 s38, {S*D*2}
    s_mov_b32 s39, 0x20000
    s_bfe_u32 s48, s2, 0x20003
    s_and_b32 s44, s2, 7
    s_lshl_b32 s44, s44, 2
    s_add_u32 s48, s48, s44
    s_and_b32 s44, s2, 0x60
    s_add_u32 s48, s48, s44
    s_add_u32 s48, s48, 128""")
    wt_rows(k, 's48', 49)
    k(f's_mul_i32 s44, {WAVE}, {64*514}\n s_add_u32 s49, s49, s44')
    if OPT.get('gp', 0) == 0: gb_gen(k, True)
    k.wait(lg=0)
    stamp(k, 1, 'z')
    k('s_mov_b32 s36, s4\n s_and_b32 s37, s5, 0xffff')
    for i in range(4): k(f'buffer_load_dwordx4 {V(X+4*i,4)}, v4, {RC}, s{56+i} offen{OPT.get("ntx", "")}')
    if OPT.get('gp', 0) == 1: gb_gen(k, True)
    k(WSRDS)
    if not OPT.get('nowpf'):
        k(f"""v_lshrrev_b32 v15, 1, v3
        v_mul_u32_u24 v15, 514, v15
        v_and_b32 v16, 1, v1
        v_mul_u32_u24 v16, 126, v16
        v_add_u32 v15, v15, v16
        s_mov_b32 s45, 0x5555
        s_and_b32 s44, s48, 3
        s_cmp_eq_u32 s44, 3
        s_cselect_b32 exec_lo, 0xffff, {'s45' if OPT.get('th') else '0xffff'}
        s_mov_b32 exec_hi, 0
        buffer_load_ushort v{WO}, v15, {RA}, s49 offen{OPT.get('ntw', '')}
        buffer_load_ushort v{WO+1}, v15, {RB}, s49 offen{OPT.get('ntw', '')}
        s_mov_b64 exec, -1""")
    if OPT.get('wreal'): k(f'buffer_load_dwordx4 {V(WL,4)}, v11, {RA}, s49 offen\n buffer_load_dwordx4 {V(WL+4,4)}, v11, {RB}, s49 offen')
    if OPT.get('gbz') == 0: gb_loads(k)
    if OPT.get('gp', 0) == 2: gb_gen(k, True)
    k('v_mov_b32 v15, v11')
    wl_ = [f'buffer_load_dwordx4 {V(WL,4)}, v15, {RA}, s49 offen', f'buffer_load_dwordx4 {V(WL+4,4)}, v15, {RB}, s49 offen']
    wt_dest(k, 's48', 50)
    k(f"""s_lshl_b32 s44, {WAVE}, 2
    s_add_u32 s44, s44, 0xa000
    v_add_u32 v12, s44, v12
    s_lshl_b32 s44, {WAVE}, 5
    v_xor_b32 v13, s44, v4
    s_lshl_b32 s44, {WAVE}, 11
    s_add_u32 s44, s44, 0xa000
    v_add_u32 v13, s44, v13
    v_xor_b32 v14, 16, v13
    s_lshl_b32 s44, {WAVE}, 11
    s_add_u32 s50, s50, s44
    s_add_u32 s51, s50, 1024""")
    srd(k, 24, 22, WS_USED)
    k(f"""s_lshl_b32 s44, {WAVE}, 12
    v_add_u32 v30, s44, v4
    v_lshrrev_b32 v31, 1, v4
    v_add_u32 v31, s44, v31
    v_mul_u32_u24 v6, {TPAD}, v3
    v_lshl_add_u32 v6, v2, 8, v6
    s_lshl_b32 s44, {WAVE}, 6
    s_add_u32 s44, s44, 16384
    v_add_u32 v6, s44, v6
    s_mul_i32 s44, {WAVE}, {4*TPAD}
    s_add_u32 s44, s44, 16384
    v_add_u32 v7, s44, v4
    v_cmp_eq_u32 vcc, 0, v3
    v_cndmask_b32 v8, 0, 1.0, vcc
    s_mov_b32 s62, 0x3f803f80
    v_lshlrev_b32 v9, 6, v3
    v_lshl_add_u32 v9, v2, 4, v9
    s_lshl_b32 s44, s60, 14
    s_lshl_b32 s63, s60, 7
    s_add_u32 s63, s63, {SM}
    s_lshl_b32 s47, {WAVE}, 12
    s_add_u32 s44, s44, s47
    s_add_u32 s64, s44, {ZT}
    s_lshl_b32 s44, {WAVE}, 4
    s_add_u32 s44, s44, 0x9000
    v_lshl_add_u32 v10, v2, 2, s44""")
    if OPT.get('gp', 0) == 3: gb_gen(k, True)
    tl = []
    if True:
        stamp(k, 2, 'z')
        for i in range(4):
            k(f'ds_write_b128 v30, {V(X+4*i,4)} offset:{1024*i}')
            if i == 0: stamp(k, 1)
            for r in range(2): k(f'ds_read_b64_tr_b16 {V(TR+4*i+2*r,2)}, v31 offset:{1024*i+512*r}')
            for j in range(4):
                k(f'v_dot2_f32_bf16 v{SS+i}, v{X+4*i+j}, s62, {"0" if j==0 else V(SS+i)}')
                k(f'v_dot2_f32_bf16 v{SS+4+i}, v{X+4*i+j}, v{X+4*i+j}, {"0" if j==0 else V(SS+4+i)}')
        stamp(k, 3, 'z')
        k.sprinkle = tl; k.every = OPT.get('zev', 40); k.since = 100
        stamp(k, 4, 'z')
        mf = [f'v_mfma_f32_16x16x32_bf16 {V(DA+8*i+4*c,4)}, {V(TR+4*i,4)}, {A(FA+4*c,4)}, 0' for i in range(4) for c in range(2)]
        k(mf.pop(0)); k(mf.pop(0))
        for b in (SS, SS+4):
            k(f'v_permlane32_swap_b32 v{b}, v{b+2}\n v_permlane32_swap_b32 v{b+1}, v{b+3}')
        for b in (SS, SS+4):
            k(f'v_add_f32 v{b}, v{b}, v{b+2}\n v_add_f32 v{b+1}, v{b+1}, v{b+3}')
        k(mf.pop(0))
        for b in (SS, SS+4): k(f'v_permlane16_swap_b32 v{b}, v{b+1}')
        for b in (SS, SS+4): k(f'v_add_f32 v{b}, v{b}, v{b+1}')
        for sh in (8, 4, 2, 1):
            k(mf.pop(0))
            for b in (SS, SS+4): k(f'v_add_f32_dpp v{b}, v{b}, v{b} row_ror:{sh} row_mask:0xf bank_mask:0xf')
        k(mf.pop(0))
        k(f"""v_mul_f32 v{SS}, {fbits(1/512)}, v{SS}
        v_mul_f32 v{SS+4}, {fbits(1/512)}, v{SS+4}
        v_fma_f32 v{SS+4}, -v{SS}, v{SS}, v{SS+4}
        v_max_f32 v{SS+4}, 0, v{SS+4}
        v_add_f32 v{SS+4}, {fbits(1e-5)}, v{SS+4}
        v_rsq_f32 v{SS+1}, v{SS+4}
        v_mul_f32 v{SS+2}, {fbits(-2.0)}, v{SS}
        v_mul_f32 v{SS+2}, v{SS+2}, v{SS+1}
        v_mul_f32 v{SS+3}, {fbits(1/16)}, v{SS+1}""")
        for i in range(4):
            k(f'v_readlane_b32 s{68+2*i}, v{SS+3}, {16*i}\n v_readlane_b32 s{69+2*i}, v{SS+2}, {16*i}')
        for i in range(4):
            d = DA + 8*i
            k(f'v_mul_f32 v{TR}, s{69+2*i}, v8')
            for h in range(2):
                k(f'v_pk_mul_f32 {V(d+4+2*h,2)}, {V(d+4+2*h,2)}, {Sg(68+2*i,2)} op_sel_hi:[1,0]')
            for h in range(2):
                k(f'v_pk_fma_f32 {V(d+2*h,2)}, {V(d+2*h,2)}, {Sg(68+2*i,2)}, {V(TR,2)} op_sel_hi:[1,0,0]')
            for h in (2, 3, 0, 1): k(f'v_cvt_pk_f16_f32 v{X+4*i+h}, v{d+2*h}, v{d+2*h+1}')
            k(f'ds_write_b128 v6, {V(X+4*i,4)} offset:{16*i}')
        k(f"""v_mul_f32 v{SS+4}, v{SS+4}, v{SS+1}
        ds_write2_b32 v10, v{SS+4}, v{SS} offset0:0 offset1:16""")
        if OPT.get('wlp', 0) == 0:
            for t in wl_: k(t)
        def wt_a():
            for i in range(8):
                k(f'v_perm_b32 v{WO+i}, v{WL+4+(i>>1)}, v{WL+(i>>1)}, s{53+(i&1)}')
                k(f'ds_write_b32 v12, v{WO+i} offset:{128*i}')
        if OPT.get('wtearly'): wt_a()
        k.wait(lg=0); k('s_barrier')
        if OPT.get('zst'): stamp(k, 1)
        stamp(k, 5, 'z')
        for q in range(4): k(f'ds_read_b128 {V(TR+4*q,4)}, v7 offset:{TPAD*q}')
        k(f'ds_read_b128 {V(SS,4)}, v4 offset:0x9000')
        if OPT.get('wlp', 0) == 1:
            for t in wl_: k(t)
        go_load(k, 250)
        wt_b = lambda: [k(f'ds_read_b128 {V(WL+4*n,4)}, v{13+n} offset:{1024*n}') for n in range(2)]
        wt_c = lambda: [k(f'buffer_store_dwordx4 {V(WL+4*n,4)}, v11, {WSR}, s{50+n} offen{ST}') for n in range(2)]
        if OPT.get('wtearly'): wt_b()
        for q in range(4):
            for o in range(2): k(f'v_mfma_f32_16x16x32_f16 {V(DA+8*q+4*o,4)}, {V(TR+4*q,4)}, {V(GV+8*q+4*o,4)}, 0')
        k.wait(lg=0)
        if OPT.get('wtearly'): wt_c()
        only_wave(k, 3, lambda: k(f's_mov_b64 exec, 0xff\n buffer_store_dwordx4 {V(SS,4)}, v4, {WSR}, s63 offen{ST}'))
        for q in range(4):
            for h in range(4): k(f'v_cvt_pk_f16_f32 v{X+4*q+h}, v{DA+8*q+2*h}, v{DA+8*q+2*h+1}')
            k(f'buffer_store_dwordx4 {V(X+4*q,4)}, v9, {WSR}, s64 offen offset:{1024*q}{ST}')
        stamp(k, 6, 'z')
        if not OPT.get('wtearly'):
            wt_a(); k.wait(lg=0); k('s_barrier'); wt_b(); wt_c()
        global ztl
        ztl = p2_tables(k)
        if OPT.get('ztpre'):
            for t in ztl: k(t)
        stamp(k, 2)

def p1_w(k):
    OP, DA = 32, 64
    TBASE = 32768
    k(f"""s_and_b32 s61, s2, 1               ; mu
    s_bfe_u32 s60, s2, 0x60001
    s_and_b32 s44, s60, 3
    s_lshl_b32 s44, s44, 1
    s_bfe_u32 s45, s60, 0x10002
    s_add_u32 s44, s44, s45
    s_andn2_b32 s45, s60, 7
    s_add_u32 s44, s44, s45
    s_cmp_lt_u32 s60, 40
    s_cselect_b32 s60, s44, s60        ; phi""" + ("""
    s_bfe_u32 s44, s2, 0x20001
    s_mul_i32 s44, s44, 11
    s_bfe_u32 s45, s2, 0x40003
    s_add_u32 s60, s44, s45""" if OPT.get('wcont') else '') + f"""
    s_mul_i32 s44, {WAVE}, {4*2752}
    s_lshl_b32 s45, s60, 6
    s_add_u32 s66, s44, s45
    v_lshrrev_b32 v10, 2, v1
    v_mul_u32_u24 v30, {16*2752}, v10
    v_and_b32 v11, 3, v1
    v_and_b32 v12, 1, v2
    v_lshlrev_b32 v12, 1, v12
    v_xor_b32 v13, v11, v12
    v_lshl_add_u32 v30, v13, 4, v30    ; DMA source
    s_lshl_b32 s67, {WAVE}, 13
    s_mov_b32 s38, {D*F*2}
    s_mov_b32 s39, 0x20000
    """)
    k(f"""s_bfe_u32 s64, s2, 0x40003
    s_lshl_b32 s64, s64, 2
    s_add_u32 s64, s64, {WAVE}
    s_mul_i32 s64, s64, {12*2752}
    s_bfe_u32 s46, s2, 0x20001
    s_mul_i32 s46, s46, 704
    s_add_u32 s64, s64, s46
    s_add_u32 s65, s64, {8*2752}
    v_and_b32 v14, 7, v1
    v_lshlrev_b32 v14, 7, v14
    v_min_u32 v14, 700, v14
    v_lshrrev_b32 v15, 3, v1
    v_mul_u32_u24 v15, 2752, v15
    v_add_u32 v14, v14, v15""")
    k.wait(lg=0)
    stamp(k, 1, 'z')
    k(f"""s_cmp_eq_u32 s61, 0
    s_cselect_b32 s36, s12, s14
    s_cselect_b32 s37, s13, s15
    s_and_b32 s37, s37, 0xffff""")
    if OPT.get('wdi', 3) == 2: wd_issue(k)
    if not OPT.get('nowt2'):
        k(f"""s_mov_b32 exec_lo, 0x7f7f7f7f
        s_mov_b32 exec_hi, 0x7f7f7f7f
        buffer_load_dword v5, v14, {RC}, s64 offen{OPT.get('ntg', '')}
        s_mov_b32 exec_hi, 0
        buffer_load_dword v248, v14, {RC}, s65 offen{OPT.get('ntg', '')}
        s_mov_b64 exec, -1""")
    if OPT.get('wdi', 3) == 3: wd_issue(k)
    k('v_mov_b32 v249, v30')
    def dmas():
        nonlocal pos
        pos = []
        for n in range(8):
            k(f's_add_u32 m0, s67, {1024*n}\n s_add_u32 s44, s66, {((n>>1) + 256*(n&1))*2752}')
            k(f'buffer_load_dwordx4 v249, {RC}, s44 offen{OPT.get("ntg", "")} lds'); pos.append(k.nvm)
    pos = None
    if OPT.get('dfirst'): dmas()
    srd(k, 24, 22, WS_USED)
    k(f"""v_lshlrev_b32 v31, 6, v10
    v_lshl_add_u32 v31, v12, 4, v31
    v_lshl_add_u32 v31, v11, 3, v31
    v_add_u32 v30, s67, v31
    v_xor_b32 v31, 32, v30
    v_mul_u32_u24 v6, {4*TPAD}, v2
    v_lshl_add_u32 v6, v3, 4, v6
    s_lshl_b32 s44, {WAVE}, 8
    s_add_u32 s44, s44, {TBASE}
    v_add_u32 v6, s44, v6              ; T write
    s_mul_i32 s44, {WAVE}, {4*TPAD}
    s_add_u32 s44, s44, {TBASE}
    v_add_u32 v7, s44, v4              ; T read
    s_lshl_b32 s44, s60, 2
    v_lshrrev_b32 v12, 3, v3
    v_and_b32 v13, 7, v3
    v_lshlrev_b32 v13, 4, v13
    v_lshl_add_u32 v13, v2, 8, v13
    s_lshl_b32 s45, {WAVE}, 12
    s_add_u32 s68, s45, {WP}
    v_mov_b32 v19, s61""")
    for pp in range(2):
        k(f"""v_add_u32 v14, s44, v12            ; octet
        v_mul_u32_u24 v15, 373, v14
        v_lshrrev_b32 v15, 12, v15
        v_add_u32 v14, v14, v15            ; q
        v_mul_u32_u24 v15, 171, v14
        v_lshrrev_b32 v15, 9, v15
        v_mul_u32_u24 v15, 3, v15          ; q - q%3
        v_sub_u32 v16, v14, v15            ; n
        v_cmp_eq_u32 vcc, 2, v16
        v_add_u32 v15, s61, v15
        s_add_u32 s44, s44, 2
        v_cndmask_b32 v15, v15, v14, vcc   ; tile
        v_cndmask_b32 v16, v16, v19, vcc
        v_mul_u32_u24 v15, {WPS}, v15
        v_add_u32 v{8+pp}, v15, v13
        v_lshl_add_u32 v{8+pp}, v16, 7, v{8+pp}""")
    tl = p2_tables(k)
    setup(k); setup_late(k, 'addr')
    if OPT.get('wgen', 0) == 0: gb_gen(k, False)
    if not OPT.get('dfirst'): dmas()
    if OPT.get('wgen', 0) == 1: gb_gen(k, False)
    stamp(k, 2, 'z')
    for dl in range(4):
        k(f's_waitcnt vmcnt({k.nvm - pos[2*dl+1]})')
        if dl == 0: stamp(k, 1)
        for pi in range(2):
            for h in range(2): k(f'ds_read_b64_tr_b16 {V(OP+8*dl+4*pi+2*h,2)}, v{30+pi} offset:{2048*dl+1024*h}')
    stamp(k, 3, 'z')
    k.sprinkle = tl; k.every = OPT.get('tev', 28); k.since = 100
    for dl in range(4):
        for pi in range(2):
            for c in range(2):
                k(f'v_mfma_f32_16x16x32_bf16 {V(DA+32*pi+16*c+4*dl,4)}, {A(FA+4*c,4)}, {V(OP+8*dl+4*pi,4)}, 0')
    for pi in range(2):
        for r in range(4):
            u = OP + 16*pi + 4*r
            for c in range(2):
                for h in range(2):
                    d = DA + 32*pi + 16*c + 8*h + r
                    k(f'v_cvt_pk_bf16_f32 v{u+2*c+h}, v{d}, v{d+4}')
            k(f'ds_write_b128 v6, {V(u,4)} offset:{16*TPAD*pi+TPAD*r}')
    flush(k)
    stamp(k, 4, 'z')
    k.wait(lg=0); k('s_barrier')
    stamp(k, 5, 'z')
    for pi in range(2):
        for q in range(4): k(f'ds_read_b128 {V(OP+16*pi+4*q,4)}, v7 offset:{16*TPAD*pi+TPAD*q}')
    go_load(k, 250)
    for pi in range(2):
        for q in range(4):
            for o in range(2):
                k(f'v_mfma_f32_16x16x32_bf16 {V(DA+32*pi+8*q+4*o,4)}, {A(GB+8*q+4*o,4)}, {V(OP+16*pi+4*q,4)}, 0')
    for pi in range(2):
        for p in range(2):
            for o in range(2):
                u = OP + 16*pi + 8*p + 4*o
                for hq in range(2):
                    for h in range(2):
                        d = DA + 32*pi + 8*(2*p+hq) + 4*o + 2*h
                        k(f'v_cvt_pk_bf16_f32 v{u+2*hq+h}, v{d}, v{d+1}')
                k(f'buffer_store_dwordx4 {V(u,4)}, v{8+pi}, {WSR}, s68 offen offset:{(2*p+o)*1024}{ST}')
    stamp(k, 2); stamp(k, 6, 'z')

def wt_rows(k, task, dst):
    k(f"""s_bfe_u32 s44, {task}, 0x30002
    s_lshl_b32 s44, s44, 3
    s_lshr_b32 s45, {task}, 5
    s_lshl_b32 s45, s45, 8
    s_add_u32 s44, s44, s45
    s_mul_i32 s{dst}, s44, 514
    s_and_b32 s45, {task}, 3
    s_lshl_b32 s45, s45, 7
    s_add_u32 s{dst}, s{dst}, s45
    s_add_u32 s{dst}, s{dst}, 2
    v_lshrrev_b32 v12, 3, v1
    v_and_b32 v13, 7, v1
    v_mul_u32_u24 v11, 514, v12
    v_lshl_add_u32 v11, v13, 4, v11
    s_mov_b32 s30, {2048*257*2}
    s_mov_b32 s31, 0x20000
    s_mov_b32 s34, {2048*257*2}
    s_mov_b32 s35, 0x20000""")
def wt_dest(k, task, dst):
    k(f"""s_lshl_b32 s{dst}, {task}, 13
    s_add_u32 s{dst}, s{dst}, {WT}
    s_mov_b32 s53, 0x05040100
    s_mov_b32 s54, 0x07060302
    v_mov_b32 v11, v4
    v_xor_b32 v12, v12, v13
    v_lshlrev_b32 v12, 4, v12
    v_lshl_add_u32 v12, v13, 10, v12""")
WSRDS = 's_mov_b32 s28, s6\n s_and_b32 s29, s7, 0xffff\n s_mov_b32 s32, s8\n s_and_b32 s33, s9, 0xffff'
def p1_t(k):
    WL, WO = 32, 64
    k(f's_sub_u32 s48, s2, {NC0}\n s_lshl_b32 s48, s48, 2\n s_add_u32 s48, s48, {WAVE}')
    wt_rows(k, 's48', 49)
    for r in range(1, 4): k(f's_add_u32 s{49+r}, s49, {64*r*514}')
    k.wait(lg=0)
    k(WSRDS)
    for r in range(4):
        k(f'buffer_load_dwordx4 {V(WL+8*r,4)}, v11, {RA}, s{49+r} offen{OPT.get("ntw", "")}')
        k(f'buffer_load_dwordx4 {V(WL+8*r+4,4)}, v11, {RB}, s{49+r} offen{OPT.get("ntw", "")}')
    srd(k, 24, 22, WS_USED)
    wt_dest(k, 's48', 56)
    k(f's_lshl_b32 s44, {WAVE}, 13\n v_add_u32 v12, s44, v12\n v_add_u32 v14, s44, v4')
    for n in range(1, 8): k(f's_add_u32 s{56+n}, s56, {1024*n}\n v_xor_b32 v{14+n}, {16*n}, v14')
    tl = p2_tables(k)
    for i in range(8):
        o = WO + 4*i
        for r in range(4): k(f'v_perm_b32 v{o+r}, v{WL+8*r+4+(i>>1)}, v{WL+8*r+(i>>1)}, s{53+(i&1)}')
        k(f'ds_write_b128 v12, {V(o,4)} offset:{128*i}')
        if OPT.get('ttpre'):
            for t in tl[2*i:2*i+2]: k(t)
    stamp(k, 1)
    if OPT.get('twe'): twiddles(k)
    for n in range(8): k(f'ds_read_b128 {V(WL+4*n,4)}, v{14+n} offset:{1024*n}')
    go_load(k, 250)
    for n in range(8): k(f'buffer_store_dwordx4 {V(WL+4*n,4)}, v11, {WSR}, s{56+n} offen{ST}')
    stamp(k, 2)

def p1_i(k):
    k.wait(lg=0)
    srd(k, 24, 22, WS_USED)
    k(f"""s_lshl_b32 s44, s2, 2
    s_add_u32 s44, s44, {WAVE}
    s_cmp_lg_u32 s44, {255*4}
    s_cbranch_scc1 L_noinit
    v_lshlrev_b32 v30, 8, v1
    v_lshlrev_b32 v31, 8, v3
    v_mov_b32 v32, 0
    s_mov_b32 s44, {FLG}
    s_mov_b32 s45, {FLG+16384}
    buffer_store_dword v32, v30, {WSR}, s44 offen{ST}
    v_lshlrev_b32 v33, 7, v1
    buffer_store_dword v32, v33, {WSR}, s45 offen{ST}
    s_add_u32 s45, s45, 8192
    buffer_store_dword v32, v33, {WSR}, s45 offen{ST}
    buffer_store_dword v32, v31, {WSR}, 0 offen{ST}
    v_mov_b32 v33, 1
    s_waitcnt vmcnt(0)
    s_mov_b64 exec, 1
    global_store_dword v32, v33, s[20:21]{ST}
    s_mov_b64 exec, -1""")
    k.label('L_noinit')
    k(f"""s_sub_u32 s60, s2, {NI0}
    s_lshl_b32 s61, s60, 1
    s_lshr_b32 s44, {WAVE}, 1
    s_add_u32 s61, s61, s44            ; t
    s_and_b32 s62, {WAVE}, 1
    s_lshl_b32 s62, s62, 2             ; p
    s_add_u32 s63, s62, 4
    s_lshl_b32 s44, s61, 5
    s_add_u32 s44, s44, 1
    v_lshl_add_u32 v30, v3, 1, s44     ; 2d+1
    v_and_b32 v31, 1, v2
    v_lshlrev_b32 v31, 7, v31
    v_cmp_lt_u32 s[64:65], 1, v2
    v_mov_b32 v36, {fbits(1/16)}
    s_mul_i32 s61, s61, {12*WPS}
    s_add_u32 s61, s61, {WP+11*WPS}""")
    for t in p2_tables(k): k(t)
    if OPT.get('twe'): twiddles(k)
    stamp(k, 1)
    k.fence(); k.label('L_inv')
    k(f"""s_lshl_b32 s44, s62, 1
    s_sub_u32 s45, 32, s44
    s_cmp_eq_u32 s44, 0
    s_cselect_b32 s45, 16, s45
    v_mov_b32 v33, s44
    v_mov_b32 v34, s45
    v_cndmask_b32 v33, v33, v34, s[64:65]
    v_add_u32 v33, v33, v31
    s_add_u32 s44, s44, 1
    s_sub_u32 s45, 32, s44
    v_mov_b32 v34, s44
    v_mov_b32 v35, s45
    v_cndmask_b32 v34, v34, v35, s[64:65]
    v_add_u32 v34, v34, v31
    v_cmp_eq_u32 vcc, 0, v33
    v_mov_b32 v35, 0x100
    v_mov_b32 v37, {fbits(1/math.sqrt(512))}
    v_cndmask_b32 v35, v33, v35, vcc
    v_cndmask_b32 v37, v36, v37, vcc
    s_lshl_b32 s45, s62, 11
    s_add_u32 s66, s61, s45""")
    for e in range(8):
        src = 'v35' if e == 0 else None
        if e: k(f'v_add_u32 v{40+e}, {32*(e&3)}, v{33+(e>>2)}')
        k(f'v_mul_u32_u24 v{40+e}, {src or V(40+e)}, v30')
        k(f'v_and_b32 v{40+e}, 0x3ff, v{40+e}')
        k(f'v_cvt_f32_u32 v{40+e}, v{40+e}')
        k(f'v_mul_f32 v{40+e}, {fbits(1/1024)}, v{40+e}')
    for e in range(8):
        k(f'v_cos_f32 v{48+e}, v{40+e}\n v_sin_f32 v{56+e}, v{40+e}')
    for e in range(8):
        sc = 'v37' if e == 0 else 'v36'
        k(f'v_mul_f32 v{48+e}, {sc}, v{48+e}\n v_mul_f32 v{56+e}, {sc}, -v{56+e}')
    for part in range(2):
        for h in range(4): k(f'v_cvt_pk_bf16_f32 v{64+4*part+h}, v{48+8*part+2*h}, v{48+8*part+2*h+1}')
        k(f'buffer_store_dwordx4 {V(64+4*part,4)}, v4, {WSR}, s66 offen offset:{1024*part}{ST}')
    k('s_add_u32 s62, s62, 1\n s_cmp_lt_u32 s62, s63\n s_cbranch_scc1 L_inv')
    go_load(k, 250)
    stamp(k, 2)

WDL, WDO = 128, 64
def wd_issue(k):
    srd(k, 28, 16, F*D*2)
    k(f"""s_sub_u32 s44, s2, {NZ}
    s_lshl_b32 s44, s44, 14
    s_lshr_b32 s45, {WAVE}, 1
    s_lshl_b32 s45, s45, 13
    s_add_u32 s44, s44, s45
    s_and_b32 s45, {WAVE}, 1
    s_lshl_b32 s45, s45, 9
    s_add_u32 s69, s44, s45
    s_add_u32 s70, s69, 4096
    v_lshlrev_b32 v13, 3, v1""")
    for e in range(8): k(f'buffer_load_dwordx2 {V(WDL+2*e,2)}, v13, {RA}, s{69+(e>>2)} offen offset:{1024*(e&3)}{OPT.get("ntd", "")}')
def wd_pack(k):
    k('s_mov_b32 s64, 0x05040100\n s_mov_b32 s65, 0x07060302')
    for pi in range(4):
        for h in range(4): k(f'v_perm_b32 v{WDO+4*pi+h}, v{WDL+4*h+2+(pi>>1)}, v{WDL+4*h+(pi>>1)}, s{64+(pi&1)}')
def wd_finish(k):
    k(f's_sub_u32 s73, s2, {NZ}')
    k(f"""s_lshr_b32 s44, s73, 2
    s_lshl_b32 s44, s44, 11
    s_and_b32 s45, s73, 3
    s_mul_i32 s45, s45, {WDS}
    s_add_u32 s44, s44, s45
    s_and_b32 s45, {WAVE}, 1
    s_mul_i32 s45, s45, {16*WDS}
    s_add_u32 s44, s44, s45
    s_lshr_b32 s45, {WAVE}, 1
    s_lshl_b32 s45, s45, 9
    s_add_u32 s44, s44, s45
    s_add_u32 s44, s44, {WD}
    v_mul_u32_u24 v30, {4*WDS}, v2
    v_bfe_u32 v31, v1, 3, 1
    v_lshl_add_u32 v30, v31, 10, v30
    v_and_b32 v31, 7, v1
    v_lshl_add_u32 v30, v31, 4, v30""")
    for pi in range(4): k(f'buffer_store_dwordx4 {V(WDO+4*pi,4)}, v30, {WSR}, s44 offen offset:{128*pi}{ST}')

STATL = 131072
def p4_ids(k):
    k(f"""s_and_b32 s44, s2, 7
    s_lshl_b32 s44, s44, 2
    s_bfe_u32 s46, s2, 0x20003
    s_add_u32 s44, s44, s46
    s_lshr_b32 s45, s2, 5""")

def setup(k):
    if OPT.get('x216'):
        k(f"""s_and_b32 s44, s2, 7
        s_lshl_b32 s44, s44, 1
        s_bfe_u32 s45, s2, 0x10003
        s_add_u32 s48, s44, s45
        s_lshr_b32 s49, s2, 4
        s_lshl_b32 s45, s45, 2
        s_mov_b32 s46, s49""")
    elif OPT.get('x48'):
        k(f"""s_and_b32 s44, s2, 3
        s_lshl_b32 s44, s44, 2
        s_bfe_u32 s45, s2, 0x20003
        s_add_u32 s48, s44, s45
        s_and_b32 s44, s2, 4
        s_lshl_b32 s44, s44, 1
        s_lshr_b32 s46, s2, 5
        s_add_u32 s49, s44, s46
        s_lshl_b32 s45, s45, 1""")
    else:
        k(f"""s_and_b32 s44, s2, 1
        s_lshl_b32 s44, s44, 3
        s_bfe_u32 s45, s2, 0x30003
        s_add_u32 s48, s44, s45
        s_bfe_u32 s44, s2, 0x20001
        s_lshl_b32 s44, s44, 2
        s_lshr_b32 s46, s2, 6
        s_add_u32 s49, s44, s46
        s_lshl_b32 s46, s46, 1""")
    k(f"""s_mov_b32 s53, 0
    s_lshl_b32 s46, s48, 11
    s_lshl_b32 s47, s49, 7
    s_add_u32 s41, s46, s47
    s_add_u32 s41, s41, {RBF}
    v_mov_b32 v250, 0""")
    stamp(k, 7, 'z')
    k(f"""s_and_b32 s74, s2, 7
    s_lshl_b32 s74, s74, 8
    s_add_u32 s75, s74, {FLG}
    s_and_b32 s44, s2, 1
    s_mul_i32 s44, s44, 44
    s_bfe_u32 s45, s2, 0x20001
    s_mul_i32 s45, s45, 11
    s_add_u32 s44, s44, s45
    s_bfe_u32 s45, s2, 0x40003
    s_add_u32 s44, s44, s45
    s_sub_u32 s45, s2, {NI0-88}
    s_cmp_ge_u32 s2, {NI0}
    s_cselect_b32 s44, s45, s44
    s_cselect_b32 s46, 0, s2
    s_lshl_b32 s44, s44, 7
    s_add_u32 s71, s44, {FLG+16384}
    s_cmp_lt_u32 s2, {NZ}
    s_cselect_b32 s71, 0, s71
    s_cmp_ge_u32 s46, {NC0}
    s_cselect_b32 s71, 0, s71
    v_mov_b32 v251, 1
    s_mov_b32 s63, 0x80008000""")

def twiddles(k):
    k(f"""s_lshl_b32 s44, {WAVE}, 4
    v_add_u32 v240, s44, v3
    v_cvt_f32_u32 v240, v240
    v_mul_f32 v240, {fbits(1/2048)}, v240
    v_lshlrev_b32 v241, 2, v2
    v_add_u32 v242, s44, v241
    v_cvt_f32_u32 v241, v241
    v_cvt_f32_u32 v242, v242
    v_cvt_f32_u32 v243, v3
    v_mul_f32 v243, {fbits(1/2048)}, v243""")
    for be in range(2):
        for r in range(4):
            t = TW1 + 8*be + r
            k(f'v_add_f32 v{t}, {fbits(16*be+r)}, v241\n v_mul_f32 v{t}, v{t}, v240')
            k(f'v_sin_f32 v{t+4}, v{t}\n v_cos_f32 v{t}, v{t}')
    for be in range(2):
        if be: k(f'v_add_f32 v243, {fbits(16/2048)}, v243')
        for r in range(4):
            t = TW2 + 8*be + r
            k(f'v_add_f32 v{t}, {fbits(r)}, v242\n v_mul_f32 v{t}, v{t}, v243')
            k(f'v_sin_f32 v{t+4}, v{t}\n v_cos_f32 v{t}, v{t}')

def setup_late(k, part=None):
    k(f"""s_mul_i32 s44, s49, 11
    s_add_u32 s45, s44, 10
    s_lshr_b32 s44, s44, 2
    s_lshr_b32 s45, s45, 2
    v_and_b32 v23, 3, v1
    v_add_u32 v23, s44, v23
    v_min_u32 v23, s45, v23
    v_bfe_u32 v240, v1, 2, 1
    v_mul_u32_u24 v240, 44, v240
    v_add_u32 v23, v23, v240
    s_lshr_b32 s44, s49, 1
    s_add_u32 s44, s44, 88
    v_mov_b32 v240, s44
    v_cmp_gt_u32 vcc, 8, v1
    v_cndmask_b32 v23, v240, v23, vcc
    v_lshlrev_b32 v23, 7, v23
    v_add_u32 v23, {FLG+16384}, v23""")
    if part != 'addr':
        if OPT.get('twe'):
            uid[0] += 1; u = uid[0]
            k(f's_cmp_ge_u32 s2, {NC0}\n s_cbranch_scc1 L_tw{u}')
            twiddles(k); k.fence(); k.label(f'L_tw{u}')
        else: twiddles(k)
    for u in range(4):
        k(f's_add_u32 s45, {WAVE}, {u}\n s_and_b32 s45, s45, 3\n s_lshl_b32 s45, s45, 11\n v_add_u32 v{16+u}, s45, v4')
    k(f"""s_and_b32 s58, s2, 0xf6
    s_bfe_u32 s45, s2, 0x10003
    s_add_u32 s58, s58, s45
    s_and_b32 s45, s2, 1
    s_lshl_b32 s45, s45, 3
    s_add_u32 s58, s58, s45
    s_lshl_b32 s44, s58, 6
    s_lshl_b32 s45, {WAVE}, 19
    s_add_u32 s44, s44, s45
    s_add_u32 s55, s44, {ZT}
    s_add_u32 s56, s55, 0x10000
    s_lshr_b32 s44, s58, 4
    s_sub_u32 s45, 32, s44
    s_cmp_eq_u32 s44, 0
    s_cselect_b32 s45, 16, s45
    s_bitcmp1_b32 s58, 3
    s_cselect_b32 s44, s45, s44
    s_and_b32 s45, s58, 7
    s_lshl_b32 s45, s45, 5
    s_add_u32 s44, s44, s45
    s_sub_u32 s44, s44, 1
    s_and_b32 s44, s44, 255
    s_lshl_b32 s44, s44, 7
    s_lshl_b32 s45, {WAVE}, 16
    s_add_u32 s44, s44, s45
    s_add_u32 s59, s44, {WT}
    s_add_u32 s60, s59, 0x100000
    v_and_b32 v15, 7, v1
    v_lshlrev_b32 v15, 4, v15
    v_bfe_u32 v14, v1, 3, 1
    v_lshl_add_u32 v15, v14, 15, v15
    v_lshl_add_u32 v15, v2, 18, v15
    s_lshl_b32 s45, {WAVE}, 12
    s_add_u32 s61, s45, {SM}
    v_lshrrev_b32 v21, 2, v3
    v_lshlrev_b32 v21, 7, v21
    v_lshl_add_u32 v21, v2, 10, v21
    v_and_b32 v22, 3, v1
    v_lshlrev_b32 v14, 4, v22
    v_lshl_add_u32 v14, v21, 7, v14
    v_lshl_add_u32 v22, v22, 4, v21
    s_mov_b32 s63, 0x80008000""")

def setup2(k):
    k(f"""v_lshrrev_b32 v20, 2, v1
    v_lshlrev_b32 v20, 15, v20
    v_and_b32 v24, 3, v1
    v_lshl_add_u32 v20, v24, 4, v20
    s_lshr_b32 s44, s58, 5
    s_lshl_b32 s44, s44, 6
    s_and_b32 s45, s58, 31
    s_add_u32 s44, s44, s45
    s_lshl_b32 s44, s44, 6
    s_lshl_b32 s45, {WAVE}, 19
    s_add_u32 s44, s44, s45
    s_add_u32 s62, s44, {HT}
    s_mul_i32 s44, s49, 11
    s_mul_i32 s45, {WAVE}, 3
    s_add_u32 s50, s44, s45
    s_add_u32 s44, s50, s49
    s_mul_i32 s44, s44, {WPS}
    s_add_u32 s44, s44, {WP}
    v_add_u32 v248, s44, v4
    v_add_u32 v249, {WPS}, v248
    v_add_u32 v255, {2*WPS}, v248
    s_and_b32 s46, {WAVE}, 1
    s_lshr_b32 s47, {WAVE}, 1
    s_lshl_b32 s45, s46, 15
    s_lshl_b32 s54, s47, 12
    s_add_u32 m0, s54, s45
    s_lshl_b32 s44, s48, 17
    s_add_u32 s44, s44, {HT}
    v_and_b32 v6, 1, v2
    v_lshlrev_b32 v6, 5, v6
    v_xor_b32 v5, v6, v4
    v_add_u32 v5, s44, v5
    v_lshrrev_b32 v7, 2, v1
    v_lshl_add_u32 v6, v7, 6, v6
    v_lshl_add_u32 v6, v24, 3, v6
    s_lshl_b32 s44, s47, 5
    s_add_u32 s44, s44, s45
    v_xor_b32 v6, s44, v6
    v_xor_b32 v7, 32, v6
    v_lshrrev_b32 v9, 2, v3
    v_cmp_eq_u32 vcc, v9, v2
    s_lshl_b32 s47, s47, 8
    s_lshl_b32 s44, s46, 9
    s_add_u32 s44, s44, s47
    s_add_u32 s44, s44, {STATL}
    v_lshl_add_u32 v10, v3, 4, s44     ; statistics reads
    v_xor_b32 v8, 0x100, v10
    v_add_u32 v9, {STATL+2048}, v4
    v_cndmask_b32 v9, v9, v10, vcc     ; statistics write (other lanes go to a dummy area)
    v_lshrrev_b32 v24, 1, v2
    v_lshlrev_b32 v11, 8, v24
    v_xor_b32 v11, v11, v10            ; statistics for the mixed tile
    s_mov_b32 s64, 0x22222222
    s_mov_b32 s65, s64
    s_mov_b32 s66, 0x44444444
    s_mov_b32 s67, s66
    s_mov_b32 s68, 0x88888888
    s_mov_b32 s69, s68
    v_add_u32 v25, s50, v24
    v_lshrrev_b32 v12, 1, v25
    v_mul_u32_u24 v12, {HFS}, v12
    v_and_b32 v25, 1, v25
    v_lshl_add_u32 v12, v25, 9, v12
    v_and_b32 v25, 0x1f0, v4
    v_xor_b32 v25, s47, v25
    v_add_u32 v12, v25, v12
    s_add_u32 s44, s50, 2
    s_lshr_b32 s45, s44, 1
    s_mul_i32 s45, s45, {HFS}
    s_and_b32 s44, s44, 1
    s_lshl_b32 s44, s44, 9
    s_add_u32 s44, s44, s45
    v_lshlrev_b32 v13, 8, v24
    v_xor_b32 v13, s47, v13
    v_add_u32 v13, s44, v13
    v_lshl_add_u32 v13, v3, 4, v13
    v_and_b32 v25, 1, v2
    v_xor_b32 v25, 1, v25
    v_lshlrev_b32 v25, 10, v25
    s_lshl_b32 s44, s46, 1
    s_sub_u32 s44, 1, s44
    v_mul_i32_i24 v25, s44, v25
    v_sub_u32 v13, v13, v25""")
    wsrd(k, 32, HF+86*HFS)
    if OPT.get('wtouch'):
        k(f"""s_and_b32 s44, s48, 7
        s_lshl_b32 s44, s44, 11
        v_sub_u32 v14, v248, v4
        v_lshl_add_u32 v14, v2, 14, v14
        v_lshl_add_u32 v14, v3, 7, v14
        v_add_u32 v14, s44, v14
        v_cmp_gt_u32 vcc, 3, v2
        v_cndmask_b32 v14, -1, v14, vcc""")

def p2_negs(k, base):
    for u in range(4):
        for h in range(2): k(f'v_xor_b32 v{base+6*u+h}, s63, v{base+6*u+4+h}')

def wd_reg(u, i): return A(192+8*u+4*i, 4) if u < 8 else V(144+8*(u-8)+4*i, 4)
def wd_loads(u):
    o = [f'buffer_load_dwordx4 {wd_reg(u+s,i)}, v15, {WSR}, s51 offen offset:{2048*s+1024*i}{LD}' for s in range(2) for i in range(2)]
    return o + ['s_add_u32 s51, s51, 4096']
def wloads(R=RA):
    return [f'buffer_load_dwordx4 {A(12*ka+4*t,4)}, v{(248, 249, 255)[t]}, {R}, {("0", "s70", "s71", "s72")[ka>>2]} offen offset:{1024*(ka&3)}{LD}' for ka in range(16) for t in range(3)]

def p2(k):
    Z, WW, SG, DD, TT, PK = 32, 64, 80, 88, 104, 240
    for u in range(1 if not OPT.get('zall') else 4):
        for be in range(2): k(f'buffer_load_dwordx4 {V(Z+8*u+4*be,4)}, v14, {WSR}, s{55+be} offen{LD}')
    lds_ = f"""buffer_load_dwordx4 {V(WW+4,4)}, v15, {WSR}, s59 offen{LD}
    buffer_load_dwordx4 {V(WW+12,4)}, v15, {WSR}, s60 offen{LD}
    buffer_load_dwordx4 {V(SG,4)}, v22, {WSR}, s61 offen{LD}
    buffer_load_dwordx4 {V(SG+4,4)}, v22, {WSR}, s61 offen offset:512{LD}""".split('\n')
    lds_.insert(OPT.get('fpos', 2), f'buffer_load_dword v26, v23, {WSR}, 0 offen{LD}')
    if OPT.get('wnow'):
        for t in lds_: k(t)
    else:
        k.sprinkle = [t.strip() for t in lds_]; k.every = 60; k.since = 0
    setup2(k); flush(k)
    k(f"""s_mov_b32 s28, s24
    s_mov_b32 s29, s25
    s_mov_b32 s31, 0x20000
    s_mov_b32 s36, s24
    s_mov_b32 s37, s25
    s_mov_b32 s39, 0x20000
    s_mov_b32 s70, 4096
    s_mov_b32 s71, 8192
    s_mov_b32 s72, 12288""")
    def check1():
        k(f'v_cmp_ne_u32 vcc, 1, v26\n s_cmp_eq_u64 vcc, 0\n s_cselect_b32 s30, {WS_USED}, 0')
        k(f'buffer_load_dword v27, v23, {WSR}, 0 offen{LD}')
        if OPT.get('wtouch'): k(f'buffer_load_dword v25, v14, {RA}, 0 offen{LD}')
        k.sprinkle = wloads(); k.every = OPT.get('every', 64); k.since = 100; k.lazy = OPT.get('lazy', 1)
    def unpack():
        for t in range(2):
            for r in range(4):
                k(f'v_lshlrev_b32 v{WW+8*t+r}, 16, v{WW+8*t+4+r}\n v_and_b32 v{WW+8*t+4+r}, 0xffff0000, v{WW+8*t+4+r}')
    if not OPT.get('zall'):
        for be in range(2): k(f'ds_write_b128 v16, {V(Z+4*be,4)} offset:{8192+1024*be}')
    for u in range(4):
        for be in range(2):
            for o in range(2):
                d = V(DD+8*be+4*o, 4)
                k(f'v_mfma_f32_16x16x32_f16 {d}, {V(Z+8*u+4*be,4)}, {V(B1+6*u+2-2*o,4)}, {"0" if u==0 else d}')
        if u == 0:
            stamp(k, 5); stamp(k, 2, 'b')
            if not OPT.get('zall'):
                k.wait(lg=0); k('s_barrier')
                for v in range(1, 4):
                    for be in range(2): k(f'ds_read_b128 {V(Z+8*v+4*be,4)}, v{16+v} offset:{8192+1024*be}')
                if OPT.get('c1') == 0: check1()
    if OPT.get('c1') == 1: check1()
    E = Z + 8
    for be in range(2):
        cmul(k, DD+8*be, DD+8*be+4, TW1+8*be, TW1+8*be+4, TT, TT+4, True)
        for h in range(4): k(f'v_cvt_pk_f16_f32 v{PK+4*be+h}, v{TT+2*h}, v{TT+2*h+1}')
        for t in range(2):
            for o in range(2):
                d = V(E+8*t+4*o, 4)
                k(f'v_mfma_f32_16x16x32_f16 {d}, {V(A2+6*(2*t+be)+2-2*o,4)}, {V(PK+4*be,4)}, {"0" if be==0 else d}')
    def check2():
        global n1
        n1 = 48 - len(k.sprinkle); k.sprinkle = []
        k(f'v_cmp_ne_u32 vcc, 1, v27\n s_cmp_eq_u64 vcc, 0\n s_cselect_b32 s38, {WS_USED}, 0')
        if OPT.get('wtouch') == 2: k(f's_sub_u32 s44, {WS_USED}, s30\n s_cselect_b32 s44, 0, 0\n s_cmp_eq_u32 s30, 0\n s_cselect_b32 s44, 0, {WS_USED}\n buffer_load_dword v25, v14, {RC}, s44 offen{LD}')
        k.sprinkle = wloads(RC)[n1:]
    if OPT.get('c1') == 2: check1()
    unpack()
    stamp(k, 3, 'b')
    if OPT.get('c2', 0) == 0: check2()
    for t in range(2):
        cmul(k, E+8*t, E+8*t+4, WW+8*t, WW+8*t+4, TT, TT+4, False)
        for h in range(4): k(f'v_cvt_pk_bf16_f32 v{PK+4*t+h}, v{TT+2*h}, v{TT+2*h+1}')
        for be in range(2):
            for o in range(2):
                d = V(DD+8*be+4*o, 4)
                k(f'v_mfma_f32_16x16x32_bf16 {d}, {V(PK+4*t,4)}, {V(B3+6*(2*be+t)+2-2*o,4)}, {"0" if t==0 else d}')
    if OPT.get('c2', 0) == 1: check2()
    for be in range(2):
        cmul(k, DD+8*be, DD+8*be+4, TW2+8*be, TW2+8*be+4, TT, TT+4, False)
        for h in range(4): k(f'v_cvt_pk_bf16_f32 v{PK+4*be+h}, v{TT+2*h}, v{TT+2*h+1}')
        k(f'ds_write_b128 v16, {V(PK+4*be,4)} offset:{1024*be}')
    def step4(u, src):
        for be in range(2):
            for o in range(2):
                d = V(DD+8*be+4*o, 4)
                k(f'v_mfma_f32_16x16x32_bf16 {d}, {V(A4+6*u+2-2*o,4)}, {V(src+4*be,4)}, {d}')
    for o in range(2):
        for be in range(2):
            for r in range(4):
                d = DD+8*be+4*o+r; hi = r & 1
                k(f'v_fma_mix_f32 v{d}, v{SG+4*be+r}, v{Z+4*be+2*o+(r>>1)}, 0 op_sel:[0,{hi},0] op_sel_hi:[0,1,0]')
    stamp(k, 4, 'b')
    k.wait(lg=0); k('s_barrier')
    for u in range(1, 4):
        for be in range(2): k(f'ds_read_b128 {V(Z+8*u+4*be,4)}, v{16+u} offset:{1024*be}')
    step4(0, PK)
    for u in range(1, 4): step4(u, Z+8*u)
    OUT = 64
    rest, k.sprinkle = k.sprinkle, []
    for o in range(2):
        for be in range(2):
            for h in range(2): k(f'v_cvt_pk_bf16_f32 v{OUT+4*o+2*be+h}, v{DD+8*be+4*o+2*h}, v{DD+8*be+4*o+2*h+1}')
    k('s_cmp_lg_u32 s2, 0\n s_cbranch_scc1 L_p2_st')
    for h in range(4): k(f'v_mov_b32 v{OUT+4+h}, v{OUT+h}\n v_mov_b32 v{OUT+h}, 0')
    k.label('L_p2_st')
    for o in range(2): k(f'buffer_store_dwordx4 {V(OUT+4*o,4)}, v20, {WSR}, s62 offen offset:{2048*o}{ST}')
    stamp(k, 5, 'b')
    return rest

def barrier2(k, rest):
    print('weight loads left after phase 2:', len(rest))
    k(f's_lshl_b32 s44, s48, 12\n s_add_u32 s44, s44, {HF}')
    k(f's_and_b32 s46, {WAVE}, 1')
    for p in range(4): k(f's_xor_b32 s45, s46, {p}\n s_lshl_b32 s45, s45, 10\n s_add_u32 s{55+p}, s44, s45')
    k(f"""s_lshl_b32 s44, s49, 17
    s_lshl_b32 s45, s48, 11
    s_add_u32 s44, s44, s45
    s_add_u32 s59, s44, {HRES}
    s_add_u32 s60, s59, 0x10000
    s_lshl_b32 s44, s48, 10
    s_add_u32 s61, s44, {SM+64}
    s_mov_b32 s46, 0""")
    print('group 1:', n1)
    stamp(k, 6)
    nA = min(OPT.get('nA', 12), len(rest)); nB = min(OPT.get('nB', 48), len(rest) - nA)
    n2 = 48 - len(rest) + nA
    for t in rest[:nA]: k(t)
    rest = [t.replace(RC, WSR) for t in rest]
    stamp(k, 6, 'b')
    k(f'v_mov_b32 v250, 0\n v_mov_b32 v251, 1\n s_cmp_lg_u32 {WAVE}, 0\n s_cbranch_scc1 L_b2o')
    st = k.state()
    k(f's_mov_b64 exec, 1\n s_waitcnt vmcnt({nA})'); stamp(k, 7, 'b'); k('s_barrier'); stamp(k, 8, 'b')
    k(f'buffer_atomic_add v251, v250, {WSR}, s74 offen sc0 sc1')
    k('s_barrier')
    stamp(k, 9, 'b'); arrive_check(k, 250, 's75', 51, 2); stamp(k, 10, 'b')
    if OPT.get('hold'): k('s_barrier')
    k('s_mov_b64 exec, -1\n s_branch L_b2m')
    k.restore(st); k.label('L_b2o')
    k(f's_waitcnt vmcnt({nA})'); stamp(k, 7, 'b'); k('s_barrier'); stamp(k, 8, 'b')
    k('s_barrier')
    if OPT.get('hold'): k('s_barrier')
    stamp(k, 9, 'b'); stamp(k, 10, 'b')
    k.label('L_b2m')
    k(f's_cmp_lg_u32 s30, 0\n s_cbranch_scc1 L_bok')
    st = k.state()
    k(f's_cmp_lg_u32 s38, 0\n s_cbranch_scc1 L_bok2')
    k.label('L_bchk')
    k(f"""buffer_load_dword v26, v23, {WSR}, 0 offen{LD}
    s_add_u32 s46, s46, 1
    s_waitcnt vmcnt(0)
    v_cmp_ne_u32 vcc, 1, v26
    s_cmp_gt_u32 s46, {SPIN}
    s_cbranch_scc1 L_bgo
    s_cbranch_vccnz L_bchk""")
    k.label('L_bgo')
    for t in wloads(WSR)[n1:n2]: k(t)
    k.label('L_bok2')
    for t in wloads(WSR)[:n1]: k(t)
    k.restore(st)
    k.label('L_bok')
    for t in rest[nA:nA+nB]: k(t)
    if OPT.get('retouch'):
        def rt():
            k('s_lshr_b32 s44, s2, 3\n s_lshl_b32 s44, s44, 10\n v_lshl_add_u32 v252, v3, 6, s44')
            k.raw('    v_min_u32 v252, L_notz-L_b2x-4, v252\n    s_sub_u32 s44, s42, tables-L_b2x\n    s_subb_u32 s45, s43, 0'); k.pos += 3
            k('v_mov_b32 v253, s45\n v_add_co_u32 v252, vcc, s44, v252\n v_addc_co_u32 v253, vcc, 0, v253, vcc\n s_mov_b64 exec, 0xffff\n global_load_dword v254, v[252:253], off')
        only_wave(k, 2, rt)
    only_wave(k, 0, lambda: poll(k, 250, 2))
    global late_w
    late_w = rest[nA+nB:]
    def hw():
        k('v_bfe_u32 v16, v1, 2, 1\n v_lshlrev_b32 v16, 9, v16\n v_bfe_u32 v17, v1, 3, 1\n v_lshl_add_u32 v16, v17, 4, v16\n v_and_b32 v17, 3, v1\n v_lshl_add_u32 v16, v17, 2, v16')
        for j in range(8): k(f'buffer_load_dword v{MUV+j}, v16, {WSR}, s61 offen offset:{128*((j^3)>>1)+32*((j^3)&1)}{LD}')
    global hw_means, st3
    hw_means = hw
    k(f's_cmp_eq_u32 {WAVE}, 3\n s_cbranch_scc1 L_p3h')
    st3 = k.state()
    if OPT.get('isl'):
        k(f's_mov_b64 exec, 0\n s_cmp_eq_u32 {WAVE}, 1\n s_cbranch_scc1 L_isl0_0\n s_branch L_isl0_{OPT.get("islmid", 32)}')
        k.label('L_islret0'); k('s_mov_b64 exec, -1')
    k.label('L_b2x')

ACT, ACC, TM, STV, MUV = 32, 64, 128, 16, 24
def cost(t):
    m = t.split()[0]
    if m.startswith('buffer'): return 18 + 4 * t.count('\n')
    if m.startswith(('v_exp', 'v_rcp', 'v_rsq', 'v_permlane', 'ds_write')): return 8
    return 4 * (t.count('\n') + 1)

def p3_body(k, hw):
    acc = lambda p, n, m, par=0: ACC + 32*(p & 1) + 8*(n + (par if n == 2 and hw else 0)) + 4*m
    GR = 28 if not hw else TM + 12
    dma_pos = []
    def dma(j):
        return f'buffer_load_dwordx4 v5, {WSR}, m0 offen offset:{1024*(j&3)}{LD} lds'
    def m0step(j): return [f's_add_u32 m0, m0, {8192 + (32768 if j == 15 else 0)}'] if j & 3 == 3 and j < 31 else []
    def slot(g, m): return ACT + 8*(g & 3) + 4*m
    def reads(g):
        p, ka = divmod(g, 16); o = []
        if p and ka == 0:
            x = (p ^ (p-1)) << 15
            o = [f'v_xor_b32 v6, {x:#x}, v6', f'v_xor_b32 v7, {x:#x}, v7']
        return o + [f'ds_read_b64_tr_b16 {V(slot(g,m)+2*h,2)}, v{6+m} offset:{2048*ka+1024*h}' for m in range(2) for h in range(2)]
    def chains(p, J):
        if p == 3:
            P = J[::2]
            o = [f'v_pk_mul_f32 {V(t,2)}, {V(g,2)}, {V(g,2)}' for g, u, t, c in P]
            o += [f'v_pk_fma_f32 {V(t,2)}, {V(t,2)}, {V(c,2)}, {V(c,2)} op_sel:[0,1,0] op_sel_hi:[1,1,0]' for g, u, t, c in P]
            o += [f'v_pk_mul_f32 {V(t,2)}, {V(t,2)}, {V(g,2)}' for g, u, t, c in P]
            o += [f'v_exp_f32 v{t}, v{t}' for g, u, t, c in J]
            o += [f'v_pk_mul_f32 {V(g,2)}, {V(g,2)}, {V(u,2)}' for g, u, t, c in P]
            o += [f'v_pk_fma_f32 {V(t,2)}, {V(t,2)}, {V(c+2,2)}, {V(c+2,2)} op_sel_hi:[1,0,0]' for g, u, t, c in P]
            o += [f'v_rcp_f32 v{t}, v{t}' for g, u, t, c in J]
            o += [f'v_pk_mul_f32 {V(g,2)}, {V(g,2)}, {V(t,2)}' for g, u, t, c in P]
            return o
        o = [f'v_mul_f32 v{t}, v{g}, v{g}' for g, u, t, c in J]
        o += [f'v_mul_f32 v{u}, v{g}, v{u}' for g, u, t, c in J]
        o += [f'v_fma_f32 v{t}, v{t}, v{c+1}, v{c}' for g, u, t, c in J]
        o += [f'v_mul_f32 v{t}, v{t}, v{g}' for g, u, t, c in J]
        o += [f'v_exp_f32 v{t}, v{t}' for g, u, t, c in J]
        o += [f'v_fma_f32 v{t}, v{t}, v{c+2}, v{c+2}' for g, u, t, c in J]
        o += [f'v_rcp_f32 v{t}, v{t}' for g, u, t, c in J]
        o += [f'v_mul_f32 v{g}, v{u}, v{t}' for g, u, t, c in J]
        return o
    def epilogue(p):
        HA, HX = TM + 8, TM + 12
        J = [(acc(p, 0, m)+r, acc(p, 1, m)+r, TM+4*m+r, STV+4*m) for m in range(2) for r in range(4)]
        o = []
        if not hw: o += [f'v_permlane32_swap_b32 v{acc(p,2,0)+r}, v{acc(p,2,1)+r}' for r in range(4)]
        o += chains(p, J)
        o += [f'v_cvt_pk_bf16_f32 v{HA+2*m+h}, v{acc(p,0,m)+2*h}, v{acc(p,0,m)+2*h+1}' for h in range(2) for m in range(2)]
        tail = [f'v_permlane16_swap_b32 v{HA}, v{HA+2}', f'v_permlane16_swap_b32 v{HA+1}, v{HA+3}',
                f'buffer_store_dwordx4 {V(HA,4)}, v12, {RB}, s{55+p} offen{ST}']
        if not hw:
            x = chains(p, [(acc(p, 2, 0)+r, acc(p, 2, 1)+r, TM+r, STV+8) for r in range(4)])
            o += x[:2] + tail + x[2:]
            o += [f'v_cvt_pk_bf16_f32 v{HX+2*(p&1)+h}, v{acc(p,2,0)+2*h}, v{acc(p,2,0)+2*h+1}' for h in range(2)]
            if p & 1: o += [f'v_permlane16_swap_b32 v{HX}, v{HX+2}', f'v_permlane16_swap_b32 v{HX+1}, v{HX+3}',
                            f'buffer_store_dwordx4 {V(HX,4)}, v13, {RB}, s{55+p} offen{ST}']
        else:
            for m in range(2):
                e, od = acc(p, 2, m), acc(p, 2, m, 1); t = TM
                o += [f'v_add_f32 v{e+r}, v{e+r}, v{MUV+2*p+m}' for r in range(4)]
                if m == 0: o += tail
                for r in range(4): o += [f'v_add_f32 v{t+r}, v{e+r}, v{od+r}', f'v_sub_f32 v{t+4+r}, v{e+r}, v{od+r}']
                P0, P1 = acc(p, 2, 0), acc(p, 2, 0, 1)
                o += [f'v_cvt_pk_bf16_f32 v{P0+2*m}, v{t}, v{t+1}', f'v_cvt_pk_bf16_f32 v{P0+2*m+1}, v{t+2}, v{t+3}',
                      f'v_cvt_pk_bf16_f32 v{P1+2-2*m}, v{t+7}, v{t+6}', f'v_cvt_pk_bf16_f32 v{P1+3-2*m}, v{t+5}, v{t+4}']
            off = 512*(p ^ 1)
            o += [f'v_permlane16_swap_b32 v{P0}, v{P0+2}', f'v_permlane16_swap_b32 v{P0+1}, v{P0+3}',
                  f'buffer_store_dwordx4 {V(P0,4)}, v13, {WSR}, s59 offen offset:{off}{ST}',
                  f'v_permlane16_swap_b32 v{P1+2}, v{P1}', f'v_permlane16_swap_b32 v{P1+3}, v{P1+1}',
                  f'buffer_store_dwordx4 {V(P1,4)}, v14, {WSR}, s60 offen offset:{off}{ST}']
        return o
    def stats(p):
        K0 = -2*math.sqrt(2/math.pi)*math.log2(math.e); b = GR
        return [f'v_cndmask_b32 v{b}, v{b}, v{b+1}, s[64:65]', f'v_cndmask_b32 v{b}, v{b}, v{b+2}, s[66:67]', f'v_cndmask_b32 v{b}, v{b}, v{b+3}, s[68:69]',
                f'v_mov_b32 v{b+2}, {fbits(256e-5)}', f'v_fmac_f32 v{b+2}, 0.5, v{b}', f'v_rsq_f32 v{b+3}, v{b+2}',
                f'v_mul_f32 v{b}, {fbits(K0)}, v{b+3}', f'v_mul_f32 v{b+3}, v{b+3}, v{b+3}', f'v_mul_f32 v{b+1}, {fbits(0.044715)}, v{b}', f'v_mul_f32 v{b+1}, v{b+1}, v{b+3}',
                f'ds_write_b128 v9, {V(b,4)} offset:{512*p}']
    def getstats(p):
        R = [(10, STV), (8, STV+4)] + ([] if hw else [(11, STV+8)])
        o = [f'v_xor_b32 v{a}, 0x200, v{a}' for a, _ in R] if p else []
        return o + [f'ds_read_b128 {V(d,4)}, v{a} offset:{1024*(p>>1)}' for a, d in R]
    def issue_dma(j): k(dma(j)); dma_pos.append(k.nvm)
    if hw:
        hw_means()
        if OPT.get('isl'):
            k('s_mov_b64 exec, 0\n s_branch L_isl1_0'); k.label('L_islret1'); k('s_mov_b64 exec, -1')
    k('s_barrier')
    stamp(k, 7); stamp(k, 11, 'b')
    def island(g):
        G = OPT.get('isl')
        if not G or g % G: return
        mid = OPT.get('islmid', 32)
        k.label(f'L_isl{int(hw)}_{g}')
        k(f's_cbranch_execz L_isl{int(hw)}_{g+G}' if g + G < 64 and (hw or g + G != mid) else (f's_cbranch_execz L_islret{int(hw)}' if g + G >= 64 else f's_cbranch_execz L_islret0'))
    DP = OPT.get('dpre', 16)
    for j in range(DP):
        issue_dma(j)
        for t in m0step(j): k(t)
    if hw: k('v_and_b32 v13, 0x1f0, v4\n v_xor_b32 v13, 0x100, v13\n v_lshrrev_b32 v14, 5, v1\n v_lshl_add_u32 v13, v14, 15, v13\n v_xor_b32 v14, 0x8000, v13')
    p4_ids(k)
    k(f"""s_mov_b32 s51, 0
    s_lshl_b32 s45, s45, 2
    s_add_u32 s45, s45, {WAVE}
    s_mul_i32 s45, s45, {WDS}
    s_add_u32 s45, s45, {WD}
    v_add_u32 v15, s45, v4
    s_lshr_b32 s46, s44, 1
    s_lshl_b32 s45, s46, 11
    s_add_u32 s62, s45, {RBF}
    s_add_u32 s63, s62, 0x8000
    s_lshl_b32 s46, s46, 2
    s_and_b32 s44, s44, 1
    s_add_u32 s73, s46, s44
    s_lshl_b32 s46, s73, 10
    s_mul_i32 s47, {WAVE}, {HFS}
    s_add_u32 s46, s46, s47
    s_add_u32 s74, s46, {HF}
    s_mov_b32 s75, 0""")
    def landed(j): k(f's_waitcnt vmcnt({min(63, k.nvm - dma_pos[j])})'); k('s_barrier')
    landed(3)
    stamp(k, 8)
    rd_pos = {}
    def do_reads(g):
        for t in reads(g): k(t)
        rd_pos[g] = k.nlg
    do_reads(0); do_reads(1)
    NWD = OPT.get('wdin', 22)
    memq = [('dma', j) for j in range(DP, 16)]
    lw = list(late_w)
    memq += lw + [('dma', j) for j in range(16, 32)]
    after = []
    nfast = len(memq)
    wl = [t for u in range(0, NWD, 2) for t in wd_loads(u)]
    wdq = [wl[i] + ('\n' + wl[i+1] if i % 5 == 3 else '') for i in range(len(wl)) if i % 5 != 4]
    W1 = OPT.get('wdend', 57)
    st_pos = None
    wrate = min(1.0, len(wdq) / (W1 - nfast / OPT.get('mrate', 1)))
    eq = [hload(0, u, RC) for u in range(22)]
    ismem = lambda t: isinstance(t, tuple) or t.startswith(('ds_', 'buffer'))
    vcost = lambda t: 8 if t.startswith(('v_exp', 'v_rcp', 'v_rsq', 'v_permlane')) else 4 * (t.count('\n') + 1)
    hcost = lambda t: 4 if (t[0] == 'rd' if isinstance(t, tuple) else t.startswith('ds_read')) else 8
    salu = []
    def emit_mem(f):
        nonlocal stat_pos
        if isinstance(f, tuple):
            if f[0] == 'dma':
                while salu: k(salu.pop(0))
                issue_dma(f[1]); salu.extend(m0step(f[1]))
            else: k(f[1]); rd_pos[f[2]] = k.nlg
        else:
            t = f.split('\n')
            if t[0].startswith('buffer_load_dwordx4'):
                while salu: k(salu.pop(0))
            k(t[0]); salu.extend(x.strip() for x in t[1:])
            if f.startswith('ds_write'): stat_pos = k.nlg
    stat_pos = None
    k.wait(lg=k.nlg - rd_pos[0])
    for p in range(4):
        pre = stats(p-1) if p & 1 else []
        bg = (epilogue(p-1) + (getstats(p) if p & 1 else [])) if p else []
        nind = (16 if hw else 20) if p & 1 else 0
        SB = OPT.get('sb', 3)
        nbg = len(bg)
        k1 = OPT.get('e1end', 12) if p == 2 else 16
        tot = sum(vcost(t) for t in bg); done = 0
        val = []
        for ka in range(16):
            g = 16*p + ka
            if OPT.get('gst') and g in OPT['gst']: stamp(k, 1 + OPT['gst'].index(g), True)
            sync = None
            if p & 1 and ka == SB: sync = 'stat'
            if p == 0 and ka in (2, 6, 10): sync = ka + 5
            if p == 1 and ka == 13 and not OPT.get('mergeland'): sync = 31
            rds = []
            if g + 2 < 64:
                for t in reads(g + 2):
                    if t.startswith('ds_'): rds.append(('rd', t, g + 2))
            if g + 3 < 64 and (g + 3) % 16 == 0: late_x = [t for t in reads(g + 3) if not t.startswith('ds_')]
            else: late_x = []
            mem = []
            if memq:
                mr = OPT.get('mrate', 1); n = int((g + 1) * mr) - int(g * mr); n = OPT.get('mfirst', n) if len(dma_pos) < 16 else n; mem = memq[:n]; memq = memq[n:]
            elif wdq and not (p & 1 and ka == SB):
                left = W1 - g
                n = (len(wdq) + left - 1) // left if len(wdq) >= left else int((g + 1) * wrate) - int(g * wrate)
                mem = wdq[:n]; wdq = wdq[n:]
            if ka <= 1 and pre:
                n = 6 if ka == 0 else len(pre); val += pre[:n]; pre = pre[n:]
            o1 = 1 if p & 1 else 0
            budget = tot * (ka + 1 - o1) / (k1 - o1)
            if p & 1 and ka <= 1: budget = -1
            if p & 1 and ka == SB: rds = rds + [t for t in getstats(p-1) if t.startswith('ds_')]
            if p & 1 and ka == 1: val += [t for t in getstats(p-1) if not t.startswith('ds_')]
            while bg and (done + vcost(bg[0])/2 <= budget or ka == k1 - 1) and not (p & 1 and ka <= SB and nbg - len(bg) >= nind):
                done += vcost(bg[0]); val.append(bg.pop(0))
            if g == 48 + OPT.get('esamp', 8) - 1: val += ['v_lshlrev_b32 v5, 7, v3', 'v_lshl_add_u32 v5, v2, 28, v5', 'v_min_u32 v0, 1, v2', 'v_xor_b32 v0, 1, v0', 'v_add_u32 v3, s74, v4']
            if g == 48 + OPT.get('esamp', 8): mem = [f'buffer_load_dword v9, v5, {WSR}, s62 offen{LD}'] + mem
            if g == 48 + OPT.get('echk', 11): val += [f'v_cmp_ne_u32 vcc, v0, v9\n s_cmp_eq_u64 vcc, 0\n s_cselect_b32 s38, s34, 0']
            if g > 48 + OPT.get('echk', 11):
                er = OPT.get('erate', 1); mem = mem + eq[:er]; eq = eq[er:]
            mf = []
            for m in range(2):
                b_ = V(slot(g, m), 4)
                for n in range(3):
                    d = V(acc(p, n, m, ka & 1), 4)
                    first = ka == 0 or (n == 2 and ka == 1 and hw)
                    mf.append(f'v_mfma_f32_16x16x32_bf16 {d}, {A(12*ka+4*n,4)}, {b_}, {"0" if first else d}')
            mf = [mf[i] for i in (0, 3, 4, 1, 2, 5)]
            if p % 2 == 0: mf.insert(0, f'v_mfma_f32_16x16x32_bf16 {V(GR,4)}, {V(slot(g,0),4)}, {V(slot(g,0),4)}, {"0" if ka==0 else V(GR,4)}')
            heads = list(rds)
            for i, t in enumerate(mem): heads.insert(min(len(heads), 2 + 2*i + (1 if len(mem) == 1 else 0)), t)
            N = len(mf)
            ftot = sum(map(hcost, heads)) + sum(hcost(t) if ismem(t) else vcost(t) for t in val) + 4*len(late_x); fd = 0
            flush_val = ka == 15 or (p == 2 and ka == k1 - 1) or (p & 1 and ka == 1) or g - 48 in (OPT.get('esamp', 8) - 1, OPT.get('echk', 11))
            for i, t in enumerate(mf):
                k(t)
                last = i == N - 1
                if i == 0 and sync is not None:
                    if sync == 'stat':
                        assert not pre and not any(x.startswith('ds_write') for x in val)
                        k.wait(lg=k.nlg - stat_pos)
                        if p == 3 or OPT.get('mergeland'): k(f's_waitcnt vmcnt({min(63, k.nvm - (st_pos if p == 3 else dma_pos[31]))})')
                        k('s_barrier')
                        if p == 3 and hw: k(f'v_mov_b32 v{MUV}, 0\n v_mov_b32 v{MUV+1}, 1\n s_mov_b64 exec, 1\n buffer_store_dword v{MUV+1}, v{MUV}, {WSR}, s41 offen{ST}\n s_mov_b64 exec, -1')
                    else: landed(sync)
                if i == 1: island(g)
                nh = 0
                nxt = val[0] if val and ismem(val[0]) else (heads[0] if heads else None)
                if last and g + 1 < 64: k.wait(lg=k.nlg - rd_pos[g + 1])
                elif salu and (nxt is None or hcost(nxt) == 4) and not (i == 1 and OPT.get('isl')): k(salu.pop(0))
                while True:
                    if val and ismem(val[0]) and nh == 0: f = val.pop(0)
                    elif heads and (nh == 0 or len(heads) > N - 1 - i): f = heads.pop(0)
                    else: break
                    emit_mem(f); fd += hcost(f); nh += 1
                if last:
                    for x in late_x: k(x)
                while val and ((not ismem(val[0]) and fd + vcost(val[0])/2 <= ftot * (i+1) / N + 1e-6) or (last and flush_val)):
                    f = val.pop(0)
                    if ismem(f): emit_mem(f); fd += hcost(f)
                    else: k(f); fd += vcost(f)
            assert not heads
            if p == 2 and ka == k1 - 1: st_pos = k.nvm
        assert not bg and not val
        if p == 0: stamp(k, 9)
        if OPT.get('pst'): stamp(k, 1+p, True)
    while salu: k(salu.pop(0))
    assert not wdq
    stamp(k, 10)
    ep = epilogue(3); ne = OPT.get('eepi', 0); gap = 5
    for i, t in enumerate(ep):
        k(t)
        if i % gap == gap - 1 and ne > 0: k(eq.pop(0)); ne -= 1
    assert ne == 0
    if OPT.get('echk') > 15: k(f'v_cmp_ne_u32 vcc, v0, v9\n s_cmp_eq_u64 vcc, 0\n s_cselect_b32 s38, s34, 0')
    if OPT.get('pst'): stamp(k, 5, True)
    return 22 - len(eq)

def hload(hf, u, R):
    return f'buffer_load_dwordx4 {A(88*hf+4*u,4)}, v3, {R}, s75 offen offset:{2048*hf}{LD}\n ' + (f's_add_u32 s75, s75, {4*HFS}' if u < 21 else 's_mov_b32 s75, 0')

def redo(k, soff, hf, n, again=None, pre=None):
    uid[0] += 1; u = uid[0]
    k(f's_cmp_lg_u32 s38, 0\n s_cbranch_scc1 L_sd{u}')
    st = k.state()
    k('s_mov_b32 s46, 0')
    if pre: k(f'v_cmp_ne_u32 vcc, v0, v{pre}\n s_cbranch_vccz L_sg{u}')
    k.label(f'L_sp{u}')
    k(f"""buffer_load_dword v6, v5, {WSR}, {soff} offen{LD}
    s_add_u32 s46, s46, 1
    s_waitcnt vmcnt(0)
    v_cmp_ne_u32 vcc, v0, v6
    s_cmp_gt_u32 s46, {SPIN}
    s_cbranch_scc1 L_sg{u}
    s_cbranch_vccnz L_sp{u}""")
    k.label(f'L_sg{u}')
    k('s_mov_b32 s75, 0')
    for j in range(n): k(hload(hf, j, RB))
    if again: again()
    k.restore(st)
    k.vm = [set()] * 8 + [{('a', 88*hf+4*j+r) for r in range(4)} for j in range(n)]
    k.label(f'L_sd{u}')

def spin(k, reg, soff):
    uid[0] += 1; u = uid[0]
    k(f'v_cmp_ne_u32 vcc, v0, v{reg}\n s_mov_b32 s46, 0\n s_cbranch_vccz L_sd{u}')
    st = k.state()
    k.label(f'L_sp{u}')
    k(f"""buffer_load_dword v{reg}, v5, {WSR}, {soff} offen{LD}
    s_add_u32 s46, s46, 1
    s_waitcnt vmcnt(0)
    v_cmp_ne_u32 vcc, v0, v{reg}
    s_cmp_gt_u32 s46, {SPIN}
    s_cbranch_scc1 L_sd{u}
    s_cbranch_vccnz L_sp{u}""")
    k.restore(st)
    k.label(f'L_sd{u}')

QS, INS, PS = 1152, 4736, 9472
def p4(k, n0, nst):
    HR, RD, SUM = 32, 40, 128
    PRE = OPT.get('p4pre', 14)
    EP = OPT.get('epost', 6)
    k.vm = [{('a', 4*j+r) for r in range(4)} for j in range(n0)] + [set()] * nst
    if OPT.get('sbar'): k('s_barrier')
    el = [hload(0, j, RC) for j in range(n0, n0 + EP)]
    if not OPT.get('mix'):
        for t in el: k(t)
        el = []
    U0 = n0 if not OPT.get('nopre') else 0
    n0 += EP
    setup = f"""s_mov_b32 s28, s18
    s_and_b32 s29, s19, 0xffff
    s_mov_b32 s30, {S*D*2}
    s_lshr_b32 s65, s2, 5
    v_lshrrev_b32 v16, 3, v1
    v_bfe_u32 v17, v1, 1, 2
    s_lshl_b32 s46, s65, 2
    v_add_u32 v17, s46, v17            ; 16-column block
    v_sub_u32 v18, 31, v17
    v_min_u32 v18, v17, v18
    v_lshlrev_b32 v18, 17, v18
    v_lshrrev_b32 v17, 4, v17
    v_lshl_add_u32 v18, v17, 16, v18
    v_lshl_add_u32 v18, v16, 4, v18
    v_and_b32 v17, 1, v1
    v_lshl_add_u32 v8, v17, 15, v18    ; residual
    s_lshl_b32 s66, s73, 9
    s_lshl_b32 s46, {WAVE}, 7
    s_add_u32 s66, s66, s46
    s_add_u32 s66, s66, {HRES}
    v_mov_b32 v20, 0
    v_mov_b32 v21, 1
    s_add_u32 s41, s41, 0x8000
    s_lshr_b32 s46, s73, 2
    s_lshl_b32 s46, s46, 17
    s_and_b32 s44, s73, 3
    s_lshl_b32 s44, s44, 2
    s_add_u32 s44, s44, {WAVE}
    s_lshl_b32 s44, s44, 10
    s_add_u32 s67, s46, s44
    s_lshl_b32 s45, s65, 7
    s_add_u32 s67, s67, s45
    s_add_u32 s68, s67, 0x2000
    v_and_b32 v9, 7, v1
    v_lshlrev_b32 v9, 4, v9
    v_and_b32 v18, 3, v16
    v_lshl_add_u32 v9, v18, 15, v9
    v_lshrrev_b32 v18, 2, v16
    v_lshl_add_u32 v9, v18, 14, v9     ; output
    v_lshrrev_b32 v18, 5, v1
    v_lshl_add_u32 v10, v18, 6, v4
    s_mul_i32 s44, {WAVE}, {PS}
    v_add_u32 v10, s44, v10            ; partial sums, write
    v_bfe_u32 v18, v1, 2, 1
    v_mul_u32_u24 v11, {INS}, v18
    v_bfe_u32 v18, v1, 1, 1
    v_mul_u32_u24 v18, 576, v18
    v_add_u32 v11, v11, v18
    v_lshl_add_u32 v11, v16, 4, v11
    v_lshl_add_u32 v11, v17, 3, v11
    s_lshl_b32 s44, {WAVE}, 7
    v_add_u32 v11, s44, v11            ; partial sums, read
    v_add_u32 v12, {4*PS}, v11""".split('\n')
    def resid(hf): k(f'buffer_load_dwordx4 {V(HR+4*hf,4)}, v8, {WSR}, s66 offen offset:{1024*hf}{LD}')
    def mf(hf, u, i):
        d = V(ACC+32*hf+16*i, 16)
        return f'v_mfma_f32_32x32x16_bf16 {d}, {wd_reg(u, i)}, {A(88*hf+4*u,4)}, {"0" if u==0 else d}'
    def mm(hf, issued, hook):
        q = []
        for j in range(22):
            if hf == 0 and j >= OPT.get('wdin', 22) and j % 2 == 0:
                w = wd_loads(j); q += [lambda t=t: k(t) for t in w[:3] + [w[3] + '\n' + w[4]]]
            if j >= issued: q.append(lambda j=j: k(hload(hf, j, RB)))
        q.append(lambda: resid(hf))
        TL = OPT.get('tl', 0) if hf == 1 else 0
        for u in range(U0 if hf == 0 else 0, 22 - TL):
            for i in range(2):
                k(mf(hf, u, i))
                if q and (i == 0 or len(q) > 22 - u - OPT.get('lead', 8)): q.pop(0)()
                hook(u, i)
    def red_write(hf):
        o = [f'ds_write_b128 v10, {V(ACC+32*hf+16*i+4*q,4)} offset:{4*PS*hf+INS*i+QS*q}' for i in range(2) for q in range(4)]
        for j in range(4):
            o += [f'v_lshlrev_b32 v{SUM+4*(j&1)+(j>>1)}, 16, v{HR+4*hf+j}', f'v_and_b32 v{SUM+4*(j&1)+2+(j>>1)}, 0xffff0000, v{HR+4*hf+j}']
        return o
    def red_read(hf, pk=True):
        R = lambda w, q: (RD + 8*w + 2*q) if w < 3 else SUM + 8 + 2*q
        o = [f'ds_read_b64 {V(R(w,q),2)}, v{11+hf} offset:{PS*w+QS*q}' for w in range(4) for q in range(4)]
        if pk: o += [f'v_pk_add_f32 {V(SUM+2*q,2)}, {V(SUM+2*q,2)}, {V(R(w,q),2)}' for w in range(4) for q in range(4)]
        else: o += [f'v_add_f32 v{SUM+2*q+h}, v{SUM+2*q+h}, v{R(w,q)+h}' for w in range(4) for q in range(4) for h in range(2)]
        o += [f'v_cvt_pk_bf16_f32 v{HR+4*hf+j}, v{SUM+4*(j&1)+(j>>1)}, v{SUM+4*(j&1)+2+(j>>1)}' for j in range(4)]
        return o + [f'buffer_store_dwordx4 {V(HR+4*hf,4)}, v9, {RA}, s{67+hf} offen{OPT.get("ost", "")}']
    pre = [mf(0, u, i) for u in range(U0) for i in range(2)]
    for t in pre:
        k(t)
        for x in setup[:5]: k(x)
        setup = setup[5:]
    while setup or el:
        if el: k(el.pop(0))
        for x in setup[:4]: k(x)
        setup = setup[4:]
    k(f's_waitcnt vmcnt({EP})'); k('s_barrier')
    only_wave(k, 0, lambda: k(f's_mov_b64 exec, 1\n buffer_store_dword v21, v20, {WSR}, s41 offen{ST}'))
    stamp(k, 11)
    redo(k, 's62', 0, n0, lambda: [k(t) for t in pre])
    if OPT.get('p4st'): stamp(k, 1, True)
    LP, LC = OPT.get('lpoll', 11), OPT.get('lchk', 15)
    nl = [0]
    def hook0(u, i):
        if u == LP and i == 1: k(f'buffer_load_dword v6, v5, {WSR}, s63 offen{LD}')
        if u == LC and i == 0: k('v_cmp_ne_u32 vcc, v0, v6\n s_cmp_eq_u64 vcc, 0\n s_cselect_b32 s38, s34, 0')
        if u == OPT.get('lp2', -1) and i == 0: k(f'buffer_load_dword v7, v5, {WSR}, s63 offen{LD}')
        if (u, i) > (LC, 0) and (i == 1 or OPT.get('lrate2')): k(hload(1, nl[0], RC)); nl[0] += 1
    mm(0, n0, hook0)
    if OPT.get('p4st'): stamp(k, 2, True)
    for j, t in enumerate(red_write(0)):
        k(t)
        if j < OPT.get('lmid', 5): k(hload(1, nl[0], RC)); nl[0] += 1
    if OPT.get('p4st'): stamp(k, 3, True)
    redo(k, 's63', 1, nl[0], pre=7 if OPT.get('lp2') else None)
    if OPT.get('p4st'): stamp(k, 4, True)
    rr = red_read(0, False)
    def hook1(u, i):
        if u == 1 and i == 1: k.wait(lg=0); k('s_barrier')
        if u >= 2:
            for _ in range(4 if i else 2):
                if rr: k(rr.pop(0))
    mm(1, nl[0], hook1)
    assert not rr
    if OPT.get('p4st'): stamp(k, 5, True)
    TL = OPT.get('tl', 0); rw = red_write(1)
    for u in range(22 - TL, 22): k(mf(1, u, 0))
    for j, u in enumerate(range(22 - TL, 22)):
        k(mf(1, u, 1))
        if j == 0:
            for t in rw[8:]: k(t)
            rw = rw[:8]
        elif len(rw) > 4 and j >= 2: k(rw.pop(0))
    for t in rw: k(t)
    k.wait(lg=0); k('s_barrier')
    for t in red_read(1): k(t)

DOC = """;
;   phase 1  rows: LN1 statistics + Z = LN1(x) C (two MFMA steps, 32 x 16);  weights: W' = C^T [Wgate|Wup];
;            the small DFT matrices from the table behind the code (read through VGPR addresses)
; Hand-offs: write-through (sc1) stores, vmcnt wait, workgroup barrier, then a counter / flag; consumers use sc1 loads.
"""
def fused():
    k = K()
    prologue(k)
    if OPT.get('prio'): only_wave(k, 0, lambda: k('s_setprio 3'))
    k(f's_cmp_ge_u32 s2, {NZ}\n s_cbranch_scc1 L_notz')
    st0 = k.state()
    p1_z(k)
    k.label('L_join1')
    k.vm = [set()] * 40; k.lg = []
    setup(k)
    stamp(k, 3)
    negs = lambda: [p2_negs(k, b) for b in (B1, A2, B3, A4)]
    def ztab():
        if OPT.get('ztpre'): return
        uid[0] += 1; u = uid[0]
        k((f's_cmp_ge_u32 s2, {NZ}' if OPT.get('ttpre') else 's_cmp_lg_u32 s71, 0') + f'\n s_cbranch_scc1 L_zt{u}')
        st_ = k.state()
        for t in ztl: k(t)
        k.restore(st_); k.label(f'L_zt{u}')
    stamp(k, 8, 'z')
    k(f's_cmp_lg_u32 {WAVE}, 0\n s_cbranch_scc1 L_b1o')
    st = k.state()
    k('s_mov_b64 exec, 1\n s_mov_b32 s46, 0\n s_waitcnt vmcnt(0)')
    k.label('L_go')
    k(f"""v_cmp_ne_u32 vcc, 0, v254
    s_add_u32 s46, s46, 1
    s_cbranch_vccnz L_gone
    global_load_dword v254, v250, s[20:21]{LD}
    s_waitcnt vmcnt(0)
    s_cmp_lt_u32 s46, {SPIN}
    s_cbranch_scc1 L_go""")
    k.restore(st); k.vm = []
    k.label('L_gone')
    stamp(k, 9, 'z')
    k('s_barrier')
    k(f's_cmp_eq_u32 s71, 0\n s_cbranch_scc1 L_b1a\n buffer_store_dword v251, v250, {WSR}, s71 offen{ST}\n s_mov_b64 exec, -1\n s_branch L_b1n')
    k.label('L_b1a')
    k(f'buffer_atomic_add v251, v250, {WSR}, s74 offen sc0 sc1\n s_mov_b64 exec, -1')
    stamp(k, 10, 'z')
    if OPT.get('z0'):
        for t in ztl: k(t)
    setup_late(k); arrive_check(k, 250, 's75', 19, 1)
    k('s_mov_b64 exec, -1')
    if not OPT.get('z0'): ztab()
    k('s_mov_b64 exec, -1\n s_branch L_b1m')
    k.restore(st); k.label('L_b1o')
    k('s_waitcnt vmcnt(0)')
    stamp(k, 9, 'z')
    k('s_barrier')
    k.label('L_b1n')
    stamp(k, 10, 'z')
    if OPT.get('zfirst'): ztab()
    setup_late(k)
    if not OPT.get('zfirst'): ztab()
    k.label('L_b1m')
    k('s_waitcnt vmcnt(0)')
    negs()
    rbclear = lambda: k(f'v_lshlrev_b32 v252, 15, v1\n s_mov_b64 exec, 3\n buffer_store_dword v250, v252, {WSR}, s41 offen{ST}')
    k.label('L_b1q')
    only_wave(k, 1, rbclear)
    only_wave(k, 0, lambda: poll(k, 250, 1))
    k.label('L_b1x')
    k.vm = []
    k('s_barrier')
    stamp(k, 4)
    stamp(k, 11, 'z'); stamp(k, 1, 'b')
    barrier2(k, p2(k))
    n0 = p3_body(k, False)
    nst = 0
    nst = 2
    k.label('L_join3')
    k.fence()
    p4(k, n0, nst)
    stamp_out(k, 12)
    k.label('L_end'); k('s_endpgm')
    k.restore(st3); k.label('L_p3h'); assert p3_body(k, True) == n0
    assert not any(k.vm[-nst:]); k('s_branch L_join3')
    k.restore(st0); k.label('L_notz')
    p1_w(k)
    if OPT.get('slowjoin'): k('s_branch L_join1')
    else:
        stamp(k, 3)
        wd_pack(k)
        if OPT.get('slate'): twiddles(k); negs()
        k(f"""s_lshl_b32 s44, s74, 3
        s_add_u32 s44, s44, {FLG}
        v_and_b32 v252, 7, v1
        v_lshlrev_b32 v252, 8, v252
        v_mov_b32 v254, v254               ; the go word has been read before the flags are sampled
        buffer_load_dword v253, v252, {WSR}, s44 offen{LD}""")
        if not OPT.get('slate'): twiddles(k); negs()
        stamp(k, 8, 'z')
        k('s_waitcnt vmcnt(1)')
        def go1():
            k('s_mov_b32 s46, 0')
            k.label('L_go2')
            k(f"""v_cmp_ne_u32 vcc, 0, v254
            s_add_u32 s46, s46, 1
            s_cbranch_vccnz L_gone2
            global_load_dword v254, v250, s[20:21]{LD}
            s_waitcnt vmcnt(0)
            s_cmp_lt_u32 s46, {SPIN}
            s_cbranch_scc1 L_go2""")
            k.label('L_gone2')
        only_wave(k, 1, go1)
        stamp(k, 9, 'z')
        k('s_barrier')
        stamp(k, 10, 'z')
        only_wave(k, 1, lambda: k(f's_mov_b64 exec, 1\n buffer_store_dword v251, v250, {WSR}, s71 offen{ST}'))
        wd_finish(k)
        k(f's_cmp_lg_u32 {WAVE}, 0\n s_cbranch_scc1 L_b1q')
        k(f'v_min_u32 v253, v253, v254\n v_cmp_eq_u32 vcc, 0, v253\n s_cbranch_vccnz L_b1q')
        k('s_branch L_b1x')
    k.restore(st_c); k.label('L_p1c')
    k(f's_cmp_ge_u32 s2, {NI0}\n s_cbranch_scc1 L_p1i')
    st1 = k.state()
    p1_t(k); k('s_branch L_join1')
    k.restore(st1); k.label('L_p1i'); p1_i(k); k('s_branch L_join1')
    o = header()
    o += f'; @launch grid=(256,1,1) block=(256,1,1) lds={STATL+4096}\n'
    o += DOC
    o += '.amdgcn_target "amdgcn-amd-amdhsa--gfx950"\n.text\n' + k.text()
    o += tables_text() + 'L_image_end:\n'
    o += '.section .rodata,"a"\n.p2align 6\n' + kd(KN, k)
    return o

if __name__ == '__main__':
    out = sys.argv[1]
    for a in sys.argv[2:]:
        key, _, val = a.partition('=')
        OPT[key] = eval(val) if val else True
    open(out, 'w').write(fused())
```

```python
import sys, math, struct
import numpy as np
from dsl import K
from design import *
import gen
from gen import V, A, Sg, fbits, TBL, tables_text, header, kd, NAME, srd, cmul, TPAD
del gen.tbl_data[1:3]
TBL['P2W'] -= 65536; TBL['P2S'] -= 65536

OPT = dict(stamps=False, gblate=True, tpost=True, every=48, mergeland=True, mrate=1.5, nopre=True, w0late=True, nA=6, c1=1, fpos=0, c2=1, prio=True, wgbfirst=False, wdshadow=True, wcont=True, nord=True, hold=True, esamp=8, e1end=13, echk=15, epost=8, wdend=62, lpoll=9, lchk=16, retouch=True, ntx=' nt', ntd=' nt', lp2=17, sbar=True, dpre=12, mfirst=2, zfirst=True, slate=True, zev=24, twe=True, th=True, ost=' sc1')
ST, LD = ' sc1', ' sc1'
WSR, RA, RB, RC = 's[24:27]', 's[28:31]', 's[32:35]', 's[36:39]'
WAVE = 's40'
KN = NAME + '_kernel'
SPIN = 400000
TW1, TW2 = 112, 128
B1, A4, A2, B3 = 144, 168, 192, 216
FA, GB = 200, 208
NZ, NC0, NI0 = 128, 216, 248
uid = [0]

def stamp(k, i, pm=False):
    if OPT.get('pst') and 1 <= i <= 5 and not pm: return
    if OPT.get('zdet') and 1 <= i <= 11 and pm != 'z': return
    if pm == 'z' and not OPT.get('zdet'): return
    if OPT.get('bdet') and 1 <= i <= 11 and pm != 'b': return
    if pm == 'b' and not OPT.get('bdet'): return
    if OPT['stamps']: k(f's_{"memtime" if OPT.get("pst") else "memrealtime"} s[{76+2*i}:{77+2*i}]')
def stamp_out(k, n):
    if not OPT['stamps']: return
    k.wait(vm=0, lg=0); stamp(k, n); n += 1; k.wait(lg=0)
    k(f's_lshl_b32 s44, s2, 8\n s_lshl_b32 s45, {WAVE}, 6\n s_add_u32 s44, s44, s45\n s_add_u32 s44, s44, {STAMP}')
    for i in range(16): k(f'v_mov_b32 v{8+i}, s{76+2*i}' if i < n else f'v_mov_b32 v{8+i}, 0')
    k('v_mov_b32 v24, 0\n s_mov_b64 exec, 1')
    for q in range(4): k(f'buffer_store_dwordx4 {V(8+4*q,4)}, v24, {WSR}, s44 offen offset:{16*q}')

def wsrd(k, base, end):
    k(f's_mov_b32 s{base}, s24\n s_mov_b32 s{base+1}, s25\n s_mov_b32 s{base+2}, {end}\n s_mov_b32 s{base+3}, 0x20000')

def tbl_addr(k, vp, soff):
    k(f"""s_add_u32 s46, s42, {soff}
    s_addc_u32 s47, s43, 0
    v_mov_b32 v{vp+1}, s47
    v_add_co_u32 v{vp}, vcc, s46, v4
    v_addc_co_u32 v{vp+1}, vcc, 0, v{vp+1}, vcc""")

def gb_loads(k):
    for q in range(8): k(f'global_load_dwordx4 {A(GB+4*q,4)}, v[8:9], off offset:{1024*q-4096}')

GV = 144
def gb_gen(k, zpath, T=176):
    cvt = 'v_cvt_pk_f16_f32' if zpath else 'v_cvt_pk_bf16_f32'
    k(f"""v_cmp_gt_u32 vcc, 8, v3
    v_and_b32 v{T}, 7, v3
    v_lshlrev_b32 v{T}, 5, v{T}
    v_mov_b32 v{T+1}, 0x80008000
    v_cndmask_b32 v{T+2}, 0, v{T+1}, vcc
    v_cndmask_b32 v{T+3}, v{T+1}, 0, vcc
    v_lshl_add_u32 v{T+4}, v2, 3, 1
    v_cvt_f32_u32 v{T+4}, v{T+4}
    v_mul_f32 v{T+4}, {fbits(1/1024)}, v{T+4}
    v_add_f32 v{T+5}, {fbits(2/1024)}, v{T+4}
    v_add_f32 v{T+6}, {fbits(4/1024)}, v{T+4}
    v_add_f32 v{T+7}, {fbits(6/1024)}, v{T+4}
    s_lshl_b32 s46, {WAVE}, 2
    v_cndmask_b32 v{T+1}, -1.0, 1.0, vcc
    s_sub_u32 s47, 32, s46
    v_mov_b32 v{T+8}, s47
    v_mov_b32 v{T+9}, s46
    v_cndmask_b32 v{T+8}, v{T+8}, v{T+9}, vcc
    v_add_u32 v{T+8}, v{T+8}, v{T}
    v_cvt_f32_u32 v{T+8}, v{T+8}""")
    def one(q, kf, off=None, sc=None):
        A_, G = T + 10, GV + 8*q
        for r in range(4):
            k(f'v_mul_f32 v{A_+r}, v{kf}, v{T+4+r}' if off is None else f'v_fma_f32 v{A_+r}, v{kf}, v{T+4+r}, v{off}')
            k(f'v_fract_f32 v{A_+r}, v{A_+r}')
        for r in range(4): k(f'v_sin_f32 v{A_+4+r}, v{A_+r}\n v_cos_f32 v{A_+r}, v{A_+r}')
        if sc is not None:
            for r in range(8): k(f'v_mul_f32 v{A_+r}, v{A_+r}, v{sc}')
        for h in range(2):
            k(f'{cvt} v{G+h}, v{A_+2*h}, v{A_+2*h+1}\n {cvt} v{G+4+h}, -v{A_+4+2*h}, -v{A_+4+2*h+1}')
    for q in range(4):
        one(q, T+8)
        for h in range(2): k(f'v_xor_b32 v{GV+8*q+2+h}, v{GV+8*q+4+h}, v{T+2}\n v_xor_b32 v{GV+8*q+6+h}, v{GV+8*q+h}, v{T+3}')
        if q < 3: k(f'v_add_f32 v{T+8}, v{T+8}, v{T+1}')
    def slot0():
        k(f"""v_cmp_gt_u32 vcc, 8, v3
        v_add_u32 v{T+8}, 16, v{T}
        v_cmp_eq_u32 s[46:47], 0, v3
        v_cndmask_b32 v{T+8}, v{T+8}, v{T}, vcc
        v_mov_b32 v{T+9}, 0x100
        v_mov_b32 v{T+18}, {fbits(math.sqrt(0.5))}
        v_mov_b32 v{T+19}, {fbits(0.25 if zpath else 0.0)}
        v_cndmask_b32 v{T+8}, v{T+8}, v{T+9}, s[46:47]
        v_cndmask_b32 v{T+18}, 1.0, v{T+18}, s[46:47]
        v_cndmask_b32 v{T+19}, 0, v{T+19}, s[46:47]
        v_cvt_f32_u32 v{T+8}, v{T+8}""")
        one(0, T+8, T+19, T+18)
        for o in (0, 4):
            for h in range(2): k(f'v_cndmask_b32 v{GV+o+2+h}, v{GV+o+h}, 0, vcc\n v_cndmask_b32 v{GV+o+h}, 0, v{GV+o+h}, vcc')
        k.fence()
    only_wave(k, 0, slot0)
    if not zpath:
        for i in range(32): k(f'v_accvgpr_write_b32 a{GB+i}, v{GV+i}')

def prologue(k):
    k.raw(f'.globl {KN}\n.p2align 8\n.type {KN},@function\n{KN}:')
    stamp(k, 0)
    k(f"""s_load_dwordx16 s[4:19], s[0:1], 0
    s_load_dwordx4 s[20:23], s[0:1], 64
    s_getpc_b64 s[42:43]""")
    k.raw('L_pc:')
    k(f"""s_cmp_ge_u32 s2, 256
    s_cbranch_scc1 L_end
    v_lshrrev_b32 v5, 6, v0
    v_and_b32 v1, 63, v0
    v_readfirstlane_b32 {WAVE}, v5
    s_lshr_b32 s44, s2, 3
    v_lshl_add_u32 v5, v5, 5, s44
    v_lshlrev_b32 v6, {7 if OPT.get('pf128') else 6}, v1
    v_lshl_add_u32 v5, v5, {13 if OPT.get('pf128') else 12}, v6      ; one dword per line""")
    k.raw('    v_min_u32 v5, L_image_end-L_pc-4, v5'); k.pos += 1
    k(f"""v_mov_b32 v7, s43
    v_add_co_u32 v6, vcc, s42, v5
    v_addc_co_u32 v7, vcc, 0, v7, vcc
    global_load_dword v255, v[6:7], off
    v_bfe_u32 v2, v0, 4, 2
    v_and_b32 v3, 15, v0
    v_lshlrev_b32 v4, 4, v1""")
    k.raw('    s_add_u32 s42, s42, tables-L_pc\n    s_addc_u32 s43, s43, 0'); k.pos += 2
    k(f's_cmp_ge_u32 s2, {NC0}\n s_cbranch_scc1 L_p1c')
    global st_c
    st_c = k.state()
    tbl_addr(k, 6, TBL['FA'])
    for c in range(2): k(f'global_load_dwordx4 {A(FA+4*c,4)}, v[6:7], off offset:{1024*c}')

def go_load(k, b):
    k(f'v_mov_b32 v{b}, 0\n global_load_dword v{b+4}, v{b}, s[20:21]{LD}')
def arrive_issue(k, b, cnt, go):
    k(f'v_mov_b32 v{b}, 0\n v_mov_b32 v{b+1}, 1\n s_mov_b64 exec, 1')
    if go:
        uid[0] += 1; u = uid[0]
        k('s_mov_b32 s46, 0')
        k.label(f'L_go{u}')
        k(f"""s_waitcnt vmcnt(0)
        v_cmp_ne_u32 vcc, 0, v{b+4}
        s_add_u32 s46, s46, 1
        s_cbranch_vccnz L_gone{u}
        global_load_dword v{b+4}, v{b}, s[20:21]{LD}
        s_cmp_lt_u32 s46, {SPIN}
        s_cbranch_scc1 L_go{u}""")
        k.label(f'L_gone{u}')
    k(f'buffer_atomic_add v{b+1}, v{b}, {WSR}, {cnt} offen sc0 sc1')
def arrive_check(k, b, flg, last, val):
    uid[0] += 1; u = uid[0]
    k(f"""s_mov_b64 exec, 0xff
    v_lshlrev_b32 v{b+2}, 11, v1
    v_mov_b32 v{b}, {val}
    v_readfirstlane_b32 s47, v{b+1}
    s_cmp_lg_u32 s47, {last}
    s_cbranch_scc1 L_nl{u}""")
    st = k.state()
    k(f'buffer_store_dword v{b}, v{b+2}, {WSR}, {flg} offen{ST}')
    k.restore(st)
    k.label(f'L_nl{u}')
def poll(k, b, val):
    uid[0] += 1; u = uid[0]
    k(f"""s_mov_b64 exec, 0xff
    v_lshlrev_b32 v{b+3}, 8, v1
    s_and_b32 s44, s2, 7
    s_lshl_b32 s44, s44, 11
    s_add_u32 s44, s44, {FLG}
    s_mov_b32 s46, 0""")
    k.label(f'L_bp{u}')
    k(f"""buffer_load_dword v{b+1}, v{b+3}, {WSR}, s44 offen{LD}
    s_add_u32 s46, s46, 1
    s_waitcnt vmcnt(0)
    v_cmp_gt_u32 vcc, {val}, v{b+1}
    s_cmp_gt_u32 s46, {SPIN}
    s_cbranch_scc1 L_bd{u}
    s_cbranch_vccnz L_bp{u}""")
    k.label(f'L_bd{u}')
    k('s_mov_b64 exec, -1')
def only_wave(k, w, fn):
    uid[0] += 1; u = uid[0]
    k(f's_cmp_lg_u32 {WAVE}, {w}\n s_cbranch_scc1 L_ow{u}')
    st = k.state(); fn(); k('s_mov_b64 exec, -1'); k.restore(st); k.label(f'L_ow{u}')

def p2_tables(k, vp=26):
    k(f's_lshl_b32 s44, {WAVE}, 13\n s_add_u32 s44, s44, {TBL["P2W"]+4096}')
    tbl_addr(k, vp, 's44'); tbl_addr(k, vp+2, TBL['P2S']+4096)
    o = [f'global_load_dwordx4 {V(B1+6*u+2,4)}, {V(vp,2)}, off offset:{1024*u-4096}' for u in range(4)]
    o += [f'global_load_dwordx4 {V(A2+6*u+2,4)}, {V(vp+2,2)}, off offset:{1024*u-4096}' for u in range(4)]
    o += [f'global_load_dwordx4 {V(B3+6*u+2,4)}, {V(vp+2,2)}, off offset:{1024*u}' for u in range(4)]
    o += [f'global_load_dwordx4 {V(A4+6*u+2,4)}, {V(vp,2)}, off offset:{1024*u}' for u in range(4)]
    return o
def flush(k):
    sp, k.sprinkle = k.sprinkle, []
    for t in sp: k(t)

def gtouch(k, dst, blk=None):
    k(f"""s_bitcmp1_b32 s2, 0
    s_cselect_b32 s36, s14, s12
    s_cselect_b32 s37, s15, s13
    s_and_b32 s37, s37, 0xffff
    s_mov_b32 s38, {D*F*2}
    s_mov_b32 s39, 0x20000
    {blk or f's_bfe_u32 s44, s2, 0x40003' + chr(10) + ' s_lshl_b32 s44, s44, 2' + chr(10) + f' s_add_u32 s44, s44, {WAVE}'}
    s_mul_i32 s44, s44, {8*2752}
    s_bfe_u32 s46, s2, 0x20001
    s_mul_i32 s46, s46, 704
    s_add_u32 s44, s44, s46
    v_and_b32 v15, 7, v1
    v_lshlrev_b32 v15, 7, v15
    v_min_u32 v15, 700, v15
    v_lshrrev_b32 v16, 3, v1
    v_mul_u32_u24 v16, 2752, v16
    v_add_u32 v15, v15, v16
    s_mov_b32 exec_lo, 0x7f7f7f7f
    s_mov_b32 exec_hi, 0x7f7f7f7f
    buffer_load_dword v{dst}, v15, {RC}, s44 offen
    s_mov_b64 exec, -1""")

def p1_z(k):
    X, DA, TR, SS, WL, WO = 32, 48, 80, 96, 104, 120
    k(f"""s_and_b32 s44, s2, 7
    s_lshr_b32 s45, s2, 4
    s_lshl_b32 s45, s45, 3
    s_add_u32 s44, s44, s45
    s_lshl_b32 s44, s44, 1
    s_bfe_u32 s45, s2, 0x10003
    s_add_u32 s60, s44, s45            ; (t,g,beta,bq)
    s_lshr_b32 s61, s60, 3
    s_lshl_b32 s61, s61, 7
    s_and_b32 s44, s60, 7
    s_lshl_b32 s44, s44, 2
    s_add_u32 s44, s44, s61
    s_add_u32 s44, s44, {WAVE}
    s_lshl_b32 s56, s44, 10
    s_add_u32 s57, s56, 0x8000
    s_add_u32 s58, s56, 0x10000
    s_add_u32 s59, s56, 0x18000
    s_mov_b32 s38, {S*D*2}
    s_mov_b32 s39, 0x20000
    s_bfe_u32 s48, s2, 0x20003
    s_and_b32 s44, s2, 7
    s_lshl_b32 s44, s44, 2
    s_add_u32 s48, s48, s44
    s_and_b32 s44, s2, 0x60
    s_add_u32 s48, s48, s44
    s_add_u32 s48, s48, 128""")
    wt_rows(k, 's48', 49)
    k(f's_mul_i32 s44, {WAVE}, {64*514}\n s_add_u32 s49, s49, s44')
    if OPT.get('gp', 0) == 0: gb_gen(k, True)
    k.wait(lg=0)
    stamp(k, 1, 'z')
    k('s_mov_b32 s36, s4\n s_and_b32 s37, s5, 0xffff')
    for i in range(4): k(f'buffer_load_dwordx4 {V(X+4*i,4)}, v4, {RC}, s{56+i} offen{OPT.get("ntx", "")}')
    if OPT.get('gp', 0) == 1: gb_gen(k, True)
    k(WSRDS)
    if not OPT.get('nowpf'):
        k(f"""v_lshrrev_b32 v15, 1, v3
        v_mul_u32_u24 v15, 514, v15
        v_and_b32 v16, 1, v1
        v_mul_u32_u24 v16, 126, v16
        v_add_u32 v15, v15, v16
        s_mov_b32 s45, 0x5555
        s_and_b32 s44, s48, 3
        s_cmp_eq_u32 s44, 3
        s_cselect_b32 exec_lo, 0xffff, {'s45' if OPT.get('th') else '0xffff'}
        s_mov_b32 exec_hi, 0
        buffer_load_ushort v{WO}, v15, {RA}, s49 offen{OPT.get('ntw', '')}
        buffer_load_ushort v{WO+1}, v15, {RB}, s49 offen{OPT.get('ntw', '')}
        s_mov_b64 exec, -1""")
    if OPT.get('wreal'): k(f'buffer_load_dwordx4 {V(WL,4)}, v11, {RA}, s49 offen\n buffer_load_dwordx4 {V(WL+4,4)}, v11, {RB}, s49 offen')
    if OPT.get('gbz') == 0: gb_loads(k)
    if OPT.get('gp', 0) == 2: gb_gen(k, True)
    if OPT.get('t16') == 3:
        only_wave(k, OPT.get('tw', 3), lambda: gtouch(k, 130, 's_lshr_b32 s44, s2, 3\n s_add_u32 s44, s44, 48'))
    k('v_mov_b32 v15, v11')
    wl_ = [f'buffer_load_dwordx4 {V(WL,4)}, v15, {RA}, s49 offen', f'buffer_load_dwordx4 {V(WL+4,4)}, v15, {RB}, s49 offen']
    wt_dest(k, 's48', 50)
    k(f"""s_lshl_b32 s44, {WAVE}, 2
    s_add_u32 s44, s44, 0xa000
    v_add_u32 v12, s44, v12
    s_lshl_b32 s44, {WAVE}, 5
    v_xor_b32 v13, s44, v4
    s_lshl_b32 s44, {WAVE}, 11
    s_add_u32 s44, s44, 0xa000
    v_add_u32 v13, s44, v13
    v_xor_b32 v14, 16, v13
    s_lshl_b32 s44, {WAVE}, 11
    s_add_u32 s50, s50, s44
    s_add_u32 s51, s50, 1024""")
    srd(k, 24, 22, WS_USED)
    k(f"""s_lshl_b32 s44, {WAVE}, 12
    v_add_u32 v30, s44, v4
    v_lshrrev_b32 v31, 1, v4
    v_add_u32 v31, s44, v31
    v_mul_u32_u24 v6, {TPAD}, v3
    v_lshl_add_u32 v6, v2, 8, v6
    s_lshl_b32 s44, {WAVE}, 6
    s_add_u32 s44, s44, 16384
    v_add_u32 v6, s44, v6
    s_mul_i32 s44, {WAVE}, {4*TPAD}
    s_add_u32 s44, s44, 16384
    v_add_u32 v7, s44, v4
    v_cmp_eq_u32 vcc, 0, v3
    v_cndmask_b32 v8, 0, 1.0, vcc
    s_mov_b32 s62, 0x3f803f80
    v_lshlrev_b32 v9, 6, v3
    v_lshl_add_u32 v9, v2, 4, v9
    s_lshl_b32 s44, s60, 14
    s_lshl_b32 s63, s60, 7
    s_add_u32 s63, s63, {SM}
    s_lshl_b32 s47, {WAVE}, 12
    s_add_u32 s44, s44, s47
    s_add_u32 s64, s44, {ZT}
    s_lshl_b32 s44, {WAVE}, 4
    s_add_u32 s44, s44, 0x9000
    v_lshl_add_u32 v10, v2, 2, s44""")
    if OPT.get('gp', 0) == 3: gb_gen(k, True)
    tl = []
    if True:
        stamp(k, 2, 'z')
        for i in range(4):
            k(f'ds_write_b128 v30, {V(X+4*i,4)} offset:{1024*i}')
            if i == 0: stamp(k, 1)
            for r in range(2): k(f'ds_read_b64_tr_b16 {V(TR+4*i+2*r,2)}, v31 offset:{1024*i+512*r}')
            for j in range(4):
                k(f'v_dot2_f32_bf16 v{SS+i}, v{X+4*i+j}, s62, {"0" if j==0 else V(SS+i)}')
                k(f'v_dot2_f32_bf16 v{SS+4+i}, v{X+4*i+j}, v{X+4*i+j}, {"0" if j==0 else V(SS+4+i)}')
        stamp(k, 3, 'z')
        k.sprinkle = tl; k.every = OPT.get('zev', 40); k.since = 100
        stamp(k, 4, 'z')
        mf = [f'v_mfma_f32_16x16x32_bf16 {V(DA+8*i+4*c,4)}, {V(TR+4*i,4)}, {A(FA+4*c,4)}, 0' for i in range(4) for c in range(2)]
        k(mf.pop(0)); k(mf.pop(0))
        for b in (SS, SS+4):
            k(f'v_permlane32_swap_b32 v{b}, v{b+2}\n v_permlane32_swap_b32 v{b+1}, v{b+3}')
        for b in (SS, SS+4):
            k(f'v_add_f32 v{b}, v{b}, v{b+2}\n v_add_f32 v{b+1}, v{b+1}, v{b+3}')
        k(mf.pop(0))
        for b in (SS, SS+4): k(f'v_permlane16_swap_b32 v{b}, v{b+1}')
        for b in (SS, SS+4): k(f'v_add_f32 v{b}, v{b}, v{b+1}')
        for sh in (8, 4, 2, 1):
            k(mf.pop(0))
            for b in (SS, SS+4): k(f'v_add_f32_dpp v{b}, v{b}, v{b} row_ror:{sh} row_mask:0xf bank_mask:0xf')
        k(mf.pop(0))
        k(f"""v_mul_f32 v{SS}, {fbits(1/512)}, v{SS}
        v_mul_f32 v{SS+4}, {fbits(1/512)}, v{SS+4}
        v_fma_f32 v{SS+4}, -v{SS}, v{SS}, v{SS+4}
        v_max_f32 v{SS+4}, 0, v{SS+4}
        v_add_f32 v{SS+4}, {fbits(1e-5)}, v{SS+4}
        v_rsq_f32 v{SS+1}, v{SS+4}
        v_mul_f32 v{SS+2}, {fbits(-2.0)}, v{SS}
        v_mul_f32 v{SS+2}, v{SS+2}, v{SS+1}
        v_mul_f32 v{SS+3}, {fbits(1/16)}, v{SS+1}""")
        for i in range(4):
            k(f'v_readlane_b32 s{68+2*i}, v{SS+3}, {16*i}\n v_readlane_b32 s{69+2*i}, v{SS+2}, {16*i}')
        for i in range(4):
            d = DA + 8*i
            k(f'v_mul_f32 v{TR}, s{69+2*i}, v8')
            for h in range(2):
                k(f'v_pk_mul_f32 {V(d+4+2*h,2)}, {V(d+4+2*h,2)}, {Sg(68+2*i,2)} op_sel_hi:[1,0]')
            for h in range(2):
                k(f'v_pk_fma_f32 {V(d+2*h,2)}, {V(d+2*h,2)}, {Sg(68+2*i,2)}, {V(TR,2)} op_sel_hi:[1,0,0]')
            for h in (2, 3, 0, 1): k(f'v_cvt_pk_f16_f32 v{X+4*i+h}, v{d+2*h}, v{d+2*h+1}')
            k(f'ds_write_b128 v6, {V(X+4*i,4)} offset:{16*i}')
        k(f"""v_mul_f32 v{SS+4}, v{SS+4}, v{SS+1}
        ds_write2_b32 v10, v{SS+4}, v{SS} offset0:0 offset1:16""")
        if OPT.get('wlp', 0) == 0:
            for t in wl_: k(t)
        def wt_a():
            for i in range(8):
                k(f'v_perm_b32 v{WO+i}, v{WL+4+(i>>1)}, v{WL+(i>>1)}, s{53+(i&1)}')
                k(f'ds_write_b32 v12, v{WO+i} offset:{128*i}')
        if OPT.get('wtearly'): wt_a()
        k.wait(lg=0); k('s_barrier')
        if OPT.get('zst'): stamp(k, 1)
        stamp(k, 5, 'z')
        for q in range(4): k(f'ds_read_b128 {V(TR+4*q,4)}, v7 offset:{TPAD*q}')
        k(f'ds_read_b128 {V(SS,4)}, v4 offset:0x9000')
        if OPT.get('wlp', 0) == 1:
            for t in wl_: k(t)
        go_load(k, 250)
        wt_b = lambda: [k(f'ds_read_b128 {V(WL+4*n,4)}, v{13+n} offset:{1024*n}') for n in range(2)]
        wt_c = lambda: [k(f'buffer_store_dwordx4 {V(WL+4*n,4)}, v11, {WSR}, s{50+n} offen{ST}') for n in range(2)]
        if OPT.get('wtearly'): wt_b()
        for q in range(4):
            for o in range(2): k(f'v_mfma_f32_16x16x32_f16 {V(DA+8*q+4*o,4)}, {V(TR+4*q,4)}, {V(GV+8*q+4*o,4)}, 0')
        k.wait(lg=0)
        if OPT.get('wtearly'): wt_c()
        only_wave(k, 3, lambda: k(f's_mov_b64 exec, 0xff\n buffer_store_dwordx4 {V(SS,4)}, v4, {WSR}, s63 offen{ST}'))
        for q in range(4):
            for h in range(4): k(f'v_cvt_pk_f16_f32 v{X+4*q+h}, v{DA+8*q+2*h}, v{DA+8*q+2*h+1}')
            k(f'buffer_store_dwordx4 {V(X+4*q,4)}, v9, {WSR}, s64 offen offset:{1024*q}{ST}')
        stamp(k, 6, 'z')
        if not OPT.get('wtearly'):
            wt_a(); k.wait(lg=0); k('s_barrier'); wt_b(); wt_c()
        global ztl
        ztl = p2_tables(k)
        if OPT.get('ztpre'):
            for t in ztl: k(t)
        stamp(k, 2)

def p1_w(k):
    OP, DA = 32, 64
    TBASE = 32768
    k(f"""s_and_b32 s61, s2, 1               ; mu
    s_bfe_u32 s60, s2, 0x60001
    s_and_b32 s44, s60, 3
    s_lshl_b32 s44, s44, 1
    s_bfe_u32 s45, s60, 0x10002
    s_add_u32 s44, s44, s45
    s_andn2_b32 s45, s60, 7
    s_add_u32 s44, s44, s45
    s_cmp_lt_u32 s60, 40
    s_cselect_b32 s60, s44, s60        ; phi""" + ("""
    s_bfe_u32 s44, s2, 0x20001
    s_mul_i32 s44, s44, 11
    s_bfe_u32 s45, s2, 0x40003
    s_add_u32 s60, s44, s45""" if OPT.get('wcont') else '') + f"""
    s_mul_i32 s44, {WAVE}, {4*2752}
    s_lshl_b32 s45, s60, 6
    s_add_u32 s66, s44, s45
    v_lshrrev_b32 v10, 2, v1
    v_mul_u32_u24 v30, {16*2752}, v10
    v_and_b32 v11, 3, v1
    v_and_b32 v12, 1, v2
    v_lshlrev_b32 v12, 1, v12
    v_xor_b32 v13, v11, v12
    v_lshl_add_u32 v30, v13, 4, v30    ; DMA source
    s_lshl_b32 s67, {WAVE}, 13
    s_mov_b32 s38, {D*F*2}
    s_mov_b32 s39, 0x20000
    """)
    k(f"""s_bfe_u32 s64, s2, 0x40003
    s_lshl_b32 s64, s64, 2
    s_add_u32 s64, s64, {WAVE}
    s_mul_i32 s64, s64, {(8 if OPT.get('t16') else 12)*2752}
    s_bfe_u32 s46, s2, 0x20001
    s_mul_i32 s46, s46, 704
    s_add_u32 s64, s64, s46
    s_add_u32 s65, s64, {8*2752}
    v_and_b32 v14, 7, v1
    v_lshlrev_b32 v14, 7, v14
    v_min_u32 v14, 700, v14
    v_lshrrev_b32 v15, 3, v1
    v_mul_u32_u24 v15, 2752, v15
    v_add_u32 v14, v14, v15""")
    k.wait(lg=0)
    stamp(k, 1, 'z')
    k(f"""s_cmp_eq_u32 s61, 0
    s_cselect_b32 s36, s12, s14
    s_cselect_b32 s37, s13, s15
    s_and_b32 s37, s37, 0xffff""")
    if OPT.get('wdi', 3) == 2: wd_issue(k)
    if not OPT.get('nowt2'):
        k(f"""s_mov_b32 exec_lo, 0x7f7f7f7f
        s_mov_b32 exec_hi, 0x7f7f7f7f
        buffer_load_dword v5, v14, {RC}, s64 offen{OPT.get('ntg', '')}
        s_mov_b32 exec_hi, 0
        {'s_nop 0' if OPT.get('t16') else f'buffer_load_dword v248, v14, {RC}, s65 offen'}
        s_mov_b64 exec, -1""")
    if OPT.get('wdi', 3) == 3: wd_issue(k)
    k('v_mov_b32 v249, v30')
    def dmas():
        nonlocal pos
        pos = []
        for n in range(8):
            k(f's_add_u32 m0, s67, {1024*n}\n s_add_u32 s44, s66, {((n>>1) + 256*(n&1))*2752}')
            k(f'buffer_load_dwordx4 v249, {RC}, s44 offen{OPT.get("ntg", "")} lds'); pos.append(k.nvm)
    pos = None
    if OPT.get('dfirst'): dmas()
    srd(k, 24, 22, WS_USED)
    k(f"""v_lshlrev_b32 v31, 6, v10
    v_lshl_add_u32 v31, v12, 4, v31
    v_lshl_add_u32 v31, v11, 3, v31
    v_add_u32 v30, s67, v31
    v_xor_b32 v31, 32, v30
    v_mul_u32_u24 v6, {4*TPAD}, v2
    v_lshl_add_u32 v6, v3, 4, v6
    s_lshl_b32 s44, {WAVE}, 8
    s_add_u32 s44, s44, {TBASE}
    v_add_u32 v6, s44, v6              ; T write
    s_mul_i32 s44, {WAVE}, {4*TPAD}
    s_add_u32 s44, s44, {TBASE}
    v_add_u32 v7, s44, v4              ; T read
    s_lshl_b32 s44, s60, 2
    v_lshrrev_b32 v12, 3, v3
    v_and_b32 v13, 7, v3
    v_lshlrev_b32 v13, 4, v13
    v_lshl_add_u32 v13, v2, 8, v13
    s_lshl_b32 s45, {WAVE}, 12
    s_add_u32 s68, s45, {WP}
    v_mov_b32 v19, s61""")
    for pp in range(2):
        k(f"""v_add_u32 v14, s44, v12            ; octet
        v_mul_u32_u24 v15, 373, v14
        v_lshrrev_b32 v15, 12, v15
        v_add_u32 v14, v14, v15            ; q
        v_mul_u32_u24 v15, 171, v14
        v_lshrrev_b32 v15, 9, v15
        v_mul_u32_u24 v15, 3, v15          ; q - q%3
        v_sub_u32 v16, v14, v15            ; n
        v_cmp_eq_u32 vcc, 2, v16
        v_add_u32 v15, s61, v15
        s_add_u32 s44, s44, 2
        v_cndmask_b32 v15, v15, v14, vcc   ; tile
        v_cndmask_b32 v16, v16, v19, vcc
        v_mul_u32_u24 v15, {WPS}, v15
        v_add_u32 v{8+pp}, v15, v13
        v_lshl_add_u32 v{8+pp}, v16, 7, v{8+pp}""")
    tl = p2_tables(k)
    setup(k); setup_late(k, 'addr')
    if OPT.get('wgen', 0) == 0: gb_gen(k, False)
    if not OPT.get('dfirst'): dmas()
    if OPT.get('wgen', 0) == 1: gb_gen(k, False)
    stamp(k, 2, 'z')
    for dl in range(4):
        k(f's_waitcnt vmcnt({k.nvm - pos[2*dl+1]})')
        if dl == 0: stamp(k, 1)
        for pi in range(2):
            for h in range(2): k(f'ds_read_b64_tr_b16 {V(OP+8*dl+4*pi+2*h,2)}, v{30+pi} offset:{2048*dl+1024*h}')
    stamp(k, 3, 'z')
    k.sprinkle = tl; k.every = OPT.get('tev', 28); k.since = 100
    for dl in range(4):
        for pi in range(2):
            for c in range(2):
                k(f'v_mfma_f32_16x16x32_bf16 {V(DA+32*pi+16*c+4*dl,4)}, {A(FA+4*c,4)}, {V(OP+8*dl+4*pi,4)}, 0')
    for pi in range(2):
        for r in range(4):
            u = OP + 16*pi + 4*r
            for c in range(2):
                for h in range(2):
                    d = DA + 32*pi + 16*c + 8*h + r
                    k(f'v_cvt_pk_bf16_f32 v{u+2*c+h}, v{d}, v{d+4}')
            k(f'ds_write_b128 v6, {V(u,4)} offset:{16*TPAD*pi+TPAD*r}')
    flush(k)
    stamp(k, 4, 'z')
    k.wait(lg=0); k('s_barrier')
    stamp(k, 5, 'z')
    for pi in range(2):
        for q in range(4): k(f'ds_read_b128 {V(OP+16*pi+4*q,4)}, v7 offset:{16*TPAD*pi+TPAD*q}')
    go_load(k, 250)
    for pi in range(2):
        for q in range(4):
            for o in range(2):
                k(f'v_mfma_f32_16x16x32_bf16 {V(DA+32*pi+8*q+4*o,4)}, {A(GB+8*q+4*o,4)}, {V(OP+16*pi+4*q,4)}, 0')
    for pi in range(2):
        for p in range(2):
            for o in range(2):
                u = OP + 16*pi + 8*p + 4*o
                for hq in range(2):
                    for h in range(2):
                        d = DA + 32*pi + 8*(2*p+hq) + 4*o + 2*h
                        k(f'v_cvt_pk_bf16_f32 v{u+2*hq+h}, v{d}, v{d+1}')
                k(f'buffer_store_dwordx4 {V(u,4)}, v{8+pi}, {WSR}, s68 offen offset:{(2*p+o)*1024}{ST}')
    stamp(k, 2); stamp(k, 6, 'z')

def wt_rows(k, task, dst):
    k(f"""s_bfe_u32 s44, {task}, 0x30002
    s_lshl_b32 s44, s44, 3
    s_lshr_b32 s45, {task}, 5
    s_lshl_b32 s45, s45, 8
    s_add_u32 s44, s44, s45
    s_mul_i32 s{dst}, s44, 514
    s_and_b32 s45, {task}, 3
    s_lshl_b32 s45, s45, 7
    s_add_u32 s{dst}, s{dst}, s45
    s_add_u32 s{dst}, s{dst}, 2
    v_lshrrev_b32 v12, 3, v1
    v_and_b32 v13, 7, v1
    v_mul_u32_u24 v11, 514, v12
    v_lshl_add_u32 v11, v13, 4, v11
    s_mov_b32 s30, {2048*257*2}
    s_mov_b32 s31, 0x20000
    s_mov_b32 s34, {2048*257*2}
    s_mov_b32 s35, 0x20000""")
def wt_dest(k, task, dst):
    k(f"""s_lshl_b32 s{dst}, {task}, 13
    s_add_u32 s{dst}, s{dst}, {WT}
    s_mov_b32 s53, 0x05040100
    s_mov_b32 s54, 0x07060302
    v_mov_b32 v11, v4
    v_xor_b32 v12, v12, v13
    v_lshlrev_b32 v12, 4, v12
    v_lshl_add_u32 v12, v13, 10, v12""")
WSRDS = 's_mov_b32 s28, s6\n s_and_b32 s29, s7, 0xffff\n s_mov_b32 s32, s8\n s_and_b32 s33, s9, 0xffff'
def p1_t(k):
    WL, WO = 32, 64
    k(f's_sub_u32 s48, s2, {NC0}\n s_lshl_b32 s48, s48, 2\n s_add_u32 s48, s48, {WAVE}')
    wt_rows(k, 's48', 49)
    for r in range(1, 4): k(f's_add_u32 s{49+r}, s49, {64*r*514}')
    k.wait(lg=0)
    if OPT.get('t16') == 1: gtouch(k, 30)
    k(WSRDS)
    for r in range(4):
        k(f'buffer_load_dwordx4 {V(WL+8*r,4)}, v11, {RA}, s{49+r} offen{OPT.get("ntw", "")}')
        k(f'buffer_load_dwordx4 {V(WL+8*r+4,4)}, v11, {RB}, s{49+r} offen{OPT.get("ntw", "")}')
    if OPT.get('t16') == 2: gtouch(k, 30)
    srd(k, 24, 22, WS_USED)
    wt_dest(k, 's48', 56)
    k(f's_lshl_b32 s44, {WAVE}, 13\n v_add_u32 v12, s44, v12\n v_add_u32 v14, s44, v4')
    for n in range(1, 8): k(f's_add_u32 s{56+n}, s56, {1024*n}\n v_xor_b32 v{14+n}, {16*n}, v14')
    tl = p2_tables(k)
    for i in range(8):
        o = WO + 4*i
        for r in range(4): k(f'v_perm_b32 v{o+r}, v{WL+8*r+4+(i>>1)}, v{WL+8*r+(i>>1)}, s{53+(i&1)}')
        k(f'ds_write_b128 v12, {V(o,4)} offset:{128*i}')
        if OPT.get('ttpre'):
            for t in tl[2*i:2*i+2]: k(t)
    stamp(k, 1)
    if OPT.get('twe'): twiddles(k)
    for n in range(8): k(f'ds_read_b128 {V(WL+4*n,4)}, v{14+n} offset:{1024*n}')
    go_load(k, 250)
    for n in range(8): k(f'buffer_store_dwordx4 {V(WL+4*n,4)}, v11, {WSR}, s{56+n} offen{ST}')
    stamp(k, 2)

def p1_i(k):
    k.wait(lg=0)
    srd(k, 24, 22, WS_USED)
    k(f"""s_lshl_b32 s44, s2, 2
    s_add_u32 s44, s44, {WAVE}
    s_cmp_lg_u32 s44, {255*4}
    s_cbranch_scc1 L_noinit
    v_lshlrev_b32 v30, 8, v1
    v_lshlrev_b32 v31, 8, v3
    v_mov_b32 v32, 0
    s_mov_b32 s44, {FLG}
    s_mov_b32 s45, {FLG+16384}
    buffer_store_dword v32, v30, {WSR}, s44 offen{ST}
    v_lshlrev_b32 v33, 7, v1
    buffer_store_dword v32, v33, {WSR}, s45 offen{ST}
    s_add_u32 s45, s45, 8192
    buffer_store_dword v32, v33, {WSR}, s45 offen{ST}
    buffer_store_dword v32, v31, {WSR}, 0 offen{ST}
    v_mov_b32 v33, 1
    s_waitcnt vmcnt(0)
    s_mov_b64 exec, 1
    global_store_dword v32, v33, s[20:21]{ST}
    s_mov_b64 exec, -1""")
    k.label('L_noinit')
    if OPT.get('t16') == 3: gtouch(k, 29, f's_add_u32 s44, {WAVE}, 44')
    elif OPT.get('t16'): gtouch(k, 29)
    k(f"""s_sub_u32 s60, s2, {NI0}
    s_lshl_b32 s61, s60, 1
    s_lshr_b32 s44, {WAVE}, 1
    s_add_u32 s61, s61, s44            ; t
    s_and_b32 s62, {WAVE}, 1
    s_lshl_b32 s62, s62, 2             ; p
    s_add_u32 s63, s62, 4
    s_lshl_b32 s44, s61, 5
    s_add_u32 s44, s44, 1
    v_lshl_add_u32 v30, v3, 1, s44     ; 2d+1
    v_and_b32 v31, 1, v2
    v_lshlrev_b32 v31, 7, v31
    v_cmp_lt_u32 s[64:65], 1, v2
    v_mov_b32 v36, {fbits(1/16)}
    s_mul_i32 s61, s61, {12*WPS}
    s_add_u32 s61, s61, {WP+11*WPS}""")
    for t in p2_tables(k): k(t)
    if OPT.get('twe'): twiddles(k)
    stamp(k, 1)
    k.fence(); k.label('L_inv')
    k(f"""s_lshl_b32 s44, s62, 1
    s_sub_u32 s45, 32, s44
    s_cmp_eq_u32 s44, 0
    s_cselect_b32 s45, 16, s45
    v_mov_b32 v33, s44
    v_mov_b32 v34, s45
    v_cndmask_b32 v33, v33, v34, s[64:65]
    v_add_u32 v33, v33, v31
    s_add_u32 s44, s44, 1
    s_sub_u32 s45, 32, s44
    v_mov_b32 v34, s44
    v_mov_b32 v35, s45
    v_cndmask_b32 v34, v34, v35, s[64:65]
    v_add_u32 v34, v34, v31
    v_cmp_eq_u32 vcc, 0, v33
    v_mov_b32 v35, 0x100
    v_mov_b32 v37, {fbits(1/math.sqrt(512))}
    v_cndmask_b32 v35, v33, v35, vcc
    v_cndmask_b32 v37, v36, v37, vcc
    s_lshl_b32 s45, s62, 11
    s_add_u32 s66, s61, s45""")
    for e in range(8):
        src = 'v35' if e == 0 else None
        if e: k(f'v_add_u32 v{40+e}, {32*(e&3)}, v{33+(e>>2)}')
        k(f'v_mul_u32_u24 v{40+e}, {src or V(40+e)}, v30')
        k(f'v_and_b32 v{40+e}, 0x3ff, v{40+e}')
        k(f'v_cvt_f32_u32 v{40+e}, v{40+e}')
        k(f'v_mul_f32 v{40+e}, {fbits(1/1024)}, v{40+e}')
    for e in range(8):
        k(f'v_cos_f32 v{48+e}, v{40+e}\n v_sin_f32 v{56+e}, v{40+e}')
    for e in range(8):
        sc = 'v37' if e == 0 else 'v36'
        k(f'v_mul_f32 v{48+e}, {sc}, v{48+e}\n v_mul_f32 v{56+e}, {sc}, -v{56+e}')
    for part in range(2):
        for h in range(4): k(f'v_cvt_pk_bf16_f32 v{64+4*part+h}, v{48+8*part+2*h}, v{48+8*part+2*h+1}')
        k(f'buffer_store_dwordx4 {V(64+4*part,4)}, v4, {WSR}, s66 offen offset:{1024*part}{ST}')
    k('s_add_u32 s62, s62, 1\n s_cmp_lt_u32 s62, s63\n s_cbranch_scc1 L_inv')
    go_load(k, 250)
    stamp(k, 2)

WDL, WDO = 128, 64
def wd_issue(k):
    srd(k, 28, 16, F*D*2)
    k(f"""s_sub_u32 s44, s2, {NZ}
    s_lshl_b32 s44, s44, 14
    s_lshr_b32 s45, {WAVE}, 1
    s_lshl_b32 s45, s45, 13
    s_add_u32 s44, s44, s45
    s_and_b32 s45, {WAVE}, 1
    s_lshl_b32 s45, s45, 9
    s_add_u32 s69, s44, s45
    s_add_u32 s70, s69, 4096
    v_lshlrev_b32 v13, 3, v1""")
    for e in range(8): k(f'buffer_load_dwordx2 {V(WDL+2*e,2)}, v13, {RA}, s{69+(e>>2)} offen offset:{1024*(e&3)}{OPT.get("ntd", "")}')
def wd_pack(k):
    k('s_mov_b32 s64, 0x05040100\n s_mov_b32 s65, 0x07060302')
    for pi in range(4):
        for h in range(4): k(f'v_perm_b32 v{WDO+4*pi+h}, v{WDL+4*h+2+(pi>>1)}, v{WDL+4*h+(pi>>1)}, s{64+(pi&1)}')
def wd_finish(k):
    k(f's_sub_u32 s73, s2, {NZ}')
    k(f"""s_lshr_b32 s44, s73, 2
    s_lshl_b32 s44, s44, 11
    s_and_b32 s45, s73, 3
    s_mul_i32 s45, s45, {WDS}
    s_add_u32 s44, s44, s45
    s_and_b32 s45, {WAVE}, 1
    s_mul_i32 s45, s45, {16*WDS}
    s_add_u32 s44, s44, s45
    s_lshr_b32 s45, {WAVE}, 1
    s_lshl_b32 s45, s45, 9
    s_add_u32 s44, s44, s45
    s_add_u32 s44, s44, {WD}
    v_mul_u32_u24 v30, {4*WDS}, v2
    v_bfe_u32 v31, v1, 3, 1
    v_lshl_add_u32 v30, v31, 10, v30
    v_and_b32 v31, 7, v1
    v_lshl_add_u32 v30, v31, 4, v30""")
    for pi in range(4): k(f'buffer_store_dwordx4 {V(WDO+4*pi,4)}, v30, {WSR}, s44 offen offset:{128*pi}{ST}')

STATL = 131072
def p4_ids(k):
    k(f"""s_and_b32 s44, s2, 7
    s_lshl_b32 s44, s44, 2
    s_bfe_u32 s46, s2, 0x20003
    s_add_u32 s44, s44, s46
    s_lshr_b32 s45, s2, 5""")

def setup(k):
    if OPT.get('x216'):
        k(f"""s_and_b32 s44, s2, 7
        s_lshl_b32 s44, s44, 1
        s_bfe_u32 s45, s2, 0x10003
        s_add_u32 s48, s44, s45
        s_lshr_b32 s49, s2, 4
        s_lshl_b32 s45, s45, 2
        s_mov_b32 s46, s49""")
    elif OPT.get('x48'):
        k(f"""s_and_b32 s44, s2, 3
        s_lshl_b32 s44, s44, 2
        s_bfe_u32 s45, s2, 0x20003
        s_add_u32 s48, s44, s45
        s_and_b32 s44, s2, 4
        s_lshl_b32 s44, s44, 1
        s_lshr_b32 s46, s2, 5
        s_add_u32 s49, s44, s46
        s_lshl_b32 s45, s45, 1""")
    else:
        k(f"""s_and_b32 s44, s2, 1
        s_lshl_b32 s44, s44, 3
        s_bfe_u32 s45, s2, 0x30003
        s_add_u32 s48, s44, s45
        s_bfe_u32 s44, s2, 0x20001
        s_lshl_b32 s44, s44, 2
        s_lshr_b32 s46, s2, 6
        s_add_u32 s49, s44, s46
        s_lshl_b32 s46, s46, 1""")
    k(f"""s_mov_b32 s53, 0
    s_lshl_b32 s46, s48, 11
    s_lshl_b32 s47, s49, 7
    s_add_u32 s41, s46, s47
    s_add_u32 s41, s41, {RBF}
    v_mov_b32 v250, 0""")
    stamp(k, 7, 'z')
    k(f"""s_and_b32 s74, s2, 7
    s_lshl_b32 s74, s74, 8
    s_add_u32 s75, s74, {FLG}
    s_and_b32 s44, s2, 1
    s_mul_i32 s44, s44, 44
    s_bfe_u32 s45, s2, 0x20001
    s_mul_i32 s45, s45, 11
    s_add_u32 s44, s44, s45
    s_bfe_u32 s45, s2, 0x40003
    s_add_u32 s44, s44, s45
    s_sub_u32 s45, s2, {NI0-88}
    s_cmp_ge_u32 s2, {NI0}
    s_cselect_b32 s44, s45, s44
    s_cselect_b32 s46, 0, s2
    s_lshl_b32 s44, s44, 7
    s_add_u32 s71, s44, {FLG+16384}
    s_cmp_lt_u32 s2, {NZ}
    s_cselect_b32 s71, 0, s71
    s_cmp_ge_u32 s46, {NC0}
    s_cselect_b32 s71, 0, s71
    v_mov_b32 v251, 1
    s_mov_b32 s63, 0x80008000""")

def twiddles(k):
    k(f"""s_lshl_b32 s44, {WAVE}, 4
    v_add_u32 v240, s44, v3
    v_cvt_f32_u32 v240, v240
    v_mul_f32 v240, {fbits(1/2048)}, v240
    v_lshlrev_b32 v241, 2, v2
    v_add_u32 v242, s44, v241
    v_cvt_f32_u32 v241, v241
    v_cvt_f32_u32 v242, v242
    v_cvt_f32_u32 v243, v3
    v_mul_f32 v243, {fbits(1/2048)}, v243""")
    for be in range(2):
        for r in range(4):
            t = TW1 + 8*be + r
            k(f'v_add_f32 v{t}, {fbits(16*be+r)}, v241\n v_mul_f32 v{t}, v{t}, v240')
            k(f'v_sin_f32 v{t+4}, v{t}\n v_cos_f32 v{t}, v{t}')
    for be in range(2):
        if be: k(f'v_add_f32 v243, {fbits(16/2048)}, v243')
        for r in range(4):
            t = TW2 + 8*be + r
            k(f'v_add_f32 v{t}, {fbits(r)}, v242\n v_mul_f32 v{t}, v{t}, v243')
            k(f'v_sin_f32 v{t+4}, v{t}\n v_cos_f32 v{t}, v{t}')

def setup_late(k, part=None):
    k(f"""s_mul_i32 s44, s49, 11
    s_add_u32 s45, s44, 10
    s_lshr_b32 s44, s44, 2
    s_lshr_b32 s45, s45, 2
    v_and_b32 v23, 3, v1
    v_add_u32 v23, s44, v23
    v_min_u32 v23, s45, v23
    v_bfe_u32 v240, v1, 2, 1
    v_mul_u32_u24 v240, 44, v240
    v_add_u32 v23, v23, v240
    s_lshr_b32 s44, s49, 1
    s_add_u32 s44, s44, 88
    v_mov_b32 v240, s44
    v_cmp_gt_u32 vcc, 8, v1
    v_cndmask_b32 v23, v240, v23, vcc
    v_lshlrev_b32 v23, 7, v23
    v_add_u32 v23, {FLG+16384}, v23""")
    if part != 'addr':
        if OPT.get('twe'):
            uid[0] += 1; u = uid[0]
            k(f's_cmp_ge_u32 s2, {NC0}\n s_cbranch_scc1 L_tw{u}')
            twiddles(k); k.fence(); k.label(f'L_tw{u}')
        else: twiddles(k)
    for u in range(4):
        k(f's_add_u32 s45, {WAVE}, {u}\n s_and_b32 s45, s45, 3\n s_lshl_b32 s45, s45, 11\n v_add_u32 v{16+u}, s45, v4')
    k(f"""s_and_b32 s58, s2, 0xf6
    s_bfe_u32 s45, s2, 0x10003
    s_add_u32 s58, s58, s45
    s_and_b32 s45, s2, 1
    s_lshl_b32 s45, s45, 3
    s_add_u32 s58, s58, s45
    s_lshl_b32 s44, s58, 6
    s_lshl_b32 s45, {WAVE}, 19
    s_add_u32 s44, s44, s45
    s_add_u32 s55, s44, {ZT}
    s_add_u32 s56, s55, 0x10000
    s_lshr_b32 s44, s58, 4
    s_sub_u32 s45, 32, s44
    s_cmp_eq_u32 s44, 0
    s_cselect_b32 s45, 16, s45
    s_bitcmp1_b32 s58, 3
    s_cselect_b32 s44, s45, s44
    s_and_b32 s45, s58, 7
    s_lshl_b32 s45, s45, 5
    s_add_u32 s44, s44, s45
    s_sub_u32 s44, s44, 1
    s_and_b32 s44, s44, 255
    s_lshl_b32 s44, s44, 7
    s_lshl_b32 s45, {WAVE}, 16
    s_add_u32 s44, s44, s45
    s_add_u32 s59, s44, {WT}
    s_add_u32 s60, s59, 0x100000
    v_and_b32 v15, 7, v1
    v_lshlrev_b32 v15, 4, v15
    v_bfe_u32 v14, v1, 3, 1
    v_lshl_add_u32 v15, v14, 15, v15
    v_lshl_add_u32 v15, v2, 18, v15
    s_lshl_b32 s45, {WAVE}, 12
    s_add_u32 s61, s45, {SM}
    v_lshrrev_b32 v21, 2, v3
    v_lshlrev_b32 v21, 7, v21
    v_lshl_add_u32 v21, v2, 10, v21
    v_and_b32 v22, 3, v1
    v_lshlrev_b32 v14, 4, v22
    v_lshl_add_u32 v14, v21, 7, v14
    v_lshl_add_u32 v22, v22, 4, v21
    s_mov_b32 s63, 0x80008000""")

def setup2(k):
    k(f"""v_lshrrev_b32 v20, 2, v1
    v_lshlrev_b32 v20, 15, v20
    v_and_b32 v24, 3, v1
    v_lshl_add_u32 v20, v24, 4, v20
    s_lshr_b32 s44, s58, 5
    s_lshl_b32 s44, s44, 6
    s_and_b32 s45, s58, 31
    s_add_u32 s44, s44, s45
    s_lshl_b32 s44, s44, 6
    s_lshl_b32 s45, {WAVE}, 19
    s_add_u32 s44, s44, s45
    s_add_u32 s62, s44, {HT}
    s_mul_i32 s44, s49, 11
    s_mul_i32 s45, {WAVE}, 3
    s_add_u32 s50, s44, s45
    s_add_u32 s44, s50, s49
    s_mul_i32 s44, s44, {WPS}
    s_add_u32 s44, s44, {WP}
    v_add_u32 v248, s44, v4
    v_add_u32 v249, {WPS}, v248
    v_add_u32 v255, {2*WPS}, v248
    s_and_b32 s46, {WAVE}, 1
    s_lshr_b32 s47, {WAVE}, 1
    s_lshl_b32 s45, s46, 15
    s_lshl_b32 s54, s47, 12
    s_add_u32 m0, s54, s45
    s_lshl_b32 s44, s48, 17
    s_add_u32 s44, s44, {HT}
    v_and_b32 v6, 1, v2
    v_lshlrev_b32 v6, 5, v6
    v_xor_b32 v5, v6, v4
    v_add_u32 v5, s44, v5
    v_lshrrev_b32 v7, 2, v1
    v_lshl_add_u32 v6, v7, 6, v6
    v_lshl_add_u32 v6, v24, 3, v6
    s_lshl_b32 s44, s47, 5
    s_add_u32 s44, s44, s45
    v_xor_b32 v6, s44, v6
    v_xor_b32 v7, 32, v6
    v_lshrrev_b32 v9, 2, v3
    v_cmp_eq_u32 vcc, v9, v2
    s_lshl_b32 s47, s47, 8
    s_lshl_b32 s44, s46, 9
    s_add_u32 s44, s44, s47
    s_add_u32 s44, s44, {STATL}
    v_lshl_add_u32 v10, v3, 4, s44     ; statistics reads
    v_xor_b32 v8, 0x100, v10
    v_add_u32 v9, {STATL+2048}, v4
    v_cndmask_b32 v9, v9, v10, vcc     ; statistics write (other lanes go to a dummy area)
    v_lshrrev_b32 v24, 1, v2
    v_lshlrev_b32 v11, 8, v24
    v_xor_b32 v11, v11, v10            ; statistics for the mixed tile
    s_mov_b32 s64, 0x22222222
    s_mov_b32 s65, s64
    s_mov_b32 s66, 0x44444444
    s_mov_b32 s67, s66
    s_mov_b32 s68, 0x88888888
    s_mov_b32 s69, s68
    v_add_u32 v25, s50, v24
    v_lshrrev_b32 v12, 1, v25
    v_mul_u32_u24 v12, {HFS}, v12
    v_and_b32 v25, 1, v25
    v_lshl_add_u32 v12, v25, 9, v12
    v_and_b32 v25, 0x1f0, v4
    v_xor_b32 v25, s47, v25
    v_add_u32 v12, v25, v12
    s_add_u32 s44, s50, 2
    s_lshr_b32 s45, s44, 1
    s_mul_i32 s45, s45, {HFS}
    s_and_b32 s44, s44, 1
    s_lshl_b32 s44, s44, 9
    s_add_u32 s44, s44, s45
    v_lshlrev_b32 v13, 8, v24
    v_xor_b32 v13, s47, v13
    v_add_u32 v13, s44, v13
    v_lshl_add_u32 v13, v3, 4, v13
    v_and_b32 v25, 1, v2
    v_xor_b32 v25, 1, v25
    v_lshlrev_b32 v25, 10, v25
    s_lshl_b32 s44, s46, 1
    s_sub_u32 s44, 1, s44
    v_mul_i32_i24 v25, s44, v25
    v_sub_u32 v13, v13, v25""")
    wsrd(k, 32, HF+86*HFS)
    if OPT.get('wtouch'):
        k(f"""s_and_b32 s44, s48, 7
        s_lshl_b32 s44, s44, 11
        v_sub_u32 v14, v248, v4
        v_lshl_add_u32 v14, v2, 14, v14
        v_lshl_add_u32 v14, v3, 7, v14
        v_add_u32 v14, s44, v14
        v_cmp_gt_u32 vcc, 3, v2
        v_cndmask_b32 v14, -1, v14, vcc""")

def p2_negs(k, base):
    for u in range(4):
        for h in range(2): k(f'v_xor_b32 v{base+6*u+h}, s63, v{base+6*u+4+h}')

def wd_reg(u, i): return A(192+8*u+4*i, 4) if u < 8 else V(144+8*(u-8)+4*i, 4)
def wd_loads(u):
    o = [f'buffer_load_dwordx4 {wd_reg(u+s,i)}, v15, {WSR}, s51 offen offset:{2048*s+1024*i}{LD}' for s in range(2) for i in range(2)]
    return o + ['s_add_u32 s51, s51, 4096']
def wloads(R=RA):
    return [f'buffer_load_dwordx4 {A(12*ka+4*t,4)}, v{(248, 249, 255)[t]}, {R}, {("0", "s70", "s71", "s72")[ka>>2]} offen offset:{1024*(ka&3)}{LD}' for ka in range(16) for t in range(3)]

def p2(k):
    Z, WW, SG, DD, TT, PK = 32, 64, 80, 88, 104, 240
    for u in range(1 if not OPT.get('zall') else 4):
        for be in range(2): k(f'buffer_load_dwordx4 {V(Z+8*u+4*be,4)}, v14, {WSR}, s{55+be} offen{LD}')
    lds_ = f"""buffer_load_dwordx4 {V(WW+4,4)}, v15, {WSR}, s59 offen{LD}
    buffer_load_dwordx4 {V(WW+12,4)}, v15, {WSR}, s60 offen{LD}
    buffer_load_dwordx4 {V(SG,4)}, v22, {WSR}, s61 offen{LD}
    buffer_load_dwordx4 {V(SG+4,4)}, v22, {WSR}, s61 offen offset:512{LD}""".split('\n')
    lds_.insert(OPT.get('fpos', 2), f'buffer_load_dword v26, v23, {WSR}, 0 offen{LD}')
    if OPT.get('wnow'):
        for t in lds_: k(t)
    else:
        k.sprinkle = [t.strip() for t in lds_]; k.every = 60; k.since = 0
    setup2(k); flush(k)
    k(f"""s_mov_b32 s28, s24
    s_mov_b32 s29, s25
    s_mov_b32 s31, 0x20000
    s_mov_b32 s36, s24
    s_mov_b32 s37, s25
    s_mov_b32 s39, 0x20000
    s_mov_b32 s70, 4096
    s_mov_b32 s71, 8192
    s_mov_b32 s72, 12288""")
    def check1():
        k(f'v_cmp_ne_u32 vcc, 1, v26\n s_cmp_eq_u64 vcc, 0\n s_cselect_b32 s30, {WS_USED}, 0')
        k(f'buffer_load_dword v27, v23, {WSR}, 0 offen{LD}')
        if OPT.get('wtouch'): k(f'buffer_load_dword v25, v14, {RA}, 0 offen{LD}')
        k.sprinkle = wloads(); k.every = OPT.get('every', 64); k.since = 100; k.lazy = OPT.get('lazy', 1)
    def unpack():
        for t in range(2):
            for r in range(4):
                k(f'v_lshlrev_b32 v{WW+8*t+r}, 16, v{WW+8*t+4+r}\n v_and_b32 v{WW+8*t+4+r}, 0xffff0000, v{WW+8*t+4+r}')
    if not OPT.get('zall'):
        for be in range(2): k(f'ds_write_b128 v16, {V(Z+4*be,4)} offset:{8192+1024*be}')
    for u in range(4):
        for be in range(2):
            for o in range(2):
                d = V(DD+8*be+4*o, 4)
                k(f'v_mfma_f32_16x16x32_f16 {d}, {V(Z+8*u+4*be,4)}, {V(B1+6*u+2-2*o,4)}, {"0" if u==0 else d}')
        if u == 0:
            stamp(k, 5); stamp(k, 2, 'b')
            if not OPT.get('zall'):
                k.wait(lg=0); k('s_barrier')
                for v in range(1, 4):
                    for be in range(2): k(f'ds_read_b128 {V(Z+8*v+4*be,4)}, v{16+v} offset:{8192+1024*be}')
                if OPT.get('c1') == 0: check1()
    if OPT.get('c1') == 1: check1()
    E = Z + 8
    for be in range(2):
        cmul(k, DD+8*be, DD+8*be+4, TW1+8*be, TW1+8*be+4, TT, TT+4, True)
        for h in range(4): k(f'v_cvt_pk_f16_f32 v{PK+4*be+h}, v{TT+2*h}, v{TT+2*h+1}')
        for t in range(2):
            for o in range(2):
                d = V(E+8*t+4*o, 4)
                k(f'v_mfma_f32_16x16x32_f16 {d}, {V(A2+6*(2*t+be)+2-2*o,4)}, {V(PK+4*be,4)}, {"0" if be==0 else d}')
    def check2():
        global n1
        n1 = 48 - len(k.sprinkle); k.sprinkle = []
        k(f'v_cmp_ne_u32 vcc, 1, v27\n s_cmp_eq_u64 vcc, 0\n s_cselect_b32 s38, {WS_USED}, 0')
        if OPT.get('wtouch') == 2: k(f's_sub_u32 s44, {WS_USED}, s30\n s_cselect_b32 s44, 0, 0\n s_cmp_eq_u32 s30, 0\n s_cselect_b32 s44, 0, {WS_USED}\n buffer_load_dword v25, v14, {RC}, s44 offen{LD}')
        k.sprinkle = wloads(RC)[n1:]
    if OPT.get('c1') == 2: check1()
    unpack()
    stamp(k, 3, 'b')
    if OPT.get('c2', 0) == 0: check2()
    for t in range(2):
        cmul(k, E+8*t, E+8*t+4, WW+8*t, WW+8*t+4, TT, TT+4, False)
        for h in range(4): k(f'v_cvt_pk_bf16_f32 v{PK+4*t+h}, v{TT+2*h}, v{TT+2*h+1}')
        for be in range(2):
            for o in range(2):
                d = V(DD+8*be+4*o, 4)
                k(f'v_mfma_f32_16x16x32_bf16 {d}, {V(PK+4*t,4)}, {V(B3+6*(2*be+t)+2-2*o,4)}, {"0" if t==0 else d}')
    if OPT.get('c2', 0) == 1: check2()
    for be in range(2):
        cmul(k, DD+8*be, DD+8*be+4, TW2+8*be, TW2+8*be+4, TT, TT+4, False)
        for h in range(4): k(f'v_cvt_pk_bf16_f32 v{PK+4*be+h}, v{TT+2*h}, v{TT+2*h+1}')
        k(f'ds_write_b128 v16, {V(PK+4*be,4)} offset:{1024*be}')
    def step4(u, src):
        for be in range(2):
            for o in range(2):
                d = V(DD+8*be+4*o, 4)
                k(f'v_mfma_f32_16x16x32_bf16 {d}, {V(A4+6*u+2-2*o,4)}, {V(src+4*be,4)}, {d}')
    for o in range(2):
        for be in range(2):
            for r in range(4):
                d = DD+8*be+4*o+r; hi = r & 1
                k(f'v_fma_mix_f32 v{d}, v{SG+4*be+r}, v{Z+4*be+2*o+(r>>1)}, 0 op_sel:[0,{hi},0] op_sel_hi:[0,1,0]')
    stamp(k, 4, 'b')
    k.wait(lg=0); k('s_barrier')
    for u in range(1, 4):
        for be in range(2): k(f'ds_read_b128 {V(Z+8*u+4*be,4)}, v{16+u} offset:{1024*be}')
    step4(0, PK)
    for u in range(1, 4): step4(u, Z+8*u)
    OUT = 64
    rest, k.sprinkle = k.sprinkle, []
    for o in range(2):
        for be in range(2):
            for h in range(2): k(f'v_cvt_pk_bf16_f32 v{OUT+4*o+2*be+h}, v{DD+8*be+4*o+2*h}, v{DD+8*be+4*o+2*h+1}')
    k('s_cmp_lg_u32 s2, 0\n s_cbranch_scc1 L_p2_st')
    for h in range(4): k(f'v_mov_b32 v{OUT+4+h}, v{OUT+h}\n v_mov_b32 v{OUT+h}, 0')
    k.label('L_p2_st')
    for o in range(2): k(f'buffer_store_dwordx4 {V(OUT+4*o,4)}, v20, {WSR}, s62 offen offset:{2048*o}{ST}')
    stamp(k, 5, 'b')
    return rest

def barrier2(k, rest):
    print('weight loads left after phase 2:', len(rest))
    k(f's_lshl_b32 s44, s48, 12\n s_add_u32 s44, s44, {HF}')
    k(f's_and_b32 s46, {WAVE}, 1')
    for p in range(4): k(f's_xor_b32 s45, s46, {p}\n s_lshl_b32 s45, s45, 10\n s_add_u32 s{55+p}, s44, s45')
    k(f"""s_lshl_b32 s44, s49, 17
    s_lshl_b32 s45, s48, 11
    s_add_u32 s44, s44, s45
    s_add_u32 s59, s44, {HRES}
    s_add_u32 s60, s59, 0x10000
    s_lshl_b32 s44, s48, 10
    s_add_u32 s61, s44, {SM+64}
    s_mov_b32 s46, 0""")
    print('group 1:', n1)
    stamp(k, 6)
    nA = min(OPT.get('nA', 12), len(rest)); nB = min(OPT.get('nB', 48), len(rest) - nA)
    n2 = 48 - len(rest) + nA
    for t in rest[:nA]: k(t)
    rest = [t.replace(RC, WSR) for t in rest]
    stamp(k, 6, 'b')
    k(f'v_mov_b32 v250, 0\n v_mov_b32 v251, 1\n s_cmp_lg_u32 {WAVE}, 0\n s_cbranch_scc1 L_b2o')
    st = k.state()
    k(f's_mov_b64 exec, 1\n s_waitcnt vmcnt({nA})'); stamp(k, 7, 'b'); k('s_barrier'); stamp(k, 8, 'b')
    k(f'buffer_atomic_add v251, v250, {WSR}, s74 offen sc0 sc1')
    k('s_barrier')
    stamp(k, 9, 'b'); arrive_check(k, 250, 's75', 51, 2); stamp(k, 10, 'b')
    if OPT.get('hold'): k('s_barrier')
    k('s_mov_b64 exec, -1\n s_branch L_b2m')
    k.restore(st); k.label('L_b2o')
    k(f's_waitcnt vmcnt({nA})'); stamp(k, 7, 'b'); k('s_barrier'); stamp(k, 8, 'b')
    k('s_barrier')
    if OPT.get('hold'): k('s_barrier')
    stamp(k, 9, 'b'); stamp(k, 10, 'b')
    k.label('L_b2m')
    k(f's_cmp_lg_u32 s30, 0\n s_cbranch_scc1 L_bok')
    st = k.state()
    k(f's_cmp_lg_u32 s38, 0\n s_cbranch_scc1 L_bok2')
    k.label('L_bchk')
    k(f"""buffer_load_dword v26, v23, {WSR}, 0 offen{LD}
    s_add_u32 s46, s46, 1
    s_waitcnt vmcnt(0)
    v_cmp_ne_u32 vcc, 1, v26
    s_cmp_gt_u32 s46, {SPIN}
    s_cbranch_scc1 L_bgo
    s_cbranch_vccnz L_bchk""")
    k.label('L_bgo')
    for t in wloads(WSR)[n1:n2]: k(t)
    k.label('L_bok2')
    for t in wloads(WSR)[:n1]: k(t)
    k.restore(st)
    k.label('L_bok')
    for t in rest[nA:nA+nB]: k(t)
    if OPT.get('retouch'):
        def rt():
            k('s_lshr_b32 s44, s2, 3\n s_lshl_b32 s44, s44, 10\n v_lshl_add_u32 v252, v3, 6, s44')
            k.raw('    v_min_u32 v252, L_notz-L_b2x-4, v252\n    s_sub_u32 s44, s42, tables-L_b2x\n    s_subb_u32 s45, s43, 0'); k.pos += 3
            k('v_mov_b32 v253, s45\n v_add_co_u32 v252, vcc, s44, v252\n v_addc_co_u32 v253, vcc, 0, v253, vcc\n s_mov_b64 exec, 0xffff\n global_load_dword v254, v[252:253], off')
        only_wave(k, 2, rt)
    only_wave(k, 0, lambda: poll(k, 250, 2))
    global late_w
    late_w = rest[nA+nB:]
    def hw():
        k('v_bfe_u32 v16, v1, 2, 1\n v_lshlrev_b32 v16, 9, v16\n v_bfe_u32 v17, v1, 3, 1\n v_lshl_add_u32 v16, v17, 4, v16\n v_and_b32 v17, 3, v1\n v_lshl_add_u32 v16, v17, 2, v16')
        for j in range(8): k(f'buffer_load_dword v{MUV+j}, v16, {WSR}, s61 offen offset:{128*((j^3)>>1)+32*((j^3)&1)}{LD}')
    global hw_means, st3
    hw_means = hw
    k(f's_cmp_eq_u32 {WAVE}, 3\n s_cbranch_scc1 L_p3h')
    st3 = k.state()
    if OPT.get('isl'):
        k(f's_mov_b64 exec, 0\n s_cmp_eq_u32 {WAVE}, 1\n s_cbranch_scc1 L_isl0_0\n s_branch L_isl0_{OPT.get("islmid", 32)}')
        k.label('L_islret0'); k('s_mov_b64 exec, -1')
    k.label('L_b2x')

ACT, ACC, TM, STV, MUV = 32, 64, 128, 16, 24
def cost(t):
    m = t.split()[0]
    if m.startswith('buffer'): return 18 + 4 * t.count('\n')
    if m.startswith(('v_exp', 'v_rcp', 'v_rsq', 'v_permlane', 'ds_write')): return 8
    return 4 * (t.count('\n') + 1)

def p3_body(k, hw):
    acc = lambda p, n, m, par=0: ACC + 32*(p & 1) + 8*(n + (par if n == 2 and hw else 0)) + 4*m
    GR = 28 if not hw else TM + 12
    dma_pos = []
    def dma(j):
        return f'buffer_load_dwordx4 v5, {WSR}, m0 offen offset:{1024*(j&3)}{LD} lds'
    def m0step(j): return [f's_add_u32 m0, m0, {8192 + (32768 if j == 15 else 0)}'] if j & 3 == 3 and j < 31 else []
    def slot(g, m): return ACT + 8*(g & 3) + 4*m
    def reads(g):
        p, ka = divmod(g, 16); o = []
        if p and ka == 0:
            x = (p ^ (p-1)) << 15
            o = [f'v_xor_b32 v6, {x:#x}, v6', f'v_xor_b32 v7, {x:#x}, v7']
        return o + [f'ds_read_b64_tr_b16 {V(slot(g,m)+2*h,2)}, v{6+m} offset:{2048*ka+1024*h}' for m in range(2) for h in range(2)]
    def chains(p, J):
        if p == 3:
            P = J[::2]
            o = [f'v_pk_mul_f32 {V(t,2)}, {V(g,2)}, {V(g,2)}' for g, u, t, c in P]
            o += [f'v_pk_fma_f32 {V(t,2)}, {V(t,2)}, {V(c,2)}, {V(c,2)} op_sel:[0,1,0] op_sel_hi:[1,1,0]' for g, u, t, c in P]
            o += [f'v_pk_mul_f32 {V(t,2)}, {V(t,2)}, {V(g,2)}' for g, u, t, c in P]
            o += [f'v_exp_f32 v{t}, v{t}' for g, u, t, c in J]
            o += [f'v_pk_mul_f32 {V(g,2)}, {V(g,2)}, {V(u,2)}' for g, u, t, c in P]
            o += [f'v_pk_fma_f32 {V(t,2)}, {V(t,2)}, {V(c+2,2)}, {V(c+2,2)} op_sel_hi:[1,0,0]' for g, u, t, c in P]
            o += [f'v_rcp_f32 v{t}, v{t}' for g, u, t, c in J]
            o += [f'v_pk_mul_f32 {V(g,2)}, {V(g,2)}, {V(t,2)}' for g, u, t, c in P]
            return o
        o = [f'v_mul_f32 v{t}, v{g}, v{g}' for g, u, t, c in J]
        o += [f'v_mul_f32 v{u}, v{g}, v{u}' for g, u, t, c in J]
        o += [f'v_fma_f32 v{t}, v{t}, v{c+1}, v{c}' for g, u, t, c in J]
        o += [f'v_mul_f32 v{t}, v{t}, v{g}' for g, u, t, c in J]
        o += [f'v_exp_f32 v{t}, v{t}' for g, u, t, c in J]
        o += [f'v_fma_f32 v{t}, v{t}, v{c+2}, v{c+2}' for g, u, t, c in J]
        o += [f'v_rcp_f32 v{t}, v{t}' for g, u, t, c in J]
        o += [f'v_mul_f32 v{g}, v{u}, v{t}' for g, u, t, c in J]
        return o
    def epilogue(p):
        HA, HX = TM + 8, TM + 12
        J = [(acc(p, 0, m)+r, acc(p, 1, m)+r, TM+4*m+r, STV+4*m) for m in range(2) for r in range(4)]
        o = []
        if not hw: o += [f'v_permlane32_swap_b32 v{acc(p,2,0)+r}, v{acc(p,2,1)+r}' for r in range(4)]
        o += chains(p, J)
        o += [f'v_cvt_pk_bf16_f32 v{HA+2*m+h}, v{acc(p,0,m)+2*h}, v{acc(p,0,m)+2*h+1}' for h in range(2) for m in range(2)]
        tail = [f'v_permlane16_swap_b32 v{HA}, v{HA+2}', f'v_permlane16_swap_b32 v{HA+1}, v{HA+3}',
                f'buffer_store_dwordx4 {V(HA,4)}, v12, {RB}, s{55+p} offen{ST}']
        if not hw:
            x = chains(p, [(acc(p, 2, 0)+r, acc(p, 2, 1)+r, TM+r, STV+8) for r in range(4)])
            o += x[:2] + tail + x[2:]
            o += [f'v_cvt_pk_bf16_f32 v{HX+2*(p&1)+h}, v{acc(p,2,0)+2*h}, v{acc(p,2,0)+2*h+1}' for h in range(2)]
            if p & 1: o += [f'v_permlane16_swap_b32 v{HX}, v{HX+2}', f'v_permlane16_swap_b32 v{HX+1}, v{HX+3}',
                            f'buffer_store_dwordx4 {V(HX,4)}, v13, {RB}, s{55+p} offen{ST}']
        else:
            for m in range(2):
                e, od = acc(p, 2, m), acc(p, 2, m, 1); t = TM
                o += [f'v_add_f32 v{e+r}, v{e+r}, v{MUV+2*p+m}' for r in range(4)]
                if m == 0: o += tail
                for r in range(4): o += [f'v_add_f32 v{t+r}, v{e+r}, v{od+r}', f'v_sub_f32 v{t+4+r}, v{e+r}, v{od+r}']
                P0, P1 = acc(p, 2, 0), acc(p, 2, 0, 1)
                o += [f'v_cvt_pk_bf16_f32 v{P0+2*m}, v{t}, v{t+1}', f'v_cvt_pk_bf16_f32 v{P0+2*m+1}, v{t+2}, v{t+3}',
                      f'v_cvt_pk_bf16_f32 v{P1+2-2*m}, v{t+7}, v{t+6}', f'v_cvt_pk_bf16_f32 v{P1+3-2*m}, v{t+5}, v{t+4}']
            off = 512*(p ^ 1)
            o += [f'v_permlane16_swap_b32 v{P0}, v{P0+2}', f'v_permlane16_swap_b32 v{P0+1}, v{P0+3}',
                  f'buffer_store_dwordx4 {V(P0,4)}, v13, {WSR}, s59 offen offset:{off}{ST}',
                  f'v_permlane16_swap_b32 v{P1+2}, v{P1}', f'v_permlane16_swap_b32 v{P1+3}, v{P1+1}',
                  f'buffer_store_dwordx4 {V(P1,4)}, v14, {WSR}, s60 offen offset:{off}{ST}']
        return o
    def stats(p):
        K0 = -2*math.sqrt(2/math.pi)*math.log2(math.e); b = GR
        return [f'v_cndmask_b32 v{b}, v{b}, v{b+1}, s[64:65]', f'v_cndmask_b32 v{b}, v{b}, v{b+2}, s[66:67]', f'v_cndmask_b32 v{b}, v{b}, v{b+3}, s[68:69]',
                f'v_mov_b32 v{b+2}, {fbits(256e-5)}', f'v_fmac_f32 v{b+2}, 0.5, v{b}', f'v_rsq_f32 v{b+3}, v{b+2}',
                f'v_mul_f32 v{b}, {fbits(K0)}, v{b+3}', f'v_mul_f32 v{b+3}, v{b+3}, v{b+3}', f'v_mul_f32 v{b+1}, {fbits(0.044715)}, v{b}', f'v_mul_f32 v{b+1}, v{b+1}, v{b+3}',
                f'ds_write_b128 v9, {V(b,4)} offset:{512*p}']
    def getstats(p):
        R = [(10, STV), (8, STV+4)] + ([] if hw else [(11, STV+8)])
        o = [f'v_xor_b32 v{a}, 0x200, v{a}' for a, _ in R] if p else []
        return o + [f'ds_read_b128 {V(d,4)}, v{a} offset:{1024*(p>>1)}' for a, d in R]
    def issue_dma(j): k(dma(j)); dma_pos.append(k.nvm)
    if hw:
        hw_means()
        if OPT.get('isl'):
            k('s_mov_b64 exec, 0\n s_branch L_isl1_0'); k.label('L_islret1'); k('s_mov_b64 exec, -1')
    k('s_barrier')
    stamp(k, 7); stamp(k, 11, 'b')
    def island(g):
        G = OPT.get('isl')
        if not G or g % G: return
        mid = OPT.get('islmid', 32)
        k.label(f'L_isl{int(hw)}_{g}')
        k(f's_cbranch_execz L_isl{int(hw)}_{g+G}' if g + G < 64 and (hw or g + G != mid) else (f's_cbranch_execz L_islret{int(hw)}' if g + G >= 64 else f's_cbranch_execz L_islret0'))
    DP = OPT.get('dpre', 16)
    for j in range(DP):
        issue_dma(j)
        for t in m0step(j): k(t)
    if hw: k('v_and_b32 v13, 0x1f0, v4\n v_xor_b32 v13, 0x100, v13\n v_lshrrev_b32 v14, 5, v1\n v_lshl_add_u32 v13, v14, 15, v13\n v_xor_b32 v14, 0x8000, v13')
    p4_ids(k)
    k(f"""s_mov_b32 s51, 0
    s_lshl_b32 s45, s45, 2
    s_add_u32 s45, s45, {WAVE}
    s_mul_i32 s45, s45, {WDS}
    s_add_u32 s45, s45, {WD}
    v_add_u32 v15, s45, v4
    s_lshr_b32 s46, s44, 1
    s_lshl_b32 s45, s46, 11
    s_add_u32 s62, s45, {RBF}
    s_add_u32 s63, s62, 0x8000
    s_lshl_b32 s46, s46, 2
    s_and_b32 s44, s44, 1
    s_add_u32 s73, s46, s44
    s_lshl_b32 s46, s73, 10
    s_mul_i32 s47, {WAVE}, {HFS}
    s_add_u32 s46, s46, s47
    s_add_u32 s74, s46, {HF}
    s_mov_b32 s75, 0""")
    def landed(j): k(f's_waitcnt vmcnt({min(63, k.nvm - dma_pos[j])})'); k('s_barrier')
    landed(3)
    stamp(k, 8)
    rd_pos = {}
    def do_reads(g):
        for t in reads(g): k(t)
        rd_pos[g] = k.nlg
    do_reads(0); do_reads(1)
    NWD = OPT.get('wdin', 22)
    memq = [('dma', j) for j in range(DP, 16)]
    lw = list(late_w)
    memq += lw + [('dma', j) for j in range(16, 32)]
    after = []
    nfast = len(memq)
    wl = [t for u in range(0, NWD, 2) for t in wd_loads(u)]
    wdq = [wl[i] + ('\n' + wl[i+1] if i % 5 == 3 else '') for i in range(len(wl)) if i % 5 != 4]
    W1 = OPT.get('wdend', 57)
    st_pos = None
    wrate = min(1.0, len(wdq) / (W1 - nfast / OPT.get('mrate', 1)))
    eq = [hload(0, u, RC) for u in range(22)]
    ismem = lambda t: isinstance(t, tuple) or t.startswith(('ds_', 'buffer'))
    vcost = lambda t: 8 if t.startswith(('v_exp', 'v_rcp', 'v_rsq', 'v_permlane')) else 4 * (t.count('\n') + 1)
    hcost = lambda t: 4 if (t[0] == 'rd' if isinstance(t, tuple) else t.startswith('ds_read')) else 8
    salu = []
    def emit_mem(f):
        nonlocal stat_pos
        if isinstance(f, tuple):
            if f[0] == 'dma':
                while salu: k(salu.pop(0))
                issue_dma(f[1]); salu.extend(m0step(f[1]))
            else: k(f[1]); rd_pos[f[2]] = k.nlg
        else:
            t = f.split('\n')
            if t[0].startswith('buffer_load_dwordx4'):
                while salu: k(salu.pop(0))
            k(t[0]); salu.extend(x.strip() for x in t[1:])
            if f.startswith('ds_write'): stat_pos = k.nlg
    stat_pos = None
    k.wait(lg=k.nlg - rd_pos[0])
    for p in range(4):
        pre = stats(p-1) if p & 1 else []
        bg = (epilogue(p-1) + (getstats(p) if p & 1 else [])) if p else []
        nind = (16 if hw else 20) if p & 1 else 0
        SB = OPT.get('sb', 3)
        nbg = len(bg)
        k1 = OPT.get('e1end', 12) if p == 2 else 16
        tot = sum(vcost(t) for t in bg); done = 0
        val = []
        for ka in range(16):
            g = 16*p + ka
            if OPT.get('gst') and g in OPT['gst']: stamp(k, 1 + OPT['gst'].index(g), True)
            sync = None
            if p & 1 and ka == SB: sync = 'stat'
            if p == 0 and ka in (2, 6, 10): sync = ka + 5
            if p == 1 and ka == 13 and not OPT.get('mergeland'): sync = 31
            rds = []
            if g + 2 < 64:
                for t in reads(g + 2):
                    if t.startswith('ds_'): rds.append(('rd', t, g + 2))
            if g + 3 < 64 and (g + 3) % 16 == 0: late_x = [t for t in reads(g + 3) if not t.startswith('ds_')]
            else: late_x = []
            mem = []
            if memq:
                mr = OPT.get('mrate', 1); n = int((g + 1) * mr) - int(g * mr); n = OPT.get('mfirst', n) if len(dma_pos) < 16 else n; mem = memq[:n]; memq = memq[n:]
            elif wdq and not (p & 1 and ka == SB):
                left = W1 - g
                n = (len(wdq) + left - 1) // left if len(wdq) >= left else int((g + 1) * wrate) - int(g * wrate)
                mem = wdq[:n]; wdq = wdq[n:]
            if ka <= 1 and pre:
                n = 6 if ka == 0 else len(pre); val += pre[:n]; pre = pre[n:]
            o1 = 1 if p & 1 else 0
            budget = tot * (ka + 1 - o1) / (k1 - o1)
            if p & 1 and ka <= 1: budget = -1
            if p & 1 and ka == SB: rds = rds + [t for t in getstats(p-1) if t.startswith('ds_')]
            if p & 1 and ka == 1: val += [t for t in getstats(p-1) if not t.startswith('ds_')]
            while bg and (done + vcost(bg[0])/2 <= budget or ka == k1 - 1) and not (p & 1 and ka <= SB and nbg - len(bg) >= nind):
                done += vcost(bg[0]); val.append(bg.pop(0))
            if g == 48 + OPT.get('esamp', 8) - 1: val += ['v_lshlrev_b32 v5, 7, v3', 'v_lshl_add_u32 v5, v2, 28, v5', 'v_min_u32 v0, 1, v2', 'v_xor_b32 v0, 1, v0', 'v_add_u32 v3, s74, v4']
            if g == 48 + OPT.get('esamp', 8): mem = [f'buffer_load_dword v9, v5, {WSR}, s62 offen{LD}'] + mem
            if g == 48 + OPT.get('echk', 11): val += [f'v_cmp_ne_u32 vcc, v0, v9\n s_cmp_eq_u64 vcc, 0\n s_cselect_b32 s38, s34, 0']
            if g > 48 + OPT.get('echk', 11):
                er = OPT.get('erate', 1); mem = mem + eq[:er]; eq = eq[er:]
            mf = []
            for m in range(2):
                b_ = V(slot(g, m), 4)
                for n in range(3):
                    d = V(acc(p, n, m, ka & 1), 4)
                    first = ka == 0 or (n == 2 and ka == 1 and hw)
                    mf.append(f'v_mfma_f32_16x16x32_bf16 {d}, {A(12*ka+4*n,4)}, {b_}, {"0" if first else d}')
            mf = [mf[i] for i in (0, 3, 4, 1, 2, 5)]
            if p % 2 == 0: mf.insert(0, f'v_mfma_f32_16x16x32_bf16 {V(GR,4)}, {V(slot(g,0),4)}, {V(slot(g,0),4)}, {"0" if ka==0 else V(GR,4)}')
            heads = list(rds)
            for i, t in enumerate(mem): heads.insert(min(len(heads), 2 + 2*i + (1 if len(mem) == 1 else 0)), t)
            N = len(mf)
            ftot = sum(map(hcost, heads)) + sum(hcost(t) if ismem(t) else vcost(t) for t in val) + 4*len(late_x); fd = 0
            flush_val = ka == 15 or (p == 2 and ka == k1 - 1) or (p & 1 and ka == 1) or g - 48 in (OPT.get('esamp', 8) - 1, OPT.get('echk', 11))
            for i, t in enumerate(mf):
                k(t)
                last = i == N - 1
                if i == 0 and sync is not None:
                    if sync == 'stat':
                        assert not pre and not any(x.startswith('ds_write') for x in val)
                        k.wait(lg=k.nlg - stat_pos)
                        if p == 3 or OPT.get('mergeland'): k(f's_waitcnt vmcnt({min(63, k.nvm - (st_pos if p == 3 else dma_pos[31]))})')
                        k('s_barrier')
                        if p == 3 and hw: k(f'v_mov_b32 v{MUV}, 0\n v_mov_b32 v{MUV+1}, 1\n s_mov_b64 exec, 1\n buffer_store_dword v{MUV+1}, v{MUV}, {WSR}, s41 offen{ST}\n s_mov_b64 exec, -1')
                    else: landed(sync)
                if i == 1: island(g)
                nh = 0
                nxt = val[0] if val and ismem(val[0]) else (heads[0] if heads else None)
                if last and g + 1 < 64: k.wait(lg=k.nlg - rd_pos[g + 1])
                elif salu and (nxt is None or hcost(nxt) == 4) and not (i == 1 and OPT.get('isl')): k(salu.pop(0))
                while True:
                    if val and ismem(val[0]) and nh == 0: f = val.pop(0)
                    elif heads and (nh == 0 or len(heads) > N - 1 - i): f = heads.pop(0)
                    else: break
                    emit_mem(f); fd += hcost(f); nh += 1
                if last:
                    for x in late_x: k(x)
                while val and ((not ismem(val[0]) and fd + vcost(val[0])/2 <= ftot * (i+1) / N + 1e-6) or (last and flush_val)):
                    f = val.pop(0)
                    if ismem(f): emit_mem(f); fd += hcost(f)
                    else: k(f); fd += vcost(f)
            assert not heads
            if p == 2 and ka == k1 - 1: st_pos = k.nvm
        assert not bg and not val
        if p == 0: stamp(k, 9)
        if OPT.get('pst'): stamp(k, 1+p, True)
    while salu: k(salu.pop(0))
    assert not wdq
    stamp(k, 10)
    ep = epilogue(3); ne = OPT.get('eepi', 0); gap = 5
    for i, t in enumerate(ep):
        k(t)
        if i % gap == gap - 1 and ne > 0: k(eq.pop(0)); ne -= 1
    assert ne == 0
    if OPT.get('echk') > 15: k(f'v_cmp_ne_u32 vcc, v0, v9\n s_cmp_eq_u64 vcc, 0\n s_cselect_b32 s38, s34, 0')
    if OPT.get('pst'): stamp(k, 5, True)
    return 22 - len(eq)

def hload(hf, u, R):
    return f'buffer_load_dwordx4 {A(88*hf+4*u,4)}, v3, {R}, s75 offen offset:{2048*hf}{LD}\n ' + (f's_add_u32 s75, s75, {4*HFS}' if u < 21 else 's_mov_b32 s75, 0')

def redo(k, soff, hf, n, again=None, pre=None):
    uid[0] += 1; u = uid[0]
    k(f's_cmp_lg_u32 s38, 0\n s_cbranch_scc1 L_sd{u}')
    st = k.state()
    k('s_mov_b32 s46, 0')
    if pre: k(f'v_cmp_ne_u32 vcc, v0, v{pre}\n s_cbranch_vccz L_sg{u}')
    k.label(f'L_sp{u}')
    k(f"""buffer_load_dword v6, v5, {WSR}, {soff} offen{LD}
    s_add_u32 s46, s46, 1
    s_waitcnt vmcnt(0)
    v_cmp_ne_u32 vcc, v0, v6
    s_cmp_gt_u32 s46, {SPIN}
    s_cbranch_scc1 L_sg{u}
    s_cbranch_vccnz L_sp{u}""")
    k.label(f'L_sg{u}')
    k('s_mov_b32 s75, 0')
    for j in range(n): k(hload(hf, j, RB))
    if again: again()
    k.restore(st)
    k.vm = [set()] * 8 + [{('a', 88*hf+4*j+r) for r in range(4)} for j in range(n)]
    k.label(f'L_sd{u}')

def spin(k, reg, soff):
    uid[0] += 1; u = uid[0]
    k(f'v_cmp_ne_u32 vcc, v0, v{reg}\n s_mov_b32 s46, 0\n s_cbranch_vccz L_sd{u}')
    st = k.state()
    k.label(f'L_sp{u}')
    k(f"""buffer_load_dword v{reg}, v5, {WSR}, {soff} offen{LD}
    s_add_u32 s46, s46, 1
    s_waitcnt vmcnt(0)
    v_cmp_ne_u32 vcc, v0, v{reg}
    s_cmp_gt_u32 s46, {SPIN}
    s_cbranch_scc1 L_sd{u}
    s_cbranch_vccnz L_sp{u}""")
    k.restore(st)
    k.label(f'L_sd{u}')

QS, INS, PS = 1152, 4736, 9472
def p4(k, n0, nst):
    HR, RD, SUM = 32, 40, 128
    PRE = OPT.get('p4pre', 14)
    EP = OPT.get('epost', 6)
    k.vm = [{('a', 4*j+r) for r in range(4)} for j in range(n0)] + [set()] * nst
    if OPT.get('sbar'): k('s_barrier')
    el = [hload(0, j, RC) for j in range(n0, n0 + EP)]
    if not OPT.get('mix'):
        for t in el: k(t)
        el = []
    U0 = n0 if not OPT.get('nopre') else 0
    n0 += EP
    setup = f"""s_mov_b32 s28, s18
    s_and_b32 s29, s19, 0xffff
    s_mov_b32 s30, {S*D*2}
    s_lshr_b32 s65, s2, 5
    v_lshrrev_b32 v16, 3, v1
    v_bfe_u32 v17, v1, 1, 2
    s_lshl_b32 s46, s65, 2
    v_add_u32 v17, s46, v17            ; 16-column block
    v_sub_u32 v18, 31, v17
    v_min_u32 v18, v17, v18
    v_lshlrev_b32 v18, 17, v18
    v_lshrrev_b32 v17, 4, v17
    v_lshl_add_u32 v18, v17, 16, v18
    v_lshl_add_u32 v18, v16, 4, v18
    v_and_b32 v17, 1, v1
    v_lshl_add_u32 v8, v17, 15, v18    ; residual
    s_lshl_b32 s66, s73, 9
    s_lshl_b32 s46, {WAVE}, 7
    s_add_u32 s66, s66, s46
    s_add_u32 s66, s66, {HRES}
    v_mov_b32 v20, 0
    v_mov_b32 v21, 1
    s_add_u32 s41, s41, 0x8000
    s_lshr_b32 s46, s73, 2
    s_lshl_b32 s46, s46, 17
    s_and_b32 s44, s73, 3
    s_lshl_b32 s44, s44, 2
    s_add_u32 s44, s44, {WAVE}
    s_lshl_b32 s44, s44, 10
    s_add_u32 s67, s46, s44
    s_lshl_b32 s45, s65, 7
    s_add_u32 s67, s67, s45
    s_add_u32 s68, s67, 0x2000
    v_and_b32 v9, 7, v1
    v_lshlrev_b32 v9, 4, v9
    v_and_b32 v18, 3, v16
    v_lshl_add_u32 v9, v18, 15, v9
    v_lshrrev_b32 v18, 2, v16
    v_lshl_add_u32 v9, v18, 14, v9     ; output
    v_lshrrev_b32 v18, 5, v1
    v_lshl_add_u32 v10, v18, 6, v4
    s_mul_i32 s44, {WAVE}, {PS}
    v_add_u32 v10, s44, v10            ; partial sums, write
    v_bfe_u32 v18, v1, 2, 1
    v_mul_u32_u24 v11, {INS}, v18
    v_bfe_u32 v18, v1, 1, 1
    v_mul_u32_u24 v18, 576, v18
    v_add_u32 v11, v11, v18
    v_lshl_add_u32 v11, v16, 4, v11
    v_lshl_add_u32 v11, v17, 3, v11
    s_lshl_b32 s44, {WAVE}, 7
    v_add_u32 v11, s44, v11            ; partial sums, read
    v_add_u32 v12, {4*PS}, v11""".split('\n')
    def resid(hf): k(f'buffer_load_dwordx4 {V(HR+4*hf,4)}, v8, {WSR}, s66 offen offset:{1024*hf}{LD}')
    def mf(hf, u, i):
        d = V(ACC+32*hf+16*i, 16)
        return f'v_mfma_f32_32x32x16_bf16 {d}, {wd_reg(u, i)}, {A(88*hf+4*u,4)}, {"0" if u==0 else d}'
    def mm(hf, issued, hook):
        q = []
        for j in range(22):
            if hf == 0 and j >= OPT.get('wdin', 22) and j % 2 == 0:
                w = wd_loads(j); q += [lambda t=t: k(t) for t in w[:3] + [w[3] + '\n' + w[4]]]
            if j >= issued: q.append(lambda j=j: k(hload(hf, j, RB)))
        q.append(lambda: resid(hf))
        TL = OPT.get('tl', 0) if hf == 1 else 0
        for u in range(U0 if hf == 0 else 0, 22 - TL):
            for i in range(2):
                k(mf(hf, u, i))
                if q and (i == 0 or len(q) > 22 - u - OPT.get('lead', 8)): q.pop(0)()
                hook(u, i)
    def red_write(hf):
        o = [f'ds_write_b128 v10, {V(ACC+32*hf+16*i+4*q,4)} offset:{4*PS*hf+INS*i+QS*q}' for i in range(2) for q in range(4)]
        for j in range(4):
            o += [f'v_lshlrev_b32 v{SUM+4*(j&1)+(j>>1)}, 16, v{HR+4*hf+j}', f'v_and_b32 v{SUM+4*(j&1)+2+(j>>1)}, 0xffff0000, v{HR+4*hf+j}']
        return o
    def red_read(hf, pk=True):
        R = lambda w, q: (RD + 8*w + 2*q) if w < 3 else SUM + 8 + 2*q
        o = [f'ds_read_b64 {V(R(w,q),2)}, v{11+hf} offset:{PS*w+QS*q}' for w in range(4) for q in range(4)]
        if pk: o += [f'v_pk_add_f32 {V(SUM+2*q,2)}, {V(SUM+2*q,2)}, {V(R(w,q),2)}' for w in range(4) for q in range(4)]
        else: o += [f'v_add_f32 v{SUM+2*q+h}, v{SUM+2*q+h}, v{R(w,q)+h}' for w in range(4) for q in range(4) for h in range(2)]
        o += [f'v_cvt_pk_bf16_f32 v{HR+4*hf+j}, v{SUM+4*(j&1)+(j>>1)}, v{SUM+4*(j&1)+2+(j>>1)}' for j in range(4)]
        return o + [f'buffer_store_dwordx4 {V(HR+4*hf,4)}, v9, {RA}, s{67+hf} offen{OPT.get("ost", "")}']
    pre = [mf(0, u, i) for u in range(U0) for i in range(2)]
    for t in pre:
        k(t)
        for x in setup[:5]: k(x)
        setup = setup[5:]
    while setup or el:
        if el: k(el.pop(0))
        for x in setup[:4]: k(x)
        setup = setup[4:]
    k(f's_waitcnt vmcnt({EP})'); k('s_barrier')
    only_wave(k, 0, lambda: k(f's_mov_b64 exec, 1\n buffer_store_dword v21, v20, {WSR}, s41 offen{ST}'))
    stamp(k, 11)
    redo(k, 's62', 0, n0, lambda: [k(t) for t in pre])
    if OPT.get('p4st'): stamp(k, 1, True)
    LP, LC = OPT.get('lpoll', 11), OPT.get('lchk', 15)
    nl = [0]
    def hook0(u, i):
        if u == LP and i == 1: k(f'buffer_load_dword v6, v5, {WSR}, s63 offen{LD}')
        if u == LC and i == 0: k('v_cmp_ne_u32 vcc, v0, v6\n s_cmp_eq_u64 vcc, 0\n s_cselect_b32 s38, s34, 0')
        if u == OPT.get('lp2', -1) and i == 0: k(f'buffer_load_dword v7, v5, {WSR}, s63 offen{LD}')
        if (u, i) > (LC, 0) and (i == 1 or OPT.get('lrate2')): k(hload(1, nl[0], RC)); nl[0] += 1
    mm(0, n0, hook0)
    if OPT.get('p4st'): stamp(k, 2, True)
    for j, t in enumerate(red_write(0)):
        k(t)
        if j < OPT.get('lmid', 5): k(hload(1, nl[0], RC)); nl[0] += 1
    if OPT.get('p4st'): stamp(k, 3, True)
    redo(k, 's63', 1, nl[0], pre=7 if OPT.get('lp2') else None)
    if OPT.get('p4st'): stamp(k, 4, True)
    rr = red_read(0, False)
    def hook1(u, i):
        if u == 1 and i == 1: k.wait(lg=0); k('s_barrier')
        if u >= 2:
            for _ in range(4 if i else 2):
                if rr: k(rr.pop(0))
    mm(1, nl[0], hook1)
    assert not rr
    if OPT.get('p4st'): stamp(k, 5, True)
    TL = OPT.get('tl', 0); rw = red_write(1)
    for u in range(22 - TL, 22): k(mf(1, u, 0))
    for j, u in enumerate(range(22 - TL, 22)):
        k(mf(1, u, 1))
        if j == 0:
            for t in rw[8:]: k(t)
            rw = rw[:8]
        elif len(rw) > 4 and j >= 2: k(rw.pop(0))
    for t in rw: k(t)
    k.wait(lg=0); k('s_barrier')
    for t in red_read(1): k(t)

DOC = """;
;   phase 1  rows: LN1 statistics + Z = LN1(x) C (two MFMA steps, 32 x 16);  weights: W' = C^T [Wgate|Wup];
;            the small DFT matrices from the table behind the code (read through VGPR addresses)
; Hand-offs: write-through (sc1) stores, vmcnt wait, workgroup barrier, then a counter / flag; consumers use sc1 loads.
"""
def fused():
    k = K()
    prologue(k)
    if OPT.get('prio'): only_wave(k, 0, lambda: k('s_setprio 3'))
    k(f's_cmp_ge_u32 s2, {NZ}\n s_cbranch_scc1 L_notz')
    st0 = k.state()
    p1_z(k)
    k.label('L_join1')
    k.vm = [set()] * 40; k.lg = []
    setup(k)
    stamp(k, 3)
    negs = lambda: [p2_negs(k, b) for b in (B1, A2, B3, A4)]
    def ztab():
        if OPT.get('ztpre'): return
        uid[0] += 1; u = uid[0]
        k((f's_cmp_ge_u32 s2, {NZ}' if OPT.get('ttpre') else 's_cmp_lg_u32 s71, 0') + f'\n s_cbranch_scc1 L_zt{u}')
        st_ = k.state()
        for t in ztl: k(t)
        k.restore(st_); k.label(f'L_zt{u}')
    stamp(k, 8, 'z')
    k(f's_cmp_lg_u32 {WAVE}, 0\n s_cbranch_scc1 L_b1o')
    st = k.state()
    k('s_mov_b64 exec, 1\n s_mov_b32 s46, 0\n s_waitcnt vmcnt(0)')
    k.label('L_go')
    k(f"""v_cmp_ne_u32 vcc, 0, v254
    s_add_u32 s46, s46, 1
    s_cbranch_vccnz L_gone
    global_load_dword v254, v250, s[20:21]{LD}
    s_waitcnt vmcnt(0)
    s_cmp_lt_u32 s46, {SPIN}
    s_cbranch_scc1 L_go""")
    k.restore(st); k.vm = []
    k.label('L_gone')
    stamp(k, 9, 'z')
    k('s_barrier')
    k(f's_cmp_eq_u32 s71, 0\n s_cbranch_scc1 L_b1a\n buffer_store_dword v251, v250, {WSR}, s71 offen{ST}\n s_mov_b64 exec, -1\n s_branch L_b1n')
    k.label('L_b1a')
    k(f'buffer_atomic_add v251, v250, {WSR}, s74 offen sc0 sc1\n s_mov_b64 exec, -1')
    stamp(k, 10, 'z')
    if OPT.get('z0'):
        for t in ztl: k(t)
    setup_late(k); arrive_check(k, 250, 's75', 19, 1)
    k('s_mov_b64 exec, -1')
    if not OPT.get('z0'): ztab()
    k('s_mov_b64 exec, -1\n s_branch L_b1m')
    k.restore(st); k.label('L_b1o')
    k('s_waitcnt vmcnt(0)')
    stamp(k, 9, 'z')
    k('s_barrier')
    k.label('L_b1n')
    stamp(k, 10, 'z')
    if OPT.get('zfirst'): ztab()
    setup_late(k)
    if not OPT.get('zfirst'): ztab()
    k.label('L_b1m')
    k('s_waitcnt vmcnt(0)')
    negs()
    rbclear = lambda: k(f'v_lshlrev_b32 v252, 15, v1\n s_mov_b64 exec, 3\n buffer_store_dword v250, v252, {WSR}, s41 offen{ST}')
    k.label('L_b1q')
    only_wave(k, 1, rbclear)
    only_wave(k, 0, lambda: poll(k, 250, 1))
    k.label('L_b1x')
    k.vm = []
    k('s_barrier')
    stamp(k, 4)
    stamp(k, 11, 'z'); stamp(k, 1, 'b')
    barrier2(k, p2(k))
    n0 = p3_body(k, False)
    nst = 0
    nst = 2
    k.label('L_join3')
    k.fence()
    p4(k, n0, nst)
    stamp_out(k, 12)
    k.label('L_end'); k('s_endpgm')
    k.restore(st3); k.label('L_p3h'); assert p3_body(k, True) == n0
    assert not any(k.vm[-nst:]); k('s_branch L_join3')
    k.restore(st0); k.label('L_notz')
    p1_w(k)
    if OPT.get('slowjoin'): k('s_branch L_join1')
    else:
        stamp(k, 3)
        wd_pack(k)
        if OPT.get('slate'): twiddles(k); negs()
        k(f"""s_lshl_b32 s44, s74, 3
        s_add_u32 s44, s44, {FLG}
        v_and_b32 v252, 7, v1
        v_lshlrev_b32 v252, 8, v252
        v_mov_b32 v254, v254               ; the go word has been read before the flags are sampled
        buffer_load_dword v253, v252, {WSR}, s44 offen{LD}""")
        if not OPT.get('slate'): twiddles(k); negs()
        stamp(k, 8, 'z')
        k('s_waitcnt vmcnt(1)')
        def go1():
            k('s_mov_b32 s46, 0')
            k.label('L_go2')
            k(f"""v_cmp_ne_u32 vcc, 0, v254
            s_add_u32 s46, s46, 1
            s_cbranch_vccnz L_gone2
            global_load_dword v254, v250, s[20:21]{LD}
            s_waitcnt vmcnt(0)
            s_cmp_lt_u32 s46, {SPIN}
            s_cbranch_scc1 L_go2""")
            k.label('L_gone2')
        only_wave(k, 1, go1)
        stamp(k, 9, 'z')
        k('s_barrier')
        stamp(k, 10, 'z')
        only_wave(k, 1, lambda: k(f's_mov_b64 exec, 1\n buffer_store_dword v251, v250, {WSR}, s71 offen{ST}'))
        wd_finish(k)
        k(f's_cmp_lg_u32 {WAVE}, 0\n s_cbranch_scc1 L_b1q')
        k(f'v_min_u32 v253, v253, v254\n v_cmp_eq_u32 vcc, 0, v253\n s_cbranch_vccnz L_b1q')
        k('s_branch L_b1x')
    k.restore(st_c); k.label('L_p1c')
    k(f's_cmp_ge_u32 s2, {NI0}\n s_cbranch_scc1 L_p1i')
    st1 = k.state()
    p1_t(k); k('s_branch L_join1')
    k.restore(st1); k.label('L_p1i'); p1_i(k); k('s_branch L_join1')
    o = header()
    o += f'; @launch grid=(256,1,1) block=(256,1,1) lds={STATL+4096}\n'
    o += DOC
    o += '.amdgcn_target "amdgcn-amd-amdhsa--gfx950"\n.text\n' + k.text()
    o += tables_text() + 'L_image_end:\n'
    o += '.section .rodata,"a"\n.p2align 6\n' + kd(KN, k)
    return o

if __name__ == '__main__':
    out = sys.argv[1]
    for a in sys.argv[2:]:
        key, _, val = a.partition('=')
        OPT[key] = eval(val) if val else True
    open(out, 'w').write(fused())
```

```python
import sys, math, struct
import numpy as np
from dsl import K
from design import *
import gen
from gen import V, A, Sg, fbits, TBL, tables_text, header, kd, NAME, srd, cmul, TPAD
del gen.tbl_data[1:3]
TBL['P2W'] -= 65536; TBL['P2S'] -= 65536

OPT = dict(stamps=False, gblate=True, tpost=True, every=48, mergeland=True, mrate=1.5, nopre=True, w0late=True, nA=6, c1=1, fpos=0, c2=1, prio=True, wgbfirst=False, wdshadow=True, wcont=True, nord=True, hold=True, esamp=8, e1end=13, echk=15, epost=8, wdend=62, lpoll=9, lchk=16, retouch=True, ntx=' nt', ntd=' nt', lp2=17, sbar=True, dpre=12, mfirst=2, zfirst=True, slate=True, zev=24, twe=True, th=True, ost=' sc1')
ST, LD = ' sc1', ' sc1'
WSR, RA, RB, RC = 's[24:27]', 's[28:31]', 's[32:35]', 's[36:39]'
WAVE = 's40'
KN = NAME + '_kernel'
SPIN = 400000
TW1, TW2 = 112, 128
B1, A4, A2, B3 = 144, 168, 192, 216
FA, GB = 200, 208
NZ, NC0, NI0 = 128, 216, 248
uid = [0]

def stamp(k, i, pm=False):
    if OPT.get('pst') and 1 <= i <= 5 and not pm: return
    if OPT.get('zdet') and 1 <= i <= 11 and pm != 'z': return
    if pm == 'z' and not OPT.get('zdet'): return
    if OPT.get('bdet') and 1 <= i <= 11 and pm != 'b': return
    if pm == 'b' and not OPT.get('bdet'): return
    if OPT['stamps']: k(f's_{"memtime" if OPT.get("pst") else "memrealtime"} s[{76+2*i}:{77+2*i}]')
def stamp_out(k, n):
    if not OPT['stamps']: return
    k.wait(vm=0, lg=0); stamp(k, n); n += 1; k.wait(lg=0)
    k(f's_lshl_b32 s44, s2, 8\n s_lshl_b32 s45, {WAVE}, 6\n s_add_u32 s44, s44, s45\n s_add_u32 s44, s44, {STAMP}')
    for i in range(16): k(f'v_mov_b32 v{8+i}, s{76+2*i}' if i < n else f'v_mov_b32 v{8+i}, 0')
    k('v_mov_b32 v24, 0\n s_mov_b64 exec, 1')
    for q in range(4): k(f'buffer_store_dwordx4 {V(8+4*q,4)}, v24, {WSR}, s44 offen offset:{16*q}')

def wsrd(k, base, end):
    k(f's_mov_b32 s{base}, s24\n s_mov_b32 s{base+1}, s25\n s_mov_b32 s{base+2}, {end}\n s_mov_b32 s{base+3}, 0x20000')

def tbl_addr(k, vp, soff):
    k(f"""s_add_u32 s46, s42, {soff}
    s_addc_u32 s47, s43, 0
    v_mov_b32 v{vp+1}, s47
    v_add_co_u32 v{vp}, vcc, s46, v4
    v_addc_co_u32 v{vp+1}, vcc, 0, v{vp+1}, vcc""")

def gb_loads(k):
    for q in range(8): k(f'global_load_dwordx4 {A(GB+4*q,4)}, v[8:9], off offset:{1024*q-4096}')

GV = 144
def gb_gen(k, zpath, T=176, part=(0, 4)):
    cvt = 'v_cvt_pk_f16_f32' if zpath else 'v_cvt_pk_bf16_f32'
    if part[0] == 0: k(f"""v_cmp_gt_u32 vcc, 8, v3
    v_and_b32 v{T}, 7, v3
    v_lshlrev_b32 v{T}, 5, v{T}
    v_mov_b32 v{T+1}, 0x80008000
    v_cndmask_b32 v{T+2}, 0, v{T+1}, vcc
    v_cndmask_b32 v{T+3}, v{T+1}, 0, vcc
    v_lshl_add_u32 v{T+4}, v2, 3, 1
    v_cvt_f32_u32 v{T+4}, v{T+4}
    v_mul_f32 v{T+4}, {fbits(1/1024)}, v{T+4}
    v_add_f32 v{T+5}, {fbits(2/1024)}, v{T+4}
    v_add_f32 v{T+6}, {fbits(4/1024)}, v{T+4}
    v_add_f32 v{T+7}, {fbits(6/1024)}, v{T+4}
    s_lshl_b32 s46, {WAVE}, 2
    v_cndmask_b32 v{T+1}, -1.0, 1.0, vcc
    s_sub_u32 s47, 32, s46
    v_mov_b32 v{T+8}, s47
    v_mov_b32 v{T+9}, s46
    v_cndmask_b32 v{T+8}, v{T+8}, v{T+9}, vcc
    v_add_u32 v{T+8}, v{T+8}, v{T}
    v_cvt_f32_u32 v{T+8}, v{T+8}""")
    def one(q, kf, off=None, sc=None):
        A_, G = T + 10, GV + 8*q
        for r in range(4):
            k(f'v_mul_f32 v{A_+r}, v{kf}, v{T+4+r}' if off is None else f'v_fma_f32 v{A_+r}, v{kf}, v{T+4+r}, v{off}')
            k(f'v_fract_f32 v{A_+r}, v{A_+r}')
        for r in range(4): k(f'v_sin_f32 v{A_+4+r}, v{A_+r}\n v_cos_f32 v{A_+r}, v{A_+r}')
        if sc is not None:
            for r in range(8): k(f'v_mul_f32 v{A_+r}, v{A_+r}, v{sc}')
        for h in range(2):
            k(f'{cvt} v{G+h}, v{A_+2*h}, v{A_+2*h+1}\n {cvt} v{G+4+h}, -v{A_+4+2*h}, -v{A_+4+2*h+1}')
    for q in range(*part):
        one(q, T+8)
        for h in range(2): k(f'v_xor_b32 v{GV+8*q+2+h}, v{GV+8*q+4+h}, v{T+2}\n v_xor_b32 v{GV+8*q+6+h}, v{GV+8*q+h}, v{T+3}')
        if q < 3: k(f'v_add_f32 v{T+8}, v{T+8}, v{T+1}')
    def slot0():
        k(f"""v_cmp_gt_u32 vcc, 8, v3
        v_add_u32 v{T+8}, 16, v{T}
        v_cmp_eq_u32 s[46:47], 0, v3
        v_cndmask_b32 v{T+8}, v{T+8}, v{T}, vcc
        v_mov_b32 v{T+9}, 0x100
        v_mov_b32 v{T+18}, {fbits(math.sqrt(0.5))}
        v_mov_b32 v{T+19}, {fbits(0.25 if zpath else 0.0)}
        v_cndmask_b32 v{T+8}, v{T+8}, v{T+9}, s[46:47]
        v_cndmask_b32 v{T+18}, 1.0, v{T+18}, s[46:47]
        v_cndmask_b32 v{T+19}, 0, v{T+19}, s[46:47]
        v_cvt_f32_u32 v{T+8}, v{T+8}""")
        one(0, T+8, T+19, T+18)
        for o in (0, 4):
            for h in range(2): k(f'v_cndmask_b32 v{GV+o+2+h}, v{GV+o+h}, 0, vcc\n v_cndmask_b32 v{GV+o+h}, 0, v{GV+o+h}, vcc')
        k.fence()
    if part[1] < 4: return
    only_wave(k, 0, slot0)
    if not zpath:
        for i in range(32): k(f'v_accvgpr_write_b32 a{GB+i}, v{GV+i}')

def prologue(k):
    k.raw(f'.globl {KN}\n.p2align 8\n.type {KN},@function\n{KN}:')
    stamp(k, 0)
    k(f"""s_load_dwordx16 s[4:19], s[0:1], 0
    s_load_dwordx4 s[20:23], s[0:1], 64
    s_getpc_b64 s[42:43]""")
    k.raw('L_pc:')
    k(f"""s_cmp_ge_u32 s2, 256
    s_cbranch_scc1 L_end
    v_lshrrev_b32 v5, 6, v0
    v_and_b32 v1, 63, v0
    v_readfirstlane_b32 {WAVE}, v5
    s_lshr_b32 s44, s2, 3
    v_lshl_add_u32 v5, v5, 5, s44
    v_lshlrev_b32 v6, {7 if OPT.get('pf128') else 6}, v1
    v_lshl_add_u32 v5, v5, {13 if OPT.get('pf128') else 12}, v6      ; one dword per line""")
    k.raw('    v_min_u32 v5, L_image_end-L_pc-4, v5'); k.pos += 1
    k(f"""v_mov_b32 v7, s43
    v_add_co_u32 v6, vcc, s42, v5
    v_addc_co_u32 v7, vcc, 0, v7, vcc
    global_load_dword v255, v[6:7], off
    v_bfe_u32 v2, v0, 4, 2
    v_and_b32 v3, 15, v0
    v_lshlrev_b32 v4, 4, v1""")
    k.raw('    s_add_u32 s42, s42, tables-L_pc\n    s_addc_u32 s43, s43, 0'); k.pos += 2
    k(f's_cmp_ge_u32 s2, {NC0}\n s_cbranch_scc1 L_p1c')
    global st_c
    st_c = k.state()
    tbl_addr(k, 6, TBL['FA'])
    for c in range(2): k(f'global_load_dwordx4 {A(FA+4*c,4)}, v[6:7], off offset:{1024*c}')

def go_load(k, b):
    k(f'v_mov_b32 v{b}, 0\n global_load_dword v{b+4}, v{b}, s[20:21]{LD}')
def arrive_issue(k, b, cnt, go):
    k(f'v_mov_b32 v{b}, 0\n v_mov_b32 v{b+1}, 1\n s_mov_b64 exec, 1')
    if go:
        uid[0] += 1; u = uid[0]
        k('s_mov_b32 s46, 0')
        k.label(f'L_go{u}')
        k(f"""s_waitcnt vmcnt(0)
        v_cmp_ne_u32 vcc, 0, v{b+4}
        s_add_u32 s46, s46, 1
        s_cbranch_vccnz L_gone{u}
        global_load_dword v{b+4}, v{b}, s[20:21]{LD}
        s_cmp_lt_u32 s46, {SPIN}
        s_cbranch_scc1 L_go{u}""")
        k.label(f'L_gone{u}')
    k(f'buffer_atomic_add v{b+1}, v{b}, {WSR}, {cnt} offen sc0 sc1')
def arrive_check(k, b, flg, last, val):
    uid[0] += 1; u = uid[0]
    k(f"""s_mov_b64 exec, 0xff
    v_lshlrev_b32 v{b+2}, 11, v1
    v_mov_b32 v{b}, {val}
    v_readfirstlane_b32 s47, v{b+1}
    s_cmp_lg_u32 s47, {last}
    s_cbranch_scc1 L_nl{u}""")
    st = k.state()
    k(f'buffer_store_dword v{b}, v{b+2}, {WSR}, {flg} offen{ST}')
    k.restore(st)
    k.label(f'L_nl{u}')
def poll(k, b, val):
    uid[0] += 1; u = uid[0]
    k(f"""s_mov_b64 exec, 0xff
    v_lshlrev_b32 v{b+3}, 8, v1
    s_and_b32 s44, s2, 7
    s_lshl_b32 s44, s44, 11
    s_add_u32 s44, s44, {FLG}
    s_mov_b32 s46, 0""")
    k.label(f'L_bp{u}')
    k(f"""buffer_load_dword v{b+1}, v{b+3}, {WSR}, s44 offen{LD}
    s_add_u32 s46, s46, 1
    s_waitcnt vmcnt(0)
    v_cmp_gt_u32 vcc, {val}, v{b+1}
    s_cmp_gt_u32 s46, {SPIN}
    s_cbranch_scc1 L_bd{u}
    s_cbranch_vccnz L_bp{u}""")
    k.label(f'L_bd{u}')
    k('s_mov_b64 exec, -1')
def only_wave(k, w, fn):
    uid[0] += 1; u = uid[0]
    k(f's_cmp_lg_u32 {WAVE}, {w}\n s_cbranch_scc1 L_ow{u}')
    st = k.state(); fn(); k('s_mov_b64 exec, -1'); k.restore(st); k.label(f'L_ow{u}')

def p2_tables(k, vp=26):
    k(f's_lshl_b32 s44, {WAVE}, 13\n s_add_u32 s44, s44, {TBL["P2W"]+4096}')
    tbl_addr(k, vp, 's44'); tbl_addr(k, vp+2, TBL['P2S']+4096)
    o = [f'global_load_dwordx4 {V(B1+6*u+2,4)}, {V(vp,2)}, off offset:{1024*u-4096}' for u in range(4)]
    o += [f'global_load_dwordx4 {V(A2+6*u+2,4)}, {V(vp+2,2)}, off offset:{1024*u-4096}' for u in range(4)]
    o += [f'global_load_dwordx4 {V(B3+6*u+2,4)}, {V(vp+2,2)}, off offset:{1024*u}' for u in range(4)]
    o += [f'global_load_dwordx4 {V(A4+6*u+2,4)}, {V(vp,2)}, off offset:{1024*u}' for u in range(4)]
    return o
def flush(k):
    sp, k.sprinkle = k.sprinkle, []
    for t in sp: k(t)

def gtouch(k, dst):
    k(f"""s_bitcmp1_b32 s2, 0
    s_cselect_b32 s36, s14, s12
    s_cselect_b32 s37, s15, s13
    s_and_b32 s37, s37, 0xffff
    s_mov_b32 s38, {D*F*2}
    s_lshr_b32 s44, s2, 3
    s_lshl_b32 s44, s44, 2
    s_add_u32 s44, s44, {WAVE}
    s_mul_i32 s44, s44, {8*2752}
    s_bfe_u32 s46, s2, 0x20001
    s_mul_i32 s46, s46, 704
    s_add_u32 s44, s44, s46
    v_and_b32 v15, 7, v1
    v_lshlrev_b32 v15, 7, v15
    v_min_u32 v15, 700, v15
    v_lshrrev_b32 v16, 3, v1
    v_mul_u32_u24 v16, 2752, v16
    v_add_u32 v15, v15, v16
    s_mov_b32 exec_lo, 0x7f7f7f7f
    s_mov_b32 exec_hi, 0x7f7f7f7f
    buffer_load_dword v{dst}, v15, {RC}, s44 offen
    s_mov_b64 exec, -1""")

def p1_z(k):
    X, DA, TR, SS, WL, WO = 32, 48, 80, 96, 104, 120
    k(f"""s_and_b32 s44, s2, 7
    s_lshr_b32 s45, s2, 4
    s_lshl_b32 s45, s45, 3
    s_add_u32 s44, s44, s45
    s_lshl_b32 s44, s44, 1
    s_bfe_u32 s45, s2, 0x10003
    s_add_u32 s60, s44, s45            ; (t,g,beta,bq)
    s_lshr_b32 s61, s60, 3
    s_lshl_b32 s61, s61, 7
    s_and_b32 s44, s60, 7
    s_lshl_b32 s44, s44, 2
    s_add_u32 s44, s44, s61
    s_add_u32 s44, s44, {WAVE}
    s_lshl_b32 s56, s44, 10
    s_add_u32 s57, s56, 0x8000
    s_add_u32 s58, s56, 0x10000
    s_add_u32 s59, s56, 0x18000
    s_mov_b32 s38, {S*D*2}
    s_mov_b32 s39, 0x20000
    s_bfe_u32 s48, s2, 0x20003
    s_and_b32 s44, s2, 7
    s_lshl_b32 s44, s44, 2
    s_add_u32 s48, s48, s44
    s_and_b32 s44, s2, 0x60
    s_add_u32 s48, s48, s44
    s_add_u32 s48, s48, 128""")
    wt_rows(k, 's48', 49)
    k(f's_mul_i32 s44, {WAVE}, {64*514}\n s_add_u32 s49, s49, s44')
    gb_gen(k, True, part=(0, OPT.get('gs', 4)))
    k.wait(lg=0)
    stamp(k, 1, 'z')
    k('s_mov_b32 s36, s4\n s_and_b32 s37, s5, 0xffff')
    for i in range(4): k(f'buffer_load_dwordx4 {V(X+4*i,4)}, v4, {RC}, s{56+i} offen{OPT.get("ntx", "")}')
    if OPT.get('gp', 0) == 1: gb_gen(k, True)
    k(WSRDS)
    if not OPT.get('nowpf'):
        k(f"""v_lshrrev_b32 v15, 1, v3
        v_mul_u32_u24 v15, 514, v15
        v_and_b32 v16, 1, v1
        v_mul_u32_u24 v16, 126, v16
        v_add_u32 v15, v15, v16
        s_mov_b32 s45, 0x5555
        s_and_b32 s44, s48, 3
        s_cmp_eq_u32 s44, 3
        s_cselect_b32 exec_lo, 0xffff, {'s45' if OPT.get('th') else '0xffff'}
        s_mov_b32 exec_hi, 0
        buffer_load_ushort v{WO}, v15, {RA}, s49 offen{OPT.get('ntw', '')}
        buffer_load_ushort v{WO+1}, v15, {RB}, s49 offen{OPT.get('ntw', '')}
        s_mov_b64 exec, -1""")
    if OPT.get('wreal'): k(f'buffer_load_dwordx4 {V(WL,4)}, v11, {RA}, s49 offen\n buffer_load_dwordx4 {V(WL+4,4)}, v11, {RB}, s49 offen')
    if OPT.get('gbz') == 0: gb_loads(k)
    if OPT.get('gp', 0) == 2: gb_gen(k, True)
    k('v_mov_b32 v15, v11')
    wl_ = [f'buffer_load_dwordx4 {V(WL,4)}, v15, {RA}, s49 offen', f'buffer_load_dwordx4 {V(WL+4,4)}, v15, {RB}, s49 offen']
    wt_dest(k, 's48', 50)
    k(f"""s_lshl_b32 s44, {WAVE}, 2
    s_add_u32 s44, s44, 0xa000
    v_add_u32 v12, s44, v12
    s_lshl_b32 s44, {WAVE}, 5
    v_xor_b32 v13, s44, v4
    s_lshl_b32 s44, {WAVE}, 11
    s_add_u32 s44, s44, 0xa000
    v_add_u32 v13, s44, v13
    v_xor_b32 v14, 16, v13
    s_lshl_b32 s44, {WAVE}, 11
    s_add_u32 s50, s50, s44
    s_add_u32 s51, s50, 1024""")
    srd(k, 24, 22, WS_USED)
    k(f"""s_lshl_b32 s44, {WAVE}, 12
    v_add_u32 v30, s44, v4
    v_lshrrev_b32 v31, 1, v4
    v_add_u32 v31, s44, v31
    v_mul_u32_u24 v6, {TPAD}, v3
    v_lshl_add_u32 v6, v2, 8, v6
    s_lshl_b32 s44, {WAVE}, 6
    s_add_u32 s44, s44, 16384
    v_add_u32 v6, s44, v6
    s_mul_i32 s44, {WAVE}, {4*TPAD}
    s_add_u32 s44, s44, 16384
    v_add_u32 v7, s44, v4
    v_cmp_eq_u32 vcc, 0, v3
    v_cndmask_b32 v8, 0, 1.0, vcc
    s_mov_b32 s62, 0x3f803f80
    v_lshlrev_b32 v9, 6, v3
    v_lshl_add_u32 v9, v2, 4, v9
    s_lshl_b32 s44, s60, 14
    s_lshl_b32 s63, s60, 7
    s_add_u32 s63, s63, {SM}
    s_lshl_b32 s47, {WAVE}, 12
    s_add_u32 s44, s44, s47
    s_add_u32 s64, s44, {ZT}
    s_lshl_b32 s44, {WAVE}, 4
    s_add_u32 s44, s44, 0x9000
    v_lshl_add_u32 v10, v2, 2, s44""")
    if OPT.get('gs', 4) < 4: gb_gen(k, True, part=(OPT.get('gs'), 4))
    tl = []
    if True:
        stamp(k, 2, 'z')
        for i in range(4):
            k(f'ds_write_b128 v30, {V(X+4*i,4)} offset:{1024*i}')
            if i == 0: stamp(k, 1)
            for r in range(2): k(f'ds_read_b64_tr_b16 {V(TR+4*i+2*r,2)}, v31 offset:{1024*i+512*r}')
            for j in range(4):
                k(f'v_dot2_f32_bf16 v{SS+i}, v{X+4*i+j}, s62, {"0" if j==0 else V(SS+i)}')
                k(f'v_dot2_f32_bf16 v{SS+4+i}, v{X+4*i+j}, v{X+4*i+j}, {"0" if j==0 else V(SS+4+i)}')
        stamp(k, 3, 'z')
        k.sprinkle = tl; k.every = OPT.get('zev', 40); k.since = 100
        stamp(k, 4, 'z')
        mf = [f'v_mfma_f32_16x16x32_bf16 {V(DA+8*i+4*c,4)}, {V(TR+4*i,4)}, {A(FA+4*c,4)}, 0' for i in range(4) for c in range(2)]
        k(mf.pop(0)); k(mf.pop(0))
        for b in (SS, SS+4):
            k(f'v_permlane32_swap_b32 v{b}, v{b+2}\n v_permlane32_swap_b32 v{b+1}, v{b+3}')
        for b in (SS, SS+4):
            k(f'v_add_f32 v{b}, v{b}, v{b+2}\n v_add_f32 v{b+1}, v{b+1}, v{b+3}')
        k(mf.pop(0))
        for b in (SS, SS+4): k(f'v_permlane16_swap_b32 v{b}, v{b+1}')
        for b in (SS, SS+4): k(f'v_add_f32 v{b}, v{b}, v{b+1}')
        for sh in (8, 4, 2, 1):
            k(mf.pop(0))
            for b in (SS, SS+4): k(f'v_add_f32_dpp v{b}, v{b}, v{b} row_ror:{sh} row_mask:0xf bank_mask:0xf')
        k(mf.pop(0))
        k(f"""v_mul_f32 v{SS}, {fbits(1/512)}, v{SS}
        v_mul_f32 v{SS+4}, {fbits(1/512)}, v{SS+4}
        v_fma_f32 v{SS+4}, -v{SS}, v{SS}, v{SS+4}
        v_max_f32 v{SS+4}, 0, v{SS+4}
        v_add_f32 v{SS+4}, {fbits(1e-5)}, v{SS+4}
        v_rsq_f32 v{SS+1}, v{SS+4}
        v_mul_f32 v{SS+2}, {fbits(-2.0)}, v{SS}
        v_mul_f32 v{SS+2}, v{SS+2}, v{SS+1}
        v_mul_f32 v{SS+3}, {fbits(1/16)}, v{SS+1}""")
        for i in range(4):
            k(f'v_readlane_b32 s{68+2*i}, v{SS+3}, {16*i}\n v_readlane_b32 s{69+2*i}, v{SS+2}, {16*i}')
        for i in range(4):
            d = DA + 8*i
            k(f'v_mul_f32 v{TR}, s{69+2*i}, v8')
            for h in range(2):
                k(f'v_pk_mul_f32 {V(d+4+2*h,2)}, {V(d+4+2*h,2)}, {Sg(68+2*i,2)} op_sel_hi:[1,0]')
            for h in range(2):
                k(f'v_pk_fma_f32 {V(d+2*h,2)}, {V(d+2*h,2)}, {Sg(68+2*i,2)}, {V(TR,2)} op_sel_hi:[1,0,0]')
            for h in (2, 3, 0, 1): k(f'v_cvt_pk_f16_f32 v{X+4*i+h}, v{d+2*h}, v{d+2*h+1}')
            k(f'ds_write_b128 v6, {V(X+4*i,4)} offset:{16*i}')
        k(f"""v_mul_f32 v{SS+4}, v{SS+4}, v{SS+1}
        ds_write2_b32 v10, v{SS+4}, v{SS} offset0:0 offset1:16""")
        if OPT.get('wlp', 0) == 0:
            for t in wl_: k(t)
        def wt_a():
            for i in range(8):
                k(f'v_perm_b32 v{WO+i}, v{WL+4+(i>>1)}, v{WL+(i>>1)}, s{53+(i&1)}')
                k(f'ds_write_b32 v12, v{WO+i} offset:{128*i}')
        if OPT.get('wtearly'): wt_a()
        k.wait(lg=0); k('s_barrier')
        if OPT.get('zst'): stamp(k, 1)
        stamp(k, 5, 'z')
        for q in range(4): k(f'ds_read_b128 {V(TR+4*q,4)}, v7 offset:{TPAD*q}')
        k(f'ds_read_b128 {V(SS,4)}, v4 offset:0x9000')
        if OPT.get('wlp', 0) == 1:
            for t in wl_: k(t)
        go_load(k, 250)
        wt_b = lambda: [k(f'ds_read_b128 {V(WL+4*n,4)}, v{13+n} offset:{1024*n}') for n in range(2)]
        wt_c = lambda: [k(f'buffer_store_dwordx4 {V(WL+4*n,4)}, v11, {WSR}, s{50+n} offen{ST}') for n in range(2)]
        if OPT.get('wtearly'): wt_b()
        for q in range(4):
            for o in range(2): k(f'v_mfma_f32_16x16x32_f16 {V(DA+8*q+4*o,4)}, {V(TR+4*q,4)}, {V(GV+8*q+4*o,4)}, 0')
        k.wait(lg=0)
        if OPT.get('wtearly'): wt_c()
        only_wave(k, 3, lambda: k(f's_mov_b64 exec, 0xff\n buffer_store_dwordx4 {V(SS,4)}, v4, {WSR}, s63 offen{ST}'))
        for q in range(4):
            for h in range(4): k(f'v_cvt_pk_f16_f32 v{X+4*q+h}, v{DA+8*q+2*h}, v{DA+8*q+2*h+1}')
            k(f'buffer_store_dwordx4 {V(X+4*q,4)}, v9, {WSR}, s64 offen offset:{1024*q}{ST}')
        stamp(k, 6, 'z')
        if not OPT.get('wtearly'):
            wt_a(); k.wait(lg=0); k('s_barrier'); wt_b(); wt_c()
        global ztl
        ztl = p2_tables(k)
        if OPT.get('ztpre'):
            for t in ztl: k(t)
        stamp(k, 2)

def p1_w(k):
    OP, DA = 32, 64
    TBASE = 32768
    k(f"""s_and_b32 s61, s2, 1               ; mu
    s_bfe_u32 s60, s2, 0x60001
    s_and_b32 s44, s60, 3
    s_lshl_b32 s44, s44, 1
    s_bfe_u32 s45, s60, 0x10002
    s_add_u32 s44, s44, s45
    s_andn2_b32 s45, s60, 7
    s_add_u32 s44, s44, s45
    s_cmp_lt_u32 s60, 40
    s_cselect_b32 s60, s44, s60        ; phi""" + ("""
    s_bfe_u32 s44, s2, 0x20001
    s_mul_i32 s44, s44, 11
    s_bfe_u32 s45, s2, 0x40003
    s_add_u32 s60, s44, s45""" if OPT.get('wcont') else '') + f"""
    s_mul_i32 s44, {WAVE}, {4*2752}
    s_lshl_b32 s45, s60, 6
    s_add_u32 s66, s44, s45
    v_lshrrev_b32 v10, 2, v1
    v_mul_u32_u24 v30, {16*2752}, v10
    v_and_b32 v11, 3, v1
    v_and_b32 v12, 1, v2
    v_lshlrev_b32 v12, 1, v12
    v_xor_b32 v13, v11, v12
    v_lshl_add_u32 v30, v13, 4, v30    ; DMA source
    s_lshl_b32 s67, {WAVE}, 13
    s_mov_b32 s38, {D*F*2}
    s_mov_b32 s39, 0x20000
    """)
    k(f"""s_bfe_u32 s64, s2, 0x40003
    s_lshl_b32 s64, s64, 2
    s_add_u32 s64, s64, {WAVE}
    s_mul_i32 s64, s64, {12*2752}
    s_bfe_u32 s46, s2, 0x20001
    s_mul_i32 s46, s46, 704
    s_add_u32 s64, s64, s46
    s_add_u32 s65, s64, {8*2752}
    v_and_b32 v14, 7, v1
    v_lshlrev_b32 v14, 7, v14
    v_min_u32 v14, 700, v14
    v_lshrrev_b32 v15, 3, v1
    v_mul_u32_u24 v15, 2752, v15
    v_add_u32 v14, v14, v15""")
    k.wait(lg=0)
    stamp(k, 1, 'z')
    k(f"""s_cmp_eq_u32 s61, 0
    s_cselect_b32 s36, s12, s14
    s_cselect_b32 s37, s13, s15
    s_and_b32 s37, s37, 0xffff""")
    if OPT.get('wdi', 3) == 2: wd_issue(k)
    if not OPT.get('nowt2'):
        k(f"""s_mov_b32 exec_lo, 0x7f7f7f7f
        s_mov_b32 exec_hi, 0x7f7f7f7f
        buffer_load_dword v5, v14, {RC}, s64 offen{OPT.get('ntg', '')}
        s_mov_b32 exec_hi, 0
        buffer_load_dword v248, v14, {RC}, s65 offen{OPT.get('ntg', '')}
        s_mov_b64 exec, -1""")
    if OPT.get('wdi', 3) == 3: wd_issue(k)
    k('v_mov_b32 v249, v30')
    def dmas():
        nonlocal pos
        pos = []
        for n in range(8):
            k(f's_add_u32 m0, s67, {1024*n}\n s_add_u32 s44, s66, {((n>>1) + 256*(n&1))*2752}')
            k(f'buffer_load_dwordx4 v249, {RC}, s44 offen{OPT.get("ntg", "")} lds'); pos.append(k.nvm)
    pos = None
    if OPT.get('dfirst'): dmas()
    srd(k, 24, 22, WS_USED)
    k(f"""v_lshlrev_b32 v31, 6, v10
    v_lshl_add_u32 v31, v12, 4, v31
    v_lshl_add_u32 v31, v11, 3, v31
    v_add_u32 v30, s67, v31
    v_xor_b32 v31, 32, v30
    v_mul_u32_u24 v6, {4*TPAD}, v2
    v_lshl_add_u32 v6, v3, 4, v6
    s_lshl_b32 s44, {WAVE}, 8
    s_add_u32 s44, s44, {TBASE}
    v_add_u32 v6, s44, v6              ; T write
    s_mul_i32 s44, {WAVE}, {4*TPAD}
    s_add_u32 s44, s44, {TBASE}
    v_add_u32 v7, s44, v4              ; T read
    s_lshl_b32 s44, s60, 2
    v_lshrrev_b32 v12, 3, v3
    v_and_b32 v13, 7, v3
    v_lshlrev_b32 v13, 4, v13
    v_lshl_add_u32 v13, v2, 8, v13
    s_lshl_b32 s45, {WAVE}, 12
    s_add_u32 s68, s45, {WP}
    v_mov_b32 v19, s61""")
    for pp in range(2):
        k(f"""v_add_u32 v14, s44, v12            ; octet
        v_mul_u32_u24 v15, 373, v14
        v_lshrrev_b32 v15, 12, v15
        v_add_u32 v14, v14, v15            ; q
        v_mul_u32_u24 v15, 171, v14
        v_lshrrev_b32 v15, 9, v15
        v_mul_u32_u24 v15, 3, v15          ; q - q%3
        v_sub_u32 v16, v14, v15            ; n
        v_cmp_eq_u32 vcc, 2, v16
        v_add_u32 v15, s61, v15
        s_add_u32 s44, s44, 2
        v_cndmask_b32 v15, v15, v14, vcc   ; tile
        v_cndmask_b32 v16, v16, v19, vcc
        v_mul_u32_u24 v15, {WPS}, v15
        v_add_u32 v{8+pp}, v15, v13
        v_lshl_add_u32 v{8+pp}, v16, 7, v{8+pp}""")
    tl = p2_tables(k)
    setup(k); setup_late(k, 'addr')
    if OPT.get('wgen', 0) == 0: gb_gen(k, False)
    if not OPT.get('dfirst'): dmas()
    if OPT.get('wgen', 0) == 1: gb_gen(k, False)
    stamp(k, 2, 'z')
    for dl in range(4):
        k(f's_waitcnt vmcnt({k.nvm - pos[2*dl+1]})')
        if dl == 0: stamp(k, 1)
        for pi in range(2):
            for h in range(2): k(f'ds_read_b64_tr_b16 {V(OP+8*dl+4*pi+2*h,2)}, v{30+pi} offset:{2048*dl+1024*h}')
    stamp(k, 3, 'z')
    k.sprinkle = tl; k.every = OPT.get('tev', 28); k.since = 100
    for dl in range(4):
        for pi in range(2):
            for c in range(2):
                k(f'v_mfma_f32_16x16x32_bf16 {V(DA+32*pi+16*c+4*dl,4)}, {A(FA+4*c,4)}, {V(OP+8*dl+4*pi,4)}, 0')
    for pi in range(2):
        for r in range(4):
            u = OP + 16*pi + 4*r
            for c in range(2):
                for h in range(2):
                    d = DA + 32*pi + 16*c + 8*h + r
                    k(f'v_cvt_pk_bf16_f32 v{u+2*c+h}, v{d}, v{d+4}')
            k(f'ds_write_b128 v6, {V(u,4)} offset:{16*TPAD*pi+TPAD*r}')
    flush(k)
    stamp(k, 4, 'z')
    k.wait(lg=0); k('s_barrier')
    stamp(k, 5, 'z')
    for pi in range(2):
        for q in range(4): k(f'ds_read_b128 {V(OP+16*pi+4*q,4)}, v7 offset:{16*TPAD*pi+TPAD*q}')
    go_load(k, 250)
    for pi in range(2):
        for q in range(4):
            for o in range(2):
                k(f'v_mfma_f32_16x16x32_bf16 {V(DA+32*pi+8*q+4*o,4)}, {A(GB+8*q+4*o,4)}, {V(OP+16*pi+4*q,4)}, 0')
    for pi in range(2):
        for p in range(2):
            for o in range(2):
                u = OP + 16*pi + 8*p + 4*o
                for hq in range(2):
                    for h in range(2):
                        d = DA + 32*pi + 8*(2*p+hq) + 4*o + 2*h
                        k(f'v_cvt_pk_bf16_f32 v{u+2*hq+h}, v{d}, v{d+1}')
                k(f'buffer_store_dwordx4 {V(u,4)}, v{8+pi}, {WSR}, s68 offen offset:{(2*p+o)*1024}{ST}')
    stamp(k, 2); stamp(k, 6, 'z')

def wt_rows(k, task, dst):
    k(f"""s_bfe_u32 s44, {task}, 0x30002
    s_lshl_b32 s44, s44, 3
    s_lshr_b32 s45, {task}, 5
    s_lshl_b32 s45, s45, 8
    s_add_u32 s44, s44, s45
    s_mul_i32 s{dst}, s44, 514
    s_and_b32 s45, {task}, 3
    s_lshl_b32 s45, s45, 7
    s_add_u32 s{dst}, s{dst}, s45
    s_add_u32 s{dst}, s{dst}, 2
    v_lshrrev_b32 v12, 3, v1
    v_and_b32 v13, 7, v1
    v_mul_u32_u24 v11, 514, v12
    v_lshl_add_u32 v11, v13, 4, v11
    s_mov_b32 s30, {2048*257*2}
    s_mov_b32 s31, 0x20000
    s_mov_b32 s34, {2048*257*2}
    s_mov_b32 s35, 0x20000""")
def wt_dest(k, task, dst):
    k(f"""s_lshl_b32 s{dst}, {task}, 13
    s_add_u32 s{dst}, s{dst}, {WT}
    s_mov_b32 s53, 0x05040100
    s_mov_b32 s54, 0x07060302
    v_mov_b32 v11, v4
    v_xor_b32 v12, v12, v13
    v_lshlrev_b32 v12, 4, v12
    v_lshl_add_u32 v12, v13, 10, v12""")
WSRDS = 's_mov_b32 s28, s6\n s_and_b32 s29, s7, 0xffff\n s_mov_b32 s32, s8\n s_and_b32 s33, s9, 0xffff'
def p1_t(k):
    WL, WO = 32, 64
    k(f's_sub_u32 s48, s2, {NC0}\n s_lshl_b32 s48, s48, 2\n s_add_u32 s48, s48, {WAVE}')
    wt_rows(k, 's48', 49)
    for r in range(1, 4): k(f's_add_u32 s{49+r}, s49, {64*r*514}')
    k.wait(lg=0)
    k(WSRDS)
    for r in range(4):
        k(f'buffer_load_dwordx4 {V(WL+8*r,4)}, v11, {RA}, s{49+r} offen{OPT.get("ntw", "")}')
        k(f'buffer_load_dwordx4 {V(WL+8*r+4,4)}, v11, {RB}, s{49+r} offen{OPT.get("ntw", "")}')
    srd(k, 24, 22, WS_USED)
    wt_dest(k, 's48', 56)
    k(f's_lshl_b32 s44, {WAVE}, 13\n v_add_u32 v12, s44, v12\n v_add_u32 v14, s44, v4')
    for n in range(1, 8): k(f's_add_u32 s{56+n}, s56, {1024*n}\n v_xor_b32 v{14+n}, {16*n}, v14')
    tl = p2_tables(k)
    for i in range(8):
        o = WO + 4*i
        for r in range(4): k(f'v_perm_b32 v{o+r}, v{WL+8*r+4+(i>>1)}, v{WL+8*r+(i>>1)}, s{53+(i&1)}')
        k(f'ds_write_b128 v12, {V(o,4)} offset:{128*i}')
        if OPT.get('ttpre'):
            for t in tl[2*i:2*i+2]: k(t)
    stamp(k, 1)
    if OPT.get('twe'): twiddles(k)
    for n in range(8): k(f'ds_read_b128 {V(WL+4*n,4)}, v{14+n} offset:{1024*n}')
    go_load(k, 250)
    for n in range(8): k(f'buffer_store_dwordx4 {V(WL+4*n,4)}, v11, {WSR}, s{56+n} offen{ST}')
    stamp(k, 2)

def p1_i(k):
    k.wait(lg=0)
    srd(k, 24, 22, WS_USED)
    k(f"""s_lshl_b32 s44, s2, 2
    s_add_u32 s44, s44, {WAVE}
    s_cmp_lg_u32 s44, {255*4}
    s_cbranch_scc1 L_noinit
    v_lshlrev_b32 v30, 8, v1
    v_lshlrev_b32 v31, 8, v3
    v_mov_b32 v32, 0
    s_mov_b32 s44, {FLG}
    s_mov_b32 s45, {FLG+16384}
    buffer_store_dword v32, v30, {WSR}, s44 offen{ST}
    v_lshlrev_b32 v33, 7, v1
    buffer_store_dword v32, v33, {WSR}, s45 offen{ST}
    s_add_u32 s45, s45, 8192
    buffer_store_dword v32, v33, {WSR}, s45 offen{ST}
    buffer_store_dword v32, v31, {WSR}, 0 offen{ST}
    v_mov_b32 v33, 1
    s_waitcnt vmcnt(0)
    s_mov_b64 exec, 1
    global_store_dword v32, v33, s[20:21]{ST}
    s_mov_b64 exec, -1""")
    k.label('L_noinit')
    k(f"""s_sub_u32 s60, s2, {NI0}
    s_lshl_b32 s61, s60, 1
    s_lshr_b32 s44, {WAVE}, 1
    s_add_u32 s61, s61, s44            ; t
    s_and_b32 s62, {WAVE}, 1
    s_lshl_b32 s62, s62, 2             ; p
    s_add_u32 s63, s62, 4
    s_lshl_b32 s44, s61, 5
    s_add_u32 s44, s44, 1
    v_lshl_add_u32 v30, v3, 1, s44     ; 2d+1
    v_and_b32 v31, 1, v2
    v_lshlrev_b32 v31, 7, v31
    v_cmp_lt_u32 s[64:65], 1, v2
    v_mov_b32 v36, {fbits(1/16)}
    s_mul_i32 s61, s61, {12*WPS}
    s_add_u32 s61, s61, {WP+11*WPS}""")
    for t in p2_tables(k): k(t)
    if OPT.get('twe'): twiddles(k)
    stamp(k, 1)
    k.fence(); k.label('L_inv')
    k(f"""s_lshl_b32 s44, s62, 1
    s_sub_u32 s45, 32, s44
    s_cmp_eq_u32 s44, 0
    s_cselect_b32 s45, 16, s45
    v_mov_b32 v33, s44
    v_mov_b32 v34, s45
    v_cndmask_b32 v33, v33, v34, s[64:65]
    v_add_u32 v33, v33, v31
    s_add_u32 s44, s44, 1
    s_sub_u32 s45, 32, s44
    v_mov_b32 v34, s44
    v_mov_b32 v35, s45
    v_cndmask_b32 v34, v34, v35, s[64:65]
    v_add_u32 v34, v34, v31
    v_cmp_eq_u32 vcc, 0, v33
    v_mov_b32 v35, 0x100
    v_mov_b32 v37, {fbits(1/math.sqrt(512))}
    v_cndmask_b32 v35, v33, v35, vcc
    v_cndmask_b32 v37, v36, v37, vcc
    s_lshl_b32 s45, s62, 11
    s_add_u32 s66, s61, s45""")
    for e in range(8):
        src = 'v35' if e == 0 else None
        if e: k(f'v_add_u32 v{40+e}, {32*(e&3)}, v{33+(e>>2)}')
        k(f'v_mul_u32_u24 v{40+e}, {src or V(40+e)}, v30')
        k(f'v_and_b32 v{40+e}, 0x3ff, v{40+e}')
        k(f'v_cvt_f32_u32 v{40+e}, v{40+e}')
        k(f'v_mul_f32 v{40+e}, {fbits(1/1024)}, v{40+e}')
    for e in range(8):
        k(f'v_cos_f32 v{48+e}, v{40+e}\n v_sin_f32 v{56+e}, v{40+e}')
    for e in range(8):
        sc = 'v37' if e == 0 else 'v36'
        k(f'v_mul_f32 v{48+e}, {sc}, v{48+e}\n v_mul_f32 v{56+e}, {sc}, -v{56+e}')
    for part in range(2):
        for h in range(4): k(f'v_cvt_pk_bf16_f32 v{64+4*part+h}, v{48+8*part+2*h}, v{48+8*part+2*h+1}')
        k(f'buffer_store_dwordx4 {V(64+4*part,4)}, v4, {WSR}, s66 offen offset:{1024*part}{ST}')
    k('s_add_u32 s62, s62, 1\n s_cmp_lt_u32 s62, s63\n s_cbranch_scc1 L_inv')
    go_load(k, 250)
    stamp(k, 2)

WDL, WDO = 128, 64
def wd_issue(k):
    srd(k, 28, 16, F*D*2 if not OPT.get('nowd') else 0)
    k(f"""s_sub_u32 s44, s2, {NZ}
    s_lshl_b32 s44, s44, 14
    s_lshr_b32 s45, {WAVE}, 1
    s_lshl_b32 s45, s45, 13
    s_add_u32 s44, s44, s45
    s_and_b32 s45, {WAVE}, 1
    s_lshl_b32 s45, s45, 9
    s_add_u32 s69, s44, s45
    s_add_u32 s70, s69, 4096
    v_lshlrev_b32 v13, 3, v1""")
    for e in range(8): k(f'buffer_load_dwordx2 {V(WDL+2*e,2)}, v13, {RA}, s{69+(e>>2)} offen offset:{1024*(e&3)}{OPT.get("ntd", "")}')
def wd_pack(k):
    k('s_mov_b32 s64, 0x05040100\n s_mov_b32 s65, 0x07060302')
    for pi in range(4):
        for h in range(4): k(f'v_perm_b32 v{WDO+4*pi+h}, v{WDL+4*h+2+(pi>>1)}, v{WDL+4*h+(pi>>1)}, s{64+(pi&1)}')
def wd_finish(k):
    k(f's_sub_u32 s73, s2, {NZ}')
    k(f"""s_lshr_b32 s44, s73, 2
    s_lshl_b32 s44, s44, 11
    s_and_b32 s45, s73, 3
    s_mul_i32 s45, s45, {WDS}
    s_add_u32 s44, s44, s45
    s_and_b32 s45, {WAVE}, 1
    s_mul_i32 s45, s45, {16*WDS}
    s_add_u32 s44, s44, s45
    s_lshr_b32 s45, {WAVE}, 1
    s_lshl_b32 s45, s45, 9
    s_add_u32 s44, s44, s45
    s_add_u32 s44, s44, {WD}
    v_mul_u32_u24 v30, {4*WDS}, v2
    v_bfe_u32 v31, v1, 3, 1
    v_lshl_add_u32 v30, v31, 10, v30
    v_and_b32 v31, 7, v1
    v_lshl_add_u32 v30, v31, 4, v30""")
    for pi in range(4): k(f'buffer_store_dwordx4 {V(WDO+4*pi,4)}, v30, {WSR}, s44 offen offset:{128*pi}{ST}')

STATL = 131072
def p4_ids(k):
    k(f"""s_and_b32 s44, s2, 7
    s_lshl_b32 s44, s44, 2
    s_bfe_u32 s46, s2, 0x20003
    s_add_u32 s44, s44, s46
    s_lshr_b32 s45, s2, 5""")

def setup(k):
    if OPT.get('x216'):
        k(f"""s_and_b32 s44, s2, 7
        s_lshl_b32 s44, s44, 1
        s_bfe_u32 s45, s2, 0x10003
        s_add_u32 s48, s44, s45
        s_lshr_b32 s49, s2, 4
        s_lshl_b32 s45, s45, 2
        s_mov_b32 s46, s49""")
    elif OPT.get('x48'):
        k(f"""s_and_b32 s44, s2, 3
        s_lshl_b32 s44, s44, 2
        s_bfe_u32 s45, s2, 0x20003
        s_add_u32 s48, s44, s45
        s_and_b32 s44, s2, 4
        s_lshl_b32 s44, s44, 1
        s_lshr_b32 s46, s2, 5
        s_add_u32 s49, s44, s46
        s_lshl_b32 s45, s45, 1""")
    else:
        k(f"""s_and_b32 s44, s2, 1
        s_lshl_b32 s44, s44, 3
        s_bfe_u32 s45, s2, 0x30003
        s_add_u32 s48, s44, s45
        s_bfe_u32 s44, s2, 0x20001
        s_lshl_b32 s44, s44, 2
        s_lshr_b32 s46, s2, 6
        s_add_u32 s49, s44, s46
        s_lshl_b32 s46, s46, 1""")
    k(f"""s_mov_b32 s53, 0
    s_lshl_b32 s46, s48, 11
    s_lshl_b32 s47, s49, 7
    s_add_u32 s41, s46, s47
    s_add_u32 s41, s41, {RBF}
    v_mov_b32 v250, 0""")
    stamp(k, 7, 'z')
    k(f"""s_and_b32 s74, s2, 7
    s_lshl_b32 s74, s74, 8
    s_add_u32 s75, s74, {FLG}
    s_and_b32 s44, s2, 1
    s_mul_i32 s44, s44, 44
    s_bfe_u32 s45, s2, 0x20001
    s_mul_i32 s45, s45, 11
    s_add_u32 s44, s44, s45
    s_bfe_u32 s45, s2, 0x40003
    s_add_u32 s44, s44, s45
    s_sub_u32 s45, s2, {NI0-88}
    s_cmp_ge_u32 s2, {NI0}
    s_cselect_b32 s44, s45, s44
    s_cselect_b32 s46, 0, s2
    s_lshl_b32 s44, s44, 7
    s_add_u32 s71, s44, {FLG+16384}
    s_cmp_lt_u32 s2, {NZ}
    s_cselect_b32 s71, 0, s71
    s_cmp_ge_u32 s46, {NC0}
    s_cselect_b32 s71, 0, s71
    v_mov_b32 v251, 1
    s_mov_b32 s63, 0x80008000""")

def twiddles(k):
    k(f"""s_lshl_b32 s44, {WAVE}, 4
    v_add_u32 v240, s44, v3
    v_cvt_f32_u32 v240, v240
    v_mul_f32 v240, {fbits(1/2048)}, v240
    v_lshlrev_b32 v241, 2, v2
    v_add_u32 v242, s44, v241
    v_cvt_f32_u32 v241, v241
    v_cvt_f32_u32 v242, v242
    v_cvt_f32_u32 v243, v3
    v_mul_f32 v243, {fbits(1/2048)}, v243""")
    for be in range(2):
        for r in range(4):
            t = TW1 + 8*be + r
            k(f'v_add_f32 v{t}, {fbits(16*be+r)}, v241\n v_mul_f32 v{t}, v{t}, v240')
            k(f'v_sin_f32 v{t+4}, v{t}\n v_cos_f32 v{t}, v{t}')
    for be in range(2):
        if be: k(f'v_add_f32 v243, {fbits(16/2048)}, v243')
        for r in range(4):
            t = TW2 + 8*be + r
            k(f'v_add_f32 v{t}, {fbits(r)}, v242\n v_mul_f32 v{t}, v{t}, v243')
            k(f'v_sin_f32 v{t+4}, v{t}\n v_cos_f32 v{t}, v{t}')

def setup_late(k, part=None):
    k(f"""s_mul_i32 s44, s49, 11
    s_add_u32 s45, s44, 10
    s_lshr_b32 s44, s44, 2
    s_lshr_b32 s45, s45, 2
    v_and_b32 v23, 3, v1
    v_add_u32 v23, s44, v23
    v_min_u32 v23, s45, v23
    v_bfe_u32 v240, v1, 2, 1
    v_mul_u32_u24 v240, 44, v240
    v_add_u32 v23, v23, v240
    s_lshr_b32 s44, s49, 1
    s_add_u32 s44, s44, 88
    v_mov_b32 v240, s44
    v_cmp_gt_u32 vcc, 8, v1
    v_cndmask_b32 v23, v240, v23, vcc
    v_lshlrev_b32 v23, 7, v23
    v_add_u32 v23, {FLG+16384}, v23""")
    if part != 'addr':
        if OPT.get('twe'):
            uid[0] += 1; u = uid[0]
            k(f's_cmp_ge_u32 s2, {NC0}\n s_cbranch_scc1 L_tw{u}')
            twiddles(k); k.fence(); k.label(f'L_tw{u}')
        else: twiddles(k)
    for u in range(4):
        k(f's_add_u32 s45, {WAVE}, {u}\n s_and_b32 s45, s45, 3\n s_lshl_b32 s45, s45, 11\n v_add_u32 v{16+u}, s45, v4')
    k(f"""s_and_b32 s58, s2, 0xf6
    s_bfe_u32 s45, s2, 0x10003
    s_add_u32 s58, s58, s45
    s_and_b32 s45, s2, 1
    s_lshl_b32 s45, s45, 3
    s_add_u32 s58, s58, s45
    s_lshl_b32 s44, s58, 6
    s_lshl_b32 s45, {WAVE}, 19
    s_add_u32 s44, s44, s45
    s_add_u32 s55, s44, {ZT}
    s_add_u32 s56, s55, 0x10000
    s_lshr_b32 s44, s58, 4
    s_sub_u32 s45, 32, s44
    s_cmp_eq_u32 s44, 0
    s_cselect_b32 s45, 16, s45
    s_bitcmp1_b32 s58, 3
    s_cselect_b32 s44, s45, s44
    s_and_b32 s45, s58, 7
    s_lshl_b32 s45, s45, 5
    s_add_u32 s44, s44, s45
    s_sub_u32 s44, s44, 1
    s_and_b32 s44, s44, 255
    s_lshl_b32 s44, s44, 7
    s_lshl_b32 s45, {WAVE}, 16
    s_add_u32 s44, s44, s45
    s_add_u32 s59, s44, {WT}
    s_add_u32 s60, s59, 0x100000
    v_and_b32 v15, 7, v1
    v_lshlrev_b32 v15, 4, v15
    v_bfe_u32 v14, v1, 3, 1
    v_lshl_add_u32 v15, v14, 15, v15
    v_lshl_add_u32 v15, v2, 18, v15
    s_lshl_b32 s45, {WAVE}, 12
    s_add_u32 s61, s45, {SM}
    v_lshrrev_b32 v21, 2, v3
    v_lshlrev_b32 v21, 7, v21
    v_lshl_add_u32 v21, v2, 10, v21
    v_and_b32 v22, 3, v1
    v_lshlrev_b32 v14, 4, v22
    v_lshl_add_u32 v14, v21, 7, v14
    v_lshl_add_u32 v22, v22, 4, v21
    s_mov_b32 s63, 0x80008000""")

def setup2(k):
    k(f"""v_lshrrev_b32 v20, 2, v1
    v_lshlrev_b32 v20, 15, v20
    v_and_b32 v24, 3, v1
    v_lshl_add_u32 v20, v24, 4, v20
    s_lshr_b32 s44, s58, 5
    s_lshl_b32 s44, s44, 6
    s_and_b32 s45, s58, 31
    s_add_u32 s44, s44, s45
    s_lshl_b32 s44, s44, 6
    s_lshl_b32 s45, {WAVE}, 19
    s_add_u32 s44, s44, s45
    s_add_u32 s62, s44, {HT}
    s_mul_i32 s44, s49, 11
    s_mul_i32 s45, {WAVE}, 3
    s_add_u32 s50, s44, s45
    s_add_u32 s44, s50, s49
    s_mul_i32 s44, s44, {WPS}
    s_add_u32 s44, s44, {WP}
    v_add_u32 v248, s44, v4
    v_add_u32 v249, {WPS}, v248
    v_add_u32 v255, {2*WPS}, v248
    s_and_b32 s46, {WAVE}, 1
    s_lshr_b32 s47, {WAVE}, 1
    s_lshl_b32 s45, s46, 15
    s_lshl_b32 s54, s47, 12
    s_add_u32 m0, s54, s45
    s_lshl_b32 s44, s48, 17
    s_add_u32 s44, s44, {HT}
    v_and_b32 v6, 1, v2
    v_lshlrev_b32 v6, 5, v6
    v_xor_b32 v5, v6, v4
    v_add_u32 v5, s44, v5
    v_lshrrev_b32 v7, 2, v1
    v_lshl_add_u32 v6, v7, 6, v6
    v_lshl_add_u32 v6, v24, 3, v6
    s_lshl_b32 s44, s47, 5
    s_add_u32 s44, s44, s45
    v_xor_b32 v6, s44, v6
    v_xor_b32 v7, 32, v6
    v_lshrrev_b32 v9, 2, v3
    v_cmp_eq_u32 vcc, v9, v2
    s_lshl_b32 s47, s47, 8
    s_lshl_b32 s44, s46, 9
    s_add_u32 s44, s44, s47
    s_add_u32 s44, s44, {STATL}
    v_lshl_add_u32 v10, v3, 4, s44     ; statistics reads
    v_xor_b32 v8, 0x100, v10
    v_add_u32 v9, {STATL+2048}, v4
    v_cndmask_b32 v9, v9, v10, vcc     ; statistics write (other lanes go to a dummy area)
    v_lshrrev_b32 v24, 1, v2
    v_lshlrev_b32 v11, 8, v24
    v_xor_b32 v11, v11, v10            ; statistics for the mixed tile
    s_mov_b32 s64, 0x22222222
    s_mov_b32 s65, s64
    s_mov_b32 s66, 0x44444444
    s_mov_b32 s67, s66
    s_mov_b32 s68, 0x88888888
    s_mov_b32 s69, s68
    v_add_u32 v25, s50, v24
    v_lshrrev_b32 v12, 1, v25
    v_mul_u32_u24 v12, {HFS}, v12
    v_and_b32 v25, 1, v25
    v_lshl_add_u32 v12, v25, 9, v12
    v_and_b32 v25, 0x1f0, v4
    v_xor_b32 v25, s47, v25
    v_add_u32 v12, v25, v12
    s_add_u32 s44, s50, 2
    s_lshr_b32 s45, s44, 1
    s_mul_i32 s45, s45, {HFS}
    s_and_b32 s44, s44, 1
    s_lshl_b32 s44, s44, 9
    s_add_u32 s44, s44, s45
    v_lshlrev_b32 v13, 8, v24
    v_xor_b32 v13, s47, v13
    v_add_u32 v13, s44, v13
    v_lshl_add_u32 v13, v3, 4, v13
    v_and_b32 v25, 1, v2
    v_xor_b32 v25, 1, v25
    v_lshlrev_b32 v25, 10, v25
    s_lshl_b32 s44, s46, 1
    s_sub_u32 s44, 1, s44
    v_mul_i32_i24 v25, s44, v25
    v_sub_u32 v13, v13, v25""")
    wsrd(k, 32, HF+86*HFS)
    if OPT.get('wtouch'):
        k(f"""s_and_b32 s44, s48, 7
        s_lshl_b32 s44, s44, 11
        v_sub_u32 v14, v248, v4
        v_lshl_add_u32 v14, v2, 14, v14
        v_lshl_add_u32 v14, v3, 7, v14
        v_add_u32 v14, s44, v14
        v_cmp_gt_u32 vcc, 3, v2
        v_cndmask_b32 v14, -1, v14, vcc""")

def p2_negs(k, base):
    for u in range(4):
        for h in range(2): k(f'v_xor_b32 v{base+6*u+h}, s63, v{base+6*u+4+h}')

def wd_reg(u, i): return A(192+8*u+4*i, 4) if u < 8 else V(144+8*(u-8)+4*i, 4)
def wd_loads(u):
    o = [f'buffer_load_dwordx4 {wd_reg(u+s,i)}, v15, {WSR}, s51 offen offset:{2048*s+1024*i}{LD}' for s in range(2) for i in range(2)]
    return o + ['s_add_u32 s51, s51, 4096']
def wloads(R=RA):
    return [f'buffer_load_dwordx4 {A(12*ka+4*t,4)}, v{(248, 249, 255)[t]}, {R}, {("0", "s70", "s71", "s72")[ka>>2]} offen offset:{1024*(ka&3)}{LD}' for ka in range(16) for t in range(3)]

def p2(k):
    Z, WW, SG, DD, TT, PK = 32, 64, 80, 88, 104, 240
    for u in range(1 if not OPT.get('zall') else 4):
        for be in range(2): k(f'buffer_load_dwordx4 {V(Z+8*u+4*be,4)}, v14, {WSR}, s{55+be} offen{LD}')
    lds_ = f"""buffer_load_dwordx4 {V(WW+4,4)}, v15, {WSR}, s59 offen{LD}
    buffer_load_dwordx4 {V(WW+12,4)}, v15, {WSR}, s60 offen{LD}
    buffer_load_dwordx4 {V(SG,4)}, v22, {WSR}, s61 offen{LD}
    buffer_load_dwordx4 {V(SG+4,4)}, v22, {WSR}, s61 offen offset:512{LD}""".split('\n')
    lds_.insert(OPT.get('fpos', 2), f'buffer_load_dword v26, v23, {WSR}, 0 offen{LD}')
    if OPT.get('wnow'):
        for t in lds_: k(t)
    else:
        k.sprinkle = [t.strip() for t in lds_]; k.every = 60; k.since = 0
    setup2(k); flush(k)
    k(f"""s_mov_b32 s28, s24
    s_mov_b32 s29, s25
    s_mov_b32 s31, 0x20000
    s_mov_b32 s36, s24
    s_mov_b32 s37, s25
    s_mov_b32 s39, 0x20000
    s_mov_b32 s70, 4096
    s_mov_b32 s71, 8192
    s_mov_b32 s72, 12288""")
    def check1():
        k(f'v_cmp_ne_u32 vcc, 1, v26\n s_cmp_eq_u64 vcc, 0\n s_cselect_b32 s30, {WS_USED}, 0')
        k(f'buffer_load_dword v27, v23, {WSR}, 0 offen{LD}')
        if OPT.get('wtouch'): k(f'buffer_load_dword v25, v14, {RA}, 0 offen{LD}')
        k.sprinkle = wloads(); k.every = OPT.get('every', 64); k.since = 100; k.lazy = OPT.get('lazy', 1)
    def unpack():
        for t in range(2):
            for r in range(4):
                k(f'v_lshlrev_b32 v{WW+8*t+r}, 16, v{WW+8*t+4+r}\n v_and_b32 v{WW+8*t+4+r}, 0xffff0000, v{WW+8*t+4+r}')
    if not OPT.get('zall'):
        for be in range(2): k(f'ds_write_b128 v16, {V(Z+4*be,4)} offset:{8192+1024*be}')
    for u in range(4):
        for be in range(2):
            for o in range(2):
                d = V(DD+8*be+4*o, 4)
                k(f'v_mfma_f32_16x16x32_f16 {d}, {V(Z+8*u+4*be,4)}, {V(B1+6*u+2-2*o,4)}, {"0" if u==0 else d}')
        if u == 0:
            stamp(k, 5); stamp(k, 2, 'b')
            if not OPT.get('zall'):
                k.wait(lg=0); k('s_barrier')
                for v in range(1, 4):
                    for be in range(2): k(f'ds_read_b128 {V(Z+8*v+4*be,4)}, v{16+v} offset:{8192+1024*be}')
                if OPT.get('c1') == 0: check1()
    if OPT.get('c1') == 1: check1()
    E = Z + 8
    for be in range(2):
        cmul(k, DD+8*be, DD+8*be+4, TW1+8*be, TW1+8*be+4, TT, TT+4, True)
        for h in range(4): k(f'v_cvt_pk_f16_f32 v{PK+4*be+h}, v{TT+2*h}, v{TT+2*h+1}')
        for t in range(2):
            for o in range(2):
                d = V(E+8*t+4*o, 4)
                k(f'v_mfma_f32_16x16x32_f16 {d}, {V(A2+6*(2*t+be)+2-2*o,4)}, {V(PK+4*be,4)}, {"0" if be==0 else d}')
    def check2():
        global n1
        n1 = 48 - len(k.sprinkle); k.sprinkle = []
        k(f'v_cmp_ne_u32 vcc, 1, v27\n s_cmp_eq_u64 vcc, 0\n s_cselect_b32 s38, {WS_USED}, 0')
        if OPT.get('wtouch') == 2: k(f's_sub_u32 s44, {WS_USED}, s30\n s_cselect_b32 s44, 0, 0\n s_cmp_eq_u32 s30, 0\n s_cselect_b32 s44, 0, {WS_USED}\n buffer_load_dword v25, v14, {RC}, s44 offen{LD}')
        k.sprinkle = wloads(RC)[n1:]
    if OPT.get('c1') == 2: check1()
    unpack()
    stamp(k, 3, 'b')
    if OPT.get('c2', 0) == 0: check2()
    for t in range(2):
        cmul(k, E+8*t, E+8*t+4, WW+8*t, WW+8*t+4, TT, TT+4, False)
        for h in range(4): k(f'v_cvt_pk_bf16_f32 v{PK+4*t+h}, v{TT+2*h}, v{TT+2*h+1}')
        for be in range(2):
            for o in range(2):
                d = V(DD+8*be+4*o, 4)
                k(f'v_mfma_f32_16x16x32_bf16 {d}, {V(PK+4*t,4)}, {V(B3+6*(2*be+t)+2-2*o,4)}, {"0" if t==0 else d}')
    if OPT.get('c2', 0) == 1: check2()
    for be in range(2):
        cmul(k, DD+8*be, DD+8*be+4, TW2+8*be, TW2+8*be+4, TT, TT+4, False)
        for h in range(4): k(f'v_cvt_pk_bf16_f32 v{PK+4*be+h}, v{TT+2*h}, v{TT+2*h+1}')
        k(f'ds_write_b128 v16, {V(PK+4*be,4)} offset:{1024*be}')
    def step4(u, src):
        for be in range(2):
            for o in range(2):
                d = V(DD+8*be+4*o, 4)
                k(f'v_mfma_f32_16x16x32_bf16 {d}, {V(A4+6*u+2-2*o,4)}, {V(src+4*be,4)}, {d}')
    for o in range(2):
        for be in range(2):
            for r in range(4):
                d = DD+8*be+4*o+r; hi = r & 1
                k(f'v_fma_mix_f32 v{d}, v{SG+4*be+r}, v{Z+4*be+2*o+(r>>1)}, 0 op_sel:[0,{hi},0] op_sel_hi:[0,1,0]')
    stamp(k, 4, 'b')
    k.wait(lg=0); k('s_barrier')
    for u in range(1, 4):
        for be in range(2): k(f'ds_read_b128 {V(Z+8*u+4*be,4)}, v{16+u} offset:{1024*be}')
    step4(0, PK)
    for u in range(1, 4): step4(u, Z+8*u)
    OUT = 64
    rest, k.sprinkle = k.sprinkle, []
    for o in range(2):
        for be in range(2):
            for h in range(2): k(f'v_cvt_pk_bf16_f32 v{OUT+4*o+2*be+h}, v{DD+8*be+4*o+2*h}, v{DD+8*be+4*o+2*h+1}')
    k('s_cmp_lg_u32 s2, 0\n s_cbranch_scc1 L_p2_st')
    for h in range(4): k(f'v_mov_b32 v{OUT+4+h}, v{OUT+h}\n v_mov_b32 v{OUT+h}, 0')
    k.label('L_p2_st')
    for o in range(2): k(f'buffer_store_dwordx4 {V(OUT+4*o,4)}, v20, {WSR}, s62 offen offset:{2048*o}{ST}')
    stamp(k, 5, 'b')
    return rest

def barrier2(k, rest):
    print('weight loads left after phase 2:', len(rest))
    k(f's_lshl_b32 s44, s48, 12\n s_add_u32 s44, s44, {HF}')
    k(f's_and_b32 s46, {WAVE}, 1')
    for p in range(4): k(f's_xor_b32 s45, s46, {p}\n s_lshl_b32 s45, s45, 10\n s_add_u32 s{55+p}, s44, s45')
    k(f"""s_lshl_b32 s44, s49, 17
    s_lshl_b32 s45, s48, 11
    s_add_u32 s44, s44, s45
    s_add_u32 s59, s44, {HRES}
    s_add_u32 s60, s59, 0x10000
    s_lshl_b32 s44, s48, 10
    s_add_u32 s61, s44, {SM+64}
    s_mov_b32 s46, 0""")
    print('group 1:', n1)
    stamp(k, 6)
    nA = min(OPT.get('nA', 12), len(rest)); nB = min(OPT.get('nB', 48), len(rest) - nA)
    n2 = 48 - len(rest) + nA
    for t in rest[:nA]: k(t)
    rest = [t.replace(RC, WSR) for t in rest]
    stamp(k, 6, 'b')
    k(f'v_mov_b32 v250, 0\n v_mov_b32 v251, 1\n s_cmp_lg_u32 {WAVE}, 0\n s_cbranch_scc1 L_b2o')
    st = k.state()
    k(f's_mov_b64 exec, 1\n s_waitcnt vmcnt({nA})'); stamp(k, 7, 'b'); k('s_barrier'); stamp(k, 8, 'b')
    k(f'buffer_atomic_add v251, v250, {WSR}, s74 offen sc0 sc1')
    k('s_barrier')
    stamp(k, 9, 'b'); arrive_check(k, 250, 's75', 51, 2); stamp(k, 10, 'b')
    if OPT.get('hold'): k('s_barrier')
    k('s_mov_b64 exec, -1\n s_branch L_b2m')
    k.restore(st); k.label('L_b2o')
    k(f's_waitcnt vmcnt({nA})'); stamp(k, 7, 'b'); k('s_barrier'); stamp(k, 8, 'b')
    k('s_barrier')
    if OPT.get('hold'): k('s_barrier')
    stamp(k, 9, 'b'); stamp(k, 10, 'b')
    k.label('L_b2m')
    k(f's_cmp_lg_u32 s30, 0\n s_cbranch_scc1 L_bok')
    st = k.state()
    k(f's_cmp_lg_u32 s38, 0\n s_cbranch_scc1 L_bok2')
    k.label('L_bchk')
    k(f"""buffer_load_dword v26, v23, {WSR}, 0 offen{LD}
    s_add_u32 s46, s46, 1
    s_waitcnt vmcnt(0)
    v_cmp_ne_u32 vcc, 1, v26
    s_cmp_gt_u32 s46, {SPIN}
    s_cbranch_scc1 L_bgo
    s_cbranch_vccnz L_bchk""")
    k.label('L_bgo')
    for t in wloads(WSR)[n1:n2]: k(t)
    k.label('L_bok2')
    for t in wloads(WSR)[:n1]: k(t)
    k.restore(st)
    k.label('L_bok')
    for t in rest[nA:nA+nB]: k(t)
    if OPT.get('retouch'):
        def rt():
            k('s_lshr_b32 s44, s2, 3\n s_lshl_b32 s44, s44, 10\n v_lshl_add_u32 v252, v3, 6, s44')
            k.raw('    v_min_u32 v252, L_notz-L_b2x-4, v252\n    s_sub_u32 s44, s42, tables-L_b2x\n    s_subb_u32 s45, s43, 0'); k.pos += 3
            k('v_mov_b32 v253, s45\n v_add_co_u32 v252, vcc, s44, v252\n v_addc_co_u32 v253, vcc, 0, v253, vcc\n s_mov_b64 exec, 0xffff\n global_load_dword v254, v[252:253], off')
        only_wave(k, 2, rt)
    only_wave(k, 0, lambda: poll(k, 250, 2))
    global late_w
    late_w = rest[nA+nB:]
    def hw():
        k('v_bfe_u32 v16, v1, 2, 1\n v_lshlrev_b32 v16, 9, v16\n v_bfe_u32 v17, v1, 3, 1\n v_lshl_add_u32 v16, v17, 4, v16\n v_and_b32 v17, 3, v1\n v_lshl_add_u32 v16, v17, 2, v16')
        for j in range(8): k(f'buffer_load_dword v{MUV+j}, v16, {WSR}, s61 offen offset:{128*((j^3)>>1)+32*((j^3)&1)}{LD}')
    global hw_means, st3
    hw_means = hw
    k(f's_cmp_eq_u32 {WAVE}, 3\n s_cbranch_scc1 L_p3h')
    st3 = k.state()
    if OPT.get('isl'):
        k(f's_mov_b64 exec, 0\n s_cmp_eq_u32 {WAVE}, 1\n s_cbranch_scc1 L_isl0_0\n s_branch L_isl0_{OPT.get("islmid", 32)}')
        k.label('L_islret0'); k('s_mov_b64 exec, -1')
    k.label('L_b2x')

ACT, ACC, TM, STV, MUV = 32, 64, 128, 16, 24
def cost(t):
    m = t.split()[0]
    if m.startswith('buffer'): return 18 + 4 * t.count('\n')
    if m.startswith(('v_exp', 'v_rcp', 'v_rsq', 'v_permlane', 'ds_write')): return 8
    return 4 * (t.count('\n') + 1)

def p3_body(k, hw):
    acc = lambda p, n, m, par=0: ACC + 32*(p & 1) + 8*(n + (par if n == 2 and hw else 0)) + 4*m
    GR = 28 if not hw else TM + 12
    dma_pos = []
    def dma(j):
        return f'buffer_load_dwordx4 v5, {WSR}, m0 offen offset:{1024*(j&3)}{LD} lds'
    def m0step(j): return [f's_add_u32 m0, m0, {8192 + (32768 if j == 15 else 0)}'] if j & 3 == 3 and j < 31 else []
    def slot(g, m): return ACT + 8*(g & 3) + 4*m
    def reads(g):
        p, ka = divmod(g, 16); o = []
        if p and ka == 0:
            x = (p ^ (p-1)) << 15
            o = [f'v_xor_b32 v6, {x:#x}, v6', f'v_xor_b32 v7, {x:#x}, v7']
        return o + [f'ds_read_b64_tr_b16 {V(slot(g,m)+2*h,2)}, v{6+m} offset:{2048*ka+1024*h}' for m in range(2) for h in range(2)]
    def chains(p, J):
        if p == 3:
            P = J[::2]
            o = [f'v_pk_mul_f32 {V(t,2)}, {V(g,2)}, {V(g,2)}' for g, u, t, c in P]
            o += [f'v_pk_fma_f32 {V(t,2)}, {V(t,2)}, {V(c,2)}, {V(c,2)} op_sel:[0,1,0] op_sel_hi:[1,1,0]' for g, u, t, c in P]
            o += [f'v_pk_mul_f32 {V(t,2)}, {V(t,2)}, {V(g,2)}' for g, u, t, c in P]
            o += [f'v_exp_f32 v{t}, v{t}' for g, u, t, c in J]
            o += [f'v_pk_mul_f32 {V(g,2)}, {V(g,2)}, {V(u,2)}' for g, u, t, c in P]
            o += [f'v_pk_fma_f32 {V(t,2)}, {V(t,2)}, {V(c+2,2)}, {V(c+2,2)} op_sel_hi:[1,0,0]' for g, u, t, c in P]
            o += [f'v_rcp_f32 v{t}, v{t}' for g, u, t, c in J]
            o += [f'v_pk_mul_f32 {V(g,2)}, {V(g,2)}, {V(t,2)}' for g, u, t, c in P]
            return o
        o = [f'v_mul_f32 v{t}, v{g}, v{g}' for g, u, t, c in J]
        o += [f'v_mul_f32 v{u}, v{g}, v{u}' for g, u, t, c in J]
        o += [f'v_fma_f32 v{t}, v{t}, v{c+1}, v{c}' for g, u, t, c in J]
        o += [f'v_mul_f32 v{t}, v{t}, v{g}' for g, u, t, c in J]
        o += [f'v_exp_f32 v{t}, v{t}' for g, u, t, c in J]
        o += [f'v_fma_f32 v{t}, v{t}, v{c+2}, v{c+2}' for g, u, t, c in J]
        o += [f'v_rcp_f32 v{t}, v{t}' for g, u, t, c in J]
        o += [f'v_mul_f32 v{g}, v{u}, v{t}' for g, u, t, c in J]
        return o
    def epilogue(p):
        HA, HX = TM + 8, TM + 12
        J = [(acc(p, 0, m)+r, acc(p, 1, m)+r, TM+4*m+r, STV+4*m) for m in range(2) for r in range(4)]
        o = []
        if not hw: o += [f'v_permlane32_swap_b32 v{acc(p,2,0)+r}, v{acc(p,2,1)+r}' for r in range(4)]
        o += chains(p, J)
        o += [f'v_cvt_pk_bf16_f32 v{HA+2*m+h}, v{acc(p,0,m)+2*h}, v{acc(p,0,m)+2*h+1}' for h in range(2) for m in range(2)]
        tail = [f'v_permlane16_swap_b32 v{HA}, v{HA+2}', f'v_permlane16_swap_b32 v{HA+1}, v{HA+3}',
                f'buffer_store_dwordx4 {V(HA,4)}, v12, {RB}, s{55+p} offen{ST}']
        if not hw:
            x = chains(p, [(acc(p, 2, 0)+r, acc(p, 2, 1)+r, TM+r, STV+8) for r in range(4)])
            o += x[:2] + tail + x[2:]
            o += [f'v_cvt_pk_bf16_f32 v{HX+2*(p&1)+h}, v{acc(p,2,0)+2*h}, v{acc(p,2,0)+2*h+1}' for h in range(2)]
            if p & 1: o += [f'v_permlane16_swap_b32 v{HX}, v{HX+2}', f'v_permlane16_swap_b32 v{HX+1}, v{HX+3}',
                            f'buffer_store_dwordx4 {V(HX,4)}, v13, {RB}, s{55+p} offen{ST}']
        else:
            for m in range(2):
                e, od = acc(p, 2, m), acc(p, 2, m, 1); t = TM
                o += [f'v_add_f32 v{e+r}, v{e+r}, v{MUV+2*p+m}' for r in range(4)]
                if m == 0: o += tail
                for r in range(4): o += [f'v_add_f32 v{t+r}, v{e+r}, v{od+r}', f'v_sub_f32 v{t+4+r}, v{e+r}, v{od+r}']
                P0, P1 = acc(p, 2, 0), acc(p, 2, 0, 1)
                o += [f'v_cvt_pk_bf16_f32 v{P0+2*m}, v{t}, v{t+1}', f'v_cvt_pk_bf16_f32 v{P0+2*m+1}, v{t+2}, v{t+3}',
                      f'v_cvt_pk_bf16_f32 v{P1+2-2*m}, v{t+7}, v{t+6}', f'v_cvt_pk_bf16_f32 v{P1+3-2*m}, v{t+5}, v{t+4}']
            off = 512*(p ^ 1)
            o += [f'v_permlane16_swap_b32 v{P0}, v{P0+2}', f'v_permlane16_swap_b32 v{P0+1}, v{P0+3}',
                  f'buffer_store_dwordx4 {V(P0,4)}, v13, {WSR}, s59 offen offset:{off}{ST}',
                  f'v_permlane16_swap_b32 v{P1+2}, v{P1}', f'v_permlane16_swap_b32 v{P1+3}, v{P1+1}',
                  f'buffer_store_dwordx4 {V(P1,4)}, v14, {WSR}, s60 offen offset:{off}{ST}']
        return o
    def stats(p):
        K0 = -2*math.sqrt(2/math.pi)*math.log2(math.e); b = GR
        return [f'v_cndmask_b32 v{b}, v{b}, v{b+1}, s[64:65]', f'v_cndmask_b32 v{b}, v{b}, v{b+2}, s[66:67]', f'v_cndmask_b32 v{b}, v{b}, v{b+3}, s[68:69]',
                f'v_mov_b32 v{b+2}, {fbits(256e-5)}', f'v_fmac_f32 v{b+2}, 0.5, v{b}', f'v_rsq_f32 v{b+3}, v{b+2}',
                f'v_mul_f32 v{b}, {fbits(K0)}, v{b+3}', f'v_mul_f32 v{b+3}, v{b+3}, v{b+3}', f'v_mul_f32 v{b+1}, {fbits(0.044715)}, v{b}', f'v_mul_f32 v{b+1}, v{b+1}, v{b+3}',
                f'ds_write_b128 v9, {V(b,4)} offset:{512*p}']
    def getstats(p):
        R = [(10, STV), (8, STV+4)] + ([] if hw else [(11, STV+8)])
        o = [f'v_xor_b32 v{a}, 0x200, v{a}' for a, _ in R] if p else []
        return o + [f'ds_read_b128 {V(d,4)}, v{a} offset:{1024*(p>>1)}' for a, d in R]
    def issue_dma(j): k(dma(j)); dma_pos.append(k.nvm)
    if hw:
        hw_means()
        if OPT.get('isl'):
            k('s_mov_b64 exec, 0\n s_branch L_isl1_0'); k.label('L_islret1'); k('s_mov_b64 exec, -1')
    k('s_barrier')
    stamp(k, 7); stamp(k, 11, 'b')
    def island(g):
        G = OPT.get('isl')
        if not G or g % G: return
        mid = OPT.get('islmid', 32)
        k.label(f'L_isl{int(hw)}_{g}')
        k(f's_cbranch_execz L_isl{int(hw)}_{g+G}' if g + G < 64 and (hw or g + G != mid) else (f's_cbranch_execz L_islret{int(hw)}' if g + G >= 64 else f's_cbranch_execz L_islret0'))
    DP = OPT.get('dpre', 16)
    for j in range(DP):
        issue_dma(j)
        for t in m0step(j): k(t)
    if hw: k('v_and_b32 v13, 0x1f0, v4\n v_xor_b32 v13, 0x100, v13\n v_lshrrev_b32 v14, 5, v1\n v_lshl_add_u32 v13, v14, 15, v13\n v_xor_b32 v14, 0x8000, v13')
    p4_ids(k)
    k(f"""s_mov_b32 s51, 0
    s_lshl_b32 s45, s45, 2
    s_add_u32 s45, s45, {WAVE}
    s_mul_i32 s45, s45, {WDS}
    s_add_u32 s45, s45, {WD}
    v_add_u32 v15, s45, v4
    s_lshr_b32 s46, s44, 1
    s_lshl_b32 s45, s46, 11
    s_add_u32 s62, s45, {RBF}
    s_add_u32 s63, s62, 0x8000
    s_lshl_b32 s46, s46, 2
    s_and_b32 s44, s44, 1
    s_add_u32 s73, s46, s44
    s_lshl_b32 s46, s73, 10
    s_mul_i32 s47, {WAVE}, {HFS}
    s_add_u32 s46, s46, s47
    s_add_u32 s74, s46, {HF}
    s_mov_b32 s75, 0""")
    def landed(j): k(f's_waitcnt vmcnt({min(63, k.nvm - dma_pos[j])})'); k('s_barrier')
    landed(3)
    stamp(k, 8)
    rd_pos = {}
    def do_reads(g):
        for t in reads(g): k(t)
        rd_pos[g] = k.nlg
    do_reads(0); do_reads(1)
    NWD = OPT.get('wdin', 22)
    memq = [('dma', j) for j in range(DP, 16)]
    lw = list(late_w)
    memq += lw + [('dma', j) for j in range(16, 32)]
    after = []
    nfast = len(memq)
    wl = [t for u in range(0, NWD, 2) for t in wd_loads(u)]
    wdq = [wl[i] + ('\n' + wl[i+1] if i % 5 == 3 else '') for i in range(len(wl)) if i % 5 != 4]
    W1 = OPT.get('wdend', 57)
    st_pos = None
    wrate = min(1.0, len(wdq) / (W1 - nfast / OPT.get('mrate', 1)))
    eq = [hload(0, u, RC) for u in range(22)]
    ismem = lambda t: isinstance(t, tuple) or t.startswith(('ds_', 'buffer'))
    vcost = lambda t: 8 if t.startswith(('v_exp', 'v_rcp', 'v_rsq', 'v_permlane')) else 4 * (t.count('\n') + 1)
    hcost = lambda t: 4 if (t[0] == 'rd' if isinstance(t, tuple) else t.startswith('ds_read')) else 8
    salu = []
    def emit_mem(f):
        nonlocal stat_pos
        if isinstance(f, tuple):
            if f[0] == 'dma':
                while salu: k(salu.pop(0))
                issue_dma(f[1]); salu.extend(m0step(f[1]))
            else: k(f[1]); rd_pos[f[2]] = k.nlg
        else:
            t = f.split('\n')
            if t[0].startswith('buffer_load_dwordx4'):
                while salu: k(salu.pop(0))
            k(t[0]); salu.extend(x.strip() for x in t[1:])
            if f.startswith('ds_write'): stat_pos = k.nlg
    stat_pos = None
    k.wait(lg=k.nlg - rd_pos[0])
    for p in range(4):
        pre = stats(p-1) if p & 1 else []
        bg = (epilogue(p-1) + (getstats(p) if p & 1 else [])) if p else []
        nind = (16 if hw else 20) if p & 1 else 0
        SB = OPT.get('sb', 3)
        nbg = len(bg)
        k1 = OPT.get('e1end', 12) if p == 2 else 16
        tot = sum(vcost(t) for t in bg); done = 0
        val = []
        for ka in range(16):
            g = 16*p + ka
            if OPT.get('gst') and g in OPT['gst']: stamp(k, 1 + OPT['gst'].index(g), True)
            sync = None
            if p & 1 and ka == SB: sync = 'stat'
            if p == 0 and ka in (2, 6, 10): sync = ka + 5
            if p == 1 and ka == 13 and not OPT.get('mergeland'): sync = 31
            rds = []
            if g + 2 < 64:
                for t in reads(g + 2):
                    if t.startswith('ds_'): rds.append(('rd', t, g + 2))
            if g + 3 < 64 and (g + 3) % 16 == 0: late_x = [t for t in reads(g + 3) if not t.startswith('ds_')]
            else: late_x = []
            mem = []
            if memq:
                mr = OPT.get('mrate', 1); n = int((g + 1) * mr) - int(g * mr); n = OPT.get('mfirst', n) if len(dma_pos) < 16 else n; mem = memq[:n]; memq = memq[n:]
            elif wdq and not (p & 1 and ka == SB):
                left = W1 - g
                n = (len(wdq) + left - 1) // left if len(wdq) >= left else int((g + 1) * wrate) - int(g * wrate)
                mem = wdq[:n]; wdq = wdq[n:]
            if ka <= 1 and pre:
                n = 6 if ka == 0 else len(pre); val += pre[:n]; pre = pre[n:]
            o1 = 1 if p & 1 else 0
            budget = tot * (ka + 1 - o1) / (k1 - o1)
            if p & 1 and ka <= 1: budget = -1
            if p & 1 and ka == SB: rds = rds + [t for t in getstats(p-1) if t.startswith('ds_')]
            if p & 1 and ka == 1: val += [t for t in getstats(p-1) if not t.startswith('ds_')]
            while bg and (done + vcost(bg[0])/2 <= budget or ka == k1 - 1) and not (p & 1 and ka <= SB and nbg - len(bg) >= nind):
                done += vcost(bg[0]); val.append(bg.pop(0))
            if g == 48 + OPT.get('esamp', 8) - 1: val += ['v_lshlrev_b32 v5, 7, v3', 'v_lshl_add_u32 v5, v2, 28, v5', 'v_min_u32 v0, 1, v2', 'v_xor_b32 v0, 1, v0', 'v_add_u32 v3, s74, v4']
            if g == 48 + OPT.get('esamp', 8): mem = [f'buffer_load_dword v9, v5, {WSR}, s62 offen{LD}'] + mem
            if g == 48 + OPT.get('echk', 11): val += [f'v_cmp_ne_u32 vcc, v0, v9\n s_cmp_eq_u64 vcc, 0\n s_cselect_b32 s38, s34, 0']
            if g > 48 + OPT.get('echk', 11):
                er = OPT.get('erate', 1); mem = mem + eq[:er]; eq = eq[er:]
            mf = []
            for m in range(2):
                b_ = V(slot(g, m), 4)
                for n in range(3):
                    d = V(acc(p, n, m, ka & 1), 4)
                    first = ka == 0 or (n == 2 and ka == 1 and hw)
                    mf.append(f'v_mfma_f32_16x16x32_bf16 {d}, {A(12*ka+4*n,4)}, {b_}, {"0" if first else d}')
            mf = [mf[i] for i in (0, 3, 4, 1, 2, 5)]
            if p % 2 == 0: mf.insert(0, f'v_mfma_f32_16x16x32_bf16 {V(GR,4)}, {V(slot(g,0),4)}, {V(slot(g,0),4)}, {"0" if ka==0 else V(GR,4)}')
            heads = list(rds)
            for i, t in enumerate(mem): heads.insert(min(len(heads), 2 + 2*i + (1 if len(mem) == 1 else 0)), t)
            N = len(mf)
            ftot = sum(map(hcost, heads)) + sum(hcost(t) if ismem(t) else vcost(t) for t in val) + 4*len(late_x); fd = 0
            flush_val = ka == 15 or (p == 2 and ka == k1 - 1) or (p & 1 and ka == 1) or g - 48 in (OPT.get('esamp', 8) - 1, OPT.get('echk', 11))
            for i, t in enumerate(mf):
                k(t)
                last = i == N - 1
                if i == 0 and sync is not None:
                    if sync == 'stat':
                        assert not pre and not any(x.startswith('ds_write') for x in val)
                        k.wait(lg=k.nlg - stat_pos)
                        if p == 3 or OPT.get('mergeland'): k(f's_waitcnt vmcnt({min(63, k.nvm - (st_pos if p == 3 else dma_pos[31]))})')
                        k('s_barrier')
                        if p == 3 and hw: k(f'v_mov_b32 v{MUV}, 0\n v_mov_b32 v{MUV+1}, 1\n s_mov_b64 exec, 1\n buffer_store_dword v{MUV+1}, v{MUV}, {WSR}, s41 offen{ST}\n s_mov_b64 exec, -1')
                    else: landed(sync)
                if i == 1: island(g)
                nh = 0
                nxt = val[0] if val and ismem(val[0]) else (heads[0] if heads else None)
                if last and g + 1 < 64: k.wait(lg=k.nlg - rd_pos[g + 1])
                elif salu and (nxt is None or hcost(nxt) == 4) and not (i == 1 and OPT.get('isl')): k(salu.pop(0))
                while True:
                    if val and ismem(val[0]) and nh == 0: f = val.pop(0)
                    elif heads and (nh == 0 or len(heads) > N - 1 - i): f = heads.pop(0)
                    else: break
                    emit_mem(f); fd += hcost(f); nh += 1
                if last:
                    for x in late_x: k(x)
                while val and ((not ismem(val[0]) and fd + vcost(val[0])/2 <= ftot * (i+1) / N + 1e-6) or (last and flush_val)):
                    f = val.pop(0)
                    if ismem(f): emit_mem(f); fd += hcost(f)
                    else: k(f); fd += vcost(f)
            assert not heads
            if p == 2 and ka == k1 - 1: st_pos = k.nvm
        assert not bg and not val
        if p == 0: stamp(k, 9)
        if OPT.get('pst'): stamp(k, 1+p, True)
    while salu: k(salu.pop(0))
    assert not wdq
    stamp(k, 10)
    ep = epilogue(3); ne = OPT.get('eepi', 0); gap = 5
    for i, t in enumerate(ep):
        k(t)
        if i % gap == gap - 1 and ne > 0: k(eq.pop(0)); ne -= 1
    assert ne == 0
    if OPT.get('echk') > 15: k(f'v_cmp_ne_u32 vcc, v0, v9\n s_cmp_eq_u64 vcc, 0\n s_cselect_b32 s38, s34, 0')
    if OPT.get('pst'): stamp(k, 5, True)
    return 22 - len(eq)

def hload(hf, u, R):
    return f'buffer_load_dwordx4 {A(88*hf+4*u,4)}, v3, {R}, s75 offen offset:{2048*hf}{LD}\n ' + (f's_add_u32 s75, s75, {4*HFS}' if u < 21 else 's_mov_b32 s75, 0')

def redo(k, soff, hf, n, again=None, pre=None):
    uid[0] += 1; u = uid[0]
    k(f's_cmp_lg_u32 s38, 0\n s_cbranch_scc1 L_sd{u}')
    st = k.state()
    k('s_mov_b32 s46, 0')
    if pre: k(f'v_cmp_ne_u32 vcc, v0, v{pre}\n s_cbranch_vccz L_sg{u}')
    k.label(f'L_sp{u}')
    k(f"""buffer_load_dword v6, v5, {WSR}, {soff} offen{LD}
    s_add_u32 s46, s46, 1
    s_waitcnt vmcnt(0)
    v_cmp_ne_u32 vcc, v0, v6
    s_cmp_gt_u32 s46, {SPIN}
    s_cbranch_scc1 L_sg{u}
    s_cbranch_vccnz L_sp{u}""")
    k.label(f'L_sg{u}')
    k('s_mov_b32 s75, 0')
    for j in range(n): k(hload(hf, j, RB))
    if again: again()
    k.restore(st)
    k.vm = [set()] * 8 + [{('a', 88*hf+4*j+r) for r in range(4)} for j in range(n)]
    k.label(f'L_sd{u}')

def spin(k, reg, soff):
    uid[0] += 1; u = uid[0]
    k(f'v_cmp_ne_u32 vcc, v0, v{reg}\n s_mov_b32 s46, 0\n s_cbranch_vccz L_sd{u}')
    st = k.state()
    k.label(f'L_sp{u}')
    k(f"""buffer_load_dword v{reg}, v5, {WSR}, {soff} offen{LD}
    s_add_u32 s46, s46, 1
    s_waitcnt vmcnt(0)
    v_cmp_ne_u32 vcc, v0, v{reg}
    s_cmp_gt_u32 s46, {SPIN}
    s_cbranch_scc1 L_sd{u}
    s_cbranch_vccnz L_sp{u}""")
    k.restore(st)
    k.label(f'L_sd{u}')

QS, INS, PS = 1152, 4736, 9472
def p4(k, n0, nst):
    HR, RD, SUM = 32, 40, 128
    PRE = OPT.get('p4pre', 14)
    EP = OPT.get('epost', 6)
    k.vm = [{('a', 4*j+r) for r in range(4)} for j in range(n0)] + [set()] * nst
    if OPT.get('sbar'): k('s_barrier')
    el = [hload(0, j, RC) for j in range(n0, n0 + EP)]
    if not OPT.get('mix'):
        for t in el: k(t)
        el = []
    U0 = n0 if not OPT.get('nopre') else 0
    n0 += EP
    setup = f"""s_mov_b32 s28, s18
    s_and_b32 s29, s19, 0xffff
    s_mov_b32 s30, {S*D*2}
    s_lshr_b32 s65, s2, 5
    v_lshrrev_b32 v16, 3, v1
    v_bfe_u32 v17, v1, 1, 2
    s_lshl_b32 s46, s65, 2
    v_add_u32 v17, s46, v17            ; 16-column block
    v_sub_u32 v18, 31, v17
    v_min_u32 v18, v17, v18
    v_lshlrev_b32 v18, 17, v18
    v_lshrrev_b32 v17, 4, v17
    v_lshl_add_u32 v18, v17, 16, v18
    v_lshl_add_u32 v18, v16, 4, v18
    v_and_b32 v17, 1, v1
    v_lshl_add_u32 v8, v17, 15, v18    ; residual
    s_lshl_b32 s66, s73, 9
    s_lshl_b32 s46, {WAVE}, 7
    s_add_u32 s66, s66, s46
    s_add_u32 s66, s66, {HRES}
    v_mov_b32 v20, 0
    v_mov_b32 v21, 1
    s_add_u32 s41, s41, 0x8000
    s_lshr_b32 s46, s73, 2
    s_lshl_b32 s46, s46, 17
    s_and_b32 s44, s73, 3
    s_lshl_b32 s44, s44, 2
    s_add_u32 s44, s44, {WAVE}
    s_lshl_b32 s44, s44, 10
    s_add_u32 s67, s46, s44
    s_lshl_b32 s45, s65, 7
    s_add_u32 s67, s67, s45
    s_add_u32 s68, s67, 0x2000
    v_and_b32 v9, 7, v1
    v_lshlrev_b32 v9, 4, v9
    v_and_b32 v18, 3, v16
    v_lshl_add_u32 v9, v18, 15, v9
    v_lshrrev_b32 v18, 2, v16
    v_lshl_add_u32 v9, v18, 14, v9     ; output
    v_lshrrev_b32 v18, 5, v1
    v_lshl_add_u32 v10, v18, 6, v4
    s_mul_i32 s44, {WAVE}, {PS}
    v_add_u32 v10, s44, v10            ; partial sums, write
    v_bfe_u32 v18, v1, 2, 1
    v_mul_u32_u24 v11, {INS}, v18
    v_bfe_u32 v18, v1, 1, 1
    v_mul_u32_u24 v18, 576, v18
    v_add_u32 v11, v11, v18
    v_lshl_add_u32 v11, v16, 4, v11
    v_lshl_add_u32 v11, v17, 3, v11
    s_lshl_b32 s44, {WAVE}, 7
    v_add_u32 v11, s44, v11            ; partial sums, read
    v_add_u32 v12, {4*PS}, v11""".split('\n')
    def resid(hf): k(f'buffer_load_dwordx4 {V(HR+4*hf,4)}, v8, {WSR}, s66 offen offset:{1024*hf}{LD}')
    def mf(hf, u, i):
        d = V(ACC+32*hf+16*i, 16)
        return f'v_mfma_f32_32x32x16_bf16 {d}, {wd_reg(u, i)}, {A(88*hf+4*u,4)}, {"0" if u==0 else d}'
    def mm(hf, issued, hook):
        q = []
        for j in range(22):
            if hf == 0 and j >= OPT.get('wdin', 22) and j % 2 == 0:
                w = wd_loads(j); q += [lambda t=t: k(t) for t in w[:3] + [w[3] + '\n' + w[4]]]
            if j >= issued: q.append(lambda j=j: k(hload(hf, j, RB)))
        q.append(lambda: resid(hf))
        TL = OPT.get('tl', 0) if hf == 1 else 0
        for u in range(U0 if hf == 0 else 0, 22 - TL):
            for i in range(2):
                k(mf(hf, u, i))
                if q and (i == 0 or len(q) > 22 - u - OPT.get('lead', 8)): q.pop(0)()
                hook(u, i)
    def red_write(hf):
        o = [f'ds_write_b128 v10, {V(ACC+32*hf+16*i+4*q,4)} offset:{4*PS*hf+INS*i+QS*q}' for i in range(2) for q in range(4)]
        for j in range(4):
            o += [f'v_lshlrev_b32 v{SUM+4*(j&1)+(j>>1)}, 16, v{HR+4*hf+j}', f'v_and_b32 v{SUM+4*(j&1)+2+(j>>1)}, 0xffff0000, v{HR+4*hf+j}']
        return o
    def red_read(hf, pk=True):
        R = lambda w, q: (RD + 8*w + 2*q) if w < 3 else SUM + 8 + 2*q
        o = [f'ds_read_b64 {V(R(w,q),2)}, v{11+hf} offset:{PS*w+QS*q}' for w in range(4) for q in range(4)]
        if pk: o += [f'v_pk_add_f32 {V(SUM+2*q,2)}, {V(SUM+2*q,2)}, {V(R(w,q),2)}' for w in range(4) for q in range(4)]
        else: o += [f'v_add_f32 v{SUM+2*q+h}, v{SUM+2*q+h}, v{R(w,q)+h}' for w in range(4) for q in range(4) for h in range(2)]
        o += [f'v_cvt_pk_bf16_f32 v{HR+4*hf+j}, v{SUM+4*(j&1)+(j>>1)}, v{SUM+4*(j&1)+2+(j>>1)}' for j in range(4)]
        return o + [f'buffer_store_dwordx4 {V(HR+4*hf,4)}, v9, {RA}, s{67+hf} offen{OPT.get("ost", "")}']
    pre = [mf(0, u, i) for u in range(U0) for i in range(2)]
    for t in pre:
        k(t)
        for x in setup[:5]: k(x)
        setup = setup[5:]
    while setup or el:
        if el: k(el.pop(0))
        for x in setup[:4]: k(x)
        setup = setup[4:]
    k(f's_waitcnt vmcnt({EP})'); k('s_barrier')
    only_wave(k, 0, lambda: k(f's_mov_b64 exec, 1\n buffer_store_dword v21, v20, {WSR}, s41 offen{ST}'))
    stamp(k, 11)
    redo(k, 's62', 0, n0, lambda: [k(t) for t in pre])
    if OPT.get('p4st'): stamp(k, 1, True)
    LP, LC = OPT.get('lpoll', 11), OPT.get('lchk', 15)
    nl = [0]
    def hook0(u, i):
        if u == LP and i == 1: k(f'buffer_load_dword v6, v5, {WSR}, s63 offen{LD}')
        if u == LC and i == 0: k('v_cmp_ne_u32 vcc, v0, v6\n s_cmp_eq_u64 vcc, 0\n s_cselect_b32 s38, s34, 0')
        if u == OPT.get('lp2', -1) and i == 0: k(f'buffer_load_dword v7, v5, {WSR}, s63 offen{LD}')
        if (u, i) > (LC, 0) and (i == 1 or OPT.get('lrate2')): k(hload(1, nl[0], RC)); nl[0] += 1
    mm(0, n0, hook0)
    if OPT.get('p4st'): stamp(k, 2, True)
    for j, t in enumerate(red_write(0)):
        k(t)
        if j < OPT.get('lmid', 5): k(hload(1, nl[0], RC)); nl[0] += 1
    if OPT.get('p4st'): stamp(k, 3, True)
    redo(k, 's63', 1, nl[0], pre=7 if OPT.get('lp2') else None)
    if OPT.get('p4st'): stamp(k, 4, True)
    rr = red_read(0, False)
    def hook1(u, i):
        if u == 1 and i == 1: k.wait(lg=0); k('s_barrier')
        if u >= 2:
            for _ in range(4 if i else 2):
                if rr: k(rr.pop(0))
    mm(1, nl[0], hook1)
    assert not rr
    if OPT.get('p4st'): stamp(k, 5, True)
    TL = OPT.get('tl', 0); rw = red_write(1)
    for u in range(22 - TL, 22): k(mf(1, u, 0))
    for j, u in enumerate(range(22 - TL, 22)):
        k(mf(1, u, 1))
        if j == 0:
            for t in rw[8:]: k(t)
            rw = rw[:8]
        elif len(rw) > 4 and j >= 2: k(rw.pop(0))
    for t in rw: k(t)
    k.wait(lg=0); k('s_barrier')
    for t in red_read(1): k(t)

DOC = """;
;   phase 1  rows: LN1 statistics + Z = LN1(x) C (two MFMA steps, 32 x 16);  weights: W' = C^T [Wgate|Wup];
;            the small DFT matrices from the table behind the code (read through VGPR addresses)
; Hand-offs: write-through (sc1) stores, vmcnt wait, workgroup barrier, then a counter / flag; consumers use sc1 loads.
; Workgroup 255 clears the counters and flags in d_ws and then sets d_debug[0]; nothing is signalled or trusted before that.
; id&7 groupings are cache-locality choices only.  Generated by a hand-written script (register maps in the comments).
"""
def fused():
    k = K()
    prologue(k)
    if OPT.get('prio'): only_wave(k, 0, lambda: k('s_setprio 3'))
    k(f's_cmp_ge_u32 s2, {NZ}\n s_cbranch_scc1 L_notz')
    st0 = k.state()
    p1_z(k)
    k.label('L_join1')
    k.vm = [set()] * 40; k.lg = []
    setup(k)
    stamp(k, 3)
    negs = lambda: [p2_negs(k, b) for b in (B1, A2, B3, A4)]
    def ztab():
        if OPT.get('ztpre'): return
        uid[0] += 1; u = uid[0]
        k((f's_cmp_ge_u32 s2, {NZ}' if OPT.get('ttpre') else 's_cmp_lg_u32 s71, 0') + f'\n s_cbranch_scc1 L_zt{u}')
        st_ = k.state()
        for t in ztl: k(t)
        k.restore(st_); k.label(f'L_zt{u}')
    stamp(k, 8, 'z')
    k(f's_cmp_lg_u32 {WAVE}, 0\n s_cbranch_scc1 L_b1o')
    st = k.state()
    k('s_mov_b64 exec, 1\n s_mov_b32 s46, 0\n s_waitcnt vmcnt(0)')
    k.label('L_go')
    k(f"""v_cmp_ne_u32 vcc, 0, v254
    s_add_u32 s46, s46, 1
    s_cbranch_vccnz L_gone
    global_load_dword v254, v250, s[20:21]{LD}
    s_waitcnt vmcnt(0)
    s_cmp_lt_u32 s46, {SPIN}
    s_cbranch_scc1 L_go""")
    k.restore(st); k.vm = []
    k.label('L_gone')
    stamp(k, 9, 'z')
    k('s_barrier')
    k(f's_cmp_eq_u32 s71, 0\n s_cbranch_scc1 L_b1a\n buffer_store_dword v251, v250, {WSR}, s71 offen{ST}\n s_mov_b64 exec, -1\n s_branch L_b1n')
    k.label('L_b1a')
    k(f'buffer_atomic_add v251, v250, {WSR}, s74 offen sc0 sc1\n s_mov_b64 exec, -1')
    stamp(k, 10, 'z')
    if OPT.get('z0'):
        for t in ztl: k(t)
    setup_late(k); arrive_check(k, 250, 's75', 19, 1)
    k('s_mov_b64 exec, -1')
    if not OPT.get('z0'): ztab()
    k('s_mov_b64 exec, -1\n s_branch L_b1m')
    k.restore(st); k.label('L_b1o')
    k('s_waitcnt vmcnt(0)')
    stamp(k, 9, 'z')
    k('s_barrier')
    k.label('L_b1n')
    stamp(k, 10, 'z')
    if OPT.get('zfirst'): ztab()
    setup_late(k)
    if not OPT.get('zfirst'): ztab()
    k.label('L_b1m')
    k('s_waitcnt vmcnt(0)')
    negs()
    rbclear = lambda: k(f'v_lshlrev_b32 v252, 15, v1\n s_mov_b64 exec, 3\n buffer_store_dword v250, v252, {WSR}, s41 offen{ST}')
    k.label('L_b1q')
    only_wave(k, 1, rbclear)
    only_wave(k, 0, lambda: poll(k, 250, 1))
    k.label('L_b1x')
    k.vm = []
    k('s_barrier')
    stamp(k, 4)
    stamp(k, 11, 'z'); stamp(k, 1, 'b')
    barrier2(k, p2(k))
    n0 = p3_body(k, False)
    nst = 0
    nst = 2
    k.label('L_join3')
    k.fence()
    p4(k, n0, nst)
    stamp_out(k, 12)
    k.label('L_end'); k('s_endpgm')
    k.restore(st3); k.label('L_p3h'); assert p3_body(k, True) == n0
    assert not any(k.vm[-nst:]); k('s_branch L_join3')
    k.restore(st0); k.label('L_notz')
    p1_w(k)
    if OPT.get('slowjoin'): k('s_branch L_join1')
    else:
        stamp(k, 3)
        wd_pack(k)
        if OPT.get('slate'): twiddles(k); negs()
        k(f"""s_lshl_b32 s44, s74, 3
        s_add_u32 s44, s44, {FLG}
        v_and_b32 v252, 7, v1
        v_lshlrev_b32 v252, 8, v252
        v_mov_b32 v254, v254               ; the go word has been read before the flags are sampled
        buffer_load_dword v253, v252, {WSR}, s44 offen{LD}""")
        if not OPT.get('slate'): twiddles(k); negs()
        stamp(k, 8, 'z')
        k('s_waitcnt vmcnt(1)')
        def go1():
            k('s_mov_b32 s46, 0')
            k.label('L_go2')
            k(f"""v_cmp_ne_u32 vcc, 0, v254
            s_add_u32 s46, s46, 1
            s_cbranch_vccnz L_gone2
            global_load_dword v254, v250, s[20:21]{LD}
            s_waitcnt vmcnt(0)
            s_cmp_lt_u32 s46, {SPIN}
            s_cbranch_scc1 L_go2""")
            k.label('L_gone2')
        only_wave(k, 1, go1)
        stamp(k, 9, 'z')
        k('s_barrier')
        stamp(k, 10, 'z')
        only_wave(k, 1, lambda: k(f's_mov_b64 exec, 1\n buffer_store_dword v251, v250, {WSR}, s71 offen{ST}'))
        if not OPT.get('nowd'): wd_finish(k)
        k(f's_cmp_lg_u32 {WAVE}, 0\n s_cbranch_scc1 L_b1q')
        k(f'v_min_u32 v253, v253, v254\n v_cmp_eq_u32 vcc, 0, v253\n s_cbranch_vccnz L_b1q')
        k('s_branch L_b1x')
    k.restore(st_c); k.label('L_p1c')
    k(f's_cmp_ge_u32 s2, {NI0}\n s_cbranch_scc1 L_p1i')
    st1 = k.state()
    p1_t(k); k('s_branch L_join1')
    k.restore(st1); k.label('L_p1i'); p1_i(k); k('s_branch L_join1')
    o = header()
    o += f'; @launch grid=(256,1,1) block=(256,1,1) lds={STATL+4096}\n'
    o += DOC
    o += '.amdgcn_target "amdgcn-amd-amdhsa--gfx950"\n.text\n' + k.text()
    o += tables_text() + 'L_image_end:\n'
    o += '.section .rodata,"a"\n.p2align 6\n' + kd(KN, k)
    return o

if __name__ == '__main__':
    out = sys.argv[1]
    for a in sys.argv[2:]:
        key, _, val = a.partition('=')
        OPT[key] = eval(val) if val else True
    open(out, 'w').write(fused())
```
